```python
import torch

def _softmax(x, axis=-1):
    return torch.softmax(x, dim=axis)
def _gelu(x):
    return torch.nn.functional.gelu(x, approximate="tanh")
def _silu(x):
    return torch.nn.functional.silu(x)
def _sigmoid(x):
    return torch.sigmoid(x)
def _layernorm(x, axis=-1, eps=1e-5):
    m = x.mean(dim=axis, keepdim=True)
    v = x.var(dim=axis, keepdim=True, unbiased=False)
    return (x - m) / torch.sqrt(v + eps)
def _scatter_add(tgt, idx, src, axis=0):
    return tgt.clone().index_add_(axis, idx, src)
def _segment_sum(src, seg, n):
    out = torch.zeros((n,) + src.shape[1:], dtype=src.dtype)
    return out.index_add_(0, seg, src)
def _pad(x, pw):
    flat = tuple(v for pair in reversed(pw) for v in pair)
    return torch.nn.functional.pad(x, flat)

kernel_name = 'recurrent_scan__compressed_kv_cla__glu_gated_bilinear__prompt'

def setup_inputs():

    _w = (lambda a: (lambda t: t.to(torch.bfloat16) if t.is_floating_point() else t)(torch.as_tensor(a)))
    def _A_setup():
        B, H, Sq, Sk, D, M = 1, 32, 2048, 2048, 128, 640
        Dc = 4 * D
        return {
            "x": _w((lambda *s: torch.randn(*s, dtype=torch.bfloat16) * 0.05)(B, Sq, M)),
            "c_kv": _w((lambda *s: torch.randn(*s, dtype=torch.bfloat16) * 1.6)(B, Sk, Dc)),
            "w_q": _w((lambda *s: torch.randn(*s, dtype=torch.bfloat16) * 1.6)(M, H, D) * (M ** -0.5)),
            "w_uk": _w((lambda *s: torch.randn(*s, dtype=torch.bfloat16) * 1.6)(Dc, H, D) * (Dc ** -0.5)),
            "w_uv": _w((lambda *s: torch.randn(*s, dtype=torch.bfloat16) * 1.6)(Dc, H, D) * (Dc ** -0.5)),
            "w_o": _w((lambda *s: torch.randn(*s, dtype=torch.bfloat16) * 1.6)(H, D, M) * ((H * D) ** -0.5)),
        }
    _A_in = _A_setup()

    def _B_setup():
        B, S, D, F = 1, 2048, 640, 1728
        return {
            "x": _w((lambda *s: torch.randn(*s, dtype=torch.bfloat16) * 0.05)(B, S, D)),
            "w_gate": _w((lambda *s: torch.randn(*s, dtype=torch.bfloat16) * 0.2)(D, F) * (D ** -0.5)),
            "w_up": _w((lambda *s: torch.randn(*s, dtype=torch.bfloat16) * 0.2)(D, F) * (D ** -0.5)),
            "w_down": _w((lambda *s: torch.randn(*s, dtype=torch.bfloat16) * 0.2)(F, D) * (F ** -0.5)),
        }
    _B_in = _B_setup()

    return {
        "A_x": _A_in["x"],
        "A_c_kv": _A_in["c_kv"],
        "A_w_q": _A_in["w_q"],
        "A_w_uk": _A_in["w_uk"],
        "A_w_uv": _A_in["w_uv"],
        "A_w_o": _A_in["w_o"],
        "B_x": _B_in["x"],
        "B_w_gate": _B_in["w_gate"],
        "B_w_up": _B_in["w_up"],
        "B_w_down": _B_in["w_down"],
    }

def reference(A_x, A_c_kv, A_w_q, A_w_uk, A_w_uv, A_w_o, B_x, B_w_gate, B_w_up, B_w_down):
    def _A_ref(x, c_kv, w_q, w_uk, w_uv, w_o):
        B, Sq, M = x.shape[0], x.shape[1], x.shape[2]
        Sk = c_kv.shape[1]
        H, D = w_q.shape[1], w_q.shape[2]
        q = torch.einsum("bqm,mhd->bhqd", x, w_q)
        k = torch.einsum("bkc,chd->bhkd", c_kv, w_uk)
        v = torch.einsum("bkc,chd->bhkd", c_kv, w_uv)
        scores = torch.einsum("bhqd,bhkd->bhqk", q, k) * (D ** -0.5)
        off = Sk - Sq
        qi = torch.arange(Sq)[:, None]
        kj = torch.arange(Sk)[None, :]
        cmask = kj <= (qi + off)
        scores = torch.where(cmask[None, None], scores, -1e9)
        p = _softmax(scores, axis=-1)
        ctx = torch.einsum("bhqk,bhkd->bhqd", p, v)
        return torch.einsum("bhqd,hdm->bqm", ctx, w_o)

    def _B_ref(x, w_gate, w_up, w_down):
        g = torch.einsum("bsd,df->bsf", x, w_gate)
        u = torch.einsum("bsd,df->bsf", x, w_up)
        h = g * u
        return torch.einsum("bsf,fd->bsd", h, w_down)

    x = A_x
    xn = _layernorm(x, axis=-1)
    s = _A_ref(xn, A_c_kv, A_w_q, A_w_uk, A_w_uv, A_w_o)
    g = _silu(_B_ref(xn, B_w_gate, B_w_up, B_w_down))
    return x + s * g
```

```python
class Asm:
    def __init__(self):
        self.lines = []
        self._lbl = 0
    def __call__(self, s):
        for l in s.split('\n'):
            l = l.strip()
            if l:
                self.lines.append('    ' + l)
    def raw(self, s):
        self.lines.append(s)
    def label(self, l):
        self.lines.append(l + ':')
    def newlabel(self, p='L'):
        self._lbl += 1
        return '%s_%d' % (p, self._lbl)
    def text(self):
        return '\n'.join(self.lines) + '\n'

def vr(b, n=1):
    return 'v%d' % b if n == 1 else 'v[%d:%d]' % (b, b + n - 1)
def ar(b, n=1):
    return 'a%d' % b if n == 1 else 'a[%d:%d]' % (b, b + n - 1)
def sr(b, n=1):
    return 's%d' % b if n == 1 else 's[%d:%d]' % (b, b + n - 1)

def kernel_begin(a, name):
    a.raw('.text')
    a.raw('.globl %s' % name)
    a.raw('.p2align 8')
    a.raw('.type %s,@function' % name)
    a.label(name)

def kernel_desc(a, name, nvgpr, accum, nsgpr=102):
    a.raw('.section .rodata,"a"')
    a.raw('.p2align 6')
    a.raw('.amdhsa_kernel %s' % name)
    a.raw('  .amdhsa_next_free_vgpr %d' % nvgpr)
    a.raw('  .amdhsa_next_free_sgpr %d' % nsgpr)
    a.raw('  .amdhsa_accum_offset %d' % accum)
    a.raw('  .amdhsa_group_segment_fixed_size 0')
    a.raw('  .amdhsa_kernarg_size 104')
    a.raw('  .amdhsa_user_sgpr_count 2')
    a.raw('  .amdhsa_user_sgpr_kernarg_segment_ptr 1')
    a.raw('  .amdhsa_system_sgpr_workgroup_id_x 1')
    a.raw('.end_amdhsa_kernel')
```

```python
from asmlib import *
import struct

WS_XN = 0x0
WS_KV = 0x1000000
WS_CTX = 0x4000000
WS_H = 0x6000000
WS_SIZE = 0x10000000

ARG = dict(x=0, ckv=8, wq=16, wuk=24, wuv=32, wo=40, bx=48, wg=56, wu=64, wd=72, out=80, dbg=88, ws=96)
SIZE = dict(x=2048*640*2, ckv=2048*512*2, wq=640*4096*2, wuk=512*4096*2, wuv=512*4096*2, wo=4096*640*2,
            wg=640*1728*2, wu=640*1728*2, wd=1728*640*2, out=2048*640*2, dbg=256, ws=WS_SIZE)

def f2u(f):
    return '0x%08x' % struct.unpack('<I', struct.pack('<f', f))[0]

def load_srds(a, items):
    for n, sb in items:
        a('s_load_dwordx2 %s, s[0:1], %d' % (sr(sb, 2), ARG[n]))
    for n, sb in items:
        a('s_mov_b32 s%d, 0x%x' % (sb + 2, SIZE[n]))
        a('s_mov_b32 s%d, 0x00020000' % (sb + 3))

MFMA = 'v_mfma_f32_32x32x16_bf16'

def emit_gaps(a, mfmas, fill):
    for g, m in enumerate(mfmas):
        for s in fill.get(('pre', g), []):
            a(s)
        a(m)
        for s in fill.get(g, []):
            a(s)

import os
DIAG = os.environ.get('DIAG', '0') == '1'
WS_STAMP = 0xF000000
def stamp(a, i):
    if not DIAG: return
    a('s_memrealtime s[96:97]')
    a('s_waitcnt lgkmcnt(0)')
    a('s_mov_b32 s%d, s96' % (70 + i))
def stamp_flush(a, kidx, ws_srd, swave, n):
    if not DIAG: return
    a('s_lshl_b32 s96, s2, 2')
    a('s_add_u32 s96, s96, s%d' % swave)
    a('s_lshl_b32 s96, s96, 6')
    a('s_add_u32 s96, s96, 0x%x' % (WS_STAMP + kidx * 0x10000))
    a('v_mov_b32 v0, 0')
    for i in range(n):
        a('v_mov_b32 v1, s%d' % (70 + i))
        a('buffer_store_dword v1, v0, %s, s96 offen offset:%d' % (sr(ws_srd, 4), 4 * i))
        a('s_nop 1')
def cstamp(a, i):
    if not DIAG: return
    a('s_memtime s[96:97]')
    a('s_waitcnt lgkmcnt(0)')
    a('s_mov_b32 s%d, s96' % (70 + i))
MF16 = 'v_mfma_f32_16x16x32_bf16'
ST_FLAGS = os.environ.get('ST_FLAGS', '')
```

```python
from common import *

def ln_part(a, XR, WS, vrow, vc):
    XF = XR + 12
    t0, t1, t2, t3, t4, t5, t6 = [XF + 20 + i for i in range(7)]
    for j in range(10):
        a('v_lshlrev_b32 v%d, 16, v%d' % (XF + 2 * j, XR + j))
        a('v_and_b32 v%d, 0xffff0000, v%d' % (XF + 2 * j + 1, XR + j))
    def reduce32(v, t):
        for r in (8, 4, 2, 1):
            a('s_nop 1')
            a('v_add_f32_dpp v%d, v%d, v%d row_ror:%d row_mask:0xf bank_mask:0xf' % (v, v, v, r))
        a('v_mov_b32 v%d, v%d' % (t, v))
        a('s_nop 1')
        a('v_permlane16_swap_b32 v%d, v%d' % (v, t))
        a('s_nop 1')
        a('v_add_f32 v%d, v%d, v%d' % (v, v, t))
    a('v_add_f32 v%d, v%d, v%d' % (t0, XF, XF + 1))
    for j in range(2, 20):
        a('v_add_f32 v%d, v%d, v%d' % (t0, t0, XF + j))
    reduce32(t0, t1)
    a('v_mul_f32 v%d, %s, v%d' % (t0, f2u(1.0 / 640), t0))
    a('v_sub_f32 v%d, v%d, v%d' % (t2, XF, t0))
    a('v_mul_f32 v%d, v%d, v%d' % (t3, t2, t2))
    for j in range(1, 20):
        a('v_sub_f32 v%d, v%d, v%d' % (t2, XF + j, t0))
        a('v_fmac_f32 v%d, v%d, v%d' % (t3, t2, t2))
    reduce32(t3, t1)
    a('v_mul_f32 v%d, %s, v%d' % (t3, f2u(1.0 / 640), t3))
    a('v_cvt_pk_bf16_f32 v%d, v%d, v%d' % (t4, t0, t3))
    a('v_lshlrev_b32 v%d, 16, v%d' % (t0, t4))
    a('v_and_b32 v%d, 0xffff0000, v%d' % (t3, t4))
    a('v_add_f32 v%d, %s, v%d' % (t3, f2u(1e-5), t3))
    a('v_cvt_pk_bf16_f32 v%d, v%d, v%d' % (t3, t3, t3))
    a('v_and_b32 v%d, 0xffff0000, v%d' % (t3, t3))
    a('v_sqrt_f32 v%d, v%d' % (t3, t3))
    a('s_nop 0')
    a('v_cvt_pk_bf16_f32 v%d, v%d, v%d' % (t3, t3, t3))
    a('v_and_b32 v%d, 0xffff0000, v%d' % (t3, t3))
    a('v_rcp_f32 v%d, v%d' % (t5, t3))
    a('s_nop 0')
    a('v_fma_f32 v%d, -v%d, v%d, 1.0' % (t6, t3, t5))
    a('v_fma_f32 v%d, v%d, v%d, v%d' % (t5, t6, t5, t5))
    for j in range(10):
        lo, hi = XF + 2 * j, XF + 2 * j + 1
        a('v_sub_f32 v%d, v%d, v%d' % (lo, lo, t0))
        a('v_sub_f32 v%d, v%d, v%d' % (hi, hi, t0))
        a('v_cvt_pk_bf16_f32 v%d, v%d, v%d' % (XR + j, lo, hi))
        a('v_lshlrev_b32 v%d, 16, v%d' % (lo, XR + j))
        a('v_and_b32 v%d, 0xffff0000, v%d' % (hi, XR + j))
        a('v_mul_f32 v%d, v%d, v%d' % (lo, lo, t5))
        a('v_mul_f32 v%d, v%d, v%d' % (hi, hi, t5))
        a('v_cvt_pk_bf16_f32 v%d, v%d, v%d' % (XR + j, lo, hi))
    a('v_lshrrev_b32 v%d, 4, v%d' % (t0, vrow))
    a('v_mul_u32_u24 v%d, 20480, v%d' % (t0, t0))
    a('v_lshrrev_b32 v%d, 3, v%d' % (t1, vc))
    a('v_lshl_add_u32 v%d, v%d, 10, v%d' % (t0, t1, t0))
    a('v_and_b32 v%d, 3, v%d' % (t1, vc))
    a('v_lshl_add_u32 v%d, v%d, 8, v%d' % (t0, t1, t0))
    a('v_and_b32 v%d, 15, v%d' % (t1, vrow))
    a('v_lshl_add_u32 v%d, v%d, 4, v%d' % (t0, t1, t0))
    a('v_bfe_u32 v%d, v%d, 2, 1' % (t1, vc))
    a('v_lshl_add_u32 v%d, v%d, 3, v%d' % (t0, t1, t0))
    for j in range(5):
        a('s_mov_b32 s39, %d' % (WS_XN + 4096 * j))
        a('buffer_store_dwordx2 %s, v%d, %s, s39 offen' % (vr(XR + 2 * j, 2), t0, sr(WS, 4)))

def gen_k1(a, name):
    kernel_begin(a, name)
    end = name + '_end'
    a('s_cmp_ge_u32 s2, 256')
    a('s_cbranch_scc1 %s' % end)
    CKV, WUK, WUV, WS, X = 8, 12, 16, 20, 24
    load_srds(a, [('ckv', CKV), ('wuk', WUK), ('wuv', WUV), ('x', X), ('ws', WS)])
    sW, sH, sKT = 28, 29, 30
    a('v_lshrrev_b32 v1, 6, v0')
    a('v_and_b32 v0, 63, v0')
    a('v_readfirstlane_b32 s%d, v1' % sW)
    stamp(a, 0)
    a('s_and_b32 s29, s2, 7')
    a('s_lshl_b32 s29, s29, 2')
    a('s_lshr_b32 s31, s2, 3')
    a('s_and_b32 s31, s31, 3')
    a('s_add_u32 s29, s29, s31')
    a('s_lshr_b32 s30, s2, 5')
    VA = 8
    a('v_lshrrev_b32 v6, 3, v0')
    a('v_lshlrev_b32 v6, 10, v6')
    a('v_lshrrev_b32 v7, 4, v0')
    a('v_and_b32 v12, 7, v0')
    a('v_xor_b32 v12, v12, v7')
    a('v_xor_b32 v13, 4, v12')
    a('v_lshl_add_u32 v12, v12, 4, v6')
    a('v_lshl_add_u32 v13, v13, 4, v6')
    for j in range(4):
        a('v_add_u32 v%d, %d, v%d' % (VA + j, j * (8192 - 1024), 12 + (j & 1)))
    VW = 12
    a('v_bfe_u32 v16, v0, 1, 3')
    a('v_xor_b32 v16, v16, v7')
    a('v_xor_b32 v17, 4, v16')
    a('v_and_b32 v18, 1, v0')
    a('v_lshlrev_b32 v18, 4, v18')
    a('v_lshl_add_u32 v18, v7, 13, v18')
    a('v_lshl_add_u32 v16, v16, 5, v18')
    a('v_lshl_add_u32 v17, v17, 5, v18')
    for j in range(4):
        a('v_add_u32 v%d, %d, v%d' % (VW + j, j * (32768 - 1024), 16 + (j >> 1)))
    sA, sWo, sLA, sLW, sA2 = 32, 33, 34, 35, 36
    a('s_lshl_b32 s32, s%d, 2' % sKT)
    a('s_add_u32 s32, s32, s%d' % sW)
    a('s_lshl_b32 s32, s32, 16')
    a('s_lshl_b32 s33, s%d, 17' % sW)
    a('s_lshl_b32 s34, s%d, 8' % sH)
    a('s_add_u32 s33, s33, s34')
    a('s_lshl_b32 s34, s%d, 13' % sW)
    a('s_lshl_b32 s35, s%d, 12' % sW)
    a('s_add_u32 s35, s35, 65536')
    a('v_lshrrev_b32 v2, 5, v0')
    a('v_and_b32 v3, 31, v0')
    a('s_lshl_b32 s31, s2, 2')
    a('s_add_u32 s31, s31, s%d' % sW)
    a('s_lshl_b32 s31, s31, 1')
    a('v_add_u32 v4, s31, v2')
    a('v_mul_u32_u24 v5, 1280, v4')
    a('v_lshl_add_u32 v5, v3, 3, v5')

    def dma_list(slot):
        L = []
        L.append(['s_add_u32 m0, s%d, %d' % (sLA, slot * 32768), 's_add_u32 s%d, s%d, 32768' % (sA2, sA)])
        for j in range(4):
            L.append(['buffer_load_dwordx4 v%d, %s, s%d offen offset:%d lds' % (VA + j, sr(CKV, 4), sA, 1024 * j)])
        L.append(['s_add_u32 m0, s%d, %d' % (sLW, slot * 32768), 's_add_u32 s%d, s%d, 128' % (sA, sA)])
        for j in range(4):
            L.append(['buffer_load_dwordx4 v%d, %s, s%d offen offset:%d lds' % (VW + j, sr(WUK, 4), sWo, 1024 * j)])
        L.append(['s_add_u32 m0, s%d, %d' % (sLA, slot * 32768 + 4096), 's_nop 0'])
        for j in range(4):
            L.append(['buffer_load_dwordx4 v%d, %s, s%d offen offset:%d lds' % (VA + j, sr(CKV, 4), sA2, 1024 * j)])
        L.append(['s_add_u32 m0, s%d, %d' % (sLW, slot * 32768 + 16384), 's_nop 0'])
        for j in range(4):
            L.append(['buffer_load_dwordx4 v%d, %s, s%d offen offset:%d lds' % (VW + j, sr(WUV, 4), sWo, 1024 * j)])
        L.append(['s_add_u32 s%d, s%d, %d' % (sWo, sWo, 64 * 8192)])
        return L
    a('s_waitcnt lgkmcnt(0)')
    XR = 192
    for grp in dma_list(0):
        for s in grp: a(s)
    for j in range(5):
        a('buffer_load_dwordx2 %s, v5, %s, 0 offen offset:%d' % (vr(XR + 2 * j, 2), sr(X, 4), 256 * j))
    for grp in dma_list(1):
        for s in grp: a(s)
    a('s_lshr_b32 s37, s2, 3')
    a('s_lshl_b32 s37, s37, 2')
    a('s_add_u32 s37, s37, s%d' % sW)
    a('v_lshrrev_b32 v20, 2, v0')
    a('v_lshlrev_b32 v20, 10, v20')
    a('v_and_b32 v21, 3, v0')
    a('v_lshl_add_u32 v21, v21, 7, v20')
    a('s_lshl_b32 s38, s37, 14')
    a('buffer_load_dword v240, v21, %s, s38 offen offset:256' % sr(CKV, 4))
    a('v_bfe_u32 v22, v0, 3, 2')
    a('v_lshlrev_b32 v22, 13, v22')
    a('v_and_b32 v23, 7, v0')
    a('v_lshl_add_u32 v22, v23, 7, v22')
    a('s_lshl_b32 s39, s37, 15')
    a('s_and_b32 s40, s2, 7')
    a('s_lshl_b32 s40, s40, 10')
    a('s_add_u32 s39, s39, s40')
    a('buffer_load_dword v241, v22, %s, s39 offen' % sr(WUK, 4))
    a('buffer_load_dword v242, v22, %s, s39 offen' % sr(WUV, 4))
    a('buffer_load_dword v243, v21, %s, s38 offen offset:512' % sr(CKV, 4))
    NPF = 4
    RA = 16
    a('s_lshr_b32 s37, s%d, 1' % sW)
    a('s_lshl_b32 s37, s37, 14')
    a('v_bfe_u32 v20, v0, 1, 3')
    a('v_xor_b32 v20, v20, v7')
    a('v_and_b32 v21, 15, v0')
    a('v_lshlrev_b32 v21, 7, v21')
    a('v_add_u32 v21, s37, v21')
    a('v_lshl_add_u32 v%d, v20, 4, v21' % RA)
    a('v_xor_b32 v20, 4, v20')
    a('v_lshl_add_u32 v%d, v20, 4, v21' % (RA + 1))
    RW = 18
    a('v_bfe_u32 v22, v0, 2, 2')
    a('v_lshl_add_u32 v23, v7, 3, v22')
    a('v_lshlrev_b32 v23, 8, v23')
    a('v_and_b32 v24, 3, v0')
    a('v_lshl_add_u32 v23, v24, 3, v23')
    a('v_add_u32 v23, 65536, v23')
    a('v_bfe_u32 v22, v0, 2, 3')
    a('s_and_b32 s38, s%d, 1' % sW)
    a('s_lshl_b32 s38, s38, 2')
    a('v_xor_b32 v22, s38, v22')
    for nb in range(4):
        a('v_xor_b32 v24, %d, v22' % nb)
        a('v_lshl_add_u32 v%d, v24, 5, v23' % (RW + nb))
    a('s_waitcnt vmcnt(%d)' % (16 + NPF))
    stamp(a, 1)
    ln_part(a, XR, WS, 4, 3)
    stamp(a, 2)
    FR = 64
    def reads(slot, ks, fs):
        base = FR + 64 * fs
        def A(i): return ['ds_read_b128 %s, v%d offset:%d' % (vr(base + 4 * i, 4), RA + ks, slot * 32768 + i * 2048)]
        def W(mat, nb): return ['ds_read_b64_tr_b16 %s, v%d offset:%d' % (vr(base + 32 + 16 * mat + 4 * nb + 2 * r, 2), RW + nb,
                                slot * 32768 + mat * 16384 + (32 * ks + 4 * r) * 256) for r in range(2)]
        L = A(0)
        for nb in range(4): L += W(0, nb)
        for nb in range(4): L += W(1, nb)
        for i in range(1, 8): L += A(i)
        return L
    def mfmas(fs, first):
        base = FR + 64 * fs
        L = []
        for rb in range(8):
            act = vr(base + 4 * rb, 4)
            for mat in range(2):
                for nb in range(4):
                    w = vr(base + 32 + 16 * mat + 4 * nb, 4)
                    d = ar((rb * 8 + mat * 4 + nb) * 4, 4)
                    c = '0' if first else d
                    if mat == 0: L.append('%s %s, %s, %s, %s' % (MF16, d, w, act, c))
                    else:        L.append('%s %s, %s, %s, %s' % (MF16, d, act, w, c))
        return L
    a('s_barrier')
    stamp(a, 3)
    for s in reads(0, 0, 0): a(s)
    NST = 8
    for st in range(NST):
        slot = st & 1
        for ks in range(2):
            fs = ks
            fill = {}
            pre = ['s_waitcnt lgkmcnt(0)']
            rd = []
            if ks == 1:
                if st < NST - 1:
                    pre = ['s_waitcnt vmcnt(%d) lgkmcnt(0)' % (NPF + 5 if st == 0 else 0), 's_barrier']
                    rd = reads(1 - slot, 0, 0)
            else:
                rd = reads(slot, 1, 1)
            fill[('pre', 0)] = pre
            for i, s in enumerate(rd):
                fill.setdefault(2 * i, []).append(s)
            if ks == 1 and st + 2 < NST:
                for i, grp in enumerate(dma_list(slot)):
                    fill.setdefault(1 + 2 * i + (i // 2) * 2 if False else 1 + 3 * i - (i % 2), []).extend(grp)
            emit_gaps(a, mfmas(fs, st == 0 and ks == 0), fill)
        if st in (0, 1, 3, 5, 7): stamp(a, 4 + [0, 1, 3, 5, 7].index(st))
        if st == 3: cstamp(a, 11)
        if st == 7: cstamp(a, 12)
    a('s_lshl_b32 s41, s%d, 20' % sH)
    a('s_lshl_b32 s42, s%d, 17' % sKT)
    a('s_add_u32 s41, s41, s42')
    a('s_lshr_b32 s42, s%d, 1' % sW)
    a('s_lshl_b32 s42, s42, 16')
    a('s_add_u32 s41, s41, s42')
    a('s_add_u32 s41, s41, 0x%x' % WS_KV)
    a('s_and_b32 s42, s%d, 1' % sW)
    a('s_lshl_b32 s43, s42, 11')
    a('s_add_u32 s43, s43, s41')
    a('s_lshl_b32 s44, s42, 12')
    a('s_add_u32 s44, s44, s41')
    a('s_add_u32 s44, s44, 16384')
    a('v_lshlrev_b32 v1, 4, v0')
    cnt = 0
    def out(b0, b1, sb, off):
        nonlocal cnt
        T = 64 + 16 * (cnt % 8); cnt += 1
        for e in range(4): a('v_accvgpr_read_b32 v%d, a%d' % (T + e, b0 * 4 + e))
        for e in range(4): a('v_accvgpr_read_b32 v%d, a%d' % (T + 4 + e, b1 * 4 + e))
        for e in range(4): a('v_cvt_pk_bf16_f32 v%d, v%d, v%d' % (T + 8 + e, T + 2 * e, T + 2 * e + 1))
        a('s_add_u32 s45, s%d, %d' % (sb, off & ~4095))
        a('buffer_store_dwordx4 %s, v1, %s, s45 offen offset:%d %s' % (vr(T + 8, 4), sr(WS, 4), off & 4095, ST_FLAGS))
    for rp in range(4):
        for rb in (2 * rp, 2 * rp + 1):
            for s in range(2):
                out(rb * 8 + 2 * s, rb * 8 + 2 * s + 1, 43, (rb // 4) * 32768 + ((rb % 4) * 4 + s) * 1024)
        for nb in range(4):
            rb = 2 * rp
            out(rb * 8 + 4 + nb, (rb + 1) * 8 + 4 + nb, 44, (rb // 4) * 32768 + (((rb % 4) // 2) * 8 + nb) * 1024)
    stamp(a, 9)
    if DIAG: a('s_waitcnt vmcnt(0)')
    stamp(a, 10)
    stamp_flush(a, 0, WS, sW, 13)
    a.label(end)
    a('s_endpgm')
    kernel_desc(a, name, 512, 256)
    return a
```

```python
from common import *
import math

class VM:
    def __init__(self): self.n = 0
    def op(self):
        self.n += 1
        return self.n
    def cnt(self, ident): return self.n - ident

WS, WQ, WG, WU = 8, 12, 16, 20
sW, sH, sI, sCT = 28, 29, 30, 31
V_LANE16, V_LANE16V = 1, 2
V_KRD, V_VRD = 3, 4
V_T0, V_T1, V_T2, V_T3 = 5, 6, 7, 8
V_L = 9
TRI = 12
V_L = 8
V_T3 = 0
NEGM = 16
LT = 32
TMP = 48
SB = [[64, 96], [128, 160]]
PB = [[192, 208], [224, 240]]
A_O = [0, 64]; A_Q = [128, 160]; A_RING = 192; V_ONES = 56
D, R = int(os.environ.get('ATT_D', 10)), 16
XP = os.environ.get('XP', '')
THR = 2.0 ** 14
BIG = 1.0e30
P_XOFF2 = 16
P_WOFF = 17
P_WRD = 24
P_ACCV = 128
P_ACCA = 0
P_WF = 128
P_ACT = 192
WSLOT = [96 * 1024, 64 * 1024, 128 * 1024]

def qgu_loop(a, nm, extra_vm):
    vm = VM()
    NST = 10
    sLW = 40
    s_w = [36, 37, 38, 39]
    srd = [WQ, WQ, WG, WU]; stride = [8192, 8192, 3456, 3456]
    s_q = [41, 42]
    wid = {}; aid = {}
    def w_dma(st):
        L = []
        for m in range(nm):
            L.append(('s', 's_add_u32 m0, s%d, %d' % (sLW, WSLOT[st % 3] + m * 8192)))
            L.append(('n', 's_nop 0'))
            for j in range(2):
                L.append(('w', st, 'buffer_load_dwordx4 v%d, %s, s%d offen offset:%d lds' % (P_WOFF + 2 * (m // 2) + j, sr(srd[m], 4), s_w[m], 1024 * j)))
            L.append(('s', 's_add_u32 s%d, s%d, %d' % (s_w[m], s_w[m], 64 * stride[m])))
        return L
    def a_load(k):
        L = []
        base = P_ACT + 16 * (k % 4)
        for qi in range(4):
            L.append(('a', k, 'buffer_load_dwordx4 %s, v%d, %s, s%d offen offset:%d' % (ar(base + 4 * qi, 4), (V_LANE16, P_XOFF2)[qi % 2], sr(WS, 4), s_q[qi // 2], 1024 * (k % 4))))
        if k % 4 == 3:
            for s in s_q: L.append(('s', 's_add_u32 s%d, s%d, 4096' % (s, s)))
        return L
    def issue(it):
        if it[0] in 'sn': return it[1]
        i = vm.op()
        if it[0] == 'w': wid[it[1]] = i
        elif it[0] == 'a': aid[it[1]] = i
        return it[-1]
    def w_read(k, n):
        st, ks = k // 2, k % 2
        off = WSLOT[st % 3] - 65536
        grp = off // 65536; off %= 65536
        m, c = n // 4, n % 4
        return ['ds_read_b64_tr_b16 %s, v%d offset:%d' % (ar(P_WF + 4 * n + 2 * r, 2), P_WRD + 4 * grp + c, off + m * 8192 + (32 * ks + 16 * r) * 128) for r in range(2)]
    NB = 4 * nm
    pro = w_dma(0) + a_load(0) + a_load(1) + w_dma(1) + a_load(2) + a_load(3) + w_dma(2)
    for it in pro: a(issue(it))
    a('s_waitcnt vmcnt(%d)' % vm.cnt(wid[0]))
    a('s_barrier')
    for n in range(NB):
        for s in w_read(0, n): a(s)
    pend = []
    for k in range(2 * NST):
        st, ks = k // 2, k % 2
        if ks == 0: pend += extra_vm.get(st, [])
        base = P_ACT + 16 * (k % 4)
        a('s_waitcnt vmcnt(%d) lgkmcnt(%d)' % (min(63, vm.cnt(aid[k])), 8))
        if k > 0 and k + 3 < 2 * NST: pend = a_load(k + 3) + pend
        for n in range(NB):
            if n % 4 == 0 and n > 0:
                last = (k == 2 * NST - 1)
                a('s_waitcnt lgkmcnt(%d)' % (8 if not last else min(8, 2 * (NB - n - 4))))
            for qi in range(4):
                if n < 8: d = ar(P_ACCA + (n * 4 + qi) * 4, 4)
                else:     d = vr(P_ACCV + ((n - 8) * 4 + qi) * 4, 4)
                a('%s %s, %s, %s, %s' % (MF16, d, ar(P_WF + 4 * n, 4), ar(base + 4 * qi, 4), '0' if k == 0 else d))
                if qi in (0, 1, 2):
                    while pend and pend[0][0] == 'n': pend.pop(0)
                    if pend: a(issue(pend.pop(0)))
            if k + 1 < 2 * NST:
                if n == 0 and ks == 1:
                    a('s_waitcnt vmcnt(%d) lgkmcnt(0)' % min(63, vm.cnt(wid[st + 1])))
                    a('s_barrier')
                    if st + 3 < NST: pend = pend + w_dma(st + 3)
                    pend += extra_vm.get(('b', st), [])
                for s in w_read(k + 1, n): a(s)
    for it in pend: a(issue(it))
    return vm


EARLY = 6

def exp_seq(st, p):
    S = SB[st][p]
    return [(S + ((2 * ks + kk) * 2 + qb) * 4 + r, qb, ks) for ks in range(2) for qb in range(2) for kk in range(2) for r in range(4)]

def exp_ops(st, p, sub=False):
    P = PB[st][p]; seq = exp_seq(st, p); ops = []
    for k in range(32 + 6):
        if k < 32:
            ops.append('v_exp_f32 v%d, v%d' % (TMP + k % 8, seq[k][0]))
        j = k - 2
        if 0 <= j < 32 and j % 2 == 1:
            _, qb, ks = seq[j]
            ops.append('v_cvt_pk_bf16_f32 v%d, v%d, v%d' % (P + (qb * 2 + ks) * 4 + (j % 8) // 2, TMP + (j - 1) % 8, TMP + j % 8))
        j = k - 5
        if 0 <= j < 32 and j % 8 == 7:
            _, qb, ks = seq[j]
            d = vr(LT + (st * 2 + qb) * 4, 4)
            if k >= 32: ops.append('s_nop 1')
            ops.append('%s %s, %s, %s, %s' % (MF16, d, vr(V_ONES, 4), vr(P + (qb * 2 + ks) * 4, 4), '0' if ks == 0 else d))
    return ops

class Packer:
    def __init__(self, a): self.a = a
    def run(self, groups, rds, items, exps, extra, finish, early, have_early, sub=False):
        a = self.a
        E = []
        for ti, (st, p) in enumerate(exps):
            for k, (s, qb, ks) in enumerate(exp_seq(st, p)): E.append((s, NEGM + (st * 2 + qb) * 4, st, p, k, qb, ks))
        ne = EARLY if (have_early and E) else 0
        nc = 0; no = 0
        pos = 0
        epos = {i: -10 for i in range(ne)}; cpos = {}; opos = -100
        subbed = set()
        nread = 0; read_idx = {}
        items = [dict(x) for x in items]
        fin = list(finish); extra = list(extra)
        EE = exp_seq(*early)[:EARLY] if early else []
        nee = 0
        total_gaps = sum(len(g) for g in groups) + len(E) // 8
        gapno = 0
        def emit(s):
            nonlocal pos
            a(s); pos += 1
        def item_text(it):
            if 'lg' in it:
                gi = it['lg'] - D
                younger = nread - read_idx[gi] if gi in read_idx else (nread if gi < 0 else 0)
                if gi < 0: younger = nread + (-1 - gi)
                return 's_waitcnt lgkmcnt(%d)' % min(15, younger)
            return it['ins']
        def fill(gi, cap, last_of_group):
            nonlocal ne, nc, nee
            nonv = []; val = []
            full = cap >= 8
            def take(it):
                items.remove(it); (val if it.get('v') else nonv).append(it)
            forced = [it for it in items if (it['hi'] <= gi and last_of_group) or it['hi'] < gi]
            for it in forced: take(it)
            pace = len(E) * (gapno + 1.0) / max(1.0, total_gaps - 2 * EARLY - 4) + 3 + (EARLY if have_early else 0)
            def can_exp(): return ne < len(E) and ne - 2 * nc < 8 and ne < pace and (not sub or ne in subbed)
            def can_ee(): return ne == len(E) and nee < len(EE) and (len(E) + nee) - 2 * nc < 8
            def can_cvt(): return 2 * nc + 1 < ne and epos[2 * nc + 1] < pos
            out = []
            if not (full and len(forced) <= 1 and (can_exp() or can_ee())): cap -= 4 * len(forced)
            while cap > 0:
                if cap >= 8 and can_exp():
                    out.append(('e', ne)); epos[ne] = pos + 1000; ne += 1; cap -= 8; continue
                if cap >= 8 and can_ee() and not can_cvt():
                    out.append(('ee', nee)); nee += 1; cap -= 8; continue
                due = [it for it in items if it['lo'] <= gi and it['hi'] <= gi]
                if due and not (can_cvt() and ne - 2 * nc >= 7):
                    take(due[0]); cap -= 4; continue
                if can_cvt() and (ne - 2 * nc >= 5 or ne == len(E)):
                    out.append(('c', nc)); nc += 1; cap -= 4; continue
                if fin and no == len(E) // 8 and pos - opos >= 9:
                    out.append(('x', fin.pop(0))); cap -= 4; continue
                if sub and ne < len(E):
                    nx = [x for x in range(ne, min(len(E), ne + 3)) if x not in subbed]
                    if nx:
                        subbed.add(nx[0]); out.append(('s', nx[0])); cap -= 4; continue
                cand = [it for it in items if it['lo'] <= gi]
                if cand:
                    take(cand[0]); cap -= 4; continue
                if can_cvt():
                    out.append(('c', nc)); nc += 1; cap -= 4; continue
                if extra:
                    out.append(('x', extra.pop(0))); cap -= 4; continue
                break
            for it in nonv: emit(item_text(it))
            for it in val: emit(it['ins'])
            for kind, x in out:
                if kind == 'e':
                    emit('v_exp_f32 v%d, v%d' % (TMP + x % 8, E[x][0])); epos[x] = pos
                elif kind == 'ee':
                    emit('v_exp_f32 v%d, v%d' % (TMP + x % 8, EE[x][0]))
                elif kind == 's':
                    emit('v_add_f32 v%d, v%d, v%d' % (E[x][0], E[x][0], E[x][1]))
                elif kind == 'c':
                    _, _, st, p, k, qb, ks = E[2 * x + 1]
                    emit('v_cvt_pk_bf16_f32 v%d, v%d, v%d' % (PB[st][p] + (qb * 2 + ks) * 4 + (k % 8) // 2, TMP + (2 * x) % 8, TMP + (2 * x + 1) % 8)); cpos[x] = pos
                else: emit(x)
        def ones_ready(): return no < len(E) // 8 and (4 * no + 3) in cpos and pos - cpos[4 * no + 3] >= 2
        def emit_ones():
            nonlocal no, opos
            _, _, st, p, k, qb, ks = E[8 * no]
            d = vr(LT + (st * 2 + qb) * 4, 4)
            emit('%s %s, %s, %s, %s' % (MF16, d, vr(V_ONES, 4), vr(PB[st][p] + (qb * 2 + ks) * 4, 4), '0' if ks == 0 else d))
            no += 1; opos = pos
        for gi, L in enumerate(groups):
            for mi, m in enumerate(L):
                emit(m)
                cap = 8
                if mi == 0 and rds[gi]:
                    emit(rds[gi]); nread += 1; read_idx[gi] = nread; cap -= 4
                last = mi == len(L) - 1
                will_ones = last and no < len(E) // 8 and (4 * no + 3) in cpos
                fill(gi, cap, last and not will_ones); gapno += 1
                if will_ones:
                    if pos - cpos[4 * no + 3] < 2: emit('s_nop 0')
                    emit_ones()
                    fill(gi, 8, True); gapno += 1
        guard = 0
        while ne < len(E) or nc < len(E) // 2 or no < len(E) // 8 or fin or items or extra or nee < len(EE):
            before = pos
            if no < len(E) // 8 and (4 * no + 3) in cpos:
                if pos - cpos[4 * no + 3] < 2: emit('s_nop 1')
                emit_ones()
            gapno += 4
            fill(len(groups), 16, True)
            if pos == before: emit('s_nop 1')
            guard += 1; assert guard < 400

def max_ops(st, p, qb, dst, tmp):
    S = SB[st][p]
    regs = [S + (kb * 2 + qb) * 4 + r for kb in range(4) for r in range(4)]
    ops = ['v_max3_f32 v%d, v%d, v%d, v%d' % (dst, regs[0], regs[1], regs[2]),
           'v_max3_f32 v%d, v%d, v%d, v%d' % (tmp, regs[3], regs[4], regs[5])]
    k = 6; t = 0
    while k < 16:
        d = dst if t == 0 else tmp
        ops.append('v_max3_f32 v%d, v%d, v%d, v%d' % (d, d, regs[k], regs[k + 1])); k += 2; t ^= 1
    ops.append('v_max_f32 v%d, v%d, v%d' % (dst, dst, tmp))
    for sw in ('v_permlane16_swap_b32', 'v_permlane32_swap_b32'):
        ops.append('v_mov_b32 v%d, v%d' % (tmp, dst))
        ops.append('s_nop 1')
        ops.append('%s v%d, v%d' % (sw, dst, tmp))
        ops.append('s_nop 1')
        ops.append('v_max_f32 v%d, v%d, v%d' % (dst, dst, tmp))
    return ops

def gen_k2(a, name):
    kernel_begin(a, name)
    end = name + '_end'
    a('s_cmp_ge_u32 s2, 256')
    a('s_cbranch_scc1 %s' % end)
    load_srds(a, [('ws', WS), ('wq', WQ), ('wg', WG), ('wu', WU)])
    a('v_lshrrev_b32 v1, 6, v0')
    a('v_and_b32 v0, 63, v0')
    a('v_readfirstlane_b32 s%d, v1' % sW)
    stamp(a, 0)
    a('v_lshlrev_b32 v%d, 4, v0' % V_LANE16)
    a('v_add_u32 v%d, 16384, v%d' % (V_LANE16V, V_LANE16))
    a('v_add_u32 v%d, 20480, v%d' % (P_XOFF2, V_LANE16))
    a('s_and_b32 s29, s2, 7')
    a('s_lshl_b32 s29, s29, 2')
    a('s_lshr_b32 s31, s2, 3')
    a('s_and_b32 s31, s31, 3')
    a('s_add_u32 s29, s29, s31')
    a('s_lshr_b32 s30, s2, 5')
    a('s_lshr_b32 s31, s29, 3')
    a('s_sub_u32 s31, s29, s31')
    a('v_lshrrev_b32 v5, 3, v0')
    a('v_bfe_u32 v6, v0, 1, 2')
    a('v_bfe_u32 v7, v0, 4, 2')
    a('v_xor_b32 v6, v6, v7')
    a('v_lshlrev_b32 v6, 5, v6')
    a('v_and_b32 v7, 1, v0')
    a('v_lshl_add_u32 v6, v7, 4, v6')
    a('v_lshl_add_u32 v%d, v5, 13, v6' % P_WOFF)
    a('v_add_u32 v%d, %d, v%d' % (P_WOFF + 1, 8 * 8192 - 1024, P_WOFF))
    a('v_mul_u32_u24 v5, 3456, v5')
    a('v_add_u32 v%d, v5, v6' % (P_WOFF + 2))
    a('v_add_u32 v%d, %d, v%d' % (P_WOFF + 3, 8 * 3456 - 1024, P_WOFF + 2))
    a('v_lshrrev_b32 v5, 2, v0')
    a('v_lshlrev_b32 v5, 7, v5')
    a('v_and_b32 v6, 3, v0')
    a('v_lshl_add_u32 v5, v6, 3, v5')
    a('v_add_u32 v5, 65536, v5')
    a('v_bfe_u32 v6, v0, 3, 2')
    for c in range(4):
        a('v_xor_b32 v7, %d, v6' % c)
        a('v_lshl_add_u32 v%d, v7, 5, v5' % (P_WRD + c))
        a('v_add_u32 v%d, 65536, v%d' % (P_WRD + 4 + c, P_WRD + c))
    a('s_lshl_b32 s40, s%d, 11' % sW)
    sQ = [44, 45]
    a('s_lshl_b32 s44, s%d, 2' % sI)
    a('s_add_u32 s44, s44, s%d' % sW)
    a('s_lshl_b32 s44, s44, 1')
    a('s_sub_u32 s45, 15, s%d' % sI)
    a('s_lshl_b32 s45, s45, 2')
    a('s_add_u32 s45, s45, s%d' % sW)
    a('s_lshl_b32 s45, s45, 1')
    a('s_mul_i32 s41, s44, 20480')
    a('s_mul_i32 s42, s45, 20480')
    if WS_XN:
        a('s_add_u32 s41, s41, 0x%x' % WS_XN); a('s_add_u32 s42, s42, 0x%x' % WS_XN)
    a('s_lshl_b32 s36, s%d, 17' % sW)
    a('s_lshl_b32 s37, s%d, 8' % sH)
    a('s_add_u32 s36, s36, s37')
    a('s_add_u32 s37, s36, 128')
    a('s_mul_i32 s38, s%d, %d' % (sW, 16 * 3456))
    a('s_lshl_b32 s39, s%d, 7' % sCT)
    a('s_add_u32 s38, s38, s39')
    a('s_mov_b32 s39, s38')
    sBASE, sK0, sK1, sT, sC0, sC1 = 46, 47, 48, 49, 50, 51
    a('s_lshl_b32 s46, s%d, 20' % sH)
    a('s_lshl_b32 s49, s%d, 12' % sW)
    a('s_add_u32 s46, s46, s49')
    a('s_add_u32 s46, s46, 0x%x' % WS_KV)
    a('s_lshl_b32 s50, s%d, 13' % sW)
    a('s_add_u32 s50, s50, %d' % (65536 + 32768))
    a('s_add_u32 s51, s50, 16384')
    a('s_add_u32 s53, s46, 32768')
    a('s_add_u32 s47, s46, 65536')
    a('s_add_u32 s48, s47, 32768')
    def kv_dma(m0expr, voff, ssrc):
        L = [('s', m0expr), ('n', 's_nop 0')]
        for j in range(4):
            L.append(('x', 'buffer_load_dwordx4 v%d, %s, s%d offen offset:%d lds' % (voff, sr(WS, 4), ssrc, 1024 * j)))
        return L
    def mk_extra():
        return {
            6: kv_dma('s_add_u32 m0, s49, 0', V_LANE16, 46) + kv_dma('s_add_u32 m0, s49, 16384', V_LANE16, 53),
            7: kv_dma('s_add_u32 m0, s49, 32768', V_LANE16, 47),
            ('b', 7): kv_dma('s_add_u32 m0, s49, 65536', V_LANE16V, 46),
            8: kv_dma('s_add_u32 m0, s49, 49152', V_LANE16, 48) + kv_dma('s_add_u32 m0, s49, %d' % (65536 + 16384), V_LANE16V, 53),
        }
    a('s_waitcnt lgkmcnt(0)')
    qonly, qdone = name + '_qonly', name + '_qdone'
    a('s_and_b32 s32, s%d, 7' % sH)
    a('s_cmp_eq_u32 s32, 7')
    a('s_cbranch_scc1 %s' % qonly)
    a('s_cmp_ge_u32 s%d, 27' % sCT)
    a('s_cbranch_scc1 %s' % qonly)
    qgu_loop(a, 4, mk_extra())
    stamp(a, 1)
    a('s_mul_i32 s36, s44, %d' % (54 * 1024))
    a('s_mul_i32 s37, s45, %d' % (54 * 1024))
    a('s_lshl_b32 s38, s%d, 11' % sCT)
    a('s_add_u32 s38, s38, 0x%x' % WS_H)
    a('s_add_u32 s36, s36, s38')
    a('s_add_u32 s37, s37, s38')
    a('v_add_u32 v%d, %d, v%d' % (P_XOFF2, 54 * 1024, V_LANE16))
    a('s_nop 3')
    cnt = 0
    for qi in range(4):
        for s in range(2):
            T = 64 + 4 * (cnt % 8); cnt += 1
            for cc in range(2):
                g = P_ACCV + ((2 * s + cc) * 4 + qi) * 4
                u = g + 64
                for e in range(4): a('v_mul_f32 v%d, v%d, v%d' % (g + e, g + e, u + e))
                for e in range(2): a('v_cvt_pk_bf16_f32 v%d, v%d, v%d' % (T + 2 * cc + e, g + 2 * e, g + 2 * e + 1))
            a('buffer_store_dwordx4 %s, v%d, %s, s%d offen offset:%d %s' % (vr(T, 4), (V_LANE16, P_XOFF2)[qi % 2], sr(WS, 4), 36 + qi // 2, s * 1024, ST_FLAGS))
    a('s_waitcnt vmcnt(16)')
    a('s_branch %s' % qdone)
    a.label(qonly)
    qgu_loop(a, 2, mk_extra())
    a('s_waitcnt vmcnt(8)')
    a.label(qdone)
    stamp(a, 2)
    a('s_barrier')
    def kread(i, p): return 'ds_read_b128 %s, v%d offset:%d' % (ar(A_RING + 4 * (i % R), 4), V_KRD, p * 16384 + i * 1024)
    def vread(i, p): return 'ds_read_b128 %s, v%d offset:%d' % (ar(A_RING + 4 * (i % R), 4), V_VRD, p * 16384 + i * 1024)
    a('v_mov_b32 v%d, v%d' % (V_KRD, V_LANE16))
    a('v_add_u32 v%d, 65536, v%d' % (V_VRD, V_LANE16))
    for i in range(D): a(kread(i, 0))
    a('s_mov_b32 s54, %s' % f2u(math.log2(math.e) / math.sqrt(128.0)))
    for qi in range(4):
        for s in range(4):
            T = 64 + 16 * ((qi * 4 + s) % 4)
            for cc in range(2):
                for e in range(4): a('v_accvgpr_read_b32 v%d, a%d' % (T + 4 * cc + e, P_ACCA + ((2 * s + cc) * 4 + qi) * 4 + e))
            for e in range(8): a('v_mul_f32 v%d, s54, v%d' % (T + e, T + e))
            for e in range(4): a('v_cvt_pk_bf16_f32 v%d, v%d, v%d' % (T + 8 + e, T + 2 * e, T + 2 * e + 1))
            for e in range(4): a('v_accvgpr_write_b32 a%d, v%d' % (A_Q[qi // 2] + ((qi % 2) * 4 + s) * 4 + e, T + 8 + e))
    a('v_and_b32 v5, 15, v0')
    a('v_lshrrev_b32 v6, 4, v0')
    a('v_lshlrev_b32 v6, 2, v6')
    a('v_sub_u32 v5, v5, v6')
    for r in range(4):
        a('v_cmp_gt_i32 vcc, %d, v5' % r)
        a('s_nop 1')
        a('v_cndmask_b32 v%d, 0, 1.0, vcc' % (TRI + r))
    for e in range(4): a('v_mov_b32 v%d, 0x3f803f80' % (V_ONES + e))
    for j in range(16): a('v_mov_b32 v%d, 0' % (NEGM + j))
    a('s_mov_b32 s55, %s' % f2u(THR))
    a('s_mov_b32 s56, %s' % f2u(-BIG))
    a('s_lshl_b32 s52, s%d, 1' % sW)
    stamp(a, 3)

    def prefill(st, p, tau, dyn=False):
        for qb in range(2):
            for kb in range(4):
                kap = 4 * tau + kb - qb
                S = SB[st][p] + (kb * 2 + qb) * 4
                if kap < 0:
                    for r in range(4): a('v_mov_b32 v%d, v%d' % (S + r, NEGM + (st * 2 + qb) * 4))
                    continue
                a('s_cmp_eq_u32 s52, %d' % kap)
                a('s_cselect_b32 s57, %s, 0' % ('s59' if dyn else 's56'))
                a('s_cmp_lt_u32 s52, %d' % kap)
                a('s_cselect_b32 s58, %s, 0' % ('s59' if dyn else 's56'))
                a('v_add_f32 v%d, s58, v%d' % (V_T0, NEGM + (st * 2 + qb) * 4))
                for r in range(4): a('v_fma_f32 v%d, v%d, s57, v%d' % (S + r, TRI + r, V_T0))
        a('s_nop 1')

    def qk_mf(sets, p):
        G = []
        for f in range(16):
            kb, ds = f // 4, f % 4
            L = []
            for st, inpl in sets:
                for qb in range(2):
                    d = vr(SB[st][p] + (kb * 2 + qb) * 4, 4)
                    c = vr(NEGM + (st * 2 + qb) * 4, 4) if (ds == 0 and not inpl) else d
                    L.append('%s %s, %s, %s, %s' % (MF16, d, ar(A_RING + 4 * (f % R), 4), ar(A_Q[st] + (qb * 4 + ds) * 4, 4), c))
            G.append(L)
        return G
    def pv_mf(sets, p, first=False):
        G = []
        for f in range(16):
            ks, db = f // 8, f % 8
            L = []
            for st in sets:
                for qb in range(2):
                    d = ar(A_O[st] + (db * 2 + qb) * 4, 4)
                    L.append('%s %s, %s, %s, %s' % (MF16, d, ar(A_RING + 4 * (f % R), 4), vr(PB[st][p] + (qb * 2 + ks) * 4, 4), d))
            G.append(L)
        return G
    rare_sites = []

    pk = Packer(a)
    def lg_items(n, skip_last):
        L = []
        for i in range(3, n, 4):
            if i == n - 1 and skip_last: continue
            L.append(dict(lo=i, hi=i, lg=i + 4))
        return L
    pending_ladd = []

    def ladds(ex):
        return ['v_add_f32 v%d, v%d, v%d' % (V_L + st * 2 + qb, V_L + st * 2 + qb, LT + (st * 2 + qb) * 4) for st in ex for qb in range(2)]

    def iteration(p, qk, ex, pv, prev_ex, nxt='k', dk=True, dv=True, loop_ctr=None):
        groups = []; rs = []
        if qk:
            groups += qk_mf(qk, p); rs += [kread(i, p) for i in range(16)]
        groups += pv_mf(pv, p); rs += [vread(i, p) for i in range(16)]
        n = len(groups)
        nx = {'k': [kread(i, 1 - p) for i in range(D)], 'v': [vread(i, 1 - p) for i in range(D)], None: [None] * D}[nxt]
        rds = rs[D:] + nx
        bg = n - D
        it = [dict(lo=0, hi=0, ins=s, v=True) for s in ladds(prev_ex)]
        nd = 0
        if dv:
            it.append(dict(lo=0, hi=1, ins='s_sub_u32 m0, s%d, s%d' % ((sC0, sC1)[p], sT)))
            for j, i in enumerate((2, 4, 5, 6)):
                it.append(dict(lo=i, hi=i + 1, ins='buffer_load_dwordx4 v%d, %s, s%d offen offset:%d lds' % (V_LANE16V, sr(WS, 4), (sK0, sK1)[p], 1024 * j)))
            nd += 4
        if dk:
            it.append(dict(lo=8, hi=9, ins='s_add_u32 m0, s%d, %d' % (sT, p * 16384)))
            it.append(dict(lo=8, hi=9, ins='s_add_u32 s%d, s%d, 32768' % ((sK0, sK1)[p], (sK0, sK1)[1 - p])))
            for j, i in enumerate((10, 12, 14, 16)):
                it.append(dict(lo=i, hi=i + 1, ins='buffer_load_dwordx4 v%d, %s, s%d offen offset:%d lds' % (V_LANE16, sr(WS, 4), (sK0, sK1)[p], 1024 * j)))
            nd += 4
        if p == 1:
            if qk: it.append(dict(lo=16 - D, hi=bg - 1, ins='v_xor_b32 v%d, 32768, v%d' % (V_KRD, V_KRD), v=True))
            it.append(dict(lo=bg - 1 if nxt == 'v' else bg, hi=bg - 1 if nxt == 'v' else n - 1, ins='v_xor_b32 v%d, 32768, v%d' % (V_VRD, V_VRD), v=True))
            it.append(dict(lo=13, hi=n - 1, ins='s_xor_b32 s%d, s%d, 32768' % (sT, sT)))
        if nxt is not None:
            it.append(dict(lo=bg - 3, hi=bg - 2, ins='s_waitcnt vmcnt(%d)' % nd))
            it.append(dict(lo=bg - 1, hi=bg - 1, ins='s_barrier'))
        it += lg_items(n, nxt is None)
        if 'b' in XP: it = [x for x in it if x.get('ins') != 's_barrier']
        if 'v' in XP: it = [x for x in it if 'vmcnt' not in x.get('ins', '')]
        if 'l' in XP: it = [x for x in it if 'lg' not in x]
        if 'd' in XP: it = [x for x in it if 'buffer_load' not in x.get('ins', '')]
        it.sort(key=lambda x: (x['hi'], x['lo']))
        fin = []
        if ex:
            lts = [LT + (st * 2 + qb) * 4 for st in ex for qb in range(2)]
            if len(lts) == 2: fin.append('v_max_f32 v%d, v%d, v%d' % (V_T0, lts[0], lts[1]))
            else:
                fin.append('v_max3_f32 v%d, v%d, v%d, v%d' % (V_T0, lts[0], lts[1], lts[2]))
                fin.append('v_max_f32 v%d, v%d, v%d' % (V_T0, V_T0, lts[3]))
            fin.append('v_cmp_lt_f32 vcc, s55, v%d' % V_T0)
        early = (1, p) if qk else None
        pk.run(groups, rds, it, [(st, 1 - p) for st in ex], [], fin, early, True)
        if loop_ctr: a('s_sub_u32 s%d, s%d, 1' % (loop_ctr[0], loop_ctr[0]))
        if ex:
            stub, back = a.newlabel(name + '_rs'), a.newlabel(name + '_rb')
            a('s_cbranch_vccnz %s' % stub)
            a.label(back)
            rare_sites.append((stub, back, 1 - p, ex))
        if loop_ctr: a('s_cbranch_scc0 %s' % loop_ctr[1])

    def epilogue(st):
        a('s_lshl_b32 s61, s%d, 17' % sQ[st])
        a('s_lshl_b32 s62, s%d, 12' % sH)
        a('s_add_u32 s61, s61, s62')
        a('s_add_u32 s61, s61, 0x%x' % WS_CTX)
        a('s_add_u32 s62, s61, 0x20000')
        a('v_rcp_f32 v%d, v%d' % (V_T0, V_L + st * 2))
        a('v_rcp_f32 v%d, v%d' % (V_T1, V_L + st * 2 + 1))
        a('s_nop 3')
        cnt = 0
        for s in range(4):
            for qb in range(2):
                T = SB[st][0] + 16 * (cnt % 4); cnt += 1
                for cc in range(2):
                    for e in range(4): a('v_accvgpr_read_b32 v%d, a%d' % (T + 4 * cc + e, A_O[st] + ((2 * s + cc) * 2 + qb) * 4 + e))
                for e in range(8): a('v_mul_f32 v%d, v%d, v%d' % (T + e, T + e, (V_T0, V_T1)[qb]))
                for e in range(4): a('v_cvt_pk_bf16_f32 v%d, v%d, v%d' % (T + 8 + e, T + 2 * e, T + 2 * e + 1))
                a('buffer_store_dwordx4 %s, v%d, %s, s%d offen offset:%d %s' % (vr(T + 8, 4), V_LANE16, sr(WS, 4), 61 + qb, s * 1024, ST_FLAGS))

    a('s_cmp_eq_u32 s%d, 0' % sI)
    a('s_cselect_b32 s59, s56, 0')
    prefill(0, 0, 0, dyn=True)
    a('s_waitcnt lgkmcnt(%d)' % (D - 4))
    both = [(0, True), (1, False)]
    rds = [kread(i, 0) for i in range(D, 16)] + [kread(i, 1) for i in range(D)]
    zero = ['v_accvgpr_write_b32 a%d, 0' % i for i in range(128)] + ['v_mov_b32 v%d, 0' % (V_L + j) for j in range(4)]
    pk.run(qk_mf(both, 0), rds, lg_items(16, False), [], zero, [], None, False)
    a('s_nop 3')
    for st in range(2):
        for qb in range(2):
            for s in max_ops(st, 0, qb, V_T0, V_T1): a(s)
            for e in range(4): a('v_sub_f32 v%d, 0, v%d' % (NEGM + (st * 2 + qb) * 4 + e, V_T0))
    prefill(0, 1, 1, dyn=True)
    rds = [kread(i, 1) for i in range(D, 16)] + [kread(i, 0) for i in range(D)]
    it = lg_items(16, False) + [dict(lo=16 - D - 1, hi=16 - D - 1, ins='v_xor_b32 v%d, 32768, v%d' % (V_KRD, V_KRD), v=True)]
    it.sort(key=lambda x: (x['hi'], x['lo']))
    pk.run(qk_mf(both, 1), rds, it, [(1, 0), (0, 0)], [], [], (1, 1), False, sub=True)
    a('s_nop 7')
    stamp(a, 4)
    lA, lA_skip, lA_tail2 = name + '_loopA', name + '_skipA', name + '_tail2A'
    a('s_cmp_eq_u32 s%d, 0' % sI)
    a('s_cbranch_scc1 %s' % lA_tail2)
    a('s_sub_u32 s63, s%d, 2' % sI)
    a('s_cbranch_scc1 %s' % lA_skip)
    a.raw('.p2align 6')
    a.label(lA)
    dn = [(0, False), (1, False)]
    BA = [1, 0]
    iteration(0, dn, BA, [0, 1], BA)
    iteration(1, dn, BA, [0, 1], BA, loop_ctr=(63, lA))
    a.label(lA_skip)
    prefill(0, 0, 0)
    iteration(0, both, BA, [0, 1], BA)
    prefill(0, 1, 1)
    iteration(1, both, BA, [0, 1], BA)
    a.label(lA_tail2)
    l7, lBtail2 = name + '_i7', name + '_tail2B'
    a('s_cmp_eq_u32 s%d, 7' % sI)
    a('s_cbranch_scc1 %s' % l7)
    iteration(0, [(1, False)], BA, [0, 1], BA)
    iteration(1, [(1, False)], [1], [0, 1], BA)
    stamp(a, 5)
    epilogue(0)
    stamp(a, 6)
    cstamp(a, 10)
    lB = name + '_loopB'
    a('s_lshl_b32 s63, s%d, 1' % sI)
    a('s_sub_u32 s63, 12, s63')
    a.raw('.p2align 6')
    a.label(lB)
    iteration(0, [(1, False)], [1], [1], [1])
    iteration(1, [(1, False)], [1], [1], [1], loop_ctr=(63, lB))
    cstamp(a, 11)
    stamp(a, 7)
    prefill(1, 0, 0)
    iteration(0, [(1, True)], [1], [1], [1], dk=False)
    prefill(1, 1, 1)
    iteration(1, [(1, True)], [1], [1], [1], dk=False, nxt='v')
    a('s_branch %s' % lBtail2)
    a.label(l7)
    prefill(1, 0, 0)
    iteration(0, [(1, True)], BA, [0, 1], BA, dk=False)
    prefill(1, 1, 1)
    iteration(1, [(1, True)], [1], [0, 1], BA, dk=False, nxt='v')
    epilogue(0)
    a.label(lBtail2)
    iteration(0, None, [1], [1], [1], dk=False, dv=False, nxt='v')
    iteration(1, None, [], [1], [1], dk=False, dv=False, nxt=None)
    stamp(a, 8)
    epilogue(1)
    stamp(a, 9)
    stamp_flush(a, 1, WS, sW, 12)
    a.label(end)
    a('s_endpgm')
    for stub, back, pc, ex in rare_sites:
        a.label(stub)
        for st in sorted(ex):
            a('s_call_b64 s[64:65], %s_rare%d%d' % (name, pc, st))
        a('s_branch %s' % back)
    for pc in range(2):
        for st in range(2):
            a.label('%s_rare%d%d' % (name, pc, st))
            a('s_nop 7')
            for qb in range(2):
                for s in max_ops(st, pc, qb, V_T0, V_T1): a(s)
                a('v_max_f32 v%d, 0, v%d' % (V_T0, V_T0))
                a('v_exp_f32 v%d, -v%d' % (V_T1, V_T0))
                for e in range(4): a('v_sub_f32 v%d, v%d, v%d' % (NEGM + (st * 2 + qb) * 4 + e, NEGM + (st * 2 + qb) * 4 + e, V_T0))
                for pp in range(2):
                    for kb in range(4):
                        for r in range(4):
                            x = SB[st][pp] + (kb * 2 + qb) * 4 + r
                            a('v_sub_f32 v%d, v%d, v%d' % (x, x, V_T0))
                a('v_mul_f32 v%d, v%d, v%d' % (V_L + st * 2 + qb, V_L + st * 2 + qb, V_T1))
                for db in range(0, 8, 2):
                    regs = [A_O[st] + ((db + h) * 2 + qb) * 4 + e for h in range(2) for e in range(4)]
                    for e in range(8): a('v_accvgpr_read_b32 v%d, a%d' % (TMP + e, regs[e]))
                    for e in range(8): a('v_mul_f32 v%d, v%d, v%d' % (TMP + e, TMP + e, V_T1))
                    for e in range(8): a('v_accvgpr_write_b32 a%d, v%d' % (regs[e], TMP + e))
            for s in exp_ops(st, pc): a(s)
            if st == 1:
                for k, (s, _, _) in enumerate(exp_seq(1, 1 - pc)[:EARLY]): a('v_exp_f32 v%d, v%d' % (TMP + k, s))
            a('s_nop 7')
            a('s_setpc_b64 s[64:65]')
    kernel_desc(a, name, 512, 256)
    return a
```

```python
from common import *
from k2 import VM
import math
K3_GRID = 240
K3_LDS = 147456

def gen_k3(a, name):
    kernel_begin(a, name)
    end = name + '_end'
    a('s_cmp_ge_u32 s2, %d' % K3_GRID)
    a('s_cbranch_scc1 %s' % end)
    CTX, HH, WO, WD, X, OUT, WS = 8, 12, 16, 20, 24, 28, 92
    sW, sRT, sCT = 32, 33, 34
    a('s_lshr_b32 s35, s2, 3')
    a('s_mul_i32 s36, s35, 205')
    a('s_lshr_b32 s36, s36, 10')
    a('s_mul_i32 s37, s36, 5')
    a('s_sub_u32 s37, s35, s37')
    a('s_and_b32 s38, s2, 1')
    a('s_mul_i32 s38, s38, 5')
    a('s_add_u32 s%d, s37, s38' % sCT)
    a('s_bfe_u32 s38, s2, 0x20001')
    a('s_cmp_lt_u32 s38, 2')
    a('s_cselect_b32 s39, 6, 5')
    a('s_cmp_ge_u32 s36, s39')
    a('s_cbranch_scc1 %s' % end)
    a('s_mul_i32 s%d, s38, 6' % sRT)
    a('s_cmp_eq_u32 s38, 3')
    a('s_cselect_b32 s39, 1, 0')
    a('s_sub_u32 s%d, s%d, s39' % (sRT, sRT))
    a('s_add_u32 s%d, s%d, s36' % (sRT, sRT))
    load_srds(a, [('ws', WS), ('wd', WD), ('wo', WO), ('x', X), ('out', OUT)])
    a('v_lshrrev_b32 v1, 6, v0')
    a('v_and_b32 v0, 63, v0')
    a('v_readfirstlane_b32 s%d, v1' % sW)
    stamp(a, 0)
    VL, VH, VC, VWO, VRD, VWR, VX = 1, 2, 8, 14, 18, 22, 26
    a('v_lshlrev_b32 v%d, 4, v0' % VL)
    for qi in range(6):
        a('v_add_u32 v%d, %d, v%d' % (VH + qi, qi * 54 * 1024, VL))
        a('v_add_u32 v%d, %d, v%d' % (VC + qi, qi * 128 * 1024, VL))
    a('v_lshrrev_b32 v30, 3, v0')
    a('v_mul_u32_u24 v30, 1280, v30')
    a('v_bfe_u32 v31, v0, 1, 2')
    a('v_bfe_u32 v32, v0, 4, 2')
    a('v_xor_b32 v31, v31, v32')
    a('v_lshl_add_u32 v30, v31, 5, v30')
    a('v_and_b32 v31, 1, v0')
    a('v_lshl_add_u32 v30, v31, 4, v30')
    for j in range(4): a('v_add_u32 v%d, %d, v30' % (VWO + j, j * (8 * 1280 - 1024)))
    a('s_lshl_b32 s40, s%d, 15' % sW)
    a('v_lshrrev_b32 v30, 2, v0')
    a('v_lshlrev_b32 v30, 7, v30')
    a('v_and_b32 v31, 3, v0')
    a('v_lshl_add_u32 v30, v31, 3, v30')
    a('v_add_u32 v30, s40, v30')
    a('v_bfe_u32 v31, v0, 3, 2')
    for c in range(4):
        a('s_add_u32 s41, s%d, %d' % (sW, c))
        a('s_and_b32 s41, s41, 3')
        a('v_xor_b32 v32, s41, v31')
        a('v_lshl_add_u32 v%d, v32, 5, v30' % (VRD + c))
        if c > 0:
            a('s_mul_i32 s41, s41, %d' % (36 * 1024))
            a('s_add_u32 s41, s41, %d' % ((c - 1) * 12 * 1024))
            a('v_add_u32 v%d, s41, v%d' % (VWR + c, VL))
    a('s_mul_i32 s41, s%d, %d' % (sW, 36 * 1024))
    a('v_add_u32 v%d, s41, v%d' % (VWR, VL))
    a('v_and_b32 v30, 15, v0')
    a('v_mul_u32_u24 v30, 1280, v30')
    a('v_lshrrev_b32 v31, 4, v0')
    a('v_lshl_add_u32 v%d, v31, 3, v30' % VX)
    a('s_mul_i32 s42, s%d, %d' % (sRT, 96 * 1280))
    a('s_lshl_b32 s43, s%d, 7' % sCT)
    a('s_add_u32 s42, s42, s43')
    a('s_lshl_b32 s41, s%d, 5' % sW)
    a('s_add_u32 s42, s42, s41')
    sAH, sAC, sWD, sWO = 44, 45, 46, 47
    a('s_mul_i32 s44, s%d, %d' % (sRT, 6 * 54 * 1024))
    a('s_mul_i32 s41, s%d, %d' % (sW, 14 * 1024))
    a('s_add_u32 s44, s44, s41')
    a('s_mul_i32 s45, s%d, %d' % (sRT, 6 * 128 * 1024))
    a('s_lshl_b32 s41, s%d, 15' % sW)
    a('s_add_u32 s45, s45, s41')
    a('s_mul_i32 s46, s%d, %d' % (sW, 14 * 32 * 1280))
    a('s_add_u32 s46, s46, s43')
    a('s_mul_i32 s47, s%d, %d' % (sW, 32 * 32 * 1280))
    a('s_add_u32 s47, s47, s43')
    a('s_waitcnt lgkmcnt(0)')
    for srd, off, size in ((CTX, WS_CTX, 2048 * 4096 * 2), (HH, WS_H, 2048 * 1728 * 2)):
        a('s_add_u32 s%d, s%d, 0x%x' % (srd, WS, off))
        a('s_addc_u32 s%d, s%d, 0' % (srd + 1, WS + 1))
        a('s_mov_b32 s%d, 0x%x' % (srd + 2, size))
        a('s_mov_b32 s%d, 0x00020000' % (srd + 3))
    ND, NO = 14, 32
    NS = ND + NO
    LA = 5
    ACT, WF, XR = 64, 208, 240
    vm = VM(); wid = {}; aid = {}
    def loads(s):
        down = s < ND
        ls = s if down else s - ND
        L = [('s', 's_add_u32 m0, s40, %d' % ((s % 8) * 4096)), ('n', 's_nop 0')]
        sw = sWD if down else sWO
        for j in range(4):
            L.append(('w', s, 'buffer_load_dwordx4 v%d, %s, s%d offen offset:%d lds' % (VWO + j, sr(WD if down else WO, 4), sw, 1024 * j)))
        L.append(('s', 's_add_u32 s%d, s%d, %d' % (sw, sw, 32 * 1280)))
        sa = sAH if down else sAC
        for qi in range(6):
            L.append(('a', s, 'buffer_load_dwordx4 %s, v%d, %s, s%d offen offset:%d' % (vr(ACT + 24 * (s % 6) + 4 * qi, 4), (VH if down else VC) + qi, sr(HH if down else CTX, 4), sa, 1024 * (ls % 4))))
        if ls % 4 == 3: L.append(('s', 's_add_u32 s%d, s%d, 4096' % (sa, sa)))
        return L
    def issue(it):
        if it[0] in 'sn': return it[1]
        i = vm.op()
        (wid if it[0] == 'w' else aid)[it[1]] = i
        return it[-1]
    def wreads(s):
        return ['ds_read_b64_tr_b16 %s, v%d offset:%d' % (vr(WF + 16 * (s % 2) + 4 * c + 2 * r, 2), VRD + c, (s % 8) * 4096 + r * 2048) for c in range(4) for r in range(2)]
    for s in range(LA):
        for it in loads(s): a(issue(it))
    a('s_waitcnt vmcnt(%d)' % vm.cnt(wid[0]))
    for s_ in wreads(0): a(s_)
    stamp(a, 1)
    for s in range(NS):
        need = aid[s] if s + 1 >= NS else max(aid[s], wid[s + 1])
        a('s_waitcnt vmcnt(%d) lgkmcnt(0)' % vm.cnt(need))
        pend = [it for it in loads(s + LA) if it[0] != 'n'] if s + LA < NS else []
        if s == NS - LA:
            for qi in range(6):
                pend.append(('s', 's_add_u32 s43, s42, %d' % (qi * 16 * 1280)))
                pend.append(('a', 'x', 'buffer_load_dwordx2 %s, v%d, %s, s43 offen' % (vr(XR + 2 * qi, 2), VX, sr(X, 4))))
        rd = wreads(s + 1) if s + 1 < NS else []
        AB = 0 if s < ND else 96
        first = s == 0 or s == ND
        g = 0
        for c in range(4):
            for qi in range(6):
                d = ar(AB + (c * 6 + qi) * 4, 4)
                a('%s %s, %s, %s, %s' % (MF16, d, vr(WF + 16 * (s % 2) + 4 * c, 4), vr(ACT + 24 * (s % 6) + 4 * qi, 4), '0' if first else d))
                if rd: a(rd.pop(0))
                elif pend: a(issue(pend.pop(0)))
                g += 1
        assert not pend and not rd
        if s == ND - 1: stamp(a, 2)
    stamp(a, 3)
    a('s_nop 7')
    a('s_barrier')
    for c in range(1, 4):
        for st in range(2):
            for qi in range(6):
                a('ds_write_b128 v%d, %s offset:%d' % (VWR + c, ar(96 * st + (c * 6 + qi) * 4, 4), (st * 6 + qi) * 1024))
    OWN = 32
    for qi in range(6):
        for e in range(4):
            a('v_accvgpr_read_b32 v%d, a%d' % (OWN + 4 * qi + e, qi * 4 + e))
            a('v_accvgpr_read_b32 v%d, a%d' % (208 + 4 * qi + e, 96 + qi * 4 + e))
    a('s_waitcnt lgkmcnt(0)')
    a('s_barrier')
    for b in range(36):
        a('ds_read_b128 %s, v%d offset:%d' % (vr(64 + 4 * b, 4), VWR, b * 1024))
    for src in range(3):
        a('s_waitcnt lgkmcnt(%d)' % min(15, 12 * (2 - src)))
        for st in range(2):
            for qi in range(6):
                for e in range(4):
                    o = (OWN if st == 0 else 208) + 4 * qi + e
                    a('v_add_f32 v%d, v%d, v%d' % (o, o, 64 + 4 * (src * 12 + st * 6 + qi) + e))
    stamp(a, 4)
    a('s_waitcnt vmcnt(0)')
    a('s_mov_b32 s48, %s' % f2u(-math.log2(math.e)))
    a('s_mov_b32 s49, 0xffff0000')
    def rnd(r0, r1, t):
        a('v_cvt_pk_bf16_f32 v%d, v%d, v%d' % (t, r0, r1))
        a('v_lshlrev_b32 v%d, 16, v%d' % (r0, t))
        a('v_and_b32 v%d, s49, v%d' % (r1, t))
    for qi in range(6):
        B = OWN + 4 * qi; S = 208 + 4 * qi; T = 64 + 8 * qi
        for h in range(2):
            rnd(B + 2 * h, B + 2 * h + 1, T); rnd(S + 2 * h, S + 2 * h + 1, T + 1)
        for e in range(4): a('v_mul_f32 v%d, s48, v%d' % (T + e, B + e))
        for e in range(4): a('v_exp_f32 v%d, v%d' % (T + e, T + e))
        for e in range(4): a('v_add_f32 v%d, 1.0, v%d' % (T + e, T + e))
        for e in range(4): a('v_rcp_f32 v%d, v%d' % (T + e, T + e))
        for e in range(4): a('v_mul_f32 v%d, v%d, v%d' % (B + e, B + e, T + e))
        for h in range(2): rnd(B + 2 * h, B + 2 * h + 1, T + 4)
        for e in range(4): a('v_mul_f32 v%d, v%d, v%d' % (S + e, S + e, B + e))
        for h in range(2): rnd(S + 2 * h, S + 2 * h + 1, T + 4)
        for h in range(2):
            a('v_lshlrev_b32 v%d, 16, v%d' % (T + 2 * h, XR + 2 * qi + h))
            a('v_and_b32 v%d, s49, v%d' % (T + 2 * h + 1, XR + 2 * qi + h))
        for e in range(4): a('v_add_f32 v%d, v%d, v%d' % (S + e, S + e, T + e))
        for h in range(2): a('v_cvt_pk_bf16_f32 v%d, v%d, v%d' % (T + 4 + h, S + 2 * h, S + 2 * h + 1))
        a('s_add_u32 s43, s42, %d' % (qi * 16 * 1280))
        a('buffer_store_dwordx2 %s, v%d, %s, s43 offen' % (vr(T + 4, 2), VX, sr(OUT, 4)))
    stamp(a, 5)
    stamp_flush(a, 2, WS, sW, 6)
    a.label(end)
    a('s_endpgm')
    kernel_desc(a, name, 448, 256)
    return a
```

```python
from asmlib import *
import struct

WS_XN = 0x0
WS_KV = 0x1000000
WS_CTX = 0x4000000
WS_H = 0x6000000
WS_SIZE = 0x10000000

ARG = dict(x=0, ckv=8, wq=16, wuk=24, wuv=32, wo=40, bx=48, wg=56, wu=64, wd=72, out=80, dbg=88, ws=96)
SIZE = dict(x=2048*640*2, ckv=2048*512*2, wq=640*4096*2, wuk=512*4096*2, wuv=512*4096*2, wo=4096*640*2,
            wg=640*1728*2, wu=640*1728*2, wd=1728*640*2, out=2048*640*2, dbg=256, ws=WS_SIZE)

def f2u(f):
    return '0x%08x' % struct.unpack('<I', struct.pack('<f', f))[0]

def load_srds(a, items):
    for n, sb in items:
        a('s_load_dwordx2 %s, s[0:1], %d' % (sr(sb, 2), ARG[n]))
    for n, sb in items:
        a('s_mov_b32 s%d, 0x%x' % (sb + 2, SIZE[n]))
        a('s_mov_b32 s%d, 0x00020000' % (sb + 3))

MFMA = 'v_mfma_f32_32x32x16_bf16'

def emit_gaps(a, mfmas, fill):
    for g, m in enumerate(mfmas):
        for s in fill.get(('pre', g), []):
            a(s)
        a(m)
        for s in fill.get(g, []):
            a(s)

import os
DIAG = os.environ.get('DIAG', '0') == '1'
WS_STAMP = 0xF000000
def stamp(a, i):
    if not DIAG: return
    a('s_memrealtime s[96:97]')
    a('s_waitcnt lgkmcnt(0)')
    a('s_mov_b32 s%d, s96' % (70 + i))
def stamp_flush(a, kidx, ws_srd, swave, n):
    if not DIAG: return
    a('s_lshl_b32 s96, s2, 2')
    a('s_add_u32 s96, s96, s%d' % swave)
    a('s_lshl_b32 s96, s96, 6')
    a('s_add_u32 s96, s96, 0x%x' % (WS_STAMP + kidx * 0x10000))
    a('v_mov_b32 v0, 0')
    for i in range(n):
        a('v_mov_b32 v1, s%d' % (70 + i))
        a('buffer_store_dword v1, v0, %s, s96 offen offset:%d' % (sr(ws_srd, 4), 4 * i))
        a('s_nop 1')
def cstamp(a, i):
    if not DIAG: return
    a('s_memtime s[96:97]')
    a('s_waitcnt lgkmcnt(0)')
    a('s_mov_b32 s%d, s96' % (70 + i))
```

```python
from common import *
import math

class VM:
    def __init__(self): self.n = 0
    def op(self):
        self.n += 1
        return self.n
    def cnt(self, ident):
        return self.n - ident

WS, WQ, WG, WU = 8, 12, 16, 20
sW, sH, sI = 28, 29, 30
V_LANE16 = 1
V_LANE16V = 2
V_WOFF = 4
V_WRD = 6
V_KRD, V_VRD = 8, 9
V_LA, V_LB, V_LT, V_T0, V_T1 = 10, 11, 12, 13, 14
NEGM, TRI, CM = 16, 32, 48
CM2 = 232
QA, QB = 64, 96
SB = [128, 160]; PB = [192, 208]; TMP = 224
ACC = 128
A_O = [0, 64]; A_RING = 128; A_ACT = 128; A_WF = 192
WBASE = 96 * 1024
D, R = 8, 16
THR = 2.0 ** 14
BIG = 1.0e30

def qg_loop(a, vm, srd0, srd1, s_w0, s_w1, wstride, s_q0, s_q1, extra_vm, pre_issued=None):
    NST = 10
    sLW = 40
    wid = {}
    aid = {}
    def w_dma(st):
        slot = st % 4
        L = []
        L.append(('s', 's_add_u32 m0, s%d, %d' % (sLW, slot * 16384)))
        L.append(('s', 's_nop 0'))
        for j in range(2):
            L.append(('w', st, 'buffer_load_dwordx4 v%d, %s, s%d offen offset:%d lds' % (V_WOFF + j, sr(srd0, 4), s_w0, 1024 * j)))
        L.append(('s', 's_add_u32 m0, s%d, %d' % (sLW, slot * 16384 + 8192)))
        L.append(('s', 's_add_u32 s%d, s%d, %d' % (s_w0, s_w0, 64 * wstride)))
        for j in range(2):
            L.append(('w', st, 'buffer_load_dwordx4 v%d, %s, s%d offen offset:%d lds' % (V_WOFF + j, sr(srd1, 4), s_w1, 1024 * j)))
        L.append(('s', 's_add_u32 s%d, s%d, %d' % (s_w1, s_w1, 64 * wstride)))
        return L
    def a_load(k):
        L = []
        base = A_ACT + 8 * (k % 8)
        for qi, sq in enumerate((s_q0, s_q1)):
            L.append(('a', k, 'buffer_load_dwordx4 %s, v%d, %s, s%d offen offset:%d' % (ar(base + 4 * qi, 4), V_LANE16, sr(WS, 4), sq, 1024 * (k % 4))))
        if k % 4 == 3:
            L.append(('s', 's_add_u32 s%d, s%d, 4096' % (s_q0, s_q0)))
            L.append(('s', 's_add_u32 s%d, s%d, 4096' % (s_q1, s_q1)))
        return L
    def issue(it):
        if it[0] == 's': return it[1]
        i = vm.op()
        if it[0] == 'w': wid[it[1]] = i
        elif it[0] == 'a': aid[it[1]] = i
        return it[-1]
    def w_reads(st, ks, fs):
        L = []
        for nb in range(4):
            for r in range(2):
                L.append('ds_read_b64_tr_b16 %s, v%d offset:%d' % (ar(A_WF + 16 * fs + 4 * nb + 2 * r, 2), V_WRD + nb % 2,
                         (st % 4) * 16384 + (nb // 2) * 8192 + (16 * ks + 4 * r) * 128))
        return L
    pro = w_dma(0) + a_load(0) + a_load(1) + a_load(2) + a_load(3) + w_dma(1) + a_load(4) + a_load(5) + a_load(6) + a_load(7) + w_dma(2) + w_dma(3)
    for it in pro: a(issue(it))
    a('s_waitcnt vmcnt(%d)' % vm.cnt(wid[0]))
    a('s_barrier')
    for s in w_reads(0, 0, 0): a(s)
    pend = []
    for st in range(NST):
        pend += extra_vm.get(st, [])
        for ks in range(4):
            k = 4 * st + ks
            fs = k & 1
            need = aid[k]
            bar = ks == 3 and st < NST - 1
            if bar: need = max(need, wid[st + 1])
            a('s_waitcnt vmcnt(%d) lgkmcnt(0)' % min(63, vm.cnt(need)))
            if bar:
                a('s_barrier')
                rd = w_reads(st + 1, 0, 1 - fs)
                if st + 4 < NST: pend = pend + w_dma(st + 4)
            elif ks < 3:
                rd = w_reads(st, ks + 1, 1 - fs)
            else:
                rd = []
            base = A_ACT + 8 * (k % 8)
            g = 0
            for qi in range(2):
                for nb in range(4):
                    d = vr(ACC + (qi * 4 + nb) * 16, 16)
                    a('%s %s, %s, %s, %s' % (MFMA, d, ar(A_WF + 16 * fs + 4 * nb, 4), ar(base + 4 * qi, 4), '0' if k == 0 else d))
                    if g < 4 and rd:
                        a(rd[2 * g]); a(rd[2 * g + 1])
                    elif g < 7:
                        n = 0
                        while pend and n < 2:
                            it = pend.pop(0); a(issue(it)); n += 1
                            if it[0] != 's': break
                    if g == 7 and k + 8 < 40:
                        for it in a_load(k + 8): a(issue(it))
                    g += 1
    for it in pend: a(issue(it))

def w_addr_setup(a, wstride):
    a('v_lshrrev_b32 v10, 3, v0')
    a('v_mul_u32_u24 v11, %d, v10' % wstride)
    a('v_bfe_u32 v12, v0, 2, 1')
    a('v_bfe_u32 v13, v0, 4, 1')
    a('v_xor_b32 v12, v12, v13')
    a('v_lshl_add_u32 v11, v12, 6, v11')
    a('v_and_b32 v12, 3, v0')
    a('v_lshl_add_u32 v%d, v12, 4, v11' % V_WOFF)
    a('v_add_u32 v%d, %d, v%d' % (V_WOFF + 1, 8 * wstride - 1024, V_WOFF))

def sched(a, mf, reads, misc, valu, last_gap):
    total = sum(c for c, _, _ in valu)
    done = 0
    vi = 0
    M = len(mf)
    first = min([e for _, _, e in valu]) if valu else 0
    for g in range(M):
        for s in misc.get(('pre', g), []): a(s)
        a(mf[g])
        nv = []
        if reads[g]: nv.append(reads[g])
        nv += misc.get(g, [])
        for s in nv: a(s)
        budget = 24 - 4 * max(0, len(nv) + len(misc.get(('pre', g + 1), [])) - 1)
        if g < first: continue
        target = total * min(1.0, (g + 1 - first) / float(last_gap + 1 - first))
        used = 0
        while vi < len(valu):
            c, s, e = valu[vi]
            if e > g: break
            if g >= last_gap: pass
            elif done + c > target + 4: break
            elif used + c > budget and done + c <= target - 24 and used + c <= budget + 16: pass
            elif used + c > budget: break
            a(s); used += c; done += c; vi += 1
        for s in misc.get(('post', g), []): a(s)
    assert vi == len(valu)

def exp_ops(S, P, L, sub=False, e0=0):
    ops = []
    def T(k): return TMP + k % 8
    for k in range(32 + 2):
        if k < 32:
            if sub:
                ops.append((4, 'v_add_f32 v%d, v%d, v%d' % (S + k, S + k, NEGM), e0))
            ops.append((8, 'v_exp_f32 v%d, v%d' % (T(k), S + k), e0))
        j = k - 1
        if 1 <= j < 32:
            if j == 1: ops.append((4, 'v_add_f32 v%d, v%d, v%d' % (V_LT, T(0), T(1)), e0)) if False else None
        j = k - 2
        if 0 <= j < 32:
            if j == 0: pass
            elif j == 1: ops.append((4, 'v_add_f32 v%d, v%d, v%d' % (V_LT, T(0), T(1)), e0))
            else: ops.append((4, 'v_add_f32 v%d, v%d, v%d' % (V_LT, V_LT, T(j)), e0))
            if j % 2 == 1:
                ops.append((4, 'v_cvt_pk_bf16_f32 v%d, v%d, v%d' % (P + j // 2, T(j - 1), T(j)), e0))
    return ops

def max_ops(S, e0=0):
    ops = []
    ops.append((4, 'v_max3_f32 v%d, v%d, v%d, v%d' % (V_T0, S, S + 1, S + 2), e0))
    ops.append((4, 'v_max3_f32 v%d, v%d, v%d, v%d' % (V_T1, S + 3, S + 4, S + 5), e0))
    k = 6
    t = 0
    while k < 32:
        dst = V_T0 if t == 0 else V_T1
        ops.append((4, 'v_max3_f32 v%d, v%d, v%d, v%d' % (dst, dst, S + k, S + k + 1), e0))
        k += 2; t ^= 1
    ops.append((4, 'v_max_f32 v%d, v%d, v%d' % (V_T0, V_T0, V_T1), e0))
    ops.append((4, 'v_mov_b32 v%d, v%d' % (V_T1, V_T0), e0))
    ops.append((8, 's_nop 1', e0))
    ops.append((4, 'v_permlane32_swap_b32 v%d, v%d' % (V_T0, V_T1), e0))
    ops.append((8, 's_nop 1', e0))
    ops.append((4, 'v_max_f32 v%d, v%d, v%d' % (V_T0, V_T0, V_T1), e0))
    return ops

def gen_k2(a, name):
    kernel_begin(a, name)
    end = name + '_end'
    a('s_cmp_ge_u32 s2, 256')
    a('s_cbranch_scc1 %s' % end)
    load_srds(a, [('ws', WS), ('wq', WQ), ('wg', WG), ('wu', WU)])
    a('v_lshrrev_b32 v1, 6, v0')
    a('v_and_b32 v0, 63, v0')
    a('v_readfirstlane_b32 s%d, v1' % sW)
    stamp(a, 0)
    a('v_lshlrev_b32 v%d, 4, v0' % V_LANE16)
    a('v_add_u32 v%d, 16384, v%d' % (V_LANE16V, V_LANE16))
    a('s_and_b32 s29, s2, 7')
    a('s_lshl_b32 s29, s29, 2')
    a('s_lshr_b32 s31, s2, 3')
    a('s_and_b32 s31, s31, 3')
    a('s_add_u32 s29, s29, s31')
    a('s_lshr_b32 s30, s2, 5')
    a('v_lshrrev_b32 v10, 5, v0')
    a('v_bfe_u32 v11, v0, 2, 2')
    a('v_lshl_add_u32 v10, v10, 3, v11')
    a('v_lshlrev_b32 v10, 7, v10')
    a('v_bfe_u32 v11, v0, 4, 1')
    a('v_lshl_add_u32 v10, v11, 5, v10')
    a('v_and_b32 v11, 3, v0')
    a('v_lshl_add_u32 v10, v11, 3, v10')
    a('v_add_u32 v10, %d, v10' % WBASE)
    a('v_bfe_u32 v11, v0, 3, 1')
    a('v_lshl_add_u32 v%d, v11, 6, v10' % V_WRD)
    a('v_xor_b32 v11, 1, v11')
    a('v_lshl_add_u32 v%d, v11, 6, v10' % (V_WRD + 1))
    a('s_lshl_b32 s40, s%d, 11' % sW)
    a('s_add_u32 s40, s40, %d' % WBASE)
    a('s_waitcnt lgkmcnt(0)')
    skip_gu = name + '_skipgu'
    a('s_cmp_ge_u32 s2, 216')
    a('s_cbranch_scc1 %s' % skip_gu)
    w_addr_setup(a, 3456)
    a('s_and_b32 s32, s2, 7')
    a('s_mul_i32 s32, s32, 27')
    a('s_lshr_b32 s33, s2, 3')
    a('s_add_u32 s32, s32, s33')
    a('s_lshr_b32 s33, s32, 3')
    a('s_and_b32 s32, s32, 7')
    a('s_lshl_b32 s34, s32, 2')
    a('s_add_u32 s34, s34, s%d' % sW)
    a('s_lshl_b32 s34, s34, 1')
    a('s_mul_i32 s36, s34, 40960')
    a('s_add_u32 s36, s36, 0x%x' % WS_XN)
    a('s_add_u32 s37, s36, 40960')
    a('s_mul_i32 s38, s%d, %d' % (sW, 16 * 3456))
    a('s_lshl_b32 s39, s33, 7')
    a('s_add_u32 s38, s38, s39')
    a('s_mov_b32 s39, s38')
    vm = VM()
    qg_loop(a, vm, WG, WU, 38, 39, 3456, 36, 37, {})
    stamp(a, 1)
    a('s_mul_i32 s36, s34, %d' % (108 * 1024))
    a('s_lshl_b32 s37, s33, 12')
    a('s_add_u32 s36, s36, s37')
    a('s_add_u32 s36, s36, 0x%x' % WS_H)
    a('s_add_u32 s37, s36, %d' % (108 * 1024))
    a('s_nop 7')
    cnt = 0
    for qi in range(2):
        for nb in range(2):
            g = ACC + (qi * 4 + nb) * 16
            u = g + 32
            for half in range(2):
                T = 64 + 4 * (cnt % 8); cnt += 1
                for e in range(8):
                    a('v_mul_f32 v%d, v%d, v%d' % (g + 8 * half + e, g + 8 * half + e, u + 8 * half + e))
                for e in range(4):
                    a('v_cvt_pk_bf16_f32 v%d, v%d, v%d' % (T + e, g + 8 * half + 2 * e, g + 8 * half + 2 * e + 1))
                a('buffer_store_dwordx4 %s, v%d, %s, s%d offen offset:%d' % (vr(T, 4), V_LANE16, sr(WS, 4), 36 + qi, (2 * nb + half) * 1024))
    a('s_barrier')
    a.label(skip_gu)
    stamp(a, 2)
    w_addr_setup(a, 8192)
    sQA, sQB = 44, 45
    a('s_lshl_b32 s44, s%d, 2' % sI)
    a('s_add_u32 s44, s44, s%d' % sW)
    a('s_sub_u32 s45, 15, s%d' % sI)
    a('s_lshl_b32 s45, s45, 2')
    a('s_add_u32 s45, s45, s%d' % sW)
    a('s_mul_i32 s36, s44, 40960')
    a('s_add_u32 s36, s36, 0x%x' % WS_XN)
    a('s_mul_i32 s37, s45, 40960')
    a('s_add_u32 s37, s37, 0x%x' % WS_XN)
    a('s_lshl_b32 s38, s%d, 17' % sW)
    a('s_lshl_b32 s39, s%d, 8' % sH)
    a('s_add_u32 s38, s38, s39')
    a('s_add_u32 s39, s38, 128')
    sBASE, sK0, sK1, sT, sC0, sC1, sNA = 46, 47, 48, 49, 50, 51, 52
    a('s_lshl_b32 s46, s%d, 20' % sH)
    a('s_lshl_b32 s49, s%d, 12' % sW)
    a('s_add_u32 s46, s46, s49')
    a('s_add_u32 s46, s46, 0x%x' % WS_KV)
    a('s_lshl_b32 s50, s%d, 13' % sW)
    a('s_add_u32 s50, s50, %d' % (65536 + 32768))
    a('s_add_u32 s51, s50, 16384')
    a('s_add_u32 s53, s46, 32768')
    a('s_add_u32 s47, s46, 65536')
    a('s_cmp_eq_u32 s%d, 0' % sI)
    a('s_cselect_b32 s47, s46, s47')
    a('s_add_u32 s48, s47, 32768')
    def kv_dma(m0expr, voff, ssrc):
        L = [('s', m0expr), ('s', 's_nop 0')]
        for j in range(4):
            L.append(('x', 'buffer_load_dwordx4 v%d, %s, s%d offen offset:%d lds' % (voff, sr(WS, 4), ssrc, 1024 * j)))
        return L
    extra = {
        3: kv_dma('s_add_u32 m0, s49, 0', V_LANE16, 46) + kv_dma('s_add_u32 m0, s49, 16384', V_LANE16, 53),
        5: kv_dma('s_add_u32 m0, s49, 32768', V_LANE16, 47) + kv_dma('s_add_u32 m0, s49, 65536', V_LANE16V, 46),
        7: kv_dma('s_add_u32 m0, s49, 49152', V_LANE16, 48) + kv_dma('s_add_u32 m0, s49, %d' % (65536 + 16384), V_LANE16V, 53),
    }
    vm = VM()
    qg_loop(a, vm, WQ, WQ, 38, 39, 8192, 36, 37, extra)
    stamp(a, 3)
    a('v_and_b32 v10, 31, v0')
    a('v_lshrrev_b32 v11, 5, v0')
    a('v_lshlrev_b32 v11, 2, v11')
    a('v_sub_u32 v10, v10, v11')
    for j in range(16):
        cj = 8 * (j // 4) + j % 4
        a('v_cmp_gt_i32 vcc, %d, v10' % cj)
        a('s_nop 1')
        a('v_cndmask_b32 v%d, 0, 1.0, vcc' % (TRI + j))
    a('s_mov_b32 s54, %s' % f2u(math.log2(math.e) / math.sqrt(128.0)))
    for qi, Q in enumerate((QA, QB)):
        for nb in range(4):
            b = ACC + (qi * 4 + nb) * 16
            for e in range(16):
                a('v_mul_f32 v%d, s54, v%d' % (b + e, b + e))
            for e in range(8):
                a('v_cvt_pk_bf16_f32 v%d, v%d, v%d' % (Q + nb * 8 + e, b + 2 * e, b + 2 * e + 1))
    for i in range(128):
        a('v_accvgpr_write_b32 a%d, 0' % i)
    a('v_mov_b32 v%d, v%d' % (V_KRD, V_LANE16))
    a('v_add_u32 v%d, 65536, v%d' % (V_VRD, V_LANE16))
    a('v_mov_b32 v%d, 0' % V_LA)
    a('v_mov_b32 v%d, 0' % V_LB)
    a('s_mov_b32 s55, %s' % f2u(THR))
    a('s_mov_b32 s56, %s' % f2u(-BIG))
    def kread(i, p):
        return 'ds_read_b128 %s, v%d offset:%d' % (ar(A_RING + 4 * (i % R), 4), V_KRD, p * 16384 + i * 1024)
    def vread(i, p):
        return 'ds_read_b128 %s, v%d offset:%d' % (ar(A_RING + 4 * (i % R), 4), V_VRD, p * 16384 + i * 1024)
    def qk_mf(Q, S, c0, c1):
        L = []
        for g in range(16):
            blk, st = g // 8, g % 8
            d = vr(S + 16 * blk, 16)
            c = (c0, c1)[blk] if st == 0 else d
            L.append('%s %s, %s, %s, %s' % (MFMA, d, ar(A_RING + 4 * g, 4), vr(Q + 4 * st, 4), c))
        return L
    def pv_mf(O, P):
        L = []
        for g in range(16):
            ks, db = g // 4, g % 4
            d = ar(O + 16 * db, 16)
            L.append('%s %s, %s, %s, %s' % (MFMA, d, ar(A_RING + 4 * g, 4), vr(P + 4 * ks, 4), d))
        return L
    def cm_ops(dst, b, dyn=False, zero=False):
        S = []
        sa, sb = (57, 58) if dst == CM else (59, 60)
        S.append('s_cmp_eq_u32 s%d, %d' % (sW, b))
        S.append('s_cselect_b32 s%d, s56, 0' % sa)
        S.append('s_cmp_lt_u32 s%d, %d' % (sW, b))
        S.append('s_cselect_b32 s%d, s56, 0' % sb)
        if dyn:
            S.append('s_cmp_eq_u32 s%d, 0' % sI)
            S.append('s_cselect_b32 s%d, s%d, 0' % (sa, sa))
            S.append('s_cselect_b32 s%d, s%d, 0' % (sb, sb))
        Vv = []
        t = V_T0 if dst == CM else V_T1
        if zero: Vv.append((4, 'v_mov_b32 v%d, s%d' % (t, sb), 0))
        else:    Vv.append((4, 'v_add_f32 v%d, s%d, v%d' % (t, sb, NEGM), 0))
        for j in range(16):
            Vv.append((4, 'v_fma_f32 v%d, v%d, s%d, v%d' % (dst + j, TRI + j, sa, t), 0))
        return S, Vv
    rare_sites = []
    def check_ops(L):
        return [(4, 'v_cmp_lt_f32 vcc, s55, v%d' % V_LT, 0)]
    def after_check(p_cur, bank, adj_next, L):
        stub, back = a.newlabel(name + '_rs'), a.newlabel(name + '_rb')
        a('s_cbranch_vccnz %s' % stub)
        a.label(back)
        a('v_add_f32 v%d, v%d, v%d' % (L, L, V_LT))
        rare_sites.append((stub, back, p_cur, bank, adj_next))

    def iteration(p, bank, qk, ex, order='qp', nxt='k', dk=True, dv=True, ksrc_reset=False, premask=None, init=False,
                  adj_next=True, loop_ctr=None):
        L = (V_LA, V_LB)[bank]
        mf = []; rd = []
        if qk:
            Q, kind = qk
            c0, c1 = {False: (vr(NEGM, 16), vr(NEGM, 16)), True: (vr(CM, 16), vr(CM2, 16)), 'zero': ('0', '0')}[kind]
            q = qk_mf(Q, SB[p], c0, c1)
            kr = [kread(i, p) for i in range(16)]
        v = pv_mf(A_O[bank], PB[p])
        vr_ = [vread(i, p) for i in range(16)]
        if not qk: mf, rs = v, vr_
        elif order == 'qp': mf, rs = q + v, kr + vr_
        else: mf, rs = v + q, vr_ + kr
        M = len(mf)
        if nxt == 'k': nx = [kread(i, 1 - p) for i in range(D)]
        elif nxt == 'v': nx = [vread(i, 1 - p) for i in range(D)]
        else: nx = [None] * D
        reads = rs[D:] + nx
        misc = {}
        def add(g, s): misc.setdefault(g, []).append(s)
        for g in range(3, M, 4):
            n = min(D - 4, sum(1 for x in reads[max(0, g - 3):g + 1] if x))
            if g == M - 1 and nxt is None: continue
            add(g, 's_waitcnt lgkmcnt(%d)' % n)
        bg = M - D
        nd = 0
        sp = 3 if M == 32 else 1
        if dv:
            add(0, 's_sub_u32 m0, s%d, s%d' % ((sC0, sC1)[p], sT))
            for j in range(4):
                add((1 + j * sp) if (1 + j * sp) % 4 != 3 else (2 + j * sp), 'buffer_load_dwordx4 v%d, %s, s%d offen offset:%d lds' % (V_LANE16V, sr(WS, 4), (sK0, sK1)[p], 1024 * j))
            nd += 4
        if dk:
            add(12, 's_add_u32 m0, s%d, %d' % (sT, p * 16384))
            if ksrc_reset: add(12, 's_mov_b32 s%d, s%d' % ((sK0, sK1)[p], sBASE))
            else: add(12, 's_add_u32 s%d, s%d, 32768' % ((sK0, sK1)[p], (sK0, sK1)[1 - p]))
            for j, g in enumerate((13, 16, 18, 21)):
                add(g, 'buffer_load_dwordx4 v%d, %s, s%d offen offset:%d lds' % (V_LANE16, sr(WS, 4), (sK0, sK1)[p], 1024 * j))
            nd += 4
        if nxt is not None:
            add(bg - 2, 's_waitcnt vmcnt(%d)' % nd)
            misc.setdefault(('pre', bg), []).append('s_barrier')
        valu = []
        if p == 1:
            add(bg + 1, 's_xor_b32 s%d, s%d, 32768' % (sT, sT))
        tog = []
        if init:
            valu += max_ops(SB[1 - p])
            for j in range(16):
                valu.append((4, 'v_sub_f32 v%d, 0, v%d' % (NEGM + j, V_T0), 0))
            valu += exp_ops(SB[1 - p], PB[1 - p], L, sub=True)
        elif ex:
            valu += exp_ops(SB[1 - p], PB[1 - p], L)
            valu += check_ops(L)
        if p == 1:
            misc.setdefault(('post', bg - 1), []).append('v_xor_b32 v%d, 32768, v%d' % (V_KRD, V_KRD))
            misc.setdefault(('post', bg - 1), []).append('v_xor_b32 v%d, 32768, v%d' % (V_VRD, V_VRD))
        if init:
            n1 = len(max_ops(0)) + 16
            sched_init(a, mf, reads, misc, valu[:n1], valu[n1:])
            a('v_mov_b32 v%d, v%d' % (V_LB, V_LT))
        else:
            sched(a, mf, reads, misc, valu, M - 2)
            if ex: after_check(1 - p, bank, adj_next, L)
        if premask is not None:
            for dst, b in ((CM, 2 * premask), (CM2, 2 * premask + 1)):
                S_, V_ = cm_ops(dst, b)
                for s in S_: a(s)
                for _, s, _ in V_: a(s)
            a('s_nop 1')
        if loop_ctr:
            a('s_sub_u32 s%d, s%d, 1' % (loop_ctr[0], loop_ctr[0]))
            a('s_cbranch_scc0 %s' % loop_ctr[1])

    def sched_init(a, mf, reads, misc, v1, v2):
        m1 = {k: v for k, v in misc.items() if (k if isinstance(k, int) else k[1]) < 16}
        m2 = {}
        for k, v in misc.items():
            if isinstance(k, int):
                if k >= 16: m2[k - 16] = v
            elif k[1] >= 16: m2[(k[0], k[1] - 16)] = v
        nmove = 30
        sched(a, mf[:16], reads[:16], m1, v1 + v2[:nmove], 15)
        sched(a, mf[16:], reads[16:], m2, v2[nmove:], 15)

    def epilogue(bank, sq):
        L = (V_LA, V_LB)[bank]
        a('v_mov_b32 v%d, v%d' % (V_T0, L))
        a('s_lshl_b32 s61, s%d, 18' % sq)
        a('s_lshl_b32 s62, s%d, 13' % sH)
        a('v_permlane32_swap_b32 v%d, v%d' % (V_T0, L))
        a('s_add_u32 s61, s61, s62')
        a('s_add_u32 s61, s61, 0x%x' % WS_CTX)
        a('v_add_f32 v%d, v%d, v%d' % (V_T0, V_T0, L))
        a('v_rcp_f32 v%d, v%d' % (V_T0, V_T0))
        a('s_add_u32 s62, s61, 4096')
        a('s_nop 7')
        for f in range(8):
            T = (CM, CM2)[f % 2]
            for e in range(8):
                a('v_accvgpr_read_b32 v%d, a%d' % (T + e, A_O[bank] + 8 * f + e))
            for e in range(8):
                a('v_mul_f32 v%d, v%d, v%d' % (T + e, T + e, V_T0))
            for e in range(4):
                a('v_cvt_pk_bf16_f32 v%d, v%d, v%d' % (T + 8 + e, T + 2 * e, T + 2 * e + 1))
            a('buffer_store_dwordx4 %s, v%d, %s, s%d offen offset:%d' % (vr(T + 8, 4), V_LANE16, sr(WS, 4), 61 + f // 4, (f % 4) * 1024))

    a('s_waitcnt vmcnt(8)')
    a('s_barrier')
    for i in range(16): a(kread(i, 0))
    for dst, b in ((CM, 0), (CM2, 1)):
        S_, V_ = cm_ops(dst, b, dyn=True, zero=True)
        for s in S_: a(s)
        for _, s, _ in V_: a(s)
    a('s_waitcnt lgkmcnt(8)')
    mf = qk_mf(QA, SB[0], vr(CM, 16), vr(CM2, 16))
    for g in range(16):
        if g == 8: a('s_waitcnt lgkmcnt(8)')
        a(mf[g])
        if g < 8: a(kread(g, 1))
    a('s_nop 15')
    for _, s, _ in max_ops(SB[0]): a(s)
    for j in range(16): a('v_sub_f32 v%d, 0, v%d' % (NEGM + j, V_T0))
    for dst, b in ((CM, 2), (CM2, 3)):
        S_, V_ = cm_ops(dst, b, dyn=True)
        for s in S_: a(s)
        for _, s, _ in V_: a(s)
    a('s_waitcnt lgkmcnt(4)')
    mf = qk_mf(QA, SB[1], vr(CM, 16), vr(CM2, 16))
    reads = [kread(i, 1) for i in range(8, 16)] + [kread(i, 0) for i in range(8)]
    misc = {3: ['s_waitcnt lgkmcnt(4)'], 7: ['s_waitcnt lgkmcnt(4)'], 11: ['s_waitcnt lgkmcnt(4)'], 15: ['s_waitcnt lgkmcnt(4)'],
            ('post', 7): ['v_xor_b32 v%d, 32768, v%d' % (V_KRD, V_KRD)]}
    sched(a, mf, reads, misc, exp_ops(SB[0], PB[0], V_LA, sub=True), 15)
    a('v_mov_b32 v%d, v%d' % (V_LA, V_LT))
    stamp(a, 4)
    lA, lA_skip, lA_tail2 = name + '_loopA', name + '_skipA', name + '_tail2A'
    a('s_cmp_eq_u32 s%d, 0' % sI)
    a('s_cbranch_scc1 %s' % lA_tail2)
    a('s_sub_u32 s63, s%d, 2' % sI)
    a('s_cbranch_scc1 %s' % lA_skip)
    a.raw('.p2align 6')
    a.label(lA)
    iteration(0, 0, (QA, False), True)
    iteration(1, 0, (QA, False), True, loop_ctr=(63, lA))
    a.label(lA_skip)
    def premask(tau):
        for dst, b in ((CM, 2 * tau), (CM2, 2 * tau + 1)):
            S_, V_ = cm_ops(dst, b)
            for s in S_: a(s)
            for _, s, _ in V_: a(s)
        a('s_nop 1')
    premask(0)
    iteration(0, 0, (QA, True), True, ksrc_reset=True, premask=1)
    iteration(1, 0, (QA, True), True)
    a.label(lA_tail2)
    iteration(0, 0, (QB, 'zero'), True, nxt='v', adj_next=False)
    iteration(1, 0, (QB, False), False, order='pq', init=True)
    stamp(a, 5)
    epilogue(0, sQA)
    stamp(a, 6)
    cstamp(a, 10)
    lB = name + '_loopB'
    a('s_sub_u32 s63, 13, s%d' % sI)
    a('s_waitcnt vmcnt(8)')
    a.raw('.p2align 6')
    a.label(lB)
    iteration(0, 1, (QB, False), True)
    iteration(1, 1, (QB, False), True, loop_ctr=(63, lB))
    premask(0)
    iteration(0, 1, (QB, True), True, dk=False, premask=1)
    iteration(1, 1, (QB, True), True, dk=False, nxt='v')
    iteration(0, 1, None, True, dk=False, dv=False, nxt='v')
    iteration(1, 1, None, False, dk=False, dv=False, nxt=None)
    stamp(a, 7)
    cstamp(a, 11)
    epilogue(1, sQB)
    stamp(a, 8)
    if DIAG: a('s_waitcnt vmcnt(0)')
    stamp(a, 9)
    stamp_flush(a, 1, WS, sW, 12)
    a.label(end)
    a('s_endpgm')
    for stub, back, pc, bank, adj in rare_sites:
        a.label(stub)
        a('s_mov_b32 s66, %s' % ('1.0' if adj else '0'))
        a('s_call_b64 s[64:65], %s_rare%d%d' % (name, pc, bank))
        a('s_branch %s' % back)
    for pc in range(2):
        for bank in range(2):
            L = (V_LA, V_LB)[bank]
            a.label('%s_rare%d%d' % (name, pc, bank))
            a('s_nop 15')
            for _, s, _ in max_ops(SB[pc]): a(s)
            a('v_max_f32 v%d, 0, v%d' % (V_T0, V_T0))
            a('v_exp_f32 v%d, -v%d' % (V_T1, V_T0))
            for j in range(16): a('v_sub_f32 v%d, v%d, v%d' % (NEGM + j, NEGM + j, V_T0))
            for j in range(32): a('v_sub_f32 v%d, v%d, v%d' % (SB[pc] + j, SB[pc] + j, V_T0))
            a('v_mul_f32 v%d, v%d, v%d' % (L, L, V_T1))
            a('v_mul_f32 v%d, s66, v%d' % (V_T0, V_T0))
            for j in range(32): a('v_sub_f32 v%d, v%d, v%d' % (SB[1 - pc] + j, SB[1 - pc] + j, V_T0))
            for j in range(0, 64, 8):
                for e in range(8): a('v_accvgpr_read_b32 v%d, a%d' % (TMP + e, A_O[bank] + j + e))
                for e in range(8): a('v_mul_f32 v%d, v%d, v%d' % (TMP + e, TMP + e, V_T1))
                for e in range(8): a('v_accvgpr_write_b32 a%d, v%d' % (A_O[bank] + j + e, TMP + e))
            for _, s, _ in exp_ops(SB[pc], PB[pc], L): a(s)
            a('s_nop 1')
            a('s_setpc_b64 s[64:65]')
    kernel_desc(a, name, 512, 256)
    return a
```

```python
import sys
from common import *
from k1 import gen_k1
NAME = 'recurrent_scan__compressed_kv_cla__glu_gated_bilinear__prompt'
def main(path, which):
    hdr = open('cdna_kernels/%s.s.ref' % NAME).read().split('; Override launch')[0]
    L = []
    a = Asm()
    if 1 in which:
        L.append('; @launch kernel=k1_kernel grid=(256,1,1) block=(256,1,1) lds=131072')
        gen_k1(a, 'k1_kernel')
    if 2 in which:
        from k2 import gen_k2
        L.append('; @launch kernel=k2_kernel grid=(256,1,1) block=(256,1,1) lds=163840')
        gen_k2(a, 'k2_kernel')
    if 3 in which:
        from k3 import gen_k3, K3_GRID, K3_LDS
        L.append('; @launch kernel=k3_kernel grid=(%d,1,1) block=(256,1,1) lds=%d' % (K3_GRID, K3_LDS))
        gen_k3(a, 'k3_kernel')
    txt = hdr + '\n'.join(L) + '\n.amdgcn_target "amdgcn-amd-amdhsa--gfx950"\n' + a.text()
    open(path, 'w').write(txt)
if __name__ == '__main__':
    which = [int(c) for c in sys.argv[2]] if len(sys.argv) > 2 else [1, 2, 3]
    main(sys.argv[1], which)
```

```python
from common import *
import math

class VM:
    def __init__(self): self.n = 0
    def op(self):
        self.n += 1
        return self.n
    def cnt(self, ident): return self.n - ident

WS, WQ, WG, WU = 8, 12, 16, 20
sW, sH, sI, sCT = 28, 29, 30, 31
V_LANE16, V_LANE16V = 1, 2
V_KRD, V_VRD = 3, 4
V_T0, V_T1, V_T2, V_T3 = 5, 6, 7, 8
V_L = 9
TRI = 12
V_L = 8
V_T3 = 0
NEGM = 16
LT = 32
TMP = 48
SB = [[64, 96], [128, 160]]
PB = [[192, 208], [224, 240]]
A_O = [0, 64]; A_Q = [128, 160]; A_RING = 192; V_ONES = 56
D, R = int(os.environ.get('ATT_D', 10)), 16
XP = os.environ.get('XP', '')
THR = 2.0 ** float(os.environ.get('THRLOG', 40))
BIG = 1.0e30
P_XOFF2 = 16
P_WOFF = 17
P_WRD = 24
P_ACCV = 128
P_ACCA = 0
P_WF = 128
P_ACT = 192
WSLOT = [96 * 1024, 64 * 1024, 128 * 1024]

def qgu_loop(a, nm, extra_vm):
    vm = VM()
    NST = 10
    sLW = 40
    s_w = [36, 37, 38, 39]
    srd = [WQ, WQ, WG, WU]; stride = [8192, 8192, 3456, 3456]
    s_q = [41, 42]
    wid = {}; aid = {}
    def w_dma(st):
        L = []
        for m in range(nm):
            L.append(('s', 's_add_u32 m0, s%d, %d' % (sLW, WSLOT[st % 3] + m * 8192)))
            L.append(('n', 's_nop 0'))
            for j in range(2):
                L.append(('w', st, 'buffer_load_dwordx4 v%d, %s, s%d offen offset:%d lds' % (P_WOFF + 2 * (m // 2) + j, sr(srd[m], 4), s_w[m], 1024 * j)))
            L.append(('s', 's_add_u32 s%d, s%d, %d' % (s_w[m], s_w[m], 64 * stride[m])))
        return L
    def a_load(k):
        L = []
        base = P_ACT + 16 * (k % 4)
        for qi in range(4):
            L.append(('a', k, 'buffer_load_dwordx4 %s, v%d, %s, s%d offen offset:%d' % (ar(base + 4 * qi, 4), (V_LANE16, P_XOFF2)[qi % 2], sr(WS, 4), s_q[qi // 2], 1024 * (k % 4))))
        if k % 4 == 3:
            for s in s_q: L.append(('s', 's_add_u32 s%d, s%d, 4096' % (s, s)))
        return L
    def issue(it):
        if it[0] in 'sn': return it[1]
        i = vm.op()
        if it[0] == 'w': wid[it[1]] = i
        elif it[0] == 'a': aid[it[1]] = i
        return it[-1]
    def w_read(k, n):
        st, ks = k // 2, k % 2
        off = WSLOT[st % 3] - 65536
        grp = off // 65536; off %= 65536
        m, c = n // 4, n % 4
        return ['ds_read_b64_tr_b16 %s, v%d offset:%d' % (ar(P_WF + 4 * n + 2 * r, 2), P_WRD + 4 * grp + c, off + m * 8192 + (32 * ks + 16 * r) * 128) for r in range(2)]
    NB = 4 * nm
    pro = w_dma(0) + a_load(0) + a_load(1) + w_dma(1) + a_load(2) + a_load(3) + w_dma(2)
    for it in pro: a(issue(it))
    a('s_waitcnt vmcnt(%d)' % vm.cnt(wid[0]))
    a('s_barrier')
    for n in range(NB):
        for s in w_read(0, n): a(s)
    pend = []
    for k in range(2 * NST):
        st, ks = k // 2, k % 2
        if ks == 0: pend += extra_vm.get(st, [])
        base = P_ACT + 16 * (k % 4)
        a('s_waitcnt vmcnt(%d) lgkmcnt(%d)' % (min(63, vm.cnt(aid[k])), 8))
        if k > 0 and k + 3 < 2 * NST: pend = a_load(k + 3) + pend
        for n in range(NB):
            if n % 4 == 0 and n > 0:
                last = (k == 2 * NST - 1)
                a('s_waitcnt lgkmcnt(%d)' % (8 if not last else min(8, 2 * (NB - n - 4))))
            for qi in range(4):
                if n < 8: d = ar(P_ACCA + (n * 4 + qi) * 4, 4)
                else:     d = vr(P_ACCV + ((n - 8) * 4 + qi) * 4, 4)
                a('%s %s, %s, %s, %s' % (MF16, d, ar(P_WF + 4 * n, 4), ar(base + 4 * qi, 4), '0' if k == 0 else d))
                if qi in (0, 1, 2):
                    while pend and pend[0][0] == 'n': pend.pop(0)
                    if pend: a(issue(pend.pop(0)))
            if k + 1 < 2 * NST:
                if n == 0 and ks == 1:
                    a('s_waitcnt vmcnt(%d) lgkmcnt(0)' % min(63, vm.cnt(wid[st + 1])))
                    a('s_barrier')
                    if st + 3 < NST: pend = pend + w_dma(st + 3)
                    pend += extra_vm.get(('b', st), [])
                for s in w_read(k + 1, n): a(s)
    for it in pend: a(issue(it))
    return vm


EARLY = 6

def exp_seq(st, p):
    S = SB[st][p]
    return [(S + ((2 * ks + kk) * 2 + qb) * 4 + r, qb, ks) for ks in range(2) for qb in range(2) for kk in range(2) for r in range(4)]

def exp_ops(st, p, sub=False):
    P = PB[st][p]; seq = exp_seq(st, p); ops = []
    for k in range(32 + 6):
        if k < 32:
            ops.append('v_exp_f32 v%d, v%d' % (TMP + k % 8, seq[k][0]))
        j = k - 2
        if 0 <= j < 32 and j % 2 == 1:
            _, qb, ks = seq[j]
            ops.append('v_cvt_pk_bf16_f32 v%d, v%d, v%d' % (P + (qb * 2 + ks) * 4 + (j % 8) // 2, TMP + (j - 1) % 8, TMP + j % 8))
        j = k - 5
        if 0 <= j < 32 and j % 8 == 7:
            _, qb, ks = seq[j]
            d = vr(LT + (st * 2 + qb) * 4, 4)
            if k >= 32: ops.append('s_nop 1')
            ops.append('%s %s, %s, %s, %s' % (MF16, d, vr(V_ONES, 4), vr(P + (qb * 2 + ks) * 4, 4), '0' if ks == 0 else d))
    return ops

class Packer:
    def __init__(self, a): self.a = a
    def run(self, groups, rds, items, exps, extra, finish, early, have_early, sub=False):
        a = self.a
        E = []
        for ti, (st, p) in enumerate(exps):
            for k, (s, qb, ks) in enumerate(exp_seq(st, p)): E.append((s, NEGM + (st * 2 + qb) * 4, st, p, k, qb, ks))
        ne = EARLY if (have_early and E) else 0
        nc = 0; no = 0
        pos = 0
        epos = {i: -10 for i in range(ne)}; cpos = {}; opos = -100
        subbed = set()
        nread = 0; read_idx = {}
        items = [dict(x) for x in items]
        fin = list(finish); extra = list(extra)
        EE = exp_seq(*early)[:EARLY] if early else []
        nee = 0
        total_gaps = sum(len(g) for g in groups) + len(E) // 8
        gapno = 0
        def emit(s):
            nonlocal pos
            a(s); pos += 1
        def item_text(it):
            if 'lg' in it:
                gi = it['lg'] - D
                younger = nread - read_idx[gi] if gi in read_idx else (nread if gi < 0 else 0)
                if gi < 0: younger = nread + (-1 - gi)
                return 's_waitcnt lgkmcnt(%d)' % min(15, younger)
            return it['ins']
        def fill(gi, cap, last_of_group):
            nonlocal ne, nc, nee
            nonv = []; val = []
            full = cap >= 8
            def take(it):
                items.remove(it); (val if it.get('v') else nonv).append(it)
            forced = [it for it in items if (it['hi'] <= gi and last_of_group) or it['hi'] < gi]
            for it in forced: take(it)
            pace = len(E) * (gapno + 1.0) / max(1.0, total_gaps - 2 * EARLY - 4) + 3 + (EARLY if have_early else 0)
            def can_exp(): return ne < len(E) and ne - 2 * nc < 8 and ne < pace and (not sub or ne in subbed)
            def can_ee(): return ne == len(E) and nee < len(EE) and (len(E) + nee) - 2 * nc < 8
            def can_cvt(): return 2 * nc + 1 < ne and epos[2 * nc + 1] < pos
            out = []
            if not (full and len(forced) <= 1 and (can_exp() or can_ee())): cap -= 4 * len(forced)
            while cap > 0:
                if cap >= 8 and can_exp():
                    out.append(('e', ne)); epos[ne] = pos + 1000; ne += 1; cap -= 8; continue
                if cap >= 8 and can_ee() and not can_cvt():
                    out.append(('ee', nee)); nee += 1; cap -= 8; continue
                due = [it for it in items if it['lo'] <= gi and it['hi'] <= gi]
                if due and not (can_cvt() and ne - 2 * nc >= 7):
                    take(due[0]); cap -= 4; continue
                if can_cvt() and (ne - 2 * nc >= 5 or ne == len(E)):
                    out.append(('c', nc)); nc += 1; cap -= 4; continue
                if fin and no == len(E) // 8 and pos - opos >= 9:
                    out.append(('x', fin.pop(0))); cap -= 4; continue
                if sub and ne < len(E):
                    nx = [x for x in range(ne, min(len(E), ne + 3)) if x not in subbed]
                    if nx:
                        subbed.add(nx[0]); out.append(('s', nx[0])); cap -= 4; continue
                cand = [it for it in items if it['lo'] <= gi]
                if cand:
                    take(cand[0]); cap -= 4; continue
                if can_cvt():
                    out.append(('c', nc)); nc += 1; cap -= 4; continue
                if extra:
                    out.append(('x', extra.pop(0))); cap -= 4; continue
                break
            for it in nonv: emit(item_text(it))
            for it in val: emit(it['ins'])
            for kind, x in out:
                if kind == 'e':
                    emit('v_exp_f32 v%d, v%d' % (TMP + x % 8, E[x][0])); epos[x] = pos
                elif kind == 'ee':
                    emit('v_exp_f32 v%d, v%d' % (TMP + x % 8, EE[x][0]))
                elif kind == 's':
                    emit('v_add_f32 v%d, v%d, v%d' % (E[x][0], E[x][0], E[x][1]))
                elif kind == 'c':
                    _, _, st, p, k, qb, ks = E[2 * x + 1]
                    emit('v_cvt_pk_bf16_f32 v%d, v%d, v%d' % (PB[st][p] + (qb * 2 + ks) * 4 + (k % 8) // 2, TMP + (2 * x) % 8, TMP + (2 * x + 1) % 8)); cpos[x] = pos
                else: emit(x)
        def ones_ready(): return no < len(E) // 8 and (4 * no + 3) in cpos and pos - cpos[4 * no + 3] >= 2
        def emit_ones():
            nonlocal no, opos
            _, _, st, p, k, qb, ks = E[8 * no]
            d = vr(LT + (st * 2 + qb) * 4, 4)
            emit('%s %s, %s, %s, %s' % (MF16, d, vr(V_ONES, 4), vr(PB[st][p] + (qb * 2 + ks) * 4, 4), '0' if ks == 0 else d))
            no += 1; opos = pos
        for gi, L in enumerate(groups):
            for mi, m in enumerate(L):
                emit(m)
                cap = 8
                if mi == 0 and rds[gi]:
                    emit(rds[gi]); nread += 1; read_idx[gi] = nread; cap -= 4
                last = mi == len(L) - 1
                will_ones = last and no < len(E) // 8 and (4 * no + 3) in cpos
                fill(gi, cap, last and not will_ones); gapno += 1
                if will_ones:
                    if pos - cpos[4 * no + 3] < 2: emit('s_nop 0')
                    emit_ones()
                    fill(gi, 8, True); gapno += 1
        guard = 0
        while ne < len(E) or nc < len(E) // 2 or no < len(E) // 8 or fin or items or extra or nee < len(EE):
            before = pos
            if no < len(E) // 8 and (4 * no + 3) in cpos:
                if pos - cpos[4 * no + 3] < 2: emit('s_nop 1')
                emit_ones()
            gapno += 4
            fill(len(groups), 16, True)
            if pos == before: emit('s_nop 1')
            guard += 1; assert guard < 400

def max_ops(st, p, qb, dst, tmp):
    S = SB[st][p]
    regs = [S + (kb * 2 + qb) * 4 + r for kb in range(4) for r in range(4)]
    ops = ['v_max3_f32 v%d, v%d, v%d, v%d' % (dst, regs[0], regs[1], regs[2]),
           'v_max3_f32 v%d, v%d, v%d, v%d' % (tmp, regs[3], regs[4], regs[5])]
    k = 6; t = 0
    while k < 16:
        d = dst if t == 0 else tmp
        ops.append('v_max3_f32 v%d, v%d, v%d, v%d' % (d, d, regs[k], regs[k + 1])); k += 2; t ^= 1
    ops.append('v_max_f32 v%d, v%d, v%d' % (dst, dst, tmp))
    for sw in ('v_permlane16_swap_b32', 'v_permlane32_swap_b32'):
        ops.append('v_mov_b32 v%d, v%d' % (tmp, dst))
        ops.append('s_nop 1')
        ops.append('%s v%d, v%d' % (sw, dst, tmp))
        ops.append('s_nop 1')
        ops.append('v_max_f32 v%d, v%d, v%d' % (dst, dst, tmp))
    return ops

def gen_k2(a, name):
    kernel_begin(a, name)
    end = name + '_end'
    a('s_cmp_ge_u32 s2, 256')
    a('s_cbranch_scc1 %s' % end)
    load_srds(a, [('ws', WS), ('wq', WQ), ('wg', WG), ('wu', WU)])
    a('v_lshrrev_b32 v1, 6, v0')
    a('v_and_b32 v0, 63, v0')
    a('v_readfirstlane_b32 s%d, v1' % sW)
    stamp(a, 0)
    a('v_lshlrev_b32 v%d, 4, v0' % V_LANE16)
    a('v_add_u32 v%d, 16384, v%d' % (V_LANE16V, V_LANE16))
    a('v_add_u32 v%d, 20480, v%d' % (P_XOFF2, V_LANE16))
    a('s_and_b32 s29, s2, 7')
    a('s_lshl_b32 s29, s29, 2')
    a('s_lshr_b32 s31, s2, 3')
    a('s_and_b32 s31, s31, 3')
    a('s_add_u32 s29, s29, s31')
    a('s_lshr_b32 s30, s2, 5')
    a('s_lshr_b32 s31, s29, 3')
    a('s_sub_u32 s31, s29, s31')
    a('v_lshrrev_b32 v5, 3, v0')
    a('v_bfe_u32 v6, v0, 1, 2')
    a('v_bfe_u32 v7, v0, 4, 2')
    a('v_xor_b32 v6, v6, v7')
    a('v_lshlrev_b32 v6, 5, v6')
    a('v_and_b32 v7, 1, v0')
    a('v_lshl_add_u32 v6, v7, 4, v6')
    a('v_lshl_add_u32 v%d, v5, 13, v6' % P_WOFF)
    a('v_add_u32 v%d, %d, v%d' % (P_WOFF + 1, 8 * 8192 - 1024, P_WOFF))
    a('v_mul_u32_u24 v5, 3456, v5')
    a('v_add_u32 v%d, v5, v6' % (P_WOFF + 2))
    a('v_add_u32 v%d, %d, v%d' % (P_WOFF + 3, 8 * 3456 - 1024, P_WOFF + 2))
    a('v_lshrrev_b32 v5, 2, v0')
    a('v_lshlrev_b32 v5, 7, v5')
    a('v_and_b32 v6, 3, v0')
    a('v_lshl_add_u32 v5, v6, 3, v5')
    a('v_add_u32 v5, 65536, v5')
    a('v_bfe_u32 v6, v0, 3, 2')
    for c in range(4):
        a('v_xor_b32 v7, %d, v6' % c)
        a('v_lshl_add_u32 v%d, v7, 5, v5' % (P_WRD + c))
        a('v_add_u32 v%d, 65536, v%d' % (P_WRD + 4 + c, P_WRD + c))
    a('s_lshl_b32 s40, s%d, 11' % sW)
    sQ = [44, 45]
    a('s_lshl_b32 s44, s%d, 2' % sI)
    a('s_add_u32 s44, s44, s%d' % sW)
    a('s_lshl_b32 s44, s44, 1')
    a('s_sub_u32 s45, 15, s%d' % sI)
    a('s_lshl_b32 s45, s45, 2')
    a('s_add_u32 s45, s45, s%d' % sW)
    a('s_lshl_b32 s45, s45, 1')
    a('s_mul_i32 s41, s44, 20480')
    a('s_mul_i32 s42, s45, 20480')
    if WS_XN:
        a('s_add_u32 s41, s41, 0x%x' % WS_XN); a('s_add_u32 s42, s42, 0x%x' % WS_XN)
    a('s_lshl_b32 s36, s%d, 17' % sW)
    a('s_lshl_b32 s37, s%d, 8' % sH)
    a('s_add_u32 s36, s36, s37')
    a('s_add_u32 s37, s36, 128')
    a('s_mul_i32 s38, s%d, %d' % (sW, 16 * 3456))
    a('s_lshl_b32 s39, s%d, 7' % sCT)
    a('s_add_u32 s38, s38, s39')
    a('s_mov_b32 s39, s38')
    sBASE, sK0, sK1, sT, sC0, sC1 = 46, 47, 48, 49, 50, 51
    a('s_lshl_b32 s46, s%d, 20' % sH)
    a('s_lshl_b32 s49, s%d, 12' % sW)
    a('s_add_u32 s46, s46, s49')
    a('s_add_u32 s46, s46, 0x%x' % WS_KV)
    a('s_lshl_b32 s50, s%d, 13' % sW)
    a('s_add_u32 s50, s50, %d' % (65536 + 32768))
    a('s_add_u32 s51, s50, 16384')
    a('s_add_u32 s53, s46, 32768')
    a('s_add_u32 s47, s46, 65536')
    a('s_add_u32 s48, s47, 32768')
    def kv_dma(m0expr, voff, ssrc):
        L = [('s', m0expr), ('n', 's_nop 0')]
        for j in range(4):
            L.append(('x', 'buffer_load_dwordx4 v%d, %s, s%d offen offset:%d lds' % (voff, sr(WS, 4), ssrc, 1024 * j)))
        return L
    def mk_extra():
        return {
            6: kv_dma('s_add_u32 m0, s49, 0', V_LANE16, 46) + kv_dma('s_add_u32 m0, s49, 16384', V_LANE16, 53),
            7: kv_dma('s_add_u32 m0, s49, 32768', V_LANE16, 47),
            ('b', 7): kv_dma('s_add_u32 m0, s49, 65536', V_LANE16V, 46),
            8: kv_dma('s_add_u32 m0, s49, 49152', V_LANE16, 48) + kv_dma('s_add_u32 m0, s49, %d' % (65536 + 16384), V_LANE16V, 53),
        }
    a('s_waitcnt lgkmcnt(0)')
    qonly, qdone = name + '_qonly', name + '_qdone'
    a('s_and_b32 s32, s%d, 7' % sH)
    a('s_cmp_eq_u32 s32, 7')
    a('s_cbranch_scc1 %s' % qonly)
    a('s_cmp_ge_u32 s%d, 27' % sCT)
    a('s_cbranch_scc1 %s' % qonly)
    qgu_loop(a, 4, mk_extra())
    stamp(a, 1)
    a('s_lshl_b32 s36, s44, 10')
    a('s_lshl_b32 s37, s45, 10')
    a('s_lshl_b32 s38, s%d, 18' % sCT)
    a('s_add_u32 s38, s38, 0x%x' % WS_H)
    a('s_add_u32 s36, s36, s38')
    a('s_add_u32 s37, s37, s38')
    a('v_add_u32 v%d, %d, v%d' % (P_XOFF2, 128 * 1024, V_LANE16))
    a('s_nop 3')
    cnt = 0
    for qi in range(4):
        for s in range(2):
            T = 64 + 4 * (cnt % 8); cnt += 1
            for cc in range(2):
                g = P_ACCV + ((2 * s + cc) * 4 + qi) * 4
                u = g + 64
                for e in range(4): a('v_mul_f32 v%d, v%d, v%d' % (g + e, g + e, u + e))
                for e in range(2): a('v_cvt_pk_bf16_f32 v%d, v%d, v%d' % (T + 2 * cc + e, g + 2 * e, g + 2 * e + 1))
            a('buffer_store_dwordx4 %s, v%d, %s, s%d offen offset:%d %s' % (vr(T, 4), (V_LANE16, P_XOFF2)[s], sr(WS, 4), 36 + qi // 2, (qi % 2) * 1024, ST_FLAGS))
    a('s_waitcnt vmcnt(16)')
    a('s_branch %s' % qdone)
    a.label(qonly)
    qgu_loop(a, 2, mk_extra())
    a('s_waitcnt vmcnt(8)')
    a.label(qdone)
    stamp(a, 2)
    a('s_barrier')
    def kread(i, p): return 'ds_read_b128 %s, v%d offset:%d' % (ar(A_RING + 4 * (i % R), 4), V_KRD, p * 16384 + i * 1024)
    def vread(i, p): return 'ds_read_b128 %s, v%d offset:%d' % (ar(A_RING + 4 * (i % R), 4), V_VRD, p * 16384 + i * 1024)
    a('v_mov_b32 v%d, v%d' % (V_KRD, V_LANE16))
    a('v_add_u32 v%d, 65536, v%d' % (V_VRD, V_LANE16))
    for i in range(D): a(kread(i, 0))
    a('s_mov_b32 s54, %s' % f2u(math.log2(math.e) / math.sqrt(128.0)))
    for qi in range(4):
        for s in range(4):
            T = 64 + 16 * ((qi * 4 + s) % 4)
            for cc in range(2):
                for e in range(4): a('v_accvgpr_read_b32 v%d, a%d' % (T + 4 * cc + e, P_ACCA + ((2 * s + cc) * 4 + qi) * 4 + e))
            for e in range(8): a('v_mul_f32 v%d, s54, v%d' % (T + e, T + e))
            for e in range(4): a('v_cvt_pk_bf16_f32 v%d, v%d, v%d' % (T + 8 + e, T + 2 * e, T + 2 * e + 1))
            for e in range(4): a('v_accvgpr_write_b32 a%d, v%d' % (A_Q[qi // 2] + ((qi % 2) * 4 + s) * 4 + e, T + 8 + e))
    a('v_and_b32 v5, 15, v0')
    a('v_lshrrev_b32 v6, 4, v0')
    a('v_lshlrev_b32 v6, 2, v6')
    a('v_sub_u32 v5, v5, v6')
    for r in range(4):
        a('v_cmp_gt_i32 vcc, %d, v5' % r)
        a('s_nop 1')
        a('v_cndmask_b32 v%d, 0, 1.0, vcc' % (TRI + r))
    for e in range(4): a('v_mov_b32 v%d, 0x3f803f80' % (V_ONES + e))
    for j in range(16): a('v_mov_b32 v%d, 0' % (NEGM + j))
    a('s_mov_b32 s55, %s' % f2u(THR))
    a('s_mov_b32 s56, %s' % f2u(-BIG))
    a('s_lshl_b32 s52, s%d, 1' % sW)
    stamp(a, 3)

    def prefill(st, p, tau, dyn=False):
        for qb in range(2):
            for kb in range(4):
                kap = 4 * tau + kb - qb
                S = SB[st][p] + (kb * 2 + qb) * 4
                if kap < 0:
                    for r in range(4): a('v_mov_b32 v%d, v%d' % (S + r, NEGM + (st * 2 + qb) * 4))
                    continue
                a('s_cmp_eq_u32 s52, %d' % kap)
                a('s_cselect_b32 s57, %s, 0' % ('s59' if dyn else 's56'))
                a('s_cmp_lt_u32 s52, %d' % kap)
                a('s_cselect_b32 s58, %s, 0' % ('s59' if dyn else 's56'))
                a('v_add_f32 v%d, s58, v%d' % (V_T0, NEGM + (st * 2 + qb) * 4))
                for r in range(4): a('v_fma_f32 v%d, v%d, s57, v%d' % (S + r, TRI + r, V_T0))
        a('s_nop 1')

    def qk_mf(sets, p):
        G = []
        for f in range(16):
            kb, ds = f // 4, f % 4
            L = []
            for st, inpl in sets:
                for qb in range(2):
                    d = vr(SB[st][p] + (kb * 2 + qb) * 4, 4)
                    c = vr(NEGM + (st * 2 + qb) * 4, 4) if (ds == 0 and not inpl) else d
                    L.append('%s %s, %s, %s, %s' % (MF16, d, ar(A_RING + 4 * (f % R), 4), ar(A_Q[st] + (qb * 4 + ds) * 4, 4), c))
            G.append(L)
        return G
    def pv_mf(sets, p, first=False):
        G = []
        for f in range(16):
            ks, db = f // 8, f % 8
            L = []
            for st in sets:
                for qb in range(2):
                    d = ar(A_O[st] + (db * 2 + qb) * 4, 4)
                    L.append('%s %s, %s, %s, %s' % (MF16, d, ar(A_RING + 4 * (f % R), 4), vr(PB[st][p] + (qb * 2 + ks) * 4, 4), d))
            G.append(L)
        return G
    rare_sites = []

    pk = Packer(a)
    def lg_items(n, skip_last):
        L = []
        for i in range(3, n, 4):
            if i == n - 1 and skip_last: continue
            L.append(dict(lo=i, hi=i, lg=i + 4))
        return L
    pending_ladd = []

    def ladds(ex):
        return ['v_add_f32 v%d, v%d, v%d' % (V_L + st * 2 + qb, V_L + st * 2 + qb, LT + (st * 2 + qb) * 4) for st in ex for qb in range(2)]

    def iteration(p, qk, ex, pv, prev_ex, nxt='k', dk=True, dv=True, loop_ctr=None):
        groups = []; rs = []
        if qk:
            groups += qk_mf(qk, p); rs += [kread(i, p) for i in range(16)]
        groups += pv_mf(pv, p); rs += [vread(i, p) for i in range(16)]
        n = len(groups)
        nx = {'k': [kread(i, 1 - p) for i in range(D)], 'v': [vread(i, 1 - p) for i in range(D)], None: [None] * D}[nxt]
        rds = rs[D:] + nx
        bg = n - D
        it = [dict(lo=0, hi=0, ins=s, v=True) for s in ladds(prev_ex)]
        nd = 0
        if dv:
            it.append(dict(lo=0, hi=1, ins='s_sub_u32 m0, s%d, s%d' % ((sC0, sC1)[p], sT)))
            for j, i in enumerate((2, 4, 5, 6)):
                it.append(dict(lo=i, hi=i + 1, ins='buffer_load_dwordx4 v%d, %s, s%d offen offset:%d lds' % (V_LANE16V, sr(WS, 4), (sK0, sK1)[p], 1024 * j)))
            nd += 4
        if dk:
            it.append(dict(lo=8, hi=9, ins='s_add_u32 m0, s%d, %d' % (sT, p * 16384)))
            it.append(dict(lo=8, hi=9, ins='s_add_u32 s%d, s%d, 32768' % ((sK0, sK1)[p], (sK0, sK1)[1 - p])))
            for j, i in enumerate((10, 12, 14, 16)):
                it.append(dict(lo=i, hi=i + 1, ins='buffer_load_dwordx4 v%d, %s, s%d offen offset:%d lds' % (V_LANE16, sr(WS, 4), (sK0, sK1)[p], 1024 * j)))
            nd += 4
        if p == 1:
            if qk: it.append(dict(lo=16 - D, hi=bg - 1, ins='v_xor_b32 v%d, 32768, v%d' % (V_KRD, V_KRD), v=True))
            it.append(dict(lo=bg - 1 if nxt == 'v' else bg, hi=bg - 1 if nxt == 'v' else n - 1, ins='v_xor_b32 v%d, 32768, v%d' % (V_VRD, V_VRD), v=True))
            it.append(dict(lo=13, hi=n - 1, ins='s_xor_b32 s%d, s%d, 32768' % (sT, sT)))
        if nxt is not None:
            it.append(dict(lo=bg - 3, hi=bg - 2, ins='s_waitcnt vmcnt(%d)' % nd))
            it.append(dict(lo=bg - 1, hi=bg - 1, ins='s_barrier'))
        it += lg_items(n, nxt is None)
        if 'b' in XP: it = [x for x in it if x.get('ins') != 's_barrier']
        if 'v' in XP: it = [x for x in it if 'vmcnt' not in x.get('ins', '')]
        if 'l' in XP: it = [x for x in it if 'lg' not in x]
        if 'd' in XP: it = [x for x in it if 'buffer_load' not in x.get('ins', '')]
        it.sort(key=lambda x: (x['hi'], x['lo']))
        fin = []
        if ex:
            lts = [LT + (st * 2 + qb) * 4 for st in ex for qb in range(2)]
            if len(lts) == 2: fin.append('v_max_f32 v%d, v%d, v%d' % (V_T0, lts[0], lts[1]))
            else:
                fin.append('v_max3_f32 v%d, v%d, v%d, v%d' % (V_T0, lts[0], lts[1], lts[2]))
                fin.append('v_max_f32 v%d, v%d, v%d' % (V_T0, V_T0, lts[3]))
            fin.append('v_cmp_lt_f32 vcc, s55, v%d' % V_T0)
        early = (1, p) if qk else None
        pk.run(groups, rds, it, [(st, 1 - p) for st in ex], [], fin, early, True)
        if loop_ctr: a('s_sub_u32 s%d, s%d, 1' % (loop_ctr[0], loop_ctr[0]))
        if ex:
            stub, back = a.newlabel(name + '_rs'), a.newlabel(name + '_rb')
            a('s_cbranch_vccnz %s' % stub)
            a.label(back)
            rare_sites.append((stub, back, 1 - p, ex))
        if loop_ctr: a('s_cbranch_scc0 %s' % loop_ctr[1])

    def epilogue(st):
        a('s_lshl_b32 s61, s%d, 10' % sQ[st])
        a('s_lshl_b32 s62, s%d, 19' % sH)
        a('s_add_u32 s61, s61, s62')
        a('s_add_u32 s61, s61, 0x%x' % WS_CTX)
        a('v_rcp_f32 v%d, v%d' % (V_T0, V_L + st * 2))
        a('v_rcp_f32 v%d, v%d' % (V_T1, V_L + st * 2 + 1))
        a('s_nop 4')
        cnt = 0
        for s in range(4):
            for qb in range(2):
                T = SB[st][0] + 16 * (cnt % 4); cnt += 1
                for cc in range(2):
                    for e in range(4): a('v_accvgpr_read_b32 v%d, a%d' % (T + 4 * cc + e, A_O[st] + ((2 * s + cc) * 2 + qb) * 4 + e))
                for e in range(8): a('v_mul_f32 v%d, v%d, v%d' % (T + e, T + e, (V_T0, V_T1)[qb]))
                for e in range(4): a('v_cvt_pk_bf16_f32 v%d, v%d, v%d' % (T + 8 + e, T + 2 * e, T + 2 * e + 1))
                if qb == 0: a('s_add_u32 s62, s61, %d' % (s * 128 * 1024))
                a('buffer_store_dwordx4 %s, v%d, %s, s62 offen offset:%d %s' % (vr(T + 8, 4), V_LANE16, sr(WS, 4), qb * 1024, ST_FLAGS))

    a('s_cmp_eq_u32 s%d, 0' % sI)
    a('s_cselect_b32 s59, s56, 0')
    prefill(0, 0, 0, dyn=True)
    a('s_waitcnt lgkmcnt(%d)' % (D - 4))
    both = [(0, True), (1, False)]
    rds = [kread(i, 0) for i in range(D, 16)] + [kread(i, 1) for i in range(D)]
    zero = ['v_accvgpr_write_b32 a%d, 0' % i for i in range(128)] + ['v_mov_b32 v%d, 0' % (V_L + j) for j in range(4)]
    pk.run(qk_mf(both, 0), rds, lg_items(16, False), [], zero, [], None, False)
    a('s_nop 3')
    for st in range(2):
        for qb in range(2):
            for s in max_ops(st, 0, qb, V_T0, V_T1): a(s)
            for e in range(4): a('v_sub_f32 v%d, 0, v%d' % (NEGM + (st * 2 + qb) * 4 + e, V_T0))
    prefill(0, 1, 1, dyn=True)
    rds = [kread(i, 1) for i in range(D, 16)] + [kread(i, 0) for i in range(D)]
    it = lg_items(16, False) + [dict(lo=16 - D - 1, hi=16 - D - 1, ins='v_xor_b32 v%d, 32768, v%d' % (V_KRD, V_KRD), v=True)]
    it.sort(key=lambda x: (x['hi'], x['lo']))
    pk.run(qk_mf(both, 1), rds, it, [(1, 0), (0, 0)], [], [], (1, 1), False, sub=True)
    a('s_nop 7')
    stamp(a, 4)
    lA, lA_skip, lA_tail2 = name + '_loopA', name + '_skipA', name + '_tail2A'
    a('s_cmp_eq_u32 s%d, 0' % sI)
    a('s_cbranch_scc1 %s' % lA_tail2)
    a('s_sub_u32 s63, s%d, 2' % sI)
    a('s_cbranch_scc1 %s' % lA_skip)
    a.raw('.p2align 6')
    a.label(lA)
    dn = [(0, False), (1, False)]
    BA = [1, 0]
    iteration(0, dn, BA, [0, 1], BA)
    iteration(1, dn, BA, [0, 1], BA, loop_ctr=(63, lA))
    a.label(lA_skip)
    prefill(0, 0, 0)
    iteration(0, both, BA, [0, 1], BA)
    prefill(0, 1, 1)
    iteration(1, both, BA, [0, 1], BA)
    a.label(lA_tail2)
    l7, lBtail2 = name + '_i7', name + '_tail2B'
    a('s_cmp_eq_u32 s%d, 7' % sI)
    a('s_cbranch_scc1 %s' % l7)
    iteration(0, [(1, False)], BA, [0, 1], BA)
    iteration(1, [(1, False)], [1], [0, 1], BA)
    stamp(a, 5)
    epilogue(0)
    stamp(a, 6)
    cstamp(a, 10)
    lB = name + '_loopB'
    a('s_lshl_b32 s63, s%d, 1' % sI)
    a('s_sub_u32 s63, 12, s63')
    a.raw('.p2align 6')
    a.label(lB)
    iteration(0, [(1, False)], [1], [1], [1])
    iteration(1, [(1, False)], [1], [1], [1], loop_ctr=(63, lB))
    cstamp(a, 11)
    stamp(a, 7)
    prefill(1, 0, 0)
    iteration(0, [(1, True)], [1], [1], [1], dk=False)
    prefill(1, 1, 1)
    iteration(1, [(1, True)], [1], [1], [1], dk=False, nxt='v')
    a('s_branch %s' % lBtail2)
    a.label(l7)
    prefill(1, 0, 0)
    iteration(0, [(1, True)], BA, [0, 1], BA, dk=False)
    prefill(1, 1, 1)
    iteration(1, [(1, True)], [1], [0, 1], BA, dk=False, nxt='v')
    epilogue(0)
    a.label(lBtail2)
    iteration(0, None, [1], [1], [1], dk=False, dv=False, nxt='v')
    iteration(1, None, [], [1], [1], dk=False, dv=False, nxt=None)
    stamp(a, 8)
    epilogue(1)
    stamp(a, 9)
    stamp_flush(a, 1, WS, sW, 12)
    a.label(end)
    a('s_endpgm')
    for stub, back, pc, ex in rare_sites:
        a.label(stub)
        for st in sorted(ex):
            a('s_call_b64 s[64:65], %s_rare%d%d' % (name, pc, st))
        a('s_branch %s' % back)
    for pc in range(2):
        for st in range(2):
            a.label('%s_rare%d%d' % (name, pc, st))
            a('s_nop 7')
            for qb in range(2):
                for s in max_ops(st, pc, qb, V_T0, V_T1): a(s)
                a('v_max_f32 v%d, 0, v%d' % (V_T0, V_T0))
                a('v_exp_f32 v%d, -v%d' % (V_T1, V_T0))
                for e in range(4): a('v_sub_f32 v%d, v%d, v%d' % (NEGM + (st * 2 + qb) * 4 + e, NEGM + (st * 2 + qb) * 4 + e, V_T0))
                for pp in range(2):
                    for kb in range(4):
                        for r in range(4):
                            x = SB[st][pp] + (kb * 2 + qb) * 4 + r
                            a('v_sub_f32 v%d, v%d, v%d' % (x, x, V_T0))
                a('v_mul_f32 v%d, v%d, v%d' % (V_L + st * 2 + qb, V_L + st * 2 + qb, V_T1))
                for db in range(0, 8, 2):
                    regs = [A_O[st] + ((db + h) * 2 + qb) * 4 + e for h in range(2) for e in range(4)]
                    for e in range(8): a('v_accvgpr_read_b32 v%d, a%d' % (TMP + e, regs[e]))
                    for e in range(8): a('v_mul_f32 v%d, v%d, v%d' % (TMP + e, TMP + e, V_T1))
                    for e in range(8): a('v_accvgpr_write_b32 a%d, v%d' % (regs[e], TMP + e))
            for s in exp_ops(st, pc): a(s)
            if st == 1:
                for k, (s, _, _) in enumerate(exp_seq(1, 1 - pc)[:EARLY]): a('v_exp_f32 v%d, v%d' % (TMP + k, s))
            a('s_nop 7')
            a('s_setpc_b64 s[64:65]')
    kernel_desc(a, name, 512, 256)
    return a
```

```python
from common import *
import common
import math, copy
import k2 as K2
from k2 import VM, Packer, exp_seq, exp_ops, max_ops, EARLY
from k2 import V_LANE16, V_LANE16V, V_KRD, V_VRD, V_T0, V_T1, V_L, TRI, NEGM, LT, TMP, SB, PB, A_O, A_Q, A_RING, V_ONES, D, R, THR, BIG

WT = 'sc0 sc1'
WS_FLG = 0x7000000
FK, FH, FC = WS_FLG, WS_FLG + 4096, WS_FLG + 8192
PTR = dict(x=4, ckv=6, wq=8, wuk=10, wuv=12, wo=14, wg=18, wu=20, wd=22, out=24, dbg=26, ws=28)
WS, R1, R2, R3, R4, R5 = 32, 36, 40, 44, 48, 52
sW, sH, sI = 30, 31, 3
V_ONE, V_1 = 60, 61
V_PA, V_PD = 62, 24

def stamp(a, i):
    if not DIAG: return
    a('s_memrealtime s[98:99]'); a('s_waitcnt lgkmcnt(0)'); a('s_mov_b32 s%d, s98' % (80 + i))
def cstamp(a, i):
    if not DIAG: return
    a('s_memtime s[98:99]'); a('s_waitcnt lgkmcnt(0)'); a('s_mov_b32 s%d, s98' % (80 + i))
def stamp_flush(a, n):
    if not DIAG: return
    a('s_lshl_b32 s98, s2, 2'); a('s_add_u32 s98, s98, s%d' % sW); a('s_lshl_b32 s98, s98, 7')
    a('s_add_u32 s98, s98, 0x%x' % WS_STAMP)
    a('v_mov_b32 v0, 0')
    for i in range(n):
        a('v_mov_b32 v1, s%d' % (80 + i))
        a('buffer_store_dword v1, v0, %s, s98 offen offset:%d' % (sr(WS, 4), 4 * i))
        a('s_nop 1')

def srd(name, r, off=0, size=None):
    p = PTR[name]
    L = []
    if off:
        L += ['s_add_u32 s%d, s%d, 0x%x' % (r, p, off), 's_addc_u32 s%d, s%d, 0' % (r + 1, p + 1)]
    else:
        L += ['s_mov_b32 s%d, s%d' % (r, p), 's_mov_b32 s%d, s%d' % (r + 1, p + 1)]
    L += ['s_mov_b32 s%d, 0x%x' % (r + 2, SIZE[name] if size is None else size), 's_mov_b32 s%d, 0x00020000' % (r + 3)]
    return L

def gen_mega(a, name):
    kernel_begin(a, name)
    end = name + '_end'
    slow_paths = []
    def gate(load_ins, dreg, n, want, tmp_s):
        def chk():
            L = []
            if n == 4:
                L += ['v_and_b32 v%d, v%d, v%d' % (dreg, dreg, dreg + 1), 'v_and_b32 v%d, v%d, v%d' % (dreg + 2, dreg + 2, dreg + 3),
                      'v_and_b32 v%d, v%d, v%d' % (dreg, dreg, dreg + 2)]
            L += ['v_cmp_ne_u32 vcc, %d, v%d' % (want, dreg)]
            return L
        slow, ok = a.newlabel(name + '_sl'), a.newlabel(name + '_ok')
        for s in chk(): a(s)
        a('s_nop 1')
        a('s_cbranch_vccnz %s' % slow)
        a.label(ok)
        slow_paths.append((slow, ok, load_ins, chk(), tmp_s))

    a('s_cmp_ge_u32 s2, 256')
    a('s_cbranch_scc1 %s' % end)
    a('s_load_dwordx16 s[4:19], s[0:1], 0')
    a('s_load_dwordx8 s[20:27], s[0:1], 64')
    a('s_load_dwordx2 s[28:29], s[0:1], 96')
    a('v_lshrrev_b32 v1, 6, v0')
    a('v_and_b32 v0, 63, v0')
    a('v_readfirstlane_b32 s%d, v1' % sW)
    a('s_and_b32 s31, s2, 7')
    a('s_lshl_b32 s31, s31, 2')
    a('s_lshr_b32 s61, s2, 3')
    a('s_and_b32 s61, s61, 3')
    a('s_add_u32 s31, s31, s61')
    a('s_lshr_b32 s3, s2, 5')
    CKV, WUK, WUV, X, DBG = R1, R2, R3, R4, R5
    VA, VW = 8, 12
    a('v_lshrrev_b32 v6, 3, v0')
    a('v_lshlrev_b32 v6, 10, v6')
    a('v_lshrrev_b32 v7, 4, v0')
    a('v_and_b32 v12, 7, v0')
    a('v_xor_b32 v12, v12, v7')
    a('v_xor_b32 v13, 4, v12')
    a('v_lshl_add_u32 v12, v12, 4, v6')
    a('v_lshl_add_u32 v13, v13, 4, v6')
    for j in range(4): a('v_add_u32 v%d, %d, v%d' % (VA + j, j * (8192 - 1024), 12 + (j & 1)))
    a('v_bfe_u32 v16, v0, 1, 3')
    a('v_xor_b32 v16, v16, v7')
    a('v_xor_b32 v17, 4, v16')
    a('v_and_b32 v18, 1, v0')
    a('v_lshlrev_b32 v18, 4, v18')
    a('v_lshl_add_u32 v18, v7, 13, v18')
    a('v_lshl_add_u32 v16, v16, 5, v18')
    a('v_lshl_add_u32 v17, v17, 5, v18')
    for j in range(4): a('v_add_u32 v%d, %d, v%d' % (VW + j, j * (32768 - 1024), 16 + (j >> 1)))
    sA, sWo, sLA, sLW, sA2 = 56, 57, 58, 59, 60
    a('s_lshl_b32 s56, s%d, 2' % sI)
    a('s_add_u32 s56, s56, s%d' % sW)
    a('s_lshl_b32 s56, s56, 16')
    a('s_lshl_b32 s57, s%d, 17' % sW)
    a('s_lshl_b32 s58, s%d, 8' % sH)
    a('s_add_u32 s57, s57, s58')
    a('s_lshl_b32 s58, s%d, 13' % sW)
    a('s_lshl_b32 s59, s%d, 12' % sW)
    a('s_add_u32 s59, s59, 65536')
    a('v_lshrrev_b32 v2, 5, v0')
    a('v_and_b32 v3, 31, v0')
    a('s_lshl_b32 s61, s2, 2')
    a('s_add_u32 s61, s61, s%d' % sW)
    a('s_lshl_b32 s61, s61, 1')
    a('v_add_u32 v4, s61, v2')
    a('v_mul_u32_u24 v5, 1280, v4')
    a('v_lshl_add_u32 v5, v3, 3, v5')
    a('v_lshlrev_b32 v%d, 4, v0' % V_LANE16)
    vm = VM(); ids = {}
    def issue(it):
        if isinstance(it, str): return it
        ids[it[0]] = vm.op()
        return it[1]
    def p1_dma(st):
        slot = st & 1; t = ('p1', st)
        L = ['s_add_u32 m0, s%d, %d' % (sLA, slot * 32768), 's_add_u32 s%d, s%d, 32768' % (sA2, sA)]
        L += [(t, 'buffer_load_dwordx4 v%d, %s, s%d offen offset:%d lds' % (VA + j, sr(CKV, 4), sA, 1024 * j)) for j in range(4)]
        L += ['s_add_u32 m0, s%d, %d' % (sLW, slot * 32768), 's_add_u32 s%d, s%d, 128' % (sA, sA)]
        L += [(t, 'buffer_load_dwordx4 v%d, %s, s%d offen offset:%d lds' % (VW + j, sr(WUK, 4), sWo, 1024 * j)) for j in range(4)]
        L += ['s_add_u32 m0, s%d, %d' % (sLA, slot * 32768 + 4096), 's_nop 0']
        L += [(t, 'buffer_load_dwordx4 v%d, %s, s%d offen offset:%d lds' % (VA + j, sr(CKV, 4), sA2, 1024 * j)) for j in range(4)]
        L += ['s_add_u32 m0, s%d, %d' % (sLW, slot * 32768 + 16384), 's_nop 0']
        L += [(t, 'buffer_load_dwordx4 v%d, %s, s%d offen offset:%d lds' % (VW + j, sr(WUV, 4), sWo, 1024 * j)) for j in range(4)]
        L += ['s_add_u32 s%d, s%d, %d' % (sWo, sWo, 64 * 8192)]
        return L
    a('s_waitcnt lgkmcnt(0)')
    for n_, r_ in (('x', X), ('ckv', CKV), ('wuk', WUK), ('wuv', WUV)):
        for s in srd(n_, r_): a(s)
    XR = 192
    for j in range(5): a(issue(('x', 'buffer_load_dwordx2 %s, v5, %s, 0 offen offset:%d' % (vr(XR + 2 * j, 2), sr(X, 4), 256 * j))))
    for it in p1_dma(0) + p1_dma(1): a(issue(it))
    for n_, r_ in (('ws', WS), ('dbg', DBG)):
        for s in srd(n_, r_): a(s)
    stamp(a, 0)
    a('s_lshr_b32 s61, s2, 3')
    a('s_lshl_b32 s61, s61, 2')
    a('s_add_u32 s61, s61, s%d' % sW)
    a('v_lshrrev_b32 v20, 2, v0')
    a('v_lshlrev_b32 v20, 10, v20')
    a('v_and_b32 v21, 3, v0')
    a('v_lshl_add_u32 v21, v21, 7, v20')
    a('s_lshl_b32 s62, s61, 14')
    a(issue(('pf', 'buffer_load_dword v240, v21, %s, s62 offen offset:256' % sr(CKV, 4))))
    a('v_bfe_u32 v22, v0, 3, 2')
    a('v_lshlrev_b32 v22, 13, v22')
    a('v_and_b32 v23, 7, v0')
    a('v_lshl_add_u32 v22, v23, 7, v22')
    a('s_lshl_b32 s63, s61, 15')
    a('s_and_b32 s64, s2, 7')
    a('s_lshl_b32 s64, s64, 10')
    a('s_add_u32 s63, s63, s64')
    a(issue(('pf', 'buffer_load_dword v241, v22, %s, s63 offen' % sr(WUK, 4))))
    a(issue(('pf', 'buffer_load_dword v242, v22, %s, s63 offen' % sr(WUV, 4))))
    a(issue(('pf', 'buffer_load_dword v243, v21, %s, s62 offen offset:512' % sr(CKV, 4))))
    TQ, TG = 48, 49
    a('v_min_u32 v20, 39, v0')
    a('v_lshrrev_b32 v21, 3, v20')
    a('s_mul_i32 s62, s61, 5')
    a('v_add_u32 v21, s62, v21')
    a('v_and_b32 v20, 7, v20')
    a('v_lshlrev_b32 v20, 7, v20')
    a('v_lshl_add_u32 v20, v21, 13, v20')
    a('v_add_u32 v%d, s64, v20' % TQ)
    a('v_min_u32 v20, 19, v0')
    a('v_lshrrev_b32 v21, 2, v20')
    a('v_add_u32 v21, s62, v21')
    a('v_mul_u32_u24 v21, 3456, v21')
    a('s_and_b32 s63, s2, 7')
    a('s_lshr_b32 s64, s63, 1')
    a('s_lshl_b32 s63, s63, 2')
    a('s_sub_u32 s63, s63, s64')
    a('v_and_b32 v20, 3, v20')
    a('v_add_u32 v20, s63, v20')
    a('v_min_u32 v20, 26, v20')
    a('v_lshl_add_u32 v%d, v20, 7, v21' % TG)
    TO, TD = 50, 51
    a('s_lshl_b32 s62, s2, 2')
    a('s_add_u32 s62, s62, s%d' % sW)
    a('s_mul_i32 s63, s62, 40')
    a('v_min_u32 v20, 39, v0')
    a('v_add_u32 v20, s63, v20')
    a('v_lshlrev_b32 v%d, 7, v20' % TO)
    a('s_mul_i32 s63, s62, 17')
    a('v_min_u32 v20, 16, v0')
    a('v_add_u32 v20, s63, v20')
    a('v_min_u32 v20, 17279, v20')
    a('v_lshlrev_b32 v%d, 7, v20' % TD)
    RA, RW = 16, 18
    a('s_lshr_b32 s61, s%d, 1' % sW)
    a('s_lshl_b32 s61, s61, 14')
    a('v_bfe_u32 v20, v0, 1, 3')
    a('v_xor_b32 v20, v20, v7')
    a('v_and_b32 v21, 15, v0')
    a('v_lshlrev_b32 v21, 7, v21')
    a('v_add_u32 v21, s61, v21')
    a('v_lshl_add_u32 v%d, v20, 4, v21' % RA)
    a('v_xor_b32 v20, 4, v20')
    a('v_lshl_add_u32 v%d, v20, 4, v21' % (RA + 1))
    a('v_bfe_u32 v22, v0, 2, 2')
    a('v_lshl_add_u32 v23, v7, 3, v22')
    a('v_lshlrev_b32 v23, 8, v23')
    a('v_and_b32 v24, 3, v0')
    a('v_lshl_add_u32 v23, v24, 3, v23')
    a('v_add_u32 v23, 65536, v23')
    a('v_bfe_u32 v22, v0, 2, 3')
    a('s_and_b32 s62, s%d, 1' % sW)
    a('s_lshl_b32 s62, s62, 2')
    a('v_xor_b32 v22, s62, v22')
    for nb in range(4):
        a('v_xor_b32 v24, %d, v22' % nb)
        a('v_lshl_add_u32 v%d, v24, 5, v23' % (RW + nb))
    P_XOFF2, P_WOFF, P_WRD = 32, 33, 40
    a('v_add_u32 v%d, 20480, v%d' % (P_XOFF2, V_LANE16))
    a('v_lshrrev_b32 v25, 3, v0')
    a('v_bfe_u32 v26, v0, 1, 2')
    a('v_bfe_u32 v27, v0, 4, 2')
    a('v_xor_b32 v26, v26, v27')
    a('v_lshlrev_b32 v26, 5, v26')
    a('v_and_b32 v27, 1, v0')
    a('v_lshl_add_u32 v26, v27, 4, v26')
    a('v_lshl_add_u32 v%d, v25, 13, v26' % P_WOFF)
    a('v_add_u32 v%d, %d, v%d' % (P_WOFF + 1, 8 * 8192 - 1024, P_WOFF))
    a('v_mul_u32_u24 v25, 3456, v25')
    a('v_add_u32 v%d, v25, v26' % (P_WOFF + 2))
    a('v_add_u32 v%d, %d, v%d' % (P_WOFF + 3, 8 * 3456 - 1024, P_WOFF + 2))
    a('v_lshrrev_b32 v25, 2, v0')
    a('v_lshlrev_b32 v25, 7, v25')
    a('v_and_b32 v26, 3, v0')
    a('v_lshl_add_u32 v25, v26, 3, v25')
    a('v_add_u32 v25, 65536, v25')
    a('v_bfe_u32 v26, v0, 3, 2')
    for c in range(4):
        a('v_xor_b32 v27, %d, v26' % c)
        a('v_lshl_add_u32 v%d, v27, 5, v25' % (P_WRD + c))
        a('v_add_u32 v%d, 65536, v%d' % (P_WRD + 4 + c, P_WRD + c))
    s_w = [64, 65, 66, 67]; s_q = [68, 69]; sLW2, sCT = 70, 71; sQ = [72, 73]
    a('s_lshr_b32 s71, s%d, 3' % sH)
    a('s_sub_u32 s71, s%d, s71' % sH)
    a('s_lshl_b32 s70, s%d, 11' % sW)
    a('s_lshl_b32 s72, s%d, 2' % sI)
    a('s_add_u32 s72, s72, s%d' % sW)
    a('s_lshl_b32 s72, s72, 1')
    a('s_sub_u32 s73, 15, s%d' % sI)
    a('s_lshl_b32 s73, s73, 2')
    a('s_add_u32 s73, s73, s%d' % sW)
    a('s_lshl_b32 s73, s73, 1')
    a('s_mul_i32 s68, s72, 20480')
    a('s_mul_i32 s69, s73, 20480')
    assert WS_XN == 0
    a('s_lshl_b32 s64, s%d, 17' % sW)
    a('s_lshl_b32 s65, s%d, 8' % sH)
    a('s_add_u32 s64, s64, s65')
    a('s_add_u32 s65, s64, 128')
    a('s_mul_i32 s66, s%d, %d' % (sW, 16 * 3456))
    a('s_lshl_b32 s67, s%d, 7' % sCT)
    a('s_add_u32 s66, s66, s67')
    a('s_mov_b32 s67, s66')
    a('s_and_b32 s61, s%d, 7' % sH)
    a('s_cmp_eq_u32 s61, 7')
    a('s_cselect_b32 s74, 0, 0x%x' % SIZE['wg'])
    a('s_cmp_ge_u32 s%d, 27' % sCT)
    a('s_cselect_b32 s74, 0, s74')
    a('s_lshl_b32 s61, s%d, 2' % sW)
    a('s_lshl_b32 s75, s%d, 3' % sH); a('s_add_u32 s75, s75, s%d' % sI); a('s_lshl_b32 s75, s75, 4')
    a('s_add_u32 s75, s75, s61'); a('s_add_u32 s75, s75, 0x%x' % FK)
    a('s_lshl_b32 s76, s%d, 5' % sI); a('s_add_u32 s76, s76, s%d' % sH); a('s_lshl_b32 s76, s76, 4'); a('s_add_u32 s76, s76, s61')
    a('s_add_u32 s77, s76, 0x%x' % FC)
    a('s_add_u32 s76, s76, 0x%x' % FH)
    a('s_sub_u32 s78, 15, s%d' % sI); a('s_lshl_b32 s78, s78, 5'); a('s_add_u32 s78, s78, s%d' % sH); a('s_lshl_b32 s78, s78, 4')
    a('s_add_u32 s78, s78, s61'); a('s_add_u32 s78, s78, 0x%x' % FC)
    a('v_cmp_eq_u32 vcc, 0, v0')
    a('v_mov_b32 v25, 0x20000000')
    a('v_mov_b32 v%d, 1' % V_1)
    a('v_cndmask_b32 v%d, v25, 0, vcc' % V_ONE)
    a('v_mov_b32 v52, 0')
    a('s_cmp_eq_u32 s%d, 0' % sW)
    a('s_cselect_b32 s79, 0, 0x1000')
    def flag_store(sreg, val=V_1):
        return ('fl', 'buffer_store_dword v%d, v%d, %s, s%d offen %s' % (val, V_ONE, sr(WS, 4), sreg, WT))
    a('s_waitcnt vmcnt(%d)' % vm.cnt(ids['x']))
    stamp(a, 1)
    import k1
    b = Asm(); k1.ln_part(b, XR, WS, 4, 3)
    ln_lines = [l.strip() for l in b.lines]
    ln_st = ln_lines[-10:]
    for l in ln_lines[:-10]: a(l)
    xn_stores = []
    for j in range(5):
        xn_stores.append(ln_st[2 * j].replace('s39', 's61'))
        xn_stores.append(('xn', ln_st[2 * j + 1].replace('s39', 's61') + ' ' + WT))
    xn_stores += [flag_store(s, 52) for s in (75, 76, 77, 78)]
    WQ, WG, WU = R1, R2, R3
    WSLOT = [128 * 1024, 64 * 1024, 96 * 1024]
    P_ACCV, P_ACCA, P_WF, P_ACT = 128, 0, 128, 192
    srdm = [WQ, WQ, WG, WU]; stride = [8192, 8192, 3456, 3456]
    def w_dma(st, nm):
        L = []
        for m in range(nm):
            L.append('s_add_u32 m0, s%d, %d' % (sLW2, WSLOT[st % 3] + m * 8192))
            L.append('s_nop 0')
            for j in range(2):
                L.append((('w', st), 'buffer_load_dwordx4 v%d, %s, s%d offen offset:%d lds' % (P_WOFF + 2 * (m // 2) + j, sr(srdm[m], 4), s_w[m], 1024 * j)))
            L.append('s_add_u32 s%d, s%d, %d' % (s_w[m], s_w[m], 64 * stride[m]))
        return L
    def a_load(k):
        base = P_ACT + 16 * (k % 4)
        L = [(('a', k), 'buffer_load_dwordx4 %s, v%d, %s, s%d offen offset:%d' % (ar(base + 4 * qi, 4), (V_LANE16, P_XOFF2)[qi % 2], sr(WS, 4), s_q[qi // 2], 1024 * (k % 4))) for qi in range(4)]
        if k % 4 == 3: L += ['s_add_u32 s%d, s%d, 4096' % (s, s) for s in s_q]
        return L
    FR = 64
    def reads(slot, ks, fs):
        base = FR + 64 * fs
        def A(i): return ['ds_read_b128 %s, v%d offset:%d' % (vr(base + 4 * i, 4), RA + ks, slot * 32768 + i * 2048)]
        def W(mat, nb): return ['ds_read_b64_tr_b16 %s, v%d offset:%d' % (vr(base + 32 + 16 * mat + 4 * nb + 2 * r, 2), RW + nb,
                                slot * 32768 + mat * 16384 + (32 * ks + 4 * r) * 256) for r in range(2)]
        L = A(0)
        for nb in range(4): L += W(0, nb)
        for nb in range(4): L += W(1, nb)
        for i in range(1, 8): L += A(i)
        return L
    def mfmas(fs, first):
        base = FR + 64 * fs; L = []
        for rb in range(8):
            act = vr(base + 4 * rb, 4)
            for mat in range(2):
                for nb in range(4):
                    w = vr(base + 32 + 16 * mat + 4 * nb, 4)
                    d = ar((rb * 8 + mat * 4 + nb) * 4, 4); c = '0' if first else d
                    L.append('%s %s, %s, %s, %s' % ((MF16, d, w, act, c) if mat == 0 else (MF16, d, act, w, c)))
        return L
    stamp(a, 2)
    a('s_waitcnt vmcnt(%d)' % vm.cnt(ids[('p1', 0)]))
    a('s_barrier')
    stamp(a, 3)
    for s in reads(0, 0, 0): a(s)
    ln_poll = 'buffer_load_dword v244, v52, %s, 0 offen %s' % (sr(DBG, 4), WT)
    NST = 8
    pend = []
    for st in range(NST):
        slot = st & 1
        for ks in range(2):
            rd = []
            if ks == 1:
                if st < NST - 1:
                    a('s_waitcnt vmcnt(%d) lgkmcnt(0)' % vm.cnt(ids[('p1', st + 1)])); a('s_barrier')
                    rd = reads(1 - slot, 0, 0)
                else: a('s_waitcnt lgkmcnt(0)')
                if st + 2 < NST: pend += p1_dma(st + 2)
                if st == 0: pend += xn_stores
                if st == 2: pend += [('at', 'buffer_atomic_add v%d, v%d, %s, s79 offen sc1' % (V_1, V_ONE, sr(DBG, 4)))]
                if st == 3:
                    pend += [('pf', 'global_load_dword v240, v%d, s[8:9]' % TQ), ('pf', 'global_load_dword v241, v%d, s[18:19]' % TG),
                             ('pf', 'global_load_dword v242, v%d, s[20:21]' % TG)]
                if st == 6: pend += w_dma(1, 4) + [('lnp', ln_poll)]
            else:
                a('s_waitcnt lgkmcnt(0)')
                rd = reads(slot, 1, 1)
                if st == 6:
                    assert not pend
                    pend += srd('wq', WQ) + srd('wg', WG) + srd('wu', WU) + ['s_mov_b32 s%d, s74' % (WG + 2), 's_mov_b32 s%d, s74' % (WU + 2)] + w_dma(0, 4)
            for g, m in enumerate(mfmas(ks, st == 0 and ks == 0)):
                a(m)
                if g % 2 == 0 and rd: a(rd.pop(0))
                elif pend:
                    while pend and pend[0] == 's_nop 0': pend.pop(0)
                    if pend: a(issue(pend.pop(0)))
        if st == 3: stamp(a, 4)
    assert not pend
    stamp(a, 5)
    a('s_lshl_b32 s56, s%d, 20' % sH)
    a('s_lshl_b32 s57, s%d, 17' % sI)
    a('s_add_u32 s56, s56, s57')
    a('s_lshr_b32 s57, s%d, 1' % sW)
    a('s_lshl_b32 s57, s57, 16')
    a('s_add_u32 s56, s56, s57')
    a('s_add_u32 s56, s56, 0x%x' % WS_KV)
    a('s_and_b32 s57, s%d, 1' % sW)
    a('s_lshl_b32 s58, s57, 11')
    a('s_add_u32 s58, s58, s56')
    a('s_lshl_b32 s59, s57, 12')
    a('s_add_u32 s59, s59, s56')
    a('s_add_u32 s59, s59, 16384')
    cnt = [0]
    def conv(b0, b1):
        T = 64 + 16 * (cnt[0] % 8); cnt[0] += 1
        for e in range(4): a('v_accvgpr_read_b32 v%d, a%d' % (T + e, b0 * 4 + e))
        for e in range(4): a('v_accvgpr_read_b32 v%d, a%d' % (T + 4 + e, b1 * 4 + e))
        for e in range(4): a('v_cvt_pk_bf16_f32 v%d, v%d, v%d' % (T + 8 + e, T + 2 * e, T + 2 * e + 1))
        return T + 8
    def store(T, sb, off):
        a('s_add_u32 s60, s%d, %d' % (sb, off & ~4095))
        a(issue(('kv', 'buffer_store_dwordx4 %s, v%d, %s, s60 offen offset:%d %s' % (vr(T, 4), V_LANE16, sr(WS, 4), off & 4095, WT))))
    def jobs(rp):
        J = []
        for rb in (2 * rp, 2 * rp + 1):
            for s in range(2): J.append((rb * 8 + 2 * s, rb * 8 + 2 * s + 1, 58, (rb // 4) * 32768 + ((rb % 4) * 4 + s) * 1024))
        rb = 2 * rp
        for nb in range(4): J.append((rb * 8 + 4 + nb, (rb + 1) * 8 + 4 + nb, 59, (rb // 4) * 32768 + (((rb % 4) // 2) * 8 + nb) * 1024))
        return J
    held = [(conv(b0, b1), sb, off) for b0, b1, sb, off in jobs(3)]
    a('s_waitcnt vmcnt(%d)' % vm.cnt(ids['lnp']))
    gate(ln_poll, 244, 1, 256, 61)
    for k in range(4):
        for it in a_load(k): a(issue(it))
    a('s_barrier')
    for it in w_dma(2, 4): a(issue(it))
    for T, sb, off in held: store(T, sb, off)
    for rp in (2, 1, 0):
        for b0, b1, sb, off in jobs(rp): store(conv(b0, b1), sb, off)
        if rp == 2:
            pass
    stamp(a, 6)
    sBASE, sK0, sK1, sT, sC0, sC1, sS1 = 56, 57, 58, 59, 60, 61, 62
    a('s_lshl_b32 s56, s%d, 20' % sH)
    a('s_lshl_b32 s59, s%d, 12' % sW)
    a('s_add_u32 s56, s56, s59')
    a('s_add_u32 s56, s56, 0x%x' % WS_KV)
    a('s_lshl_b32 s60, s%d, 13' % sW)
    a('s_add_u32 s60, s60, %d' % (65536 + 32768))
    a('s_add_u32 s61, s60, 16384')
    a('s_add_u32 s62, s56, 32768')
    a('s_add_u32 s57, s56, 65536')
    a('s_add_u32 s58, s57, 32768')
    a('v_add_u32 v%d, 16384, v%d' % (V_LANE16V, V_LANE16))
    a('v_and_b32 v%d, 0x70, v%d' % (V_PA, V_LANE16))
    a('s_lshl_b32 s79, s%d, 7' % sH)
    a('s_add_u32 s79, s79, 0x%x' % FK)
    kv_poll = 'buffer_load_dwordx4 v[20:23], v%d, %s, s79 offen %s' % (V_PA, sr(WS, 4), WT)
    def kv_dma(m0expr, voff, ssrc, tag):
        return [m0expr, 's_nop 0'] + [(tag, 'buffer_load_dwordx4 v%d, %s, s%d offen offset:%d lds' % (voff, sr(WS, 4), ssrc, 1024 * j)) for j in range(4)]
    def w_read(k, n):
        st, ks = k // 2, k % 2
        off = WSLOT[st % 3] - 65536
        grp = off // 65536; off %= 65536
        m, c = n // 4, n % 4
        return ['ds_read_b64_tr_b16 %s, v%d offset:%d' % (ar(P_WF + 4 * n + 2 * r, 2), P_WRD + 4 * grp + c, off + m * 8192 + (32 * ks + 16 * r) * 128) for r in range(2)]
    def p2_loop(nm):
        NB = 4 * nm; NS2 = 10
        for n in range(NB):
            for s in w_read(0, n): a(s)
        pend = []
        for k in range(2 * NS2):
            st, ks = k // 2, k % 2
            base = P_ACT + 16 * (k % 4)
            need = ids[('a', k)]
            if k == 12: need = max(need, ids['kvp'])
            a('s_waitcnt vmcnt(%d) lgkmcnt(8)' % min(63, vm.cnt(need)))
            if k == 4: pend += [flag_store(75)]
            if k == 5: pend += [('pf', 'global_load_dword v24, v%d, s[14:15]' % TO), ('pf', 'global_load_dword v25, v%d, s[22:23]' % TD)]
            if k == 10: pend += [('kvp', kv_poll)]
            if k == 12:
                gate(kv_poll, 20, 4, 1, 63)
                pend += kv_dma('s_add_u32 m0, s59, 0', V_LANE16, sBASE, 'k0') + kv_dma('s_add_u32 m0, s59, 16384', V_LANE16, sS1, 'k1')
            if k == 14: pend += kv_dma('s_add_u32 m0, s59, 32768', V_LANE16, sK0, 'k2')
            if k == 16: pend += kv_dma('s_add_u32 m0, s59, 49152', V_LANE16, sK1, 'k3') + kv_dma('s_add_u32 m0, s59, %d' % (65536 + 16384), V_LANE16V, sS1, 'v1')
            if k > 0 and k + 3 < 2 * NS2: pend = a_load(k + 3) + pend
            for n in range(NB):
                if n % 4 == 0 and n > 0:
                    a('s_waitcnt lgkmcnt(%d)' % (8 if k < 2 * NS2 - 1 else min(8, 2 * (NB - n - 4))))
                for qi in range(4):
                    d = ar(P_ACCA + (n * 4 + qi) * 4, 4) if n < 8 else vr(P_ACCV + ((n - 8) * 4 + qi) * 4, 4)
                    a('%s %s, %s, %s, %s' % (MF16, d, ar(P_WF + 4 * n, 4), ar(base + 4 * qi, 4), '0' if k == 0 else d))
                    if qi < 3:
                        while pend and pend[0] == 's_nop 0': pend.pop(0)
                        if pend: a(issue(pend.pop(0)))
                if k + 1 < 2 * NS2:
                    if n == 0 and ks == 1:
                        a('s_waitcnt vmcnt(%d) lgkmcnt(0)' % min(63, vm.cnt(ids[('w', st + 1)])))
                        a('s_barrier')
                        if st + 3 < NS2: pend = pend + w_dma(st + 3, nm)
                        if st == 7: pend += kv_dma('s_add_u32 m0, s59, 65536', V_LANE16V, sBASE, 'v0')
                    for s in w_read(k + 1, n): a(s)
        assert not pend
    qonly, qdone = name + '_qonly', name + '_qdone'
    a('s_cmp_eq_u32 s74, 0')
    a('s_cbranch_scc1 %s' % qonly)
    save = (vm.n, dict(ids))
    p2_loop(4)
    stamp(a, 7)
    a('s_lshl_b32 s64, s72, 10')
    a('s_lshl_b32 s65, s73, 10')
    a('s_lshl_b32 s66, s%d, 18' % sCT)
    a('s_add_u32 s66, s66, 0x%x' % WS_H)
    a('s_add_u32 s64, s64, s66')
    a('s_add_u32 s65, s65, s66')
    a('v_add_u32 v%d, %d, v%d' % (P_XOFF2, 128 * 1024, V_LANE16))
    a('s_nop 3')
    c2 = 0
    for qi in range(4):
        for s in range(2):
            T = 64 + 4 * (c2 % 8); c2 += 1
            for cc in range(2):
                g = P_ACCV + ((2 * s + cc) * 4 + qi) * 4; u = g + 64
                for e in range(4): a('v_mul_f32 v%d, v%d, v%d' % (g + e, g + e, u + e))
                for e in range(2): a('v_cvt_pk_bf16_f32 v%d, v%d, v%d' % (T + 2 * cc + e, g + 2 * e, g + 2 * e + 1))
            a(issue(('h', 'buffer_store_dwordx4 %s, v%d, %s, s%d offen offset:%d %s' % (vr(T, 4), (V_LANE16, P_XOFF2)[s], sr(WS, 4), 64 + qi // 2, (qi % 2) * 1024, WT))))
    a('s_waitcnt vmcnt(%d)' % vm.cnt(max(ids['k2'], ids['v0'])))
    a('s_branch %s' % qdone)
    a.label(qonly)
    vm.n, ids = save[0], dict(save[1])
    p2_loop(2)
    a('s_waitcnt vmcnt(%d)' % vm.cnt(max(ids['k2'], ids['v0'])))
    a.label(qdone)
    stamp(a, 8)
    a('s_barrier')
    sTHR, sBIG, s2W, sM0, sM1, sDYN, sE0, sE1, sCNT = 64, 65, 66, 67, 68, 69, 70, 71, 63
    def kread(i, p): return 'ds_read_b128 %s, v%d offset:%d' % (ar(A_RING + 4 * (i % R), 4), V_KRD, p * 16384 + i * 1024)
    def vread(i, p): return 'ds_read_b128 %s, v%d offset:%d' % (ar(A_RING + 4 * (i % R), 4), V_VRD, p * 16384 + i * 1024)
    a('v_mov_b32 v%d, v%d' % (V_KRD, V_LANE16))
    a('v_add_u32 v%d, 65536, v%d' % (V_VRD, V_LANE16))
    for i in range(D): a(kread(i, 0))
    a('s_mov_b32 s64, %s' % f2u(math.log2(math.e) / math.sqrt(128.0)))
    for qi in range(4):
        for s in range(4):
            T = 128 + 16 * ((qi * 4 + s) % 4)
            for cc in range(2):
                for e in range(4): a('v_accvgpr_read_b32 v%d, a%d' % (T + 4 * cc + e, P_ACCA + ((2 * s + cc) * 4 + qi) * 4 + e))
            for e in range(8): a('v_mul_f32 v%d, s64, v%d' % (T + e, T + e))
            for e in range(4): a('v_cvt_pk_bf16_f32 v%d, v%d, v%d' % (T + 8 + e, T + 2 * e, T + 2 * e + 1))
            for e in range(4): a('v_accvgpr_write_b32 a%d, v%d' % (A_Q[qi // 2] + ((qi % 2) * 4 + s) * 4 + e, T + 8 + e))
    a('v_and_b32 v5, 15, v0')
    a('v_lshrrev_b32 v6, 4, v0')
    a('v_lshlrev_b32 v6, 2, v6')
    a('v_sub_u32 v5, v5, v6')
    for r in range(4):
        a('v_cmp_gt_i32 vcc, %d, v5' % r)
        a('s_nop 1')
        a('v_cndmask_b32 v%d, 0, 1.0, vcc' % (TRI + r))
    for e in range(4): a('v_mov_b32 v%d, 0x3f803f80' % (V_ONES + e))
    for j in range(16): a('v_mov_b32 v%d, 0' % (NEGM + j))
    a('s_mov_b32 s%d, %s' % (sTHR, f2u(THR)))
    a('s_mov_b32 s%d, %s' % (sBIG, f2u(-BIG)))
    a('s_lshl_b32 s%d, s%d, 1' % (s2W, sW))
    stamp(a, 9)
    def prefill(st, p, tau, dyn=False):
        for qb in range(2):
            for kb in range(4):
                kap = 4 * tau + kb - qb
                S = SB[st][p] + (kb * 2 + qb) * 4
                if kap < 0:
                    for r in range(4): a('v_mov_b32 v%d, v%d' % (S + r, NEGM + (st * 2 + qb) * 4))
                    continue
                big = sDYN if dyn else sBIG
                a('s_cmp_eq_u32 s%d, %d' % (s2W, kap)); a('s_cselect_b32 s%d, s%d, 0' % (sM0, big))
                a('s_cmp_lt_u32 s%d, %d' % (s2W, kap)); a('s_cselect_b32 s%d, s%d, 0' % (sM1, big))
                a('v_add_f32 v%d, s%d, v%d' % (V_T0, sM1, NEGM + (st * 2 + qb) * 4))
                for r in range(4): a('v_fma_f32 v%d, v%d, s%d, v%d' % (S + r, TRI + r, sM0, V_T0))
        a('s_nop 1')
    def qk_mf(sets, p):
        G = []
        for f in range(16):
            kb, ds = f // 4, f % 4; L = []
            for st, inpl in sets:
                for qb in range(2):
                    d = vr(SB[st][p] + (kb * 2 + qb) * 4, 4)
                    c = vr(NEGM + (st * 2 + qb) * 4, 4) if (ds == 0 and not inpl) else d
                    L.append('%s %s, %s, %s, %s' % (MF16, d, ar(A_RING + 4 * (f % R), 4), ar(A_Q[st] + (qb * 4 + ds) * 4, 4), c))
            G.append(L)
        return G
    def pv_mf(sets, p):
        G = []
        for f in range(16):
            ks, db = f // 8, f % 8; L = []
            for st in sets:
                for qb in range(2):
                    d = ar(A_O[st] + (db * 2 + qb) * 4, 4)
                    L.append('%s %s, %s, %s, %s' % (MF16, d, ar(A_RING + 4 * (f % R), 4), vr(PB[st][p] + (qb * 2 + ks) * 4, 4), d))
            G.append(L)
        return G
    rare_sites = []
    pk = Packer(a)
    def lg_items(n, skip_last):
        return [dict(lo=i, hi=i, lg=i + 4) for i in range(3, n, 4) if not (i == n - 1 and skip_last)]
    def ladds(ex):
        return ['v_add_f32 v%d, v%d, v%d' % (V_L + st * 2 + qb, V_L + st * 2 + qb, LT + (st * 2 + qb) * 4) for st in ex for qb in range(2)]
    def iteration(p, qk, ex, pv, prev_ex, nxt='k', dk=True, dv=True, loop_ctr=None, post_bar=(), pre_bar=()):
        groups = []; rs = []
        if qk:
            groups += qk_mf(qk, p); rs += [kread(i, p) for i in range(16)]
        groups += pv_mf(pv, p); rs += [vread(i, p) for i in range(16)]
        n = len(groups)
        nx = {'k': [kread(i, 1 - p) for i in range(D)], 'v': [vread(i, 1 - p) for i in range(D)], None: [None] * D}[nxt]
        rds = rs[D:] + nx
        bg = n - D
        it = [dict(lo=0, hi=0, ins=s, v=True) for s in ladds(prev_ex)]
        nd = 0
        if dv:
            it.append(dict(lo=0, hi=1, ins='s_sub_u32 m0, s%d, s%d' % ((sC0, sC1)[p], sT)))
            for j, i in enumerate((2, 4, 5, 6)):
                it.append(dict(lo=i, hi=i + 1, ins='buffer_load_dwordx4 v%d, %s, s%d offen offset:%d lds' % (V_LANE16V, sr(WS, 4), (sK0, sK1)[p], 1024 * j)))
            nd += 4
        if dk:
            it.append(dict(lo=8, hi=9, ins='s_add_u32 m0, s%d, %d' % (sT, p * 16384)))
            it.append(dict(lo=8, hi=9, ins='s_add_u32 s%d, s%d, 32768' % ((sK0, sK1)[p], (sK0, sK1)[1 - p])))
            for j, i in enumerate((10, 12, 14, 16)):
                it.append(dict(lo=i, hi=i + 1, ins='buffer_load_dwordx4 v%d, %s, s%d offen offset:%d lds' % (V_LANE16, sr(WS, 4), (sK0, sK1)[p], 1024 * j)))
            nd += 4
        if p == 1:
            if qk: it.append(dict(lo=16 - D, hi=bg - 1, ins='v_xor_b32 v%d, 32768, v%d' % (V_KRD, V_KRD), v=True))
            it.append(dict(lo=bg - 1 if nxt == 'v' else bg, hi=bg - 1 if nxt == 'v' else n - 1, ins='v_xor_b32 v%d, 32768, v%d' % (V_VRD, V_VRD), v=True))
            it.append(dict(lo=13, hi=n - 1, ins='s_xor_b32 s%d, s%d, 32768' % (sT, sT)))
        if nxt is not None:
            it.append(dict(lo=bg - 3, hi=bg - 2, ins='s_waitcnt vmcnt(%d)' % nd))
            it.append(dict(lo=bg - 1, hi=bg - 1, ins='s_barrier'))
        it += lg_items(n, nxt is None)
        it.sort(key=lambda x: (x['hi'], x['lo']))
        lo0 = bg if nxt is not None else 0
        for j, s in enumerate(post_bar):
            it.append(dict(lo=lo0, hi=n - 1, ins=s))
        fin = []
        if ex:
            lts = [LT + (st * 2 + qb) * 4 for st in ex for qb in range(2)]
            if len(lts) == 2: fin.append('v_max_f32 v%d, v%d, v%d' % (V_T0, lts[0], lts[1]))
            else:
                fin.append('v_max3_f32 v%d, v%d, v%d, v%d' % (V_T0, lts[0], lts[1], lts[2]))
                fin.append('v_max_f32 v%d, v%d, v%d' % (V_T0, V_T0, lts[3]))
            fin.append('v_cmp_lt_f32 vcc, s%d, v%d' % (sTHR, V_T0))
        pk.run(groups, rds, it, [(st, 1 - p) for st in ex], [], fin, (1, p) if qk else None, True)
        if loop_ctr: a('s_sub_u32 s%d, s%d, 1' % (loop_ctr[0], loop_ctr[0]))
        if ex:
            stub, back = a.newlabel(name + '_rs'), a.newlabel(name + '_rb')
            a('s_cbranch_vccnz %s' % stub)
            a.label(back)
            rare_sites.append((stub, back, 1 - p, ex))
        if loop_ctr: a('s_cbranch_scc0 %s' % loop_ctr[1])
    def epilogue(st):
        a('s_lshl_b32 s%d, s%d, 10' % (sE0, sQ[st]))
        a('s_lshl_b32 s%d, s%d, 19' % (sE1, sH))
        a('s_add_u32 s%d, s%d, s%d' % (sE0, sE0, sE1))
        a('s_add_u32 s%d, s%d, 0x%x' % (sE0, sE0, WS_CTX))
        a('v_rcp_f32 v%d, v%d' % (V_T0, V_L + st * 2))
        a('v_rcp_f32 v%d, v%d' % (V_T1, V_L + st * 2 + 1))
        a('s_nop 4')
        c3 = 0
        for s in range(4):
            for qb in range(2):
                T = SB[st][0] + 16 * (c3 % 4); c3 += 1
                for cc in range(2):
                    for e in range(4): a('v_accvgpr_read_b32 v%d, a%d' % (T + 4 * cc + e, A_O[st] + ((2 * s + cc) * 2 + qb) * 4 + e))
                for e in range(8): a('v_mul_f32 v%d, v%d, v%d' % (T + e, T + e, (V_T0, V_T1)[qb]))
                for e in range(4): a('v_cvt_pk_bf16_f32 v%d, v%d, v%d' % (T + 8 + e, T + 2 * e, T + 2 * e + 1))
                if qb == 0: a('s_add_u32 s%d, s%d, %d' % (sE1, sE0, s * 128 * 1024))
                a(issue(('ctx', 'buffer_store_dwordx4 %s, v%d, %s, s%d offen offset:%d %s' % (vr(T + 8, 4), V_LANE16, sr(WS, 4), sE1, qb * 1024, WT))))
    a('s_cmp_eq_u32 s%d, 0' % sI)
    a('s_cselect_b32 s%d, s%d, 0' % (sDYN, sBIG))
    prefill(0, 0, 0, dyn=True)
    a('s_waitcnt lgkmcnt(%d)' % (D - 4))
    both = [(0, True), (1, False)]
    rds = [kread(i, 0) for i in range(D, 16)] + [kread(i, 1) for i in range(D)]
    zero = ['v_accvgpr_write_b32 a%d, 0' % i for i in range(128)] + ['v_mov_b32 v%d, 0' % (V_L + j) for j in range(4)]
    pk.run(qk_mf(both, 0), rds, lg_items(16, False), [], zero, [], None, False)
    a('s_nop 3')
    for st in range(2):
        for qb in range(2):
            for s in max_ops(st, 0, qb, V_T0, V_T1): a(s)
            for e in range(4): a('v_sub_f32 v%d, 0, v%d' % (NEGM + (st * 2 + qb) * 4 + e, V_T0))
    prefill(0, 1, 1, dyn=True)
    rds = [kread(i, 1) for i in range(D, 16)] + [kread(i, 0) for i in range(D)]
    it = lg_items(16, False) + [dict(lo=16 - D - 1, hi=16 - D - 1, ins='v_xor_b32 v%d, 32768, v%d' % (V_KRD, V_KRD), v=True)]
    it.sort(key=lambda x: (x['hi'], x['lo']))
    pk.run(qk_mf(both, 1), rds, it, [(1, 0), (0, 0)], [], [], (1, 1), False, sub=True)
    a('s_waitcnt vmcnt(0)')
    a(flag_store(76)[1])
    a('s_nop 5')
    stamp(a, 10)
    lA, lA_skip, lA_tail2 = name + '_loopA', name + '_skipA', name + '_tail2A'
    a('s_cmp_eq_u32 s%d, 0' % sI)
    a('s_cbranch_scc1 %s' % lA_tail2)
    a('s_sub_u32 s%d, s%d, 2' % (sCNT, sI))
    a('s_cbranch_scc1 %s' % lA_skip)
    a.raw('.p2align 6')
    a.label(lA)
    dn = [(0, False), (1, False)]; BA = [1, 0]
    iteration(0, dn, BA, [0, 1], BA)
    iteration(1, dn, BA, [0, 1], BA, loop_ctr=(sCNT, lA))
    a.label(lA_skip)
    prefill(0, 0, 0)
    iteration(0, both, BA, [0, 1], BA)
    prefill(0, 1, 1)
    iteration(1, both, BA, [0, 1], BA)
    a.label(lA_tail2)
    l7, lBtail2 = name + '_i7', name + '_tail2B'
    a('s_cmp_eq_u32 s%d, 7' % sI)
    a('s_cbranch_scc1 %s' % l7)
    iteration(0, [(1, False)], BA, [0, 1], BA)
    iteration(1, [(1, False)], [1], [0, 1], BA)
    epilogue(0)
    lB = name + '_loopB'
    a('s_lshl_b32 s%d, s%d, 1' % (sCNT, sI))
    a('s_sub_u32 s%d, 12, s%d' % (sCNT, sCNT))
    a.raw('.p2align 6')
    a.label(lB)
    iteration(0, [(1, False)], [1], [1], [1])
    iteration(1, [(1, False)], [1], [1], [1], loop_ctr=(sCNT, lB))
    prefill(1, 0, 0)
    iteration(0, [(1, True)], [1], [1], [1], dk=False)
    prefill(1, 1, 1)
    iteration(1, [(1, True)], [1], [1], [1], dk=False, nxt='v')
    a('s_branch %s' % lBtail2)
    a.label(l7)
    prefill(1, 0, 0)
    iteration(0, [(1, True)], BA, [0, 1], BA, dk=False)
    prefill(1, 1, 1)
    iteration(1, [(1, True)], [1], [0, 1], BA, dk=False, nxt='v')
    epilogue(0)
    a.label(lBtail2)
    stamp(a, 11)
    CTX, HH, WO, WD, X4, OUT = R1, R2, R3, R4, R5, 4
    sRT, sCT4, sRB, sXO, sAC, sWW, sAC0, sWW0, sVAL = 56, 57, 58, 60, 61, 62, 16, 17, 74
    a('s_lshr_b32 s67, s2, 3')
    a('s_mul_i32 s68, s67, 205'); a('s_lshr_b32 s68, s68, 10')
    a('s_mul_i32 s69, s68, 5'); a('s_sub_u32 s69, s67, s69')
    a('s_and_b32 s70, s2, 1'); a('s_mul_i32 s70, s70, 5')
    a('s_add_u32 s%d, s69, s70' % sCT4)
    a('s_bfe_u32 s70, s2, 0x20001')
    a('s_cmp_lt_u32 s70, 2'); a('s_cselect_b32 s71, 6, 5')
    a('s_cmp_lt_u32 s68, s71'); a('s_cselect_b32 s%d, 1, 0' % sVAL)
    a('s_mul_i32 s%d, s70, 6' % sRT)
    a('s_cmp_eq_u32 s70, 3'); a('s_cselect_b32 s71, 1, 0')
    a('s_sub_u32 s%d, s%d, s71' % (sRT, sRT)); a('s_add_u32 s%d, s%d, s68' % (sRT, sRT))
    a('s_min_u32 s%d, s%d, 21' % (sRT, sRT))
    for s in srd('ws', CTX, WS_CTX, 2048 * 4096 * 2) + srd('ws', HH, WS_H, 2048 * 1728 * 2) + srd('wo', WO) + srd('wd', WD) + srd('x', X4) + srd('out', OUT): a(s)
    a('s_mul_i32 s67, s%d, 96' % sRT)
    a('s_add_u32 s68, s67, 95')
    a('s_lshr_b32 s67, s67, 7'); a('s_lshr_b32 s68, s68, 7'); a('s_min_u32 s68, s68, 15')
    VPC, VPH = 62, 63
    a('v_and_b32 v5, 0x1f0, v%d' % V_LANE16)
    a('v_cmp_gt_u32 vcc, 32, v0')
    a('v_mov_b32 v6, s67'); a('v_mov_b32 v7, s68')
    a('v_cndmask_b32 v6, v7, v6, vcc')
    a('v_lshl_add_u32 v%d, v6, 9, v5' % VPC)
    a('v_sub_u32 v7, 15, v6')
    a('v_min_u32 v6, v6, v7')
    a('v_lshl_add_u32 v%d, v6, 9, v5' % VPH)
    a('s_mov_b32 s79, 0x%x' % FH); a('s_mov_b32 s75, 0x%x' % FC)
    PD4 = 192
    h_poll = 'buffer_load_dwordx4 v[192:195], v%d, %s, s79 offen %s' % (VPH, sr(WS, 4), WT)
    c_poll = 'buffer_load_dwordx4 v[252:255], v%d, %s, s75 offen %s' % (VPC, sr(WS, 4), WT)
    a(h_poll)
    iteration(0, None, [1], [1], [1], dk=False, dv=False, nxt='v', post_bar=[flag_store(77)[1]])
    gate(h_poll, PD4, 4, 1, 63)
    VH, VWO, VRD, VRD2, VWR, VX = 196, 197, 201, 205, 209, 213
    a('v_add_u32 v%d, 4096, v%d' % (VH, V_LANE16))
    a('v_lshrrev_b32 v5, 3, v0')
    a('v_mul_u32_u24 v5, 1280, v5')
    a('v_bfe_u32 v6, v0, 1, 2'); a('v_bfe_u32 v7, v0, 4, 2'); a('v_xor_b32 v6, v6, v7')
    a('v_lshl_add_u32 v5, v6, 5, v5')
    a('v_and_b32 v6, 1, v0')
    a('v_lshl_add_u32 v5, v6, 4, v5')
    for j in range(4): a('v_add_u32 v%d, %d, v5' % (VWO + j, j * (8 * 1280 - 1024)))
    a('s_lshl_b32 s%d, s%d, 14' % (sRB, sW))
    a('s_lshl_b32 s67, s%d, 13' % sW); a('s_add_u32 s67, s67, %d' % (128 * 1024))
    a('s_sub_u32 s68, s67, s%d' % sRB)
    a('v_lshrrev_b32 v5, 2, v0'); a('v_lshlrev_b32 v5, 7, v5')
    a('v_and_b32 v6, 3, v0'); a('v_lshl_add_u32 v5, v6, 3, v5')
    a('v_add_u32 v5, s%d, v5' % sRB)
    a('v_bfe_u32 v6, v0, 3, 2')
    for c in range(4):
        a('s_add_u32 s69, s%d, %d' % (sW, c)); a('s_and_b32 s69, s69, 3')
        a('v_xor_b32 v7, s69, v6')
        a('v_lshl_add_u32 v%d, v7, 5, v5' % (VRD + c))
        a('v_add_u32 v%d, s68, v%d' % (VRD2 + c, VRD + c))
        a('s_mul_i32 s69, s69, %d' % (36 * 1024))
        if c > 0: a('s_add_u32 s69, s69, %d' % ((c - 1) * 12 * 1024))
        a('v_add_u32 v%d, s69, v%d' % (VWR + c, V_LANE16))
    a('v_and_b32 v5, 15, v0'); a('v_mul_u32_u24 v5, 1280, v5')
    a('v_lshrrev_b32 v6, 4, v0')
    a('v_lshl_add_u32 v%d, v6, 3, v5' % VX)
    a('s_mul_i32 s%d, s%d, %d' % (sXO, sRT, 96 * 1280))
    a('s_lshl_b32 s69, s%d, 7' % sCT4)
    a('s_add_u32 s%d, s%d, s69' % (sXO, sXO))
    a('s_lshl_b32 s68, s%d, 5' % sW)
    a('s_add_u32 s%d, s%d, s68' % (sXO, sXO))
    a('s_mul_i32 s%d, s%d, %d' % (sAC0, sRT, 6 * 1024))
    a('s_lshl_b32 s68, s%d, 17' % sW)
    a('s_add_u32 s%d, s%d, s68' % (sAC0, sAC0))
    a('s_mul_i32 s%d, s%d, %d' % (sWW0, sW, 32 * 1280))
    a('s_add_u32 s%d, s%d, s69' % (sWW0, sWW0))
    a('s_mov_b32 s%d, s%d' % (sAC, sAC0)); a('s_mov_b32 s%d, s%d' % (sWW, sWW0))
    a('s_cmp_eq_u32 s%d, 0' % sVAL)
    a('s_cselect_b32 s%d, 0, s%d' % (HH + 2, HH + 2)); a('s_cselect_b32 s%d, 0, s%d' % (WD + 2, WD + 2))
    ND, NO = 14, 32; NS = ND + NO; LA = 5; NR = 6
    ACTS = [64, 88, 112, 136, 160, 216]
    WF, XR4 = 16, 184
    def slot_m0(s):
        r = s % NR
        return 's_add_u32 m0, s%d, %d' % ((sRB, r * 4096) if r < 4 else (67, (r - 4) * 4096))
    def loads(s):
        down = s < ND
        L = []
        if s == ND: L += ['s_mov_b32 s%d, s%d' % (sAC, sAC0), 's_mov_b32 s%d, s%d' % (sWW, sWW0)]
        L += [slot_m0(s), 's_nop 0']
        L += [(('w4', s), 'buffer_load_dwordx4 v%d, %s, s%d offen offset:%d lds' % (VWO + j, sr(WD if down else WO, 4), sWW, 1024 * j)) for j in range(4)]
        L.append('s_add_u32 s%d, s%d, %d' % (sWW, sWW, 4 * 32 * 1280))
        L += [(('a4', s), 'buffer_load_dwordx4 %s, v%d, %s, s%d offen offset:%d' % (vr(ACTS[s % 6] + 4 * qi, 4), (V_LANE16, VH)[qi // 4], sr(HH if down else CTX, 4), sAC, 1024 * (qi % 4))) for qi in range(6)]
        L.append('s_add_u32 s%d, s%d, %d' % (sAC, sAC, 512 * 1024))
        return L
    def wreads(s):
        r = s % NR
        return ['ds_read_b64_tr_b16 %s, v%d offset:%d' % (vr(WF + 16 * (s % 2) + 4 * c + 2 * q, 2), (VRD if r < 4 else VRD2) + c, (r % 4) * 4096 + q * 2048) for c in range(4) for q in range(2)]
    vm.n = 0; ids = {}
    early = [issue(it) for it in loads(0) + loads(1)]
    iteration(1, None, [], [1], [1], dk=False, dv=False, nxt=None, post_bar=early)
    stamp(a, 12)
    epilogue(1)
    notile = name + '_notile'
    a('s_cmp_eq_u32 s%d, 0' % sVAL)
    a('s_cbranch_scc1 %s' % notile)
    for s in range(2, LA):
        for it in loads(s): a(issue(it))
    a('s_waitcnt vmcnt(%d)' % vm.cnt(ids[('w4', 0)]))
    for s_ in wreads(0): a(s_)
    stamp(a, 13)
    for s in range(NS):
        need = ids[('a4', s)] if s + 1 >= NS else max(ids[('a4', s)], ids[('w4', s + 1)])
        if s == ND - LA: need = max(need, ids['cp'])
        a('s_waitcnt vmcnt(%d) lgkmcnt(0)' % vm.cnt(need))
        pend = []
        if s == 1: pend.append(flag_store(78))
        if s == ND - LA: gate(c_poll, 252, 4, 1, 63)
        if s + LA < NS: pend += [it for it in loads(s + LA) if it != 's_nop 0']
        if s == ND - LA - 2: pend.append(('cp', c_poll))
        if s == NS - LA:
            for qi in range(6):
                pend.append('s_add_u32 s69, s%d, %d' % (sXO, qi * 16 * 1280))
                pend.append(('x4', 'buffer_load_dwordx2 %s, v%d, %s, s69 offen' % (vr(XR4 + 2 * qi, 2), VX, sr(X4, 4))))
        rd = wreads(s + 1) if s + 1 < NS else []
        AB = 0 if s < ND else 96
        first = s == 0 or s == ND
        for c in range(4):
            for qi in range(6):
                d = ar(AB + (c * 6 + qi) * 4, 4)
                a('%s %s, %s, %s, %s' % (MF16, d, vr(WF + 16 * (s % 2) + 4 * c, 4), vr(ACTS[s % 6] + 4 * qi, 4), '0' if first else d))
                if rd: a(rd.pop(0))
                elif pend: a(issue(pend.pop(0)))
        assert not pend and not rd
        if s == ND - 1: stamp(a, 14)
    stamp(a, 15)
    a('s_nop 7')
    a('s_barrier')
    for c in range(1, 4):
        for st in range(2):
            for qi in range(6):
                a('ds_write_b128 v%d, %s offset:%d' % (VWR + c, ar(96 * st + (c * 6 + qi) * 4, 4), (st * 6 + qi) * 1024))
    OB, OS = 216, 16
    for qi in range(6):
        for e in range(4):
            a('v_accvgpr_read_b32 v%d, a%d' % (OB + 4 * qi + e, qi * 4 + e))
            a('v_accvgpr_read_b32 v%d, a%d' % (OS + 4 * qi + e, 96 + qi * 4 + e))
    a('s_waitcnt lgkmcnt(0)')
    a('s_barrier')
    RB = 40
    for b_ in range(36): a('ds_read_b128 %s, v%d offset:%d' % (vr(RB + 4 * b_, 4), VWR, b_ * 1024))
    for src in range(3):
        a('s_waitcnt lgkmcnt(%d)' % min(15, 12 * (2 - src)))
        for st in range(2):
            for qi in range(6):
                for e in range(4):
                    o = (OB if st == 0 else OS) + 4 * qi + e
                    a('v_add_f32 v%d, v%d, v%d' % (o, o, RB + 4 * (src * 12 + st * 6 + qi) + e))
    a('s_waitcnt vmcnt(0)')
    a('s_mov_b32 s64, %s' % f2u(-math.log2(math.e)))
    a('s_mov_b32 s65, 0xffff0000')
    def rnd(r0, r1, t):
        a('v_cvt_pk_bf16_f32 v%d, v%d, v%d' % (t, r0, r1))
        a('v_lshlrev_b32 v%d, 16, v%d' % (r0, t))
        a('v_and_b32 v%d, s65, v%d' % (r1, t))
    for qi in range(6):
        B = OB + 4 * qi; S = OS + 4 * qi; T = 64 + 8 * qi
        for h in range(2):
            rnd(B + 2 * h, B + 2 * h + 1, T); rnd(S + 2 * h, S + 2 * h + 1, T + 1)
        for e in range(4): a('v_mul_f32 v%d, s64, v%d' % (T + e, B + e))
        for e in range(4): a('v_exp_f32 v%d, v%d' % (T + e, T + e))
        for e in range(4): a('v_add_f32 v%d, 1.0, v%d' % (T + e, T + e))
        for e in range(4): a('v_rcp_f32 v%d, v%d' % (T + e, T + e))
        for e in range(4): a('v_mul_f32 v%d, v%d, v%d' % (B + e, B + e, T + e))
        for h in range(2): rnd(B + 2 * h, B + 2 * h + 1, T + 4)
        for e in range(4): a('v_mul_f32 v%d, v%d, v%d' % (S + e, S + e, B + e))
        for h in range(2): rnd(S + 2 * h, S + 2 * h + 1, T + 4)
        for h in range(2):
            a('v_lshlrev_b32 v%d, 16, v%d' % (T + 2 * h, XR4 + 2 * qi + h))
            a('v_and_b32 v%d, s65, v%d' % (T + 2 * h + 1, XR4 + 2 * qi + h))
        for e in range(4): a('v_add_f32 v%d, v%d, v%d' % (S + e, S + e, T + e))
        for h in range(2): a('v_cvt_pk_bf16_f32 v%d, v%d, v%d' % (T + 4 + h, S + 2 * h, S + 2 * h + 1))
        a('s_add_u32 s69, s%d, %d' % (sXO, qi * 16 * 1280))
        a('buffer_store_dwordx2 %s, v%d, %s, s69 offen' % (vr(T + 4, 2), VX, sr(OUT, 4)))
    stamp(a, 16)
    stamp_flush(a, 17)
    a('s_endpgm')
    a.label(notile)
    a('s_waitcnt vmcnt(0)')
    a(flag_store(78)[1])
    a.label(end)
    a('s_endpgm')
    for slow, ok, load_ins, chk, ts in slow_paths:
        a.label(slow)
        a('s_mov_b32 s%d, 0x8000' % ts)
        lp = a.newlabel(name + '_sp')
        a.label(lp)
        a('s_sleep 4')
        a(load_ins)
        a('s_waitcnt vmcnt(0)')
        for s in chk: a(s)
        a('s_nop 1')
        a('s_cbranch_vccz %s' % ok)
        a('s_sub_u32 s%d, s%d, 1' % (ts, ts))
        a('s_cbranch_scc0 %s' % lp)
        a('s_branch %s' % ok)
    for stub, back, pc, ex in rare_sites:
        a.label(stub)
        for st in sorted(ex): a('s_call_b64 s[100:101], %s_rare%d%d' % (name, pc, st))
        a('s_branch %s' % back)
    for pc in range(2):
        for st in range(2):
            a.label('%s_rare%d%d' % (name, pc, st))
            a('s_nop 7')
            for qb in range(2):
                for s in max_ops(st, pc, qb, V_T0, V_T1): a(s)
                a('v_max_f32 v%d, 0, v%d' % (V_T0, V_T0))
                a('v_exp_f32 v%d, -v%d' % (V_T1, V_T0))
                for e in range(4): a('v_sub_f32 v%d, v%d, v%d' % (NEGM + (st * 2 + qb) * 4 + e, NEGM + (st * 2 + qb) * 4 + e, V_T0))
                for pp in range(2):
                    for kb in range(4):
                        for r in range(4):
                            x = SB[st][pp] + (kb * 2 + qb) * 4 + r
                            a('v_sub_f32 v%d, v%d, v%d' % (x, x, V_T0))
                a('v_mul_f32 v%d, v%d, v%d' % (V_L + st * 2 + qb, V_L + st * 2 + qb, V_T1))
                for db in range(0, 8, 2):
                    regs = [A_O[st] + ((db + h) * 2 + qb) * 4 + e for h in range(2) for e in range(4)]
                    for e in range(8): a('v_accvgpr_read_b32 v%d, a%d' % (TMP + e, regs[e]))
                    for e in range(8): a('v_mul_f32 v%d, v%d, v%d' % (TMP + e, TMP + e, V_T1))
                    for e in range(8): a('v_accvgpr_write_b32 a%d, v%d' % (regs[e], TMP + e))
            for s in exp_ops(st, pc): a(s)
            if st == 1:
                for k, (s, _, _) in enumerate(exp_seq(1, 1 - pc)[:EARLY]): a('v_exp_f32 v%d, v%d' % (TMP + k, s))
            a('s_nop 7')
            a('s_setpc_b64 s[100:101]')
    kernel_desc(a, name, 512, 256)
    return a
```

```python
import sys, re
from common import *
from mega import gen_mega
NAME = 'recurrent_scan__compressed_kv_cla__glu_gated_bilinear__prompt'
def compact(txt):
    macros = {'v_mfma_f32_16x16x32_bf16': ('MM', 4), 'v_accvgpr_read_b32': ('AR', 2), 'v_accvgpr_write_b32': ('AW', 2), 'v_cvt_pk_bf16_f32': ('CV', 3)}
    hdr = ''
    for ins, (m, n) in macros.items():
        args = ['p%d' % i for i in range(n)]
        hdr += '.macro %s %s\n%s %s\n.endm\n' % (m, ', '.join(args), ins, ', '.join('\\' + x for x in args))
    out = []
    for l in txt.split('\n'):
        s = l.strip()
        w = s.split(' ', 1)
        if w[0] in macros: s = macros[w[0]][0] + ' ' + w[1].replace(', ', ',')
        out.append(s)
    return hdr, '\n'.join(out)
def main(path, aslist):
    hdr = open('cdna_kernels/%s.s.ref' % NAME).read().split('; Override launch')[0]
    a = Asm()
    kn = NAME + '_kernel'
    gen_mega(a, kn)
    txt = a.text().replace(kn + '_', 'L_')
    mh, txt = compact(txt)
    if aslist: L = '; @launch kernel=%s grid=(256,1,1) block=(256,1,1) lds=163840' % kn
    else: L = '; @launch grid=(256,1,1) block=(256,1,1) lds=163840'
    open(path, 'w').write(hdr + L + '\n.amdgcn_target "amdgcn-amd-amdhsa--gfx950"\n' + mh + txt)
if __name__ == '__main__':
    main(sys.argv[1], len(sys.argv) > 2)
```

```python
from common import *
import common
import math, copy
import k2 as K2
from k2 import VM, Packer, exp_seq, exp_ops, max_ops, EARLY
from k2 import V_LANE16, V_LANE16V, V_KRD, V_VRD, V_T0, V_T1, V_L, TRI, NEGM, LT, TMP, SB, PB, A_O, A_Q, A_RING, V_ONES, D, R, THR, BIG

WT = 'sc0 sc1'
WS_FLG = 0x7000000
FK, FH, FC, FL, FE = WS_FLG, WS_FLG + 4096, WS_FLG + 8192, WS_FLG + 16384, WS_FLG + 20480
PTR = dict(x=4, ckv=6, wq=8, wuk=10, wuv=12, wo=14, wg=18, wu=20, wd=22, out=24, dbg=26, ws=28)
WS, R1, R2, R3, R4, R5 = 32, 36, 40, 44, 48, 52
sW, sH, sI = 30, 31, 3
V_ONE, V_1 = 60, 61
V_PA, V_PD = 62, 24

SMODE = os.environ.get('SMODE', 'all')
def stamp(a, i, mode='all'):
    if not DIAG: return
    if mode != SMODE and i != 0: return
    a('s_memrealtime s[98:99]'); a('s_waitcnt lgkmcnt(0)'); a('s_mov_b32 s%d, s98' % (80 + i))
def cstamp(a, i, mode='cyc'):
    if not DIAG or mode != SMODE: return
    a('s_memrealtime s[98:99]'); a('s_waitcnt lgkmcnt(0)'); a('s_mov_b32 s%d, s98' % (80 + i + 8))
    a('s_memtime s[98:99]'); a('s_waitcnt lgkmcnt(0)'); a('s_mov_b32 s%d, s98' % (80 + i))
def stamp_flush(a, n):
    if not DIAG: return
    a('s_lshl_b32 s98, s2, 2'); a('s_add_u32 s98, s98, s%d' % sW); a('s_lshl_b32 s98, s98, 7')
    a('s_add_u32 s98, s98, 0x%x' % WS_STAMP)
    a('v_mov_b32 v0, 0')
    for i in range(n):
        a('v_mov_b32 v1, s%d' % (80 + i))
        a('buffer_store_dword v1, v0, %s, s98 offen offset:%d' % (sr(WS, 4), 4 * i))
        a('s_nop 1')

def srd(name, r, off=0, size=None):
    p = PTR[name]
    L = []
    if off:
        L += ['s_add_u32 s%d, s%d, 0x%x' % (r, p, off), 's_addc_u32 s%d, s%d, 0' % (r + 1, p + 1)]
    else:
        L += ['s_mov_b32 s%d, s%d' % (r, p), 's_mov_b32 s%d, s%d' % (r + 1, p + 1)]
    L += ['s_mov_b32 s%d, 0x%x' % (r + 2, SIZE[name] if size is None else size), 's_mov_b32 s%d, 0x00020000' % (r + 3)]
    return L

def gen_mega(a, name):
    kernel_begin(a, name)
    end = name + '_end'
    slow_paths = []
    def gate(load_ins, dreg, n, want, tmp_s):
        def chk():
            L = ['v_xor_b32 v%d, v%d, v%d' % (dreg + e, dreg + e, V_1) for e in range(n)]
            L += ['v_or3_b32 v%d, v%d, v%d, v%d' % (dreg, dreg, dreg + 1, dreg + 2)]
            if n == 4: L += ['v_or_b32 v%d, v%d, v%d' % (dreg, dreg, dreg + 3)]
            L += ['v_cmp_ne_u32 vcc, 0, v%d' % dreg]
            return L
        slow, ok = a.newlabel(name + '_sl'), a.newlabel(name + '_ok')
        for s in chk(): a(s)
        a('s_nop 1')
        a('s_cbranch_vccnz %s' % slow)
        a.label(ok)
        slow_paths.append((slow, ok, load_ins, chk(), tmp_s))

    a('s_cmp_ge_u32 s2, 256')
    a('s_cbranch_scc1 %s' % end)
    stamp(a, 0)
    a('s_load_dwordx16 s[4:19], s[0:1], 0')
    a('s_load_dwordx8 s[20:27], s[0:1], 64')
    a('s_load_dwordx2 s[28:29], s[0:1], 96')
    a('v_lshrrev_b32 v1, 6, v0')
    a('v_and_b32 v0, 63, v0')
    a('v_readfirstlane_b32 s%d, v1' % sW)
    a('s_and_b32 s31, s2, 7')
    a('s_lshl_b32 s31, s31, 2')
    a('s_lshr_b32 s61, s2, 3')
    a('s_and_b32 s61, s61, 3')
    a('s_add_u32 s31, s31, s61')
    a('s_lshr_b32 s3, s2, 5')
    CKV, WUK, WUV, X, DBG = R1, R2, R3, R4, R5
    VA, VW = 8, 12
    a('v_lshrrev_b32 v6, 3, v0')
    a('v_lshlrev_b32 v6, 10, v6')
    a('v_lshrrev_b32 v7, 4, v0')
    a('v_and_b32 v12, 7, v0')
    a('v_xor_b32 v12, v12, v7')
    a('v_xor_b32 v13, 4, v12')
    a('v_lshl_add_u32 v12, v12, 4, v6')
    a('v_lshl_add_u32 v13, v13, 4, v6')
    for j in range(4): a('v_add_u32 v%d, %d, v%d' % (VA + j, j * (8192 - 1024), 12 + (j & 1)))
    a('v_bfe_u32 v16, v0, 1, 3')
    a('v_xor_b32 v16, v16, v7')
    a('v_xor_b32 v17, 4, v16')
    a('v_and_b32 v18, 1, v0')
    a('v_lshlrev_b32 v18, 4, v18')
    a('v_lshl_add_u32 v18, v7, 13, v18')
    a('v_lshl_add_u32 v16, v16, 5, v18')
    a('v_lshl_add_u32 v17, v17, 5, v18')
    for j in range(4): a('v_add_u32 v%d, %d, v%d' % (VW + j, j * (32768 - 1024), 16 + (j >> 1)))
    sA, sWo, sLA, sLW, sA2 = 56, 57, 58, 59, 60
    a('s_lshl_b32 s56, s%d, 2' % sI)
    a('s_add_u32 s56, s56, s%d' % sW)
    a('s_lshl_b32 s56, s56, 16')
    a('s_lshl_b32 s57, s%d, 17' % sW)
    a('s_lshl_b32 s58, s%d, 8' % sH)
    a('s_add_u32 s57, s57, s58')
    a('s_lshl_b32 s58, s%d, 13' % sW)
    a('s_lshl_b32 s59, s%d, 12' % sW)
    a('s_add_u32 s59, s59, 65536')
    a('v_lshrrev_b32 v2, 5, v0')
    a('v_and_b32 v3, 31, v0')
    a('s_lshl_b32 s61, s2, 2')
    a('s_add_u32 s61, s61, s%d' % sW)
    a('s_lshl_b32 s61, s61, 1')
    a('v_add_u32 v4, s61, v2')
    a('v_mul_u32_u24 v5, 1280, v4')
    a('v_lshl_add_u32 v5, v3, 3, v5')
    a('v_lshlrev_b32 v%d, 4, v0' % V_LANE16)
    vm = VM(); ids = {}
    def issue(it):
        if isinstance(it, str): return it
        ids[it[0]] = vm.op()
        return it[1]
    def p1_dma(st):
        slot = st & 1; t = ('p1', st)
        L = ['s_add_u32 m0, s%d, %d' % (sLA, slot * 32768), 's_add_u32 s%d, s%d, 32768' % (sA2, sA)]
        L += [(t, 'buffer_load_dwordx4 v%d, %s, s%d offen offset:%d lds' % (VA + j, sr(CKV, 4), sA, 1024 * j)) for j in range(4)]
        L += ['s_add_u32 m0, s%d, %d' % (sLW, slot * 32768), 's_add_u32 s%d, s%d, 128' % (sA, sA)]
        L += [(t, 'buffer_load_dwordx4 v%d, %s, s%d offen offset:%d lds' % (VW + j, sr(WUK, 4), sWo, 1024 * j)) for j in range(4)]
        L += ['s_add_u32 m0, s%d, %d' % (sLA, slot * 32768 + 4096), 's_nop 0']
        L += [(t, 'buffer_load_dwordx4 v%d, %s, s%d offen offset:%d lds' % (VA + j, sr(CKV, 4), sA2, 1024 * j)) for j in range(4)]
        L += ['s_add_u32 m0, s%d, %d' % (sLW, slot * 32768 + 16384), 's_nop 0']
        L += [(t, 'buffer_load_dwordx4 v%d, %s, s%d offen offset:%d lds' % (VW + j, sr(WUV, 4), sWo, 1024 * j)) for j in range(4)]
        L += ['s_add_u32 s%d, s%d, %d' % (sWo, sWo, 64 * 8192)]
        return L
    a('s_waitcnt lgkmcnt(0)')
    for n_, r_ in (('x', X), ('ckv', CKV), ('wuk', WUK), ('wuv', WUV), ('ws', WS)):
        for s in srd(n_, r_): a(s)
    XR = 192
    a('v_mov_b32 v52, 0')
    a('s_mov_b32 s79, 0x%x' % FE)
    a(issue(('ep', 'buffer_load_dword v%d, v52, %s, s79 offen %s' % (V_1, sr(WS, 4), WT))))
    for j in range(5): a(issue(('x', 'buffer_load_dwordx2 %s, v5, %s, 0 offen offset:%d' % (vr(XR + 2 * j, 2), sr(X, 4), 256 * j))))
    PFB = 'b' in os.environ.get('MX', '')
    if PFB:
        a('s_lshr_b32 s61, s2, 3'); a('s_lshl_b32 s61, s61, 2'); a('s_add_u32 s61, s61, s%d' % sW)
        a('v_lshlrev_b32 v20, 7, v0')
        a('s_lshl_b32 s62, s61, 14'); a('s_add_u32 s63, s62, 8192')
        a('v_bfe_u32 v22, v0, 3, 2'); a('v_lshlrev_b32 v22, 13, v22'); a('v_and_b32 v23, 7, v0'); a('v_lshl_add_u32 v22, v23, 7, v22')
        a('s_lshl_b32 s64, s61, 15'); a('s_and_b32 s65, s2, 7'); a('s_lshl_b32 s65, s65, 10'); a('s_add_u32 s64, s64, s65')
        a(issue(('pf', 'buffer_load_dword v240, v20, %s, s62 offen' % sr(CKV, 4))))
        a(issue(('pf', 'buffer_load_dword v241, v22, %s, s64 offen' % sr(WUK, 4))))
        a(issue(('pf', 'buffer_load_dword v242, v22, %s, s64 offen' % sr(WUV, 4))))
        a(issue(('pf', 'buffer_load_dword v243, v20, %s, s63 offen' % sr(CKV, 4))))
    for it in p1_dma(0) + p1_dma(1): a(issue(it))
    a('s_lshr_b32 s61, s2, 3')
    a('s_lshl_b32 s61, s61, 2')
    a('s_add_u32 s61, s61, s%d' % sW)
    TC, TW, TX = 48, 49, 50
    a('v_bfe_u32 v20, v0, 1, 4')
    a('v_lshlrev_b32 v20, 10, v20')
    a('v_and_b32 v21, 1, v0')
    a('v_lshl_add_u32 v20, v21, 7, v20')
    a('s_lshl_b32 s62, s61, 14')
    a('v_add_u32 v%d, s62, v20' % TC)
    a('v_and_b32 v20, 7, v0')
    a('v_lshlrev_b32 v20, 7, v20')
    a('s_lshl_b32 s62, s61, 13')
    a('s_and_b32 s63, s2, 7')
    a('s_lshl_b32 s63, s63, 10')
    a('s_add_u32 s62, s62, s63')
    a('v_add_u32 v%d, s62, v20' % TW)
    def pf_chunk(c):
        if PFB: return []
        return ['s_mov_b32 s16, %d' % ((c + 1) * 128 * 8192),
                ('pf', 'buffer_load_dword v240, v%d, %s, 0 offen offset:%d' % (TC, sr(CKV, 4), 256 * (c + 1))),
                ('pf', 'buffer_load_dword v241, v%d, %s, s16 offen' % (TW, sr(WUK, 4))),
                ('pf', 'buffer_load_dword v242, v%d, %s, s16 offen' % (TW, sr(WUV, 4)))]
    for it in pf_chunk(0): a(issue(it))
    TQ, TG = 53, 54
    a('v_min_u32 v20, 39, v0')
    a('v_lshrrev_b32 v21, 3, v20')
    a('s_mul_i32 s62, s61, 5')
    a('v_add_u32 v21, s62, v21')
    a('v_and_b32 v20, 7, v20')
    a('v_lshlrev_b32 v20, 7, v20')
    a('v_lshl_add_u32 v20, v21, 13, v20')
    a('v_add_u32 v%d, s63, v20' % TQ)
    a('v_min_u32 v20, 19, v0')
    a('v_lshrrev_b32 v21, 2, v20')
    a('v_add_u32 v21, s62, v21')
    a('v_mul_u32_u24 v21, 3456, v21')
    a('s_and_b32 s63, s2, 7')
    a('s_lshl_b32 s63, s63, 2')
    a('s_mul_i32 s64, s63, 37'); a('s_lshr_b32 s64, s64, 8')
    a('s_sub_u32 s63, s63, s64')
    a('v_and_b32 v20, 3, v20')
    a('v_add_u32 v20, s63, v20')
    a('v_min_u32 v20, 26, v20')
    a('v_lshl_add_u32 v%d, v20, 7, v21' % TG)
    a('s_mul_i32 s62, s61, 20480')
    a('v_and_b32 v20, 31, v0')
    a('v_lshlrev_b32 v20, 7, v20')
    a('v_add_u32 v%d, s62, v20' % TX)
    def xn_touch(j):
        return ['s_mov_b32 s16, %d' % (4096 * j), ('pf', 'buffer_load_dword v243, v%d, %s, s16 offen' % (TX, sr(WS, 4)))]
    RA, RW = 16, 18
    a('s_lshr_b32 s61, s%d, 1' % sW)
    a('s_lshl_b32 s61, s61, 14')
    a('v_bfe_u32 v20, v0, 1, 3')
    a('v_xor_b32 v20, v20, v7')
    a('v_and_b32 v21, 15, v0')
    a('v_lshlrev_b32 v21, 7, v21')
    a('v_add_u32 v21, s61, v21')
    a('v_lshl_add_u32 v%d, v20, 4, v21' % RA)
    a('v_xor_b32 v20, 4, v20')
    a('v_lshl_add_u32 v%d, v20, 4, v21' % (RA + 1))
    a('v_bfe_u32 v22, v0, 2, 2')
    a('v_lshl_add_u32 v23, v7, 3, v22')
    a('v_lshlrev_b32 v23, 8, v23')
    a('v_and_b32 v24, 3, v0')
    a('v_lshl_add_u32 v23, v24, 3, v23')
    a('v_add_u32 v23, 65536, v23')
    a('v_bfe_u32 v22, v0, 2, 3')
    a('s_and_b32 s62, s%d, 1' % sW)
    a('s_lshl_b32 s62, s62, 2')
    a('v_xor_b32 v22, s62, v22')
    for nb in range(4):
        a('v_xor_b32 v24, %d, v22' % nb)
        a('v_lshl_add_u32 v%d, v24, 5, v23' % (RW + nb))
    P_XOFF2, P_WOFF, P_WRD = 32, 33, 40
    a('v_add_u32 v%d, 20480, v%d' % (P_XOFF2, V_LANE16))
    a('v_lshrrev_b32 v25, 3, v0')
    a('v_bfe_u32 v26, v0, 1, 2')
    a('v_bfe_u32 v27, v0, 4, 2')
    a('v_xor_b32 v26, v26, v27')
    a('v_lshlrev_b32 v26, 5, v26')
    a('v_and_b32 v27, 1, v0')
    a('v_lshl_add_u32 v26, v27, 4, v26')
    a('v_lshl_add_u32 v%d, v25, 13, v26' % P_WOFF)
    a('v_add_u32 v%d, %d, v%d' % (P_WOFF + 1, 8 * 8192 - 1024, P_WOFF))
    a('v_mul_u32_u24 v25, 3456, v25')
    a('v_add_u32 v%d, v25, v26' % (P_WOFF + 2))
    a('v_add_u32 v%d, %d, v%d' % (P_WOFF + 3, 8 * 3456 - 1024, P_WOFF + 2))
    a('v_lshrrev_b32 v25, 2, v0')
    a('v_lshlrev_b32 v25, 7, v25')
    a('v_and_b32 v26, 3, v0')
    a('v_lshl_add_u32 v25, v26, 3, v25')
    a('v_add_u32 v25, 65536, v25')
    a('v_bfe_u32 v26, v0, 3, 2')
    for c in range(4):
        a('v_xor_b32 v27, %d, v26' % c)
        a('v_lshl_add_u32 v%d, v27, 5, v25' % (P_WRD + c))
        a('v_add_u32 v%d, 65536, v%d' % (P_WRD + 4 + c, P_WRD + c))
    s_w = [64, 65, 66, 67]; s_q = [68, 69]; sLW2, sCT = 70, 71; sQ = [72, 73]
    a('s_mul_i32 s17, s%d, 37' % sH)
    a('s_lshr_b32 s17, s17, 8')
    a('s_sub_u32 s71, s%d, s17' % sH)
    a('s_lshl_b32 s70, s%d, 11' % sW)
    a('s_lshl_b32 s72, s%d, 2' % sI)
    a('s_add_u32 s72, s72, s%d' % sW)
    a('s_lshl_b32 s72, s72, 1')
    a('s_sub_u32 s73, 15, s%d' % sI)
    a('s_lshl_b32 s73, s73, 2')
    a('s_add_u32 s73, s73, s%d' % sW)
    a('s_lshl_b32 s73, s73, 1')
    a('s_mul_i32 s68, s72, 20480')
    a('s_mul_i32 s69, s73, 20480')
    assert WS_XN == 0
    a('s_lshl_b32 s64, s%d, 17' % sW)
    a('s_lshl_b32 s65, s%d, 8' % sH)
    a('s_add_u32 s64, s64, s65')
    a('s_add_u32 s65, s64, 128')
    a('s_mul_i32 s66, s%d, %d' % (sW, 16 * 3456))
    a('s_lshl_b32 s67, s%d, 7' % sCT)
    a('s_add_u32 s66, s66, s67')
    a('s_mov_b32 s67, s66')
    a('s_mul_i32 s61, s17, 7')
    a('s_sub_u32 s61, s%d, s61' % sH)
    a('s_cmp_eq_u32 s61, 6')
    a('s_cselect_b32 s74, 0, 0x%x' % SIZE['wg'])
    a('s_cmp_ge_u32 s%d, 27' % sCT)
    a('s_cselect_b32 s74, 0, s74')
    a('s_lshl_b32 s17, s17, 3'); a('s_add_u32 s17, s17, s%d' % sI)
    a('s_lshl_b32 s17, s17, 2'); a('s_add_u32 s17, s17, s%d' % sW)
    TH = 51
    a('s_lshl_b32 s61, s17, 13')
    a('s_cmp_eq_u32 s74, 0')
    a('s_cselect_b32 s61, s61, 0x20000000')
    a('v_lshlrev_b32 v25, 7, v0')
    a('v_add_u32 v%d, s61, v25' % TH)
    def helper_touch(nm_, rounds, r_):
        L = srd(nm_, r_)
        if 'h' in os.environ.get('MX', ''): rounds = []
        for j in rounds:
            L += ['s_mov_b32 s17, %d' % (j * 160 * 8192), ('pf', 'buffer_load_dword v248, v%d, %s, s17 offen' % (TH, sr(r_, 4)))]
        return L
    a('s_lshl_b32 s61, s%d, 2' % sW)
    a('s_lshl_b32 s76, s2, 4'); a('s_add_u32 s76, s76, s61')
    a('s_add_u32 s75, s76, 0x%x' % FK)
    a('s_add_u32 s77, s76, 0x%x' % FC)
    a('s_and_b32 s78, s76, 0x1ff')
    a('s_add_u32 s76, s76, 0x%x' % FH)
    a('s_sub_u32 s62, 15, s%d' % sI); a('s_lshl_b32 s62, s62, 9')
    a('s_add_u32 s78, s78, s62'); a('s_add_u32 s78, s78, 0x%x' % FC)
    a('v_cmp_eq_u32 vcc, 0, v0')
    a('v_mov_b32 v25, 0x20000000')
    a('s_lshl_b32 s26, s2, 2'); a('s_add_u32 s26, s26, 0x%x' % FL)
    a('v_cndmask_b32 v%d, v25, 0, vcc' % V_ONE)
    a('s_cmp_eq_u32 s%d, 0' % sW)
    a('s_cselect_b32 s26, s26, 0x20000000')
    a('s_lshl_b32 s27, s2, 2'); a('s_or_b32 s27, s27, s%d' % sW)
    a('s_cmp_eq_u32 s27, 0')
    a('s_cselect_b32 s27, s79, 0x20000000')
    a('s_mov_b32 s79, 0x%x' % FL)
    def flag_store(sreg, val=V_1):
        return ('fl', 'buffer_store_dword v%d, v%d, %s, s%d offen %s' % (val, V_ONE, sr(WS, 4), sreg, WT))
    a('s_waitcnt vmcnt(%d)' % vm.cnt(ids['x']))
    stamp(a, 1)
    a('s_mov_b32 s61, 0x9e3779b1')
    a('v_mul_lo_u32 v%d, s61, v%d' % (V_1, V_1))
    a('v_add_u32 v%d, 0x7f4a7c15, v%d' % (V_1, V_1))
    import k1
    b = Asm(); k1.ln_part(b, XR, WS, 4, 3)
    ln_lines = [l.strip() for l in b.lines]
    for l in ln_lines[:-20]: a(l)
    a('v_lshrrev_b32 v224, 3, v3')
    a('v_lshlrev_b32 v224, 9, v224')
    a('v_and_b32 v225, 3, v3')
    a('v_lshl_add_u32 v224, v225, 7, v224')
    a('v_and_b32 v225, 7, v4')
    a('v_lshl_add_u32 v224, v225, 4, v224')
    a('v_bfe_u32 v225, v3, 2, 1')
    a('v_lshl_add_u32 v224, v225, 3, v224')
    a('v_add_u32 v224, %d, v224' % (128 * 1024))
    for j in range(5): a('ds_write_b64 v224, %s offset:%d' % (vr(XR + 2 * j, 2), 2048 * j))
    a('s_lshl_b32 s61, s%d, 10' % sW)
    a('s_add_u32 s61, s61, %d' % (128 * 1024))
    a('v_add_u32 v225, s61, v%d' % V_LANE16)
    a('v_lshrrev_b32 v226, 3, v0')
    a('v_lshlrev_b32 v226, 8, v226')
    a('v_and_b32 v227, 7, v0')
    a('v_lshl_add_u32 v226, v227, 4, v226')
    a('s_lshr_b32 s61, s2, 1')
    a('s_mul_i32 s61, s61, 20480')
    a('s_and_b32 s62, s2, 1')
    a('s_lshl_b32 s62, s62, 7')
    a('s_add_u32 s61, s61, s62')
    a('s_lshl_b32 s62, s%d, 11' % sW)
    a('s_add_u32 s61, s61, s62')
    a('s_add_u32 s62, s61, 8192')
    a('s_add_u32 s63, s61, 16384')
    a('s_cmp_lt_u32 s%d, 2' % sW)
    a('s_cselect_b32 s63, s63, 0x20000000')
    xn_reads = ['ds_read_b128 %s, v225 offset:%d' % (vr(XR + 4 * t, 4), 4096 * t) for t in range(3)]
    xn_stores = [('xn', 'buffer_store_dwordx4 %s, v226, %s, s%d offen %s' % (vr(XR + 4 * t, 4), sr(WS, 4), 61 + t, WT)) for t in range(3)]
    MX = os.environ.get('MX', '')
    if 'x' in MX: xn_stores = []
    if 'p' in MX: xn_stores = [(t, s.replace(WT, '')) for t, s in xn_stores]
    WQ, WG, WU = R1, R2, R3
    WSLOT = [128 * 1024, 64 * 1024, 96 * 1024]
    P_ACCV, P_ACCA, P_WF, P_ACT = 128, 0, 128, 192
    srdm = [WQ, WQ, WG, WU]; stride = [8192, 8192, 3456, 3456]
    def w_dma(st, nm):
        L = []
        for m in range(nm):
            L.append('s_add_u32 m0, s%d, %d' % (sLW2, WSLOT[st % 3] + m * 8192))
            L.append('s_nop 0')
            for j in range(2):
                L.append((('w', st), 'buffer_load_dwordx4 v%d, %s, s%d offen offset:%d lds' % (P_WOFF + 2 * (m // 2) + j, sr(srdm[m], 4), s_w[m], 1024 * j)))
            L.append('s_add_u32 s%d, s%d, %d' % (s_w[m], s_w[m], 64 * stride[m]))
        return L
    def a_load(k):
        base = P_ACT + 16 * (k % 4)
        L = [(('a', k), 'buffer_load_dwordx4 %s, v%d, %s, s%d offen offset:%d' % (ar(base + 4 * qi, 4), (V_LANE16, P_XOFF2)[qi % 2], sr(WS, 4), s_q[qi // 2], 1024 * (k % 4))) for qi in range(4)]
        if k % 4 == 3: L += ['s_add_u32 s%d, s%d, 4096' % (s, s) for s in s_q]
        return L
    FR = 64
    def reads(slot, ks, fs):
        base = FR + 64 * fs
        def A(i): return ['ds_read_b128 %s, v%d offset:%d' % (vr(base + 4 * i, 4), RA + ks, slot * 32768 + i * 2048)]
        def W(mat, nb): return ['ds_read_b64_tr_b16 %s, v%d offset:%d' % (vr(base + 32 + 16 * mat + 4 * nb + 2 * r, 2), RW + nb,
                                slot * 32768 + mat * 16384 + (32 * ks + 4 * r) * 256) for r in range(2)]
        L = A(0)
        for nb in range(4): L += W(0, nb)
        for nb in range(4): L += W(1, nb)
        for i in range(1, 8): L += A(i)
        return L
    def mfmas(fs, first):
        base = FR + 64 * fs; L = []
        for rb in range(8):
            act = vr(base + 4 * rb, 4)
            for mat in range(2):
                for nb in range(4):
                    w = vr(base + 32 + 16 * mat + 4 * nb, 4)
                    d = ar((rb * 8 + mat * 4 + nb) * 4, 4); c = '0' if first else d
                    L.append('%s %s, %s, %s, %s' % ((MF16, d, w, act, c) if mat == 0 else (MF16, d, act, w, c)))
        return L
    stamp(a, 2)
    a('s_waitcnt vmcnt(%d) lgkmcnt(0)' % vm.cnt(ids[('p1', 0)]))
    a('s_barrier')
    stamp(a, 3)
    for s in reads(0, 0, 0) + xn_reads: a(s)
    ln_poll = 'buffer_load_dwordx4 v[244:247], v%d, %s, s79 offen %s' % (V_LANE16, sr(WS, 4), WT)
    NST = 8
    pend = []
    P1SP = int(os.environ.get('P1SP', 4))
    for st in range(NST):
        slot = st & 1
        for ks in range(2):
            rd = []
            if ks == 1:
                if st < NST - 1:
                    assert not any(x[0] == ('p1', st + 1) for x in pend if not isinstance(x, str))
                    a('s_waitcnt vmcnt(%d) lgkmcnt(0)' % vm.cnt(ids[('p1', st + 1)])); a('s_barrier')
                    rd = reads(1 - slot, 0, 0)
                else: a('s_waitcnt lgkmcnt(0)')
                if st + 2 < NST: pend += p1_dma(st + 2)
                if st == 0: pend += xn_stores
                if st == 2: pend = [flag_store(26)] + pend
                if st in (0, 1): pend += pf_chunk(st + 1)
                if st == 2: pend += [('pf', 'global_load_dword v240, v%d, s[8:9]' % TQ)]
                if st == 3: pend += [('pf', 'global_load_dword v241, v%d, s[18:19]' % TG), ('pf', 'global_load_dword v242, v%d, s[20:21]' % TG)]
                if st == 4: pend = [('lnp', ln_poll)] + pend
                if st == 5:
                    gate(ln_poll, 244, 4, 1, 61)
                    pend += [flag_store(27)]
                    pend += xn_touch(0) + xn_touch(1)
                if st == 6: pend += w_dma(1, 4) + xn_touch(2) + xn_touch(3)
                if st == 7: pend += xn_touch(4)
            else:
                a('s_waitcnt lgkmcnt(0)')
                rd = reads(slot, 1, 1)
                if st == 6:
                    pend += srd('wq', WQ) + srd('wg', WG) + srd('wu', WU) + ['s_mov_b32 s%d, s74' % (WG + 2), 's_mov_b32 s%d, s74' % (WU + 2)] + w_dma(0, 4)
            lastv = -10
            for g, m in enumerate(mfmas(ks, st == 0 and ks == 0)):
                a(m)
                if g % 2 == 0 and rd: a(rd.pop(0))
                elif pend and g % 2 == 1:
                    while pend and pend[0] == 's_nop 0': pend.pop(0)
                    if pend and (isinstance(pend[0], str) or g - lastv >= P1SP):
                        if not isinstance(pend[0], str): lastv = g
                        a(issue(pend.pop(0)))
            stamp(a, 1 + 2 * st + ks, 'p1')
        if st == 3: stamp(a, 4); cstamp(a, 1)
    assert not pend
    stamp(a, 5); cstamp(a, 2)
    a('s_lshl_b32 s56, s%d, 20' % sH)
    a('s_lshl_b32 s57, s%d, 17' % sI)
    a('s_add_u32 s56, s56, s57')
    a('s_lshr_b32 s57, s%d, 1' % sW)
    a('s_lshl_b32 s57, s57, 16')
    a('s_add_u32 s56, s56, s57')
    a('s_add_u32 s56, s56, 0x%x' % WS_KV)
    a('s_and_b32 s57, s%d, 1' % sW)
    a('s_lshl_b32 s58, s57, 11')
    a('s_add_u32 s58, s58, s56')
    a('s_lshl_b32 s59, s57, 12')
    a('s_add_u32 s59, s59, s56')
    a('s_add_u32 s59, s59, 16384')
    cnt = [0]
    def conv(b0, b1, dst=None):
        T = 128 + 16 * (cnt[0] % 4); cnt[0] += 1
        if dst is None: dst = T + 8
        for e in range(4): a('v_accvgpr_read_b32 v%d, a%d' % (T + e, b0 * 4 + e))
        for e in range(4): a('v_accvgpr_read_b32 v%d, a%d' % (T + 4 + e, b1 * 4 + e))
        for e in range(4): a('v_cvt_pk_bf16_f32 v%d, v%d, v%d' % (dst + e, T + 2 * e, T + 2 * e + 1))
        return dst
    def store(T, sb, off):
        return ['s_add_u32 s63, s%d, %d' % (sb, off & ~4095),
                ('kv', 'buffer_store_dwordx4 %s, v%d, %s, s63 offen offset:%d %s' % (vr(T, 4), V_LANE16, sr(WS, 4), off & 4095, WT))]
    def jobs(rp):
        J = []
        for rb in (2 * rp, 2 * rp + 1):
            for s in range(2): J.append((rb * 8 + 2 * s, rb * 8 + 2 * s + 1, 16, (rb // 4) * 32768 + ((rb % 4) * 4 + s) * 1024))
        rb = 2 * rp
        for nb in range(4): J.append((rb * 8 + 4 + nb, (rb + 1) * 8 + 4 + nb, 17, (rb // 4) * 32768 + (((rb % 4) // 2) * 8 + nb) * 1024))
        return J
    a('s_mov_b32 s16, s58'); a('s_mov_b32 s17, s59')
    a('s_lshl_b32 s57, s%d, 14' % sW)
    a('v_add_u32 v26, s57, v%d' % V_LANE16)
    J1 = jobs(3) + jobs(2); J2 = jobs(1) + jobs(0)
    for n_, (b0, b1, sb, off) in enumerate(J1[:8]): conv(b0, b1, 64 + 4 * n_)
    for k in range(4):
        for it in a_load(k): a(issue(it))
    a('s_waitcnt vmcnt(%d)' % vm.cnt(ids[('w', 0)]))
    a('s_barrier')
    for it in w_dma(2, 4): a(issue(it))
    for n_, (b0, b1, sb, off) in enumerate(J1[8:]): conv(b0, b1, 96 + 4 * n_)
    for n_, (b0, b1, sb, off) in enumerate(J2):
        T = conv(b0, b1)
        a('ds_write_b128 v26, %s offset:%d' % (vr(T, 4), 1024 * n_))
    kv_sched = {}
    KVEND = int(os.environ.get('KVEND', 14))
    def kstep(n_): return (n_ * KVEND) // 32
    for n_, (b0, b1, sb, off) in enumerate(J1):
        kv_sched.setdefault(kstep(n_), []).extend(store(64 + 4 * n_, sb, off))
        kv_sched.setdefault(kstep(n_) + 1, []).append('ds_read_b128 %s, v26 offset:%d' % (vr(64 + 4 * n_, 4), 1024 * n_))
    for n_, (b0, b1, sb, off) in enumerate(J2):
        kv_sched.setdefault(kstep(16 + n_), []).extend(store(64 + 4 * n_, sb, off))
    stamp(a, 6); cstamp(a, 3)
    sBASE, sK0, sK1, sT, sC0, sC1, sS1 = 56, 57, 58, 59, 60, 61, 62
    a('s_lshl_b32 s56, s%d, 20' % sH)
    a('s_lshl_b32 s59, s%d, 12' % sW)
    a('s_add_u32 s56, s56, s59')
    a('s_add_u32 s56, s56, 0x%x' % WS_KV)
    a('s_lshl_b32 s60, s%d, 13' % sW)
    a('s_add_u32 s60, s60, %d' % (65536 + 32768))
    a('s_add_u32 s61, s60, 16384')
    a('s_add_u32 s62, s56, 32768')
    a('s_add_u32 s57, s56, 65536')
    a('s_add_u32 s58, s57, 32768')
    a('v_add_u32 v%d, 16384, v%d' % (V_LANE16V, V_LANE16))
    a('v_and_b32 v%d, 7, v0' % V_PA)
    a('v_lshlrev_b32 v%d, 9, v%d' % (V_PA, V_PA))
    a('s_and_b32 s79, s2, 31')
    a('s_lshl_b32 s79, s79, 4')
    a('s_add_u32 s79, s79, 0x%x' % FK)
    kv_poll0 = 'buffer_load_dwordx4 v[20:23], v52, %s, s79 offen %s' % (sr(WS, 4), WT)
    kv_poll = 'buffer_load_dwordx4 v[208:211], v%d, %s, s79 offen %s' % (V_PA, sr(WS, 4), WT)
    def kv_dma(m0expr, voff, ssrc, tag):
        return [m0expr, 's_nop 0'] + [(tag, 'buffer_load_dwordx4 v%d, %s, s%d offen offset:%d lds' % (voff, sr(WS, 4), ssrc, 1024 * j)) for j in range(4)]
    def w_read(k, n):
        st, ks = k // 2, k % 2
        off = WSLOT[st % 3] - 65536
        grp = off // 65536; off %= 65536
        m, c = n // 4, n % 4
        return ['ds_read_b64_tr_b16 %s, v%d offset:%d' % (ar(P_WF + 4 * n + 2 * r, 2), P_WRD + 4 * grp + c, off + m * 8192 + (32 * ks + 16 * r) * 128) for r in range(2)]
    def p2_loop(nm):
        NB = 4 * nm; NS2 = 10
        for n in range(NB):
            for s in w_read(0, n): a(s)
        pend = []
        for k in range(2 * NS2):
            st, ks = k // 2, k % 2
            base = P_ACT + 16 * (k % 4)
            need = ids[('a', k)]
            if k == 18: need = max(need, ids['kvp'])
            if k == KVEND + 1:
                assert not any(x[0] == 'kv' for x in pend if not isinstance(x, str))
                need = max(need, ids['kv'])
            assert not any(x[0] == ('a', k) for x in pend if not isinstance(x, str))
            a('s_waitcnt vmcnt(%d) lgkmcnt(8)' % min(63, vm.cnt(need)))
            pend += kv_sched.get(k, [])
            if k == KVEND + 1: pend += [flag_store(75)]
            if k == 17: pend += [('kvp', kv_poll0)]
            if k == 18:
                gate(kv_poll0, 20, 4, 1, 63)
                pend += kv_dma('s_add_u32 m0, s59, 0', V_LANE16, sBASE, 'k0') + kv_dma('s_add_u32 m0, s59, 16384', V_LANE16, sS1, 'k1')
                pend += kv_dma('s_add_u32 m0, s59, 32768', V_LANE16, sK0, 'k2')
            if k == 19:
                pend += kv_dma('s_add_u32 m0, s59, 65536', V_LANE16V, sBASE, 'v0')
                pend += kv_dma('s_add_u32 m0, s59, 49152', V_LANE16, sK1, 'k3') + kv_dma('s_add_u32 m0, s59, %d' % (65536 + 16384), V_LANE16V, sS1, 'v1')
            if k > 0 and k + 3 < 2 * NS2: pend = a_load(k + 3) + pend
            for n in range(NB):
                if n % 4 == 0 and n > 0:
                    a('s_waitcnt lgkmcnt(%d)' % (8 if k < 2 * NS2 - 1 else min(8, 2 * (NB - n - 4))))
                for qi in range(4):
                    d = ar(P_ACCA + (n * 4 + qi) * 4, 4) if n < 8 else vr(P_ACCV + ((n - 8) * 4 + qi) * 4, 4)
                    a('%s %s, %s, %s, %s' % (MF16, d, ar(P_WF + 4 * n, 4), ar(base + 4 * qi, 4), '0' if k == 0 else d))
                    if qi < 3:
                        while pend and pend[0] == 's_nop 0': pend.pop(0)
                        if pend: a(issue(pend.pop(0)))
                if k + 1 < 2 * NS2:
                    if n == 0 and ks == 1:
                        assert not any(x[0] == ('w', st + 1) for x in pend if not isinstance(x, str))
                        a('s_waitcnt vmcnt(%d) lgkmcnt(0)' % min(63, vm.cnt(ids[('w', st + 1)])))
                        a('s_barrier')
                        if st + 3 < NS2: pend = pend + w_dma(st + 3, nm)
                    for s in w_read(k + 1, n): a(s)
            if k < 16: stamp(a, 1 + k, 'p2a')
            if k >= 4: stamp(a, k - 3, 'p2b')
        assert not pend
    qonly, qdone = name + '_qonly', name + '_qdone'
    a('s_cmp_eq_u32 s74, 0')
    a('s_cbranch_scc1 %s' % qonly)
    save = (vm.n, dict(ids))
    p2_loop(4)
    stamp(a, 7); cstamp(a, 4)
    a('s_lshl_b32 s64, s72, 10')
    a('s_lshl_b32 s65, s73, 10')
    a('s_lshl_b32 s66, s%d, 18' % sCT)
    a('s_add_u32 s66, s66, 0x%x' % WS_H)
    a('s_add_u32 s64, s64, s66')
    a('s_add_u32 s65, s65, s66')
    a('v_add_u32 v%d, %d, v%d' % (P_XOFF2, 128 * 1024, V_LANE16))
    a('s_nop 3')
    c2 = 0
    for qi in range(4):
        for s in range(2):
            T = 64 + 4 * (c2 % 8); c2 += 1
            for cc in range(2):
                g = P_ACCV + ((2 * s + cc) * 4 + qi) * 4; u = g + 64
                for e in range(4): a('v_mul_f32 v%d, v%d, v%d' % (g + e, g + e, u + e))
                for e in range(2): a('v_cvt_pk_bf16_f32 v%d, v%d, v%d' % (T + 2 * cc + e, g + 2 * e, g + 2 * e + 1))
            a(issue(('h', 'buffer_store_dwordx4 %s, v%d, %s, s%d offen offset:%d %s' % (vr(T, 4), (V_LANE16, P_XOFF2)[s], sr(WS, 4), 64 + qi // 2, (qi % 2) * 1024, WT))))
    a('s_waitcnt vmcnt(%d)' % vm.cnt(max(ids['k2'], ids['v0'])))
    a('s_branch %s' % qdone)
    a.label(qonly)
    vm.n, ids = save[0], dict(save[1])
    p2_loop(2)
    for it in helper_touch('wd', [0, 1], R4) + helper_touch('wo', [0, 1, 2, 3], R4):
        s_ = issue(it); a(s_.replace('v248', 'v64').replace('s17', 's64'))
    a('s_waitcnt vmcnt(0)')
    a.label(qdone)
    stamp(a, 8)
    a('s_barrier')
    sTHR, sBIG, s2W, sM0, sM1, sDYN, sE0, sE1, sCNT = 64, 65, 66, 67, 68, 69, 70, 71, 63
    def kread(i, p): return 'ds_read_b128 %s, v%d offset:%d' % (ar(A_RING + 4 * (i % R), 4), V_KRD, p * 16384 + i * 1024)
    def vread(i, p): return 'ds_read_b128 %s, v%d offset:%d' % (ar(A_RING + 4 * (i % R), 4), V_VRD, p * 16384 + i * 1024)
    a('v_mov_b32 v%d, v%d' % (V_KRD, V_LANE16))
    a('v_add_u32 v%d, 65536, v%d' % (V_VRD, V_LANE16))
    for i in range(D): a(kread(i, 0))
    a('s_mov_b32 s64, %s' % f2u(math.log2(math.e) / math.sqrt(128.0)))
    for qi in range(4):
        for s in range(4):
            T = 128 + 16 * ((qi * 4 + s) % 4)
            for cc in range(2):
                for e in range(4): a('v_accvgpr_read_b32 v%d, a%d' % (T + 4 * cc + e, P_ACCA + ((2 * s + cc) * 4 + qi) * 4 + e))
            for e in range(8): a('v_mul_f32 v%d, s64, v%d' % (T + e, T + e))
            for e in range(4): a('v_cvt_pk_bf16_f32 v%d, v%d, v%d' % (T + 8 + e, T + 2 * e, T + 2 * e + 1))
            for e in range(4): a('v_accvgpr_write_b32 a%d, v%d' % (A_Q[qi // 2] + ((qi % 2) * 4 + s) * 4 + e, T + 8 + e))
    a('v_and_b32 v5, 15, v0')
    a('v_lshrrev_b32 v6, 4, v0')
    a('v_lshlrev_b32 v6, 2, v6')
    a('v_sub_u32 v5, v5, v6')
    for r in range(4):
        a('v_cmp_gt_i32 vcc, %d, v5' % r)
        a('s_nop 1')
        a('v_cndmask_b32 v%d, 0, 1.0, vcc' % (TRI + r))
    for e in range(4): a('v_mov_b32 v%d, 0x3f803f80' % (V_ONES + e))
    for j in range(16): a('v_mov_b32 v%d, 0' % (NEGM + j))
    a('s_mov_b32 s%d, %s' % (sTHR, f2u(THR)))
    a('s_mov_b32 s%d, %s' % (sBIG, f2u(-BIG)))
    a('s_lshl_b32 s%d, s%d, 1' % (s2W, sW))
    a(kv_poll)
    stamp(a, 9)
    def prefill(st, p, tau, dyn=False):
        for qb in range(2):
            for kb in range(4):
                kap = 4 * tau + kb - qb
                S = SB[st][p] + (kb * 2 + qb) * 4
                if kap < 0:
                    for r in range(4): a('v_mov_b32 v%d, v%d' % (S + r, NEGM + (st * 2 + qb) * 4))
                    continue
                big = sDYN if dyn else sBIG
                a('s_cmp_eq_u32 s%d, %d' % (s2W, kap)); a('s_cselect_b32 s%d, s%d, 0' % (sM0, big))
                a('s_cmp_lt_u32 s%d, %d' % (s2W, kap)); a('s_cselect_b32 s%d, s%d, 0' % (sM1, big))
                a('v_add_f32 v%d, s%d, v%d' % (V_T0, sM1, NEGM + (st * 2 + qb) * 4))
                for r in range(4): a('v_fma_f32 v%d, v%d, s%d, v%d' % (S + r, TRI + r, sM0, V_T0))
        a('s_nop 1')
    def qk_mf(sets, p):
        G = []
        for f in range(16):
            kb, ds = f // 4, f % 4; L = []
            for st, inpl in sets:
                for qb in range(2):
                    d = vr(SB[st][p] + (kb * 2 + qb) * 4, 4)
                    c = vr(NEGM + (st * 2 + qb) * 4, 4) if (ds == 0 and not inpl) else d
                    L.append('%s %s, %s, %s, %s' % (MF16, d, ar(A_RING + 4 * (f % R), 4), ar(A_Q[st] + (qb * 4 + ds) * 4, 4), c))
            G.append(L)
        return G
    def pv_mf(sets, p):
        G = []
        for f in range(16):
            ks, db = f // 8, f % 8; L = []
            for st in sets:
                for qb in range(2):
                    d = ar(A_O[st] + (db * 2 + qb) * 4, 4)
                    L.append('%s %s, %s, %s, %s' % (MF16, d, ar(A_RING + 4 * (f % R), 4), vr(PB[st][p] + (qb * 2 + ks) * 4, 4), d))
            G.append(L)
        return G
    rare_sites = []
    pk = Packer(a)
    def lg_items(n, skip_last):
        return [dict(lo=i, hi=i, lg=i + 4) for i in range(3, n, 4) if not (i == n - 1 and skip_last)]
    def ladds(ex):
        return ['v_add_f32 v%d, v%d, v%d' % (V_L + st * 2 + qb, V_L + st * 2 + qb, LT + (st * 2 + qb) * 4) for st in ex for qb in range(2)]
    def iteration(p, qk, ex, pv, prev_ex, nxt='k', dk=True, dv=True, loop_ctr=None, post_bar=(), pre_bar=()):
        groups = []; rs = []
        if qk:
            groups += qk_mf(qk, p); rs += [kread(i, p) for i in range(16)]
        groups += pv_mf(pv, p); rs += [vread(i, p) for i in range(16)]
        n = len(groups)
        nx = {'k': [kread(i, 1 - p) for i in range(D)], 'v': [vread(i, 1 - p) for i in range(D)], None: [None] * D}[nxt]
        rds = rs[D:] + nx
        bg = n - D
        it = [dict(lo=0, hi=0, ins=s, v=True) for s in ladds(prev_ex)]
        nd = 0
        if dv:
            it.append(dict(lo=0, hi=1, ins='s_sub_u32 m0, s%d, s%d' % ((sC0, sC1)[p], sT)))
            for j, i in enumerate((2, 4, 5, 6)):
                it.append(dict(lo=i, hi=i + 1, ins='buffer_load_dwordx4 v%d, %s, s%d offen offset:%d lds' % (V_LANE16V, sr(WS, 4), (sK0, sK1)[p], 1024 * j)))
            nd += 4
        if dk:
            it.append(dict(lo=8, hi=9, ins='s_add_u32 m0, s%d, %d' % (sT, p * 16384)))
            it.append(dict(lo=8, hi=9, ins='s_add_u32 s%d, s%d, 32768' % ((sK0, sK1)[p], (sK0, sK1)[1 - p])))
            for j, i in enumerate((10, 12, 14, 16)):
                it.append(dict(lo=i, hi=i + 1, ins='buffer_load_dwordx4 v%d, %s, s%d offen offset:%d lds' % (V_LANE16, sr(WS, 4), (sK0, sK1)[p], 1024 * j)))
            nd += 4
        if p == 1:
            if qk: it.append(dict(lo=16 - D, hi=bg - 1, ins='v_xor_b32 v%d, 32768, v%d' % (V_KRD, V_KRD), v=True))
            it.append(dict(lo=bg - 1 if nxt == 'v' else bg, hi=bg - 1 if nxt == 'v' else n - 1, ins='v_xor_b32 v%d, 32768, v%d' % (V_VRD, V_VRD), v=True))
            it.append(dict(lo=13, hi=n - 1, ins='s_xor_b32 s%d, s%d, 32768' % (sT, sT)))
        if nxt is not None:
            it.append(dict(lo=bg - 3, hi=bg - 2, ins='s_waitcnt vmcnt(%d)' % nd))
            it.append(dict(lo=bg - 1, hi=bg - 1, ins='s_barrier'))
        it += lg_items(n, nxt is None)
        it.sort(key=lambda x: (x['hi'], x['lo']))
        lo0 = bg if nxt is not None else 0
        for j, s in enumerate(post_bar):
            it.append(dict(lo=lo0, hi=n - 1, ins=s))
        fin = []
        if ex:
            lts = [LT + (st * 2 + qb) * 4 for st in ex for qb in range(2)]
            if len(lts) == 2: fin.append('v_max_f32 v%d, v%d, v%d' % (V_T0, lts[0], lts[1]))
            else:
                fin.append('v_max3_f32 v%d, v%d, v%d, v%d' % (V_T0, lts[0], lts[1], lts[2]))
                fin.append('v_max_f32 v%d, v%d, v%d' % (V_T0, V_T0, lts[3]))
            fin.append('v_cmp_lt_f32 vcc, s%d, v%d' % (sTHR, V_T0))
        pk.run(groups, rds, it, [(st, 1 - p) for st in ex], [], fin, (1, p) if qk else None, True)
        if loop_ctr: a('s_sub_u32 s%d, s%d, 1' % (loop_ctr[0], loop_ctr[0]))
        if ex:
            stub, back = a.newlabel(name + '_rs'), a.newlabel(name + '_rb')
            a('s_cbranch_vccnz %s' % stub)
            a.label(back)
            rare_sites.append((stub, back, 1 - p, ex))
        if loop_ctr: a('s_cbranch_scc0 %s' % loop_ctr[1])
    def epilogue(st):
        a('s_lshl_b32 s%d, s%d, 10' % (sE0, sQ[st]))
        a('s_lshl_b32 s%d, s%d, 19' % (sE1, sH))
        a('s_add_u32 s%d, s%d, s%d' % (sE0, sE0, sE1))
        a('s_add_u32 s%d, s%d, 0x%x' % (sE0, sE0, WS_CTX))
        a('v_rcp_f32 v%d, v%d' % (V_T0, V_L + st * 2))
        a('v_rcp_f32 v%d, v%d' % (V_T1, V_L + st * 2 + 1))
        a('s_nop 4')
        c3 = 0
        for s in range(4):
            for qb in range(2):
                T = SB[st][0] + 16 * (c3 % 4); c3 += 1
                for cc in range(2):
                    for e in range(4): a('v_accvgpr_read_b32 v%d, a%d' % (T + 4 * cc + e, A_O[st] + ((2 * s + cc) * 2 + qb) * 4 + e))
                for e in range(8): a('v_mul_f32 v%d, v%d, v%d' % (T + e, T + e, (V_T0, V_T1)[qb]))
                for e in range(4): a('v_cvt_pk_bf16_f32 v%d, v%d, v%d' % (T + 8 + e, T + 2 * e, T + 2 * e + 1))
                if qb == 0: a('s_add_u32 s%d, s%d, %d' % (sE1, sE0, s * 128 * 1024))
                a(issue(('ctx', 'buffer_store_dwordx4 %s, v%d, %s, s%d offen offset:%d %s' % (vr(T + 8, 4), V_LANE16, sr(WS, 4), sE1, qb * 1024, WT))))
    a('s_cmp_eq_u32 s%d, 0' % sI)
    a('s_cselect_b32 s%d, s%d, 0' % (sDYN, sBIG))
    prefill(0, 0, 0, dyn=True)
    a('s_waitcnt lgkmcnt(%d)' % (D - 4))
    both = [(0, True), (1, False)]
    rds = [kread(i, 0) for i in range(D, 16)] + [kread(i, 1) for i in range(D)]
    zero = ['v_accvgpr_write_b32 a%d, 0' % i for i in range(128)] + ['v_mov_b32 v%d, 0' % (V_L + j) for j in range(4)]
    pk.run(qk_mf(both, 0), rds, lg_items(16, False), [], zero, [], None, False)
    a('s_nop 3')
    for st in range(2):
        for qb in range(2):
            for s in max_ops(st, 0, qb, V_T0, V_T1): a(s)
            for e in range(4): a('v_sub_f32 v%d, 0, v%d' % (NEGM + (st * 2 + qb) * 4 + e, V_T0))
    prefill(0, 1, 1, dyn=True)
    rds = [kread(i, 1) for i in range(D, 16)] + [kread(i, 0) for i in range(D)]
    it = lg_items(16, False) + [dict(lo=16 - D - 1, hi=16 - D - 1, ins='v_xor_b32 v%d, 32768, v%d' % (V_KRD, V_KRD), v=True)]
    it.sort(key=lambda x: (x['hi'], x['lo']))
    pk.run(qk_mf(both, 1), rds, it, [(1, 0), (0, 0)], [], [], (1, 1), False, sub=True)
    a('s_waitcnt vmcnt(0)')
    a(flag_store(76)[1])
    gate(kv_poll, 208, 4, 1, 63)
    stamp(a, 10); cstamp(a, 5)
    lA, lA_skip, lA_tail2 = name + '_loopA', name + '_skipA', name + '_tail2A'
    a('s_cmp_eq_u32 s%d, 0' % sI)
    a('s_cbranch_scc1 %s' % lA_tail2)
    a('s_sub_u32 s%d, s%d, 2' % (sCNT, sI))
    a('s_cbranch_scc1 %s' % lA_skip)
    a.raw('.p2align 6')
    a.label(lA)
    dn = [(0, False), (1, False)]; BA = [1, 0]
    iteration(0, dn, BA, [0, 1], BA)
    iteration(1, dn, BA, [0, 1], BA, loop_ctr=(sCNT, lA))
    a.label(lA_skip)
    prefill(0, 0, 0)
    iteration(0, both, BA, [0, 1], BA)
    prefill(0, 1, 1)
    iteration(1, both, BA, [0, 1], BA)
    a.label(lA_tail2)
    l7, lBtail2 = name + '_i7', name + '_tail2B'
    a('s_cmp_eq_u32 s%d, 7' % sI)
    a('s_cbranch_scc1 %s' % l7)
    iteration(0, [(1, False)], BA, [0, 1], BA)
    iteration(1, [(1, False)], [1], [0, 1], BA)
    epilogue(0)
    lB = name + '_loopB'
    a('s_lshl_b32 s%d, s%d, 1' % (sCNT, sI))
    a('s_sub_u32 s%d, 12, s%d' % (sCNT, sCNT))
    a.raw('.p2align 6')
    a.label(lB)
    iteration(0, [(1, False)], [1], [1], [1])
    iteration(1, [(1, False)], [1], [1], [1], loop_ctr=(sCNT, lB))
    prefill(1, 0, 0)
    iteration(0, [(1, True)], [1], [1], [1], dk=False)
    prefill(1, 1, 1)
    iteration(1, [(1, True)], [1], [1], [1], dk=False, nxt='v')
    a('s_branch %s' % lBtail2)
    a.label(l7)
    prefill(1, 0, 0)
    iteration(0, [(1, True)], BA, [0, 1], BA, dk=False)
    prefill(1, 1, 1)
    iteration(1, [(1, True)], [1], [0, 1], BA, dk=False, nxt='v')
    epilogue(0)
    a.label(lBtail2)
    stamp(a, 11); cstamp(a, 6)
    AH, AC, WD4, WO4, X4, OUT = R1, R2, R3, R4, R5, 4
    sRO, sRT, sCT4, sAC, sWW, sVAL, sXO, sSW, sLD, sW2, sAC0, sWW0 = 8, 9, 10, 11, 12, 74, 13, 18, 19, 20, 26, 27
    sS1, sS0, sR0, sR1 = 16, 17, 21, 62
    WS_EX = 0x8000000
    FX = WS_FLG + 24576
    a('s_lshr_b32 s67, s2, 3')
    a('s_cmp_lt_u32 s67, 30'); a('s_cselect_b32 s%d, 1, 0' % sVAL)
    a('s_min_u32 s67, s67, 29')
    a('s_mul_i32 s68, s67, 205'); a('s_lshr_b32 s68, s68, 10')
    a('s_mul_i32 s69, s68, 5'); a('s_sub_u32 s%d, s67, s69' % sCT4)
    a('s_and_b32 s69, s2, 7'); a('s_mul_i32 s69, s69, 6'); a('s_add_u32 s69, s69, s68')
    a('s_lshr_b32 s%d, s69, 4' % sRO); a('s_and_b32 s%d, s69, 15' % sRT)
    for s in srd('x', X4) + srd('out', OUT): a(s)
    a('s_add_u32 s70, s%d, 2' % sRO); a('s_cmp_eq_u32 s%d, 0' % sRO); a('s_cselect_b32 s71, 0, 3'); a('s_sub_u32 s70, s70, s71')
    a('s_cmp_eq_u32 s%d, 0' % sRO); a('s_cselect_b32 s71, 40, 44'); a('s_mul_i32 s71, s71, s%d' % sVAL)
    a('s_mul_i32 s67, s%d, %d' % (sRO, 18 * 131072)); a('s_add_u32 s67, s67, 0x%x' % WS_H)
    a('s_add_u32 s%d, s28, s67' % AH); a('s_addc_u32 s%d, s29, 0' % (AH + 1)); a('s_mul_i32 s%d, s%d, %d' % (AH + 2, sVAL, 18 * 131072))
    a('s_mul_i32 s67, s70, %d' % (44 * 131072)); a('s_add_u32 s67, s67, 0x%x' % WS_CTX)
    a('s_add_u32 s%d, s28, s67' % AC); a('s_addc_u32 s%d, s29, 0' % (AC + 1)); a('s_lshl_b32 s%d, s71, 17' % (AC + 2))
    a('s_mul_i32 s67, s%d, %d' % (sRO, 18 * 32 * 1280))
    a('s_add_u32 s%d, s22, s67' % WD4); a('s_addc_u32 s%d, s23, 0' % (WD4 + 1)); a('s_mul_i32 s%d, s%d, %d' % (WD4 + 2, sVAL, 18 * 32 * 1280))
    a('s_mul_i32 s67, s70, %d' % (44 * 32 * 1280))
    a('s_add_u32 s%d, s14, s67' % WO4); a('s_addc_u32 s%d, s15, 0' % (WO4 + 1)); a('s_mul_i32 s%d, s71, %d' % (WO4 + 2, 32 * 1280))
    for r_ in (AH, AC, WD4, WO4): a('s_mov_b32 s%d, 0x00020000' % (r_ + 3))
    a('s_cmp_eq_u32 s%d, 2' % sRO); a('s_cselect_b32 s%d, 1, 0' % sSW)
    VA0, VA1, VWO, VRD, VX, VPL = 16, 17, 18, 32, 20, 62
    a('s_lshl_b32 s%d, s%d, 2' % (sAC, sRT)); a('s_add_u32 s%d, s%d, s%d' % (sAC, sAC, sW))
    a('s_lshl_b32 s67, s%d, 1' % sAC); a('s_add_u32 s67, s67, s%d' % sSW)
    a('s_mul_i32 s%d, s67, %d' % (sXO, 16 * 1280)); a('s_lshl_b32 s68, s%d, 8' % sCT4); a('s_add_u32 s%d, s%d, s68' % (sXO, sXO))
    a('s_lshl_b32 s%d, s%d, 11' % (sAC, sAC)); a('s_mov_b32 s%d, s%d' % (sAC0, sAC))
    a('s_lshl_b32 s67, s%d, 10' % sSW)
    a('v_add_u32 v%d, s67, v%d' % (VA0, V_LANE16))
    a('v_xor_b32 v%d, 1024, v%d' % (VA1, VA0))
    a('s_mul_i32 s%d, s%d, %d' % (sWW, sW, 16 * 1280)); a('s_add_u32 s%d, s%d, s68' % (sWW, sWW)); a('s_mov_b32 s%d, s%d' % (sWW0, sWW))
    a('v_lshrrev_b32 v5, 3, v0'); a('v_mul_u32_u24 v5, 1280, v5')
    a('v_bfe_u32 v6, v0, 1, 2'); a('v_bfe_u32 v7, v0, 4, 2'); a('v_xor_b32 v6, v6, v7')
    a('v_lshl_add_u32 v5, v6, 5, v5'); a('v_and_b32 v6, 1, v0')
    a('v_lshl_add_u32 v%d, v6, 4, v5' % VWO)
    a('v_add_u32 v%d, %d, v%d' % (VWO + 1, 8 * 1280 - 1024, VWO))
    a('v_lshrrev_b32 v5, 2, v0'); a('v_lshlrev_b32 v5, 7, v5'); a('v_and_b32 v6, 3, v0'); a('v_lshl_add_u32 v5, v6, 3, v5')
    a('v_bfe_u32 v6, v0, 3, 2')
    for c in range(4):
        a('v_xor_b32 v7, %d, v6' % c)
        a('v_lshl_add_u32 v%d, v7, 5, v5' % (VRD + c))
        a('v_add_u32 v%d, 65536, v%d' % (VRD + 4 + c, VRD + c))
    a('v_and_b32 v5, 15, v0'); a('v_mul_u32_u24 v5, 1280, v5'); a('v_lshrrev_b32 v6, 4, v0')
    a('v_lshl_add_u32 v%d, v6, 3, v5' % VX)
    a('v_and_b32 v%d, 0x1f0, v%d' % (VPL, V_LANE16))
    a('v_add_u32 v21, 4096, v%d' % V_LANE16)
    a('v_mov_b32 v22, 0')
    a('s_sub_u32 s67, 15, s%d' % sRT); a('s_min_u32 s67, s67, s%d' % sRT)
    a('s_lshl_b32 s79, s67, 9'); a('s_add_u32 s79, s79, 0x%x' % FH)
    a('s_lshl_b32 s76, s%d, 9' % sRT); a('s_add_u32 s76, s76, 0x%x' % FC)
    a('s_mul_i32 s67, s%d, 5' % sRT); a('s_add_u32 s67, s67, s%d' % sCT4)
    a('s_lshl_b32 s68, s67, 2'); a('s_add_u32 s68, s68, s%d' % sW)
    a('s_lshl_b32 s75, s68, 5'); a('s_add_u32 s75, s75, 0x%x' % FX)
    a('s_lshl_b32 s68, s68, 16'); a('s_add_u32 s68, s68, 0x%x' % WS_EX)
    a('s_add_u32 s67, s%d, 1' % sRO); a('s_lshl_b32 s67, s67, 13'); a('s_add_u32 s%d, s68, s67' % sS1)
    a('s_cmp_eq_u32 s%d, 0' % sRO); a('s_cselect_b32 s%d, s68, 0x20000000' % sS0)
    a('s_lshl_b32 s67, s%d, 13' % sSW); a('s_add_u32 s%d, s68, s67' % sR0)
    a('s_sub_u32 s67, 3, s%d' % sSW); a('s_lshl_b32 s67, s67, 13'); a('s_add_u32 s%d, s68, s67' % sR1)
    a('s_lshl_b32 s56, s%d, 2' % sRO); a('s_add_u32 s56, s56, s75')
    a('s_lshl_b32 s%d, s%d, 11' % (sLD, sW))
    h_poll = 'buffer_load_dwordx4 v[192:195], v%d, %s, s79 offen %s' % (VPL, sr(WS, 4), WT)
    c_poll = 'buffer_load_dwordx4 v[24:27], v%d, %s, s76 offen %s' % (VPL, sr(WS, 4), WT)
    b_poll = 'buffer_load_dwordx4 v[24:27], v22, %s, s75 offen %s' % (sr(WS, 4), WT)
    s_poll = 'buffer_load_dwordx4 v[24:27], v22, %s, s75 offen offset:16 %s' % (sr(WS, 4), WT)
    WF4 = 64; ND4 = 18; NK = 62; LA4 = 12
    def accB(n, q): return 128 + (q * 8 + n) * 4
    def accS(n, q): return 192 + (q * 8 + n) * 4
    def act4(k, q): r = k % 16; return (r * 8 + q * 4) if r < 8 else (128 + (r - 8) * 8 + q * 4)
    def w4_dma(st):
        L = []
        if st == ND4 // 2: L.append('s_mov_b32 s%d, s%d' % (sWW, sWW0))
        r_ = WD4 if st < ND4 // 2 else WO4
        for m in range(2):
            L += ['s_add_u32 m0, s%d, %d' % (sLD, (st % 8) * 16384 + m * 8192), 's_nop 0' if m == 0 else 's_add_u32 s%d, s%d, 128' % (sW2, sWW)]
            L += [(('w4', st), 'buffer_load_dwordx4 v%d, %s, s%d offen offset:%d lds' % (VWO + j, sr(r_, 4), sWW if m == 0 else sW2, 1024 * j)) for j in range(2)]
        L.append('s_add_u32 s%d, s%d, %d' % (sWW, sWW, 64 * 1280))
        return L
    def a4_load(k):
        L = ['s_mov_b32 s%d, s%d' % (sAC, sAC0)] if k == ND4 else []
        return L + [(('a4', k), 'buffer_load_dwordx4 %s, v%d, %s, s%d offen' % (ar(act4(k, q), 4), (VA0, VA1)[q], sr(AH if k < ND4 else AC, 4), sAC)) for q in range(2)] + \
               ['s_add_u32 s%d, s%d, %d' % (sAC, sAC, 128 * 1024)]
    def w4_read(k, n):
        st, ks = (k // 2) % 8, k % 2
        return ['ds_read_b64_tr_b16 %s, v%d offset:%d' % (vr(WF4 + 4 * n + 2 * r, 2), VRD + 4 * (st // 4) + n % 4, (st % 4) * 16384 + (n // 4) * 8192 + (32 * ks + 16 * r) * 128) for r in range(2)]
    def sends(accf, tag):
        return [(tag, 'buffer_store_dwordx4 %s, v%d, %s, s%d offen offset:%d %s' % (vr(accf(n, q), 4), (V_LANE16, 21)[n // 4], sr(WS, 4), (sS0, sS1)[q], (n % 4) * 1024, WT))
                for q in (1, 0) for n in range(8)]
    def recvs(dst, tag, agpr=False):
        return [(tag, 'buffer_load_dwordx4 %s, v%d, %s, s%d offen offset:%d' % ((ar if agpr else vr)(dst + (n * 2 + j) * 4, 4), (V_LANE16, 21)[n // 4], sr(WS, 4), (sR0, sR1)[j], (n % 4) * 1024))
                for n in range(8) for j in range(2)]
    a(h_poll)
    vm.n = 0; ids = {}
    e1 = [flag_store(77)[1]] + [issue(it) for it in w4_dma(0) + w4_dma(1)]
    iteration(0, None, [1], [1], [1], dk=False, dv=False, nxt='v', post_bar=e1)
    gate(h_poll, 192, 4, 1, 63)
    e2 = []
    for k in range(LA4):
        e2 += a4_load(k)
        if k in (3, 7): e2 += w4_dma(2 + k // 4)
    iteration(1, None, [], [1], [1], dk=False, dv=False, nxt=None, post_bar=[issue(it) for it in e2])
    stamp(a, 12)
    epilogue(1)
    notile = name + '_notile'
    a('s_cmp_eq_u32 s%d, 0' % sVAL)
    a('s_cbranch_scc1 %s' % notile)
    a('s_waitcnt vmcnt(%d)' % vm.cnt(ids[('w4', 1)]))
    a('s_barrier')
    for n in range(8):
        for s_ in w4_read(0, n): a(s_)
    stamp(a, 13)
    XR4 = 96
    RBa = 192
    pend = w4_dma(4) + w4_dma(5) + w4_dma(6) + w4_dma(7)
    nxt_a = LA4
    KG = 11
    for k in range(NK):
        assert not any(x[0] == ('a4', k) for x in pend if not isinstance(x, str))
        need = ids[('a4', k)]
        if k == 2: need = max(need, ids['ctx'])
        if k == KG: need = max(need, ids['cp'])
        if k == 30:
            assert not any(x[0] == 'sb' for x in pend if not isinstance(x, str))
            need = max(need, ids['sb'])
        if k == 44: need = max(need, ids['bp'])
        a('s_waitcnt vmcnt(%d) lgkmcnt(12)' % min(63, vm.cnt(need)))
        if k == 2: pend = [flag_store(78)] + pend
        if k == KG - 2: pend = [('cp', c_poll)] + pend
        if k == KG: gate(c_poll, 24, 4, 1, 63)
        if k == ND4 + 1: pend += sends(accB, 'sb')
        if k == 30: pend = [flag_store(56), 's_add_u32 s56, s56, 16', 's_add_u32 s%d, s%d, 32768' % (sS0, sS0), 's_add_u32 s%d, s%d, 32768' % (sS1, sS1)] + pend
        if k == 42: pend = [('bp', b_poll)] + pend
        if k == 44:
            gate(b_poll, 24, 3, 1, 63)
            pend += recvs(RBa, 'rb', True) + ['s_add_u32 s%d, s%d, 32768' % (sR0, sR0), 's_add_u32 s%d, s%d, 32768' % (sR1, sR1)]
        if k == 52:
            pend += [('x4', 'buffer_load_dwordx2 %s, v%d, %s, s%d offen offset:%d' % (vr(XR4 + 2 * n, 2), VX, sr(X4, 4), sXO, 32 * n)) for n in range(8)]
        newa = []
        lim = min(NK, k + LA4 + 1) if k >= KG else ND4
        while nxt_a < min(lim, k + LA4 + 1) and len(newa) < 6:
            newa += a4_load(nxt_a); nxt_a += 1
        pend = newa + pend
        accf = accB if k < ND4 else accS
        for n in range(8):
            if n % 2 == 0 and n > 0: a('s_waitcnt lgkmcnt(%d)' % (12 if k < NK - 1 else 2 * (6 - n)))
            for q in range(2):
                d = vr(accf(n, q), 4)
                a('%s %s, %s, %s, %s' % (MF16, d, vr(WF4 + 4 * n, 4), ar(act4(k, q), 4), '0' if k in (0, ND4) else d))
                if q == 0:
                    while pend and pend[0] == 's_nop 0': pend.pop(0)
                    if pend: a(issue(pend.pop(0)))
                    if pend and isinstance(pend[0], str) and pend[0] != 's_nop 0': a(pend.pop(0))
            if k + 1 < NK:
                if n == 0 and k % 4 == 3:
                    st = k // 2
                    key = ('w4', min(st + 2, NK // 2 - 1))
                    assert not any(x[0] == key for x in pend if not isinstance(x, str))
                    a('s_waitcnt vmcnt(%d) lgkmcnt(0)' % min(63, vm.cnt(ids[key])))
                    a('s_barrier')
                    for s2_ in (st + 7, st + 8):
                        if s2_ < NK // 2: pend = pend + w4_dma(s2_)
                for s_ in w4_read(k + 1, n): a(s_)
        if k == ND4 - 1: stamp(a, 14); cstamp(a, 7)
        if k == ND4 + 39:
            assert not pend
            a('s_cmp_eq_u32 s%d, 0' % sRO)
            a('s_cbranch_scc1 %s_p4done' % name)
    assert not pend
    a.label(name + '_p4done')
    stamp(a, 15); cstamp(a, 8)
    a('s_mov_b32 s64, %s' % f2u(-math.log2(math.e)))
    a('s_mov_b32 s65, 0xffff0000')
    a('s_nop 5')
    for it in sends(accS, 'ss'): a(it[1])
    def rnd(r0, r1, t):
        a('v_cvt_pk_bf16_f32 v%d, v%d, v%d' % (t, r0, r1))
        a('v_lshlrev_b32 v%d, 16, v%d' % (r0, t))
        a('v_and_b32 v%d, s65, v%d' % (r1, t))
    def gate_calc(n):
        B = accB(n, 0); T = 64 + 8 * (n % 2)
        for e in range(8): a('v_accvgpr_read_b32 v%d, a%d' % (T + e, RBa + n * 8 + e))
        for e in range(4): a('v_add_f32 v%d, v%d, v%d' % (B + e, B + e, T + e))
        for e in range(4): a('v_add_f32 v%d, v%d, v%d' % (B + e, B + e, T + 4 + e))
        for h in range(2): rnd(B + 2 * h, B + 2 * h + 1, T)
        for e in range(4): a('v_mul_f32 v%d, s64, v%d' % (T + e, B + e))
        for e in range(4): a('v_exp_f32 v%d, v%d' % (T + e, T + e))
        for e in range(4): a('v_add_f32 v%d, 1.0, v%d' % (T + e, T + e))
        for e in range(4): a('v_rcp_f32 v%d, v%d' % (T + e, T + e))
        for e in range(4): a('v_mul_f32 v%d, v%d, v%d' % (B + e, B + e, T + e))
        for h in range(2): rnd(B + 2 * h, B + 2 * h + 1, T + 4)
        for h in range(2):
            x = XR4 + 2 * n + h; o = accB(n, 1) + 2 * h
            a('v_lshlrev_b32 v%d, 16, v%d' % (o, x)); a('v_and_b32 v%d, s65, v%d' % (o + 1, x))
    lfin = name + '_fin'
    a('s_cmp_lg_u32 s%d, 0' % sRO)
    a('s_cbranch_scc1 %s' % lfin)
    a('s_waitcnt vmcnt(0)')
    a(flag_store(56)[1])
    stamp(a, 16)
    stamp_flush(a, 17)
    a('s_endpgm')
    a.label(lfin)
    a('s_waitcnt vmcnt(16)')
    for n in range(3): gate_calc(n)
    a('s_waitcnt vmcnt(0)')
    a(flag_store(56)[1])
    for n in range(3, 6): gate_calc(n)
    a(s_poll)
    for n in range(6, 8): gate_calc(n)
    a('s_waitcnt vmcnt(0)')
    gate(s_poll, 24, 3, 1, 63)
    RS = 64
    for it in recvs(RS, 'rs'): a(it[1])
    for n in range(8):
        a('s_waitcnt vmcnt(%d)' % (14 - 2 * n + n))
        S = accS(n, 0); T = 40 + 2 * (n % 4)
        for e in range(4): a('v_add_f32 v%d, v%d, v%d' % (S + e, S + e, RS + 8 * n + e))
        for e in range(4): a('v_add_f32 v%d, v%d, v%d' % (S + e, S + e, RS + 8 * n + 4 + e))
        for h in range(2): rnd(S + 2 * h, S + 2 * h + 1, 48)
        for e in range(4): a('v_mul_f32 v%d, v%d, v%d' % (S + e, S + e, accB(n, 0) + e))
        for h in range(2): rnd(S + 2 * h, S + 2 * h + 1, 48)
        for e in range(4): a('v_add_f32 v%d, v%d, v%d' % (S + e, S + e, accB(n, 1) + e))
        for h in range(2): a('v_cvt_pk_bf16_f32 v%d, v%d, v%d' % (T + h, S + 2 * h, S + 2 * h + 1))
        a('buffer_store_dwordx2 %s, v%d, %s, s%d offen offset:%d' % (vr(T, 2), VX, sr(OUT, 4), sXO, 32 * n))
    stamp(a, 16)
    stamp_flush(a, 17)
    a('s_endpgm')
    a.label(notile)
    a('s_waitcnt vmcnt(0)')
    a(flag_store(78)[1])
    a.label(end)
    a('s_endpgm')
    for slow, ok, load_ins, chk, ts in slow_paths:
        a.label(slow)
        a('s_mov_b32 s%d, 0x8000' % ts)
        lp = a.newlabel(name + '_sp')
        a.label(lp)
        a('s_sleep 1')
        a(load_ins)
        a('s_waitcnt vmcnt(0)')
        for s in chk: a(s)
        a('s_nop 1')
        a('s_cbranch_vccz %s' % ok)
        a('s_sub_u32 s%d, s%d, 1' % (ts, ts))
        a('s_cbranch_scc0 %s' % lp)
        a('s_branch %s' % ok)
    for stub, back, pc, ex in rare_sites:
        a.label(stub)
        for st in sorted(ex): a('s_call_b64 s[100:101], %s_rare%d%d' % (name, pc, st))
        a('s_branch %s' % back)
    for pc in range(2):
        for st in range(2):
            a.label('%s_rare%d%d' % (name, pc, st))
            a('s_nop 7')
            for qb in range(2):
                for s in max_ops(st, pc, qb, V_T0, V_T1): a(s)
                a('v_max_f32 v%d, 0, v%d' % (V_T0, V_T0))
                a('v_exp_f32 v%d, -v%d' % (V_T1, V_T0))
                for e in range(4): a('v_sub_f32 v%d, v%d, v%d' % (NEGM + (st * 2 + qb) * 4 + e, NEGM + (st * 2 + qb) * 4 + e, V_T0))
                for pp in range(2):
                    for kb in range(4):
                        for r in range(4):
                            x = SB[st][pp] + (kb * 2 + qb) * 4 + r
                            a('v_sub_f32 v%d, v%d, v%d' % (x, x, V_T0))
                a('v_mul_f32 v%d, v%d, v%d' % (V_L + st * 2 + qb, V_L + st * 2 + qb, V_T1))
                for db in range(0, 8, 2):
                    regs = [A_O[st] + ((db + h) * 2 + qb) * 4 + e for h in range(2) for e in range(4)]
                    for e in range(8): a('v_accvgpr_read_b32 v%d, a%d' % (TMP + e, regs[e]))
                    for e in range(8): a('v_mul_f32 v%d, v%d, v%d' % (TMP + e, TMP + e, V_T1))
                    for e in range(8): a('v_accvgpr_write_b32 a%d, v%d' % (regs[e], TMP + e))
            for s in exp_ops(st, pc): a(s)
            if st == 1:
                for k, (s, _, _) in enumerate(exp_seq(1, 1 - pc)[:EARLY]): a('v_exp_f32 v%d, v%d' % (TMP + k, s))
            a('s_nop 7')
            a('s_setpc_b64 s[100:101]')
    kernel_desc(a, name, 512, 256)
    return a
```

```python
from common import *
import common
import math, copy
import k2 as K2
from k2 import VM, Packer, exp_seq, exp_ops, max_ops, EARLY
from k2 import V_LANE16, V_LANE16V, V_KRD, V_VRD, V_T0, V_T1, V_L, TRI, NEGM, LT, TMP, SB, PB, A_O, A_Q, A_RING, V_ONES, D, R, THR, BIG

WT = 'sc0 sc1'
WS_FLG = 0x7000000
FK, FH, FC, FL, FE = WS_FLG, WS_FLG + 4096, WS_FLG + 8192, WS_FLG + 16384, WS_FLG + 20480
PTR = dict(x=4, ckv=6, wq=8, wuk=10, wuv=12, wo=14, wg=18, wu=20, wd=22, out=24, dbg=26, ws=28)
WS, R1, R2, R3, R4, R5 = 32, 36, 40, 44, 48, 52
sW, sH, sI = 30, 31, 3
V_ONE, V_1 = 60, 61
V_PA, V_PD = 62, 24

SMODE = os.environ.get('SMODE', 'all')
def stamp(a, i, mode='all'):
    if not DIAG: return
    if mode != SMODE and i != 0: return
    a('s_memrealtime s[98:99]'); a('s_waitcnt lgkmcnt(0)'); a('s_mov_b32 s%d, s98' % (80 + i))
def cstamp(a, i, mode='cyc'):
    if not DIAG or mode != SMODE: return
    a('s_memrealtime s[98:99]'); a('s_waitcnt lgkmcnt(0)'); a('s_mov_b32 s%d, s98' % (80 + i + 8))
    a('s_memtime s[98:99]'); a('s_waitcnt lgkmcnt(0)'); a('s_mov_b32 s%d, s98' % (80 + i))
def stamp_flush(a, n):
    if not DIAG: return
    a('s_lshl_b32 s98, s2, 2'); a('s_add_u32 s98, s98, s%d' % sW); a('s_lshl_b32 s98, s98, 7')
    a('s_add_u32 s98, s98, 0x%x' % WS_STAMP)
    a('v_mov_b32 v0, 0')
    for i in range(n):
        a('v_mov_b32 v1, s%d' % (80 + i))
        a('buffer_store_dword v1, v0, %s, s98 offen offset:%d' % (sr(WS, 4), 4 * i))
        a('s_nop 1')

def srd(name, r, off=0, size=None):
    p = PTR[name]
    L = []
    if off:
        L += ['s_add_u32 s%d, s%d, 0x%x' % (r, p, off), 's_addc_u32 s%d, s%d, 0' % (r + 1, p + 1)]
    else:
        L += ['s_mov_b32 s%d, s%d' % (r, p), 's_mov_b32 s%d, s%d' % (r + 1, p + 1)]
    L += ['s_mov_b32 s%d, 0x%x' % (r + 2, SIZE[name] if size is None else size), 's_mov_b32 s%d, 0x00020000' % (r + 3)]
    return L

def gen_mega(a, name):
    kernel_begin(a, name)
    end = name + '_end'
    slow_paths = []
    def gate(load_ins, dreg, n, want, tmp_s):
        def chk():
            L = ['v_xor_b32 v%d, v%d, v%d' % (dreg + e, dreg + e, V_1) for e in range(n)]
            if n >= 3: L += ['v_or3_b32 v%d, v%d, v%d, v%d' % (dreg, dreg, dreg + 1, dreg + 2)]
            if n == 4: L += ['v_or_b32 v%d, v%d, v%d' % (dreg, dreg, dreg + 3)]
            L += ['v_cmp_ne_u32 vcc, 0, v%d' % dreg]
            return L
        slow, ok = a.newlabel(name + '_sl'), a.newlabel(name + '_ok')
        for s in chk(): a(s)
        a('s_nop 1')
        a('s_cbranch_vccnz %s' % slow)
        a.label(ok)
        slow_paths.append((slow, ok, load_ins, chk(), tmp_s))

    a('s_cmp_ge_u32 s2, 256')
    a('s_cbranch_scc1 %s' % end)
    stamp(a, 0)
    a('s_load_dwordx16 s[4:19], s[0:1], 0')
    a('s_load_dwordx8 s[20:27], s[0:1], 64')
    a('s_load_dwordx2 s[28:29], s[0:1], 96')
    a('v_lshrrev_b32 v1, 6, v0')
    a('v_and_b32 v0, 63, v0')
    a('v_readfirstlane_b32 s%d, v1' % sW)
    a('s_and_b32 s31, s2, 7')
    a('s_lshl_b32 s31, s31, 2')
    a('s_lshr_b32 s61, s2, 3')
    a('s_and_b32 s61, s61, 3')
    a('s_add_u32 s31, s31, s61')
    a('s_lshr_b32 s3, s2, 5')
    CKV, WUK, WUV, X, DBG = R1, R2, R3, R4, R5
    VA, VW = 8, 12
    a('v_lshrrev_b32 v6, 3, v0')
    a('v_lshlrev_b32 v6, 10, v6')
    a('v_lshrrev_b32 v7, 4, v0')
    a('v_and_b32 v12, 7, v0')
    a('v_xor_b32 v12, v12, v7')
    a('v_xor_b32 v13, 4, v12')
    a('v_lshl_add_u32 v12, v12, 4, v6')
    a('v_lshl_add_u32 v13, v13, 4, v6')
    for j in range(4): a('v_add_u32 v%d, %d, v%d' % (VA + j, j * (8192 - 1024), 12 + (j & 1)))
    a('v_bfe_u32 v16, v0, 1, 3')
    a('v_xor_b32 v16, v16, v7')
    a('v_xor_b32 v17, 4, v16')
    a('v_and_b32 v18, 1, v0')
    a('v_lshlrev_b32 v18, 4, v18')
    a('v_lshl_add_u32 v18, v7, 13, v18')
    a('v_lshl_add_u32 v16, v16, 5, v18')
    a('v_lshl_add_u32 v17, v17, 5, v18')
    for j in range(4): a('v_add_u32 v%d, %d, v%d' % (VW + j, j * (32768 - 1024), 16 + (j >> 1)))
    sA, sWo, sLA, sLW, sA2 = 56, 57, 58, 59, 60
    a('s_lshl_b32 s56, s%d, 2' % sI)
    a('s_add_u32 s56, s56, s%d' % sW)
    a('s_lshl_b32 s56, s56, 16')
    a('s_lshl_b32 s57, s%d, 17' % sW)
    a('s_lshl_b32 s58, s%d, 8' % sH)
    a('s_add_u32 s57, s57, s58')
    a('s_lshl_b32 s58, s%d, 13' % sW)
    a('s_lshl_b32 s59, s%d, 12' % sW)
    a('s_add_u32 s59, s59, 65536')
    a('v_lshrrev_b32 v2, 5, v0')
    a('v_and_b32 v3, 31, v0')
    a('s_lshl_b32 s61, s2, 2')
    a('s_add_u32 s61, s61, s%d' % sW)
    a('s_lshl_b32 s61, s61, 1')
    a('v_add_u32 v4, s61, v2')
    a('v_mul_u32_u24 v5, 1280, v4')
    a('v_lshl_add_u32 v5, v3, 3, v5')
    a('v_lshlrev_b32 v%d, 4, v0' % V_LANE16)
    vm = VM(); ids = {}
    def issue(it):
        if isinstance(it, str): return it
        ids[it[0]] = vm.op()
        return it[1]
    def p1_dma(st):
        slot = st & 1; t = ('p1', st)
        L = ['s_add_u32 m0, s%d, %d' % (sLA, slot * 32768), 's_add_u32 s%d, s%d, 32768' % (sA2, sA)]
        L += [(t, 'buffer_load_dwordx4 v%d, %s, s%d offen offset:%d lds' % (VA + j, sr(CKV, 4), sA, 1024 * j)) for j in range(4)]
        L += ['s_add_u32 m0, s%d, %d' % (sLW, slot * 32768), 's_add_u32 s%d, s%d, 128' % (sA, sA)]
        L += [(t, 'buffer_load_dwordx4 v%d, %s, s%d offen offset:%d lds' % (VW + j, sr(WUK, 4), sWo, 1024 * j)) for j in range(4)]
        L += ['s_add_u32 m0, s%d, %d' % (sLA, slot * 32768 + 4096), 's_nop 0']
        L += [(t, 'buffer_load_dwordx4 v%d, %s, s%d offen offset:%d lds' % (VA + j, sr(CKV, 4), sA2, 1024 * j)) for j in range(4)]
        L += ['s_add_u32 m0, s%d, %d' % (sLW, slot * 32768 + 16384), 's_nop 0']
        L += [(t, 'buffer_load_dwordx4 v%d, %s, s%d offen offset:%d lds' % (VW + j, sr(WUV, 4), sWo, 1024 * j)) for j in range(4)]
        L += ['s_add_u32 s%d, s%d, %d' % (sWo, sWo, 64 * 8192)]
        return L
    a('s_waitcnt lgkmcnt(0)')
    for n_, r_ in (('x', X), ('ckv', CKV), ('wuk', WUK), ('wuv', WUV), ('ws', WS)):
        for s in srd(n_, r_): a(s)
    XR = 192
    a('v_mov_b32 v52, 0')
    a('s_mov_b32 s79, 0x%x' % FE)
    a(issue(('ep', 'buffer_load_dword v%d, v52, %s, s79 offen %s' % (V_1, sr(WS, 4), WT))))
    for j in range(5): a(issue(('x', 'buffer_load_dwordx2 %s, v5, %s, 0 offen offset:%d' % (vr(XR + 2 * j, 2), sr(X, 4), 256 * j))))
    PFB = 'b' in os.environ.get('MX', '')
    if PFB:
        a('s_lshr_b32 s61, s2, 3'); a('s_lshl_b32 s61, s61, 2'); a('s_add_u32 s61, s61, s%d' % sW)
        a('v_lshlrev_b32 v20, 7, v0')
        a('s_lshl_b32 s62, s61, 14'); a('s_add_u32 s63, s62, 8192')
        a('v_bfe_u32 v22, v0, 3, 2'); a('v_lshlrev_b32 v22, 13, v22'); a('v_and_b32 v23, 7, v0'); a('v_lshl_add_u32 v22, v23, 7, v22')
        a('s_lshl_b32 s64, s61, 15'); a('s_and_b32 s65, s2, 7'); a('s_lshl_b32 s65, s65, 10'); a('s_add_u32 s64, s64, s65')
        a(issue(('pf', 'buffer_load_dword v240, v20, %s, s62 offen' % sr(CKV, 4))))
        a(issue(('pf', 'buffer_load_dword v241, v22, %s, s64 offen' % sr(WUK, 4))))
        a(issue(('pf', 'buffer_load_dword v242, v22, %s, s64 offen' % sr(WUV, 4))))
        a(issue(('pf', 'buffer_load_dword v243, v20, %s, s63 offen' % sr(CKV, 4))))
    for it in p1_dma(0) + p1_dma(1): a(issue(it))
    a('s_lshr_b32 s61, s2, 3')
    a('s_lshl_b32 s61, s61, 2')
    a('s_add_u32 s61, s61, s%d' % sW)
    TC, TW, TX = 48, 49, 50
    a('v_bfe_u32 v20, v0, 1, 4')
    a('v_lshlrev_b32 v20, 10, v20')
    a('v_and_b32 v21, 1, v0')
    a('v_lshl_add_u32 v20, v21, 7, v20')
    a('s_lshl_b32 s62, s61, 14')
    a('v_add_u32 v%d, s62, v20' % TC)
    a('v_and_b32 v20, 7, v0')
    a('v_lshlrev_b32 v20, 7, v20')
    a('s_lshl_b32 s62, s61, 13')
    a('s_and_b32 s63, s2, 7')
    a('s_lshl_b32 s63, s63, 10')
    a('s_add_u32 s62, s62, s63')
    a('v_add_u32 v%d, s62, v20' % TW)
    def pf_chunk(c):
        if PFB: return []
        return ['s_mov_b32 s16, %d' % ((c + 1) * 128 * 8192),
                ('pf', 'buffer_load_dword v240, v%d, %s, 0 offen offset:%d' % (TC, sr(CKV, 4), 256 * (c + 1))),
                ('pf', 'buffer_load_dword v241, v%d, %s, s16 offen' % (TW, sr(WUK, 4))),
                ('pf', 'buffer_load_dword v242, v%d, %s, s16 offen' % (TW, sr(WUV, 4)))]
    for it in pf_chunk(0): a(issue(it))
    if 'i' not in os.environ.get('MX', ''):
        a('s_getpc_b64 s[64:65]')
        a.label(name + '_pc')
        a('s_sub_u32 s64, s64, %s_pc-%s' % (name, name))
        a('s_subb_u32 s65, s65, 0')
        a('v_and_b32 v20, 7, v0')
        a('v_lshlrev_b32 v20, 7, v20')
        a('s_lshl_b32 s62, s61, 10')
        a('v_add_u32 v20, s62, v20')
        a('v_min_u32 v20, %s_codeend-%s-4, v20' % (name, name))
        a(issue(('pf', 'global_load_dword v249, v20, s[64:65]')))
    TQ, TG = 53, 54
    a('v_min_u32 v20, 39, v0')
    a('v_lshrrev_b32 v21, 3, v20')
    a('s_mul_i32 s62, s61, 5')
    a('v_add_u32 v21, s62, v21')
    a('v_and_b32 v20, 7, v20')
    a('v_lshlrev_b32 v20, 7, v20')
    a('v_lshl_add_u32 v20, v21, 13, v20')
    a('v_add_u32 v%d, s63, v20' % TQ)
    a('v_min_u32 v20, 19, v0')
    a('v_lshrrev_b32 v21, 2, v20')
    a('v_add_u32 v21, s62, v21')
    a('v_mul_u32_u24 v21, 3456, v21')
    a('s_and_b32 s63, s2, 7')
    a('s_lshl_b32 s63, s63, 2')
    a('s_mul_i32 s64, s63, 37'); a('s_lshr_b32 s64, s64, 8')
    a('s_sub_u32 s63, s63, s64')
    a('v_and_b32 v20, 3, v20')
    a('v_add_u32 v20, s63, v20')
    a('v_min_u32 v20, 26, v20')
    a('v_lshl_add_u32 v%d, v20, 7, v21' % TG)
    a('s_mul_i32 s62, s61, 20480')
    a('v_and_b32 v20, 31, v0')
    a('v_lshlrev_b32 v20, 7, v20')
    a('v_add_u32 v%d, s62, v20' % TX)
    def xn_touch(j):
        return ['s_mov_b32 s16, %d' % (4096 * j), ('pf', 'buffer_load_dword v243, v%d, %s, s16 offen' % (TX, sr(WS, 4)))]
    RA, RW = 16, 18
    a('s_lshr_b32 s61, s%d, 1' % sW)
    a('s_lshl_b32 s61, s61, 14')
    a('v_bfe_u32 v20, v0, 1, 3')
    a('v_xor_b32 v20, v20, v7')
    a('v_and_b32 v21, 15, v0')
    a('v_lshlrev_b32 v21, 7, v21')
    a('v_add_u32 v21, s61, v21')
    a('v_lshl_add_u32 v%d, v20, 4, v21' % RA)
    a('v_xor_b32 v20, 4, v20')
    a('v_lshl_add_u32 v%d, v20, 4, v21' % (RA + 1))
    a('v_bfe_u32 v22, v0, 2, 2')
    a('v_lshl_add_u32 v23, v7, 3, v22')
    a('v_lshlrev_b32 v23, 8, v23')
    a('v_and_b32 v24, 3, v0')
    a('v_lshl_add_u32 v23, v24, 3, v23')
    a('v_add_u32 v23, 65536, v23')
    a('v_bfe_u32 v22, v0, 2, 3')
    a('s_and_b32 s62, s%d, 1' % sW)
    a('s_lshl_b32 s62, s62, 2')
    a('v_xor_b32 v22, s62, v22')
    for nb in range(4):
        a('v_xor_b32 v24, %d, v22' % nb)
        a('v_lshl_add_u32 v%d, v24, 5, v23' % (RW + nb))
    P_XOFF2, P_WOFF, P_WRD = 32, 33, 40
    a('v_add_u32 v%d, 20480, v%d' % (P_XOFF2, V_LANE16))
    a('v_lshrrev_b32 v25, 3, v0')
    a('v_bfe_u32 v26, v0, 1, 2')
    a('v_bfe_u32 v27, v0, 4, 2')
    a('v_xor_b32 v26, v26, v27')
    a('v_lshlrev_b32 v26, 5, v26')
    a('v_and_b32 v27, 1, v0')
    a('v_lshl_add_u32 v26, v27, 4, v26')
    a('v_lshl_add_u32 v%d, v25, 13, v26' % P_WOFF)
    a('v_add_u32 v%d, %d, v%d' % (P_WOFF + 1, 8 * 8192 - 1024, P_WOFF))
    a('v_mul_u32_u24 v25, 3456, v25')
    a('v_add_u32 v%d, v25, v26' % (P_WOFF + 2))
    a('v_add_u32 v%d, %d, v%d' % (P_WOFF + 3, 8 * 3456 - 1024, P_WOFF + 2))
    a('v_lshrrev_b32 v25, 2, v0')
    a('v_lshlrev_b32 v25, 7, v25')
    a('v_and_b32 v26, 3, v0')
    a('v_lshl_add_u32 v25, v26, 3, v25')
    a('v_add_u32 v25, 65536, v25')
    a('v_bfe_u32 v26, v0, 3, 2')
    for c in range(4):
        a('v_xor_b32 v27, %d, v26' % c)
        a('v_lshl_add_u32 v%d, v27, 5, v25' % (P_WRD + c))
        a('v_add_u32 v%d, 65536, v%d' % (P_WRD + 4 + c, P_WRD + c))
    s_w = [64, 65, 66, 67]; s_q = [68, 69]; sLW2, sCT = 70, 71; sQ = [72, 73]
    a('s_mul_i32 s17, s%d, 37' % sH)
    a('s_lshr_b32 s17, s17, 8')
    a('s_sub_u32 s71, s%d, s17' % sH)
    a('s_lshl_b32 s70, s%d, 11' % sW)
    a('s_lshl_b32 s72, s%d, 2' % sI)
    a('s_add_u32 s72, s72, s%d' % sW)
    a('s_lshl_b32 s72, s72, 1')
    a('s_sub_u32 s73, 15, s%d' % sI)
    a('s_lshl_b32 s73, s73, 2')
    a('s_add_u32 s73, s73, s%d' % sW)
    a('s_lshl_b32 s73, s73, 1')
    a('s_mul_i32 s68, s72, 20480')
    a('s_mul_i32 s69, s73, 20480')
    assert WS_XN == 0
    a('s_lshl_b32 s64, s%d, 17' % sW)
    a('s_lshl_b32 s65, s%d, 8' % sH)
    a('s_add_u32 s64, s64, s65')
    a('s_add_u32 s65, s64, 128')
    a('s_mul_i32 s66, s%d, %d' % (sW, 16 * 3456))
    a('s_lshl_b32 s67, s%d, 7' % sCT)
    a('s_add_u32 s66, s66, s67')
    a('s_mov_b32 s67, s66')
    a('s_mul_i32 s61, s17, 7')
    a('s_sub_u32 s61, s%d, s61' % sH)
    a('s_cmp_eq_u32 s61, 6')
    a('s_cselect_b32 s74, 0, 0x%x' % SIZE['wg'])
    a('s_cmp_ge_u32 s%d, 27' % sCT)
    a('s_cselect_b32 s74, 0, s74')
    a('s_lshl_b32 s17, s17, 3'); a('s_add_u32 s17, s17, s%d' % sI)
    a('s_lshl_b32 s17, s17, 2'); a('s_add_u32 s17, s17, s%d' % sW)
    TH = 51
    a('s_lshl_b32 s61, s17, 13')
    a('s_cmp_eq_u32 s74, 0')
    a('s_cselect_b32 s61, s61, 0x20000000')
    a('v_lshlrev_b32 v25, 7, v0')
    a('v_add_u32 v%d, s61, v25' % TH)
    def helper_touch(nm_, rounds, r_):
        L = srd(nm_, r_)
        if 'h' in os.environ.get('MX', ''): rounds = []
        for j in rounds:
            L += ['s_mov_b32 s17, %d' % (j * 160 * 8192), ('pf', 'buffer_load_dword v248, v%d, %s, s17 offen' % (TH, sr(r_, 4)))]
        return L
    a('s_lshl_b32 s61, s%d, 2' % sW)
    a('s_lshl_b32 s76, s2, 4'); a('s_add_u32 s76, s76, s61')
    a('s_add_u32 s75, s76, 0x%x' % FK)
    a('s_add_u32 s77, s76, 0x%x' % FC)
    a('s_and_b32 s78, s76, 0x1ff')
    a('s_add_u32 s76, s76, 0x%x' % FH)
    a('s_sub_u32 s62, 15, s%d' % sI); a('s_lshl_b32 s62, s62, 9')
    a('s_add_u32 s78, s78, s62'); a('s_add_u32 s78, s78, 0x%x' % FC)
    a('v_cmp_eq_u32 vcc, 0, v0')
    a('v_mov_b32 v25, 0x20000000')
    a('s_lshl_b32 s26, s2, 2'); a('s_add_u32 s26, s26, 0x%x' % FL)
    a('v_cndmask_b32 v%d, v25, 0, vcc' % V_ONE)
    a('s_cmp_eq_u32 s%d, 0' % sW)
    a('s_cselect_b32 s26, s26, 0x20000000')
    a('s_lshl_b32 s27, s2, 2'); a('s_or_b32 s27, s27, s%d' % sW)
    a('s_cmp_eq_u32 s27, 0')
    a('s_cselect_b32 s27, s79, 0x20000000')
    a('s_mov_b32 s79, 0x%x' % FL)
    def flag_store(sreg, val=V_1):
        return ('fl', 'buffer_store_dword v%d, v%d, %s, s%d offen %s' % (val, V_ONE, sr(WS, 4), sreg, WT))
    a('s_waitcnt vmcnt(%d)' % vm.cnt(ids['x']))
    stamp(a, 1)
    a('s_mov_b32 s61, 0x9e3779b1')
    a('v_mul_lo_u32 v%d, s61, v%d' % (V_1, V_1))
    a('v_add_u32 v%d, 0x7f4a7c15, v%d' % (V_1, V_1))
    import k1
    b = Asm(); k1.ln_part(b, XR, WS, 4, 3)
    ln_lines = [l.strip() for l in b.lines]
    for l in ln_lines[:-20]: a(l)
    a('v_lshrrev_b32 v224, 3, v3')
    a('v_lshlrev_b32 v224, 9, v224')
    a('v_and_b32 v225, 3, v3')
    a('v_lshl_add_u32 v224, v225, 7, v224')
    a('v_and_b32 v225, 7, v4')
    a('v_lshl_add_u32 v224, v225, 4, v224')
    a('v_bfe_u32 v225, v3, 2, 1')
    a('v_lshl_add_u32 v224, v225, 3, v224')
    a('v_add_u32 v224, %d, v224' % (128 * 1024))
    for j in range(5): a('ds_write_b64 v224, %s offset:%d' % (vr(XR + 2 * j, 2), 2048 * j))
    a('s_lshl_b32 s61, s%d, 10' % sW)
    a('s_add_u32 s61, s61, %d' % (128 * 1024))
    a('v_add_u32 v225, s61, v%d' % V_LANE16)
    a('v_lshrrev_b32 v226, 3, v0')
    a('v_lshlrev_b32 v226, 8, v226')
    a('v_and_b32 v227, 7, v0')
    a('v_lshl_add_u32 v226, v227, 4, v226')
    a('s_lshr_b32 s61, s2, 1')
    a('s_mul_i32 s61, s61, 20480')
    a('s_and_b32 s62, s2, 1')
    a('s_lshl_b32 s62, s62, 7')
    a('s_add_u32 s61, s61, s62')
    a('s_lshl_b32 s62, s%d, 11' % sW)
    a('s_add_u32 s61, s61, s62')
    a('s_add_u32 s62, s61, 8192')
    a('s_add_u32 s63, s61, 16384')
    a('s_cmp_lt_u32 s%d, 2' % sW)
    a('s_cselect_b32 s63, s63, 0x20000000')
    xn_reads = ['ds_read_b128 %s, v225 offset:%d' % (vr(XR + 4 * t, 4), 4096 * t) for t in range(3)]
    xn_stores = [('xn', 'buffer_store_dwordx4 %s, v226, %s, s%d offen %s' % (vr(XR + 4 * t, 4), sr(WS, 4), 61 + t, WT)) for t in range(3)]
    MX = os.environ.get('MX', '')
    if 'x' in MX: xn_stores = []
    if 'p' in MX: xn_stores = [(t, s.replace(WT, '')) for t, s in xn_stores]
    WQ, WG, WU = R1, R2, R3
    WSLOT = [128 * 1024, 64 * 1024, 96 * 1024]
    P_ACCV, P_ACCA, P_WF, P_ACT = 128, 0, 128, 192
    srdm = [WQ, WQ, WG, WU]; stride = [8192, 8192, 3456, 3456]
    def w_dma(st, nm):
        L = []
        for m in range(nm):
            L.append('s_add_u32 m0, s%d, %d' % (sLW2, WSLOT[st % 3] + m * 8192))
            L.append('s_nop 0')
            for j in range(2):
                L.append((('w', st), 'buffer_load_dwordx4 v%d, %s, s%d offen offset:%d lds' % (P_WOFF + 2 * (m // 2) + j, sr(srdm[m], 4), s_w[m], 1024 * j)))
            L.append('s_add_u32 s%d, s%d, %d' % (s_w[m], s_w[m], 64 * stride[m]))
        return L
    def a_load(k):
        base = P_ACT + 16 * (k % 4)
        L = [(('a', k), 'buffer_load_dwordx4 %s, v%d, %s, s%d offen offset:%d' % (ar(base + 4 * qi, 4), (V_LANE16, P_XOFF2)[qi % 2], sr(WS, 4), s_q[qi // 2], 1024 * (k % 4))) for qi in range(4)]
        if k % 4 == 3: L += ['s_add_u32 s%d, s%d, 4096' % (s, s) for s in s_q]
        return L
    FR = 64
    def reads(slot, ks, fs):
        base = FR + 64 * fs
        def A(i): return ['ds_read_b128 %s, v%d offset:%d' % (vr(base + 4 * i, 4), RA + ks, slot * 32768 + i * 2048)]
        def W(mat, nb): return ['ds_read_b64_tr_b16 %s, v%d offset:%d' % (vr(base + 32 + 16 * mat + 4 * nb + 2 * r, 2), RW + nb,
                                slot * 32768 + mat * 16384 + (32 * ks + 4 * r) * 256) for r in range(2)]
        L = A(0)
        for nb in range(4): L += W(0, nb)
        for nb in range(4): L += W(1, nb)
        for i in range(1, 8): L += A(i)
        return L
    def mfmas(fs, first):
        base = FR + 64 * fs; L = []
        for rb in range(8):
            act = vr(base + 4 * rb, 4)
            for mat in range(2):
                for nb in range(4):
                    w = vr(base + 32 + 16 * mat + 4 * nb, 4)
                    d = ar((rb * 8 + mat * 4 + nb) * 4, 4); c = '0' if first else d
                    L.append('%s %s, %s, %s, %s' % ((MF16, d, w, act, c) if mat == 0 else (MF16, d, act, w, c)))
        return L
    stamp(a, 2)
    a('s_waitcnt vmcnt(%d) lgkmcnt(0)' % vm.cnt(ids[('p1', 0)]))
    a('s_barrier')
    stamp(a, 3)
    for s in reads(0, 0, 0) + xn_reads: a(s)
    ln_poll = 'buffer_load_dwordx4 v[244:247], v%d, %s, s79 offen %s' % (V_LANE16, sr(WS, 4), WT)
    NST = 8
    pend = []
    P1SP = int(os.environ.get('P1SP', 4))
    for st in range(NST):
        slot = st & 1
        for ks in range(2):
            rd = []
            if ks == 1:
                if st < NST - 1:
                    assert not any(x[0] == ('p1', st + 1) for x in pend if not isinstance(x, str))
                    a('s_waitcnt vmcnt(%d) lgkmcnt(0)' % vm.cnt(ids[('p1', st + 1)])); a('s_barrier')
                    rd = reads(1 - slot, 0, 0)
                else: a('s_waitcnt lgkmcnt(0)')
                if st + 2 < NST: pend += p1_dma(st + 2)
                if st == 0: pend += xn_stores
                if st == 2: pend = [flag_store(26)] + pend
                if st in (0, 1): pend += pf_chunk(st + 1)
                if st == 2: pend += [('pf', 'global_load_dword v240, v%d, s[8:9]' % TQ)]
                if st == 3: pend += [('pf', 'global_load_dword v241, v%d, s[18:19]' % TG), ('pf', 'global_load_dword v242, v%d, s[20:21]' % TG)]
                if st == 4: pend = [('lnp', ln_poll)] + pend
                if st == 5:
                    gate(ln_poll, 244, 4, 1, 61)
                    pend += [flag_store(27)]
                    pend += xn_touch(0) + xn_touch(1)
                if st == 6: pend += w_dma(1, 4) + xn_touch(2) + xn_touch(3)
                if st == 7: pend += xn_touch(4)
            else:
                a('s_waitcnt lgkmcnt(0)')
                rd = reads(slot, 1, 1)
                if st == 6:
                    pend += srd('wq', WQ) + srd('wg', WG) + srd('wu', WU) + ['s_mov_b32 s%d, s74' % (WG + 2), 's_mov_b32 s%d, s74' % (WU + 2)] + w_dma(0, 4)
            lastv = -10
            for g, m in enumerate(mfmas(ks, st == 0 and ks == 0)):
                a(m)
                if g % 2 == 0 and rd: a(rd.pop(0))
                elif pend and g % 2 == 1:
                    while pend and pend[0] == 's_nop 0': pend.pop(0)
                    if pend and (isinstance(pend[0], str) or g - lastv >= P1SP):
                        if not isinstance(pend[0], str): lastv = g
                        a(issue(pend.pop(0)))
            stamp(a, 1 + 2 * st + ks, 'p1')
        if st == 3: stamp(a, 4); cstamp(a, 1)
    assert not pend
    stamp(a, 5); cstamp(a, 2)
    a('s_lshl_b32 s56, s%d, 20' % sH)
    a('s_lshl_b32 s57, s%d, 17' % sI)
    a('s_add_u32 s56, s56, s57')
    a('s_lshr_b32 s57, s%d, 1' % sW)
    a('s_lshl_b32 s57, s57, 16')
    a('s_add_u32 s56, s56, s57')
    a('s_add_u32 s56, s56, 0x%x' % WS_KV)
    a('s_and_b32 s57, s%d, 1' % sW)
    a('s_lshl_b32 s58, s57, 11')
    a('s_add_u32 s58, s58, s56')
    a('s_lshl_b32 s59, s57, 12')
    a('s_add_u32 s59, s59, s56')
    a('s_add_u32 s59, s59, 16384')
    cnt = [0]
    def conv(b0, b1, dst=None):
        T = 128 + 16 * (cnt[0] % 4); cnt[0] += 1
        if dst is None: dst = T + 8
        for e in range(4): a('v_accvgpr_read_b32 v%d, a%d' % (T + e, b0 * 4 + e))
        for e in range(4): a('v_accvgpr_read_b32 v%d, a%d' % (T + 4 + e, b1 * 4 + e))
        for e in range(4): a('v_cvt_pk_bf16_f32 v%d, v%d, v%d' % (dst + e, T + 2 * e, T + 2 * e + 1))
        return dst
    def store(T, sb, off):
        return ['s_add_u32 s63, s%d, %d' % (sb, off & ~4095),
                ('kv', 'buffer_store_dwordx4 %s, v%d, %s, s63 offen offset:%d %s' % (vr(T, 4), V_LANE16, sr(WS, 4), off & 4095, WT))]
    def jobs(rp):
        J = []
        for rb in (2 * rp, 2 * rp + 1):
            for s in range(2): J.append((rb * 8 + 2 * s, rb * 8 + 2 * s + 1, 16, (rb // 4) * 32768 + ((rb % 4) * 4 + s) * 1024))
        rb = 2 * rp
        for nb in range(4): J.append((rb * 8 + 4 + nb, (rb + 1) * 8 + 4 + nb, 17, (rb // 4) * 32768 + (((rb % 4) // 2) * 8 + nb) * 1024))
        return J
    a('s_mov_b32 s16, s58'); a('s_mov_b32 s17, s59')
    a('s_lshl_b32 s57, s%d, 14' % sW)
    a('v_add_u32 v26, s57, v%d' % V_LANE16)
    J1 = jobs(3) + jobs(2); J2 = jobs(1) + jobs(0)
    for n_, (b0, b1, sb, off) in enumerate(J1[:8]): conv(b0, b1, 64 + 4 * n_)
    for k in range(4):
        for it in a_load(k): a(issue(it))
    a('s_waitcnt vmcnt(%d)' % vm.cnt(ids[('w', 0)]))
    a('s_barrier')
    for it in w_dma(2, 4): a(issue(it))
    for n_, (b0, b1, sb, off) in enumerate(J1[8:]): conv(b0, b1, 96 + 4 * n_)
    for n_, (b0, b1, sb, off) in enumerate(J2):
        T = conv(b0, b1)
        a('ds_write_b128 v26, %s offset:%d' % (vr(T, 4), 1024 * n_))
    kv_sched = {}
    KVEND = int(os.environ.get('KVEND', 14))
    def kstep(n_): return (n_ * KVEND) // 32
    for n_, (b0, b1, sb, off) in enumerate(J1):
        kv_sched.setdefault(kstep(n_), []).extend(store(64 + 4 * n_, sb, off))
        kv_sched.setdefault(kstep(n_) + 1, []).append('ds_read_b128 %s, v26 offset:%d' % (vr(64 + 4 * n_, 4), 1024 * n_))
    for n_, (b0, b1, sb, off) in enumerate(J2):
        kv_sched.setdefault(kstep(16 + n_), []).extend(store(64 + 4 * n_, sb, off))
    stamp(a, 6); cstamp(a, 3)
    sBASE, sK0, sK1, sT, sC0, sC1, sS1 = 56, 57, 58, 59, 60, 61, 62
    a('s_lshl_b32 s56, s%d, 20' % sH)
    a('s_lshl_b32 s59, s%d, 12' % sW)
    a('s_add_u32 s56, s56, s59')
    a('s_add_u32 s56, s56, 0x%x' % WS_KV)
    a('s_lshl_b32 s60, s%d, 13' % sW)
    a('s_add_u32 s60, s60, %d' % (65536 + 32768))
    a('s_add_u32 s61, s60, 16384')
    a('s_add_u32 s62, s56, 32768')
    a('s_add_u32 s57, s56, 65536')
    a('s_add_u32 s58, s57, 32768')
    a('v_add_u32 v%d, 16384, v%d' % (V_LANE16V, V_LANE16))
    a('v_and_b32 v%d, 7, v0' % V_PA)
    a('v_lshlrev_b32 v%d, 9, v%d' % (V_PA, V_PA))
    a('s_and_b32 s79, s2, 31')
    a('s_lshl_b32 s79, s79, 4')
    a('s_add_u32 s79, s79, 0x%x' % FK)
    kv_poll0 = 'buffer_load_dwordx4 v[20:23], v52, %s, s79 offen %s' % (sr(WS, 4), WT)
    kv_poll = 'buffer_load_dwordx4 v[208:211], v%d, %s, s79 offen %s' % (V_PA, sr(WS, 4), WT)
    def kv_dma(m0expr, voff, ssrc, tag):
        return [m0expr, 's_nop 0'] + [(tag, 'buffer_load_dwordx4 v%d, %s, s%d offen offset:%d lds' % (voff, sr(WS, 4), ssrc, 1024 * j)) for j in range(4)]
    def w_read(k, n):
        st, ks = k // 2, k % 2
        off = WSLOT[st % 3] - 65536
        grp = off // 65536; off %= 65536
        m, c = n // 4, n % 4
        return ['ds_read_b64_tr_b16 %s, v%d offset:%d' % (ar(P_WF + 4 * n + 2 * r, 2), P_WRD + 4 * grp + c, off + m * 8192 + (32 * ks + 16 * r) * 128) for r in range(2)]
    def p2_loop(nm):
        NB = 4 * nm; NS2 = 10
        for n in range(NB):
            for s in w_read(0, n): a(s)
        pend = []
        for k in range(2 * NS2):
            st, ks = k // 2, k % 2
            base = P_ACT + 16 * (k % 4)
            need = ids[('a', k)]
            if k == 18: need = max(need, ids['kvp'])
            if k == KVEND + 1:
                assert not any(x[0] == 'kv' for x in pend if not isinstance(x, str))
                need = max(need, ids['kv'])
            assert not any(x[0] == ('a', k) for x in pend if not isinstance(x, str))
            a('s_waitcnt vmcnt(%d) lgkmcnt(8)' % min(63, vm.cnt(need)))
            pend += kv_sched.get(k, [])
            if k == KVEND + 1: pend += [flag_store(75)]
            if k == 17: pend += [('kvp', kv_poll0)]
            if k == 18:
                gate(kv_poll0, 20, 4, 1, 63)
                pend += kv_dma('s_add_u32 m0, s59, 0', V_LANE16, sBASE, 'k0') + kv_dma('s_add_u32 m0, s59, 16384', V_LANE16, sS1, 'k1')
                pend += kv_dma('s_add_u32 m0, s59, 32768', V_LANE16, sK0, 'k2')
            if k == 19:
                pend += kv_dma('s_add_u32 m0, s59, 65536', V_LANE16V, sBASE, 'v0')
                pend += kv_dma('s_add_u32 m0, s59, 49152', V_LANE16, sK1, 'k3') + kv_dma('s_add_u32 m0, s59, %d' % (65536 + 16384), V_LANE16V, sS1, 'v1')
            if k > 0 and k + 3 < 2 * NS2: pend = a_load(k + 3) + pend
            for n in range(NB):
                if n % 4 == 0 and n > 0:
                    a('s_waitcnt lgkmcnt(%d)' % (8 if k < 2 * NS2 - 1 else min(8, 2 * (NB - n - 4))))
                for qi in range(4):
                    d = ar(P_ACCA + (n * 4 + qi) * 4, 4) if n < 8 else vr(P_ACCV + ((n - 8) * 4 + qi) * 4, 4)
                    a('%s %s, %s, %s, %s' % (MF16, d, ar(P_WF + 4 * n, 4), ar(base + 4 * qi, 4), '0' if k == 0 else d))
                    if qi < 3:
                        while pend and pend[0] == 's_nop 0': pend.pop(0)
                        if pend: a(issue(pend.pop(0)))
                if k + 1 < 2 * NS2:
                    if n == 0 and ks == 1:
                        assert not any(x[0] == ('w', st + 1) for x in pend if not isinstance(x, str))
                        a('s_waitcnt vmcnt(%d) lgkmcnt(0)' % min(63, vm.cnt(ids[('w', st + 1)])))
                        a('s_barrier')
                        if st + 3 < NS2: pend = pend + w_dma(st + 3, nm)
                    for s in w_read(k + 1, n): a(s)
            if k < 16: stamp(a, 1 + k, 'p2a')
            if k >= 4: stamp(a, k - 3, 'p2b')
        assert not pend
    qonly, qdone = name + '_qonly', name + '_qdone'
    a('s_cmp_eq_u32 s74, 0')
    a('s_cbranch_scc1 %s' % qonly)
    save = (vm.n, dict(ids))
    p2_loop(4)
    stamp(a, 7); cstamp(a, 4)
    a('s_lshl_b32 s64, s72, 10')
    a('s_lshl_b32 s65, s73, 10')
    a('s_lshl_b32 s66, s%d, 18' % sCT)
    a('s_add_u32 s66, s66, 0x%x' % WS_H)
    a('s_add_u32 s64, s64, s66')
    a('s_add_u32 s65, s65, s66')
    a('v_add_u32 v%d, %d, v%d' % (P_XOFF2, 128 * 1024, V_LANE16))
    a('s_nop 3')
    c2 = 0
    for qi in range(4):
        for s in range(2):
            T = 64 + 4 * (c2 % 8); c2 += 1
            for cc in range(2):
                g = P_ACCV + ((2 * s + cc) * 4 + qi) * 4; u = g + 64
                for e in range(4): a('v_mul_f32 v%d, v%d, v%d' % (g + e, g + e, u + e))
                for e in range(2): a('v_cvt_pk_bf16_f32 v%d, v%d, v%d' % (T + 2 * cc + e, g + 2 * e, g + 2 * e + 1))
            a(issue(('h', 'buffer_store_dwordx4 %s, v%d, %s, s%d offen offset:%d %s' % (vr(T, 4), (V_LANE16, P_XOFF2)[s], sr(WS, 4), 64 + qi // 2, (qi % 2) * 1024, WT))))
    a('s_waitcnt vmcnt(%d)' % vm.cnt(max(ids['k2'], ids['v0'])))
    a('s_branch %s' % qdone)
    a.label(qonly)
    vm.n, ids = save[0], dict(save[1])
    p2_loop(2)
    for it in helper_touch('wd', [0, 1], R4) + helper_touch('wo', [0, 1, 2, 3], R4):
        s_ = issue(it); a(s_.replace('v248', 'v64').replace('s17', 's64'))
    a('s_waitcnt vmcnt(0)')
    a.label(qdone)
    stamp(a, 8)
    a('s_barrier')
    sTHR, sBIG, s2W, sM0, sM1, sDYN, sE0, sE1, sCNT = 64, 65, 66, 67, 68, 69, 70, 71, 63
    def kread(i, p): return 'ds_read_b128 %s, v%d offset:%d' % (ar(A_RING + 4 * (i % R), 4), V_KRD, p * 16384 + i * 1024)
    def vread(i, p): return 'ds_read_b128 %s, v%d offset:%d' % (ar(A_RING + 4 * (i % R), 4), V_VRD, p * 16384 + i * 1024)
    a('v_mov_b32 v%d, v%d' % (V_KRD, V_LANE16))
    a('v_add_u32 v%d, 65536, v%d' % (V_VRD, V_LANE16))
    for i in range(D): a(kread(i, 0))
    a('s_mov_b32 s64, %s' % f2u(math.log2(math.e) / math.sqrt(128.0)))
    for qi in range(4):
        for s in range(4):
            T = 128 + 16 * ((qi * 4 + s) % 4)
            for cc in range(2):
                for e in range(4): a('v_accvgpr_read_b32 v%d, a%d' % (T + 4 * cc + e, P_ACCA + ((2 * s + cc) * 4 + qi) * 4 + e))
            for e in range(8): a('v_mul_f32 v%d, s64, v%d' % (T + e, T + e))
            for e in range(4): a('v_cvt_pk_bf16_f32 v%d, v%d, v%d' % (T + 8 + e, T + 2 * e, T + 2 * e + 1))
            for e in range(4): a('v_accvgpr_write_b32 a%d, v%d' % (A_Q[qi // 2] + ((qi % 2) * 4 + s) * 4 + e, T + 8 + e))
    a('v_and_b32 v5, 15, v0')
    a('v_lshrrev_b32 v6, 4, v0')
    a('v_lshlrev_b32 v6, 2, v6')
    a('v_sub_u32 v5, v5, v6')
    for r in range(4):
        a('v_cmp_gt_i32 vcc, %d, v5' % r)
        a('s_nop 1')
        a('v_cndmask_b32 v%d, 0, 1.0, vcc' % (TRI + r))
    for e in range(4): a('v_mov_b32 v%d, 0x3f803f80' % (V_ONES + e))
    for j in range(16): a('v_mov_b32 v%d, 0' % (NEGM + j))
    a('s_mov_b32 s%d, %s' % (sTHR, f2u(THR)))
    a('s_mov_b32 s%d, %s' % (sBIG, f2u(-BIG)))
    a('s_lshl_b32 s%d, s%d, 1' % (s2W, sW))
    a(kv_poll)
    stamp(a, 9)
    def prefill(st, p, tau, dyn=False):
        for qb in range(2):
            for kb in range(4):
                kap = 4 * tau + kb - qb
                S = SB[st][p] + (kb * 2 + qb) * 4
                if kap < 0:
                    for r in range(4): a('v_mov_b32 v%d, v%d' % (S + r, NEGM + (st * 2 + qb) * 4))
                    continue
                big = sDYN if dyn else sBIG
                a('s_cmp_eq_u32 s%d, %d' % (s2W, kap)); a('s_cselect_b32 s%d, s%d, 0' % (sM0, big))
                a('s_cmp_lt_u32 s%d, %d' % (s2W, kap)); a('s_cselect_b32 s%d, s%d, 0' % (sM1, big))
                a('v_add_f32 v%d, s%d, v%d' % (V_T0, sM1, NEGM + (st * 2 + qb) * 4))
                for r in range(4): a('v_fma_f32 v%d, v%d, s%d, v%d' % (S + r, TRI + r, sM0, V_T0))
        a('s_nop 1')
    def qk_mf(sets, p):
        G = []
        for f in range(16):
            kb, ds = f // 4, f % 4; L = []
            for st, inpl in sets:
                for qb in range(2):
                    d = vr(SB[st][p] + (kb * 2 + qb) * 4, 4)
                    c = vr(NEGM + (st * 2 + qb) * 4, 4) if (ds == 0 and not inpl) else d
                    L.append('%s %s, %s, %s, %s' % (MF16, d, ar(A_RING + 4 * (f % R), 4), ar(A_Q[st] + (qb * 4 + ds) * 4, 4), c))
            G.append(L)
        return G
    def pv_mf(sets, p):
        G = []
        for f in range(16):
            ks, db = f // 8, f % 8; L = []
            for st in sets:
                for qb in range(2):
                    d = ar(A_O[st] + (db * 2 + qb) * 4, 4)
                    L.append('%s %s, %s, %s, %s' % (MF16, d, ar(A_RING + 4 * (f % R), 4), vr(PB[st][p] + (qb * 2 + ks) * 4, 4), d))
            G.append(L)
        return G
    rare_sites = []
    pk = Packer(a)
    def lg_items(n, skip_last):
        return [dict(lo=i, hi=i, lg=i + 4) for i in range(3, n, 4) if not (i == n - 1 and skip_last)]
    def ladds(ex):
        return ['v_add_f32 v%d, v%d, v%d' % (V_L + st * 2 + qb, V_L + st * 2 + qb, LT + (st * 2 + qb) * 4) for st in ex for qb in range(2)]
    def iteration(p, qk, ex, pv, prev_ex, nxt='k', dk=True, dv=True, loop_ctr=None, post_bar=(), pre_bar=()):
        groups = []; rs = []
        if qk:
            groups += qk_mf(qk, p); rs += [kread(i, p) for i in range(16)]
        groups += pv_mf(pv, p); rs += [vread(i, p) for i in range(16)]
        n = len(groups)
        nx = {'k': [kread(i, 1 - p) for i in range(D)], 'v': [vread(i, 1 - p) for i in range(D)], None: [None] * D}[nxt]
        rds = rs[D:] + nx
        bg = n - D
        it = [dict(lo=0, hi=0, ins=s, v=True) for s in ladds(prev_ex)]
        nd = 0
        if dv:
            it.append(dict(lo=0, hi=1, ins='s_sub_u32 m0, s%d, s%d' % ((sC0, sC1)[p], sT)))
            for j, i in enumerate((2, 4, 5, 6)):
                it.append(dict(lo=i, hi=i + 1, ins='buffer_load_dwordx4 v%d, %s, s%d offen offset:%d lds' % (V_LANE16V, sr(WS, 4), (sK0, sK1)[p], 1024 * j)))
            nd += 4
        if dk:
            it.append(dict(lo=8, hi=9, ins='s_add_u32 m0, s%d, %d' % (sT, p * 16384)))
            it.append(dict(lo=8, hi=9, ins='s_add_u32 s%d, s%d, 32768' % ((sK0, sK1)[p], (sK0, sK1)[1 - p])))
            for j, i in enumerate((10, 12, 14, 16)):
                it.append(dict(lo=i, hi=i + 1, ins='buffer_load_dwordx4 v%d, %s, s%d offen offset:%d lds' % (V_LANE16, sr(WS, 4), (sK0, sK1)[p], 1024 * j)))
            nd += 4
        if p == 1:
            if qk: it.append(dict(lo=16 - D, hi=bg - 1, ins='v_xor_b32 v%d, 32768, v%d' % (V_KRD, V_KRD), v=True))
            it.append(dict(lo=bg - 1 if nxt == 'v' else bg, hi=bg - 1 if nxt == 'v' else n - 1, ins='v_xor_b32 v%d, 32768, v%d' % (V_VRD, V_VRD), v=True))
            it.append(dict(lo=13, hi=n - 1, ins='s_xor_b32 s%d, s%d, 32768' % (sT, sT)))
        if nxt is not None:
            it.append(dict(lo=bg - 3, hi=bg - 2, ins='s_waitcnt vmcnt(%d)' % nd))
            it.append(dict(lo=bg - 1, hi=bg - 1, ins='s_barrier'))
        it += lg_items(n, nxt is None)
        it.sort(key=lambda x: (x['hi'], x['lo']))
        lo0 = bg if nxt is not None else 0
        for j, s in enumerate(post_bar):
            it.append(dict(lo=lo0, hi=n - 1, ins=s))
        fin = []
        if ex:
            lts = [LT + (st * 2 + qb) * 4 for st in ex for qb in range(2)]
            if len(lts) == 2: fin.append('v_max_f32 v%d, v%d, v%d' % (V_T0, lts[0], lts[1]))
            else:
                fin.append('v_max3_f32 v%d, v%d, v%d, v%d' % (V_T0, lts[0], lts[1], lts[2]))
                fin.append('v_max_f32 v%d, v%d, v%d' % (V_T0, V_T0, lts[3]))
            fin.append('v_cmp_lt_f32 vcc, s%d, v%d' % (sTHR, V_T0))
        pk.run(groups, rds, it, [(st, 1 - p) for st in ex], [], fin, (1, p) if qk else None, True)
        if loop_ctr: a('s_sub_u32 s%d, s%d, 1' % (loop_ctr[0], loop_ctr[0]))
        if ex:
            stub, back = a.newlabel(name + '_rs'), a.newlabel(name + '_rb')
            a('s_cbranch_vccnz %s' % stub)
            a.label(back)
            rare_sites.append((stub, back, 1 - p, ex))
        if loop_ctr: a('s_cbranch_scc0 %s' % loop_ctr[1])
    def epilogue(st):
        a('s_lshl_b32 s%d, s%d, 10' % (sE0, sQ[st]))
        a('s_lshl_b32 s%d, s%d, 19' % (sE1, sH))
        a('s_add_u32 s%d, s%d, s%d' % (sE0, sE0, sE1))
        a('s_add_u32 s%d, s%d, 0x%x' % (sE0, sE0, WS_CTX))
        a('v_rcp_f32 v%d, v%d' % (V_T0, V_L + st * 2))
        a('v_rcp_f32 v%d, v%d' % (V_T1, V_L + st * 2 + 1))
        a('s_nop 4')
        c3 = 0
        for s in range(4):
            for qb in range(2):
                T = SB[st][0] + 16 * (c3 % 4); c3 += 1
                for cc in range(2):
                    for e in range(4): a('v_accvgpr_read_b32 v%d, a%d' % (T + 4 * cc + e, A_O[st] + ((2 * s + cc) * 2 + qb) * 4 + e))
                for e in range(8): a('v_mul_f32 v%d, v%d, v%d' % (T + e, T + e, (V_T0, V_T1)[qb]))
                for e in range(4): a('v_cvt_pk_bf16_f32 v%d, v%d, v%d' % (T + 8 + e, T + 2 * e, T + 2 * e + 1))
                if qb == 0: a('s_add_u32 s%d, s%d, %d' % (sE1, sE0, s * 128 * 1024))
                a(issue(('ctx', 'buffer_store_dwordx4 %s, v%d, %s, s%d offen offset:%d %s' % (vr(T + 8, 4), V_LANE16, sr(WS, 4), sE1, qb * 1024, WT))))
    a('s_cmp_eq_u32 s%d, 0' % sI)
    a('s_cselect_b32 s%d, s%d, 0' % (sDYN, sBIG))
    prefill(0, 0, 0, dyn=True)
    a('s_waitcnt lgkmcnt(%d)' % (D - 4))
    both = [(0, True), (1, False)]
    rds = [kread(i, 0) for i in range(D, 16)] + [kread(i, 1) for i in range(D)]
    zero = ['v_accvgpr_write_b32 a%d, 0' % i for i in range(128)] + ['v_mov_b32 v%d, 0' % (V_L + j) for j in range(4)]
    pk.run(qk_mf(both, 0), rds, lg_items(16, False), [], zero, [], None, False)
    a('s_nop 3')
    for st in range(2):
        for qb in range(2):
            for s in max_ops(st, 0, qb, V_T0, V_T1): a(s)
            for e in range(4): a('v_sub_f32 v%d, 0, v%d' % (NEGM + (st * 2 + qb) * 4 + e, V_T0))
    prefill(0, 1, 1, dyn=True)
    rds = [kread(i, 1) for i in range(D, 16)] + [kread(i, 0) for i in range(D)]
    it = lg_items(16, False) + [dict(lo=16 - D - 1, hi=16 - D - 1, ins='v_xor_b32 v%d, 32768, v%d' % (V_KRD, V_KRD), v=True)]
    it.sort(key=lambda x: (x['hi'], x['lo']))
    pk.run(qk_mf(both, 1), rds, it, [(1, 0), (0, 0)], [], [], (1, 1), False, sub=True)
    a('s_waitcnt vmcnt(0)')
    a(flag_store(76)[1])
    gate(kv_poll, 208, 4, 1, 63)
    stamp(a, 10); cstamp(a, 5)
    lA, lA_skip, lA_tail2 = name + '_loopA', name + '_skipA', name + '_tail2A'
    a('s_cmp_eq_u32 s%d, 0' % sI)
    a('s_cbranch_scc1 %s' % lA_tail2)
    a('s_sub_u32 s%d, s%d, 2' % (sCNT, sI))
    a('s_cbranch_scc1 %s' % lA_skip)
    a.raw('.p2align 6')
    a.label(lA)
    dn = [(0, False), (1, False)]; BA = [1, 0]
    iteration(0, dn, BA, [0, 1], BA)
    iteration(1, dn, BA, [0, 1], BA, loop_ctr=(sCNT, lA))
    a.label(lA_skip)
    prefill(0, 0, 0)
    iteration(0, both, BA, [0, 1], BA)
    prefill(0, 1, 1)
    iteration(1, both, BA, [0, 1], BA)
    a.label(lA_tail2)
    l7, lBtail2 = name + '_i7', name + '_tail2B'
    a('s_cmp_eq_u32 s%d, 7' % sI)
    a('s_cbranch_scc1 %s' % l7)
    iteration(0, [(1, False)], BA, [0, 1], BA)
    iteration(1, [(1, False)], [1], [0, 1], BA)
    epilogue(0)
    lB = name + '_loopB'
    a('s_lshl_b32 s%d, s%d, 1' % (sCNT, sI))
    a('s_sub_u32 s%d, 12, s%d' % (sCNT, sCNT))
    a.raw('.p2align 6')
    a.label(lB)
    iteration(0, [(1, False)], [1], [1], [1])
    iteration(1, [(1, False)], [1], [1], [1], loop_ctr=(sCNT, lB))
    prefill(1, 0, 0)
    iteration(0, [(1, True)], [1], [1], [1], dk=False)
    prefill(1, 1, 1)
    iteration(1, [(1, True)], [1], [1], [1], dk=False, nxt='v')
    a('s_branch %s' % lBtail2)
    a.label(l7)
    prefill(1, 0, 0)
    iteration(0, [(1, True)], BA, [0, 1], BA, dk=False)
    prefill(1, 1, 1)
    iteration(1, [(1, True)], [1], [0, 1], BA, dk=False, nxt='v')
    epilogue(0)
    a.label(lBtail2)
    stamp(a, 11); cstamp(a, 6)
    AH, AC, WD4, WO4, X4, OUT = R1, R2, R3, R4, R5, 4
    sRO, sRT, sCT4, sAC, sWW, sVAL, sXO, sSW, sLD, sW2, sAC0, sWW0 = 8, 9, 10, 11, 12, 74, 13, 18, 19, 20, 26, 27
    sS1, sS0, sR0, sR1 = 16, 17, 21, 62
    WS_EX = 0x8000000
    FX = WS_FLG + 65536
    a('s_lshr_b32 s67, s2, 3')
    a('s_cmp_lt_u32 s67, 30'); a('s_cselect_b32 s%d, 1, 0' % sVAL)
    a('s_min_u32 s67, s67, 29')
    a('s_mul_i32 s68, s67, 205'); a('s_lshr_b32 s68, s68, 10')
    a('s_mul_i32 s69, s68, 5'); a('s_sub_u32 s%d, s67, s69' % sCT4)
    a('s_and_b32 s69, s2, 7'); a('s_mul_i32 s69, s69, 6'); a('s_add_u32 s69, s69, s68')
    a('s_lshr_b32 s%d, s69, 4' % sRO); a('s_and_b32 s%d, s69, 15' % sRT)
    for s in srd('x', X4) + srd('out', OUT): a(s)
    a('s_add_u32 s70, s%d, 2' % sRO); a('s_cmp_eq_u32 s%d, 0' % sRO); a('s_cselect_b32 s71, 0, 3'); a('s_sub_u32 s70, s70, s71')
    a('s_cmp_eq_u32 s%d, 0' % sRO); a('s_cselect_b32 s71, 40, 44'); a('s_mul_i32 s71, s71, s%d' % sVAL)
    a('s_mul_i32 s67, s%d, %d' % (sRO, 18 * 131072)); a('s_add_u32 s67, s67, 0x%x' % WS_H)
    a('s_add_u32 s%d, s28, s67' % AH); a('s_addc_u32 s%d, s29, 0' % (AH + 1)); a('s_mul_i32 s%d, s%d, %d' % (AH + 2, sVAL, 18 * 131072))
    a('s_mul_i32 s67, s70, %d' % (44 * 131072)); a('s_add_u32 s67, s67, 0x%x' % WS_CTX)
    a('s_add_u32 s%d, s28, s67' % AC); a('s_addc_u32 s%d, s29, 0' % (AC + 1)); a('s_lshl_b32 s%d, s71, 17' % (AC + 2))
    a('s_mul_i32 s67, s%d, %d' % (sRO, 18 * 32 * 1280))
    a('s_add_u32 s%d, s22, s67' % WD4); a('s_addc_u32 s%d, s23, 0' % (WD4 + 1)); a('s_mul_i32 s%d, s%d, %d' % (WD4 + 2, sVAL, 18 * 32 * 1280))
    a('s_mul_i32 s67, s70, %d' % (44 * 32 * 1280))
    a('s_add_u32 s%d, s14, s67' % WO4); a('s_addc_u32 s%d, s15, 0' % (WO4 + 1)); a('s_mul_i32 s%d, s71, %d' % (WO4 + 2, 32 * 1280))
    for r_ in (AH, AC, WD4, WO4): a('s_mov_b32 s%d, 0x00020000' % (r_ + 3))
    a('s_cmp_eq_u32 s%d, 2' % sRO); a('s_cselect_b32 s%d, 1, 0' % sSW)
    VA0, VA1, VWO, VRD, VX, VPL = 16, 17, 18, 32, 20, 62
    a('s_lshl_b32 s%d, s%d, 2' % (sAC, sRT)); a('s_add_u32 s%d, s%d, s%d' % (sAC, sAC, sW))
    a('s_lshl_b32 s67, s%d, 1' % sAC); a('s_add_u32 s67, s67, s%d' % sSW)
    a('s_mul_i32 s%d, s67, %d' % (sXO, 16 * 1280)); a('s_lshl_b32 s68, s%d, 8' % sCT4); a('s_add_u32 s%d, s%d, s68' % (sXO, sXO))
    a('s_lshl_b32 s%d, s%d, 11' % (sAC, sAC)); a('s_mov_b32 s%d, s%d' % (sAC0, sAC))
    a('s_lshl_b32 s67, s%d, 10' % sSW)
    a('v_add_u32 v%d, s67, v%d' % (VA0, V_LANE16))
    a('v_xor_b32 v%d, 1024, v%d' % (VA1, VA0))
    a('s_mul_i32 s%d, s%d, %d' % (sWW, sW, 16 * 1280)); a('s_add_u32 s%d, s%d, s68' % (sWW, sWW)); a('s_mov_b32 s%d, s%d' % (sWW0, sWW))
    a('v_lshrrev_b32 v5, 3, v0'); a('v_mul_u32_u24 v5, 1280, v5')
    a('v_bfe_u32 v6, v0, 1, 2'); a('v_bfe_u32 v7, v0, 4, 2'); a('v_xor_b32 v6, v6, v7')
    a('v_lshl_add_u32 v5, v6, 5, v5'); a('v_and_b32 v6, 1, v0')
    a('v_lshl_add_u32 v%d, v6, 4, v5' % VWO)
    a('v_add_u32 v%d, %d, v%d' % (VWO + 1, 8 * 1280 - 1024, VWO))
    a('v_lshrrev_b32 v5, 2, v0'); a('v_lshlrev_b32 v5, 7, v5'); a('v_and_b32 v6, 3, v0'); a('v_lshl_add_u32 v5, v6, 3, v5')
    a('v_bfe_u32 v6, v0, 3, 2')
    for c in range(4):
        a('v_xor_b32 v7, %d, v6' % c)
        a('v_lshl_add_u32 v%d, v7, 5, v5' % (VRD + c))
        a('v_add_u32 v%d, 65536, v%d' % (VRD + 4 + c, VRD + c))
    a('v_and_b32 v5, 15, v0'); a('v_mul_u32_u24 v5, 1280, v5'); a('v_lshrrev_b32 v6, 4, v0')
    a('v_lshl_add_u32 v%d, v6, 3, v5' % VX)
    a('v_and_b32 v%d, 0x1f0, v%d' % (VPL, V_LANE16))
    a('v_add_u32 v21, 4096, v%d' % V_LANE16)
    a('s_sub_u32 s67, 15, s%d' % sRT); a('s_min_u32 s67, s67, s%d' % sRT)
    a('s_lshl_b32 s79, s67, 9'); a('s_add_u32 s79, s79, 0x%x' % FH)
    a('s_lshl_b32 s76, s%d, 9' % sRT); a('s_add_u32 s76, s76, 0x%x' % FC)
    a('s_mul_i32 s67, s%d, 5' % sRT); a('s_add_u32 s67, s67, s%d' % sCT4)
    a('s_lshl_b32 s68, s67, 2'); a('s_add_u32 s68, s68, s%d' % sW)
    a('s_lshl_b32 s75, s68, 10'); a('s_add_u32 s75, s75, 0x%x' % FX)
    a('s_lshl_b32 s68, s68, 16'); a('s_add_u32 s68, s68, 0x%x' % WS_EX)
    a('s_add_u32 s67, s%d, 1' % sRO); a('s_lshl_b32 s67, s67, 13'); a('s_add_u32 s%d, s68, s67' % sS1)
    a('s_cmp_eq_u32 s%d, 0' % sRO); a('s_cselect_b32 s%d, s68, 0x20000000' % sS0)
    a('s_lshl_b32 s67, s%d, 13' % sSW); a('s_add_u32 s%d, s68, s67' % sR0)
    a('s_sub_u32 s67, 3, s%d' % sSW); a('s_lshl_b32 s67, s67, 13'); a('s_add_u32 s%d, s68, s67' % sR1)
    a('s_cmp_eq_u32 s%d, 0' % sRO); a('s_cselect_b32 s%d, 0x20000000, s%d' % (sR0, sR0)); a('s_cselect_b32 s%d, 0x20000000, s%d' % (sR1, sR1))
    a('s_lshl_b32 s56, s%d, 7' % sRO); a('s_add_u32 s56, s56, s75')
    a('s_sub_u32 s67, 3, s%d' % sRO); a('s_cmp_eq_u32 s%d, 0' % sRO); a('s_cselect_b32 s67, 0, s67'); a('s_lshl_b32 s67, s67, 7')
    a('v_and_b32 v22, 1, v0'); a('v_mul_u32_u24 v22, s67, v22')
    a('s_lshl_b32 s%d, s%d, 11' % (sLD, sW))
    h_poll = 'buffer_load_dwordx4 v[192:195], v%d, %s, s79 offen %s' % (VPL, sr(WS, 4), WT)
    c_poll = 'buffer_load_dwordx4 v[24:27], v%d, %s, s76 offen %s' % (VPL, sr(WS, 4), WT)
    b_poll = 'buffer_load_dword v24, v22, %s, s75 offen %s' % (sr(WS, 4), WT)
    s_poll = 'buffer_load_dword v24, v22, %s, s75 offen offset:512 %s' % (sr(WS, 4), WT)
    WF4 = 64; ND4 = 18; NK = 62; LA4 = 12
    def accB(n, q): return 128 + (q * 8 + n) * 4
    def accS(n, q): return 192 + (q * 8 + n) * 4
    def act4(k, q): r = k % 16; return (r * 8 + q * 4) if r < 8 else (128 + (r - 8) * 8 + q * 4)
    def w4_dma(st):
        L = []
        if st == ND4 // 2: L.append('s_mov_b32 s%d, s%d' % (sWW, sWW0))
        r_ = WD4 if st < ND4 // 2 else WO4
        for m in range(2):
            L += ['s_add_u32 m0, s%d, %d' % (sLD, (st % 8) * 16384 + m * 8192), 's_nop 0' if m == 0 else 's_add_u32 s%d, s%d, 128' % (sW2, sWW)]
            L += [(('w4', st), 'buffer_load_dwordx4 v%d, %s, s%d offen offset:%d lds' % (VWO + j, sr(r_, 4), sWW if m == 0 else sW2, 1024 * j)) for j in range(2)]
        L.append('s_add_u32 s%d, s%d, %d' % (sWW, sWW, 64 * 1280))
        return L
    def a4_load(k):
        L = ['s_mov_b32 s%d, s%d' % (sAC, sAC0)] if k == ND4 else []
        return L + [(('a4', k), 'buffer_load_dwordx4 %s, v%d, %s, s%d offen' % (ar(act4(k, q), 4), (VA0, VA1)[q], sr(AH if k < ND4 else AC, 4), sAC)) for q in range(2)] + \
               ['s_add_u32 s%d, s%d, %d' % (sAC, sAC, 128 * 1024)]
    def w4_read(k, n):
        st, ks = (k // 2) % 8, k % 2
        return ['ds_read_b64_tr_b16 %s, v%d offset:%d' % (vr(WF4 + 4 * n + 2 * r, 2), VRD + 4 * (st // 4) + n % 4, (st % 4) * 16384 + (n // 4) * 8192 + (32 * ks + 16 * r) * 128) for r in range(2)]
    PK = 112
    def packs(accf):
        L = []
        for q in (1, 0):
            for n in range(8):
                dst = (accf(0, 1) if q else PK) + 2 * n
                L += ['v_cvt_pk_bf16_f32 v%d, v%d, v%d' % (dst + h, accf(n, q) + 2 * h, accf(n, q) + 2 * h + 1) for h in range(2)]
        return L
    def sends(accf, tag):
        return [(tag, 'buffer_store_dwordx4 %s, v%d, %s, s%d offen offset:%d %s' % (vr((accf(0, 1) if q else PK) + 4 * j, 4), V_LANE16, sr(WS, 4), (sS0, sS1)[q], j * 1024, WT))
                for q in (1, 0) for j in range(4)]
    def recvs(dst, tag):
        return [(tag, 'buffer_load_dwordx4 %s, v%d, %s, s%d offen offset:%d' % (vr(dst + 16 * src_ + 4 * j, 4), V_LANE16, sr(WS, 4), (sR0, sR1)[src_], j * 1024))
                for j in range(4) for src_ in range(2)]
    def unp_add(B, dst, n, T):
        L = []
        for src_ in range(2):
            for h in range(2):
                r = dst + 16 * src_ + 2 * n + h
                L += ['v_lshlrev_b32 v%d, 16, v%d' % (T + 2 * h, r), 'v_and_b32 v%d, s65, v%d' % (T + 2 * h + 1, r)]
            L += ['v_add_f32 v%d, v%d, v%d' % (B + e, B + e, T + e) for e in range(4)]
        return L
    XR4 = 96
    xl = [('x4', 'buffer_load_dwordx2 %s, v%d, %s, s%d offen offset:%d' % (vr(XR4 + 2 * n, 2), VX, sr(X4, 4), sXO, 32 * n)) for n in range(8)]
    a(h_poll)
    vm.n = 0; ids = {}
    e1 = [flag_store(77)[1]] + [issue(it) for it in xl + w4_dma(0) + w4_dma(1)]
    iteration(0, None, [1], [1], [1], dk=False, dv=False, nxt='v', post_bar=e1)
    gate(h_poll, 192, 4, 1, 63)
    e2 = []
    for k in range(LA4):
        e2 += a4_load(k)
        if k in (3, 7): e2 += w4_dma(2 + k // 4)
    iteration(1, None, [], [1], [1], dk=False, dv=False, nxt=None, post_bar=[issue(it) for it in e2])
    stamp(a, 12)
    epilogue(1)
    notile = name + '_notile'
    a('s_cmp_eq_u32 s%d, 0' % sVAL)
    a('s_cbranch_scc1 %s' % notile)
    a('s_waitcnt vmcnt(%d)' % vm.cnt(ids[('w4', 1)]))
    a('s_barrier')
    for n in range(8):
        for s_ in w4_read(0, n): a(s_)
    stamp(a, 13)
    def rnd_l(r0, r1, t):
        return ['v_cvt_pk_bf16_f32 v%d, v%d, v%d' % (t, r0, r1), 'v_lshlrev_b32 v%d, 16, v%d' % (r0, t), 'v_and_b32 v%d, s65, v%d' % (r1, t)]
    def rnd(r0, r1, t):
        for s_ in rnd_l(r0, r1, t): a(s_)
    RBv = accB(0, 1)
    def gate_calc(n):
        B = accB(n, 0); T = 40 + 4 * (n % 2); L = unp_add(B, RBv, n, T)
        for h in range(2): L += rnd_l(B + 2 * h, B + 2 * h + 1, T)
        L += ['v_mul_f32 v%d, s64, v%d' % (T + e, B + e) for e in range(4)]
        L += ['v_exp_f32 v%d, v%d' % (T + e, T + e) for e in range(4)]
        L += ['v_add_f32 v%d, 1.0, v%d' % (T + e, T + e) for e in range(4)]
        L += ['v_rcp_f32 v%d, v%d' % (T + e, T + e) for e in range(4)]
        L += ['v_mul_f32 v%d, v%d, v%d' % (B + e, B + e, T + e) for e in range(4)]
        for h in range(2): L += rnd_l(B + 2 * h, B + 2 * h + 1, T)
        return L
    def x_unpack():
        L = []
        for n in range(8):
            for h in range(2):
                x = XR4 + 2 * n + h; o = accB(n, 1) + 2 * h
                L += ['v_lshlrev_b32 v%d, 16, v%d' % (o, x), 'v_and_b32 v%d, s65, v%d' % (o + 1, x)]
        return L
    a('s_mov_b32 s64, %s' % f2u(-math.log2(math.e)))
    a('s_mov_b32 s65, 0xffff0000')
    pend = w4_dma(4) + w4_dma(5) + w4_dma(6) + w4_dma(7)
    slowq = []
    valq = []
    nxt_a = LA4
    KG = 12; KCF = 4; PDL = 5
    KS0, KFL, KBP, KRC = ND4 + 2, 30, 33, 48
    rbl = recvs(RBv, 'rb')
    for k in range(NK):
        assert not any(x[0] == ('a4', k) for x in pend if not isinstance(x, str))
        need = ids[('a4', k)]
        if k == KCF: need = max(need, ids['ctx'])
        if k == KG: need = max(need, ids['cp'])
        if k in (KFL, KRC): assert not slowq and not any(x[0] in ('sb', 'rb', 'x4') for x in pend if not isinstance(x, str))
        if k == KFL: need = max(need, ids['sb'])
        if k == KBP + PDL: need = max(need, ids['bp'])
        if k == KRC: need = max(need, ids['rb'])
        a('s_waitcnt vmcnt(%d) lgkmcnt(12)' % min(63, vm.cnt(need)))
        if k == KCF: pend = [flag_store(78)] + pend
        if k == KG - 3: pend = [('cp', c_poll)] + pend
        if k == KG: gate(c_poll, 24, 4, 1, 63)
        if k == KS0 - 1: valq += packs(accB)
        if k == KS0:
            assert not valq
            sl = sends(accB, 'sb'); slowq += [x for p_ in zip(sl[:4], sl[4:]) for x in p_]
        if k == KFL:
            pend = [flag_store(56), 's_add_u32 s56, s56, 512', 's_add_u32 s%d, s%d, 32768' % (sS0, sS0), 's_add_u32 s%d, s%d, 32768' % (sS1, sS1)] + pend
        if k == KBP: pend = [('bp', b_poll)] + pend
        if k == KBP + PDL:
            gate(b_poll, 24, 1, 1, 63)
            slowq += rbl
        if k == KRC:
            pend += ['s_add_u32 s%d, s%d, 32768' % (sR0, sR0), 's_add_u32 s%d, s%d, 32768' % (sR1, sR1)]
            for n in range(8): valq += gate_calc(n)
            valq += x_unpack()
        newa = []
        lim = min(NK, k + LA4 + 1) if k >= KG else ND4
        while nxt_a < min(lim, k + LA4 + 1) and len(newa) < 6:
            newa += a4_load(nxt_a); nxt_a += 1
        pend = newa + slowq[:2] + pend; slowq = slowq[2:]
        accf = accB if k < ND4 else accS
        for n in range(8):
            if n % 2 == 0 and n > 0: a('s_waitcnt lgkmcnt(%d)' % (12 if k < NK - 1 else 2 * (6 - n)))
            for q in range(2):
                d = vr(accf(n, q), 4)
                a('%s %s, %s, %s, %s' % (MF16, d, vr(WF4 + 4 * n, 4), ar(act4(k, q), 4), '0' if k in (0, ND4) else d))
                if q == 0:
                    while pend and pend[0] == 's_nop 0': pend.pop(0)
                    if pend: a(issue(pend.pop(0)))
                    if pend and isinstance(pend[0], str) and pend[0] != 's_nop 0': a(pend.pop(0))
                    for _ in range(4):
                        if valq: a(valq.pop(0))
            if k + 1 < NK:
                if n == 0 and k % 4 == 3:
                    st = k // 2
                    key = ('w4', min(st + 2, NK // 2 - 1))
                    assert not any(x[0] == key for x in pend if not isinstance(x, str))
                    a('s_waitcnt vmcnt(%d) lgkmcnt(0)' % min(63, vm.cnt(ids[key])))
                    a('s_barrier')
                    for s2_ in (st + 7, st + 8):
                        if s2_ < NK // 2: pend = pend + w4_dma(s2_)
                for s_ in w4_read(k + 1, n): a(s_)
        if k == ND4 - 1: stamp(a, 14); cstamp(a, 7)
        if k % 4 == 1: stamp(a, 1 + k // 4, 'p4')
        if k == ND4 + 39:
            assert not pend
            a('s_cmp_eq_u32 s%d, 0' % sRO)
            a('s_cbranch_scc1 %s_p4done' % name)
    assert not pend and not valq
    a.label(name + '_p4done')
    stamp(a, 15); cstamp(a, 8)
    a('s_nop 7')
    stamp(a, 1, 'fin')
    pl = packs(accS); sl = sends(accS, 'ss')
    for j in range(8):
        for s_ in pl[4 * j:4 * j + 4]: a(s_)
        a(sl[j][1])
    stamp(a, 2, 'fin')
    a('s_waitcnt vmcnt(0)')
    a(flag_store(56)[1])
    stamp(a, 4, 'fin')
    lfin = name + '_fin'
    a('s_cmp_lg_u32 s%d, 0' % sRO)
    a('s_cbranch_scc1 %s' % lfin)
    stamp(a, 16)
    stamp_flush(a, 17)
    a('s_endpgm')
    a.label(lfin)
    a(s_poll)
    a('s_waitcnt vmcnt(0)')
    stamp(a, 5, 'fin')
    gate(s_poll, 24, 1, 1, 63)
    stamp(a, 6, 'fin')
    RS = 64
    for it in recvs(RS, 'rs'): a(it[1])
    for n in range(8):
        if n % 2 == 0: a('s_waitcnt vmcnt(%d)' % (6 - n + n))
        if n in (0, 7): stamp(a, 7 + n // 7, 'fin')
        S = accS(n, 0); T = 96 + 2 * n
        for s_ in unp_add(S, RS, n, 40): a(s_)
        for h in range(2): rnd(S + 2 * h, S + 2 * h + 1, 56)
        for e in range(4): a('v_mul_f32 v%d, v%d, v%d' % (S + e, S + e, accB(n, 0) + e))
        for h in range(2): rnd(S + 2 * h, S + 2 * h + 1, 56)
        for e in range(4): a('v_add_f32 v%d, v%d, v%d' % (S + e, S + e, accB(n, 1) + e))
        for h in range(2): a('v_cvt_pk_bf16_f32 v%d, v%d, v%d' % (T + h, S + 2 * h, S + 2 * h + 1))
        a('buffer_store_dwordx2 %s, v%d, %s, s%d offen offset:%d' % (vr(T, 2), VX, sr(OUT, 4), sXO, 32 * n))
    stamp(a, 16); stamp(a, 9, 'fin')
    stamp_flush(a, 17)
    a('s_endpgm')
    a.label(notile)
    a('s_waitcnt vmcnt(0)')
    a(flag_store(78)[1])
    a.label(end)
    a('s_endpgm')
    for slow, ok, load_ins, chk, ts in slow_paths:
        a.label(slow)
        a('s_mov_b32 s%d, 0x8000' % ts)
        lp = a.newlabel(name + '_sp')
        a.label(lp)
        a('s_sleep 1')
        a(load_ins)
        a('s_waitcnt vmcnt(0)')
        for s in chk: a(s)
        a('s_nop 1')
        a('s_cbranch_vccz %s' % ok)
        a('s_sub_u32 s%d, s%d, 1' % (ts, ts))
        a('s_cbranch_scc0 %s' % lp)
        a('s_branch %s' % ok)
    for stub, back, pc, ex in rare_sites:
        a.label(stub)
        for st in sorted(ex): a('s_call_b64 s[100:101], %s_rare%d%d' % (name, pc, st))
        a('s_branch %s' % back)
    for pc in range(2):
        for st in range(2):
            a.label('%s_rare%d%d' % (name, pc, st))
            a('s_nop 7')
            for qb in range(2):
                for s in max_ops(st, pc, qb, V_T0, V_T1): a(s)
                a('v_max_f32 v%d, 0, v%d' % (V_T0, V_T0))
                a('v_exp_f32 v%d, -v%d' % (V_T1, V_T0))
                for e in range(4): a('v_sub_f32 v%d, v%d, v%d' % (NEGM + (st * 2 + qb) * 4 + e, NEGM + (st * 2 + qb) * 4 + e, V_T0))
                for pp in range(2):
                    for kb in range(4):
                        for r in range(4):
                            x = SB[st][pp] + (kb * 2 + qb) * 4 + r
                            a('v_sub_f32 v%d, v%d, v%d' % (x, x, V_T0))
                a('v_mul_f32 v%d, v%d, v%d' % (V_L + st * 2 + qb, V_L + st * 2 + qb, V_T1))
                for db in range(0, 8, 2):
                    regs = [A_O[st] + ((db + h) * 2 + qb) * 4 + e for h in range(2) for e in range(4)]
                    for e in range(8): a('v_accvgpr_read_b32 v%d, a%d' % (TMP + e, regs[e]))
                    for e in range(8): a('v_mul_f32 v%d, v%d, v%d' % (TMP + e, TMP + e, V_T1))
                    for e in range(8): a('v_accvgpr_write_b32 a%d, v%d' % (regs[e], TMP + e))
            for s in exp_ops(st, pc): a(s)
            if st == 1:
                for k, (s, _, _) in enumerate(exp_seq(1, 1 - pc)[:EARLY]): a('v_exp_f32 v%d, v%d' % (TMP + k, s))
            a('s_nop 7')
            a('s_setpc_b64 s[100:101]')
    a.label(name + '_codeend')
    kernel_desc(a, name, 512, 256)
    return a
```

```python
from common import *
import common
import math, copy
import k2 as K2
from k2 import VM, Packer, exp_seq, exp_ops, max_ops, EARLY
from k2 import V_LANE16, V_LANE16V, V_KRD, V_VRD, V_T0, V_T1, V_L, TRI, NEGM, LT, TMP, SB, PB, A_O, A_Q, A_RING, V_ONES, D, R, THR, BIG

WT = 'sc0 sc1'
WS_FLG = 0x7000000
FK, FH, FC, FL, FE = WS_FLG, WS_FLG + 4096, WS_FLG + 8192, WS_FLG + 16384, WS_FLG + 20480
PTR = dict(x=4, ckv=6, wq=8, wuk=10, wuv=12, wo=14, wg=18, wu=20, wd=22, out=24, dbg=26, ws=28)
WS, R1, R2, R3, R4, R5 = 32, 36, 40, 44, 48, 52
sW, sH, sI = 30, 31, 3
V_ONE, V_1 = 60, 61
V_PA, V_PD = 62, 24

SMODE = os.environ.get('SMODE', 'all')
def stamp(a, i, mode='all'):
    if not DIAG: return
    if mode != SMODE and i != 0: return
    a('s_memrealtime s[98:99]'); a('s_waitcnt lgkmcnt(0)'); a('s_mov_b32 s%d, s98' % (80 + i))
def cstamp(a, i, mode='cyc'):
    if not DIAG or mode != SMODE: return
    a('s_memrealtime s[98:99]'); a('s_waitcnt lgkmcnt(0)'); a('s_mov_b32 s%d, s98' % (80 + i + 8))
    a('s_memtime s[98:99]'); a('s_waitcnt lgkmcnt(0)'); a('s_mov_b32 s%d, s98' % (80 + i))
def stamp_flush(a, n):
    if not DIAG: return
    if os.environ.get('DBGOUT'):
        a('s_load_dwordx2 s[36:37], s[0:1], 88')
        a('s_mov_b32 s38, 256'); a('s_mov_b32 s39, 0x00020000')
        a('s_lshl_b32 s98, s2, 2'); a('s_add_u32 s98, s98, s%d' % sW)
        a('s_cmp_eq_u32 s98, %d' % (4 * int(os.environ['DBGOUT'])))
        a('s_cselect_b32 s98, 0, 0x1000')
        a('s_waitcnt lgkmcnt(0)')
        a('v_mov_b32 v0, 0')
        for i in range(1, n):
            a('s_sub_u32 s99, s%d, s80' % (80 + i))
            a('v_mov_b32 v1, s99')
            a('buffer_store_dword v1, v0, s[36:39], s98 offen offset:%d' % (4 * (i - 1)))
            a('s_nop 1')
        return
    a('s_lshl_b32 s98, s2, 2'); a('s_add_u32 s98, s98, s%d' % sW); a('s_lshl_b32 s98, s98, 7')
    a('s_add_u32 s98, s98, 0x%x' % WS_STAMP)
    a('v_mov_b32 v0, 0')
    for i in range(n):
        a('v_mov_b32 v1, s%d' % (80 + i))
        a('buffer_store_dword v1, v0, %s, s98 offen offset:%d' % (sr(WS, 4), 4 * i))
        a('s_nop 1')

def srd(name, r, off=0, size=None):
    p = PTR[name]
    L = []
    if off:
        L += ['s_add_u32 s%d, s%d, 0x%x' % (r, p, off), 's_addc_u32 s%d, s%d, 0' % (r + 1, p + 1)]
    else:
        L += ['s_mov_b32 s%d, s%d' % (r, p), 's_mov_b32 s%d, s%d' % (r + 1, p + 1)]
    L += ['s_mov_b32 s%d, 0x%x' % (r + 2, SIZE[name] if size is None else size), 's_mov_b32 s%d, 0x00020000' % (r + 3)]
    return L

def gen_mega(a, name):
    kernel_begin(a, name)
    end = name + '_end'
    slow_paths = []
    def gate(load_ins, dreg, n, want, tmp_s):
        def chk():
            L = ['v_xor_b32 v%d, v%d, v%d' % (dreg + e, dreg + e, V_1) for e in range(n)]
            if n >= 3: L += ['v_or3_b32 v%d, v%d, v%d, v%d' % (dreg, dreg, dreg + 1, dreg + 2)]
            if n == 4: L += ['v_or_b32 v%d, v%d, v%d' % (dreg, dreg, dreg + 3)]
            L += ['v_cmp_ne_u32 vcc, 0, v%d' % dreg]
            return L
        slow, ok = a.newlabel(name + '_sl'), a.newlabel(name + '_ok')
        for s in chk(): a(s)
        a('s_nop 1')
        a('s_cbranch_vccnz %s' % slow)
        a.label(ok)
        slow_paths.append((slow, ok, load_ins, chk(), tmp_s))

    a('s_cmp_ge_u32 s2, 256')
    a('s_cbranch_scc1 %s' % end)
    stamp(a, 0)
    a('s_load_dwordx16 s[4:19], s[0:1], 0')
    a('s_load_dwordx8 s[20:27], s[0:1], 64')
    a('s_load_dwordx2 s[28:29], s[0:1], 96')
    a('v_lshrrev_b32 v1, 6, v0')
    a('v_and_b32 v0, 63, v0')
    a('v_readfirstlane_b32 s%d, v1' % sW)
    a('s_and_b32 s31, s2, 7')
    a('s_lshl_b32 s31, s31, 2')
    a('s_lshr_b32 s61, s2, 3')
    a('s_and_b32 s61, s61, 3')
    a('s_add_u32 s31, s31, s61')
    a('s_lshr_b32 s3, s2, 5')
    CKV, WUK, WUV, X, DBG = R1, R2, R3, R4, R5
    VA, VW = 8, 12
    a('v_lshrrev_b32 v6, 3, v0')
    a('v_lshlrev_b32 v6, 10, v6')
    a('v_lshrrev_b32 v7, 4, v0')
    a('v_and_b32 v12, 7, v0')
    a('v_xor_b32 v12, v12, v7')
    a('v_xor_b32 v13, 4, v12')
    a('v_lshl_add_u32 v12, v12, 4, v6')
    a('v_lshl_add_u32 v13, v13, 4, v6')
    for j in range(4): a('v_add_u32 v%d, %d, v%d' % (VA + j, j * (8192 - 1024), 12 + (j & 1)))
    a('v_bfe_u32 v16, v0, 1, 3')
    a('v_xor_b32 v16, v16, v7')
    a('v_xor_b32 v17, 4, v16')
    a('v_and_b32 v18, 1, v0')
    a('v_lshlrev_b32 v18, 4, v18')
    a('v_lshl_add_u32 v18, v7, 13, v18')
    a('v_lshl_add_u32 v16, v16, 5, v18')
    a('v_lshl_add_u32 v17, v17, 5, v18')
    for j in range(4): a('v_add_u32 v%d, %d, v%d' % (VW + j, j * (32768 - 1024), 16 + (j >> 1)))
    sA, sWo, sLA, sLW, sA2 = 56, 57, 58, 59, 60
    a('s_lshl_b32 s56, s%d, 2' % sI)
    a('s_add_u32 s56, s56, s%d' % sW)
    a('s_lshl_b32 s56, s56, 16')
    a('s_lshl_b32 s57, s%d, 17' % sW)
    a('s_lshl_b32 s58, s%d, 8' % sH)
    a('s_add_u32 s57, s57, s58')
    a('s_lshl_b32 s58, s%d, 13' % sW)
    a('s_lshl_b32 s59, s%d, 12' % sW)
    a('s_add_u32 s59, s59, 65536')
    a('v_lshrrev_b32 v2, 5, v0')
    a('v_and_b32 v3, 31, v0')
    a('s_lshl_b32 s61, s2, 2')
    a('s_add_u32 s61, s61, s%d' % sW)
    a('s_lshl_b32 s61, s61, 1')
    a('v_add_u32 v4, s61, v2')
    a('v_mul_u32_u24 v5, 1280, v4')
    a('v_lshl_add_u32 v5, v3, 3, v5')
    a('v_lshlrev_b32 v%d, 4, v0' % V_LANE16)
    vm = VM(); ids = {}
    def issue(it):
        if isinstance(it, str): return it
        ids[it[0]] = vm.op()
        return it[1]
    def p1_dma(st):
        slot = st & 1; t = ('p1', st)
        L = ['s_add_u32 m0, s%d, %d' % (sLA, slot * 32768), 's_add_u32 s%d, s%d, 32768' % (sA2, sA)]
        L += [(t, 'buffer_load_dwordx4 v%d, %s, s%d offen offset:%d lds' % (VA + j, sr(CKV, 4), sA, 1024 * j)) for j in range(4)]
        L += ['s_add_u32 m0, s%d, %d' % (sLW, slot * 32768), 's_add_u32 s%d, s%d, 128' % (sA, sA)]
        L += [(t, 'buffer_load_dwordx4 v%d, %s, s%d offen offset:%d lds' % (VW + j, sr(WUK, 4), sWo, 1024 * j)) for j in range(4)]
        L += ['s_add_u32 m0, s%d, %d' % (sLA, slot * 32768 + 4096), 's_nop 0']
        L += [(t, 'buffer_load_dwordx4 v%d, %s, s%d offen offset:%d lds' % (VA + j, sr(CKV, 4), sA2, 1024 * j)) for j in range(4)]
        L += ['s_add_u32 m0, s%d, %d' % (sLW, slot * 32768 + 16384), 's_nop 0']
        L += [(t, 'buffer_load_dwordx4 v%d, %s, s%d offen offset:%d lds' % (VW + j, sr(WUV, 4), sWo, 1024 * j)) for j in range(4)]
        L += ['s_add_u32 s%d, s%d, %d' % (sWo, sWo, 64 * 8192)]
        return L
    a('s_waitcnt lgkmcnt(0)')
    for n_, r_ in (('x', X), ('ckv', CKV), ('wuk', WUK), ('wuv', WUV), ('ws', WS)):
        for s in srd(n_, r_): a(s)
    XR = 192
    a('v_mov_b32 v52, 0')
    a('s_mov_b32 s79, 0x%x' % FE)
    a(issue(('ep', 'buffer_load_dword v%d, v52, %s, s79 offen %s' % (V_1, sr(WS, 4), WT))))
    for j in range(5): a(issue(('x', 'buffer_load_dwordx2 %s, v5, %s, 0 offen offset:%d' % (vr(XR + 2 * j, 2), sr(X, 4), 256 * j))))
    PFB = 'b' in os.environ.get('MX', '')
    if PFB:
        a('s_lshr_b32 s61, s2, 3'); a('s_lshl_b32 s61, s61, 2'); a('s_add_u32 s61, s61, s%d' % sW)
        a('v_lshlrev_b32 v20, 7, v0')
        a('s_lshl_b32 s62, s61, 14'); a('s_add_u32 s63, s62, 8192')
        a('v_bfe_u32 v22, v0, 3, 2'); a('v_lshlrev_b32 v22, 13, v22'); a('v_and_b32 v23, 7, v0'); a('v_lshl_add_u32 v22, v23, 7, v22')
        a('s_lshl_b32 s64, s61, 15'); a('s_and_b32 s65, s2, 7'); a('s_lshl_b32 s65, s65, 10'); a('s_add_u32 s64, s64, s65')
        a(issue(('pf', 'buffer_load_dword v240, v20, %s, s62 offen' % sr(CKV, 4))))
        a(issue(('pf', 'buffer_load_dword v241, v22, %s, s64 offen' % sr(WUK, 4))))
        a(issue(('pf', 'buffer_load_dword v242, v22, %s, s64 offen' % sr(WUV, 4))))
        a(issue(('pf', 'buffer_load_dword v243, v20, %s, s63 offen' % sr(CKV, 4))))
    for it in p1_dma(0) + p1_dma(1): a(issue(it))
    a('s_lshr_b32 s61, s2, 3')
    a('s_lshl_b32 s61, s61, 2')
    a('s_add_u32 s61, s61, s%d' % sW)
    TC, TW, TX = 48, 49, 50
    a('v_bfe_u32 v20, v0, 1, 4')
    a('v_lshlrev_b32 v20, 10, v20')
    a('v_and_b32 v21, 1, v0')
    a('v_lshl_add_u32 v20, v21, 7, v20')
    a('s_lshl_b32 s62, s61, 14')
    a('v_add_u32 v%d, s62, v20' % TC)
    a('v_and_b32 v20, 7, v0')
    a('v_lshlrev_b32 v20, 7, v20')
    a('s_lshl_b32 s62, s61, 13')
    a('s_and_b32 s63, s2, 7')
    a('s_lshl_b32 s63, s63, 10')
    a('s_add_u32 s62, s62, s63')
    a('v_add_u32 v%d, s62, v20' % TW)
    def pf_chunk(c):
        if PFB: return []
        return ['s_mov_b32 s16, %d' % ((c + 1) * 128 * 8192),
                ('pf', 'buffer_load_dword v240, v%d, %s, 0 offen offset:%d' % (TC, sr(CKV, 4), 256 * (c + 1))),
                ('pf', 'buffer_load_dword v241, v%d, %s, s16 offen' % (TW, sr(WUK, 4))),
                ('pf', 'buffer_load_dword v242, v%d, %s, s16 offen' % (TW, sr(WUV, 4)))]
    for it in pf_chunk(0): a(issue(it))
    if 'i' not in os.environ.get('MX', ''):
        a('s_getpc_b64 s[64:65]')
        a.label(name + '_pc')
        a('s_sub_u32 s64, s64, %s_pc-%s' % (name, name))
        a('s_subb_u32 s65, s65, 0')
        a('v_and_b32 v20, 7, v0')
        a('v_lshlrev_b32 v20, 7, v20')
        a('s_lshl_b32 s62, s61, 10')
        a('v_add_u32 v20, s62, v20')
        a('v_min_u32 v20, %s_codeend-%s-4, v20' % (name, name))
        a(issue(('pf', 'global_load_dword v249, v20, s[64:65]')))
    TQ, TG = 53, 54
    a('v_min_u32 v20, 39, v0')
    a('v_lshrrev_b32 v21, 3, v20')
    a('s_mul_i32 s62, s61, 5')
    a('v_add_u32 v21, s62, v21')
    a('v_and_b32 v20, 7, v20')
    a('v_lshlrev_b32 v20, 7, v20')
    a('v_lshl_add_u32 v20, v21, 13, v20')
    a('v_add_u32 v%d, s63, v20' % TQ)
    a('v_min_u32 v20, 19, v0')
    a('v_lshrrev_b32 v21, 2, v20')
    a('v_add_u32 v21, s62, v21')
    a('v_mul_u32_u24 v21, 3456, v21')
    a('s_and_b32 s63, s2, 7')
    a('s_lshl_b32 s63, s63, 2')
    a('s_mul_i32 s64, s63, 37'); a('s_lshr_b32 s64, s64, 8')
    a('s_sub_u32 s63, s63, s64')
    a('v_and_b32 v20, 3, v20')
    a('v_add_u32 v20, s63, v20')
    a('v_min_u32 v20, 26, v20')
    a('v_lshl_add_u32 v%d, v20, 7, v21' % TG)
    a('s_mul_i32 s62, s61, 20480')
    a('v_and_b32 v20, 31, v0')
    a('v_lshlrev_b32 v20, 7, v20')
    a('v_add_u32 v%d, s62, v20' % TX)
    def xn_touch(j):
        return ['s_mov_b32 s16, %d' % (4096 * j), ('pf', 'buffer_load_dword v243, v%d, %s, s16 offen' % (TX, sr(WS, 4)))]
    RA, RW = 16, 18
    a('s_lshr_b32 s61, s%d, 1' % sW)
    a('s_lshl_b32 s61, s61, 14')
    a('v_bfe_u32 v20, v0, 1, 3')
    a('v_xor_b32 v20, v20, v7')
    a('v_and_b32 v21, 15, v0')
    a('v_lshlrev_b32 v21, 7, v21')
    a('v_add_u32 v21, s61, v21')
    a('v_lshl_add_u32 v%d, v20, 4, v21' % RA)
    a('v_xor_b32 v20, 4, v20')
    a('v_lshl_add_u32 v%d, v20, 4, v21' % (RA + 1))
    a('v_bfe_u32 v22, v0, 2, 2')
    a('v_lshl_add_u32 v23, v7, 3, v22')
    a('v_lshlrev_b32 v23, 8, v23')
    a('v_and_b32 v24, 3, v0')
    a('v_lshl_add_u32 v23, v24, 3, v23')
    a('v_add_u32 v23, 65536, v23')
    a('v_bfe_u32 v22, v0, 2, 3')
    a('s_and_b32 s62, s%d, 1' % sW)
    a('s_lshl_b32 s62, s62, 2')
    a('v_xor_b32 v22, s62, v22')
    for nb in range(4):
        a('v_xor_b32 v24, %d, v22' % nb)
        a('v_lshl_add_u32 v%d, v24, 5, v23' % (RW + nb))
    P_XOFF2, P_WOFF, P_WRD = 32, 33, 40
    a('v_add_u32 v%d, 20480, v%d' % (P_XOFF2, V_LANE16))
    a('v_lshrrev_b32 v25, 3, v0')
    a('v_bfe_u32 v26, v0, 1, 2')
    a('v_bfe_u32 v27, v0, 4, 2')
    a('v_xor_b32 v26, v26, v27')
    a('v_lshlrev_b32 v26, 5, v26')
    a('v_and_b32 v27, 1, v0')
    a('v_lshl_add_u32 v26, v27, 4, v26')
    a('v_lshl_add_u32 v%d, v25, 13, v26' % P_WOFF)
    a('v_add_u32 v%d, %d, v%d' % (P_WOFF + 1, 8 * 8192 - 1024, P_WOFF))
    a('v_mul_u32_u24 v25, 3456, v25')
    a('v_add_u32 v%d, v25, v26' % (P_WOFF + 2))
    a('v_add_u32 v%d, %d, v%d' % (P_WOFF + 3, 8 * 3456 - 1024, P_WOFF + 2))
    a('v_lshrrev_b32 v25, 2, v0')
    a('v_lshlrev_b32 v25, 7, v25')
    a('v_and_b32 v26, 3, v0')
    a('v_lshl_add_u32 v25, v26, 3, v25')
    a('v_add_u32 v25, 65536, v25')
    a('v_bfe_u32 v26, v0, 3, 2')
    for c in range(4):
        a('v_xor_b32 v27, %d, v26' % c)
        a('v_lshl_add_u32 v%d, v27, 5, v25' % (P_WRD + c))
        a('v_add_u32 v%d, 65536, v%d' % (P_WRD + 4 + c, P_WRD + c))
    s_w = [64, 65, 66, 67]; s_q = [68, 69]; sLW2, sCT = 70, 71; sQ = [72, 73]
    a('s_mul_i32 s17, s%d, 37' % sH)
    a('s_lshr_b32 s17, s17, 8')
    a('s_sub_u32 s71, s%d, s17' % sH)
    a('s_lshl_b32 s70, s%d, 11' % sW)
    a('s_lshl_b32 s72, s%d, 2' % sI)
    a('s_add_u32 s72, s72, s%d' % sW)
    a('s_lshl_b32 s72, s72, 1')
    a('s_sub_u32 s73, 15, s%d' % sI)
    a('s_lshl_b32 s73, s73, 2')
    a('s_add_u32 s73, s73, s%d' % sW)
    a('s_lshl_b32 s73, s73, 1')
    a('s_mul_i32 s68, s72, 20480')
    a('s_mul_i32 s69, s73, 20480')
    assert WS_XN == 0
    a('s_lshl_b32 s64, s%d, 17' % sW)
    a('s_lshl_b32 s65, s%d, 8' % sH)
    a('s_add_u32 s64, s64, s65')
    a('s_add_u32 s65, s64, 128')
    a('s_mul_i32 s66, s%d, %d' % (sW, 16 * 3456))
    a('s_lshl_b32 s67, s%d, 7' % sCT)
    a('s_add_u32 s66, s66, s67')
    a('s_mov_b32 s67, s66')
    a('s_mul_i32 s61, s17, 7')
    a('s_sub_u32 s61, s%d, s61' % sH)
    a('s_cmp_eq_u32 s61, 6')
    a('s_cselect_b32 s74, 0, 0x%x' % SIZE['wg'])
    a('s_cmp_ge_u32 s%d, 27' % sCT)
    a('s_cselect_b32 s74, 0, s74')
    a('s_lshl_b32 s17, s17, 3'); a('s_add_u32 s17, s17, s%d' % sI)
    a('s_lshl_b32 s17, s17, 2'); a('s_add_u32 s17, s17, s%d' % sW)
    TH = 51
    a('s_lshl_b32 s61, s17, 13')
    a('s_cmp_eq_u32 s74, 0')
    a('s_cselect_b32 s61, s61, 0x20000000')
    a('v_lshlrev_b32 v25, 7, v0')
    a('v_add_u32 v%d, s61, v25' % TH)
    def helper_touch(nm_, rounds, r_):
        L = srd(nm_, r_)
        if 'h' in os.environ.get('MX', ''): rounds = []
        for j in rounds:
            L += ['s_mov_b32 s17, %d' % (j * 160 * 8192), ('pf', 'buffer_load_dword v248, v%d, %s, s17 offen' % (TH, sr(r_, 4)))]
        return L
    a('s_lshl_b32 s61, s%d, 2' % sW)
    a('s_lshl_b32 s76, s2, 4'); a('s_add_u32 s76, s76, s61')
    a('s_add_u32 s75, s76, 0x%x' % FK)
    a('s_add_u32 s77, s76, 0x%x' % FC)
    a('s_and_b32 s78, s76, 0x1ff')
    a('s_add_u32 s76, s76, 0x%x' % FH)
    a('s_sub_u32 s62, 15, s%d' % sI); a('s_lshl_b32 s62, s62, 9')
    a('s_add_u32 s78, s78, s62'); a('s_add_u32 s78, s78, 0x%x' % FC)
    a('v_cmp_eq_u32 vcc, 0, v0')
    a('v_mov_b32 v25, 0x20000000')
    a('s_lshl_b32 s26, s2, 2'); a('s_add_u32 s26, s26, 0x%x' % FL)
    a('v_cndmask_b32 v%d, v25, 0, vcc' % V_ONE)
    a('s_cmp_eq_u32 s%d, 0' % sW)
    a('s_cselect_b32 s26, s26, 0x20000000')
    a('s_lshl_b32 s27, s2, 2'); a('s_or_b32 s27, s27, s%d' % sW)
    a('s_cmp_eq_u32 s27, 0')
    a('s_cselect_b32 s27, s79, 0x20000000')
    a('s_mov_b32 s79, 0x%x' % FL)
    def flag_store(sreg, val=V_1):
        return ('fl', 'buffer_store_dword v%d, v%d, %s, s%d offen %s' % (val, V_ONE, sr(WS, 4), sreg, WT))
    a('s_waitcnt vmcnt(%d)' % vm.cnt(ids['x']))
    stamp(a, 1)
    a('s_mov_b32 s61, 0x9e3779b1')
    a('v_mul_lo_u32 v%d, s61, v%d' % (V_1, V_1))
    a('v_add_u32 v%d, 0x7f4a7c15, v%d' % (V_1, V_1))
    import k1
    b = Asm(); k1.ln_part(b, XR, WS, 4, 3)
    ln_lines = [l.strip() for l in b.lines]
    for l in ln_lines[:-20]: a(l)
    a('v_lshrrev_b32 v224, 3, v3')
    a('v_lshlrev_b32 v224, 9, v224')
    a('v_and_b32 v225, 3, v3')
    a('v_lshl_add_u32 v224, v225, 7, v224')
    a('v_and_b32 v225, 7, v4')
    a('v_lshl_add_u32 v224, v225, 4, v224')
    a('v_bfe_u32 v225, v3, 2, 1')
    a('v_lshl_add_u32 v224, v225, 3, v224')
    a('v_add_u32 v224, %d, v224' % (128 * 1024))
    for j in range(5): a('ds_write_b64 v224, %s offset:%d' % (vr(XR + 2 * j, 2), 2048 * j))
    a('s_lshl_b32 s61, s%d, 10' % sW)
    a('s_add_u32 s61, s61, %d' % (128 * 1024))
    a('v_add_u32 v225, s61, v%d' % V_LANE16)
    a('v_lshrrev_b32 v226, 3, v0')
    a('v_lshlrev_b32 v226, 8, v226')
    a('v_and_b32 v227, 7, v0')
    a('v_lshl_add_u32 v226, v227, 4, v226')
    a('s_lshr_b32 s61, s2, 1')
    a('s_mul_i32 s61, s61, 20480')
    a('s_and_b32 s62, s2, 1')
    a('s_lshl_b32 s62, s62, 7')
    a('s_add_u32 s61, s61, s62')
    a('s_lshl_b32 s62, s%d, 11' % sW)
    a('s_add_u32 s61, s61, s62')
    a('s_add_u32 s62, s61, 8192')
    a('s_add_u32 s63, s61, 16384')
    a('s_cmp_lt_u32 s%d, 2' % sW)
    a('s_cselect_b32 s63, s63, 0x20000000')
    xn_reads = ['ds_read_b128 %s, v225 offset:%d' % (vr(XR + 4 * t, 4), 4096 * t) for t in range(3)]
    xn_stores = [('xn', 'buffer_store_dwordx4 %s, v226, %s, s%d offen %s' % (vr(XR + 4 * t, 4), sr(WS, 4), 61 + t, WT)) for t in range(3)]
    MX = os.environ.get('MX', '')
    if 'x' in MX: xn_stores = []
    if 'p' in MX: xn_stores = [(t, s.replace(WT, '')) for t, s in xn_stores]
    WQ, WG, WU = R1, R2, R3
    WSLOT = [128 * 1024, 64 * 1024, 96 * 1024]
    P_ACCV, P_ACCA, P_WF, P_ACT = 128, 0, 128, 192
    srdm = [WQ, WQ, WG, WU]; stride = [8192, 8192, 3456, 3456]
    def w_dma(st, nm):
        L = []
        for m in range(nm):
            L.append('s_add_u32 m0, s%d, %d' % (sLW2, WSLOT[st % 3] + m * 8192))
            L.append('s_nop 0')
            for j in range(2):
                L.append((('w', st), 'buffer_load_dwordx4 v%d, %s, s%d offen offset:%d lds' % (P_WOFF + 2 * (m // 2) + j, sr(srdm[m], 4), s_w[m], 1024 * j)))
            L.append('s_add_u32 s%d, s%d, %d' % (s_w[m], s_w[m], 64 * stride[m]))
        return L
    def a_load(k):
        base = P_ACT + 16 * (k % 4)
        L = [(('a', k), 'buffer_load_dwordx4 %s, v%d, %s, s%d offen offset:%d' % (ar(base + 4 * qi, 4), (V_LANE16, P_XOFF2)[qi % 2], sr(WS, 4), s_q[qi // 2], 1024 * (k % 4))) for qi in range(4)]
        if k % 4 == 3: L += ['s_add_u32 s%d, s%d, 4096' % (s, s) for s in s_q]
        return L
    FR = 64
    def reads(slot, ks, fs):
        base = FR + 64 * fs
        def A(i): return ['ds_read_b128 %s, v%d offset:%d' % (vr(base + 4 * i, 4), RA + ks, slot * 32768 + i * 2048)]
        def W(mat, nb): return ['ds_read_b64_tr_b16 %s, v%d offset:%d' % (vr(base + 32 + 16 * mat + 4 * nb + 2 * r, 2), RW + nb,
                                slot * 32768 + mat * 16384 + (32 * ks + 4 * r) * 256) for r in range(2)]
        L = A(0)
        for nb in range(4): L += W(0, nb)
        for nb in range(4): L += W(1, nb)
        for i in range(1, 8): L += A(i)
        return L
    def mfmas(fs, first):
        base = FR + 64 * fs; L = []
        for rb in range(8):
            act = vr(base + 4 * rb, 4)
            for mat in range(2):
                for nb in range(4):
                    w = vr(base + 32 + 16 * mat + 4 * nb, 4)
                    d = ar((rb * 8 + mat * 4 + nb) * 4, 4); c = '0' if first else d
                    L.append('%s %s, %s, %s, %s' % ((MF16, d, w, act, c) if mat == 0 else (MF16, d, act, w, c)))
        return L
    stamp(a, 2)
    a('s_waitcnt vmcnt(%d) lgkmcnt(0)' % vm.cnt(ids[('p1', 0)]))
    a('s_barrier')
    stamp(a, 3)
    for s in reads(0, 0, 0) + xn_reads: a(s)
    ln_poll = 'buffer_load_dwordx4 v[244:247], v%d, %s, s79 offen %s' % (V_LANE16, sr(WS, 4), WT)
    NST = 8
    pend = []
    P1SP = int(os.environ.get('P1SP', 4))
    for st in range(NST):
        slot = st & 1
        for ks in range(2):
            rd = []
            if ks == 1:
                if st < NST - 1:
                    assert not any(x[0] == ('p1', st + 1) for x in pend if not isinstance(x, str))
                    a('s_waitcnt vmcnt(%d) lgkmcnt(0)' % vm.cnt(ids[('p1', st + 1)])); a('s_barrier')
                    rd = reads(1 - slot, 0, 0)
                else: a('s_waitcnt lgkmcnt(0)')
                if st + 2 < NST: pend += p1_dma(st + 2)
                if st == 0: pend += xn_stores
                if st == 2: pend = [flag_store(26)] + pend
                if st in (0, 1): pend += pf_chunk(st + 1)
                if st == 2: pend += [('pf', 'global_load_dword v240, v%d, s[8:9]' % TQ)]
                if st == 3: pend += [('pf', 'global_load_dword v241, v%d, s[18:19]' % TG), ('pf', 'global_load_dword v242, v%d, s[20:21]' % TG)]
                if st == 4: pend = [('lnp', ln_poll)] + pend
                if st == 5:
                    gate(ln_poll, 244, 4, 1, 61)
                    pend += [flag_store(27)]
                    pend += xn_touch(0) + xn_touch(1)
                if st == 6: pend += w_dma(1, 4) + xn_touch(2) + xn_touch(3)
                if st == 7: pend += xn_touch(4)
            else:
                a('s_waitcnt lgkmcnt(0)')
                rd = reads(slot, 1, 1)
                if st == 6:
                    pend += srd('wq', WQ) + srd('wg', WG) + srd('wu', WU) + ['s_mov_b32 s%d, s74' % (WG + 2), 's_mov_b32 s%d, s74' % (WU + 2)] + w_dma(0, 4)
            lastv = -10
            for g, m in enumerate(mfmas(ks, st == 0 and ks == 0)):
                a(m)
                if g % 2 == 0 and rd: a(rd.pop(0))
                elif pend and g % 2 == 1:
                    while pend and pend[0] == 's_nop 0': pend.pop(0)
                    if pend and (isinstance(pend[0], str) or g - lastv >= P1SP):
                        if not isinstance(pend[0], str): lastv = g
                        a(issue(pend.pop(0)))
            stamp(a, 1 + 2 * st + ks, 'p1')
        if st == 3: stamp(a, 4); cstamp(a, 1)
    assert not pend
    stamp(a, 5); cstamp(a, 2)
    a('s_lshl_b32 s56, s%d, 20' % sH)
    a('s_lshl_b32 s57, s%d, 17' % sI)
    a('s_add_u32 s56, s56, s57')
    a('s_lshr_b32 s57, s%d, 1' % sW)
    a('s_lshl_b32 s57, s57, 16')
    a('s_add_u32 s56, s56, s57')
    a('s_add_u32 s56, s56, 0x%x' % WS_KV)
    a('s_and_b32 s57, s%d, 1' % sW)
    a('s_lshl_b32 s58, s57, 11')
    a('s_add_u32 s58, s58, s56')
    a('s_lshl_b32 s59, s57, 12')
    a('s_add_u32 s59, s59, s56')
    a('s_add_u32 s59, s59, 16384')
    cnt = [0]
    def conv(b0, b1, dst=None):
        T = 128 + 16 * (cnt[0] % 4); cnt[0] += 1
        if dst is None: dst = T + 8
        for e in range(4): a('v_accvgpr_read_b32 v%d, a%d' % (T + e, b0 * 4 + e))
        for e in range(4): a('v_accvgpr_read_b32 v%d, a%d' % (T + 4 + e, b1 * 4 + e))
        for e in range(4): a('v_cvt_pk_bf16_f32 v%d, v%d, v%d' % (dst + e, T + 2 * e, T + 2 * e + 1))
        return dst
    def store(T, sb, off):
        return ['s_add_u32 s63, s%d, %d' % (sb, off & ~4095),
                ('kv', 'buffer_store_dwordx4 %s, v%d, %s, s63 offen offset:%d %s' % (vr(T, 4), V_LANE16, sr(WS, 4), off & 4095, WT))]
    def jobs(rp):
        J = []
        for rb in (2 * rp, 2 * rp + 1):
            for s in range(2): J.append((rb * 8 + 2 * s, rb * 8 + 2 * s + 1, 16, (rb // 4) * 32768 + ((rb % 4) * 4 + s) * 1024))
        rb = 2 * rp
        for nb in range(4): J.append((rb * 8 + 4 + nb, (rb + 1) * 8 + 4 + nb, 17, (rb // 4) * 32768 + (((rb % 4) // 2) * 8 + nb) * 1024))
        return J
    a('s_mov_b32 s16, s58'); a('s_mov_b32 s17, s59')
    a('s_lshl_b32 s57, s%d, 14' % sW)
    a('v_add_u32 v26, s57, v%d' % V_LANE16)
    J1 = jobs(3) + jobs(2); J2 = jobs(1) + jobs(0)
    for n_, (b0, b1, sb, off) in enumerate(J1[:8]): conv(b0, b1, 64 + 4 * n_)
    for k in range(4):
        for it in a_load(k): a(issue(it))
    a('s_waitcnt vmcnt(%d)' % vm.cnt(ids[('w', 0)]))
    a('s_barrier')
    for it in w_dma(2, 4): a(issue(it))
    for n_, (b0, b1, sb, off) in enumerate(J1[8:]): conv(b0, b1, 96 + 4 * n_)
    for n_, (b0, b1, sb, off) in enumerate(J2):
        T = conv(b0, b1)
        a('ds_write_b128 v26, %s offset:%d' % (vr(T, 4), 1024 * n_))
    kv_sched = {}
    KVEND = int(os.environ.get('KVEND', 14))
    def kstep(n_): return (n_ * KVEND) // 32
    for n_, (b0, b1, sb, off) in enumerate(J1):
        kv_sched.setdefault(kstep(n_), []).extend(store(64 + 4 * n_, sb, off))
        kv_sched.setdefault(kstep(n_) + 1, []).append('ds_read_b128 %s, v26 offset:%d' % (vr(64 + 4 * n_, 4), 1024 * n_))
    for n_, (b0, b1, sb, off) in enumerate(J2):
        kv_sched.setdefault(kstep(16 + n_), []).extend(store(64 + 4 * n_, sb, off))
    stamp(a, 6); cstamp(a, 3)
    sBASE, sK0, sK1, sT, sC0, sC1, sS1 = 56, 57, 58, 59, 60, 61, 62
    a('s_lshl_b32 s56, s%d, 20' % sH)
    a('s_lshl_b32 s59, s%d, 12' % sW)
    a('s_add_u32 s56, s56, s59')
    a('s_add_u32 s56, s56, 0x%x' % WS_KV)
    a('s_lshl_b32 s60, s%d, 13' % sW)
    a('s_add_u32 s60, s60, %d' % (65536 + 32768))
    a('s_add_u32 s61, s60, 16384')
    a('s_add_u32 s62, s56, 32768')
    a('s_add_u32 s57, s56, 65536')
    a('s_add_u32 s58, s57, 32768')
    a('v_add_u32 v%d, 16384, v%d' % (V_LANE16V, V_LANE16))
    a('v_and_b32 v%d, 7, v0' % V_PA)
    a('v_lshlrev_b32 v%d, 9, v%d' % (V_PA, V_PA))
    a('s_and_b32 s79, s2, 31')
    a('s_lshl_b32 s79, s79, 4')
    a('s_add_u32 s79, s79, 0x%x' % FK)
    kv_poll0 = 'buffer_load_dwordx4 v[20:23], v52, %s, s79 offen %s' % (sr(WS, 4), WT)
    kv_poll = 'buffer_load_dwordx4 v[208:211], v%d, %s, s79 offen %s' % (V_PA, sr(WS, 4), WT)
    def kv_dma(m0expr, voff, ssrc, tag):
        return [m0expr, 's_nop 0'] + [(tag, 'buffer_load_dwordx4 v%d, %s, s%d offen offset:%d lds' % (voff, sr(WS, 4), ssrc, 1024 * j)) for j in range(4)]
    def w_read(k, n):
        st, ks = k // 2, k % 2
        off = WSLOT[st % 3] - 65536
        grp = off // 65536; off %= 65536
        m, c = n // 4, n % 4
        return ['ds_read_b64_tr_b16 %s, v%d offset:%d' % (ar(P_WF + 4 * n + 2 * r, 2), P_WRD + 4 * grp + c, off + m * 8192 + (32 * ks + 16 * r) * 128) for r in range(2)]
    def p2_loop(nm):
        NB = 4 * nm; NS2 = 10
        for n in range(NB):
            for s in w_read(0, n): a(s)
        pend = []
        for k in range(2 * NS2):
            st, ks = k // 2, k % 2
            base = P_ACT + 16 * (k % 4)
            need = ids[('a', k)]
            if k == 18: need = max(need, ids['kvp'])
            if k == KVEND + 1:
                assert not any(x[0] == 'kv' for x in pend if not isinstance(x, str))
                need = max(need, ids['kv'])
            assert not any(x[0] == ('a', k) for x in pend if not isinstance(x, str))
            a('s_waitcnt vmcnt(%d) lgkmcnt(8)' % min(63, vm.cnt(need)))
            pend += kv_sched.get(k, [])
            if k == KVEND + 1: pend += [flag_store(75)]
            if k == 17: pend += [('kvp', kv_poll0)]
            if k == 18:
                gate(kv_poll0, 20, 4, 1, 63)
                pend += kv_dma('s_add_u32 m0, s59, 0', V_LANE16, sBASE, 'k0') + kv_dma('s_add_u32 m0, s59, 16384', V_LANE16, sS1, 'k1')
                pend += kv_dma('s_add_u32 m0, s59, 32768', V_LANE16, sK0, 'k2')
            if k == 19:
                pend += kv_dma('s_add_u32 m0, s59, 65536', V_LANE16V, sBASE, 'v0')
                pend += kv_dma('s_add_u32 m0, s59, 49152', V_LANE16, sK1, 'k3') + kv_dma('s_add_u32 m0, s59, %d' % (65536 + 16384), V_LANE16V, sS1, 'v1')
            if k > 0 and k + 3 < 2 * NS2: pend = a_load(k + 3) + pend
            for n in range(NB):
                if n % 4 == 0 and n > 0:
                    a('s_waitcnt lgkmcnt(%d)' % (8 if k < 2 * NS2 - 1 else min(8, 2 * (NB - n - 4))))
                for qi in range(4):
                    d = ar(P_ACCA + (n * 4 + qi) * 4, 4) if n < 8 else vr(P_ACCV + ((n - 8) * 4 + qi) * 4, 4)
                    a('%s %s, %s, %s, %s' % (MF16, d, ar(P_WF + 4 * n, 4), ar(base + 4 * qi, 4), '0' if k == 0 else d))
                    if qi < 3:
                        while pend and pend[0] == 's_nop 0': pend.pop(0)
                        if pend: a(issue(pend.pop(0)))
                if k + 1 < 2 * NS2:
                    if n == 0 and ks == 1:
                        assert not any(x[0] == ('w', st + 1) for x in pend if not isinstance(x, str))
                        a('s_waitcnt vmcnt(%d) lgkmcnt(0)' % min(63, vm.cnt(ids[('w', st + 1)])))
                        a('s_barrier')
                        if st + 3 < NS2: pend = pend + w_dma(st + 3, nm)
                    for s in w_read(k + 1, n): a(s)
            if k < 16: stamp(a, 1 + k, 'p2a')
            if k >= 4: stamp(a, k - 3, 'p2b')
        assert not pend
    qonly, qdone = name + '_qonly', name + '_qdone'
    a('s_cmp_eq_u32 s74, 0')
    a('s_cbranch_scc1 %s' % qonly)
    save = (vm.n, dict(ids))
    p2_loop(4)
    stamp(a, 7); cstamp(a, 4)
    a('s_lshl_b32 s64, s72, 10')
    a('s_lshl_b32 s65, s73, 10')
    a('s_lshl_b32 s66, s%d, 18' % sCT)
    a('s_add_u32 s66, s66, 0x%x' % WS_H)
    a('s_add_u32 s64, s64, s66')
    a('s_add_u32 s65, s65, s66')
    a('v_add_u32 v%d, %d, v%d' % (P_XOFF2, 128 * 1024, V_LANE16))
    a('s_nop 3')
    c2 = 0
    for qi in range(4):
        for s in range(2):
            T = 64 + 4 * (c2 % 8); c2 += 1
            for cc in range(2):
                g = P_ACCV + ((2 * s + cc) * 4 + qi) * 4; u = g + 64
                for e in range(4): a('v_mul_f32 v%d, v%d, v%d' % (g + e, g + e, u + e))
                for e in range(2): a('v_cvt_pk_bf16_f32 v%d, v%d, v%d' % (T + 2 * cc + e, g + 2 * e, g + 2 * e + 1))
            a(issue(('h', 'buffer_store_dwordx4 %s, v%d, %s, s%d offen offset:%d %s' % (vr(T, 4), (V_LANE16, P_XOFF2)[s], sr(WS, 4), 64 + qi // 2, (qi % 2) * 1024, WT))))
    a('s_waitcnt vmcnt(%d)' % vm.cnt(max(ids['k2'], ids['v0'])))
    a('s_branch %s' % qdone)
    a.label(qonly)
    vm.n, ids = save[0], dict(save[1])
    p2_loop(2)
    for it in helper_touch('wd', [0, 1], R4) + helper_touch('wo', [0, 1, 2, 3], R4):
        s_ = issue(it); a(s_.replace('v248', 'v64').replace('s17', 's64'))
    a('s_waitcnt vmcnt(0)')
    a.label(qdone)
    stamp(a, 8)
    a('s_barrier')
    sTHR, sBIG, s2W, sM0, sM1, sDYN, sE0, sE1, sCNT = 64, 65, 66, 67, 68, 69, 70, 71, 63
    def kread(i, p): return 'ds_read_b128 %s, v%d offset:%d' % (ar(A_RING + 4 * (i % R), 4), V_KRD, p * 16384 + i * 1024)
    def vread(i, p): return 'ds_read_b128 %s, v%d offset:%d' % (ar(A_RING + 4 * (i % R), 4), V_VRD, p * 16384 + i * 1024)
    a('v_mov_b32 v%d, v%d' % (V_KRD, V_LANE16))
    a('v_add_u32 v%d, 65536, v%d' % (V_VRD, V_LANE16))
    for i in range(D): a(kread(i, 0))
    a('s_mov_b32 s64, %s' % f2u(math.log2(math.e) / math.sqrt(128.0)))
    for qi in range(4):
        for s in range(4):
            T = 128 + 16 * ((qi * 4 + s) % 4)
            for cc in range(2):
                for e in range(4): a('v_accvgpr_read_b32 v%d, a%d' % (T + 4 * cc + e, P_ACCA + ((2 * s + cc) * 4 + qi) * 4 + e))
            for e in range(8): a('v_mul_f32 v%d, s64, v%d' % (T + e, T + e))
            for e in range(4): a('v_cvt_pk_bf16_f32 v%d, v%d, v%d' % (T + 8 + e, T + 2 * e, T + 2 * e + 1))
            for e in range(4): a('v_accvgpr_write_b32 a%d, v%d' % (A_Q[qi // 2] + ((qi % 2) * 4 + s) * 4 + e, T + 8 + e))
    a('v_and_b32 v5, 15, v0')
    a('v_lshrrev_b32 v6, 4, v0')
    a('v_lshlrev_b32 v6, 2, v6')
    a('v_sub_u32 v5, v5, v6')
    for r in range(4):
        a('v_cmp_gt_i32 vcc, %d, v5' % r)
        a('s_nop 1')
        a('v_cndmask_b32 v%d, 0, 1.0, vcc' % (TRI + r))
    for e in range(4): a('v_mov_b32 v%d, 0x3f803f80' % (V_ONES + e))
    for j in range(16): a('v_mov_b32 v%d, 0' % (NEGM + j))
    a('s_mov_b32 s%d, %s' % (sTHR, f2u(THR)))
    a('s_mov_b32 s%d, %s' % (sBIG, f2u(-BIG)))
    a('s_lshl_b32 s%d, s%d, 1' % (s2W, sW))
    a(kv_poll)
    stamp(a, 9)
    def prefill(st, p, tau, dyn=False):
        for qb in range(2):
            for kb in range(4):
                kap = 4 * tau + kb - qb
                S = SB[st][p] + (kb * 2 + qb) * 4
                if kap < 0:
                    for r in range(4): a('v_mov_b32 v%d, v%d' % (S + r, NEGM + (st * 2 + qb) * 4))
                    continue
                big = sDYN if dyn else sBIG
                a('s_cmp_eq_u32 s%d, %d' % (s2W, kap)); a('s_cselect_b32 s%d, s%d, 0' % (sM0, big))
                a('s_cmp_lt_u32 s%d, %d' % (s2W, kap)); a('s_cselect_b32 s%d, s%d, 0' % (sM1, big))
                a('v_add_f32 v%d, s%d, v%d' % (V_T0, sM1, NEGM + (st * 2 + qb) * 4))
                for r in range(4): a('v_fma_f32 v%d, v%d, s%d, v%d' % (S + r, TRI + r, sM0, V_T0))
        a('s_nop 1')
    def qk_mf(sets, p):
        G = []
        for f in range(16):
            kb, ds = f // 4, f % 4; L = []
            for st, inpl in sets:
                for qb in range(2):
                    d = vr(SB[st][p] + (kb * 2 + qb) * 4, 4)
                    c = vr(NEGM + (st * 2 + qb) * 4, 4) if (ds == 0 and not inpl) else d
                    L.append('%s %s, %s, %s, %s' % (MF16, d, ar(A_RING + 4 * (f % R), 4), ar(A_Q[st] + (qb * 4 + ds) * 4, 4), c))
            G.append(L)
        return G
    def pv_mf(sets, p):
        G = []
        for f in range(16):
            ks, db = f // 8, f % 8; L = []
            for st in sets:
                for qb in range(2):
                    d = ar(A_O[st] + (db * 2 + qb) * 4, 4)
                    L.append('%s %s, %s, %s, %s' % (MF16, d, ar(A_RING + 4 * (f % R), 4), vr(PB[st][p] + (qb * 2 + ks) * 4, 4), d))
            G.append(L)
        return G
    rare_sites = []
    pk = Packer(a)
    def lg_items(n, skip_last):
        return [dict(lo=i, hi=i, lg=i + 4) for i in range(3, n, 4) if not (i == n - 1 and skip_last)]
    def ladds(ex):
        return ['v_add_f32 v%d, v%d, v%d' % (V_L + st * 2 + qb, V_L + st * 2 + qb, LT + (st * 2 + qb) * 4) for st in ex for qb in range(2)]
    def iteration(p, qk, ex, pv, prev_ex, nxt='k', dk=True, dv=True, loop_ctr=None, post_bar=(), pre_bar=()):
        groups = []; rs = []
        if qk:
            groups += qk_mf(qk, p); rs += [kread(i, p) for i in range(16)]
        groups += pv_mf(pv, p); rs += [vread(i, p) for i in range(16)]
        n = len(groups)
        nx = {'k': [kread(i, 1 - p) for i in range(D)], 'v': [vread(i, 1 - p) for i in range(D)], None: [None] * D}[nxt]
        rds = rs[D:] + nx
        bg = n - D
        it = [dict(lo=0, hi=0, ins=s, v=True) for s in ladds(prev_ex)]
        nd = 0
        if dv:
            it.append(dict(lo=0, hi=1, ins='s_sub_u32 m0, s%d, s%d' % ((sC0, sC1)[p], sT)))
            for j, i in enumerate((2, 4, 5, 6)):
                it.append(dict(lo=i, hi=i + 1, ins='buffer_load_dwordx4 v%d, %s, s%d offen offset:%d lds' % (V_LANE16V, sr(WS, 4), (sK0, sK1)[p], 1024 * j)))
            nd += 4
        if dk:
            it.append(dict(lo=8, hi=9, ins='s_add_u32 m0, s%d, %d' % (sT, p * 16384)))
            it.append(dict(lo=8, hi=9, ins='s_add_u32 s%d, s%d, 32768' % ((sK0, sK1)[p], (sK0, sK1)[1 - p])))
            for j, i in enumerate((10, 12, 14, 16)):
                it.append(dict(lo=i, hi=i + 1, ins='buffer_load_dwordx4 v%d, %s, s%d offen offset:%d lds' % (V_LANE16, sr(WS, 4), (sK0, sK1)[p], 1024 * j)))
            nd += 4
        if p == 1:
            if qk: it.append(dict(lo=16 - D, hi=bg - 1, ins='v_xor_b32 v%d, 32768, v%d' % (V_KRD, V_KRD), v=True))
            it.append(dict(lo=bg - 1 if nxt == 'v' else bg, hi=bg - 1 if nxt == 'v' else n - 1, ins='v_xor_b32 v%d, 32768, v%d' % (V_VRD, V_VRD), v=True))
            it.append(dict(lo=13, hi=n - 1, ins='s_xor_b32 s%d, s%d, 32768' % (sT, sT)))
        if nxt is not None:
            it.append(dict(lo=bg - 3, hi=bg - 2, ins='s_waitcnt vmcnt(%d)' % nd))
            it.append(dict(lo=bg - 1, hi=bg - 1, ins='s_barrier'))
        it += lg_items(n, nxt is None)
        it.sort(key=lambda x: (x['hi'], x['lo']))
        lo0 = bg if nxt is not None else 0
        for j, s in enumerate(post_bar):
            it.append(dict(lo=lo0, hi=n - 1, ins=s))
        fin = []
        if ex:
            lts = [LT + (st * 2 + qb) * 4 for st in ex for qb in range(2)]
            if len(lts) == 2: fin.append('v_max_f32 v%d, v%d, v%d' % (V_T0, lts[0], lts[1]))
            else:
                fin.append('v_max3_f32 v%d, v%d, v%d, v%d' % (V_T0, lts[0], lts[1], lts[2]))
                fin.append('v_max_f32 v%d, v%d, v%d' % (V_T0, V_T0, lts[3]))
            fin.append('v_cmp_lt_f32 vcc, s%d, v%d' % (sTHR, V_T0))
        pk.run(groups, rds, it, [(st, 1 - p) for st in ex], [], fin, (1, p) if qk else None, True)
        if loop_ctr: a('s_sub_u32 s%d, s%d, 1' % (loop_ctr[0], loop_ctr[0]))
        if ex:
            stub, back = a.newlabel(name + '_rs'), a.newlabel(name + '_rb')
            a('s_cbranch_vccnz %s' % stub)
            a.label(back)
            rare_sites.append((stub, back, 1 - p, ex))
        if loop_ctr: a('s_cbranch_scc0 %s' % loop_ctr[1])
    def epilogue(st):
        a('s_lshl_b32 s%d, s%d, 10' % (sE0, sQ[st]))
        a('s_lshl_b32 s%d, s%d, 19' % (sE1, sH))
        a('s_add_u32 s%d, s%d, s%d' % (sE0, sE0, sE1))
        a('s_add_u32 s%d, s%d, 0x%x' % (sE0, sE0, WS_CTX))
        a('v_rcp_f32 v%d, v%d' % (V_T0, V_L + st * 2))
        a('v_rcp_f32 v%d, v%d' % (V_T1, V_L + st * 2 + 1))
        a('s_nop 4')
        c3 = 0
        for s in range(4):
            for qb in range(2):
                T = SB[st][0] + 16 * (c3 % 4); c3 += 1
                for cc in range(2):
                    for e in range(4): a('v_accvgpr_read_b32 v%d, a%d' % (T + 4 * cc + e, A_O[st] + ((2 * s + cc) * 2 + qb) * 4 + e))
                for e in range(8): a('v_mul_f32 v%d, v%d, v%d' % (T + e, T + e, (V_T0, V_T1)[qb]))
                for e in range(4): a('v_cvt_pk_bf16_f32 v%d, v%d, v%d' % (T + 8 + e, T + 2 * e, T + 2 * e + 1))
                if qb == 0: a('s_add_u32 s%d, s%d, %d' % (sE1, sE0, s * 128 * 1024))
                a(issue(('ctx', 'buffer_store_dwordx4 %s, v%d, %s, s%d offen offset:%d %s' % (vr(T + 8, 4), V_LANE16, sr(WS, 4), sE1, qb * 1024, WT))))
    a('s_cmp_eq_u32 s%d, 0' % sI)
    a('s_cselect_b32 s%d, s%d, 0' % (sDYN, sBIG))
    prefill(0, 0, 0, dyn=True)
    a('s_waitcnt lgkmcnt(%d)' % (D - 4))
    both = [(0, True), (1, False)]
    rds = [kread(i, 0) for i in range(D, 16)] + [kread(i, 1) for i in range(D)]
    zero = ['v_accvgpr_write_b32 a%d, 0' % i for i in range(128)] + ['v_mov_b32 v%d, 0' % (V_L + j) for j in range(4)]
    pk.run(qk_mf(both, 0), rds, lg_items(16, False), [], zero, [], None, False)
    a('s_nop 3')
    for st in range(2):
        for qb in range(2):
            for s in max_ops(st, 0, qb, V_T0, V_T1): a(s)
            for e in range(4): a('v_sub_f32 v%d, 0, v%d' % (NEGM + (st * 2 + qb) * 4 + e, V_T0))
    prefill(0, 1, 1, dyn=True)
    rds = [kread(i, 1) for i in range(D, 16)] + [kread(i, 0) for i in range(D)]
    it = lg_items(16, False) + [dict(lo=16 - D - 1, hi=16 - D - 1, ins='v_xor_b32 v%d, 32768, v%d' % (V_KRD, V_KRD), v=True)]
    it.sort(key=lambda x: (x['hi'], x['lo']))
    pk.run(qk_mf(both, 1), rds, it, [(1, 0), (0, 0)], [], [], (1, 1), False, sub=True)
    a('s_waitcnt vmcnt(0)')
    a(flag_store(76)[1])
    gate(kv_poll, 208, 4, 1, 63)
    stamp(a, 10); cstamp(a, 5)
    lA, lA_skip, lA_tail2 = name + '_loopA', name + '_skipA', name + '_tail2A'
    a('s_cmp_eq_u32 s%d, 0' % sI)
    a('s_cbranch_scc1 %s' % lA_tail2)
    a('s_sub_u32 s%d, s%d, 2' % (sCNT, sI))
    a('s_cbranch_scc1 %s' % lA_skip)
    a.raw('.p2align 6')
    a.label(lA)
    dn = [(0, False), (1, False)]; BA = [1, 0]
    iteration(0, dn, BA, [0, 1], BA)
    iteration(1, dn, BA, [0, 1], BA, loop_ctr=(sCNT, lA))
    a.label(lA_skip)
    prefill(0, 0, 0)
    iteration(0, both, BA, [0, 1], BA)
    prefill(0, 1, 1)
    iteration(1, both, BA, [0, 1], BA)
    a.label(lA_tail2)
    l7, lBtail2 = name + '_i7', name + '_tail2B'
    a('s_cmp_eq_u32 s%d, 7' % sI)
    a('s_cbranch_scc1 %s' % l7)
    iteration(0, [(1, False)], BA, [0, 1], BA)
    iteration(1, [(1, False)], [1], [0, 1], BA)
    epilogue(0)
    lB = name + '_loopB'
    a('s_lshl_b32 s%d, s%d, 1' % (sCNT, sI))
    a('s_sub_u32 s%d, 12, s%d' % (sCNT, sCNT))
    a.raw('.p2align 6')
    a.label(lB)
    iteration(0, [(1, False)], [1], [1], [1])
    iteration(1, [(1, False)], [1], [1], [1], loop_ctr=(sCNT, lB))
    prefill(1, 0, 0)
    iteration(0, [(1, True)], [1], [1], [1], dk=False)
    prefill(1, 1, 1)
    iteration(1, [(1, True)], [1], [1], [1], dk=False, nxt='v')
    a('s_branch %s' % lBtail2)
    a.label(l7)
    prefill(1, 0, 0)
    iteration(0, [(1, True)], BA, [0, 1], BA, dk=False)
    prefill(1, 1, 1)
    iteration(1, [(1, True)], [1], [0, 1], BA, dk=False, nxt='v')
    epilogue(0)
    a.label(lBtail2)
    stamp(a, 11); cstamp(a, 6)
    AH, AC, WD4, WO4, X4, OUT = R1, R2, R3, R4, R5, 4
    sRO, sRT, sCT4, sAC, sWW, sVAL, sXO, sSW, sLD, sW2, sAC0, sWW0 = 8, 9, 10, 11, 12, 74, 13, 18, 19, 20, 26, 27
    sS1, sS0, sR0, sR1 = 16, 17, 21, 62
    WS_EX = 0x8000000
    FX = WS_FLG + 65536
    a('s_lshr_b32 s67, s2, 3')
    a('s_cmp_lt_u32 s67, 30'); a('s_cselect_b32 s%d, 1, 0' % sVAL)
    a('s_min_u32 s67, s67, 29')
    a('s_mul_i32 s68, s67, 205'); a('s_lshr_b32 s68, s68, 10')
    a('s_mul_i32 s69, s68, 5'); a('s_sub_u32 s%d, s67, s69' % sCT4)
    a('s_and_b32 s69, s2, 7'); a('s_mul_i32 s69, s69, 6'); a('s_add_u32 s69, s69, s68')
    a('s_lshr_b32 s%d, s69, 4' % sRO); a('s_and_b32 s%d, s69, 15' % sRT)
    for s in srd('x', X4) + srd('out', OUT): a(s)
    a('s_add_u32 s70, s%d, 2' % sRO); a('s_cmp_eq_u32 s%d, 0' % sRO); a('s_cselect_b32 s71, 0, 3'); a('s_sub_u32 s70, s70, s71')
    a('s_cmp_eq_u32 s%d, 0' % sRO); a('s_cselect_b32 s71, 40, 44'); a('s_mul_i32 s71, s71, s%d' % sVAL)
    a('s_mul_i32 s67, s%d, %d' % (sRO, 18 * 131072)); a('s_add_u32 s67, s67, 0x%x' % WS_H)
    a('s_add_u32 s%d, s28, s67' % AH); a('s_addc_u32 s%d, s29, 0' % (AH + 1)); a('s_mul_i32 s%d, s%d, %d' % (AH + 2, sVAL, 18 * 131072))
    a('s_mul_i32 s67, s70, %d' % (44 * 131072)); a('s_add_u32 s67, s67, 0x%x' % WS_CTX)
    a('s_add_u32 s%d, s28, s67' % AC); a('s_addc_u32 s%d, s29, 0' % (AC + 1)); a('s_lshl_b32 s%d, s71, 17' % (AC + 2))
    a('s_mul_i32 s67, s%d, %d' % (sRO, 18 * 32 * 1280))
    a('s_add_u32 s%d, s22, s67' % WD4); a('s_addc_u32 s%d, s23, 0' % (WD4 + 1)); a('s_mul_i32 s%d, s%d, %d' % (WD4 + 2, sVAL, 18 * 32 * 1280))
    a('s_mul_i32 s67, s70, %d' % (44 * 32 * 1280))
    a('s_add_u32 s%d, s14, s67' % WO4); a('s_addc_u32 s%d, s15, 0' % (WO4 + 1)); a('s_mul_i32 s%d, s71, %d' % (WO4 + 2, 32 * 1280))
    for r_ in (AH, AC, WD4, WO4): a('s_mov_b32 s%d, 0x00020000' % (r_ + 3))
    a('s_cmp_eq_u32 s%d, 2' % sRO); a('s_cselect_b32 s%d, 1, 0' % sSW)
    VA0, VA1, VWO, VRD, VX, VPL = 16, 17, 18, 32, 20, 62
    a('s_lshl_b32 s%d, s%d, 2' % (sAC, sRT)); a('s_add_u32 s%d, s%d, s%d' % (sAC, sAC, sW))
    a('s_lshl_b32 s67, s%d, 1' % sAC); a('s_add_u32 s67, s67, s%d' % sSW)
    a('s_mul_i32 s%d, s67, %d' % (sXO, 16 * 1280)); a('s_lshl_b32 s68, s%d, 8' % sCT4); a('s_add_u32 s%d, s%d, s68' % (sXO, sXO))
    a('s_lshl_b32 s%d, s%d, 11' % (sAC, sAC)); a('s_mov_b32 s%d, s%d' % (sAC0, sAC))
    a('s_lshl_b32 s67, s%d, 10' % sSW)
    a('v_add_u32 v%d, s67, v%d' % (VA0, V_LANE16))
    a('v_xor_b32 v%d, 1024, v%d' % (VA1, VA0))
    a('s_mul_i32 s%d, s%d, %d' % (sWW, sW, 16 * 1280)); a('s_add_u32 s%d, s%d, s68' % (sWW, sWW)); a('s_mov_b32 s%d, s%d' % (sWW0, sWW))
    a('v_lshrrev_b32 v5, 3, v0'); a('v_mul_u32_u24 v5, 1280, v5')
    a('v_bfe_u32 v6, v0, 1, 2'); a('v_bfe_u32 v7, v0, 4, 2'); a('v_xor_b32 v6, v6, v7')
    a('v_lshl_add_u32 v5, v6, 5, v5'); a('v_and_b32 v6, 1, v0')
    a('v_lshl_add_u32 v%d, v6, 4, v5' % VWO)
    a('v_add_u32 v%d, %d, v%d' % (VWO + 1, 8 * 1280 - 1024, VWO))
    a('v_lshrrev_b32 v5, 2, v0'); a('v_lshlrev_b32 v5, 7, v5'); a('v_and_b32 v6, 3, v0'); a('v_lshl_add_u32 v5, v6, 3, v5')
    a('v_bfe_u32 v6, v0, 3, 2')
    for c in range(4):
        a('v_xor_b32 v7, %d, v6' % c)
        a('v_lshl_add_u32 v%d, v7, 5, v5' % (VRD + c))
        a('v_add_u32 v%d, 65536, v%d' % (VRD + 4 + c, VRD + c))
    a('v_and_b32 v5, 15, v0'); a('v_mul_u32_u24 v5, 1280, v5'); a('v_lshrrev_b32 v6, 4, v0')
    a('v_lshl_add_u32 v%d, v6, 3, v5' % VX)
    a('v_and_b32 v%d, 0x1f0, v%d' % (VPL, V_LANE16))
    a('v_add_u32 v21, 4096, v%d' % V_LANE16)
    a('s_sub_u32 s67, 15, s%d' % sRT); a('s_min_u32 s67, s67, s%d' % sRT)
    a('s_lshl_b32 s79, s67, 9'); a('s_add_u32 s79, s79, 0x%x' % FH)
    a('s_lshl_b32 s76, s%d, 9' % sRT); a('s_add_u32 s76, s76, 0x%x' % FC)
    a('s_mul_i32 s67, s%d, 5' % sRT); a('s_add_u32 s67, s67, s%d' % sCT4)
    a('s_lshl_b32 s68, s67, 2'); a('s_add_u32 s68, s68, s%d' % sW)
    a('s_lshl_b32 s75, s68, 10'); a('s_add_u32 s75, s75, 0x%x' % FX)
    a('s_lshl_b32 s68, s68, 16'); a('s_add_u32 s68, s68, 0x%x' % WS_EX)
    a('s_add_u32 s67, s%d, 1' % sRO); a('s_lshl_b32 s67, s67, 13'); a('s_add_u32 s%d, s68, s67' % sS1)
    a('s_cmp_eq_u32 s%d, 0' % sRO); a('s_cselect_b32 s%d, s68, 0x20000000' % sS0)
    a('s_lshl_b32 s67, s%d, 13' % sSW); a('s_add_u32 s%d, s68, s67' % sR0)
    a('s_sub_u32 s67, 3, s%d' % sSW); a('s_lshl_b32 s67, s67, 13'); a('s_add_u32 s%d, s68, s67' % sR1)
    a('s_cmp_eq_u32 s%d, 0' % sRO); a('s_cselect_b32 s%d, 0x20000000, s%d' % (sR0, sR0)); a('s_cselect_b32 s%d, 0x20000000, s%d' % (sR1, sR1))
    a('s_lshl_b32 s56, s%d, 7' % sRO); a('s_add_u32 s56, s56, s75')
    a('s_sub_u32 s67, 3, s%d' % sRO); a('s_cmp_eq_u32 s%d, 0' % sRO); a('s_cselect_b32 s67, 0, s67'); a('s_lshl_b32 s67, s67, 7')
    a('v_and_b32 v22, 1, v0'); a('v_mul_u32_u24 v22, s67, v22')
    a('s_lshl_b32 s%d, s%d, 11' % (sLD, sW))
    h_poll = 'buffer_load_dwordx4 v[192:195], v%d, %s, s79 offen %s' % (VPL, sr(WS, 4), WT)
    c_poll = 'buffer_load_dwordx4 v[24:27], v%d, %s, s76 offen %s' % (VPL, sr(WS, 4), WT)
    b_poll = 'buffer_load_dword v24, v22, %s, s75 offen %s' % (sr(WS, 4), WT)
    s_poll = 'buffer_load_dword v24, v22, %s, s75 offen offset:512 %s' % (sr(WS, 4), WT)
    WF4 = 64; ND4 = 18; NK = 62; LA4 = 12
    def accB(n, q): return 128 + (q * 8 + n) * 4
    def accS(n, q): return 192 + (q * 8 + n) * 4
    def act4(k, q): r = k % 16; return (r * 8 + q * 4) if r < 8 else (128 + (r - 8) * 8 + q * 4)
    def w4_dma(st):
        L = []
        if st == ND4 // 2: L.append('s_mov_b32 s%d, s%d' % (sWW, sWW0))
        r_ = WD4 if st < ND4 // 2 else WO4
        for m in range(2):
            L += ['s_add_u32 m0, s%d, %d' % (sLD, (st % 8) * 16384 + m * 8192), 's_nop 0' if m == 0 else 's_add_u32 s%d, s%d, 128' % (sW2, sWW)]
            L += [(('w4', st), 'buffer_load_dwordx4 v%d, %s, s%d offen offset:%d lds' % (VWO + j, sr(r_, 4), sWW if m == 0 else sW2, 1024 * j)) for j in range(2)]
        L.append('s_add_u32 s%d, s%d, %d' % (sWW, sWW, 64 * 1280))
        return L
    def a4_load(k):
        L = ['s_mov_b32 s%d, s%d' % (sAC, sAC0)] if k == ND4 else []
        return L + [(('a4', k), 'buffer_load_dwordx4 %s, v%d, %s, s%d offen' % (ar(act4(k, q), 4), (VA0, VA1)[q], sr(AH if k < ND4 else AC, 4), sAC)) for q in range(2)] + \
               ['s_add_u32 s%d, s%d, %d' % (sAC, sAC, 128 * 1024)]
    def w4_read(k, n):
        st, ks = (k // 2) % 8, k % 2
        return ['ds_read_b64_tr_b16 %s, v%d offset:%d' % (vr(WF4 + 4 * n + 2 * r, 2), VRD + 4 * (st // 4) + n % 4, (st % 4) * 16384 + (n // 4) * 8192 + (32 * ks + 16 * r) * 128) for r in range(2)]
    PK = 112
    def packs(accf):
        L = []
        for q in (1, 0):
            for n in range(8):
                dst = (accf(0, 1) if q else PK) + 2 * n
                L += ['v_cvt_pk_bf16_f32 v%d, v%d, v%d' % (dst + h, accf(n, q) + 2 * h, accf(n, q) + 2 * h + 1) for h in range(2)]
        return L
    def sends(accf, tag):
        return [(tag, 'buffer_store_dwordx4 %s, v%d, %s, s%d offen offset:%d %s' % (vr((accf(0, 1) if q else PK) + 4 * j, 4), V_LANE16, sr(WS, 4), (sS0, sS1)[q], j * 1024, WT))
                for q in (1, 0) for j in range(4)]
    def recvs(dst, tag):
        return [(tag, 'buffer_load_dwordx4 %s, v%d, %s, s%d offen offset:%d' % (vr(dst + 16 * src_ + 4 * j, 4), V_LANE16, sr(WS, 4), (sR0, sR1)[src_], j * 1024))
                for j in range(4) for src_ in range(2)]
    def unp_add(B, dst, n, T):
        L = []
        for src_ in range(2):
            for h in range(2):
                r = dst + 16 * src_ + 2 * n + h
                L += ['v_lshlrev_b32 v%d, 16, v%d' % (T + 2 * h, r), 'v_and_b32 v%d, s65, v%d' % (T + 2 * h + 1, r)]
            L += ['v_add_f32 v%d, v%d, v%d' % (B + e, B + e, T + e) for e in range(4)]
        return L
    XR4 = 96
    xl = [('x4', 'buffer_load_dwordx2 %s, v%d, %s, s%d offen offset:%d' % (vr(XR4 + 2 * n, 2), VX, sr(X4, 4), sXO, 32 * n)) for n in range(8)]
    a(h_poll)
    vm.n = 0; ids = {}
    e1 = [flag_store(77)[1]] + [issue(it) for it in xl + w4_dma(0) + w4_dma(1)]
    iteration(0, None, [1], [1], [1], dk=False, dv=False, nxt='v', post_bar=e1)
    gate(h_poll, 192, 4, 1, 63)
    e2 = []
    for k in range(LA4):
        e2 += a4_load(k)
        if k in (3, 7): e2 += w4_dma(2 + k // 4)
    iteration(1, None, [], [1], [1], dk=False, dv=False, nxt=None, post_bar=[issue(it) for it in e2])
    stamp(a, 12)
    epilogue(1)
    notile = name + '_notile'
    a('s_cmp_eq_u32 s%d, 0' % sVAL)
    a('s_cbranch_scc1 %s' % notile)
    a('s_waitcnt vmcnt(%d)' % vm.cnt(ids[('w4', 1)]))
    a('s_barrier')
    for n in range(8):
        for s_ in w4_read(0, n): a(s_)
    stamp(a, 13)
    def rnd_l(r0, r1, t):
        return ['v_cvt_pk_bf16_f32 v%d, v%d, v%d' % (t, r0, r1), 'v_lshlrev_b32 v%d, 16, v%d' % (r0, t), 'v_and_b32 v%d, s65, v%d' % (r1, t)]
    def rnd(r0, r1, t):
        for s_ in rnd_l(r0, r1, t): a(s_)
    RBv = accB(0, 1)
    def gate_calc(n):
        B = accB(n, 0); T = 40 + 4 * (n % 2); L = unp_add(B, RBv, n, T)
        for h in range(2): L += rnd_l(B + 2 * h, B + 2 * h + 1, T)
        L += ['v_mul_f32 v%d, s64, v%d' % (T + e, B + e) for e in range(4)]
        L += ['v_exp_f32 v%d, v%d' % (T + e, T + e) for e in range(4)]
        L += ['v_add_f32 v%d, 1.0, v%d' % (T + e, T + e) for e in range(4)]
        L += ['v_rcp_f32 v%d, v%d' % (T + e, T + e) for e in range(4)]
        L += ['v_mul_f32 v%d, v%d, v%d' % (B + e, B + e, T + e) for e in range(4)]
        for h in range(2): L += rnd_l(B + 2 * h, B + 2 * h + 1, T)
        return L
    def x_unpack():
        L = []
        for n in range(8):
            for h in range(2):
                x = XR4 + 2 * n + h; o = accB(n, 1) + 2 * h
                L += ['v_lshlrev_b32 v%d, 16, v%d' % (o, x), 'v_and_b32 v%d, s65, v%d' % (o + 1, x)]
        return L
    a('s_mov_b32 s64, %s' % f2u(-math.log2(math.e)))
    a('s_mov_b32 s65, 0xffff0000')
    pend = w4_dma(4) + w4_dma(5) + w4_dma(6) + w4_dma(7)
    slowq = []
    valq = []
    nxt_a = LA4
    KG = 12; KCF = 4; PDL = 5
    KS0, KFL, KBP, KRC = ND4 + 2, 30, 33, 48
    rbl = recvs(RBv, 'rb')
    for k in range(NK):
        assert not any(x[0] == ('a4', k) for x in pend if not isinstance(x, str))
        need = ids[('a4', k)]
        if k == KCF: need = max(need, ids['ctx'])
        if k == KG: need = max(need, ids['cp'])
        if k in (KFL, KRC): assert not slowq and not any(x[0] in ('sb', 'rb', 'x4') for x in pend if not isinstance(x, str))
        if k == KFL: need = max(need, ids['sb'])
        if k == KBP + PDL: need = max(need, ids['bp'])
        if k == KRC: need = max(need, ids['rb'])
        a('s_waitcnt vmcnt(%d) lgkmcnt(12)' % min(63, vm.cnt(need)))
        if k == KCF: pend = [flag_store(78)] + pend
        if k == KG - 3: pend = [('cp', c_poll)] + pend
        if k == KG: gate(c_poll, 24, 4, 1, 63)
        if k == KS0 - 1: valq += packs(accB)
        if k == KS0:
            assert not valq
            sl = sends(accB, 'sb'); slowq += [x for p_ in zip(sl[:4], sl[4:]) for x in p_]
        if k == KFL:
            pend = [flag_store(56), 's_add_u32 s56, s56, 512', 's_add_u32 s%d, s%d, 32768' % (sS0, sS0), 's_add_u32 s%d, s%d, 32768' % (sS1, sS1)] + pend
        if k == KBP: pend = [('bp', b_poll)] + pend
        if k == KBP + PDL:
            gate(b_poll, 24, 1, 1, 63)
            slowq += rbl
        if k == KRC:
            pend += ['s_add_u32 s%d, s%d, 32768' % (sR0, sR0), 's_add_u32 s%d, s%d, 32768' % (sR1, sR1)]
            for n in range(8): valq += gate_calc(n)
            valq += x_unpack()
        newa = []
        lim = min(NK, k + LA4 + 1) if k >= KG else ND4
        while nxt_a < min(lim, k + LA4 + 1) and len(newa) < 6:
            newa += a4_load(nxt_a); nxt_a += 1
        pend = newa + slowq[:2] + pend; slowq = slowq[2:]
        accf = accB if k < ND4 else accS
        for n in range(8):
            if n % 2 == 0 and n > 0: a('s_waitcnt lgkmcnt(%d)' % (12 if k < NK - 1 else 2 * (6 - n)))
            for q in range(2):
                d = vr(accf(n, q), 4)
                a('%s %s, %s, %s, %s' % (MF16, d, vr(WF4 + 4 * n, 4), ar(act4(k, q), 4), '0' if k in (0, ND4) else d))
                if q == 0:
                    while pend and pend[0] == 's_nop 0': pend.pop(0)
                    if pend: a(issue(pend.pop(0)))
                    if pend and isinstance(pend[0], str) and pend[0] != 's_nop 0': a(pend.pop(0))
                    for _ in range(4):
                        if valq: a(valq.pop(0))
            if k + 1 < NK:
                if n == 0 and k % 4 == 3:
                    st = k // 2
                    key = ('w4', min(st + 2, NK // 2 - 1))
                    assert not any(x[0] == key for x in pend if not isinstance(x, str))
                    a('s_waitcnt vmcnt(%d) lgkmcnt(0)' % min(63, vm.cnt(ids[key])))
                    a('s_barrier')
                    for s2_ in (st + 7, st + 8):
                        if s2_ < NK // 2: pend = pend + w4_dma(s2_)
                for s_ in w4_read(k + 1, n): a(s_)
        if k == ND4 - 1: stamp(a, 14); cstamp(a, 7)
        if k % 4 == 1: stamp(a, 1 + k // 4, 'p4')
        if k == ND4 + 39:
            assert not pend
            a('s_cmp_eq_u32 s%d, 0' % sRO)
            a('s_cbranch_scc1 %s_p4done' % name)
    assert not pend and not valq
    a.label(name + '_p4done')
    stamp(a, 15); cstamp(a, 8)
    a('s_nop 7')
    stamp(a, 1, 'fin')
    pl = packs(accS); sl = sends(accS, 'ss')
    for j in range(8):
        for s_ in pl[4 * j:4 * j + 4]: a(s_)
        a(sl[j][1])
    stamp(a, 2, 'fin')
    a('s_waitcnt vmcnt(0)')
    a(flag_store(56)[1])
    stamp(a, 4, 'fin')
    lfin = name + '_fin'
    a('s_cmp_lg_u32 s%d, 0' % sRO)
    a('s_cbranch_scc1 %s' % lfin)
    stamp(a, 16)
    stamp_flush(a, 17)
    a('s_endpgm')
    a.label(lfin)
    a(s_poll)
    a('s_waitcnt vmcnt(0)')
    stamp(a, 5, 'fin')
    gate(s_poll, 24, 1, 1, 63)
    stamp(a, 6, 'fin')
    RS = 64
    for it in recvs(RS, 'rs'): a(it[1])
    for n in range(8):
        if n % 2 == 0: a('s_waitcnt vmcnt(%d)' % (6 - n + n))
        if n in (0, 7): stamp(a, 7 + n // 7, 'fin')
        S = accS(n, 0); T = 96 + 2 * n
        for s_ in unp_add(S, RS, n, 40): a(s_)
        for h in range(2): rnd(S + 2 * h, S + 2 * h + 1, 56)
        for e in range(4): a('v_mul_f32 v%d, v%d, v%d' % (S + e, S + e, accB(n, 0) + e))
        for h in range(2): rnd(S + 2 * h, S + 2 * h + 1, 56)
        for e in range(4): a('v_add_f32 v%d, v%d, v%d' % (S + e, S + e, accB(n, 1) + e))
        for h in range(2): a('v_cvt_pk_bf16_f32 v%d, v%d, v%d' % (T + h, S + 2 * h, S + 2 * h + 1))
        a('buffer_store_dwordx2 %s, v%d, %s, s%d offen offset:%d' % (vr(T, 2), VX, sr(OUT, 4), sXO, 32 * n))
    stamp(a, 16); stamp(a, 9, 'fin')
    stamp_flush(a, 17)
    a('s_endpgm')
    a.label(notile)
    a('s_waitcnt vmcnt(0)')
    a(flag_store(78)[1])
    a.label(end)
    a('s_endpgm')
    for slow, ok, load_ins, chk, ts in slow_paths:
        a.label(slow)
        a('s_mov_b32 s%d, 0x8000' % ts)
        lp = a.newlabel(name + '_sp')
        a.label(lp)
        a('s_sleep 1')
        a(load_ins)
        a('s_waitcnt vmcnt(0)')
        for s in chk: a(s)
        a('s_nop 1')
        a('s_cbranch_vccz %s' % ok)
        a('s_sub_u32 s%d, s%d, 1' % (ts, ts))
        a('s_cbranch_scc0 %s' % lp)
        a('s_branch %s' % ok)
    for stub, back, pc, ex in rare_sites:
        a.label(stub)
        for st in sorted(ex): a('s_call_b64 s[100:101], %s_rare%d%d' % (name, pc, st))
        a('s_branch %s' % back)
    for pc in range(2):
        for st in range(2):
            a.label('%s_rare%d%d' % (name, pc, st))
            a('s_nop 7')
            for qb in range(2):
                for s in max_ops(st, pc, qb, V_T0, V_T1): a(s)
                a('v_max_f32 v%d, 0, v%d' % (V_T0, V_T0))
                a('v_exp_f32 v%d, -v%d' % (V_T1, V_T0))
                for e in range(4): a('v_sub_f32 v%d, v%d, v%d' % (NEGM + (st * 2 + qb) * 4 + e, NEGM + (st * 2 + qb) * 4 + e, V_T0))
                for pp in range(2):
                    for kb in range(4):
                        for r in range(4):
                            x = SB[st][pp] + (kb * 2 + qb) * 4 + r
                            a('v_sub_f32 v%d, v%d, v%d' % (x, x, V_T0))
                a('v_mul_f32 v%d, v%d, v%d' % (V_L + st * 2 + qb, V_L + st * 2 + qb, V_T1))
                for db in range(0, 8, 2):
                    regs = [A_O[st] + ((db + h) * 2 + qb) * 4 + e for h in range(2) for e in range(4)]
                    for e in range(8): a('v_accvgpr_read_b32 v%d, a%d' % (TMP + e, regs[e]))
                    for e in range(8): a('v_mul_f32 v%d, v%d, v%d' % (TMP + e, TMP + e, V_T1))
                    for e in range(8): a('v_accvgpr_write_b32 a%d, v%d' % (regs[e], TMP + e))
            for s in exp_ops(st, pc): a(s)
            if st == 1:
                for k, (s, _, _) in enumerate(exp_seq(1, 1 - pc)[:EARLY]): a('v_exp_f32 v%d, v%d' % (TMP + k, s))
            a('s_nop 7')
            a('s_setpc_b64 s[100:101]')
    a.label(name + '_codeend')
    kernel_desc(a, name, 512, 256)
    return a
```

```python
from common import *
import math

class VM:
    def __init__(self): self.n = 0
    def op(self):
        self.n += 1
        return self.n
    def cnt(self, ident): return self.n - ident

WS, WQ, WG, WU = 8, 12, 16, 20
sW, sH, sI, sCT = 28, 29, 30, 31
V_LANE16, V_LANE16V = 1, 2
V_KRD, V_VRD = 3, 4
V_T0, V_T1, V_T2, V_T3 = 5, 6, 7, 8
V_L = 9
TRI = 12
V_L = 8
V_T3 = 0
NEGM = 16
LT = 32
TMP = 48
SB = [[64, 96], [128, 160]]
PB = [[192, 208], [224, 240]]
A_O = [0, 64]; A_Q = [128, 160]; A_RING = 192; V_ONES = 56
D, R = int(os.environ.get('ATT_D', 10)), 16
XP = os.environ.get('XP', '')
THR = 2.0 ** float(os.environ.get('THRLOG', 40))
BIG = 1.0e30
P_XOFF2 = 16
P_WOFF = 17
P_WRD = 24
P_ACCV = 128
P_ACCA = 0
P_WF = 128
P_ACT = 192
WSLOT = [96 * 1024, 64 * 1024, 128 * 1024]

def qgu_loop(a, nm, extra_vm):
    vm = VM()
    NST = 10
    sLW = 40
    s_w = [36, 37, 38, 39]
    srd = [WQ, WQ, WG, WU]; stride = [8192, 8192, 3456, 3456]
    s_q = [41, 42]
    wid = {}; aid = {}
    def w_dma(st):
        L = []
        for m in range(nm):
            L.append(('s', 's_add_u32 m0, s%d, %d' % (sLW, WSLOT[st % 3] + m * 8192)))
            L.append(('n', 's_nop 0'))
            for j in range(2):
                L.append(('w', st, 'buffer_load_dwordx4 v%d, %s, s%d offen offset:%d lds' % (P_WOFF + 2 * (m // 2) + j, sr(srd[m], 4), s_w[m], 1024 * j)))
            L.append(('s', 's_add_u32 s%d, s%d, %d' % (s_w[m], s_w[m], 64 * stride[m])))
        return L
    def a_load(k):
        L = []
        base = P_ACT + 16 * (k % 4)
        for qi in range(4):
            L.append(('a', k, 'buffer_load_dwordx4 %s, v%d, %s, s%d offen offset:%d' % (ar(base + 4 * qi, 4), (V_LANE16, P_XOFF2)[qi % 2], sr(WS, 4), s_q[qi // 2], 1024 * (k % 4))))
        if k % 4 == 3:
            for s in s_q: L.append(('s', 's_add_u32 s%d, s%d, 4096' % (s, s)))
        return L
    def issue(it):
        if it[0] in 'sn': return it[1]
        i = vm.op()
        if it[0] == 'w': wid[it[1]] = i
        elif it[0] == 'a': aid[it[1]] = i
        return it[-1]
    def w_read(k, n):
        st, ks = k // 2, k % 2
        off = WSLOT[st % 3] - 65536
        grp = off // 65536; off %= 65536
        m, c = n // 4, n % 4
        return ['ds_read_b64_tr_b16 %s, v%d offset:%d' % (ar(P_WF + 4 * n + 2 * r, 2), P_WRD + 4 * grp + c, off + m * 8192 + (32 * ks + 16 * r) * 128) for r in range(2)]
    NB = 4 * nm
    pro = w_dma(0) + a_load(0) + a_load(1) + w_dma(1) + a_load(2) + a_load(3) + w_dma(2)
    for it in pro: a(issue(it))
    a('s_waitcnt vmcnt(%d)' % vm.cnt(wid[0]))
    a('s_barrier')
    for n in range(NB):
        for s in w_read(0, n): a(s)
    pend = []
    for k in range(2 * NST):
        st, ks = k // 2, k % 2
        if ks == 0: pend += extra_vm.get(st, [])
        base = P_ACT + 16 * (k % 4)
        a('s_waitcnt vmcnt(%d) lgkmcnt(%d)' % (min(63, vm.cnt(aid[k])), 8))
        if k > 0 and k + 3 < 2 * NST: pend = a_load(k + 3) + pend
        for n in range(NB):
            if n % 4 == 0 and n > 0:
                last = (k == 2 * NST - 1)
                a('s_waitcnt lgkmcnt(%d)' % (8 if not last else min(8, 2 * (NB - n - 4))))
            for qi in range(4):
                if n < 8: d = ar(P_ACCA + (n * 4 + qi) * 4, 4)
                else:     d = vr(P_ACCV + ((n - 8) * 4 + qi) * 4, 4)
                a('%s %s, %s, %s, %s' % (MF16, d, ar(P_WF + 4 * n, 4), ar(base + 4 * qi, 4), '0' if k == 0 else d))
                if qi in (0, 1, 2):
                    while pend and pend[0][0] == 'n': pend.pop(0)
                    if pend: a(issue(pend.pop(0)))
            if k + 1 < 2 * NST:
                if n == 0 and ks == 1:
                    a('s_waitcnt vmcnt(%d) lgkmcnt(0)' % min(63, vm.cnt(wid[st + 1])))
                    a('s_barrier')
                    if st + 3 < NST: pend = pend + w_dma(st + 3)
                    pend += extra_vm.get(('b', st), [])
                for s in w_read(k + 1, n): a(s)
    for it in pend: a(issue(it))
    return vm


EARLY = int(os.environ.get('EARLY', 6))

def exp_seq(st, p, qbs=(0, 1)):
    S = SB[st][p]
    return [(S + ((2 * ks + kk) * 2 + qb) * 4 + r, qb, ks) for ks in range(2) for qb in qbs for kk in range(2) for r in range(4)]

def exp_ops(st, p, sub=False):
    P = PB[st][p]; seq = exp_seq(st, p); ops = []
    for k in range(32 + 6):
        if k < 32:
            ops.append('v_exp_f32 v%d, v%d' % (TMP + k % 8, seq[k][0]))
        j = k - 2
        if 0 <= j < 32 and j % 2 == 1:
            _, qb, ks = seq[j]
            ops.append('v_cvt_pk_bf16_f32 v%d, v%d, v%d' % (P + (qb * 2 + ks) * 4 + (j % 8) // 2, TMP + (j - 1) % 8, TMP + j % 8))
        j = k - 5
        if 0 <= j < 32 and j % 8 == 7:
            _, qb, ks = seq[j]
            d = vr(LT + (st * 2 + qb) * 4, 4)
            if k >= 32: ops.append('s_nop 1')
            ops.append('%s %s, %s, %s, %s' % (MF16, d, vr(V_ONES, 4), vr(P + (qb * 2 + ks) * 4, 4), '0' if ks == 0 else d))
    return ops

class Packer:
    def __init__(self, a): self.a = a
    def run(self, groups, rds, items, exps, extra, finish, early, have_early, sub=False):
        a = self.a
        E = []
        for ti, ent in enumerate(exps):
            st, p = ent[0], ent[1]
            for k, (s, qb, ks) in enumerate(exp_seq(*ent)): E.append((s, NEGM + (st * 2 + qb) * 4, st, p, k, qb, ks))
        ne = EARLY if (have_early and E) else 0
        nc = 0; no = 0
        pos = 0
        epos = {i: -10 for i in range(ne)}; cpos = {}; opos = -100
        subbed = set()
        nread = 0; read_idx = {}
        items = [dict(x) for x in items]
        fin = list(finish); extra = list(extra)
        EE = exp_seq(*early)[:EARLY] if early else []
        nee = 0
        total_gaps = sum(len(g) for g in groups) + len(E) // 8
        gapno = 0
        def emit(s):
            nonlocal pos
            a(s); pos += 1
        def item_text(it):
            if 'lg' in it:
                gi = it['lg'] - D
                younger = nread - read_idx[gi] if gi in read_idx else (nread if gi < 0 else 0)
                if gi < 0: younger = nread + (-1 - gi)
                return 's_waitcnt lgkmcnt(%d)' % min(15, younger)
            return it['ins']
        def fill(gi, cap, last_of_group):
            nonlocal ne, nc, nee
            nonv = []; val = []
            full = cap >= 8
            def take(it):
                items.remove(it); (val if it.get('v') else nonv).append(it)
            forced = [it for it in items if (it['hi'] <= gi and last_of_group) or it['hi'] < gi]
            for it in forced: take(it)
            pace = len(E) * (gapno + 1.0) / max(1.0, total_gaps - 2 * EARLY - 4) + 3 + (EARLY if have_early else 0)
            def can_exp(): return ne < len(E) and ne - 2 * nc < 8 and ne < pace and (not sub or ne in subbed)
            def can_ee(): return ne == len(E) and nee < len(EE) and (len(E) + nee) - 2 * nc < 8
            def can_cvt(): return 2 * nc + 1 < ne and epos[2 * nc + 1] < pos
            out = []
            if not (full and len(forced) <= 1 and (can_exp() or can_ee())): cap -= 4 * len(forced)
            while cap > 0:
                if cap >= 8 and can_exp():
                    out.append(('e', ne)); epos[ne] = pos + 1000; ne += 1; cap -= 8; continue
                if cap >= 8 and can_ee() and not can_cvt():
                    out.append(('ee', nee)); nee += 1; cap -= 8; continue
                due = [it for it in items if it['lo'] <= gi and it['hi'] <= gi]
                if due and not (can_cvt() and ne - 2 * nc >= 7):
                    take(due[0]); cap -= 4; continue
                if can_cvt() and (ne - 2 * nc >= 5 or ne == len(E)):
                    out.append(('c', nc)); nc += 1; cap -= 4; continue
                if fin and no == len(E) // 8 and pos - opos >= 9:
                    out.append(('x', fin.pop(0))); cap -= 4; continue
                if sub and ne < len(E):
                    nx = [x for x in range(ne, min(len(E), ne + 3)) if x not in subbed]
                    if nx:
                        subbed.add(nx[0]); out.append(('s', nx[0])); cap -= 4; continue
                cand = [it for it in items if it['lo'] <= gi]
                if cand:
                    take(cand[0]); cap -= 4; continue
                if can_cvt():
                    out.append(('c', nc)); nc += 1; cap -= 4; continue
                if extra:
                    out.append(('x', extra.pop(0))); cap -= 4; continue
                break
            for it in nonv: emit(item_text(it))
            for it in val: emit(it['ins'])
            for kind, x in out:
                if kind == 'e':
                    emit('v_exp_f32 v%d, v%d' % (TMP + x % 8, E[x][0])); epos[x] = pos
                elif kind == 'ee':
                    emit('v_exp_f32 v%d, v%d' % (TMP + x % 8, EE[x][0]))
                elif kind == 's':
                    emit('v_add_f32 v%d, v%d, v%d' % (E[x][0], E[x][0], E[x][1]))
                elif kind == 'c':
                    _, _, st, p, k, qb, ks = E[2 * x + 1]
                    emit('v_cvt_pk_bf16_f32 v%d, v%d, v%d' % (PB[st][p] + (qb * 2 + ks) * 4 + (k % 8) // 2, TMP + (2 * x) % 8, TMP + (2 * x + 1) % 8)); cpos[x] = pos
                else: emit(x)
        def ones_ready(): return no < len(E) // 8 and (4 * no + 3) in cpos and pos - cpos[4 * no + 3] >= 2
        def emit_ones():
            nonlocal no, opos
            _, _, st, p, k, qb, ks = E[8 * no]
            d = vr(LT + (st * 2 + qb) * 4, 4)
            emit('%s %s, %s, %s, %s' % (MF16, d, vr(V_ONES, 4), vr(PB[st][p] + (qb * 2 + ks) * 4, 4), '0' if ks == 0 else d))
            no += 1; opos = pos
        for gi, L in enumerate(groups):
            for mi, m in enumerate(L):
                emit(m)
                cap = 8
                if mi == 0 and rds[gi]:
                    emit(rds[gi]); nread += 1; read_idx[gi] = nread; cap -= 4
                last = mi == len(L) - 1
                will_ones = last and no < len(E) // 8 and (4 * no + 3) in cpos
                fill(gi, cap, last and not will_ones); gapno += 1
                if will_ones:
                    if pos - cpos[4 * no + 3] < 2: emit('s_nop 0')
                    emit_ones()
                    fill(gi, 8, True); gapno += 1
        guard = 0
        while ne < len(E) or nc < len(E) // 2 or no < len(E) // 8 or fin or items or extra or nee < len(EE):
            before = pos
            if no < len(E) // 8 and (4 * no + 3) in cpos:
                if pos - cpos[4 * no + 3] < 2: emit('s_nop 1')
                emit_ones()
            gapno += 4
            fill(len(groups), 16, True)
            if pos == before: emit('s_nop 1')
            guard += 1; assert guard < 400

def max_ops(st, p, qb, dst, tmp):
    S = SB[st][p]
    regs = [S + (kb * 2 + qb) * 4 + r for kb in range(4) for r in range(4)]
    ops = ['v_max3_f32 v%d, v%d, v%d, v%d' % (dst, regs[0], regs[1], regs[2]),
           'v_max3_f32 v%d, v%d, v%d, v%d' % (tmp, regs[3], regs[4], regs[5])]
    k = 6; t = 0
    while k < 16:
        d = dst if t == 0 else tmp
        ops.append('v_max3_f32 v%d, v%d, v%d, v%d' % (d, d, regs[k], regs[k + 1])); k += 2; t ^= 1
    ops.append('v_max_f32 v%d, v%d, v%d' % (dst, dst, tmp))
    for sw in ('v_permlane16_swap_b32', 'v_permlane32_swap_b32'):
        ops.append('v_mov_b32 v%d, v%d' % (tmp, dst))
        ops.append('s_nop 1')
        ops.append('%s v%d, v%d' % (sw, dst, tmp))
        ops.append('s_nop 1')
        ops.append('v_max_f32 v%d, v%d, v%d' % (dst, dst, tmp))
    return ops

def gen_k2(a, name):
    kernel_begin(a, name)
    end = name + '_end'
    a('s_cmp_ge_u32 s2, 256')
    a('s_cbranch_scc1 %s' % end)
    load_srds(a, [('ws', WS), ('wq', WQ), ('wg', WG), ('wu', WU)])
    a('v_lshrrev_b32 v1, 6, v0')
    a('v_and_b32 v0, 63, v0')
    a('v_readfirstlane_b32 s%d, v1' % sW)
    stamp(a, 0)
    a('v_lshlrev_b32 v%d, 4, v0' % V_LANE16)
    a('v_add_u32 v%d, 16384, v%d' % (V_LANE16V, V_LANE16))
    a('v_add_u32 v%d, 20480, v%d' % (P_XOFF2, V_LANE16))
    a('s_and_b32 s29, s2, 7')
    a('s_lshl_b32 s29, s29, 2')
    a('s_lshr_b32 s31, s2, 3')
    a('s_and_b32 s31, s31, 3')
    a('s_add_u32 s29, s29, s31')
    a('s_lshr_b32 s30, s2, 5')
    a('s_lshr_b32 s31, s29, 3')
    a('s_sub_u32 s31, s29, s31')
    a('v_lshrrev_b32 v5, 3, v0')
    a('v_bfe_u32 v6, v0, 1, 2')
    a('v_bfe_u32 v7, v0, 4, 2')
    a('v_xor_b32 v6, v6, v7')
    a('v_lshlrev_b32 v6, 5, v6')
    a('v_and_b32 v7, 1, v0')
    a('v_lshl_add_u32 v6, v7, 4, v6')
    a('v_lshl_add_u32 v%d, v5, 13, v6' % P_WOFF)
    a('v_add_u32 v%d, %d, v%d' % (P_WOFF + 1, 8 * 8192 - 1024, P_WOFF))
    a('v_mul_u32_u24 v5, 3456, v5')
    a('v_add_u32 v%d, v5, v6' % (P_WOFF + 2))
    a('v_add_u32 v%d, %d, v%d' % (P_WOFF + 3, 8 * 3456 - 1024, P_WOFF + 2))
    a('v_lshrrev_b32 v5, 2, v0')
    a('v_lshlrev_b32 v5, 7, v5')
    a('v_and_b32 v6, 3, v0')
    a('v_lshl_add_u32 v5, v6, 3, v5')
    a('v_add_u32 v5, 65536, v5')
    a('v_bfe_u32 v6, v0, 3, 2')
    for c in range(4):
        a('v_xor_b32 v7, %d, v6' % c)
        a('v_lshl_add_u32 v%d, v7, 5, v5' % (P_WRD + c))
        a('v_add_u32 v%d, 65536, v%d' % (P_WRD + 4 + c, P_WRD + c))
    a('s_lshl_b32 s40, s%d, 11' % sW)
    sQ = [44, 45]
    a('s_lshl_b32 s44, s%d, 2' % sI)
    a('s_add_u32 s44, s44, s%d' % sW)
    a('s_lshl_b32 s44, s44, 1')
    a('s_sub_u32 s45, 15, s%d' % sI)
    a('s_lshl_b32 s45, s45, 2')
    a('s_add_u32 s45, s45, s%d' % sW)
    a('s_lshl_b32 s45, s45, 1')
    a('s_mul_i32 s41, s44, 20480')
    a('s_mul_i32 s42, s45, 20480')
    if WS_XN:
        a('s_add_u32 s41, s41, 0x%x' % WS_XN); a('s_add_u32 s42, s42, 0x%x' % WS_XN)
    a('s_lshl_b32 s36, s%d, 17' % sW)
    a('s_lshl_b32 s37, s%d, 8' % sH)
    a('s_add_u32 s36, s36, s37')
    a('s_add_u32 s37, s36, 128')
    a('s_mul_i32 s38, s%d, %d' % (sW, 16 * 3456))
    a('s_lshl_b32 s39, s%d, 7' % sCT)
    a('s_add_u32 s38, s38, s39')
    a('s_mov_b32 s39, s38')
    sBASE, sK0, sK1, sT, sC0, sC1 = 46, 47, 48, 49, 50, 51
    a('s_lshl_b32 s46, s%d, 20' % sH)
    a('s_lshl_b32 s49, s%d, 12' % sW)
    a('s_add_u32 s46, s46, s49')
    a('s_add_u32 s46, s46, 0x%x' % WS_KV)
    a('s_lshl_b32 s50, s%d, 13' % sW)
    a('s_add_u32 s50, s50, %d' % (65536 + 32768))
    a('s_add_u32 s51, s50, 16384')
    a('s_add_u32 s53, s46, 32768')
    a('s_add_u32 s47, s46, 65536')
    a('s_add_u32 s48, s47, 32768')
    def kv_dma(m0expr, voff, ssrc):
        L = [('s', m0expr), ('n', 's_nop 0')]
        for j in range(4):
            L.append(('x', 'buffer_load_dwordx4 v%d, %s, s%d offen offset:%d lds' % (voff, sr(WS, 4), ssrc, 1024 * j)))
        return L
    def mk_extra():
        return {
            6: kv_dma('s_add_u32 m0, s49, 0', V_LANE16, 46) + kv_dma('s_add_u32 m0, s49, 16384', V_LANE16, 53),
            7: kv_dma('s_add_u32 m0, s49, 32768', V_LANE16, 47),
            ('b', 7): kv_dma('s_add_u32 m0, s49, 65536', V_LANE16V, 46),
            8: kv_dma('s_add_u32 m0, s49, 49152', V_LANE16, 48) + kv_dma('s_add_u32 m0, s49, %d' % (65536 + 16384), V_LANE16V, 53),
        }
    a('s_waitcnt lgkmcnt(0)')
    qonly, qdone = name + '_qonly', name + '_qdone'
    a('s_and_b32 s32, s%d, 7' % sH)
    a('s_cmp_eq_u32 s32, 7')
    a('s_cbranch_scc1 %s' % qonly)
    a('s_cmp_ge_u32 s%d, 27' % sCT)
    a('s_cbranch_scc1 %s' % qonly)
    qgu_loop(a, 4, mk_extra())
    stamp(a, 1)
    a('s_lshl_b32 s36, s44, 10')
    a('s_lshl_b32 s37, s45, 10')
    a('s_lshl_b32 s38, s%d, 18' % sCT)
    a('s_add_u32 s38, s38, 0x%x' % WS_H)
    a('s_add_u32 s36, s36, s38')
    a('s_add_u32 s37, s37, s38')
    a('v_add_u32 v%d, %d, v%d' % (P_XOFF2, 128 * 1024, V_LANE16))
    a('s_nop 3')
    cnt = 0
    for qi in range(4):
        for s in range(2):
            T = 64 + 4 * (cnt % 8); cnt += 1
            for cc in range(2):
                g = P_ACCV + ((2 * s + cc) * 4 + qi) * 4
                u = g + 64
                for e in range(4): a('v_mul_f32 v%d, v%d, v%d' % (g + e, g + e, u + e))
                for e in range(2): a('v_cvt_pk_bf16_f32 v%d, v%d, v%d' % (T + 2 * cc + e, g + 2 * e, g + 2 * e + 1))
            a('buffer_store_dwordx4 %s, v%d, %s, s%d offen offset:%d %s' % (vr(T, 4), (V_LANE16, P_XOFF2)[s], sr(WS, 4), 36 + qi // 2, (qi % 2) * 1024, ST_FLAGS))
    a('s_waitcnt vmcnt(16)')
    a('s_branch %s' % qdone)
    a.label(qonly)
    qgu_loop(a, 2, mk_extra())
    a('s_waitcnt vmcnt(8)')
    a.label(qdone)
    stamp(a, 2)
    a('s_barrier')
    def kread(i, p): return 'ds_read_b128 %s, v%d offset:%d' % (ar(A_RING + 4 * (i % R), 4), V_KRD, p * 16384 + i * 1024)
    def vread(i, p): return 'ds_read_b128 %s, v%d offset:%d' % (ar(A_RING + 4 * (i % R), 4), V_VRD, p * 16384 + i * 1024)
    a('v_mov_b32 v%d, v%d' % (V_KRD, V_LANE16))
    a('v_add_u32 v%d, 65536, v%d' % (V_VRD, V_LANE16))
    for i in range(D): a(kread(i, 0))
    a('s_mov_b32 s54, %s' % f2u(math.log2(math.e) / math.sqrt(128.0)))
    for qi in range(4):
        for s in range(4):
            T = 64 + 16 * ((qi * 4 + s) % 4)
            for cc in range(2):
                for e in range(4): a('v_accvgpr_read_b32 v%d, a%d' % (T + 4 * cc + e, P_ACCA + ((2 * s + cc) * 4 + qi) * 4 + e))
            for e in range(8): a('v_mul_f32 v%d, s54, v%d' % (T + e, T + e))
            for e in range(4): a('v_cvt_pk_bf16_f32 v%d, v%d, v%d' % (T + 8 + e, T + 2 * e, T + 2 * e + 1))
            for e in range(4): a('v_accvgpr_write_b32 a%d, v%d' % (A_Q[qi // 2] + ((qi % 2) * 4 + s) * 4 + e, T + 8 + e))
    a('v_and_b32 v5, 15, v0')
    a('v_lshrrev_b32 v6, 4, v0')
    a('v_lshlrev_b32 v6, 2, v6')
    a('v_sub_u32 v5, v5, v6')
    for r in range(4):
        a('v_cmp_gt_i32 vcc, %d, v5' % r)
        a('s_nop 1')
        a('v_cndmask_b32 v%d, 0, 1.0, vcc' % (TRI + r))
    for e in range(4): a('v_mov_b32 v%d, 0x3f803f80' % (V_ONES + e))
    for j in range(16): a('v_mov_b32 v%d, 0' % (NEGM + j))
    a('s_mov_b32 s55, %s' % f2u(THR))
    a('s_mov_b32 s56, %s' % f2u(-BIG))
    a('s_lshl_b32 s52, s%d, 1' % sW)
    stamp(a, 3)

    def prefill(st, p, tau, dyn=False):
        for qb in range(2):
            for kb in range(4):
                kap = 4 * tau + kb - qb
                S = SB[st][p] + (kb * 2 + qb) * 4
                if kap < 0:
                    for r in range(4): a('v_mov_b32 v%d, v%d' % (S + r, NEGM + (st * 2 + qb) * 4))
                    continue
                a('s_cmp_eq_u32 s52, %d' % kap)
                a('s_cselect_b32 s57, %s, 0' % ('s59' if dyn else 's56'))
                a('s_cmp_lt_u32 s52, %d' % kap)
                a('s_cselect_b32 s58, %s, 0' % ('s59' if dyn else 's56'))
                a('v_add_f32 v%d, s58, v%d' % (V_T0, NEGM + (st * 2 + qb) * 4))
                for r in range(4): a('v_fma_f32 v%d, v%d, s57, v%d' % (S + r, TRI + r, V_T0))
        a('s_nop 1')

    def qk_mf(sets, p):
        G = []
        for f in range(16):
            kb, ds = f // 4, f % 4
            L = []
            for st, inpl in sets:
                for qb in range(2):
                    d = vr(SB[st][p] + (kb * 2 + qb) * 4, 4)
                    c = vr(NEGM + (st * 2 + qb) * 4, 4) if (ds == 0 and not inpl) else d
                    L.append('%s %s, %s, %s, %s' % (MF16, d, ar(A_RING + 4 * (f % R), 4), ar(A_Q[st] + (qb * 4 + ds) * 4, 4), c))
            G.append(L)
        return G
    def pv_mf(sets, p, first=False):
        G = []
        for f in range(16):
            ks, db = f // 8, f % 8
            L = []
            for st in sets:
                for qb in range(2):
                    d = ar(A_O[st] + (db * 2 + qb) * 4, 4)
                    L.append('%s %s, %s, %s, %s' % (MF16, d, ar(A_RING + 4 * (f % R), 4), vr(PB[st][p] + (qb * 2 + ks) * 4, 4), d))
            G.append(L)
        return G
    rare_sites = []

    pk = Packer(a)
    def lg_items(n, skip_last):
        L = []
        for i in range(3, n, 4):
            if i == n - 1 and skip_last: continue
            L.append(dict(lo=i, hi=i, lg=i + 4))
        return L
    pending_ladd = []

    def ladds(ex):
        return ['v_add_f32 v%d, v%d, v%d' % (V_L + st * 2 + qb, V_L + st * 2 + qb, LT + (st * 2 + qb) * 4) for st in ex for qb in range(2)]

    def iteration(p, qk, ex, pv, prev_ex, nxt='k', dk=True, dv=True, loop_ctr=None):
        groups = []; rs = []
        if qk:
            groups += qk_mf(qk, p); rs += [kread(i, p) for i in range(16)]
        groups += pv_mf(pv, p); rs += [vread(i, p) for i in range(16)]
        n = len(groups)
        nx = {'k': [kread(i, 1 - p) for i in range(D)], 'v': [vread(i, 1 - p) for i in range(D)], None: [None] * D}[nxt]
        rds = rs[D:] + nx
        bg = n - D
        it = [dict(lo=0, hi=0, ins=s, v=True) for s in ladds(prev_ex)]
        nd = 0
        if dv:
            it.append(dict(lo=0, hi=1, ins='s_sub_u32 m0, s%d, s%d' % ((sC0, sC1)[p], sT)))
            for j, i in enumerate((2, 4, 5, 6)):
                it.append(dict(lo=i, hi=i + 1, ins='buffer_load_dwordx4 v%d, %s, s%d offen offset:%d lds' % (V_LANE16V, sr(WS, 4), (sK0, sK1)[p], 1024 * j)))
            nd += 4
        if dk:
            it.append(dict(lo=8, hi=9, ins='s_add_u32 m0, s%d, %d' % (sT, p * 16384)))
            it.append(dict(lo=8, hi=9, ins='s_add_u32 s%d, s%d, 32768' % ((sK0, sK1)[p], (sK0, sK1)[1 - p])))
            for j, i in enumerate((10, 12, 14, 16)):
                it.append(dict(lo=i, hi=i + 1, ins='buffer_load_dwordx4 v%d, %s, s%d offen offset:%d lds' % (V_LANE16, sr(WS, 4), (sK0, sK1)[p], 1024 * j)))
            nd += 4
        if p == 1:
            if qk: it.append(dict(lo=16 - D, hi=bg - 1, ins='v_xor_b32 v%d, 32768, v%d' % (V_KRD, V_KRD), v=True))
            it.append(dict(lo=bg - 1 if nxt == 'v' else bg, hi=bg - 1 if nxt == 'v' else n - 1, ins='v_xor_b32 v%d, 32768, v%d' % (V_VRD, V_VRD), v=True))
            it.append(dict(lo=13, hi=n - 1, ins='s_xor_b32 s%d, s%d, 32768' % (sT, sT)))
        if nxt is not None:
            it.append(dict(lo=bg - 3, hi=bg - 2, ins='s_waitcnt vmcnt(%d)' % nd))
            it.append(dict(lo=bg - 1, hi=bg - 1, ins='s_barrier'))
        it += lg_items(n, nxt is None)
        if 'b' in XP: it = [x for x in it if x.get('ins') != 's_barrier']
        if 'v' in XP: it = [x for x in it if 'vmcnt' not in x.get('ins', '')]
        if 'l' in XP: it = [x for x in it if 'lg' not in x]
        if 'd' in XP: it = [x for x in it if 'buffer_load' not in x.get('ins', '')]
        it.sort(key=lambda x: (x['hi'], x['lo']))
        fin = []
        if ex:
            lts = [LT + (st * 2 + qb) * 4 for st in ex for qb in range(2)]
            if len(lts) == 2: fin.append('v_max_f32 v%d, v%d, v%d' % (V_T0, lts[0], lts[1]))
            else:
                fin.append('v_max3_f32 v%d, v%d, v%d, v%d' % (V_T0, lts[0], lts[1], lts[2]))
                fin.append('v_max_f32 v%d, v%d, v%d' % (V_T0, V_T0, lts[3]))
            fin.append('v_cmp_lt_f32 vcc, s55, v%d' % V_T0)
        early = (1, p) if qk else None
        pk.run(groups, rds, it, [(st, 1 - p) for st in ex], [], fin, early, True)
        if loop_ctr: a('s_sub_u32 s%d, s%d, 1' % (loop_ctr[0], loop_ctr[0]))
        if ex:
            stub, back = a.newlabel(name + '_rs'), a.newlabel(name + '_rb')
            a('s_cbranch_vccnz %s' % stub)
            a.label(back)
            rare_sites.append((stub, back, 1 - p, ex))
        if loop_ctr: a('s_cbranch_scc0 %s' % loop_ctr[1])

    def epilogue(st):
        a('s_lshl_b32 s61, s%d, 10' % sQ[st])
        a('s_lshl_b32 s62, s%d, 19' % sH)
        a('s_add_u32 s61, s61, s62')
        a('s_add_u32 s61, s61, 0x%x' % WS_CTX)
        a('v_rcp_f32 v%d, v%d' % (V_T0, V_L + st * 2))
        a('v_rcp_f32 v%d, v%d' % (V_T1, V_L + st * 2 + 1))
        a('s_nop 4')
        cnt = 0
        for s in range(4):
            for qb in range(2):
                T = SB[st][0] + 16 * (cnt % 4); cnt += 1
                for cc in range(2):
                    for e in range(4): a('v_accvgpr_read_b32 v%d, a%d' % (T + 4 * cc + e, A_O[st] + ((2 * s + cc) * 2 + qb) * 4 + e))
                for e in range(8): a('v_mul_f32 v%d, v%d, v%d' % (T + e, T + e, (V_T0, V_T1)[qb]))
                for e in range(4): a('v_cvt_pk_bf16_f32 v%d, v%d, v%d' % (T + 8 + e, T + 2 * e, T + 2 * e + 1))
                if qb == 0: a('s_add_u32 s62, s61, %d' % (s * 128 * 1024))
                a('buffer_store_dwordx4 %s, v%d, %s, s62 offen offset:%d %s' % (vr(T + 8, 4), V_LANE16, sr(WS, 4), qb * 1024, ST_FLAGS))

    a('s_cmp_eq_u32 s%d, 0' % sI)
    a('s_cselect_b32 s59, s56, 0')
    prefill(0, 0, 0, dyn=True)
    a('s_waitcnt lgkmcnt(%d)' % (D - 4))
    both = [(0, True), (1, False)]
    rds = [kread(i, 0) for i in range(D, 16)] + [kread(i, 1) for i in range(D)]
    zero = ['v_accvgpr_write_b32 a%d, 0' % i for i in range(128)] + ['v_mov_b32 v%d, 0' % (V_L + j) for j in range(4)]
    pk.run(qk_mf(both, 0), rds, lg_items(16, False), [], zero, [], None, False)
    a('s_nop 3')
    for st in range(2):
        for qb in range(2):
            for s in max_ops(st, 0, qb, V_T0, V_T1): a(s)
            for e in range(4): a('v_sub_f32 v%d, 0, v%d' % (NEGM + (st * 2 + qb) * 4 + e, V_T0))
    prefill(0, 1, 1, dyn=True)
    rds = [kread(i, 1) for i in range(D, 16)] + [kread(i, 0) for i in range(D)]
    it = lg_items(16, False) + [dict(lo=16 - D - 1, hi=16 - D - 1, ins='v_xor_b32 v%d, 32768, v%d' % (V_KRD, V_KRD), v=True)]
    it.sort(key=lambda x: (x['hi'], x['lo']))
    pk.run(qk_mf(both, 1), rds, it, [(1, 0), (0, 0)], [], [], (1, 1), False, sub=True)
    a('s_nop 7')
    stamp(a, 4)
    lA, lA_skip, lA_tail2 = name + '_loopA', name + '_skipA', name + '_tail2A'
    a('s_cmp_eq_u32 s%d, 0' % sI)
    a('s_cbranch_scc1 %s' % lA_tail2)
    a('s_sub_u32 s63, s%d, 2' % sI)
    a('s_cbranch_scc1 %s' % lA_skip)
    a.raw('.p2align 6')
    a.label(lA)
    dn = [(0, False), (1, False)]
    BA = [1, 0]
    iteration(0, dn, BA, [0, 1], BA)
    iteration(1, dn, BA, [0, 1], BA, loop_ctr=(63, lA))
    a.label(lA_skip)
    prefill(0, 0, 0)
    iteration(0, both, BA, [0, 1], BA)
    prefill(0, 1, 1)
    iteration(1, both, BA, [0, 1], BA)
    a.label(lA_tail2)
    l7, lBtail2 = name + '_i7', name + '_tail2B'
    a('s_cmp_eq_u32 s%d, 7' % sI)
    a('s_cbranch_scc1 %s' % l7)
    iteration(0, [(1, False)], BA, [0, 1], BA)
    iteration(1, [(1, False)], [1], [0, 1], BA)
    stamp(a, 5)
    epilogue(0)
    stamp(a, 6)
    cstamp(a, 10)
    lB = name + '_loopB'
    a('s_lshl_b32 s63, s%d, 1' % sI)
    a('s_sub_u32 s63, 12, s63')
    a.raw('.p2align 6')
    a.label(lB)
    iteration(0, [(1, False)], [1], [1], [1])
    iteration(1, [(1, False)], [1], [1], [1], loop_ctr=(63, lB))
    cstamp(a, 11)
    stamp(a, 7)
    prefill(1, 0, 0)
    iteration(0, [(1, True)], [1], [1], [1], dk=False)
    prefill(1, 1, 1)
    iteration(1, [(1, True)], [1], [1], [1], dk=False, nxt='v')
    a('s_branch %s' % lBtail2)
    a.label(l7)
    prefill(1, 0, 0)
    iteration(0, [(1, True)], BA, [0, 1], BA, dk=False)
    prefill(1, 1, 1)
    iteration(1, [(1, True)], [1], [0, 1], BA, dk=False, nxt='v')
    epilogue(0)
    a.label(lBtail2)
    iteration(0, None, [1], [1], [1], dk=False, dv=False, nxt='v')
    iteration(1, None, [], [1], [1], dk=False, dv=False, nxt=None)
    stamp(a, 8)
    epilogue(1)
    stamp(a, 9)
    stamp_flush(a, 1, WS, sW, 12)
    a.label(end)
    a('s_endpgm')
    for stub, back, pc, ex in rare_sites:
        a.label(stub)
        for st in sorted(ex):
            a('s_call_b64 s[64:65], %s_rare%d%d' % (name, pc, st))
        a('s_branch %s' % back)
    for pc in range(2):
        for st in range(2):
            a.label('%s_rare%d%d' % (name, pc, st))
            a('s_nop 7')
            for qb in range(2):
                for s in max_ops(st, pc, qb, V_T0, V_T1): a(s)
                a('v_max_f32 v%d, 0, v%d' % (V_T0, V_T0))
                a('v_exp_f32 v%d, -v%d' % (V_T1, V_T0))
                for e in range(4): a('v_sub_f32 v%d, v%d, v%d' % (NEGM + (st * 2 + qb) * 4 + e, NEGM + (st * 2 + qb) * 4 + e, V_T0))
                for pp in range(2):
                    for kb in range(4):
                        for r in range(4):
                            x = SB[st][pp] + (kb * 2 + qb) * 4 + r
                            a('v_sub_f32 v%d, v%d, v%d' % (x, x, V_T0))
                a('v_mul_f32 v%d, v%d, v%d' % (V_L + st * 2 + qb, V_L + st * 2 + qb, V_T1))
                for db in range(0, 8, 2):
                    regs = [A_O[st] + ((db + h) * 2 + qb) * 4 + e for h in range(2) for e in range(4)]
                    for e in range(8): a('v_accvgpr_read_b32 v%d, a%d' % (TMP + e, regs[e]))
                    for e in range(8): a('v_mul_f32 v%d, v%d, v%d' % (TMP + e, TMP + e, V_T1))
                    for e in range(8): a('v_accvgpr_write_b32 a%d, v%d' % (regs[e], TMP + e))
            for s in exp_ops(st, pc): a(s)
            if st == 1:
                for k, (s, _, _) in enumerate(exp_seq(1, 1 - pc)[:EARLY]): a('v_exp_f32 v%d, v%d' % (TMP + k, s))
            a('s_nop 7')
            a('s_setpc_b64 s[64:65]')
    kernel_desc(a, name, 512, 256)
    return a
```

```python
from common import *
import common
import math, copy, re
import k2 as K2
from k2 import VM, Packer, exp_seq, exp_ops, max_ops, EARLY
from k2 import V_LANE16, V_LANE16V, V_KRD, V_VRD, V_T0, V_T1, V_L, TRI, NEGM, LT, TMP, SB, PB, A_O, A_Q, A_RING, V_ONES, D, R, THR, BIG

WT = 'sc0 sc1'
WS_FLG = 0x7000000
FK, FH, FC, FL, FE = WS_FLG, WS_FLG + 4096, WS_FLG + 8192, WS_FLG + 16384, WS_FLG + 20480
PTR = dict(x=4, ckv=6, wq=8, wuk=10, wuv=12, wo=14, wg=18, wu=20, wd=22, out=24, dbg=26, ws=28)
WS, R1, R2, R3, R4, R5 = 32, 36, 40, 44, 48, 52
sW, sH, sI = 30, 31, 3
V_ONE, V_1 = 60, 61
V_PA, V_PD = 62, 24

SMODE = os.environ.get('SMODE', 'all')
def stamp(a, i, mode='all'):
    if not DIAG: return
    if mode != SMODE and i != 0: return
    a('s_memrealtime s[98:99]'); a('s_waitcnt lgkmcnt(0)'); a('s_mov_b32 s%d, s98' % (80 + i))
def cstamp(a, i, mode='cyc'):
    if not DIAG or mode != SMODE: return
    a('s_memrealtime s[98:99]'); a('s_waitcnt lgkmcnt(0)'); a('s_mov_b32 s%d, s98' % (80 + i + 8))
    a('s_memtime s[98:99]'); a('s_waitcnt lgkmcnt(0)'); a('s_mov_b32 s%d, s98' % (80 + i))
def stamp_flush(a, n):
    if not DIAG: return
    if os.environ.get('DBGOUT'):
        a('s_load_dwordx2 s[36:37], s[0:1], 88')
        a('s_mov_b32 s38, 256'); a('s_mov_b32 s39, 0x00020000')
        a('s_lshl_b32 s98, s2, 2'); a('s_add_u32 s98, s98, s%d' % sW)
        a('s_cmp_eq_u32 s98, %d' % (4 * int(os.environ['DBGOUT'])))
        a('s_cselect_b32 s98, 0, 0x1000')
        a('s_waitcnt lgkmcnt(0)')
        a('v_mov_b32 v0, 0')
        for i in range(1, n):
            a('s_sub_u32 s99, s%d, s80' % (80 + i))
            a('v_mov_b32 v1, s99')
            a('buffer_store_dword v1, v0, s[36:39], s98 offen offset:%d' % (4 * (i - 1)))
            a('s_nop 1')
        return
    a('s_lshl_b32 s98, s2, 2'); a('s_add_u32 s98, s98, s%d' % sW); a('s_lshl_b32 s98, s98, 7')
    a('s_add_u32 s98, s98, 0x%x' % WS_STAMP)
    a('v_mov_b32 v0, 0')
    for i in range(n):
        a('v_mov_b32 v1, s%d' % (80 + i))
        a('buffer_store_dword v1, v0, %s, s98 offen offset:%d' % (sr(WS, 4), 4 * i))
        a('s_nop 1')

def srd(name, r, off=0, size=None):
    p = PTR[name]
    L = []
    if off:
        L += ['s_add_u32 s%d, s%d, 0x%x' % (r, p, off), 's_addc_u32 s%d, s%d, 0' % (r + 1, p + 1)]
    else:
        L += ['s_mov_b32 s%d, s%d' % (r, p), 's_mov_b32 s%d, s%d' % (r + 1, p + 1)]
    L += ['s_mov_b32 s%d, 0x%x' % (r + 2, SIZE[name] if size is None else size), 's_mov_b32 s%d, 0x00020000' % (r + 3)]
    return L

def gen_mega(a, name):
    kernel_begin(a, name)
    end = name + '_end'
    slow_paths = []
    def gate(load_ins, dreg, n, want, tmp_s):
        def chk():
            L = ['v_xor_b32 v%d, v%d, v%d' % (dreg + e, dreg + e, V_1) for e in range(n)]
            if n >= 3: L += ['v_or3_b32 v%d, v%d, v%d, v%d' % (dreg, dreg, dreg + 1, dreg + 2)]
            if n == 4: L += ['v_or_b32 v%d, v%d, v%d' % (dreg, dreg, dreg + 3)]
            L += ['v_cmp_ne_u32 vcc, 0, v%d' % dreg]
            return L
        slow, ok = a.newlabel(name + '_sl'), a.newlabel(name + '_ok')
        for s in chk(): a(s)
        a('s_nop 1')
        a('s_cbranch_vccnz %s' % slow)
        a.label(ok)
        slow_paths.append((slow, ok, load_ins, chk(), tmp_s))

    a('s_cmp_ge_u32 s2, 256')
    a('s_cbranch_scc1 %s' % end)
    stamp(a, 0)
    a('s_load_dwordx16 s[4:19], s[0:1], 0')
    a('s_load_dwordx8 s[20:27], s[0:1], 64')
    a('s_load_dwordx2 s[28:29], s[0:1], 96')
    a('v_lshrrev_b32 v1, 6, v0')
    a('v_and_b32 v0, 63, v0')
    a('v_readfirstlane_b32 s%d, v1' % sW)
    a('s_and_b32 s31, s2, 7')
    a('s_lshl_b32 s31, s31, 2')
    a('s_lshr_b32 s61, s2, 3')
    a('s_and_b32 s61, s61, 3')
    a('s_add_u32 s31, s31, s61')
    a('s_lshr_b32 s3, s2, 5')
    CKV, WUK, WUV, X, DBG = R1, R2, R3, R4, R5
    VA, VW = 8, 12
    a('v_lshrrev_b32 v6, 3, v0')
    a('v_lshlrev_b32 v6, 10, v6')
    a('v_lshrrev_b32 v7, 4, v0')
    a('v_and_b32 v12, 7, v0')
    a('v_xor_b32 v12, v12, v7')
    a('v_xor_b32 v13, 4, v12')
    a('v_lshl_add_u32 v12, v12, 4, v6')
    a('v_lshl_add_u32 v13, v13, 4, v6')
    for j in range(4): a('v_add_u32 v%d, %d, v%d' % (VA + j, j * (8192 - 1024), 12 + (j & 1)))
    a('v_bfe_u32 v16, v0, 1, 3')
    a('v_xor_b32 v16, v16, v7')
    a('v_xor_b32 v17, 4, v16')
    a('v_and_b32 v18, 1, v0')
    a('v_lshlrev_b32 v18, 4, v18')
    a('v_lshl_add_u32 v18, v7, 13, v18')
    a('v_lshl_add_u32 v16, v16, 5, v18')
    a('v_lshl_add_u32 v17, v17, 5, v18')
    for j in range(4): a('v_add_u32 v%d, %d, v%d' % (VW + j, j * (32768 - 1024), 16 + (j >> 1)))
    sA, sWo, sLA, sLW, sA2 = 56, 57, 58, 59, 60
    a('s_lshl_b32 s56, s%d, 2' % sI)
    a('s_add_u32 s56, s56, s%d' % sW)
    a('s_lshl_b32 s56, s56, 16')
    a('s_lshl_b32 s57, s%d, 17' % sW)
    a('s_lshl_b32 s58, s%d, 8' % sH)
    a('s_add_u32 s57, s57, s58')
    a('s_lshl_b32 s58, s%d, 13' % sW)
    a('s_lshl_b32 s59, s%d, 12' % sW)
    a('s_add_u32 s59, s59, 65536')
    a('v_lshrrev_b32 v2, 5, v0')
    a('v_and_b32 v3, 31, v0')
    a('s_lshl_b32 s61, s2, 2')
    a('s_add_u32 s61, s61, s%d' % sW)
    a('s_lshl_b32 s61, s61, 1')
    a('v_add_u32 v4, s61, v2')
    a('v_mul_u32_u24 v5, 1280, v4')
    a('v_lshl_add_u32 v5, v3, 3, v5')
    a('v_lshlrev_b32 v%d, 4, v0' % V_LANE16)
    vm = VM(); ids = {}
    def issue(it):
        if isinstance(it, str): return it
        ids[it[0]] = vm.op()
        return it[1]
    def p1_dma(st):
        slot = st & 1; t = ('p1', st)
        L = ['s_add_u32 m0, s%d, %d' % (sLA, slot * 32768), 's_add_u32 s%d, s%d, 32768' % (sA2, sA)]
        L += [(t, 'buffer_load_dwordx4 v%d, %s, s%d offen offset:%d lds' % (VA + j, sr(CKV, 4), sA, 1024 * j)) for j in range(4)]
        L += ['s_add_u32 m0, s%d, %d' % (sLW, slot * 32768), 's_add_u32 s%d, s%d, 128' % (sA, sA)]
        L += [(t, 'buffer_load_dwordx4 v%d, %s, s%d offen offset:%d lds' % (VW + j, sr(WUK, 4), sWo, 1024 * j)) for j in range(4)]
        L += ['s_add_u32 m0, s%d, %d' % (sLA, slot * 32768 + 4096), 's_nop 0']
        L += [(t, 'buffer_load_dwordx4 v%d, %s, s%d offen offset:%d lds' % (VA + j, sr(CKV, 4), sA2, 1024 * j)) for j in range(4)]
        L += ['s_add_u32 m0, s%d, %d' % (sLW, slot * 32768 + 16384), 's_nop 0']
        L += [(t, 'buffer_load_dwordx4 v%d, %s, s%d offen offset:%d lds' % (VW + j, sr(WUV, 4), sWo, 1024 * j)) for j in range(4)]
        L += ['s_add_u32 s%d, s%d, %d' % (sWo, sWo, 64 * 8192)]
        return L
    stamp(a, 1, 'st')
    a('s_waitcnt lgkmcnt(0)')
    for n_, r_ in (('x', X), ('ckv', CKV), ('wuk', WUK), ('wuv', WUV), ('ws', WS)):
        for s in srd(n_, r_): a(s)
    XR = 192
    a('v_mov_b32 v52, 0')
    a('s_mov_b32 s79, 0x%x' % FE)
    a(issue(('ep', 'buffer_load_dword v%d, v52, %s, s79 offen %s' % (V_1, sr(WS, 4), WT))))
    for j in range(5): a(issue(('x', 'buffer_load_dwordx2 %s, v5, %s, 0 offen offset:%d' % (vr(XR + 2 * j, 2), sr(X, 4), 256 * j))))
    PFB = False
    def weave(start, items):
        body = a.lines[start:]; del a.lines[start:]
        G = []
        for l in body:
            t = l.strip()
            if G and (t.startswith(('s_cselect', 's_addc', 's_subb')) or t.endswith(':') or G[-1][-1].strip().endswith(':')): G[-1].append(l)
            else: G.append([l])
        D_ = []; cur = []
        for s in items:
            cur.append(s)
            if s.startswith(('buffer_', 'global_')): D_.append(cur); cur = []
        if cur: D_[-1] += cur
        for j, d in enumerate(D_):
            for s in d: a(s)
            for g in G[(j * len(G)) // len(D_):((j + 1) * len(G)) // len(D_)]: a.lines.extend(g)
    s0_items = [issue(it) for it in p1_dma(0)]
    W0 = len(a.lines)
    a('s_lshr_b32 s61, s2, 3')
    a('s_lshl_b32 s61, s61, 2')
    a('s_add_u32 s61, s61, s%d' % sW)
    TC, TW, TX = 48, 49, 50
    a('v_bfe_u32 v20, v0, 1, 4')
    a('v_lshlrev_b32 v20, 10, v20')
    a('v_and_b32 v21, 1, v0')
    a('v_lshl_add_u32 v20, v21, 7, v20')
    a('s_lshl_b32 s62, s61, 14')
    a('v_add_u32 v%d, s62, v20' % TC)
    a('v_and_b32 v20, 7, v0')
    a('v_lshlrev_b32 v20, 7, v20')
    a('s_lshl_b32 s62, s61, 13')
    a('s_and_b32 s63, s2, 7')
    a('s_lshl_b32 s63, s63, 10')
    a('s_add_u32 s62, s62, s63')
    a('v_add_u32 v%d, s62, v20' % TW)
    def pf_chunk(c):
        if PFB: return []
        return ['s_mov_b32 s16, %d' % ((c + 1) * 128 * 8192),
                ('pf', 'buffer_load_dword v240, v%d, %s, 0 offen offset:%d' % (TC, sr(CKV, 4), 256 * (c + 1))),
                ('pf', 'buffer_load_dword v241, v%d, %s, s16 offen' % (TW, sr(WUK, 4))),
                ('pf', 'buffer_load_dword v242, v%d, %s, s16 offen' % (TW, sr(WUV, 4)))]
    a('s_getpc_b64 s[100:101]')
    a.label(name + '_pc')
    a('s_sub_u32 s100, s100, %s_pc-%s' % (name, name))
    a('s_subb_u32 s101, s101, 0')
    a('v_and_b32 v20, 7, v0')
    a('v_lshlrev_b32 v20, 7, v20')
    a('s_lshl_b32 s62, s61, 10')
    a('v_add_u32 v20, s62, v20')
    a('v_min_u32 v55, %s_codeend-%s-4, v20' % (name, name))
    TQ, TG = 53, 54
    a('v_min_u32 v20, 39, v0')
    a('v_lshrrev_b32 v21, 3, v20')
    a('s_mul_i32 s62, s61, 5')
    a('v_add_u32 v21, s62, v21')
    a('v_and_b32 v20, 7, v20')
    a('v_lshlrev_b32 v20, 7, v20')
    a('v_lshl_add_u32 v20, v21, 13, v20')
    a('v_add_u32 v%d, s63, v20' % TQ)
    a('v_min_u32 v20, 19, v0')
    a('v_lshrrev_b32 v21, 2, v20')
    a('v_add_u32 v21, s62, v21')
    a('v_mul_u32_u24 v21, 3456, v21')
    a('s_and_b32 s63, s2, 7')
    a('s_lshl_b32 s63, s63, 2')
    a('s_mul_i32 s64, s63, 37'); a('s_lshr_b32 s64, s64, 8')
    a('s_sub_u32 s63, s63, s64')
    a('v_and_b32 v20, 3, v20')
    a('v_add_u32 v20, s63, v20')
    a('v_min_u32 v20, 26, v20')
    a('v_lshl_add_u32 v%d, v20, 7, v21' % TG)
    a('s_mul_i32 s62, s61, 20480')
    a('v_and_b32 v20, 31, v0')
    a('v_lshlrev_b32 v20, 7, v20')
    a('v_add_u32 v%d, s62, v20' % TX)
    def xn_touch(j):
        return ['s_mov_b32 s16, %d' % (4096 * j), ('pf', 'buffer_load_dword v243, v%d, %s, s16 offen' % (TX, sr(WS, 4)))]
    RA, RW = 16, 18
    a('s_lshr_b32 s61, s%d, 1' % sW)
    a('s_lshl_b32 s61, s61, 14')
    a('v_bfe_u32 v20, v0, 1, 3')
    a('v_xor_b32 v20, v20, v7')
    a('v_and_b32 v21, 15, v0')
    a('v_lshlrev_b32 v21, 7, v21')
    a('v_add_u32 v21, s61, v21')
    a('v_lshl_add_u32 v%d, v20, 4, v21' % RA)
    a('v_xor_b32 v20, 4, v20')
    a('v_lshl_add_u32 v%d, v20, 4, v21' % (RA + 1))
    a('v_bfe_u32 v22, v0, 2, 2')
    a('v_lshl_add_u32 v23, v7, 3, v22')
    a('v_lshlrev_b32 v23, 8, v23')
    a('v_and_b32 v24, 3, v0')
    a('v_lshl_add_u32 v23, v24, 3, v23')
    a('v_add_u32 v23, 65536, v23')
    a('v_bfe_u32 v22, v0, 2, 3')
    a('s_and_b32 s62, s%d, 1' % sW)
    a('s_lshl_b32 s62, s62, 2')
    a('v_xor_b32 v22, s62, v22')
    for nb in range(4):
        a('v_xor_b32 v24, %d, v22' % nb)
        a('v_lshl_add_u32 v%d, v24, 5, v23' % (RW + nb))
    P_XOFF2, P_WOFF, P_WRD = 32, 33, 40
    P_X0, P_X1 = 32, 37
    a('s_sub_u32 s61, 7, s%d' % sW); a('s_mul_i32 s61, s61, 20480'); a('v_add_u32 v%d, s61, v%d' % (P_X0, V_LANE16))
    a('s_mul_i32 s61, s%d, 20480' % sW); a('v_add_u32 v%d, s61, v%d' % (P_X1, V_LANE16))
    a('v_lshrrev_b32 v25, 3, v0')
    a('v_bfe_u32 v26, v0, 1, 2')
    a('v_bfe_u32 v27, v0, 4, 2')
    a('v_xor_b32 v26, v26, v27')
    a('v_lshlrev_b32 v26, 5, v26')
    a('v_and_b32 v27, 1, v0')
    a('v_lshl_add_u32 v26, v27, 4, v26')
    a('v_lshl_add_u32 v%d, v25, 13, v26' % P_WOFF)
    a('v_add_u32 v%d, %d, v%d' % (P_WOFF + 1, 8 * 8192 - 1024, P_WOFF))
    a('v_mul_u32_u24 v25, 3456, v25')
    a('v_add_u32 v%d, v25, v26' % (P_WOFF + 2))
    a('v_add_u32 v%d, %d, v%d' % (P_WOFF + 3, 8 * 3456 - 1024, P_WOFF + 2))
    a('v_lshrrev_b32 v25, 2, v0')
    a('v_lshlrev_b32 v25, 7, v25')
    a('v_and_b32 v26, 3, v0')
    a('v_lshl_add_u32 v25, v26, 3, v25')
    a('v_add_u32 v25, 65536, v25')
    a('v_bfe_u32 v26, v0, 3, 2')
    for c in range(4):
        a('v_xor_b32 v27, %d, v26' % c)
        a('v_lshl_add_u32 v%d, v27, 5, v25' % (P_WRD + c))
        a('v_add_u32 v%d, 65536, v%d' % (P_WRD + 4 + c, P_WRD + c))
    s_w = [64, 65, 66, 67]; s_q = [68, 69]; sLW2, sCT = 70, 71; sQ = [72, 73]
    a('s_mul_i32 s17, s%d, 37' % sH)
    a('s_lshr_b32 s17, s17, 8')
    a('s_sub_u32 s71, s%d, s17' % sH)
    a('s_lshl_b32 s70, s%d, 11' % sW)
    a('s_lshl_b32 s72, s%d, 3' % sI)
    a('s_sub_u32 s73, 120, s72')
    a('s_mul_i32 s68, s72, 20480')
    a('s_mul_i32 s69, s73, 20480')
    assert WS_XN == 0
    a('s_lshl_b32 s64, s%d, 17' % sW)
    a('s_lshl_b32 s65, s%d, 8' % sH)
    a('s_add_u32 s64, s64, s65')
    a('s_add_u32 s65, s64, 128')
    a('s_mul_i32 s66, s%d, %d' % (sW, 16 * 3456))
    a('s_lshl_b32 s67, s%d, 7' % sCT)
    a('s_add_u32 s66, s66, s67')
    a('s_mov_b32 s67, s66')
    a('s_mul_i32 s61, s17, 7')
    a('s_sub_u32 s61, s%d, s61' % sH)
    a('s_cmp_eq_u32 s61, 6')
    a('s_cselect_b32 s74, 0, 0x%x' % SIZE['wg'])
    a('s_cmp_ge_u32 s%d, 27' % sCT)
    a('s_cselect_b32 s74, 0, s74')
    a('s_lshl_b32 s61, s%d, 2' % sW)
    a('s_lshl_b32 s76, s2, 4'); a('s_add_u32 s76, s76, s61')
    a('s_add_u32 s75, s76, 0x%x' % FK)
    a('s_add_u32 s77, s76, 0x%x' % FC)
    a('s_and_b32 s78, s76, 0x1ff')
    a('s_add_u32 s76, s76, 0x%x' % FH)
    a('s_sub_u32 s62, 15, s%d' % sI); a('s_lshl_b32 s62, s62, 9')
    a('s_add_u32 s78, s78, s62'); a('s_add_u32 s78, s78, 0x%x' % FC)
    a('v_cmp_eq_u32 vcc, 0, v0')
    a('v_mov_b32 v25, 0x20000000')
    a('s_lshl_b32 s26, s2, 2'); a('s_add_u32 s26, s26, 0x%x' % FL)
    a('v_cndmask_b32 v%d, v25, 0, vcc' % V_ONE)
    a('s_cmp_eq_u32 s%d, 0' % sW)
    a('s_cselect_b32 s26, s26, 0x20000000')
    a('s_lshl_b32 s27, s2, 2'); a('s_or_b32 s27, s27, s%d' % sW)
    a('s_cmp_eq_u32 s27, 0')
    a('s_cselect_b32 s27, s79, 0x20000000')
    a('s_mov_b32 s79, 0x%x' % FL)
    def flag_store(sreg, val=V_1):
        return ('fl', 'buffer_store_dword v%d, v%d, %s, s%d offen %s' % (val, V_ONE, sr(WS, 4), sreg, WT))
    weave(W0, s0_items)
    stamp(a, 6, 'st')
    a('s_waitcnt vmcnt(%d)' % vm.cnt(ids['x']))
    stamp(a, 1); stamp(a, 7, 'st')
    s1_items = [issue(it) for it in (pf_chunk(0) + p1_dma(1) if 'q' in os.environ.get('MX', '') else p1_dma(1) + pf_chunk(0)) + [('pf', 'global_load_dword v249, v55, s[100:101]')]]
    W1 = len(a.lines)
    a('s_mov_b32 s61, 0x9e3779b1')
    a('v_mul_lo_u32 v%d, s61, v%d' % (V_1, V_1))
    a('v_add_u32 v%d, 0x7f4a7c15, v%d' % (V_1, V_1))
    import k1
    b = Asm(); k1.ln_part(b, XR, WS, 4, 3)
    ln_lines = [l.strip() for l in b.lines]
    for l in ln_lines[:-20]: a(l)
    a('v_lshrrev_b32 v224, 3, v3')
    a('v_lshlrev_b32 v224, 9, v224')
    a('v_and_b32 v225, 3, v3')
    a('v_lshl_add_u32 v224, v225, 7, v224')
    a('v_and_b32 v225, 7, v4')
    a('v_lshl_add_u32 v224, v225, 4, v224')
    a('v_bfe_u32 v225, v3, 2, 1')
    a('v_lshl_add_u32 v224, v225, 3, v224')
    a('v_add_u32 v224, %d, v224' % (128 * 1024))
    for j in range(5): a('ds_write_b64 v224, %s offset:%d' % (vr(XR + 2 * j, 2), 2048 * j))
    a('s_lshl_b32 s61, s%d, 10' % sW)
    a('s_add_u32 s61, s61, %d' % (128 * 1024))
    a('v_add_u32 v225, s61, v%d' % V_LANE16)
    a('v_lshrrev_b32 v226, 3, v0')
    a('v_lshlrev_b32 v226, 8, v226')
    a('v_and_b32 v227, 7, v0')
    a('v_lshl_add_u32 v226, v227, 4, v226')
    a('s_lshr_b32 s61, s2, 1')
    a('s_mul_i32 s61, s61, 20480')
    a('s_and_b32 s62, s2, 1')
    a('s_lshl_b32 s62, s62, 7')
    a('s_add_u32 s61, s61, s62')
    a('s_lshl_b32 s62, s%d, 11' % sW)
    a('s_add_u32 s61, s61, s62')
    a('s_add_u32 s62, s61, 8192')
    a('s_add_u32 s63, s61, 16384')
    a('s_cmp_lt_u32 s%d, 2' % sW)
    a('s_cselect_b32 s63, s63, 0x20000000')
    weave(W1, s1_items)
    xn_reads = ['ds_read_b128 %s, v225 offset:%d' % (vr(XR + 4 * t, 4), 4096 * t) for t in range(3)]
    xn_stores = [('xn', 'buffer_store_dwordx4 %s, v226, %s, s%d offen %s' % (vr(XR + 4 * t, 4), sr(WS, 4), 61 + t, WT)) for t in range(3)]
    MX = os.environ.get('MX', '')
    if 'x' in MX: xn_stores = []
    if 'p' in MX: xn_stores = [(t, s.replace(WT, '')) for t, s in xn_stores]
    WQ, WG, WU = R1, R2, R3
    WSLOT = [128 * 1024, 64 * 1024, 96 * 1024]
    P_ACCV, P_ACCA, P_WF, P_ACT = 128, 0, 128, 192
    srdm = [WQ, WQ, WG, WU]; stride = [8192, 8192, 3456, 3456]
    def w_dma(st, nm):
        L = []
        for m in range(nm):
            L.append('s_add_u32 m0, s%d, %d' % (sLW2, WSLOT[st % 3] + m * 8192))
            L.append('s_nop 0')
            for j in range(2):
                L.append((('w', st), 'buffer_load_dwordx4 v%d, %s, s%d offen offset:%d lds' % (P_WOFF + 2 * (m // 2) + j, sr(srdm[m], 4), s_w[m], 1024 * j)))
            L.append('s_add_u32 s%d, s%d, %d' % (s_w[m], s_w[m], 64 * stride[m]))
        return L
    def a_load(k):
        base = P_ACT + 16 * (k % 4)
        L = [(('a', k), 'buffer_load_dwordx4 %s, v%d, %s, s%d offen offset:%d' % (ar(base + 4 * qi, 4), (P_X0, P_X1)[qi % 2], sr(WS, 4), s_q[qi // 2], 1024 * (k % 4))) for qi in range(4)]
        if k % 4 == 3: L += ['s_add_u32 s%d, s%d, 4096' % (s, s) for s in s_q]
        return L
    FR = 64
    def reads(slot, ks, fs):
        base = FR + 64 * fs
        def A(i): return ['ds_read_b128 %s, v%d offset:%d' % (vr(base + 4 * i, 4), RA + ks, slot * 32768 + i * 2048)]
        def W(mat, nb): return ['ds_read_b64_tr_b16 %s, v%d offset:%d' % (vr(base + 32 + 16 * mat + 4 * nb + 2 * r, 2), RW + nb,
                                slot * 32768 + mat * 16384 + (32 * ks + 4 * r) * 256) for r in range(2)]
        L = A(0)
        for nb in range(4): L += W(0, nb)
        for nb in range(4): L += W(1, nb)
        for i in range(1, 8): L += A(i)
        return L
    def mfmas(fs, first):
        base = FR + 64 * fs; L = []
        for rb in range(8):
            act = vr(base + 4 * rb, 4)
            for mat in range(2):
                for nb in range(4):
                    w = vr(base + 32 + 16 * mat + 4 * nb, 4)
                    d = ar((rb * 8 + mat * 4 + nb) * 4, 4); c = '0' if first else d
                    L.append('%s %s, %s, %s, %s' % ((MF16, d, w, act, c) if mat == 0 else (MF16, d, act, w, c)))
        return L
    stamp(a, 2); stamp(a, 8, 'st')
    a('s_waitcnt vmcnt(%d) lgkmcnt(0)' % vm.cnt(ids[('p1', 0)]))
    stamp(a, 9, 'st')
    a('s_barrier')
    stamp(a, 3); stamp(a, 10, 'st')
    for s in reads(0, 0, 0) + xn_reads: a(s)
    ln_poll = 'buffer_load_dwordx4 v[244:247], v%d, %s, s79 offen %s' % (V_LANE16, sr(WS, 4), WT)
    NST = 8
    pend = []
    P1SP = int(os.environ.get('P1SP', 4))
    for st in range(NST):
        slot = st & 1
        for ks in range(2):
            rd = []
            if ks == 1:
                if st < NST - 1:
                    assert not any(x[0] == ('p1', st + 1) for x in pend if not isinstance(x, str))
                    a('s_waitcnt vmcnt(%d) lgkmcnt(0)' % vm.cnt(ids[('p1', st + 1)])); a('s_barrier')
                    rd = reads(1 - slot, 0, 0)
                else: a('s_waitcnt lgkmcnt(0)')
                if st + 2 < NST: pend += p1_dma(st + 2)
                if st == 0: pend += xn_stores
                if st == 2: pend = [flag_store(26)] + pend
                if st in (0, 1): pend += pf_chunk(st + 1)
                if st == 2: pend += [('pf', 'global_load_dword v240, v%d, s[8:9]' % TQ)]
                if st == 3: pend += [('pf', 'global_load_dword v241, v%d, s[18:19]' % TG), ('pf', 'global_load_dword v242, v%d, s[20:21]' % TG)]
                if st == 4: pend = [('lnp', ln_poll)] + pend
                if st == 5:
                    gate(ln_poll, 244, 4, 1, 61)
                    pend += [flag_store(27)]
                    pend += xn_touch(0) + xn_touch(1)
                if st == 6: pend += w_dma(1, 4) + xn_touch(2) + xn_touch(3)
                if st == 7: pend += xn_touch(4)
            else:
                a('s_waitcnt lgkmcnt(0)')
                rd = reads(slot, 1, 1)
                if st == 6:
                    pend += srd('wq', WQ) + srd('wg', WG) + srd('wu', WU) + ['s_mov_b32 s%d, s74' % (WG + 2), 's_mov_b32 s%d, s74' % (WU + 2)] + w_dma(0, 4)
            lastv = -10
            for g, m in enumerate(mfmas(ks, st == 0 and ks == 0)):
                a(m)
                if g % 2 == 0 and rd: a(rd.pop(0))
                elif pend and g % 2 == 1:
                    while pend and pend[0] == 's_nop 0': pend.pop(0)
                    if pend and (isinstance(pend[0], str) or g - lastv >= (2 if st < 2 else P1SP)):
                        if not isinstance(pend[0], str): lastv = g
                        a(issue(pend.pop(0)))
            stamp(a, 1 + 2 * st + ks, 'p1')
        if st == 3: stamp(a, 4); cstamp(a, 1)
    assert not pend
    stamp(a, 5); cstamp(a, 2)
    a('s_lshl_b32 s56, s%d, 20' % sH)
    a('s_lshl_b32 s57, s%d, 17' % sI)
    a('s_add_u32 s56, s56, s57')
    a('s_lshr_b32 s57, s%d, 1' % sW)
    a('s_lshl_b32 s57, s57, 16')
    a('s_add_u32 s56, s56, s57')
    a('s_add_u32 s56, s56, 0x%x' % WS_KV)
    a('s_and_b32 s57, s%d, 1' % sW)
    a('s_lshl_b32 s58, s57, 11')
    a('s_add_u32 s58, s58, s56')
    a('s_lshl_b32 s59, s57, 12')
    a('s_add_u32 s59, s59, s56')
    a('s_add_u32 s59, s59, 16384')
    cnt = [0]
    def conv(b0, b1, dst=None):
        T = 128 + 16 * (cnt[0] % 4); cnt[0] += 1
        if dst is None: dst = T + 8
        for e in range(4): a('v_accvgpr_read_b32 v%d, a%d' % (T + e, b0 * 4 + e))
        for e in range(4): a('v_accvgpr_read_b32 v%d, a%d' % (T + 4 + e, b1 * 4 + e))
        for e in range(4): a('v_cvt_pk_bf16_f32 v%d, v%d, v%d' % (dst + e, T + 2 * e, T + 2 * e + 1))
        return dst
    def store(T, sb, off):
        return ['s_add_u32 s63, s%d, %d' % (sb, off & ~4095),
                ('kv', 'buffer_store_dwordx4 %s, v%d, %s, s63 offen offset:%d %s' % (vr(T, 4), V_LANE16, sr(WS, 4), off & 4095, WT))]
    def jobs(rp):
        J = []
        for rb in (2 * rp, 2 * rp + 1):
            for s in range(2): J.append((rb * 8 + 2 * s, rb * 8 + 2 * s + 1, 16, (rb // 4) * 32768 + ((rb % 4) * 4 + s) * 1024))
        rb = 2 * rp
        for nb in range(4): J.append((rb * 8 + 4 + nb, (rb + 1) * 8 + 4 + nb, 17, (rb // 4) * 32768 + (((rb % 4) // 2) * 8 + nb) * 1024))
        return J
    a('s_mov_b32 s16, s58'); a('s_mov_b32 s17, s59')
    a('s_lshl_b32 s57, s%d, 14' % sW)
    a('v_add_u32 v26, s57, v%d' % V_LANE16)
    J1 = jobs(3) + jobs(2); J2 = jobs(1) + jobs(0)
    for n_, (b0, b1, sb, off) in enumerate(J1[:8]): conv(b0, b1, 64 + 4 * n_)
    for k in range(4):
        for it in a_load(k): a(issue(it))
    a('s_waitcnt vmcnt(%d)' % vm.cnt(ids[('w', 0)]))
    a('s_barrier')
    for it in w_dma(2, 4): a(issue(it))
    for n_, (b0, b1, sb, off) in enumerate(J1[8:]): conv(b0, b1, 96 + 4 * n_)
    for n_, (b0, b1, sb, off) in enumerate(J2):
        T = conv(b0, b1)
        a('ds_write_b128 v26, %s offset:%d' % (vr(T, 4), 1024 * n_))
    kv_sched = {}
    KVEND = int(os.environ.get('KVEND', 14))
    def kstep(n_): return (n_ * KVEND) // 32
    for n_, (b0, b1, sb, off) in enumerate(J1):
        kv_sched.setdefault(kstep(n_), []).extend(store(64 + 4 * n_, sb, off))
        kv_sched.setdefault(kstep(n_) + 1, []).append('ds_read_b128 %s, v26 offset:%d' % (vr(64 + 4 * n_, 4), 1024 * n_))
    for n_, (b0, b1, sb, off) in enumerate(J2):
        kv_sched.setdefault(kstep(16 + n_), []).extend(store(64 + 4 * n_, sb, off))
    stamp(a, 6); cstamp(a, 3)
    sBASE, sK0, sK1, sT, sC0, sC1, sS1 = 56, 57, 58, 59, 60, 61, 62
    a('s_lshl_b32 s56, s%d, 20' % sH)
    a('s_lshl_b32 s59, s%d, 12' % sW)
    a('s_add_u32 s56, s56, s59')
    a('s_add_u32 s56, s56, 0x%x' % WS_KV)
    a('s_lshl_b32 s60, s%d, 13' % sW)
    a('s_add_u32 s60, s60, %d' % (65536 + 32768))
    a('s_add_u32 s61, s60, 16384')
    a('s_add_u32 s62, s56, 32768')
    a('s_add_u32 s57, s56, 65536')
    a('s_add_u32 s58, s57, 32768')
    a('v_add_u32 v%d, 16384, v%d' % (V_LANE16V, V_LANE16))
    a('v_and_b32 v%d, 7, v0' % V_PA)
    a('v_lshlrev_b32 v%d, 9, v%d' % (V_PA, V_PA))
    a('s_and_b32 s79, s2, 31')
    a('s_lshl_b32 s79, s79, 4')
    a('s_add_u32 s79, s79, 0x%x' % FK)
    kv_poll0 = 'buffer_load_dwordx4 v[20:23], v52, %s, s79 offen %s' % (sr(WS, 4), WT)
    kv_poll = 'buffer_load_dwordx4 v[208:211], v%d, %s, s79 offen %s' % (V_PA, sr(WS, 4), WT)
    def kv_dma(m0expr, voff, ssrc, tag):
        return [m0expr, 's_nop 0'] + [(tag, 'buffer_load_dwordx4 v%d, %s, s%d offen offset:%d lds' % (voff, sr(WS, 4), ssrc, 1024 * j)) for j in range(4)]
    def w_read(k, n):
        st, ks = k // 2, k % 2
        off = WSLOT[st % 3] - 65536
        grp = off // 65536; off %= 65536
        m, c = n // 4, n % 4
        return ['ds_read_b64_tr_b16 %s, v%d offset:%d' % (ar(P_WF + 4 * n + 2 * r, 2), P_WRD + 4 * grp + c, off + m * 8192 + (32 * ks + 16 * r) * 128) for r in range(2)]
    def p2_loop(nm):
        NB = 4 * nm; NS2 = 10
        for n in range(NB):
            for s in w_read(0, n): a(s)
        pend = []
        for k in range(2 * NS2):
            st, ks = k // 2, k % 2
            base = P_ACT + 16 * (k % 4)
            need = ids[('a', k)]
            if k == 18: need = max(need, ids['kvp'])
            if k == KVEND + 1:
                assert not any(x[0] == 'kv' for x in pend if not isinstance(x, str))
                need = max(need, ids['kv'])
            assert not any(x[0] == ('a', k) for x in pend if not isinstance(x, str))
            a('s_waitcnt vmcnt(%d) lgkmcnt(8)' % min(63, vm.cnt(need)))
            pend += kv_sched.get(k, [])
            if k == KVEND + 1: pend += [flag_store(75)]
            if k == 17: pend += [('kvp', kv_poll0)]
            if k == 18:
                gate(kv_poll0, 20, 4, 1, 63)
                pend += kv_dma('s_add_u32 m0, s59, 0', V_LANE16, sBASE, 'k0') + kv_dma('s_add_u32 m0, s59, 16384', V_LANE16, sS1, 'k1')
                pend += kv_dma('s_add_u32 m0, s59, 32768', V_LANE16, sK0, 'k2')
            if k == 19:
                pend += kv_dma('s_add_u32 m0, s59, 65536', V_LANE16V, sBASE, 'v0')
                pend += kv_dma('s_add_u32 m0, s59, 49152', V_LANE16, sK1, 'k3') + kv_dma('s_add_u32 m0, s59, %d' % (65536 + 16384), V_LANE16V, sS1, 'v1')
            if k > 0 and k + 3 < 2 * NS2: pend = a_load(k + 3) + pend
            for n in range(NB):
                if n % 4 == 0 and n > 0:
                    a('s_waitcnt lgkmcnt(%d)' % (8 if k < 2 * NS2 - 1 else min(8, 2 * (NB - n - 4))))
                for qi in range(4):
                    d = ar(P_ACCA + (n * 4 + qi) * 4, 4) if n < 8 else vr(P_ACCV + ((n - 8) * 4 + qi) * 4, 4)
                    a('%s %s, %s, %s, %s' % (MF16, d, ar(P_WF + 4 * n, 4), ar(base + 4 * qi, 4), '0' if k == 0 else d))
                    if qi < 3:
                        while pend and pend[0] == 's_nop 0': pend.pop(0)
                        if pend: a(issue(pend.pop(0)))
                if k + 1 < 2 * NS2:
                    if n == 0 and ks == 1:
                        assert not any(x[0] == ('w', st + 1) for x in pend if not isinstance(x, str))
                        a('s_waitcnt vmcnt(%d) lgkmcnt(0)' % min(63, vm.cnt(ids[('w', st + 1)])))
                        a('s_barrier')
                        if st + 3 < NS2: pend = pend + w_dma(st + 3, nm)
                    for s in w_read(k + 1, n): a(s)
            if k < 16: stamp(a, 1 + k, 'p2a')
            if k >= 4: stamp(a, k - 3, 'p2b')
        assert not pend
    qonly, qdone = name + '_qonly', name + '_qdone'
    a('s_cmp_eq_u32 s74, 0')
    a('s_cbranch_scc1 %s' % qonly)
    save = (vm.n, dict(ids))
    p2_loop(4)
    stamp(a, 7); cstamp(a, 4)
    a('s_lshl_b32 s64, s72, 10')
    a('s_lshl_b32 s65, s73, 10')
    a('s_lshl_b32 s66, s%d, 18' % sCT)
    a('s_add_u32 s66, s66, 0x%x' % WS_H)
    a('s_add_u32 s64, s64, s66')
    a('s_add_u32 s65, s65, s66')
    a('s_add_u32 s66, s64, %d' % (128 * 1024)); a('s_add_u32 s67, s65, %d' % (128 * 1024))
    a('s_sub_u32 s68, 7, s%d' % sW); a('s_lshl_b32 s68, s68, 10'); a('v_add_u32 v%d, s68, v%d' % (P_X0, V_LANE16))
    a('s_lshl_b32 s68, s%d, 10' % sW); a('v_add_u32 v%d, s68, v%d' % (P_X1, V_LANE16))
    c2 = 0
    for qi in range(4):
        for s in range(2):
            T = 64 + 4 * (c2 % 8); c2 += 1
            for cc in range(2):
                g = P_ACCV + ((2 * s + cc) * 4 + qi) * 4; u = g + 64
                for e in range(4): a('v_mul_f32 v%d, v%d, v%d' % (g + e, g + e, u + e))
                for e in range(2): a('v_cvt_pk_bf16_f32 v%d, v%d, v%d' % (T + 2 * cc + e, g + 2 * e, g + 2 * e + 1))
            a(issue(('h', 'buffer_store_dwordx4 %s, v%d, %s, s%d offen %s' % (vr(T, 4), (P_X0, P_X1)[qi % 2], sr(WS, 4), 64 + qi // 2 + 2 * s, WT))))
    a('s_waitcnt vmcnt(%d)' % vm.cnt(max(ids['k2'], ids['v0'])))
    a('s_branch %s' % qdone)
    a.label(qonly)
    vm.n, ids = save[0], dict(save[1])
    p2_loop(2)
    a('s_waitcnt vmcnt(%d)' % vm.cnt(max(ids['k2'], ids['v0'])))
    a.label(qdone)
    stamp(a, 8)
    a('s_barrier')
    sTHR, sBIG, s2W, sM0, sM1, sDYN, sE0, sE1, sCNT = 64, 65, 66, 67, 68, 69, 70, 71, 63
    def kread(i, p): return 'ds_read_b128 %s, v%d offset:%d' % (ar(A_RING + 4 * (i % R), 4), V_KRD, p * 16384 + i * 1024)
    def vread(i, p): return 'ds_read_b128 %s, v%d offset:%d' % (ar(A_RING + 4 * (i % R), 4), V_VRD, p * 16384 + i * 1024)
    a('v_mov_b32 v%d, v%d' % (V_KRD, V_LANE16))
    a('v_add_u32 v%d, 65536, v%d' % (V_VRD, V_LANE16))
    for i in range(D): a(kread(i, 0))
    a('s_mov_b32 s64, %s' % f2u(math.log2(math.e) / math.sqrt(128.0)))
    for qi in range(4):
        for s in range(4):
            T = 128 + 16 * ((qi * 4 + s) % 4)
            for cc in range(2):
                for e in range(4): a('v_accvgpr_read_b32 v%d, a%d' % (T + 4 * cc + e, P_ACCA + ((2 * s + cc) * 4 + qi) * 4 + e))
            for e in range(8): a('v_mul_f32 v%d, s64, v%d' % (T + e, T + e))
            for e in range(4): a('v_cvt_pk_bf16_f32 v%d, v%d, v%d' % (T + 8 + e, T + 2 * e, T + 2 * e + 1))
            for e in range(4): a('v_accvgpr_write_b32 a%d, v%d' % (A_Q[qi // 2] + ((qi % 2) * 4 + s) * 4 + e, T + 8 + e))
    a('v_and_b32 v5, 15, v0')
    a('v_lshrrev_b32 v6, 4, v0')
    a('v_lshlrev_b32 v6, 2, v6')
    a('v_sub_u32 v5, v5, v6')
    for r in range(4):
        a('v_cmp_gt_i32 vcc, %d, v5' % r)
        a('s_nop 1')
        a('v_cndmask_b32 v%d, 0, 1.0, vcc' % (TRI + r))
    for e in range(4): a('v_mov_b32 v%d, 0x3f803f80' % (V_ONES + e))
    for j in range(16): a('v_mov_b32 v%d, 0' % (NEGM + j))
    a('s_mov_b32 s%d, %s' % (sTHR, f2u(THR)))
    a('s_mov_b32 s%d, %s' % (sBIG, f2u(-BIG)))
    a('s_sub_u32 s%d, 3, s%d' % (s2W, sW))
    a(kv_poll)
    stamp(a, 9)
    def prefill(st, p, tau, dyn=False):
        qb = 1 - tau
        sref = sW if tau == 0 else s2W
        big = sDYN if dyn else sBIG
        out = []
        for kb in range(4):
            S = SB[st][p] + (kb * 2 + qb) * 4
            L = ['s_cmp_eq_u32 s%d, %d' % (sref, kb), 's_cselect_b32 s%d, s%d, 0' % (sM0, big)]
            t = NEGM + (st * 2 + qb) * 4
            if kb > 0:
                L += ['s_cmp_lt_u32 s%d, %d' % (sref, kb), 's_cselect_b32 s%d, s%d, 0' % (sM1, big), 'v_add_f32 v%d, s%d, v%d' % (V_T1, sM1, t)]
                t = V_T1
            L += ['v_fma_f32 v%d, v%d, s%d, v%d' % (S + r, TRI + r, sM0, t) for r in range(4)]
            out.append('\n'.join(L))
        return out
    def qk_mf(sets, p):
        G = []
        for f in range(16):
            kb, ds = f // 4, f % 4; L = []
            for st, qbs, inq in sets:
                for qb in qbs:
                    d = vr(SB[st][p] + (kb * 2 + qb) * 4, 4)
                    c = vr(NEGM + (st * 2 + qb) * 4, 4) if (ds == 0 and inq != qb) else d
                    L.append('%s %s, %s, %s, %s' % (MF16, d, ar(A_RING + 4 * (f % R), 4), ar(A_Q[st] + (qb * 4 + ds) * 4, 4), c))
            G.append(L)
        return G
    def pv_mf(sets, p):
        G = []
        for f in range(16):
            ks, db = f // 8, f % 8; L = []
            for st, qbs in sets:
                for qb in qbs:
                    d = ar(A_O[st] + (db * 2 + qb) * 4, 4)
                    L.append('%s %s, %s, %s, %s' % (MF16, d, ar(A_RING + 4 * (f % R), 4), vr(PB[st][p] + (qb * 2 + ks) * 4, 4), d))
            G.append(L)
        return G
    def pre_items(pf):
        a(pf[0]); a('s_nop 1')
        return [dict(lo=max(0, 4 * kb - 5), hi=4 * kb - 3, ins=pf[kb]) for kb in range(1, 4)]
    rare_sites = []
    pk = Packer(a)
    def lg_items(n, skip_last):
        return [dict(lo=i, hi=i, lg=i + 4) for i in range(3, n, 4) if not (i == n - 1 and skip_last)]
    def ladds(ex):
        return ['v_add_f32 v%d, v%d, v%d' % (V_L + st * 2 + qb, V_L + st * 2 + qb, LT + (st * 2 + qb) * 4) for st, qbs in ex for qb in qbs]
    def iteration(p, qk, ex, pv, prev_ex, nxt='k', dk=True, dv=True, loop_ctr=None, post_bar=(), mid=(), anyw=(), wv=None, pf=None, anylo=2):
        groups = []; rs = []
        pfi = pre_items(pf) if pf else []
        if qk:
            groups += qk_mf(qk, p); rs += [kread(i, p) for i in range(16)]
        groups += pv_mf(pv, p); rs += [vread(i, p) for i in range(16)]
        n = len(groups)
        nx = {'k': [kread(i, 1 - p) for i in range(D)], 'v': [vread(i, 1 - p) for i in range(D)], None: [None] * D}[nxt]
        rds = rs[D:] + nx
        bg = n - D
        it = [dict(lo=0, hi=0, ins=s, v=True) for s in ladds(prev_ex)] + pfi
        nd = 0
        if wv is None: gv, gm, gk, sl = (2, 4, 5, 6), 8, (10, 12, 14, 16), 1
        else:
            pos = [2 + 4 * j + wv for j in range(8)]
            gv = [x // 2 for x in pos[:4]]; gk = [x // 2 + 1 for x in pos[4:]]; gm = gv[3] + 1; sl = 0
        late = wv is not None and wv % 2 == 1
        if dv:
            it.append(dict(lo=0, hi=0 if wv is not None else 1, ins='s_sub_u32 m0, s%d, s%d' % ((sC0, sC1)[p], sT)))
            for j, i in enumerate(gv):
                it.append(dict(lo=i + (1 if late else 0), hi=i + sl, ins='buffer_load_dwordx4 v%d, %s, s%d offen offset:%d lds' % (V_LANE16V, sr(WS, 4), (sK0, sK1)[p], 1024 * j)))
            nd += 4
        if dk:
            it.append(dict(lo=gm, hi=gm + 1, ins='s_add_u32 m0, s%d, %d' % (sT, p * 16384)))
            it.append(dict(lo=gm, hi=gm + 1, ins='s_add_u32 s%d, s%d, 32768' % ((sK0, sK1)[p], (sK0, sK1)[1 - p])))
            for j, i in enumerate(gk):
                it.append(dict(lo=i + (1 if late else 0), hi=i + sl, ins='buffer_load_dwordx4 v%d, %s, s%d offen offset:%d lds' % (V_LANE16, sr(WS, 4), (sK0, sK1)[p], 1024 * j)))
            nd += 4
        nd += sum(1 for s in mid if s.startswith('buffer_'))
        if p == 1:
            if qk: it.append(dict(lo=16 - D, hi=bg - 1, ins='v_xor_b32 v%d, 32768, v%d' % (V_KRD, V_KRD), v=True))
            it.append(dict(lo=bg - 1 if nxt == 'v' else bg, hi=bg - 1 if nxt == 'v' else n - 1, ins='v_xor_b32 v%d, 32768, v%d' % (V_VRD, V_VRD), v=True))
            it.append(dict(lo=13, hi=n - 1, ins='s_xor_b32 s%d, s%d, 32768' % (sT, sT)))
        if nxt is not None:
            it.append(dict(lo=bg - 3, hi=bg - 2, ins='s_waitcnt vmcnt(%d)' % nd))
            it.append(dict(lo=bg - 1, hi=bg - 1, ins='s_barrier'))
        it += lg_items(n, nxt is None)
        it.sort(key=lambda x: (x['hi'], x['lo']))
        for j, s in enumerate(mid):
            g_ = 8 + (j * (bg - 4 - 8)) // len(mid)
            it.append(dict(lo=g_, hi=bg - 4, ins=s))
        for j, s in enumerate(anyw):
            it.append(dict(lo=anylo, hi=n - 1, ins=s))
        lo0 = bg if nxt is not None else 0
        for j, s in enumerate(post_bar):
            it.append(dict(lo=lo0 + (j * (n - lo0)) // len(post_bar), hi=n - 1, ins=s))
        fin = []
        if ex:
            lts = [LT + (st * 2 + qb) * 4 for st, qbs in ex for qb in qbs]
            cur = lts[0]
            if len(lts) == 2: fin.append('v_max_f32 v%d, v%d, v%d' % (V_T0, lts[0], lts[1])); cur = V_T0
            if len(lts) >= 3: fin.append('v_max3_f32 v%d, v%d, v%d, v%d' % (V_T0, lts[0], lts[1], lts[2])); cur = V_T0
            if len(lts) == 4: fin.append('v_max_f32 v%d, v%d, v%d' % (V_T0, V_T0, lts[3]))
            fin.append('v_cmp_lt_f32 vcc, s%d, v%d' % (sTHR, cur))
        pk.run(groups, rds, it, [(st, 1 - p, qbs) for st, qbs in ex], [], fin, (1, p) if qk else None, True)
        if loop_ctr: a('s_sub_u32 s%d, s%d, 1' % (loop_ctr[0], loop_ctr[0]))
        if ex:
            stub, back = a.newlabel(name + '_rs'), a.newlabel(name + '_rb')
            a('s_cbranch_vccnz %s' % stub)
            a.label(back)
            rare_sites.append((stub, back, 1 - p, ex))
        if loop_ctr: a('s_cbranch_scc0 %s' % loop_ctr[1])
    def epilogue(st):
        a('s_lshl_b32 s%d, s%d, 10' % (sE0, sQ[st]))
        a('s_lshl_b32 s%d, s%d, 19' % (sE1, sH))
        a('s_add_u32 s%d, s%d, s%d' % (sE0, sE0, sE1))
        a('s_add_u32 s%d, s%d, 0x%x' % (sE0, sE0, WS_CTX))
        a('s_lshl_b32 s%d, s%d, 10' % (sM1, sW))
        a('s_sub_u32 s%d, s%d, s%d' % (sM0, sE0, sM1)); a('s_add_u32 s%d, s%d, 7168' % (sM0, sM0))
        a('s_add_u32 s%d, s%d, s%d' % (sM1, sE0, sM1))
        a('v_rcp_f32 v%d, v%d' % (V_T0, V_L + st * 2))
        a('v_rcp_f32 v%d, v%d' % (V_T1, V_L + st * 2 + 1))
        a('s_nop 1')
        c3 = 0
        for s in range(4):
            for qb in range(2):
                T = SB[st][0] + 16 * (c3 % 4); c3 += 1
                for cc in range(2):
                    for e in range(4): a('v_accvgpr_read_b32 v%d, a%d' % (T + 4 * cc + e, A_O[st] + ((2 * s + cc) * 2 + qb) * 4 + e))
                for e in range(8): a('v_mul_f32 v%d, v%d, v%d' % (T + e, T + e, (V_T0, V_T1)[qb]))
                for e in range(4): a('v_cvt_pk_bf16_f32 v%d, v%d, v%d' % (T + 8 + e, T + 2 * e, T + 2 * e + 1))
                a('s_add_u32 s%d, s%d, %d' % (sE1, (sM0, sM1)[qb], s * 128 * 1024))
                a(issue(('ctx', 'buffer_store_dwordx4 %s, v%d, %s, s%d offen %s' % (vr(T + 8, 4), V_LANE16, sr(WS, 4), sE1, WT))))
    AH, AC, WD4, WO4, X4, OUT = R1, R2, R3, R4, R5, 4
    sRO, sRT, sCT4, sAC, sWW, sVAL, sXO, sSW, sLD, sW2, sAC0, sWW0 = 8, 9, 10, 11, 12, 74, 13, 18, 19, 20, 26, 27
    sS1, sS0, sR0, sR1 = 16, 17, 21, 62
    WS_EX = 0x8000000
    FX = WS_FLG + 65536
    a_real = a; a = Asm()
    a('s_lshr_b32 s67, s2, 3')
    a('s_cmp_lt_u32 s67, 30'); a('s_cselect_b32 s%d, 1, 0' % sVAL)
    a('s_min_u32 s67, s67, 29')
    a('s_mul_i32 s68, s67, 205'); a('s_lshr_b32 s68, s68, 10')
    a('s_mul_i32 s69, s68, 5'); a('s_sub_u32 s%d, s67, s69' % sCT4)
    a('s_and_b32 s69, s2, 7'); a('s_mul_i32 s69, s69, 6'); a('s_add_u32 s69, s69, s68')
    a('s_lshr_b32 s%d, s69, 4' % sRO); a('s_and_b32 s%d, s69, 15' % sRT)
    for s in srd('x', X4) + srd('out', OUT): a(s)
    a('s_add_u32 s70, s%d, 2' % sRO); a('s_cmp_eq_u32 s%d, 0' % sRO); a('s_cselect_b32 s71, 0, 3'); a('s_sub_u32 s70, s70, s71')
    a('s_cmp_eq_u32 s%d, 0' % sRO); a('s_cselect_b32 s71, 40, 44'); a('s_mul_i32 s71, s71, s%d' % sVAL)
    a('s_mul_i32 s67, s%d, %d' % (sRO, 18 * 131072)); a('s_add_u32 s67, s67, 0x%x' % WS_H)
    a('s_add_u32 s%d, s28, s67' % AH); a('s_addc_u32 s%d, s29, 0' % (AH + 1)); a('s_mul_i32 s%d, s%d, %d' % (AH + 2, sVAL, 18 * 131072))
    a('s_mul_i32 s67, s70, %d' % (44 * 131072)); a('s_add_u32 s67, s67, 0x%x' % WS_CTX)
    a('s_add_u32 s%d, s28, s67' % AC); a('s_addc_u32 s%d, s29, 0' % (AC + 1)); a('s_lshl_b32 s%d, s71, 17' % (AC + 2))
    a('s_mul_i32 s67, s%d, %d' % (sRO, 18 * 32 * 1280))
    a('s_add_u32 s%d, s22, s67' % WD4); a('s_addc_u32 s%d, s23, 0' % (WD4 + 1)); a('s_mul_i32 s%d, s%d, %d' % (WD4 + 2, sVAL, 18 * 32 * 1280))
    a('s_mul_i32 s67, s70, %d' % (44 * 32 * 1280))
    a('s_add_u32 s%d, s14, s67' % WO4); a('s_addc_u32 s%d, s15, 0' % (WO4 + 1)); a('s_mul_i32 s%d, s71, %d' % (WO4 + 2, 32 * 1280))
    for r_ in (AH, AC, WD4, WO4): a('s_mov_b32 s%d, 0x00020000' % (r_ + 3))
    a('s_cmp_eq_u32 s%d, 2' % sRO); a('s_cselect_b32 s%d, 1, 0' % sSW)
    VA0, VA1, VWO, VRD, VX, VPL = 16, 17, 18, 32, 20, 62
    a('s_lshl_b32 s%d, s%d, 2' % (sAC, sRT)); a('s_add_u32 s%d, s%d, s%d' % (sAC, sAC, sW))
    a('s_lshl_b32 s67, s%d, 1' % sAC); a('s_add_u32 s67, s67, s%d' % sSW)
    a('s_mul_i32 s%d, s67, %d' % (sXO, 16 * 1280)); a('s_lshl_b32 s68, s%d, 8' % sCT4); a('s_add_u32 s%d, s%d, s68' % (sXO, sXO))
    a('s_lshl_b32 s%d, s%d, 11' % (sAC, sAC)); a('s_mov_b32 s%d, s%d' % (sAC0, sAC))
    a('s_lshl_b32 s67, s%d, 10' % sSW)
    a('v_add_u32 v%d, s67, v%d' % (VA0, V_LANE16))
    a('v_xor_b32 v%d, 1024, v%d' % (VA1, VA0))
    a('s_mul_i32 s%d, s%d, %d' % (sWW, sW, 16 * 1280)); a('s_add_u32 s%d, s%d, s68' % (sWW, sWW)); a('s_mov_b32 s%d, s%d' % (sWW0, sWW))
    a('v_lshrrev_b32 v5, 3, v0'); a('v_mul_u32_u24 v5, 1280, v5')
    a('v_bfe_u32 v6, v0, 1, 2'); a('v_bfe_u32 v7, v0, 4, 2'); a('v_xor_b32 v6, v6, v7')
    a('v_lshl_add_u32 v5, v6, 5, v5'); a('v_and_b32 v6, 1, v0')
    a('v_lshl_add_u32 v%d, v6, 4, v5' % VWO)
    a('v_add_u32 v%d, %d, v%d' % (VWO + 1, 8 * 1280 - 1024, VWO))
    a('v_lshrrev_b32 v5, 2, v0'); a('v_lshlrev_b32 v5, 7, v5'); a('v_and_b32 v6, 3, v0'); a('v_lshl_add_u32 v5, v6, 3, v5')
    a('v_bfe_u32 v6, v0, 3, 2')
    for c in range(4):
        a('v_xor_b32 v7, %d, v6' % c)
        a('v_lshl_add_u32 v%d, v7, 5, v5' % (VRD + c))
        a('v_add_u32 v%d, 65536, v%d' % (VRD + 4 + c, VRD + c))
    a('v_and_b32 v5, 15, v0'); a('v_mul_u32_u24 v5, 1280, v5'); a('v_lshrrev_b32 v6, 4, v0')
    a('v_lshl_add_u32 v%d, v6, 3, v5' % VX)
    a('v_and_b32 v%d, 0x1f0, v%d' % (VPL, V_LANE16))
    a('v_add_u32 v21, 4096, v%d' % V_LANE16)
    a('s_sub_u32 s67, 15, s%d' % sRT); a('s_min_u32 s67, s67, s%d' % sRT)
    a('s_lshl_b32 s79, s67, 9'); a('s_add_u32 s79, s79, 0x%x' % FH)
    a('s_lshl_b32 s76, s%d, 9' % sRT); a('s_add_u32 s76, s76, 0x%x' % FC)
    a('s_mul_i32 s67, s%d, 5' % sRT); a('s_add_u32 s67, s67, s%d' % sCT4)
    a('s_lshl_b32 s68, s67, 2'); a('s_add_u32 s68, s68, s%d' % sW)
    a('s_lshl_b32 s75, s68, 10'); a('s_add_u32 s75, s75, 0x%x' % FX)
    a('s_lshl_b32 s68, s68, 16'); a('s_add_u32 s68, s68, 0x%x' % WS_EX)
    a('s_add_u32 s67, s%d, 1' % sRO); a('s_lshl_b32 s67, s67, 13'); a('s_add_u32 s%d, s68, s67' % sS1)
    a('s_cmp_eq_u32 s%d, 0' % sRO); a('s_cselect_b32 s%d, s68, 0x20000000' % sS0)
    a('s_lshl_b32 s67, s%d, 13' % sSW); a('s_add_u32 s%d, s68, s67' % sR0)
    a('s_sub_u32 s67, 3, s%d' % sSW); a('s_lshl_b32 s67, s67, 13'); a('s_add_u32 s%d, s68, s67' % sR1)
    a('s_cmp_eq_u32 s%d, 0' % sRO); a('s_cselect_b32 s%d, 0x20000000, s%d' % (sR0, sR0)); a('s_cselect_b32 s%d, 0x20000000, s%d' % (sR1, sR1))
    a('s_lshl_b32 s56, s%d, 7' % sRO); a('s_add_u32 s56, s56, s75')
    a('s_sub_u32 s67, 3, s%d' % sRO); a('s_cmp_eq_u32 s%d, 0' % sRO); a('s_cselect_b32 s67, 0, s67'); a('s_lshl_b32 s67, s67, 7')
    a('v_and_b32 v22, 1, v0'); a('v_mul_u32_u24 v22, s67, v22')
    a('s_lshl_b32 s%d, s%d, 11' % (sLD, sW))
    for c in range(4): a('v_add_u32 v%d, 131072, v%d' % (196 + c, VRD + c))
    setup4 = [re.sub(r'\bv([567])\b', lambda m: 'v%d' % (64 + int(m.group(1))), l.strip()) for l in a.lines]
    a = a_real
    grp4 = []
    for l in setup4:
        if l.startswith('s_cselect') or l.startswith('s_addc'): grp4[-1] += '\n' + l
        else: grp4.append(l)
    h_poll = 'buffer_load_dwordx4 v[192:195], v%d, %s, s79 offen %s' % (VPL, sr(WS, 4), WT)
    c_poll = 'buffer_load_dwordx4 v[24:27], v%d, %s, s76 offen %s' % (VPL, sr(WS, 4), WT)
    b_poll = 'buffer_load_dword v24, v22, %s, s75 offen %s' % (sr(WS, 4), WT)
    s_poll = 'buffer_load_dword v24, v22, %s, s75 offen offset:512 %s' % (sr(WS, 4), WT)
    WF4 = 64; ND4 = 18; NK = 62; LA4 = 15
    def accB(n, q): return 128 + (q * 8 + n) * 4
    def accS(n, q): return 192 + (q * 8 + n) * 4
    def act4(k, q): r = k % 16; return (r * 8 + q * 4) if r < 8 else (128 + (r - 8) * 8 + q * 4)
    def wslot(st): return 131072 + st * 16384 if st < 2 else ((st - 2) % 8) * 16384
    def w4_dma(st):
        L = []
        if st == ND4 // 2: L.append('s_mov_b32 s%d, s%d' % (sWW, sWW0))
        r_ = WD4 if st < ND4 // 2 else WO4
        for m in range(2):
            L += ['s_add_u32 m0, s%d, %d' % (sLD, wslot(st) + m * 8192), 's_nop 0' if m == 0 else 's_add_u32 s%d, s%d, 128' % (sW2, sWW)]
            L += [(('w4', st), 'buffer_load_dwordx4 v%d, %s, s%d offen offset:%d lds' % (VWO + j, sr(r_, 4), sWW if m == 0 else sW2, 1024 * j)) for j in range(2)]
        L.append('s_add_u32 s%d, s%d, %d' % (sWW, sWW, 64 * 1280))
        return L
    def a4_load(k):
        L = ['s_mov_b32 s%d, s%d' % (sAC, sAC0)] if k == ND4 else []
        return L + [(('a4', k), 'buffer_load_dwordx4 %s, v%d, %s, s%d offen' % (ar(act4(k, q), 4), (VA0, VA1)[q], sr(AH if k < ND4 else AC, 4), sAC)) for q in range(2)] + \
               ['s_add_u32 s%d, s%d, %d' % (sAC, sAC, 128 * 1024)]
    def w4_read(k, n):
        ad, ks = wslot(k // 2), k % 2
        reg = (VRD, VRD + 4, 196)[ad // 65536]
        return ['ds_read_b64_tr_b16 %s, v%d offset:%d' % (vr(WF4 + 4 * n + 2 * r, 2), reg + n % 4, ad % 65536 + (n // 4) * 8192 + (32 * ks + 16 * r) * 128) for r in range(2)]
    PK = 112
    def packs(accf):
        L = []
        for q in (1, 0):
            for n in range(8):
                dst = (accf(0, 1) if q else PK) + 2 * n
                L += ['v_cvt_pk_bf16_f32 v%d, v%d, v%d' % (dst + h, accf(n, q) + 2 * h, accf(n, q) + 2 * h + 1) for h in range(2)]
        return L
    def sends(accf, tag):
        return [(tag, 'buffer_store_dwordx4 %s, v%d, %s, s%d offen offset:%d %s' % (vr((accf(0, 1) if q else PK) + 4 * j, 4), V_LANE16, sr(WS, 4), (sS0, sS1)[q], j * 1024, WT))
                for q in (1, 0) for j in range(4)]
    def recvs(dst, tag):
        return [(tag, 'buffer_load_dwordx4 %s, v%d, %s, s%d offen offset:%d' % (vr(dst + 16 * src_ + 4 * j, 4), V_LANE16, sr(WS, 4), (sR0, sR1)[src_], j * 1024))
                for j in range(4) for src_ in range(2)]
    def unp_add(B, dst, n, T):
        L = []
        for src_ in range(2):
            for h in range(2):
                r = dst + 16 * src_ + 2 * n + h
                L += ['v_lshlrev_b32 v%d, 16, v%d' % (T + 2 * h, r), 'v_and_b32 v%d, s65, v%d' % (T + 2 * h + 1, r)]
            L += ['v_add_f32 v%d, v%d, v%d' % (B + e, B + e, T + e) for e in range(4)]
        return L
    XR4 = 96
    xl = [('x4', 'buffer_load_dwordx2 %s, v%d, %s, s%d offen offset:%d' % (vr(XR4 + 2 * n, 2), VX, sr(X4, 4), sXO, 32 * n)) for n in range(8)]
    a('s_cmp_eq_u32 s%d, 0' % sI)
    a('s_cselect_b32 s%d, s%d, 0' % (sDYN, sBIG))
    F = (0, 1); H_ = (0,)
    pfi = pre_items(prefill(0, 0, 0, dyn=True))
    a('s_waitcnt lgkmcnt(%d)' % (D - 4))
    rds = [kread(i, 0) for i in range(D, 16)] + [kread(i, 1) for i in range(D)]
    zero = ['v_accvgpr_write_b32 a%d, 0' % i for i in range(128)] + ['v_mov_b32 v%d, 0' % (V_L + j) for j in range(4)]
    it = lg_items(16, False) + pfi; it.sort(key=lambda x: (x['hi'], x['lo']))
    pk.run(qk_mf([(1, F, None), (0, F, 1)], 0), rds, it, [], zero, [], None, False)
    a('s_nop 3')
    for st in range(2):
        for qb in range(2):
            for s in max_ops(st, 0, qb, V_T0, V_T1): a(s)
            for e in range(4): a('v_sub_f32 v%d, 0, v%d' % (NEGM + (st * 2 + qb) * 4 + e, V_T0))
    pfi = pre_items(prefill(0, 1, 1, dyn=True))
    rds = [kread(i, 1) for i in range(D, 16)] + [kread(i, 0) for i in range(D)]
    it = lg_items(16, False) + pfi + [dict(lo=16 - D - 1, hi=16 - D - 1, ins='v_xor_b32 v%d, 32768, v%d' % (V_KRD, V_KRD), v=True)]
    it.sort(key=lambda x: (x['hi'], x['lo']))
    pk.run(qk_mf([(1, F, None), (0, F, 0)], 1), rds, it, [(1, 0, F), (0, 0, F)], [], [], (1, 1), False, sub=True)
    a('s_waitcnt vmcnt(0)')
    a(flag_store(76)[1])
    gate(kv_poll, 208, 4, 1, 63)
    stamp(a, 10); cstamp(a, 5)
    lA, lA_skip, lA_tail2 = name + '_loopA', name + '_skipA', name + '_tail2A'
    a('s_cmp_eq_u32 s%d, 0' % sI)
    a('s_cbranch_scc1 %s' % lA_tail2)
    a('s_sub_u32 s%d, s%d, 2' % (sCNT, sI))
    a('s_cbranch_scc1 %s' % lA_skip)
    cstamp(a, 3, 'cyb')
    a.raw('.p2align 6')
    a.label(lA)
    qB = (1, F, None); BA = [(1, F), (0, F)]; B_ = [(1, F)]; BAh = [(1, F), (0, H_)]; Bh = [(1, H_)]
    iteration(0, [qB, (0, F, None)], BA, BA, BA)
    iteration(1, [qB, (0, F, None)], BA, BA, BA, loop_ctr=(sCNT, lA))
    cstamp(a, 4, 'cyb')
    a.label(lA_skip)
    iteration(0, [qB, (0, F, 1)], BA, BA, BA, pf=prefill(0, 0, 0))
    iteration(1, [qB, (0, H_, 0)], BA, BA, BA, pf=prefill(0, 1, 1))
    a.label(lA_tail2)
    l7, lBtail2 = name + '_i7', name + '_tail2B'
    a('s_cmp_eq_u32 s%d, 7' % sI)
    a('s_cbranch_scc1 %s' % l7)
    def txt(L): return [x if isinstance(x, str) else x[1] for x in L]
    acts = [a4_load(k) for k in range(16)]
    E1 = txt(xl); E2 = txt(w4_dma(0) + acts[0] + acts[1] + acts[2]); E3 = txt(w4_dma(1) + acts[3] + acts[4] + acts[5])
    E4 = txt(acts[6] + acts[7] + acts[8] + acts[9] + acts[10] + acts[11])
    iteration(0, [qB], BAh, BA, BA)
    wt = ['s_lshl_b32 s67, s2, 2', 's_add_u32 s67, s67, s%d' % sW, 's_mul_i32 s68, s67, 46', 'v_min_u32 v72, 45, v0', 'v_add_u32 v72, s68, v72',
          'v_min_u32 v72, 40959, v72', 'v_lshlrev_b32 v72, 7, v72', 'global_load_dword v200, v72, s[14:15]',
          's_mul_i32 s68, s67, 20', 'v_min_u32 v73, 19, v0', 'v_add_u32 v73, s68, v73', 'v_min_u32 v73, 17279, v73', 'v_lshlrev_b32 v73, 7, v73',
          'global_load_dword v201, v73, s[22:23]']
    iteration(1, [qB], B_, BAh, BAh, anyw=grp4 + [h_poll] + wt)
    epilogue(0)
    a('s_waitcnt vmcnt(10)')
    gate(h_poll, 192, 4, 1, 63)
    lB = name + '_loopB'
    a('s_lshl_b32 s%d, s%d, 1' % (sCNT, sI))
    a('s_sub_u32 s%d, 12, s%d' % (sCNT, sCNT))
    cstamp(a, 5, 'cyb')
    a.raw('.p2align 6')
    a.label(lB)
    iteration(0, [qB], B_, B_, B_)
    iteration(1, [qB], B_, B_, B_, loop_ctr=(sCNT, lB))
    cstamp(a, 6, 'cyb')
    iteration(0, [(1, F, 1)], B_, B_, B_, dk=False, mid=E1, post_bar=E2, pf=prefill(1, 0, 0))
    iteration(1, [(1, H_, 0)], B_, B_, B_, dk=False, nxt='v', mid=E3, post_bar=E4, pf=prefill(1, 1, 1))
    a('s_branch %s' % lBtail2)
    a.label(l7)
    iteration(0, [(1, F, 1)], BAh, BA, BA, dk=False, pf=prefill(1, 0, 0))
    iteration(1, [(1, H_, 0)], B_, BAh, BAh, dk=False, nxt='v', anyw=grp4 + [h_poll], pf=prefill(1, 1, 1), anylo=10)
    epilogue(0)
    a('s_waitcnt vmcnt(8)')
    gate(h_poll, 192, 4, 1, 63)
    for s_ in E2 + E3 + E4 + E1: a(s_)
    a.label(lBtail2)
    stamp(a, 11); cstamp(a, 6)
    vm.n = 0; ids = {}
    for k in range(12): ids[('a4', k)] = -100
    ids[('w4', 0)] = ids[('w4', 1)] = -100
    e1 = [flag_store(77)[1]] + [issue(it) for it in w4_dma(2) + w4_dma(3)]
    iteration(0, None, Bh, B_, B_, dk=False, dv=False, nxt='v', post_bar=e1)
    e2 = w4_dma(4) + acts[12] + acts[13] + w4_dma(5) + acts[14]
    iteration(1, None, [], Bh, Bh, dk=False, dv=False, nxt=None, post_bar=[issue(it) for it in e2])
    stamp(a, 12)
    epilogue(1)
    notile = name + '_notile'
    a('s_cmp_eq_u32 s%d, 0' % sVAL)
    a('s_cbranch_scc1 %s' % notile)
    a('s_barrier')
    for n in range(8):
        for s_ in w4_read(0, n): a(s_)
    stamp(a, 13)
    def rnd_l(r0, r1, t):
        return ['v_cvt_pk_bf16_f32 v%d, v%d, v%d' % (t, r0, r1), 'v_lshlrev_b32 v%d, 16, v%d' % (r0, t), 'v_and_b32 v%d, s65, v%d' % (r1, t)]
    def rnd(r0, r1, t):
        for s_ in rnd_l(r0, r1, t): a(s_)
    RBv = accB(0, 1)
    def gate_calc(n):
        B = accB(n, 0); T = 40 + 4 * (n % 2); L = unp_add(B, RBv, n, T)
        for h in range(2): L += rnd_l(B + 2 * h, B + 2 * h + 1, T)
        L += ['v_mul_f32 v%d, s64, v%d' % (T + e, B + e) for e in range(4)]
        L += ['v_exp_f32 v%d, v%d' % (T + e, T + e) for e in range(4)]
        L += ['v_add_f32 v%d, 1.0, v%d' % (T + e, T + e) for e in range(4)]
        L += ['v_rcp_f32 v%d, v%d' % (T + e, T + e) for e in range(4)]
        L += ['v_mul_f32 v%d, v%d, v%d' % (B + e, B + e, T + e) for e in range(4)]
        for h in range(2): L += rnd_l(B + 2 * h, B + 2 * h + 1, T)
        return L
    def x_unpack():
        L = []
        for n in range(8):
            for h in range(2):
                x = XR4 + 2 * n + h; o = accB(n, 1) + 2 * h
                L += ['v_lshlrev_b32 v%d, 16, v%d' % (o, x), 'v_and_b32 v%d, s65, v%d' % (o + 1, x)]
        return L
    a('s_mov_b32 s64, %s' % f2u(-math.log2(math.e)))
    a('s_mov_b32 s65, 0xffff0000')
    pend = w4_dma(6) + w4_dma(7) + w4_dma(8) + w4_dma(9)
    slowq = []
    valq = []
    nxt_a = LA4
    KG = 12; KCF = 4; PDL = 5
    KS0, KFL, KBP, KRC = ND4 + 2, 30, 33, 48
    rbl = recvs(RBv, 'rb')
    for k in range(NK):
        assert not any(x[0] == ('a4', k) for x in pend if not isinstance(x, str))
        need = ids[('a4', k)]
        if k == KCF: need = max(need, ids['ctx'])
        if k == KG: need = max(need, ids['cp'])
        if k in (KFL, KRC): assert not slowq and not any(x[0] in ('sb', 'rb', 'x4') for x in pend if not isinstance(x, str))
        if k == KFL: need = max(need, ids['sb'])
        if k == KBP + PDL: need = max(need, ids['bp'])
        if k == KRC: need = max(need, ids['rb'])
        a('s_waitcnt vmcnt(%d) lgkmcnt(12)' % min(63, vm.cnt(need)))
        if k == KCF: pend = [flag_store(78)] + pend
        if k == KG - 3: pend = [('cp', c_poll)] + pend
        if k == KG: gate(c_poll, 24, 4, 1, 63)
        if k == KS0 - 1: valq += packs(accB)
        if k == KS0:
            assert not valq
            sl = sends(accB, 'sb'); slowq += [x for p_ in zip(sl[:4], sl[4:]) for x in p_]
        if k == KFL:
            pend = [flag_store(56), 's_add_u32 s56, s56, 512', 's_add_u32 s%d, s%d, 32768' % (sS0, sS0), 's_add_u32 s%d, s%d, 32768' % (sS1, sS1)] + pend
        if k == KBP: pend = [('bp', b_poll)] + pend
        if k == KBP + PDL:
            gate(b_poll, 24, 1, 1, 63)
            slowq += rbl
        if k == KRC:
            pend += ['s_add_u32 s%d, s%d, 32768' % (sR0, sR0), 's_add_u32 s%d, s%d, 32768' % (sR1, sR1)]
            for n in range(8): valq += gate_calc(n)
            valq += x_unpack()
        newa = []
        lim = min(NK, k + LA4 + 1) if k >= KG else ND4
        while nxt_a < min(lim, k + LA4 + 1) and len(newa) < 6:
            newa += a4_load(nxt_a); nxt_a += 1
        pend = newa + slowq[:2] + pend; slowq = slowq[2:]
        accf = accB if k < ND4 else accS
        for n in range(8):
            if n % 2 == 0 and n > 0: a('s_waitcnt lgkmcnt(%d)' % (12 if k < NK - 1 else 2 * (6 - n)))
            for q in range(2):
                d = vr(accf(n, q), 4)
                a('%s %s, %s, %s, %s' % (MF16, d, vr(WF4 + 4 * n, 4), ar(act4(k, q), 4), '0' if k in (0, ND4) else d))
                if q == 0:
                    while pend and pend[0] == 's_nop 0': pend.pop(0)
                    if pend: a(issue(pend.pop(0)))
                    if pend and isinstance(pend[0], str) and pend[0] != 's_nop 0': a(pend.pop(0))
                    for _ in range(4):
                        if valq: a(valq.pop(0))
            if k + 1 < NK:
                if n == 0 and k % 4 == 3:
                    st = k // 2
                    key = ('w4', min(st + 2, NK // 2 - 1))
                    assert not any(x[0] == key for x in pend if not isinstance(x, str))
                    a('s_waitcnt vmcnt(%d) lgkmcnt(0)' % min(63, vm.cnt(ids[key])))
                    a('s_barrier')
                    for s2_ in (st + 7, st + 8):
                        if s2_ < NK // 2 and st >= 3: pend = pend + w4_dma(s2_)
                for s_ in w4_read(k + 1, n): a(s_)
        if k == ND4 - 1: stamp(a, 14); cstamp(a, 7)
        if k % 4 == 1: stamp(a, 1 + k // 4, 'p4')
        if k == ND4 + 39:
            assert not pend
            a('s_cmp_eq_u32 s%d, 0' % sRO)
            a('s_cbranch_scc1 %s_p4done' % name)
    assert not pend and not valq
    a.label(name + '_p4done')
    stamp(a, 15); cstamp(a, 8)
    a('s_nop 7')
    stamp(a, 1, 'fin')
    pl = packs(accS); sl = sends(accS, 'ss')
    for j in range(8):
        for s_ in pl[4 * j:4 * j + 4]: a(s_)
        a(sl[j][1])
    stamp(a, 2, 'fin')
    a('s_waitcnt vmcnt(0)')
    a(flag_store(56)[1])
    stamp(a, 4, 'fin')
    lfin = name + '_fin'
    a('s_cmp_lg_u32 s%d, 0' % sRO)
    a('s_cbranch_scc1 %s' % lfin)
    stamp(a, 16)
    stamp_flush(a, 17)
    a('s_endpgm')
    a.label(lfin)
    a(s_poll)
    a('s_waitcnt vmcnt(0)')
    stamp(a, 5, 'fin')
    gate(s_poll, 24, 1, 1, 63)
    stamp(a, 6, 'fin')
    RS = 64
    for it in recvs(RS, 'rs'): a(it[1])
    for n in range(8):
        if n % 2 == 0: a('s_waitcnt vmcnt(%d)' % (6 - n + n))
        if n in (0, 7): stamp(a, 7 + n // 7, 'fin')
        S = accS(n, 0); T = 96 + 2 * n
        for s_ in unp_add(S, RS, n, 40): a(s_)
        for h in range(2): rnd(S + 2 * h, S + 2 * h + 1, 56)
        for e in range(4): a('v_mul_f32 v%d, v%d, v%d' % (S + e, S + e, accB(n, 0) + e))
        for h in range(2): rnd(S + 2 * h, S + 2 * h + 1, 56)
        for e in range(4): a('v_add_f32 v%d, v%d, v%d' % (S + e, S + e, accB(n, 1) + e))
        for h in range(2): a('v_cvt_pk_bf16_f32 v%d, v%d, v%d' % (T + h, S + 2 * h, S + 2 * h + 1))
        a('buffer_store_dwordx2 %s, v%d, %s, s%d offen offset:%d' % (vr(T, 2), VX, sr(OUT, 4), sXO, 32 * n))
    stamp(a, 16); stamp(a, 9, 'fin')
    stamp_flush(a, 17)
    a('s_endpgm')
    a.label(notile)
    a('s_waitcnt vmcnt(0)')
    a(flag_store(78)[1])
    a.label(end)
    a('s_endpgm')
    for slow, ok, load_ins, chk, ts in slow_paths:
        a.label(slow)
        a('s_mov_b32 s%d, 0x8000' % ts)
        lp = a.newlabel(name + '_sp')
        a.label(lp)
        a('s_sleep 1')
        a(load_ins)
        a('s_waitcnt vmcnt(0)')
        for s in chk: a(s)
        a('s_nop 1')
        a('s_cbranch_vccz %s' % ok)
        a('s_sub_u32 s%d, s%d, 1' % (ts, ts))
        a('s_cbranch_scc0 %s' % lp)
        a('s_branch %s' % ok)
    for stub, back, pc, ex in rare_sites:
        a.label(stub)
        for st, qbs in sorted(ex):
            a('s_mov_b32 s69, %s' % ('1.0' if 1 in qbs else '0'))
            a('s_call_b64 s[100:101], %s_rare%d%d' % (name, pc, st))
        a('s_branch %s' % back)
    for pc in range(2):
        for st in range(2):
            a.label('%s_rare%d%d' % (name, pc, st))
            a('s_nop 7')
            for qb in range(2):
                for s in max_ops(st, pc, qb, V_T0, V_T1): a(s)
                a('v_max_f32 v%d, 0, v%d' % (V_T0, V_T0))
                if qb == 1: a('v_mul_f32 v%d, s69, v%d' % (V_T0, V_T0))
                a('v_exp_f32 v%d, -v%d' % (V_T1, V_T0))
                for e in range(4): a('v_sub_f32 v%d, v%d, v%d' % (NEGM + (st * 2 + qb) * 4 + e, NEGM + (st * 2 + qb) * 4 + e, V_T0))
                for pp in range(2):
                    for kb in range(4):
                        for r in range(4):
                            x = SB[st][pp] + (kb * 2 + qb) * 4 + r
                            a('v_sub_f32 v%d, v%d, v%d' % (x, x, V_T0))
                a('v_mul_f32 v%d, v%d, v%d' % (V_L + st * 2 + qb, V_L + st * 2 + qb, V_T1))
                for db in range(0, 8, 2):
                    regs = [A_O[st] + ((db + h) * 2 + qb) * 4 + e for h in range(2) for e in range(4)]
                    for e in range(8): a('v_accvgpr_read_b32 v%d, a%d' % (TMP + e, regs[e]))
                    for e in range(8): a('v_mul_f32 v%d, v%d, v%d' % (TMP + e, TMP + e, V_T1))
                    for e in range(8): a('v_accvgpr_write_b32 a%d, v%d' % (regs[e], TMP + e))
            for s in exp_ops(st, pc): a(s)
            if st == 1:
                for k, (s, _, _) in enumerate(exp_seq(1, 1 - pc)[:EARLY]): a('v_exp_f32 v%d, v%d' % (TMP + k, s))
            a('s_nop 7')
            a('s_setpc_b64 s[100:101]')
    a.label(name + '_codeend')
    if os.environ.get('PADEND'): a.raw('.fill 8192, 4, 0xBF810000')
    kernel_desc(a, name, 512, 256)
    return a
```

```python
from common import *
import common
import math, copy, re
import k2 as K2
from k2 import VM, Packer, exp_seq, exp_ops, max_ops, EARLY
from k2 import V_LANE16, V_LANE16V, V_KRD, V_VRD, V_T0, V_T1, V_L, TRI, NEGM, LT, TMP, SB, PB, A_O, A_Q, A_RING, V_ONES, D, R, THR, BIG

OUTF = os.environ.get('OUTF', 'sc0 sc1')
WT = 'sc0 sc1'
WS_FLG = 0x7000000
FK, FH, FC, FL, FE = WS_FLG, WS_FLG + 4096, WS_FLG + 8192, WS_FLG + 16384, WS_FLG + 20480
PTR = dict(x=4, ckv=6, wq=8, wuk=10, wuv=12, wo=14, wg=18, wu=20, wd=22, out=24, dbg=26, ws=28)
WS, R1, R2, R3, R4, R5 = 32, 36, 40, 44, 48, 52
sW, sH, sI = 30, 31, 3
V_ONE, V_1 = 60, 61
V_PA, V_PD = 62, 24

SMODE = os.environ.get('SMODE', 'all')
def stamp(a, i, mode='all'):
    if not DIAG: return
    if mode != SMODE and i != 0: return
    a('s_memrealtime s[98:99]'); a('s_waitcnt lgkmcnt(0)'); a('s_mov_b32 s%d, s98' % (80 + i))
def cstamp(a, i, mode='cyc'):
    if not DIAG or mode != SMODE: return
    a('s_memrealtime s[98:99]'); a('s_waitcnt lgkmcnt(0)'); a('s_mov_b32 s%d, s98' % (80 + i + 8))
    a('s_memtime s[98:99]'); a('s_waitcnt lgkmcnt(0)'); a('s_mov_b32 s%d, s98' % (80 + i))
def stamp_flush(a, n):
    if not DIAG: return
    if os.environ.get('DBGOUT'):
        a('s_load_dwordx2 s[36:37], s[0:1], 88')
        a('s_mov_b32 s38, 256'); a('s_mov_b32 s39, 0x00020000')
        a('s_lshl_b32 s98, s2, 2'); a('s_add_u32 s98, s98, s%d' % sW)
        a('s_cmp_eq_u32 s98, %d' % (4 * int(os.environ['DBGOUT'])))
        a('s_cselect_b32 s98, 0, 0x1000')
        a('s_waitcnt lgkmcnt(0)')
        a('v_mov_b32 v0, 0')
        for i in range(1, n):
            a('s_sub_u32 s99, s%d, s80' % (80 + i))
            a('v_mov_b32 v1, s99')
            a('buffer_store_dword v1, v0, s[36:39], s98 offen offset:%d' % (4 * (i - 1)))
            a('s_nop 1')
        return
    a('s_lshl_b32 s98, s2, 2'); a('s_add_u32 s98, s98, s%d' % sW); a('s_lshl_b32 s98, s98, 7')
    a('s_add_u32 s98, s98, 0x%x' % WS_STAMP)
    a('v_mov_b32 v0, 0')
    for i in range(n):
        a('v_mov_b32 v1, s%d' % (80 + i))
        a('buffer_store_dword v1, v0, %s, s98 offen offset:%d' % (sr(WS, 4), 4 * i))
        a('s_nop 1')

def srd(name, r, off=0, size=None):
    p = PTR[name]
    L = []
    if off:
        L += ['s_add_u32 s%d, s%d, 0x%x' % (r, p, off), 's_addc_u32 s%d, s%d, 0' % (r + 1, p + 1)]
    else:
        L += ['s_mov_b32 s%d, s%d' % (r, p), 's_mov_b32 s%d, s%d' % (r + 1, p + 1)]
    L += ['s_mov_b32 s%d, 0x%x' % (r + 2, SIZE[name] if size is None else size), 's_mov_b32 s%d, 0x00020000' % (r + 3)]
    return L

def gen_mega(a, name):
    kernel_begin(a, name)
    end = name + '_end'
    slow_paths = []
    def gate(load_ins, dreg, n, want, tmp_s):
        def chk():
            L = ['v_xor_b32 v%d, v%d, v%d' % (dreg + e, dreg + e, V_1) for e in range(n)]
            if n >= 3: L += ['v_or3_b32 v%d, v%d, v%d, v%d' % (dreg, dreg, dreg + 1, dreg + 2)]
            if n == 4: L += ['v_or_b32 v%d, v%d, v%d' % (dreg, dreg, dreg + 3)]
            L += ['v_cmp_ne_u32 vcc, 0, v%d' % dreg]
            return L
        slow, ok = a.newlabel(name + '_sl'), a.newlabel(name + '_ok')
        for s in chk(): a(s)
        a('s_nop 1')
        a('s_cbranch_vccnz %s' % slow)
        a.label(ok)
        slow_paths.append((slow, ok, load_ins, chk(), tmp_s))

    a('s_cmp_ge_u32 s2, 256')
    a('s_cbranch_scc1 %s' % end)
    stamp(a, 0)
    a('s_load_dwordx16 s[4:19], s[0:1], 0')
    a('s_load_dwordx8 s[20:27], s[0:1], 64')
    a('s_load_dwordx2 s[28:29], s[0:1], 96')
    a('v_lshrrev_b32 v1, 6, v0')
    a('v_and_b32 v0, 63, v0')
    a('v_readfirstlane_b32 s%d, v1' % sW)
    a('s_and_b32 s31, s2, 7')
    a('s_lshl_b32 s31, s31, 2')
    a('s_lshr_b32 s61, s2, 3')
    a('s_and_b32 s61, s61, 3')
    a('s_add_u32 s31, s31, s61')
    a('s_lshr_b32 s3, s2, 5')
    CKV, WUK, WUV, X, DBG = R1, R2, R3, R4, R5
    VA, VW = 8, 12
    a('v_lshrrev_b32 v6, 3, v0')
    a('v_lshlrev_b32 v6, 10, v6')
    a('v_lshrrev_b32 v7, 4, v0')
    a('v_and_b32 v12, 7, v0')
    a('v_xor_b32 v12, v12, v7')
    a('v_xor_b32 v13, 4, v12')
    a('v_lshl_add_u32 v12, v12, 4, v6')
    a('v_lshl_add_u32 v13, v13, 4, v6')
    for j in range(4): a('v_add_u32 v%d, %d, v%d' % (VA + j, j * (8192 - 1024), 12 + (j & 1)))
    a('v_bfe_u32 v16, v0, 1, 3')
    a('v_xor_b32 v16, v16, v7')
    a('v_xor_b32 v17, 4, v16')
    a('v_and_b32 v18, 1, v0')
    a('v_lshlrev_b32 v18, 4, v18')
    a('v_lshl_add_u32 v18, v7, 13, v18')
    a('v_lshl_add_u32 v16, v16, 5, v18')
    a('v_lshl_add_u32 v17, v17, 5, v18')
    for j in range(4): a('v_add_u32 v%d, %d, v%d' % (VW + j, j * (32768 - 1024), 16 + (j >> 1)))
    sA, sWo, sLA, sLW, sA2 = 56, 57, 58, 59, 60
    a('s_lshl_b32 s56, s%d, 2' % sI)
    a('s_add_u32 s56, s56, s%d' % sW)
    a('s_lshl_b32 s56, s56, 16')
    a('s_lshl_b32 s57, s%d, 17' % sW)
    a('s_lshl_b32 s58, s%d, 8' % sH)
    a('s_add_u32 s57, s57, s58')
    a('s_lshl_b32 s58, s%d, 13' % sW)
    a('s_lshl_b32 s59, s%d, 12' % sW)
    a('s_add_u32 s59, s59, 65536')
    a('v_lshrrev_b32 v2, 5, v0')
    a('v_and_b32 v3, 31, v0')
    a('s_lshl_b32 s61, s2, 2')
    a('s_add_u32 s61, s61, s%d' % sW)
    a('s_lshl_b32 s61, s61, 1')
    a('v_add_u32 v4, s61, v2')
    a('v_mul_u32_u24 v5, 1280, v4')
    a('v_lshl_add_u32 v5, v3, 3, v5')
    a('v_lshlrev_b32 v%d, 4, v0' % V_LANE16)
    vm = VM(); ids = {}
    def issue(it):
        if isinstance(it, str): return it
        ids[it[0]] = vm.op()
        return it[1]
    def p1_dma(st):
        slot = st & 1; t = ('p1', st)
        L = ['s_add_u32 m0, s%d, %d' % (sLA, slot * 32768), 's_add_u32 s%d, s%d, 32768' % (sA2, sA)]
        L += [(t, 'buffer_load_dwordx4 v%d, %s, s%d offen offset:%d lds' % (VA + j, sr(CKV, 4), sA, 1024 * j)) for j in range(4)]
        L += ['s_add_u32 m0, s%d, %d' % (sLW, slot * 32768), 's_add_u32 s%d, s%d, 128' % (sA, sA)]
        L += [(t, 'buffer_load_dwordx4 v%d, %s, s%d offen offset:%d lds' % (VW + j, sr(WUK, 4), sWo, 1024 * j)) for j in range(4)]
        L += ['s_add_u32 m0, s%d, %d' % (sLA, slot * 32768 + 4096), 's_nop 0']
        L += [(t, 'buffer_load_dwordx4 v%d, %s, s%d offen offset:%d lds' % (VA + j, sr(CKV, 4), sA2, 1024 * j)) for j in range(4)]
        L += ['s_add_u32 m0, s%d, %d' % (sLW, slot * 32768 + 16384), 's_nop 0']
        L += [(t, 'buffer_load_dwordx4 v%d, %s, s%d offen offset:%d lds' % (VW + j, sr(WUV, 4), sWo, 1024 * j)) for j in range(4)]
        L += ['s_add_u32 s%d, s%d, %d' % (sWo, sWo, 64 * 8192)]
        return L
    stamp(a, 1, 'st')
    a('s_waitcnt lgkmcnt(0)')
    for n_, r_ in (('x', X), ('ckv', CKV), ('wuk', WUK), ('wuv', WUV), ('ws', WS)):
        for s in srd(n_, r_): a(s)
    XR = 192
    a('v_mov_b32 v52, 0')
    a('s_mov_b32 s79, 0x%x' % FE)
    a(issue(('ep', 'buffer_load_dword v%d, v52, %s, s79 offen %s' % (V_1, sr(WS, 4), WT))))
    for j in range(5): a(issue(('x', 'buffer_load_dwordx2 %s, v5, %s, 0 offen offset:%d' % (vr(XR + 2 * j, 2), sr(X, 4), 256 * j))))
    PFB = False
    def weave(start, items):
        body = a.lines[start:]; del a.lines[start:]
        G = []
        for l in body:
            t = l.strip()
            if G and (t.startswith(('s_cselect', 's_addc', 's_subb')) or t.endswith(':') or G[-1][-1].strip().endswith(':')): G[-1].append(l)
            else: G.append([l])
        D_ = []; cur = []
        for s in items:
            cur.append(s)
            if s.startswith(('buffer_', 'global_')): D_.append(cur); cur = []
        if cur: D_[-1] += cur
        for j, d in enumerate(D_):
            for s in d: a(s)
            for g in G[(j * len(G)) // len(D_):((j + 1) * len(G)) // len(D_)]: a.lines.extend(g)
    s0_items = [issue(it) for it in p1_dma(0)]
    W0 = len(a.lines)
    a('s_lshr_b32 s61, s2, 3')
    a('s_lshl_b32 s61, s61, 2')
    a('s_add_u32 s61, s61, s%d' % sW)
    TC, TW, TX = 48, 49, 50
    a('v_bfe_u32 v20, v0, 1, 4')
    a('v_lshlrev_b32 v20, 10, v20')
    a('v_and_b32 v21, 1, v0')
    a('v_lshl_add_u32 v20, v21, 7, v20')
    a('s_lshl_b32 s62, s61, 14')
    a('v_add_u32 v%d, s62, v20' % TC)
    a('v_and_b32 v20, 7, v0')
    a('v_lshlrev_b32 v20, 7, v20')
    a('s_lshl_b32 s62, s61, 13')
    a('s_and_b32 s63, s2, 7')
    a('s_lshl_b32 s63, s63, 10')
    a('s_add_u32 s62, s62, s63')
    a('v_add_u32 v%d, s62, v20' % TW)
    def pf_chunk(c):
        if PFB: return []
        return ['s_mov_b32 s16, %d' % ((c + 1) * 128 * 8192),
                ('pf', 'buffer_load_dword v240, v%d, %s, 0 offen offset:%d' % (TC, sr(CKV, 4), 256 * (c + 1))),
                ('pf', 'buffer_load_dword v241, v%d, %s, s16 offen' % (TW, sr(WUK, 4))),
                ('pf', 'buffer_load_dword v242, v%d, %s, s16 offen' % (TW, sr(WUV, 4)))]
    a('s_getpc_b64 s[100:101]')
    a.label(name + '_pc')
    a('s_sub_u32 s100, s100, %s_pc-%s' % (name, name))
    a('s_subb_u32 s101, s101, 0')
    a('v_and_b32 v20, 7, v0')
    a('v_lshlrev_b32 v20, 7, v20')
    a('s_lshl_b32 s62, s61, 10')
    a('v_add_u32 v20, s62, v20')
    a('v_min_u32 v55, %s_codeend-%s-4, v20' % (name, name))
    a('s_min_u32 s62, s61, 79'); a('s_lshl_b32 s62, s62, 16'); a('v_mov_b32 v56, s62')
    a('s_min_u32 s62, s61, 33'); a('s_lshl_b32 s62, s62, 16'); a('v_mov_b32 v57, s62')
    TQ, TG = 53, 54
    a('v_min_u32 v20, 39, v0')
    a('v_lshrrev_b32 v21, 3, v20')
    a('s_mul_i32 s62, s61, 5')
    a('v_add_u32 v21, s62, v21')
    a('v_and_b32 v20, 7, v20')
    a('v_lshlrev_b32 v20, 7, v20')
    a('v_lshl_add_u32 v20, v21, 13, v20')
    a('v_add_u32 v%d, s63, v20' % TQ)
    a('v_min_u32 v20, 19, v0')
    a('v_lshrrev_b32 v21, 2, v20')
    a('v_add_u32 v21, s62, v21')
    a('v_mul_u32_u24 v21, 3456, v21')
    a('s_and_b32 s63, s2, 7')
    a('s_lshl_b32 s63, s63, 2')
    a('s_mul_i32 s64, s63, 37'); a('s_lshr_b32 s64, s64, 8')
    a('s_sub_u32 s63, s63, s64')
    a('v_and_b32 v20, 3, v20')
    a('v_add_u32 v20, s63, v20')
    a('v_min_u32 v20, 26, v20')
    a('v_lshl_add_u32 v%d, v20, 7, v21' % TG)
    a('s_mul_i32 s62, s61, 20480')
    a('v_and_b32 v20, 31, v0')
    a('v_lshlrev_b32 v20, 7, v20')
    a('v_add_u32 v%d, s62, v20' % TX)
    def xn_touch(j):
        return ['s_mov_b32 s16, %d' % (4096 * j), ('pf', 'buffer_load_dword v243, v%d, %s, s16 offen' % (TX, sr(WS, 4)))]
    RA, RW = 16, 18
    a('s_lshr_b32 s61, s%d, 1' % sW)
    a('s_lshl_b32 s61, s61, 14')
    a('v_bfe_u32 v20, v0, 1, 3')
    a('v_xor_b32 v20, v20, v7')
    a('v_and_b32 v21, 15, v0')
    a('v_lshlrev_b32 v21, 7, v21')
    a('v_add_u32 v21, s61, v21')
    a('v_lshl_add_u32 v%d, v20, 4, v21' % RA)
    a('v_xor_b32 v20, 4, v20')
    a('v_lshl_add_u32 v%d, v20, 4, v21' % (RA + 1))
    a('v_bfe_u32 v22, v0, 2, 2')
    a('v_lshl_add_u32 v23, v7, 3, v22')
    a('v_lshlrev_b32 v23, 8, v23')
    a('v_and_b32 v24, 3, v0')
    a('v_lshl_add_u32 v23, v24, 3, v23')
    a('v_add_u32 v23, 65536, v23')
    a('v_bfe_u32 v22, v0, 2, 3')
    a('s_and_b32 s62, s%d, 1' % sW)
    a('s_lshl_b32 s62, s62, 2')
    a('v_xor_b32 v22, s62, v22')
    for nb in range(4):
        a('v_xor_b32 v24, %d, v22' % nb)
        a('v_lshl_add_u32 v%d, v24, 5, v23' % (RW + nb))
    P_XOFF2, P_WOFF, P_WRD = 32, 33, 40
    P_X0, P_X1 = 32, 37
    a('s_sub_u32 s61, 7, s%d' % sW); a('s_mul_i32 s61, s61, 20480'); a('v_add_u32 v%d, s61, v%d' % (P_X0, V_LANE16))
    a('s_mul_i32 s61, s%d, 20480' % sW); a('v_add_u32 v%d, s61, v%d' % (P_X1, V_LANE16))
    a('v_lshrrev_b32 v25, 3, v0')
    a('v_bfe_u32 v26, v0, 1, 2')
    a('v_bfe_u32 v27, v0, 4, 2')
    a('v_xor_b32 v26, v26, v27')
    a('v_lshlrev_b32 v26, 5, v26')
    a('v_and_b32 v27, 1, v0')
    a('v_lshl_add_u32 v26, v27, 4, v26')
    a('v_lshl_add_u32 v%d, v25, 13, v26' % P_WOFF)
    a('v_add_u32 v%d, %d, v%d' % (P_WOFF + 1, 8 * 8192 - 1024, P_WOFF))
    a('v_mul_u32_u24 v25, 3456, v25')
    a('v_add_u32 v%d, v25, v26' % (P_WOFF + 2))
    a('v_add_u32 v%d, %d, v%d' % (P_WOFF + 3, 8 * 3456 - 1024, P_WOFF + 2))
    a('v_lshrrev_b32 v25, 2, v0')
    a('v_lshlrev_b32 v25, 7, v25')
    a('v_and_b32 v26, 3, v0')
    a('v_lshl_add_u32 v25, v26, 3, v25')
    a('v_add_u32 v25, 65536, v25')
    a('v_bfe_u32 v26, v0, 3, 2')
    for c in range(4):
        a('v_xor_b32 v27, %d, v26' % c)
        a('v_lshl_add_u32 v%d, v27, 5, v25' % (P_WRD + c))
        a('v_add_u32 v%d, 65536, v%d' % (P_WRD + 4 + c, P_WRD + c))
    s_w = [64, 65, 66, 67]; s_q = [68, 69]; sLW2, sCT = 70, 71; sQ = [72, 73]
    a('s_mul_i32 s17, s%d, 37' % sH)
    a('s_lshr_b32 s17, s17, 8')
    a('s_sub_u32 s71, s%d, s17' % sH)
    a('s_lshl_b32 s70, s%d, 11' % sW)
    a('s_lshl_b32 s72, s%d, 3' % sI)
    a('s_sub_u32 s73, 120, s72')
    a('s_mul_i32 s68, s72, 20480')
    a('s_mul_i32 s69, s73, 20480')
    assert WS_XN == 0
    a('s_lshl_b32 s64, s%d, 17' % sW)
    a('s_lshl_b32 s65, s%d, 8' % sH)
    a('s_add_u32 s64, s64, s65')
    a('s_add_u32 s65, s64, 128')
    a('s_mul_i32 s66, s%d, %d' % (sW, 16 * 3456))
    a('s_lshl_b32 s67, s%d, 7' % sCT)
    a('s_add_u32 s66, s66, s67')
    a('s_mov_b32 s67, s66')
    a('s_mul_i32 s61, s17, 7')
    a('s_sub_u32 s61, s%d, s61' % sH)
    a('s_cmp_eq_u32 s61, 6')
    a('s_cselect_b32 s74, 0, 0x%x' % SIZE['wg'])
    a('s_cmp_ge_u32 s%d, 27' % sCT)
    a('s_cselect_b32 s74, 0, s74')
    a('s_lshl_b32 s61, s%d, 2' % sW)
    a('s_lshl_b32 s76, s2, 4'); a('s_add_u32 s76, s76, s61')
    a('s_add_u32 s75, s76, 0x%x' % FK)
    a('s_add_u32 s77, s76, 0x%x' % FC)
    a('s_and_b32 s78, s76, 0x1ff')
    a('s_add_u32 s76, s76, 0x%x' % FH)
    a('s_sub_u32 s62, 15, s%d' % sI); a('s_lshl_b32 s62, s62, 9')
    a('s_add_u32 s78, s78, s62'); a('s_add_u32 s78, s78, 0x%x' % FC)
    a('v_cmp_eq_u32 vcc, 0, v0')
    a('v_mov_b32 v25, 0x20000000')
    a('s_lshl_b32 s26, s2, 2'); a('s_add_u32 s26, s26, 0x%x' % FL)
    a('v_cndmask_b32 v%d, v25, 0, vcc' % V_ONE)
    a('s_cmp_eq_u32 s%d, 0' % sW)
    a('s_cselect_b32 s26, s26, 0x20000000')
    a('s_lshl_b32 s27, s2, 2'); a('s_or_b32 s27, s27, s%d' % sW)
    a('s_cmp_eq_u32 s27, 0')
    a('s_cselect_b32 s27, s79, 0x20000000')
    a('s_mov_b32 s79, 0x%x' % FL)
    def flag_store(sreg, val=V_1):
        return ('fl', 'buffer_store_dword v%d, v%d, %s, s%d offen %s' % (val, V_ONE, sr(WS, 4), sreg, WT))
    weave(W0, s0_items)
    stamp(a, 6, 'st')
    a('s_waitcnt vmcnt(%d)' % vm.cnt(ids['x']))
    stamp(a, 1); stamp(a, 7, 'st')
    tlb = [('pf', 'global_load_dword v249, v%d, s[%d:%d]' % (v_, p_, p_ + 1)) for v_, p_ in ((56, 14), (57, 22), (56, 8), (57, 18), (57, 20))] if 't' in os.environ.get('MX', '') else []
    s1_items = [issue(it) for it in (pf_chunk(0) + p1_dma(1) if 'q' in os.environ.get('MX', '') else p1_dma(1) + pf_chunk(0)) + [('pf', 'global_load_dword v249, v55, s[100:101]')] + tlb]
    W1 = len(a.lines)
    a('s_mov_b32 s61, 0x9e3779b1')
    a('v_mul_lo_u32 v%d, s61, v%d' % (V_1, V_1))
    a('v_add_u32 v%d, 0x7f4a7c15, v%d' % (V_1, V_1))
    import k1
    b = Asm(); k1.ln_part(b, XR, WS, 4, 3)
    ln_lines = [l.strip() for l in b.lines]
    for l in ln_lines[:-20]: a(l)
    a('v_lshrrev_b32 v224, 3, v3')
    a('v_lshlrev_b32 v224, 9, v224')
    a('v_and_b32 v225, 3, v3')
    a('v_lshl_add_u32 v224, v225, 7, v224')
    a('v_and_b32 v225, 7, v4')
    a('v_lshl_add_u32 v224, v225, 4, v224')
    a('v_bfe_u32 v225, v3, 2, 1')
    a('v_lshl_add_u32 v224, v225, 3, v224')
    a('v_add_u32 v224, %d, v224' % (128 * 1024))
    for j in range(5): a('ds_write_b64 v224, %s offset:%d' % (vr(XR + 2 * j, 2), 2048 * j))
    a('s_lshl_b32 s61, s%d, 10' % sW)
    a('s_add_u32 s61, s61, %d' % (128 * 1024))
    a('v_add_u32 v225, s61, v%d' % V_LANE16)
    a('v_lshrrev_b32 v226, 3, v0')
    a('v_lshlrev_b32 v226, 8, v226')
    a('v_and_b32 v227, 7, v0')
    a('v_lshl_add_u32 v226, v227, 4, v226')
    a('s_lshr_b32 s61, s2, 1')
    a('s_mul_i32 s61, s61, 20480')
    a('s_and_b32 s62, s2, 1')
    a('s_lshl_b32 s62, s62, 7')
    a('s_add_u32 s61, s61, s62')
    a('s_lshl_b32 s62, s%d, 11' % sW)
    a('s_add_u32 s61, s61, s62')
    a('s_add_u32 s62, s61, 8192')
    a('s_add_u32 s63, s61, 16384')
    a('s_cmp_lt_u32 s%d, 2' % sW)
    a('s_cselect_b32 s63, s63, 0x20000000')
    weave(W1, s1_items)
    xn_reads = ['ds_read_b128 %s, v225 offset:%d' % (vr(XR + 4 * t, 4), 4096 * t) for t in range(3)]
    xn_stores = [('xn', 'buffer_store_dwordx4 %s, v226, %s, s%d offen %s' % (vr(XR + 4 * t, 4), sr(WS, 4), 61 + t, WT)) for t in range(3)]
    MX = os.environ.get('MX', '')
    if 'x' in MX: xn_stores = []
    if 'p' in MX: xn_stores = [(t, s.replace(WT, '')) for t, s in xn_stores]
    WQ, WG, WU = R1, R2, R3
    WSLOT = [128 * 1024, 64 * 1024, 96 * 1024]
    P_ACCV, P_ACCA, P_WF, P_ACT = 128, 0, 128, 192
    srdm = [WQ, WQ, WG, WU]; stride = [8192, 8192, 3456, 3456]
    def w_dma(st, nm):
        L = []
        for m in range(nm):
            L.append('s_add_u32 m0, s%d, %d' % (sLW2, WSLOT[st % 3] + m * 8192))
            L.append('s_nop 0')
            for j in range(2):
                L.append((('w', st), 'buffer_load_dwordx4 v%d, %s, s%d offen offset:%d lds' % (P_WOFF + 2 * (m // 2) + j, sr(srdm[m], 4), s_w[m], 1024 * j)))
            L.append('s_add_u32 s%d, s%d, %d' % (s_w[m], s_w[m], 64 * stride[m]))
        return L
    def a_load(k):
        base = P_ACT + 16 * (k % 4)
        L = [(('a', k), 'buffer_load_dwordx4 %s, v%d, %s, s%d offen offset:%d' % (ar(base + 4 * qi, 4), (P_X0, P_X1)[qi % 2], sr(WS, 4), s_q[qi // 2], 1024 * (k % 4))) for qi in range(4)]
        if k % 4 == 3: L += ['s_add_u32 s%d, s%d, 4096' % (s, s) for s in s_q]
        return L
    FR = 64
    def reads(slot, ks, fs):
        base = FR + 64 * fs
        def A(i): return ['ds_read_b128 %s, v%d offset:%d' % (vr(base + 4 * i, 4), RA + ks, slot * 32768 + i * 2048)]
        def W(mat, nb): return ['ds_read_b64_tr_b16 %s, v%d offset:%d' % (vr(base + 32 + 16 * mat + 4 * nb + 2 * r, 2), RW + nb,
                                slot * 32768 + mat * 16384 + (32 * ks + 4 * r) * 256) for r in range(2)]
        L = A(0)
        for nb in range(4): L += W(0, nb)
        for nb in range(4): L += W(1, nb)
        for i in range(1, 8): L += A(i)
        return L
    def mfmas(fs, first, rbs=range(8)):
        base = FR + 64 * fs; L = []
        for rb in rbs:
            act = vr(base + 4 * rb, 4)
            for mat in range(2):
                for nb in range(4):
                    w = vr(base + 32 + 16 * mat + 4 * nb, 4)
                    d = ar((rb * 8 + mat * 4 + nb) * 4, 4); c = '0' if first else d
                    L.append('%s %s, %s, %s, %s' % ((MF16, d, w, act, c) if mat == 0 else (MF16, d, act, w, c)))
        return L
    stamp(a, 2); stamp(a, 8, 'st')
    a('s_waitcnt vmcnt(%d) lgkmcnt(0)' % vm.cnt(ids[('p1', 0)]))
    stamp(a, 9, 'st')
    a('s_barrier')
    stamp(a, 3); stamp(a, 10, 'st')
    for s in reads(0, 0, 0) + xn_reads: a(s)
    ln_poll = 'buffer_load_dwordx4 v[244:247], v%d, %s, s79 offen %s' % (V_LANE16, sr(WS, 4), WT)
    NST = 8
    pend = []
    P1SP = int(os.environ.get('P1SP', 4))
    for st in range(NST - 1):
        slot = st & 1
        for ks in range(2):
            rd = []
            if ks == 1:
                if st < NST - 1:
                    assert not any(x[0] == ('p1', st + 1) for x in pend if not isinstance(x, str))
                    a('s_waitcnt vmcnt(%d) lgkmcnt(0)' % vm.cnt(ids[('p1', st + 1)])); a('s_barrier')
                    rd = reads(1 - slot, 0, 0)
                else: a('s_waitcnt lgkmcnt(0)')
                if st + 2 < NST: pend += p1_dma(st + 2)
                if st == 0: pend += xn_stores
                if st == 2: pend = [flag_store(26)] + pend
                if st in (0, 1): pend += pf_chunk(st + 1)
                if st == 2: pend += [('pf', 'global_load_dword v240, v%d, s[8:9]' % TQ)]
                if st == 3: pend += [('pf', 'global_load_dword v241, v%d, s[18:19]' % TG), ('pf', 'global_load_dword v242, v%d, s[20:21]' % TG)]
                if st == 4: pend = [('lnp', ln_poll)] + pend
                if st == 5:
                    gate(ln_poll, 244, 4, 1, 61)
                    pend += [flag_store(27)]
                    pend += xn_touch(0) + xn_touch(1)
                if st == 6: pend += w_dma(1, 4) + xn_touch(2) + xn_touch(3) + xn_touch(4)
            else:
                a('s_waitcnt lgkmcnt(0)')
                rd = reads(slot, 1, 1)
                if st == 6:
                    pend += srd('wq', WQ) + srd('wg', WG) + srd('wu', WU) + ['s_mov_b32 s%d, s74' % (WG + 2), 's_mov_b32 s%d, s74' % (WU + 2)] + w_dma(0, 4)
            lastv = -10
            for g, m in enumerate(mfmas(ks, st == 0 and ks == 0)):
                a(m)
                if g % 2 == 0 and rd: a(rd.pop(0))
                elif pend and g % 2 == 1:
                    while pend and pend[0] == 's_nop 0': pend.pop(0)
                    if pend and (isinstance(pend[0], str) or g - lastv >= (2 if st < 2 else P1SP)):
                        if not isinstance(pend[0], str): lastv = g
                        a(issue(pend.pop(0)))
            stamp(a, 1 + 2 * st + ks, 'p1')
        if st == 3: stamp(a, 4); cstamp(a, 1)
    def w_read(k, n):
        st, ks = k // 2, k % 2
        off = WSLOT[st % 3] - 65536
        grp = off // 65536; off %= 65536
        m, c = n // 4, n % 4
        return ['ds_read_b64_tr_b16 %s, v%d offset:%d' % (wfr(k, n, r), P_WRD + 4 * grp + c, off + m * 8192 + (32 * ks + 16 * r) * 128) for r in range(2)]
    def wfr(k, n, r=None):
        f, b_ = (vr, 96 + 4 * (n - 8)) if (k >= 16 and n >= 8) else (ar, P_WF + 4 * n)
        return f(b_, 4) if r is None else f(b_ + 2 * r, 2)
    sBASE, sK0, sK1, sT, sC0, sC1, sS1 = 56, 57, 58, 59, 60, 61, 62
    sc = ['s_lshl_b32 s56, s%d, 20' % sH, 's_lshl_b32 s57, s%d, 17' % sI, 's_add_u32 s58, s56, s57', 's_lshr_b32 s57, s%d, 1' % sW, 's_lshl_b32 s57, s57, 16',
          's_add_u32 s58, s58, s57', 's_add_u32 s58, s58, 0x%x' % WS_KV, 's_and_b32 s57, s%d, 1' % sW, 's_lshl_b32 s16, s57, 11', 's_add_u32 s16, s16, s58',
          's_lshl_b32 s17, s57, 12', 's_add_u32 s17, s17, s58', 's_add_u32 s17, s17, 16384',
          's_lshl_b32 s57, s%d, 14' % sW, 'v_add_u32 v26, s57, v%d' % V_LANE16,
          's_lshl_b32 s59, s%d, 12' % sW, 's_add_u32 s56, s56, s59', 's_add_u32 s56, s56, 0x%x' % WS_KV, 's_lshl_b32 s60, s%d, 13' % sW,
          's_add_u32 s60, s60, %d' % (65536 + 32768), 's_add_u32 s61, s60, 16384', 's_add_u32 s62, s56, 32768', 's_add_u32 s57, s56, 65536', 's_add_u32 s58, s57, 32768',
          'v_add_u32 v%d, 16384, v%d' % (V_LANE16V, V_LANE16), 'v_and_b32 v%d, 7, v0' % V_PA, 'v_lshlrev_b32 v%d, 9, v%d' % (V_PA, V_PA),
          's_and_b32 s79, s2, 31', 's_lshl_b32 s79, s79, 4', 's_add_u32 s79, s79, 0x%x' % FK]
    def conv(b0, b1, T, dst):
        return ['v_accvgpr_read_b32 v%d, a%d' % (T + e, b0 * 4 + e) for e in range(4)] + ['v_accvgpr_read_b32 v%d, a%d' % (T + 4 + e, b1 * 4 + e) for e in range(4)] + \
               ['v_cvt_pk_bf16_f32 v%d, v%d, v%d' % (dst + e, T + 2 * e, T + 2 * e + 1) for e in range(4)]
    def store(T, sb, off):
        return ['s_add_u32 s63, s%d, %d' % (sb, off & ~4095),
                ('kv', 'buffer_store_dwordx4 %s, v%d, %s, s63 offen offset:%d %s' % (vr(T, 4), V_LANE16, sr(WS, 4), off & 4095, WT))]
    def jobs(rp):
        J = []
        for rb in (2 * rp, 2 * rp + 1):
            for s in range(2): J.append((rb * 8 + 2 * s, rb * 8 + 2 * s + 1, 16, (rb // 4) * 32768 + ((rb % 4) * 4 + s) * 1024))
        rb = 2 * rp
        for nb in range(4): J.append((rb * 8 + 4 + nb, (rb + 1) * 8 + 4 + nb, 17, (rb // 4) * 32768 + (((rb % 4) // 2) * 8 + nb) * 1024))
        return J
    J1 = jobs(3) + jobs(2); J2 = jobs(0) + jobs(1)
    a('s_waitcnt lgkmcnt(0)')
    rd = reads(1, 1, 1)
    pend += sc
    for g, m in enumerate(mfmas(0, False, (6, 7, 4, 5))):
        a(m)
        if rd: a(rd.pop(0))
        for _ in range(1 if rd else 2):
            while pend and pend[0] == 's_nop 0': pend.pop(0)
            if pend and not (_ == 1 and not isinstance(pend[0], str)): a(issue(pend.pop(0)))
    assert not any(x[0] == ('w', 0) for x in pend if not isinstance(x, str))
    a('s_waitcnt vmcnt(%d) lgkmcnt(0)' % vm.cnt(ids[('w', 0)]))
    a('s_barrier')
    pend += w_dma(2, 4)
    fq = []
    for n_, (b0, b1, sb, off) in enumerate(J1):
        T = 192 + 12 * (n_ % 4)
        fq += conv(b0, b1, T, T + 8) + ['ds_write_b128 v26, %s offset:%d' % (vr(T + 8, 4), 1024 * n_)]
        if n_ >= 8 and n_ < 12: fq += a_load(n_ - 8)
    for n in range(16): fq += w_read(0, n)
    tail = mfmas(1, False, (6, 7, 4, 5)) + mfmas(0, False, (0, 1, 2, 3)) + mfmas(1, False, (0, 1, 2, 3))
    per = -(-len(fq) // (len(tail) - 24))
    for g, m in enumerate(tail):
        a(m)
        if g < 22:
            for _ in range(2):
                while pend and pend[0] == 's_nop 0': pend.pop(0)
                if pend and not (_ == 1 and not isinstance(pend[0], str)): a(issue(pend.pop(0)))
        else:
            assert not pend
            for _ in range(per):
                if fq: a(issue(fq.pop(0)))
    assert not fq
    stamp(a, 5); cstamp(a, 2); stamp(a, 6); cstamp(a, 3)
    cq = []
    for n_, (b0, b1, sb, off) in enumerate(J2): cq += conv(b0, b1, 4 + 8 * (n_ % 2), 64 + 4 * n_)
    kv_sched = {}
    KVEND = int(os.environ.get('KVEND', 14))
    def kstep(n_): return 1 + (n_ * (KVEND - 1)) // 32
    for n_, (b0, b1, sb, off) in enumerate(J2):
        kv_sched.setdefault(kstep(n_), []).extend(store(64 + 4 * n_, sb, off))
        kv_sched.setdefault(kstep(n_) + 1, []).append('ds_read_b128 %s, v26 offset:%d' % (vr(64 + 4 * n_, 4), 1024 * n_))
    for n_, (b0, b1, sb, off) in enumerate(J1):
        kv_sched.setdefault(kstep(16 + n_), []).extend(store(64 + 4 * n_, sb, off))
    kv_poll0 = 'buffer_load_dwordx4 v[64:67], v52, %s, s79 offen %s' % (sr(WS, 4), WT)
    kv_poll = 'buffer_load_dwordx4 v[208:211], v%d, %s, s79 offen %s' % (V_PA, sr(WS, 4), WT)
    def kv_dma(m0expr, voff, ssrc, tag):
        return [m0expr, 's_nop 0'] + [(tag, 'buffer_load_dwordx4 v%d, %s, s%d offen offset:%d lds' % (voff, sr(WS, 4), ssrc, 1024 * j)) for j in range(4)]
    sTHR, sBIG, s2W, sM0, sM1, sDYN, sE0, sE1, sCNT = 64, 65, 66, 67, 68, 69, 70, 71, 63
    halves = []
    for k in range(16): halves += [(k, 0), (k, 1)]
    halves += [(k, 0) for k in range(16, 20)] + [(k, 1) for k in range(16, 20)]
    qe = ['s_mov_b32 s64, %s' % f2u(math.log2(math.e) / math.sqrt(128.0))]
    for qi in range(4):
        for s in range(4):
            r0, r1 = P_ACCV + ((2 * s) * 4 + qi) * 4, P_ACCV + ((2 * s + 1) * 4 + qi) * 4
            qe += ['v_mul_f32 v%d, s64, v%d' % (r + e, r + e) for r in (r0, r1) for e in range(4)]
            qe += ['v_cvt_pk_bf16_f32 v%d, v%d, v%d' % (r + e, r + 2 * e, r + 2 * e + 1) for r in (r0, r1) for e in range(2)]
            qe += ['v_accvgpr_write_b32 a%d, v%d' % (A_Q[qi // 2] + ((qi % 2) * 4 + s) * 4 + 2 * h + e, (r0, r1)[h] + e) for h in range(2) for e in range(2)]
    qe += ['v_and_b32 v5, 15, v0', 'v_lshrrev_b32 v6, 4, v0', 'v_lshlrev_b32 v6, 2, v6', 'v_sub_u32 v5, v5, v6']
    for r in range(4): qe += ['v_cmp_gt_i32 vcc, %d, v5\ns_nop 1\nv_cndmask_b32 v%d, 0, 1.0, vcc' % (r, TRI + r)]
    qe += ['v_mov_b32 v%d, 0x3f803f80' % (V_ONES + e) for e in range(4)] + ['v_mov_b32 v%d, 0' % (NEGM + j) for j in range(16)]
    qe += ['v_mov_b32 v%d, 0' % (V_L + j) for j in range(4)]
    qe += ['v_mov_b32 v%d, v%d' % (V_KRD, V_LANE16), 'v_add_u32 v%d, 65536, v%d' % (V_VRD, V_LANE16)]
    qe += ['s_lshl_b32 s8, s72, 10', 's_lshl_b32 s9, s73, 10', 's_lshl_b32 s10, s%d, 18' % sCT, 's_add_u32 s10, s10, 0x%x' % WS_H,
           's_cmp_eq_u32 s74, 0\ns_cselect_b32 s10, 0x20000000, s10', 's_add_u32 s8, s8, s10', 's_add_u32 s9, s9, s10',
           's_add_u32 s10, s8, %d' % (128 * 1024), 's_add_u32 s11, s9, %d' % (128 * 1024),
           's_sub_u32 s12, 7, s%d' % sW, 's_lshl_b32 s12, s12, 10', 'v_add_u32 v%d, s12, v%d' % (P_X0, V_LANE16),
           's_lshl_b32 s12, s%d, 10' % sW, 'v_add_u32 v%d, s12, v%d' % (P_X1, V_LANE16),
           's_mov_b32 s%d, %s' % (sTHR, f2u(THR)), 's_mov_b32 s%d, %s' % (sBIG, f2u(-BIG)), 's_sub_u32 s%d, 3, s%d' % (s2W, sW),
           's_cmp_eq_u32 s%d, 0\ns_cselect_b32 s%d, s%d, 0' % (sI, sDYN, sBIG)]
    pend = []; vq = cq; vper = 5
    for hi_, (k, part) in enumerate(halves):
        st, ks = k // 2, k % 2
        base = P_ACT + 16 * (k % 4)
        if part == 0:
            need = ids[('a', k)]
            if k == KVEND + 1:
                assert not any(x[0] == 'kv' for x in pend if not isinstance(x, str))
                need = max(need, ids['kv'])
            assert not any(x[0] == ('a', k) for x in pend if not isinstance(x, str))
            a('s_waitcnt vmcnt(%d) lgkmcnt(8)' % min(63, vm.cnt(need)))
            pend += kv_sched.get(k, [])
            if k == KVEND + 1: pend += [flag_store(75)]
            if k == 18: pend += [('kvp', kv_poll0)]
            if k > 0 and k + 3 < 20: pend = a_load(k + 3) + pend
        elif k == 16:
            a('s_waitcnt vmcnt(%d) lgkmcnt(8)' % vm.cnt(ids['kvp']))
            gate(kv_poll0, 64, 4, 1, 63)
            pend += kv_dma('s_add_u32 m0, s59, 0', V_LANE16, sBASE, 'k0') + kv_dma('s_add_u32 m0, s59, 16384', V_LANE16, sS1, 'k1')
            pend += kv_dma('s_add_u32 m0, s59, 32768', V_LANE16, sK0, 'k2') + kv_dma('s_add_u32 m0, s59, 65536', V_LANE16V, sBASE, 'v0')
            pend += kv_dma('s_add_u32 m0, s59, 49152', V_LANE16, sK1, 'k3') + kv_dma('s_add_u32 m0, s59, %d' % (65536 + 16384), V_LANE16V, sS1, 'v1')
            vq = qe; vper = 3
        else: a('s_waitcnt lgkmcnt(8)')
        for n in range(8 * part, 8 * part + 8):
            if n % 8 == 4: a('s_waitcnt lgkmcnt(%d)' % (8 if k < 19 else 0))
            if k == 0 and n == 8: assert len(vq) <= 96
            if k == 0 and n == 12: assert not vq
            for qi in range(4):
                d = vr(P_ACCV + (n * 4 + qi) * 4, 4) if n < 8 else ar(P_ACCA + ((n - 8) * 4 + qi) * 4, 4)
                a('%s %s, %s, %s, %s' % (MF16, d, wfr(k, n), ar(base + 4 * qi, 4), '0' if k == 0 else d))
                if qi < 3:
                    while pend and pend[0] == 's_nop 0': pend.pop(0)
                    if pend and (qi != 1 or not vq): a(issue(pend.pop(0)))
                for _ in range(vper if qi < 3 else vper - 2):
                    if vq: a(vq.pop(0))
            if k + 1 < 20:
                if n == 0 and ks == 1:
                    assert not any(x[0] == ('w', st + 1) for x in pend if not isinstance(x, str))
                    a('s_waitcnt vmcnt(%d) lgkmcnt(0)' % min(63, vm.cnt(ids[('w', st + 1)])))
                    a('s_barrier')
                    if st + 3 < 10: pend = pend + w_dma(st + 3, 4)
                for s in w_read(k + 1, n): a(s)
        if part == 1 and k < 16: stamp(a, 1 + k, 'p2a')
        if hi_ >= 24: stamp(a, hi_ - 23, 'p2b')
    assert not pend and not vq
    stamp(a, 7); cstamp(a, 4)
    a('s_waitcnt vmcnt(%d)' % vm.cnt(max(ids['k2'], ids['v0'])))
    stamp(a, 8)
    a('s_barrier')
    hx = []
    for j_ in range(8):
        s, qi = j_ // 4, j_ % 4
        T = 192 + 20 * (j_ % 3)
        for cc in range(2):
            g = P_ACCA + ((2 * s + cc) * 4 + qi) * 4
            hx += ['v_accvgpr_read_b32 v%d, a%d' % (T + 8 * cc + e, g + e) for e in range(4)] + ['v_accvgpr_read_b32 v%d, a%d' % (T + 8 * cc + 4 + e, g + 64 + e) for e in range(4)]
            hx += ['v_mul_f32 v%d, v%d, v%d' % (T + 8 * cc + e, T + 8 * cc + e, T + 8 * cc + 4 + e) for e in range(4)]
            hx += ['v_cvt_pk_bf16_f32 v%d, v%d, v%d' % (T + 16 + 2 * cc + e, T + 8 * cc + 2 * e, T + 8 * cc + 2 * e + 1) for e in range(2)]
        hx.append('buffer_store_dwordx4 %s, v%d, %s, s%d offen %s' % (vr(T + 16, 4), (P_X0, P_X1)[qi % 2], sr(WS, 4), 8 + qi // 2 + 2 * s, WT))
    hx += ['%s %s, %s, %s, 0' % (MFMA, ar(16 * j_, 16), vr(NEGM, 4), vr(NEGM, 4)) for j_ in range(8)]
    hx += [kv_poll]
    def kread(i, p): return 'ds_read_b128 %s, v%d offset:%d' % (ar(A_RING + 4 * (i % R), 4), V_KRD, p * 16384 + i * 1024)
    def vread(i, p): return 'ds_read_b128 %s, v%d offset:%d' % (ar(A_RING + 4 * (i % R), 4), V_VRD, p * 16384 + i * 1024)
    for i in range(D): a(kread(i, 0))
    for s_ in hx[:16]: a(s_)
    hx = hx[16:]
    stamp(a, 9); stamp(a, 1, 'p3')
    def prefill(st, p, tau, dyn=False):
        qb = 1 - tau
        sref = sW if tau == 0 else s2W
        big = sDYN if dyn else sBIG
        out = []
        for kb in range(4):
            S = SB[st][p] + (kb * 2 + qb) * 4
            L = ['s_cmp_eq_u32 s%d, %d' % (sref, kb), 's_cselect_b32 s%d, s%d, 0' % (sM0, big)]
            t = NEGM + (st * 2 + qb) * 4
            if kb > 0:
                L += ['s_cmp_lt_u32 s%d, %d' % (sref, kb), 's_cselect_b32 s%d, s%d, 0' % (sM1, big), 'v_add_f32 v%d, s%d, v%d' % (V_T1, sM1, t)]
                t = V_T1
            L += ['v_fma_f32 v%d, v%d, s%d, v%d' % (S + r, TRI + r, sM0, t) for r in range(4)]
            out.append('\n'.join(L))
        return out
    def qk_mf(sets, p):
        G = []
        for f in range(16):
            kb, ds = f // 4, f % 4; L = []
            for st, qbs, inq in sets:
                for qb in qbs:
                    d = vr(SB[st][p] + (kb * 2 + qb) * 4, 4)
                    c = vr(NEGM + (st * 2 + qb) * 4, 4) if (ds == 0 and inq != qb) else d
                    L.append('%s %s, %s, %s, %s' % (MF16, d, ar(A_RING + 4 * (f % R), 4), ar(A_Q[st] + (qb * 4 + ds) * 4, 4), c))
            G.append(L)
        return G
    def pv_mf(sets, p):
        G = []
        for f in range(16):
            ks, db = f // 8, f % 8; L = []
            for st, qbs in sets:
                for qb in qbs:
                    d = ar(A_O[st] + (db * 2 + qb) * 4, 4)
                    L.append('%s %s, %s, %s, %s' % (MF16, d, ar(A_RING + 4 * (f % R), 4), vr(PB[st][p] + (qb * 2 + ks) * 4, 4), d))
            G.append(L)
        return G
    def pre_items(pf):
        a(pf[0]); a('s_nop 1')
        return [dict(lo=max(0, 4 * kb - 5), hi=4 * kb - 3, ins=pf[kb]) for kb in range(1, 4)]
    rare_sites = []
    pk = Packer(a)
    def lg_items(n, skip_last):
        return [dict(lo=i, hi=i, lg=i + 4) for i in range(3, n, 4) if not (i == n - 1 and skip_last)]
    def ladds(ex):
        return ['v_add_f32 v%d, v%d, v%d' % (V_L + st * 2 + qb, V_L + st * 2 + qb, LT + (st * 2 + qb) * 4) for st, qbs in ex for qb in qbs]
    def iteration(p, qk, ex, pv, prev_ex, nxt='k', dk=True, dv=True, loop_ctr=None, post_bar=(), mid=(), anyw=(), wv=None, pf=None, anylo=2, vx=0):
        groups = []; rs = []
        pfi = pre_items(pf) if pf else []
        if qk:
            groups += qk_mf(qk, p); rs += [kread(i, p) for i in range(16)]
        groups += pv_mf(pv, p); rs += [vread(i, p) for i in range(16)]
        n = len(groups)
        nx = {'k': [kread(i, 1 - p) for i in range(D)], 'v': [vread(i, 1 - p) for i in range(D)], None: [None] * D}[nxt]
        rds = rs[D:] + nx
        bg = n - D
        it = [dict(lo=0, hi=0, ins=s, v=True) for s in ladds(prev_ex)] + pfi
        nd = 0
        if wv is None: gv, gm, gk, sl = (2, 4, 5, 6), 8, (10, 12, 14, 16), 1
        else:
            pos = [2 + 4 * j + wv for j in range(8)]
            gv = [x // 2 for x in pos[:4]]; gk = [x // 2 + 1 for x in pos[4:]]; gm = gv[3] + 1; sl = 0
        late = wv is not None and wv % 2 == 1
        if dv:
            it.append(dict(lo=0, hi=0 if wv is not None else 1, ins='s_sub_u32 m0, s%d, s%d' % ((sC0, sC1)[p], sT)))
            for j, i in enumerate(gv):
                it.append(dict(lo=i + (1 if late else 0), hi=i + sl, ins='buffer_load_dwordx4 v%d, %s, s%d offen offset:%d lds' % (V_LANE16V, sr(WS, 4), (sK0, sK1)[p], 1024 * j)))
            nd += 4
        if dk:
            it.append(dict(lo=gm, hi=gm + 1, ins='s_add_u32 m0, s%d, %d' % (sT, p * 16384)))
            it.append(dict(lo=gm, hi=gm + 1, ins='s_add_u32 s%d, s%d, 32768' % ((sK0, sK1)[p], (sK0, sK1)[1 - p])))
            for j, i in enumerate(gk):
                it.append(dict(lo=i + (1 if late else 0), hi=i + sl, ins='buffer_load_dwordx4 v%d, %s, s%d offen offset:%d lds' % (V_LANE16, sr(WS, 4), (sK0, sK1)[p], 1024 * j)))
            nd += 4
        nd += sum(1 for s in mid if s.startswith('buffer_'))
        if p == 1:
            if qk: it.append(dict(lo=16 - D, hi=bg - 1, ins='v_xor_b32 v%d, 32768, v%d' % (V_KRD, V_KRD), v=True))
            it.append(dict(lo=bg - 1 if nxt == 'v' else bg, hi=bg - 1 if nxt == 'v' else n - 1, ins='v_xor_b32 v%d, 32768, v%d' % (V_VRD, V_VRD), v=True))
            it.append(dict(lo=13, hi=n - 1, ins='s_xor_b32 s%d, s%d, 32768' % (sT, sT)))
        if nxt is not None:
            it.append(dict(lo=bg - 3, hi=bg - 2, ins='s_waitcnt vmcnt(%d)' % (nd + vx)))
            it.append(dict(lo=bg - 1, hi=bg - 1, ins='s_barrier'))
        it += lg_items(n, nxt is None)
        it.sort(key=lambda x: (x['hi'], x['lo']))
        for j, s in enumerate(mid):
            g_ = 8 + (j * (bg - 4 - 8)) // len(mid)
            it.append(dict(lo=g_, hi=bg - 4, ins=s))
        for j, s in enumerate(anyw):
            it.append(dict(lo=anylo, hi=n - 1, ins=s))
        lo0 = bg if nxt is not None else 0
        for j, s in enumerate(post_bar):
            it.append(dict(lo=lo0 + (j * (n - lo0)) // len(post_bar), hi=n - 1, ins=s))
        fin = []
        if ex:
            lts = [LT + (st * 2 + qb) * 4 for st, qbs in ex for qb in qbs]
            cur = lts[0]
            if len(lts) == 2: fin.append('v_max_f32 v%d, v%d, v%d' % (V_T0, lts[0], lts[1])); cur = V_T0
            if len(lts) >= 3: fin.append('v_max3_f32 v%d, v%d, v%d, v%d' % (V_T0, lts[0], lts[1], lts[2])); cur = V_T0
            if len(lts) == 4: fin.append('v_max_f32 v%d, v%d, v%d' % (V_T0, V_T0, lts[3]))
            fin.append('v_cmp_lt_f32 vcc, s%d, v%d' % (sTHR, cur))
        pk.run(groups, rds, it, [(st, 1 - p, qbs) for st, qbs in ex], [], fin, (1, p) if qk else None, True)
        if loop_ctr: a('s_sub_u32 s%d, s%d, 1' % (loop_ctr[0], loop_ctr[0]))
        if ex:
            stub, back = a.newlabel(name + '_rs'), a.newlabel(name + '_rb')
            a('s_cbranch_vccnz %s' % stub)
            a.label(back)
            rare_sites.append((stub, back, 1 - p, ex))
        if loop_ctr: a('s_cbranch_scc0 %s' % loop_ctr[1])
    def epilogue(st):
        a('s_lshl_b32 s%d, s%d, 10' % (sE0, sQ[st]))
        a('s_lshl_b32 s%d, s%d, 19' % (sE1, sH))
        a('s_add_u32 s%d, s%d, s%d' % (sE0, sE0, sE1))
        a('s_add_u32 s%d, s%d, 0x%x' % (sE0, sE0, WS_CTX))
        a('s_lshl_b32 s%d, s%d, 10' % (sM1, sW))
        a('s_sub_u32 s%d, s%d, s%d' % (sM0, sE0, sM1)); a('s_add_u32 s%d, s%d, 7168' % (sM0, sM0))
        a('s_add_u32 s%d, s%d, s%d' % (sM1, sE0, sM1))
        a('v_rcp_f32 v%d, v%d' % (V_T0, V_L + st * 2))
        a('v_rcp_f32 v%d, v%d' % (V_T1, V_L + st * 2 + 1))
        a('s_nop 1')
        c3 = 0
        for s in range(4):
            for qb in range(2):
                T = SB[st][0] + 16 * (c3 % 4); c3 += 1
                for cc in range(2):
                    for e in range(4): a('v_accvgpr_read_b32 v%d, a%d' % (T + 4 * cc + e, A_O[st] + ((2 * s + cc) * 2 + qb) * 4 + e))
                for e in range(8): a('v_mul_f32 v%d, v%d, v%d' % (T + e, T + e, (V_T0, V_T1)[qb]))
                for e in range(4): a('v_cvt_pk_bf16_f32 v%d, v%d, v%d' % (T + 8 + e, T + 2 * e, T + 2 * e + 1))
                a('s_add_u32 s%d, s%d, %d' % (sE1, (sM0, sM1)[qb], s * 128 * 1024))
                a(issue(('ctx', 'buffer_store_dwordx4 %s, v%d, %s, s%d offen %s' % (vr(T + 8, 4), V_LANE16, sr(WS, 4), sE1, WT))))
    AH, AC, WD4, WO4, X4, OUT = R1, R2, R3, R4, R5, 4
    sRO, sRT, sCT4, sAC, sWW, sVAL, sXO, sSW, sLD, sW2, sAC0, sWW0 = 8, 9, 10, 11, 12, 74, 13, 18, 19, 20, 26, 27
    sS1, sS0, sR0, sR1 = 16, 17, 21, 62
    WS_EX = 0x8000000
    FX = WS_FLG + 65536
    a_real = a; a = Asm()
    a('s_lshr_b32 s67, s2, 3')
    a('s_cmp_lt_u32 s67, 30'); a('s_cselect_b32 s%d, 1, 0' % sVAL)
    a('s_min_u32 s67, s67, 29')
    a('s_mul_i32 s68, s67, 205'); a('s_lshr_b32 s68, s68, 10')
    a('s_mul_i32 s69, s68, 5'); a('s_sub_u32 s%d, s67, s69' % sCT4)
    a('s_and_b32 s69, s2, 7'); a('s_mul_i32 s69, s69, 6'); a('s_add_u32 s69, s69, s68')
    a('s_lshr_b32 s%d, s69, 4' % sRO); a('s_and_b32 s%d, s69, 15' % sRT)
    for s in srd('x', X4) + srd('out', OUT): a(s)
    a('s_add_u32 s70, s%d, 2' % sRO); a('s_cmp_eq_u32 s%d, 0' % sRO); a('s_cselect_b32 s71, 0, 3'); a('s_sub_u32 s70, s70, s71')
    a('s_cmp_eq_u32 s%d, 0' % sRO); a('s_cselect_b32 s71, 40, 44'); a('s_mul_i32 s71, s71, s%d' % sVAL)
    a('s_mul_i32 s67, s%d, %d' % (sRO, 18 * 131072)); a('s_add_u32 s67, s67, 0x%x' % WS_H)
    a('s_add_u32 s%d, s28, s67' % AH); a('s_addc_u32 s%d, s29, 0' % (AH + 1)); a('s_mul_i32 s%d, s%d, %d' % (AH + 2, sVAL, 18 * 131072))
    a('s_mul_i32 s67, s70, %d' % (44 * 131072)); a('s_add_u32 s67, s67, 0x%x' % WS_CTX)
    a('s_add_u32 s%d, s28, s67' % AC); a('s_addc_u32 s%d, s29, 0' % (AC + 1)); a('s_lshl_b32 s%d, s71, 17' % (AC + 2))
    a('s_mul_i32 s67, s%d, %d' % (sRO, 18 * 32 * 1280))
    a('s_add_u32 s%d, s22, s67' % WD4); a('s_addc_u32 s%d, s23, 0' % (WD4 + 1)); a('s_mul_i32 s%d, s%d, %d' % (WD4 + 2, sVAL, 18 * 32 * 1280))
    a('s_mul_i32 s67, s70, %d' % (44 * 32 * 1280))
    a('s_add_u32 s%d, s14, s67' % WO4); a('s_addc_u32 s%d, s15, 0' % (WO4 + 1)); a('s_mul_i32 s%d, s71, %d' % (WO4 + 2, 32 * 1280))
    for r_ in (AH, AC, WD4, WO4): a('s_mov_b32 s%d, 0x00020000' % (r_ + 3))
    a('s_cmp_eq_u32 s%d, 2' % sRO); a('s_cselect_b32 s%d, 1, 0' % sSW)
    VA0, VA1, VWO, VRD, VX, VPL = 16, 17, 18, 32, 20, 62
    a('s_lshl_b32 s%d, s%d, 2' % (sAC, sRT)); a('s_add_u32 s%d, s%d, s%d' % (sAC, sAC, sW))
    a('s_lshl_b32 s67, s%d, 1' % sAC); a('s_add_u32 s67, s67, s%d' % sSW)
    a('s_mul_i32 s%d, s67, %d' % (sXO, 16 * 1280)); a('s_lshl_b32 s68, s%d, 8' % sCT4); a('s_add_u32 s%d, s%d, s68' % (sXO, sXO))
    a('s_lshl_b32 s%d, s%d, 11' % (sAC, sAC)); a('s_mov_b32 s%d, s%d' % (sAC0, sAC))
    a('s_lshl_b32 s67, s%d, 10' % sSW)
    a('v_add_u32 v%d, s67, v%d' % (VA0, V_LANE16))
    a('v_xor_b32 v%d, 1024, v%d' % (VA1, VA0))
    a('s_mul_i32 s%d, s%d, %d' % (sWW, sW, 16 * 1280)); a('s_add_u32 s%d, s%d, s68' % (sWW, sWW)); a('s_mov_b32 s%d, s%d' % (sWW0, sWW))
    a('v_lshrrev_b32 v5, 3, v0'); a('v_mul_u32_u24 v5, 1280, v5')
    a('v_bfe_u32 v6, v0, 1, 2'); a('v_bfe_u32 v7, v0, 4, 2'); a('v_xor_b32 v6, v6, v7')
    a('v_lshl_add_u32 v5, v6, 5, v5'); a('v_and_b32 v6, 1, v0')
    a('v_lshl_add_u32 v%d, v6, 4, v5' % VWO)
    a('v_add_u32 v%d, %d, v%d' % (VWO + 1, 8 * 1280 - 1024, VWO))
    a('v_lshrrev_b32 v5, 2, v0'); a('v_lshlrev_b32 v5, 7, v5'); a('v_and_b32 v6, 3, v0'); a('v_lshl_add_u32 v5, v6, 3, v5')
    a('v_bfe_u32 v6, v0, 3, 2')
    for c in range(4):
        a('v_xor_b32 v7, %d, v6' % c)
        a('v_lshl_add_u32 v%d, v7, 5, v5' % (VRD + c))
        a('v_add_u32 v%d, 65536, v%d' % (VRD + 4 + c, VRD + c))
    a('v_lshrrev_b32 v5, 4, v0'); a('v_mul_u32_u24 v5, 5120, v5'); a('v_and_b32 v6, 15, v0')
    a('v_lshl_add_u32 v%d, v6, 4, v5' % VX)
    a('v_and_b32 v%d, 0x1f0, v%d' % (VPL, V_LANE16))
    a('s_mul_i32 s67, s%d, 4608' % sW)
    a('v_and_b32 v5, 15, v0'); a('v_mul_u32_u24 v5, 272, v5'); a('v_lshrrev_b32 v6, 4, v0'); a('v_lshl_add_u32 v5, v6, 3, v5')
    a('v_add_u32 v21, s67, v5')
    a('v_mul_u32_u24 v6, 1088, v6'); a('v_and_b32 v5, 15, v0'); a('v_lshl_add_u32 v5, v5, 4, v6')
    a('v_add_u32 v23, s67, v5')
    a('s_sub_u32 s67, 15, s%d' % sRT); a('s_min_u32 s67, s67, s%d' % sRT)
    a('s_lshl_b32 s79, s67, 9'); a('s_add_u32 s79, s79, 0x%x' % FH)
    a('s_lshl_b32 s76, s%d, 9' % sRT); a('s_add_u32 s76, s76, 0x%x' % FC)
    a('s_mul_i32 s67, s%d, 5' % sRT); a('s_add_u32 s67, s67, s%d' % sCT4)
    a('s_lshl_b32 s68, s67, 2'); a('s_add_u32 s68, s68, s%d' % sW)
    a('s_lshl_b32 s75, s68, 10'); a('s_add_u32 s75, s75, 0x%x' % FX)
    a('s_lshl_b32 s68, s68, 16'); a('s_add_u32 s68, s68, 0x%x' % WS_EX)
    a('s_add_u32 s67, s%d, 1' % sRO); a('s_lshl_b32 s67, s67, 13'); a('s_add_u32 s%d, s68, s67' % sS1)
    a('s_cmp_eq_u32 s%d, 0' % sRO); a('s_cselect_b32 s%d, s68, 0x20000000' % sS0)
    a('s_lshl_b32 s67, s%d, 13' % sSW); a('s_add_u32 s%d, s68, s67' % sR0)
    a('s_sub_u32 s67, 3, s%d' % sSW); a('s_lshl_b32 s67, s67, 13'); a('s_add_u32 s%d, s68, s67' % sR1)
    a('s_cmp_eq_u32 s%d, 0' % sRO); a('s_cselect_b32 s%d, 0x20000000, s%d' % (sR0, sR0)); a('s_cselect_b32 s%d, 0x20000000, s%d' % (sR1, sR1))
    a('s_lshl_b32 s56, s%d, 7' % sRO); a('s_add_u32 s56, s56, s75')
    a('s_sub_u32 s67, 3, s%d' % sRO); a('s_cmp_eq_u32 s%d, 0' % sRO); a('s_cselect_b32 s67, 0, s67'); a('s_lshl_b32 s67, s67, 7')
    a('v_and_b32 v22, 1, v0'); a('v_mul_u32_u24 v22, s67, v22')
    a('s_lshl_b32 s%d, s%d, 11' % (sLD, sW))
    for c in range(4): a('v_add_u32 v%d, 131072, v%d' % (196 + c, VRD + c))
    setup4 = [re.sub(r'\bv([567])\b', lambda m: 'v%d' % (64 + int(m.group(1))), l.strip()) for l in a.lines]
    a = a_real
    grp4 = []
    for l in setup4:
        if l.startswith('s_cselect') or l.startswith('s_addc'): grp4[-1] += '\n' + l
        else: grp4.append(l)
    h_poll = 'buffer_load_dwordx4 v[192:195], v%d, %s, s79 offen %s' % (VPL, sr(WS, 4), WT)
    c_poll = 'buffer_load_dwordx4 v[24:27], v%d, %s, s76 offen %s' % (VPL, sr(WS, 4), WT)
    b_poll = 'buffer_load_dword v24, v22, %s, s75 offen %s' % (sr(WS, 4), WT)
    s_poll = 'buffer_load_dword v24, v22, %s, s75 offen offset:512 %s' % (sr(WS, 4), WT)
    WF4 = 64; ND4 = 18; NK = 62; LA4 = 15
    def accB(n, q): return 128 + (q * 8 + n) * 4
    def accS(n, q): return 192 + (q * 8 + n) * 4
    def act4(k, q): r = k % 16; return (r * 8 + q * 4) if r < 8 else (128 + (r - 8) * 8 + q * 4)
    def wslot(st): return 131072 + st * 16384 if st < 2 else ((st - 2) % 8) * 16384
    def w4_dma(st):
        L = []
        if st == ND4 // 2: L.append('s_mov_b32 s%d, s%d' % (sWW, sWW0))
        r_ = WD4 if st < ND4 // 2 else WO4
        for m in range(2):
            L += ['s_add_u32 m0, s%d, %d' % (sLD, wslot(st) + m * 8192), 's_nop 0' if m == 0 else 's_add_u32 s%d, s%d, 128' % (sW2, sWW)]
            L += [(('w4', st), 'buffer_load_dwordx4 v%d, %s, s%d offen offset:%d lds' % (VWO + j, sr(r_, 4), sWW if m == 0 else sW2, 1024 * j)) for j in range(2)]
        L.append('s_add_u32 s%d, s%d, %d' % (sWW, sWW, 64 * 1280))
        return L
    def a4_load(k):
        L = ['s_mov_b32 s%d, s%d' % (sAC, sAC0)] if k == ND4 else []
        return L + [(('a4', k), 'buffer_load_dwordx4 %s, v%d, %s, s%d offen' % (ar(act4(k, q), 4), (VA0, VA1)[q], sr(AH if k < ND4 else AC, 4), sAC)) for q in range(2)] + \
               ['s_add_u32 s%d, s%d, %d' % (sAC, sAC, 128 * 1024)]
    def w4_read(k, n):
        ad, ks = wslot(k // 2), k % 2
        reg = (VRD, VRD + 4, 196)[ad // 65536]
        return ['ds_read_b64_tr_b16 %s, v%d offset:%d' % (vr(WF4 + 4 * n + 2 * r, 2), reg + n % 4, ad % 65536 + (n // 4) * 8192 + (32 * ks + 16 * r) * 128) for r in range(2)]
    PK = 112
    def packs(accf):
        L = []
        for q in (1, 0):
            for n in range(8):
                dst = (accf(0, 1) if q else PK) + 2 * n
                L += ['v_cvt_pk_bf16_f32 v%d, v%d, v%d' % (dst + h, accf(n, q) + 2 * h, accf(n, q) + 2 * h + 1) for h in range(2)]
        return L
    def sends(accf, tag):
        return [(tag, 'buffer_store_dwordx4 %s, v%d, %s, s%d offen offset:%d %s' % (vr((accf(0, 1) if q else PK) + 4 * j, 4), V_LANE16, sr(WS, 4), (sS0, sS1)[q], j * 1024, WT))
                for q in (1, 0) for j in range(4)]
    def recvs(dst, tag):
        return [(tag, 'buffer_load_dwordx4 %s, v%d, %s, s%d offen offset:%d' % (vr(dst + 16 * src_ + 4 * j, 4), V_LANE16, sr(WS, 4), (sR0, sR1)[src_], j * 1024))
                for j in range(4) for src_ in range(2)]
    def unp_add(B, dst, n, T):
        L = []
        for src_ in range(2):
            for h in range(2):
                r = dst + 16 * src_ + 2 * n + h
                L += ['v_lshlrev_b32 v%d, 16, v%d' % (T + 2 * h, r), 'v_and_b32 v%d, s65, v%d' % (T + 2 * h + 1, r)]
            L += ['v_add_f32 v%d, v%d, v%d' % (B + e, B + e, T + e) for e in range(4)]
        return L
    XR4 = 96
    xl = [('x4', 'buffer_load_dwordx4 %s, v%d, %s, s%d offen offset:%d' % (vr(XR4 + 4 * j, 4), VX, sr(X4, 4), sXO, 1280 * j)) for j in range(4)]
    F = (0, 1); H_ = (0,)
    pfi = pre_items(prefill(0, 0, 0, dyn=True))
    a('s_waitcnt lgkmcnt(%d)' % (D - 4))
    rds = [kread(i, 0) for i in range(D, 16)] + [kread(i, 1) for i in range(D)]
    it = lg_items(16, False) + pfi; it.sort(key=lambda x: (x['hi'], x['lo']))
    pk.run(qk_mf([(1, F, None), (0, F, 1)], 0), rds, it, [], hx, [], None, False)
    a('s_nop 3'); stamp(a, 2, 'p3')
    for st in range(2):
        for qb in range(2):
            for s in max_ops(st, 0, qb, V_T0, V_T1): a(s)
            for e in range(4): a('v_sub_f32 v%d, 0, v%d' % (NEGM + (st * 2 + qb) * 4 + e, V_T0))
    pfi = pre_items(prefill(0, 1, 1, dyn=True))
    rds = [kread(i, 1) for i in range(D, 16)] + [kread(i, 0) for i in range(D)]
    it = lg_items(16, False) + pfi + [dict(lo=16 - D - 1, hi=16 - D - 1, ins='v_xor_b32 v%d, 32768, v%d' % (V_KRD, V_KRD), v=True)]
    it.sort(key=lambda x: (x['hi'], x['lo']))
    pk.run(qk_mf([(1, F, None), (0, F, 0)], 1), rds, it, [(1, 0, F), (0, 0, F)], [], [], (1, 1), False, sub=True)
    a('s_waitcnt vmcnt(0)')
    a(flag_store(76)[1])
    gate(kv_poll, 208, 4, 1, 63)
    stamp(a, 10); cstamp(a, 5); stamp(a, 3, 'p3')
    lA, lA_skip, lA_tail2 = name + '_loopA', name + '_skipA', name + '_tail2A'
    a('s_cmp_eq_u32 s%d, 0' % sI)
    a('s_cbranch_scc1 %s' % lA_tail2)
    a('s_sub_u32 s%d, s%d, 2' % (sCNT, sI))
    a('s_cbranch_scc1 %s' % lA_skip)
    cstamp(a, 3, 'cyb')
    a.raw('.p2align 6')
    a.label(lA)
    qB = (1, F, None); BA = [(1, F), (0, F)]; B_ = [(1, F)]; BAh = [(1, F), (0, H_)]; Bh = [(1, H_)]
    iteration(0, [qB, (0, F, None)], BA, BA, BA)
    iteration(1, [qB, (0, F, None)], BA, BA, BA, loop_ctr=(sCNT, lA))
    cstamp(a, 4, 'cyb')
    a.label(lA_skip)
    stamp(a, 4, 'p3')
    iteration(0, [qB, (0, F, 1)], BA, BA, BA, pf=prefill(0, 0, 0))
    stamp(a, 5, 'p3')
    iteration(1, [qB, (0, H_, 0)], BA, BA, BA, pf=prefill(0, 1, 1))
    a.label(lA_tail2)
    stamp(a, 6, 'p3')
    l7, lBtail2 = name + '_i7', name + '_tail2B'
    a('s_cmp_eq_u32 s%d, 7' % sI)
    a('s_cbranch_scc1 %s' % l7)
    def txt(L): return [x if isinstance(x, str) else x[1] for x in L]
    acts = [a4_load(k) for k in range(16)]
    E1 = txt(xl); E2 = txt(w4_dma(0) + acts[0] + acts[1] + acts[2]); E3 = txt(w4_dma(1) + acts[3] + acts[4] + acts[5])
    E4 = txt(acts[6] + acts[7] + acts[8] + acts[9] + acts[10] + acts[11])
    wt = ['s_lshl_b32 s67, s2, 2', 's_add_u32 s67, s67, s%d' % sW, 's_mul_i32 s68, s67, 46', 'v_min_u32 v72, 45, v0', 'v_add_u32 v72, s68, v72',
          'v_min_u32 v72, 40959, v72', 'v_lshlrev_b32 v72, 7, v72', 'global_load_dword v63, v72, s[14:15]',
          's_mul_i32 s68, s67, 20', 'v_min_u32 v73, 19, v0', 'v_add_u32 v73, s68, v73', 'v_min_u32 v73, 17279, v73', 'v_lshlrev_b32 v73, 7, v73',
          'global_load_dword v63, v73, s[22:23]']
    iteration(0, [qB], BAh, BA, BA, post_bar=(() if 'w' in MX else wt))
    stamp(a, 7, 'p3')
    iteration(1, [qB], B_, BAh, BAh, anyw=grp4 + [h_poll], vx=(0 if 'w' in MX else 2))
    stamp(a, 8, 'p3')
    epilogue(0)
    stamp(a, 9, 'p3')
    a('s_waitcnt vmcnt(8)')
    gate(h_poll, 192, 4, 1, 63)
    lB = name + '_loopB'
    a('s_lshl_b32 s%d, s%d, 1' % (sCNT, sI))
    a('s_sub_u32 s%d, 12, s%d' % (sCNT, sCNT))
    cstamp(a, 5, 'cyb'); stamp(a, 10, 'p3')
    a.raw('.p2align 6')
    a.label(lB)
    iteration(0, [qB], B_, B_, B_)
    iteration(1, [qB], B_, B_, B_, loop_ctr=(sCNT, lB))
    cstamp(a, 6, 'cyb'); stamp(a, 11, 'p3')
    iteration(0, [(1, F, 1)], B_, B_, B_, dk=False, mid=E1, post_bar=E2, pf=prefill(1, 0, 0))
    stamp(a, 12, 'p3')
    iteration(1, [(1, H_, 0)], B_, B_, B_, dk=False, nxt='v', mid=E3, post_bar=E4, pf=prefill(1, 1, 1), vx=sum(1 for s_ in E2 if s_.startswith('buffer_')) + sum(1 for s_ in E1 if s_.startswith('buffer_')))
    a('s_branch %s' % lBtail2)
    a.label(l7)
    iteration(0, [(1, F, 1)], BAh, BA, BA, dk=False, pf=prefill(1, 0, 0))
    iteration(1, [(1, H_, 0)], B_, BAh, BAh, dk=False, nxt='v', anyw=grp4 + [h_poll], pf=prefill(1, 1, 1), anylo=10)
    epilogue(0)
    a('s_waitcnt vmcnt(8)')
    gate(h_poll, 192, 4, 1, 63)
    for s_ in E2 + E3 + E4 + E1: a(s_)
    a.label(lBtail2)
    stamp(a, 11); cstamp(a, 6); stamp(a, 13, 'p3')
    vm.n = 0; ids = {}
    for k in range(12): ids[('a4', k)] = -100
    ids[('w4', 0)] = ids[('w4', 1)] = -100
    e1 = [flag_store(77)[1]] + [issue(it) for it in w4_dma(2) + w4_dma(3)]
    iteration(0, None, Bh, B_, B_, dk=False, dv=False, nxt='v', post_bar=e1)
    stamp(a, 14, 'p3')
    e2 = w4_dma(4) + acts[12] + acts[13] + w4_dma(5) + acts[14]
    iteration(1, None, [], Bh, Bh, dk=False, dv=False, nxt=None, post_bar=[issue(it) for it in e2])
    stamp(a, 12); stamp(a, 15, 'p3')
    epilogue(1)
    stamp(a, 16, 'p3')
    notile = name + '_notile'
    a('s_cmp_eq_u32 s%d, 0' % sVAL)
    a('s_cbranch_scc1 %s' % notile)
    a('s_barrier')
    for n in range(8):
        for s_ in w4_read(0, n): a(s_)
    stamp(a, 13)
    def rnd_l(r0, r1, t):
        return ['v_cvt_pk_bf16_f32 v%d, v%d, v%d' % (t, r0, r1), 'v_lshlrev_b32 v%d, 16, v%d' % (r0, t), 'v_and_b32 v%d, s65, v%d' % (r1, t)]
    def rnd(r0, r1, t):
        for s_ in rnd_l(r0, r1, t): a(s_)
    RBv = accB(0, 1)
    def gate_calc(n):
        B = accB(n, 0); T = 40 + 4 * (n % 2); L = unp_add(B, RBv, n, T)
        for h in range(2): L += rnd_l(B + 2 * h, B + 2 * h + 1, T)
        L += ['v_mul_f32 v%d, s64, v%d' % (T + e, B + e) for e in range(4)]
        L += ['v_exp_f32 v%d, v%d' % (T + e, T + e) for e in range(4)]
        L += ['v_add_f32 v%d, 1.0, v%d' % (T + e, T + e) for e in range(4)]
        L += ['v_rcp_f32 v%d, v%d' % (T + e, T + e) for e in range(4)]
        L += ['v_mul_f32 v%d, v%d, v%d' % (B + e, B + e, T + e) for e in range(4)]
        for h in range(2): L += rnd_l(B + 2 * h, B + 2 * h + 1, T)
        return L
    def x_unpack():
        L = []
        for n in range(8):
            for h in range(2):
                x = XR4 + 2 * n + h; o = accB(n, 1) + 2 * h
                L += ['v_lshlrev_b32 v%d, 16, v%d' % (o, x), 'v_and_b32 v%d, s65, v%d' % (o + 1, x)]
        return L
    a('s_mov_b32 s64, %s' % f2u(-math.log2(math.e)))
    a('s_mov_b32 s65, 0xffff0000')
    pend = w4_dma(6) + w4_dma(7) + w4_dma(8) + w4_dma(9)
    slowq = []
    valq = []
    nxt_a = LA4
    KG = 12; KCF = 4; PDL = 5
    KS0, KFL, KBP, KRC = ND4 + 2, 30, 33, 48
    rbl = recvs(RBv, 'rb')
    for k in range(NK):
        assert not any(x[0] == ('a4', k) for x in pend if not isinstance(x, str))
        need = ids[('a4', k)]
        if k == KCF: need = max(need, ids['ctx'])
        if k == KG: need = max(need, ids['cp'])
        if k in (KFL, KRC): assert not slowq and not any(x[0] in ('sb', 'rb', 'x4') for x in pend if not isinstance(x, str))
        if k == KFL: need = max(need, ids['sb'])
        if k == KBP + PDL: need = max(need, ids['bp'])
        if k == KRC: need = max(need, ids['rb'])
        a('s_waitcnt vmcnt(%d) lgkmcnt(12)' % min(63, vm.cnt(need)))
        if k == KCF: pend = [flag_store(78)] + pend
        if k == KG - 3: pend = [('cp', c_poll)] + pend
        if k == KG: gate(c_poll, 24, 4, 1, 63)
        if k == KS0 - 1: valq += packs(accB)
        if k == KS0:
            assert not valq
            sl = sends(accB, 'sb'); slowq += [x for p_ in zip(sl[:4], sl[4:]) for x in p_]
        if k == KFL:
            pend = [flag_store(56), 's_add_u32 s56, s56, 512', 's_add_u32 s%d, s%d, 32768' % (sS0, sS0), 's_add_u32 s%d, s%d, 32768' % (sS1, sS1)] + pend
        if k == KBP: pend = [('bp', b_poll)] + pend
        if k == KBP + PDL:
            gate(b_poll, 24, 1, 1, 63)
            slowq += rbl
        if k == KRC:
            pend += ['s_add_u32 s%d, s%d, 32768' % (sR0, sR0), 's_add_u32 s%d, s%d, 32768' % (sR1, sR1)]
            for n in range(8): valq += gate_calc(n)
            valq += x_unpack()
        newa = []
        lim = min(NK, k + LA4 + 1) if k >= KG else ND4
        while nxt_a < min(lim, k + LA4 + 1) and len(newa) < 6:
            newa += a4_load(nxt_a); nxt_a += 1
        pend = newa + slowq[:2] + pend; slowq = slowq[2:]
        accf = accB if k < ND4 else accS
        for n in range(8):
            if n % 2 == 0 and n > 0: a('s_waitcnt lgkmcnt(%d)' % (12 if k < NK - 1 else 2 * (6 - n)))
            for q in range(2):
                d = vr(accf(n, q), 4)
                a('%s %s, %s, %s, %s' % (MF16, d, vr(WF4 + 4 * n, 4), ar(act4(k, q), 4), '0' if k in (0, ND4) else d))
                if q == 0:
                    while pend and pend[0] == 's_nop 0': pend.pop(0)
                    if pend: a(issue(pend.pop(0)))
                    if pend and isinstance(pend[0], str) and pend[0] != 's_nop 0': a(pend.pop(0))
                    for _ in range(4):
                        if valq: a(valq.pop(0))
            if k + 1 < NK:
                if n == 0 and k % 4 == 3:
                    st = k // 2
                    key = ('w4', min(st + 2, NK // 2 - 1))
                    assert not any(x[0] == key for x in pend if not isinstance(x, str))
                    a('s_waitcnt vmcnt(%d) lgkmcnt(0)' % min(63, vm.cnt(ids[key])))
                    a('s_barrier')
                    for s2_ in (st + 7, st + 8):
                        if s2_ < NK // 2 and st >= 3: pend = pend + w4_dma(s2_)
                for s_ in w4_read(k + 1, n): a(s_)
        if k == ND4 - 1: stamp(a, 14); cstamp(a, 7)
        if k % 4 == 1: stamp(a, 1 + k // 4, 'p4')
        if k == ND4 + 39:
            assert not pend
            a('s_cmp_eq_u32 s%d, 0' % sRO)
            a('s_cbranch_scc1 %s_p4done' % name)
    assert not pend and not valq
    a.label(name + '_p4done')
    stamp(a, 15); cstamp(a, 8)
    a('s_nop 7')
    stamp(a, 1, 'fin')
    pl = packs(accS); sl = sends(accS, 'ss')
    for j in range(8):
        for s_ in pl[4 * j:4 * j + 4]: a(s_)
        a(sl[j][1])
    stamp(a, 2, 'fin')
    a('s_waitcnt vmcnt(0)')
    a(flag_store(56)[1])
    stamp(a, 4, 'fin')
    lfin = name + '_fin'
    a('s_cmp_lg_u32 s%d, 0' % sRO)
    a('s_cbranch_scc1 %s' % lfin)
    stamp(a, 16)
    stamp_flush(a, 17)
    a('s_endpgm')
    a.label(lfin)
    a(s_poll)
    a('s_waitcnt vmcnt(0)')
    stamp(a, 5, 'fin')
    gate(s_poll, 24, 1, 1, 63)
    stamp(a, 6, 'fin')
    RS = 64
    for it in recvs(RS, 'rs'): a(it[1])
    for n in range(8):
        if n % 2 == 0: a('s_waitcnt vmcnt(%d)' % (6 - n))
        if n in (0, 7): stamp(a, 7 + n // 7, 'fin')
        S = accS(n, 0); T = 96 + 2 * n
        for s_ in unp_add(S, RS, n, 40): a(s_)
        for h in range(2): rnd(S + 2 * h, S + 2 * h + 1, 56)
        for e in range(4): a('v_mul_f32 v%d, v%d, v%d' % (S + e, S + e, accB(n, 0) + e))
        for h in range(2): a('v_cvt_pk_bf16_f32 v%d, v%d, v%d' % (T + h, S + 2 * h, S + 2 * h + 1))
        a('ds_write_b64 v21, %s offset:%d' % (vr(T, 2), 32768 + 32 * n))
    for j in range(4): a('ds_read_b128 %s, v23 offset:%d' % (vr(64 + 4 * j, 4), 32768 + 272 * j))
    for j in range(4):
        a('s_waitcnt lgkmcnt(%d)' % (3 - j))
        X_ = accB(0, 1) + 8 * j
        for e in range(4):
            a('v_lshlrev_b32 v40, 16, v%d' % (64 + 4 * j + e)); a('v_and_b32 v41, s65, v%d' % (64 + 4 * j + e))
            a('v_add_f32 v40, v40, v%d' % (X_ + 2 * e)); a('v_add_f32 v41, v41, v%d' % (X_ + 2 * e + 1))
            a('v_cvt_pk_bf16_f32 v%d, v40, v41' % (80 + 4 * j + e))
        a('buffer_store_dwordx4 %s, v%d, %s, s%d offen offset:%d %s' % (vr(80 + 4 * j, 4), VX, sr(OUT, 4), sXO, 1280 * j, OUTF))
    stamp(a, 16); stamp(a, 9, 'fin')
    stamp_flush(a, 17)
    a('s_endpgm')
    a.label(notile)
    a('s_waitcnt vmcnt(0)')
    a(flag_store(78)[1])
    a.label(end)
    a('s_endpgm')
    for slow, ok, load_ins, chk, ts in slow_paths:
        a.label(slow)
        a('s_mov_b32 s%d, 0x8000' % ts)
        lp = a.newlabel(name + '_sp')
        a.label(lp)
        a('s_sleep 1')
        a(load_ins)
        a('s_waitcnt vmcnt(0)')
        for s in chk: a(s)
        a('s_nop 1')
        a('s_cbranch_vccz %s' % ok)
        a('s_sub_u32 s%d, s%d, 1' % (ts, ts))
        a('s_cbranch_scc0 %s' % lp)
        a('s_branch %s' % ok)
    for stub, back, pc, ex in rare_sites:
        a.label(stub)
        for st, qbs in sorted(ex):
            a('s_mov_b32 s69, %s' % ('1.0' if 1 in qbs else '0'))
            a('s_call_b64 s[100:101], %s_rare%d%d' % (name, pc, st))
        a('s_branch %s' % back)
    for pc in range(2):
        for st in range(2):
            a.label('%s_rare%d%d' % (name, pc, st))
            a('s_nop 7')
            for qb in range(2):
                for s in max_ops(st, pc, qb, V_T0, V_T1): a(s)
                a('v_max_f32 v%d, 0, v%d' % (V_T0, V_T0))
                if qb == 1: a('v_mul_f32 v%d, s69, v%d' % (V_T0, V_T0))
                a('v_exp_f32 v%d, -v%d' % (V_T1, V_T0))
                for e in range(4): a('v_sub_f32 v%d, v%d, v%d' % (NEGM + (st * 2 + qb) * 4 + e, NEGM + (st * 2 + qb) * 4 + e, V_T0))
                for pp in range(2):
                    for kb in range(4):
                        for r in range(4):
                            x = SB[st][pp] + (kb * 2 + qb) * 4 + r
                            a('v_sub_f32 v%d, v%d, v%d' % (x, x, V_T0))
                a('v_mul_f32 v%d, v%d, v%d' % (V_L + st * 2 + qb, V_L + st * 2 + qb, V_T1))
                for db in range(0, 8, 2):
                    regs = [A_O[st] + ((db + h) * 2 + qb) * 4 + e for h in range(2) for e in range(4)]
                    for e in range(8): a('v_accvgpr_read_b32 v%d, a%d' % (TMP + e, regs[e]))
                    for e in range(8): a('v_mul_f32 v%d, v%d, v%d' % (TMP + e, TMP + e, V_T1))
                    for e in range(8): a('v_accvgpr_write_b32 a%d, v%d' % (regs[e], TMP + e))
            for s in exp_ops(st, pc): a(s)
            if st == 1:
                for k, (s, _, _) in enumerate(exp_seq(1, 1 - pc)[:EARLY]): a('v_exp_f32 v%d, v%d' % (TMP + k, s))
            a('s_nop 7')
            a('s_setpc_b64 s[100:101]')
    a.label(name + '_codeend')
    if os.environ.get('PADEND'): a.raw('.fill 8192, 4, 0xBF810000')
    kernel_desc(a, name, 512, 256)
    return a
```

```python
from common import *
import common
import math, copy, re
import k2 as K2
from k2 import VM, Packer, exp_seq, exp_ops, max_ops, EARLY
from k2 import V_LANE16, V_LANE16V, V_KRD, V_VRD, V_T0, V_T1, V_L, TRI, NEGM, LT, TMP, SB, PB, A_O, A_Q, A_RING, V_ONES, D, R, THR, BIG

OUTF = os.environ.get('OUTF', 'sc0 sc1')
WT = 'sc0 sc1'
WS_FLG = 0x7000000
FK, FH, FC, FL, FE = WS_FLG, WS_FLG + 4096, WS_FLG + 8192, WS_FLG + 16384, WS_FLG + 20480
PTR = dict(x=4, ckv=6, wq=8, wuk=10, wuv=12, wo=14, wg=18, wu=20, wd=22, out=24, dbg=26, ws=28)
WS, R1, R2, R3, R4, R5 = 32, 36, 40, 44, 48, 52
sW, sH, sI = 30, 31, 3
V_ONE, V_1 = 60, 61
V_PA, V_PD = 62, 24

SMODE = os.environ.get('SMODE', 'all')
def stamp(a, i, mode='all'):
    if not DIAG: return
    if mode != SMODE and i != 0: return
    a('s_memrealtime s[98:99]'); a('s_waitcnt lgkmcnt(0)'); a('s_mov_b32 s%d, s98' % (80 + i))
def cstamp(a, i, mode='cyc'):
    if not DIAG or mode != SMODE: return
    a('s_memrealtime s[98:99]'); a('s_waitcnt lgkmcnt(0)'); a('s_mov_b32 s%d, s98' % (80 + i + 8))
    a('s_memtime s[98:99]'); a('s_waitcnt lgkmcnt(0)'); a('s_mov_b32 s%d, s98' % (80 + i))
def stamp_flush(a, n):
    if not DIAG: return
    if os.environ.get('DBGOUT'):
        a('s_load_dwordx2 s[36:37], s[0:1], 88')
        a('s_mov_b32 s38, 256'); a('s_mov_b32 s39, 0x00020000')
        a('s_lshl_b32 s98, s2, 2'); a('s_add_u32 s98, s98, s%d' % sW)
        a('s_cmp_eq_u32 s98, %d' % (4 * int(os.environ['DBGOUT'])))
        a('s_cselect_b32 s98, 0, 0x1000')
        a('s_waitcnt lgkmcnt(0)')
        a('v_mov_b32 v0, 0')
        for i in range(1, n):
            a('s_sub_u32 s99, s%d, s80' % (80 + i))
            a('v_mov_b32 v1, s99')
            a('buffer_store_dword v1, v0, s[36:39], s98 offen offset:%d' % (4 * (i - 1)))
            a('s_nop 1')
        return
    a('s_lshl_b32 s98, s2, 2'); a('s_add_u32 s98, s98, s%d' % sW); a('s_lshl_b32 s98, s98, 7')
    a('s_add_u32 s98, s98, 0x%x' % WS_STAMP)
    a('v_mov_b32 v0, 0')
    for i in range(n):
        a('v_mov_b32 v1, s%d' % (80 + i))
        a('buffer_store_dword v1, v0, %s, s98 offen offset:%d' % (sr(WS, 4), 4 * i))
        a('s_nop 1')

def srd(name, r, off=0, size=None):
    p = PTR[name]
    L = []
    if off:
        L += ['s_add_u32 s%d, s%d, 0x%x' % (r, p, off), 's_addc_u32 s%d, s%d, 0' % (r + 1, p + 1)]
    else:
        L += ['s_mov_b32 s%d, s%d' % (r, p), 's_mov_b32 s%d, s%d' % (r + 1, p + 1)]
    L += ['s_mov_b32 s%d, 0x%x' % (r + 2, SIZE[name] if size is None else size), 's_mov_b32 s%d, 0x00020000' % (r + 3)]
    return L

def gen_mega(a, name):
    kernel_begin(a, name)
    end = name + '_end'
    slow_paths = []
    def gate(load_ins, dreg, n, want, tmp_s):
        def chk():
            L = ['v_xor_b32 v%d, v%d, v%d' % (dreg + e, dreg + e, V_1) for e in range(n)]
            if n >= 3: L += ['v_or3_b32 v%d, v%d, v%d, v%d' % (dreg, dreg, dreg + 1, dreg + 2)]
            if n == 4: L += ['v_or_b32 v%d, v%d, v%d' % (dreg, dreg, dreg + 3)]
            L += ['v_cmp_ne_u32 vcc, 0, v%d' % dreg]
            return L
        slow, ok = a.newlabel(name + '_sl'), a.newlabel(name + '_ok')
        for s in chk(): a(s)
        a('s_nop 1')
        a('s_cbranch_vccnz %s' % slow)
        a.label(ok)
        slow_paths.append((slow, ok, load_ins, chk(), tmp_s))

    a('s_cmp_ge_u32 s2, 256')
    a('s_cbranch_scc1 %s' % end)
    stamp(a, 0)
    a('s_load_dwordx16 s[4:19], s[0:1], 0')
    a('s_load_dwordx8 s[20:27], s[0:1], 64')
    a('s_load_dwordx2 s[28:29], s[0:1], 96')
    a('v_lshrrev_b32 v1, 6, v0')
    a('v_and_b32 v0, 63, v0')
    a('v_readfirstlane_b32 s%d, v1' % sW)
    a('s_and_b32 s31, s2, 7')
    a('s_lshl_b32 s31, s31, 2')
    a('s_lshr_b32 s61, s2, 3')
    a('s_and_b32 s61, s61, 3')
    a('s_add_u32 s31, s31, s61')
    a('s_lshr_b32 s3, s2, 5')
    CKV, WUK, WUV, X, DBG = R1, R2, R3, R4, R5
    VA, VW = 8, 12
    a('v_lshrrev_b32 v6, 3, v0')
    a('v_lshlrev_b32 v6, 10, v6')
    a('v_lshrrev_b32 v7, 4, v0')
    a('v_and_b32 v12, 7, v0')
    a('v_xor_b32 v12, v12, v7')
    a('v_xor_b32 v13, 4, v12')
    a('v_lshl_add_u32 v12, v12, 4, v6')
    a('v_lshl_add_u32 v13, v13, 4, v6')
    for j in range(4): a('v_add_u32 v%d, %d, v%d' % (VA + j, j * (8192 - 1024), 12 + (j & 1)))
    a('v_bfe_u32 v16, v0, 1, 3')
    a('v_xor_b32 v16, v16, v7')
    a('v_xor_b32 v17, 4, v16')
    a('v_and_b32 v18, 1, v0')
    a('v_lshlrev_b32 v18, 4, v18')
    a('v_lshl_add_u32 v18, v7, 13, v18')
    a('v_lshl_add_u32 v16, v16, 5, v18')
    a('v_lshl_add_u32 v17, v17, 5, v18')
    for j in range(4): a('v_add_u32 v%d, %d, v%d' % (VW + j, j * (32768 - 1024), 16 + (j >> 1)))
    sA, sWo, sLA, sLW, sA2 = 56, 57, 58, 59, 60
    a('s_lshl_b32 s56, s%d, 2' % sI)
    a('s_add_u32 s56, s56, s%d' % sW)
    a('s_lshl_b32 s56, s56, 16')
    a('s_lshl_b32 s57, s%d, 17' % sW)
    a('s_lshl_b32 s58, s%d, 8' % sH)
    a('s_add_u32 s57, s57, s58')
    a('s_lshl_b32 s58, s%d, 13' % sW)
    a('s_lshl_b32 s59, s%d, 12' % sW)
    a('s_add_u32 s59, s59, 65536')
    a('v_lshrrev_b32 v2, 5, v0')
    a('v_and_b32 v3, 31, v0')
    a('s_lshl_b32 s61, s2, 2')
    a('s_add_u32 s61, s61, s%d' % sW)
    a('s_lshl_b32 s61, s61, 1')
    a('v_add_u32 v4, s61, v2')
    a('v_mul_u32_u24 v5, 1280, v4')
    a('v_lshl_add_u32 v5, v3, 3, v5')
    a('v_lshlrev_b32 v%d, 4, v0' % V_LANE16)
    vm = VM(); ids = {}
    def issue(it):
        if isinstance(it, str): return it
        ids[it[0]] = vm.op()
        return it[1]
    def p1_dma(st):
        slot = st & 1; t = ('p1', st)
        L = ['s_add_u32 m0, s%d, %d' % (sLA, slot * 32768), 's_add_u32 s%d, s%d, 32768' % (sA2, sA)]
        L += [(t, 'buffer_load_dwordx4 v%d, %s, s%d offen offset:%d lds' % (VA + j, sr(CKV, 4), sA, 1024 * j)) for j in range(4)]
        L += ['s_add_u32 m0, s%d, %d' % (sLW, slot * 32768), 's_add_u32 s%d, s%d, 128' % (sA, sA)]
        L += [(t, 'buffer_load_dwordx4 v%d, %s, s%d offen offset:%d lds' % (VW + j, sr(WUK, 4), sWo, 1024 * j)) for j in range(4)]
        L += ['s_add_u32 m0, s%d, %d' % (sLA, slot * 32768 + 4096), 's_nop 0']
        L += [(t, 'buffer_load_dwordx4 v%d, %s, s%d offen offset:%d lds' % (VA + j, sr(CKV, 4), sA2, 1024 * j)) for j in range(4)]
        L += ['s_add_u32 m0, s%d, %d' % (sLW, slot * 32768 + 16384), 's_nop 0']
        L += [(t, 'buffer_load_dwordx4 v%d, %s, s%d offen offset:%d lds' % (VW + j, sr(WUV, 4), sWo, 1024 * j)) for j in range(4)]
        L += ['s_add_u32 s%d, s%d, %d' % (sWo, sWo, 64 * 8192)]
        return L
    stamp(a, 1, 'st')
    a('s_waitcnt lgkmcnt(0)')
    for n_, r_ in (('x', X), ('ckv', CKV), ('wuk', WUK), ('wuv', WUV), ('ws', WS)):
        for s in srd(n_, r_): a(s)
    XR = 192
    a('v_mov_b32 v52, 0')
    a('s_mov_b32 s79, 0x%x' % FE)
    a(issue(('ep', 'buffer_load_dword v%d, v52, %s, s79 offen %s' % (V_1, sr(WS, 4), WT))))
    xld = [('x', 'buffer_load_dwordx2 %s, v5, %s, 0 offen offset:%d' % (vr(XR + 2 * j, 2), sr(X, 4), 256 * j)) for j in range(5)]
    MX0 = os.environ.get('MX', '')
    if 'k' in MX0:
        a('v_and_b32 v20, 15, v0'); a('v_lshlrev_b32 v20, 7, v20'); a('s_lshl_b32 s62, s61, 10')
        a(issue(('pf', 'buffer_load_dword v240, v20, %s, s62 offen' % sr(CKV, 4))))
    if 'l' not in MX0:
        for it in xld: a(issue(it))
    PFB = False
    def weave(start, items):
        body = a.lines[start:]; del a.lines[start:]
        G = []
        for l in body:
            t = l.strip()
            if G and (t.startswith(('s_cselect', 's_addc', 's_subb')) or t.endswith(':') or G[-1][-1].strip().endswith(':')): G[-1].append(l)
            else: G.append([l])
        D_ = []; cur = []
        for s in items:
            cur.append(s)
            if s.startswith(('buffer_', 'global_')): D_.append(cur); cur = []
        if cur: D_[-1] += cur
        for j, d in enumerate(D_):
            for s in d: a(s)
            for g in G[(j * len(G)) // len(D_):((j + 1) * len(G)) // len(D_)]: a.lines.extend(g)
    s0_items = [issue(it) for it in p1_dma(0)]
    W0 = len(a.lines)
    a('s_lshr_b32 s61, s2, 3')
    a('s_lshl_b32 s61, s61, 2')
    a('s_add_u32 s61, s61, s%d' % sW)
    TC, TW, TX = 48, 49, 50
    a('v_bfe_u32 v20, v0, 1, 4')
    a('v_lshlrev_b32 v20, 10, v20')
    a('v_and_b32 v21, 1, v0')
    a('v_lshl_add_u32 v20, v21, 7, v20')
    a('s_lshl_b32 s62, s61, 14')
    a('v_add_u32 v%d, s62, v20' % TC)
    a('v_and_b32 v20, 7, v0')
    a('v_lshlrev_b32 v20, 7, v20')
    a('s_lshl_b32 s62, s61, 13')
    a('s_and_b32 s63, s2, 7')
    a('s_lshl_b32 s63, s63, 10')
    a('s_add_u32 s62, s62, s63')
    a('v_add_u32 v%d, s62, v20' % TW)
    def pf_chunk(c):
        if PFB: return []
        return ['s_mov_b32 s16, %d' % ((c + 1) * 128 * 8192),
                ('pf', 'buffer_load_dword v240, v%d, %s, 0 offen offset:%d' % (TC, sr(CKV, 4), 256 * (c + 1))),
                ('pf', 'buffer_load_dword v241, v%d, %s, s16 offen' % (TW, sr(WUK, 4))),
                ('pf', 'buffer_load_dword v242, v%d, %s, s16 offen' % (TW, sr(WUV, 4)))]
    a('s_getpc_b64 s[100:101]')
    a.label(name + '_pc')
    a('s_sub_u32 s100, s100, %s_pc-%s' % (name, name))
    a('s_subb_u32 s101, s101, 0')
    a('v_and_b32 v20, 7, v0')
    a('v_lshlrev_b32 v20, 7, v20')
    a('s_lshl_b32 s62, s61, 10')
    a('v_add_u32 v20, s62, v20')
    a('v_min_u32 v55, %s_codeend-%s-4, v20' % (name, name))
    a('s_min_u32 s62, s61, 79'); a('s_lshl_b32 s62, s62, 16'); a('v_mov_b32 v56, s62')
    a('s_min_u32 s62, s61, 33'); a('s_lshl_b32 s62, s62, 16'); a('v_mov_b32 v57, s62')
    TQ, TG = 53, 54
    a('v_min_u32 v20, 39, v0')
    a('v_lshrrev_b32 v21, 3, v20')
    a('s_mul_i32 s62, s61, 5')
    a('v_add_u32 v21, s62, v21')
    a('v_and_b32 v20, 7, v20')
    a('v_lshlrev_b32 v20, 7, v20')
    a('v_lshl_add_u32 v20, v21, 13, v20')
    a('v_add_u32 v%d, s63, v20' % TQ)
    a('v_min_u32 v20, 19, v0')
    a('v_lshrrev_b32 v21, 2, v20')
    a('v_add_u32 v21, s62, v21')
    a('v_mul_u32_u24 v21, 3456, v21')
    a('s_and_b32 s63, s2, 7')
    a('s_lshl_b32 s63, s63, 2')
    a('s_mul_i32 s64, s63, 37'); a('s_lshr_b32 s64, s64, 8')
    a('s_sub_u32 s63, s63, s64')
    a('v_and_b32 v20, 3, v20')
    a('v_add_u32 v20, s63, v20')
    a('v_min_u32 v20, 26, v20')
    a('v_lshl_add_u32 v%d, v20, 7, v21' % TG)
    a('s_mul_i32 s62, s61, 20480')
    a('v_and_b32 v20, 31, v0')
    a('v_lshlrev_b32 v20, 7, v20')
    a('v_add_u32 v%d, s62, v20' % TX)
    def xn_touch(j):
        return ['s_mov_b32 s16, %d' % (4096 * j), ('pf', 'buffer_load_dword v243, v%d, %s, s16 offen' % (TX, sr(WS, 4)))]
    RA, RW = 16, 18
    a('s_lshr_b32 s61, s%d, 1' % sW)
    a('s_lshl_b32 s61, s61, 14')
    a('v_bfe_u32 v20, v0, 1, 3')
    a('v_xor_b32 v20, v20, v7')
    a('v_and_b32 v21, 15, v0')
    a('v_lshlrev_b32 v21, 7, v21')
    a('v_add_u32 v21, s61, v21')
    a('v_lshl_add_u32 v%d, v20, 4, v21' % RA)
    a('v_xor_b32 v20, 4, v20')
    a('v_lshl_add_u32 v%d, v20, 4, v21' % (RA + 1))
    a('v_bfe_u32 v22, v0, 2, 2')
    a('v_lshl_add_u32 v23, v7, 3, v22')
    a('v_lshlrev_b32 v23, 8, v23')
    a('v_and_b32 v24, 3, v0')
    a('v_lshl_add_u32 v23, v24, 3, v23')
    a('v_add_u32 v23, 65536, v23')
    a('v_bfe_u32 v22, v0, 2, 3')
    a('s_and_b32 s62, s%d, 1' % sW)
    a('s_lshl_b32 s62, s62, 2')
    a('v_xor_b32 v22, s62, v22')
    for nb in range(4):
        a('v_xor_b32 v24, %d, v22' % nb)
        a('v_lshl_add_u32 v%d, v24, 5, v23' % (RW + nb))
    P_XOFF2, P_WOFF, P_WRD = 32, 33, 40
    P_X0, P_X1 = 32, 37
    a('s_sub_u32 s61, 7, s%d' % sW); a('s_mul_i32 s61, s61, 20480'); a('v_add_u32 v%d, s61, v%d' % (P_X0, V_LANE16))
    a('s_mul_i32 s61, s%d, 20480' % sW); a('v_add_u32 v%d, s61, v%d' % (P_X1, V_LANE16))
    a('v_lshrrev_b32 v25, 3, v0')
    a('v_bfe_u32 v26, v0, 1, 2')
    a('v_bfe_u32 v27, v0, 4, 2')
    a('v_xor_b32 v26, v26, v27')
    a('v_lshlrev_b32 v26, 5, v26')
    a('v_and_b32 v27, 1, v0')
    a('v_lshl_add_u32 v26, v27, 4, v26')
    a('v_lshl_add_u32 v%d, v25, 13, v26' % P_WOFF)
    a('v_add_u32 v%d, %d, v%d' % (P_WOFF + 1, 8 * 8192 - 1024, P_WOFF))
    a('v_mul_u32_u24 v25, 3456, v25')
    a('v_add_u32 v%d, v25, v26' % (P_WOFF + 2))
    a('v_add_u32 v%d, %d, v%d' % (P_WOFF + 3, 8 * 3456 - 1024, P_WOFF + 2))
    a('v_lshrrev_b32 v25, 2, v0')
    a('v_lshlrev_b32 v25, 7, v25')
    a('v_and_b32 v26, 3, v0')
    a('v_lshl_add_u32 v25, v26, 3, v25')
    a('v_add_u32 v25, 65536, v25')
    a('v_bfe_u32 v26, v0, 3, 2')
    for c in range(4):
        a('v_xor_b32 v27, %d, v26' % c)
        a('v_lshl_add_u32 v%d, v27, 5, v25' % (P_WRD + c))
        a('v_add_u32 v%d, 65536, v%d' % (P_WRD + 4 + c, P_WRD + c))
    s_w = [64, 65, 66, 67]; s_q = [68, 69]; sLW2, sCT = 70, 71; sQ = [72, 73]
    a('s_mul_i32 s17, s%d, 37' % sH)
    a('s_lshr_b32 s17, s17, 8')
    a('s_sub_u32 s71, s%d, s17' % sH)
    a('s_lshl_b32 s70, s%d, 11' % sW)
    a('s_lshl_b32 s72, s%d, 3' % sI)
    a('s_sub_u32 s73, 120, s72')
    a('s_mul_i32 s68, s72, 20480')
    a('s_mul_i32 s69, s73, 20480')
    assert WS_XN == 0
    a('s_lshl_b32 s64, s%d, 17' % sW)
    a('s_lshl_b32 s65, s%d, 8' % sH)
    a('s_add_u32 s64, s64, s65')
    a('s_add_u32 s65, s64, 128')
    a('s_mul_i32 s66, s%d, %d' % (sW, 16 * 3456))
    a('s_lshl_b32 s67, s%d, 7' % sCT)
    a('s_add_u32 s66, s66, s67')
    a('s_mov_b32 s67, s66')
    a('s_mul_i32 s61, s17, 7')
    a('s_sub_u32 s61, s%d, s61' % sH)
    a('s_cmp_eq_u32 s61, 6')
    a('s_cselect_b32 s74, 0, 0x%x' % SIZE['wg'])
    a('s_cmp_ge_u32 s%d, 27' % sCT)
    a('s_cselect_b32 s74, 0, s74')
    a('s_lshl_b32 s61, s%d, 2' % sW)
    a('s_lshl_b32 s76, s2, 4'); a('s_add_u32 s76, s76, s61')
    a('s_add_u32 s75, s76, 0x%x' % FK)
    a('s_add_u32 s77, s76, 0x%x' % FC)
    a('s_and_b32 s78, s76, 0x1ff')
    a('s_add_u32 s76, s76, 0x%x' % FH)
    a('s_sub_u32 s62, 15, s%d' % sI); a('s_lshl_b32 s62, s62, 9')
    a('s_add_u32 s78, s78, s62'); a('s_add_u32 s78, s78, 0x%x' % FC)
    a('v_cmp_eq_u32 vcc, 0, v0')
    a('v_mov_b32 v25, 0x20000000')
    a('s_lshl_b32 s26, s2, 2'); a('s_add_u32 s26, s26, 0x%x' % FL)
    a('v_cndmask_b32 v%d, v25, 0, vcc' % V_ONE)
    a('s_cmp_eq_u32 s%d, 0' % sW)
    a('s_cselect_b32 s26, s26, 0x20000000')
    a('s_lshl_b32 s27, s2, 2'); a('s_or_b32 s27, s27, s%d' % sW)
    a('s_cmp_eq_u32 s27, 0')
    a('s_cselect_b32 s27, s79, 0x20000000')
    a('s_mov_b32 s79, 0x%x' % FL)
    def flag_store(sreg, val=V_1):
        return ('fl', 'buffer_store_dword v%d, v%d, %s, s%d offen %s' % (val, V_ONE, sr(WS, 4), sreg, WT))
    weave(W0, s0_items)
    W1 = len(a.lines)
    a('s_mov_b32 s61, 0x9e3779b1')
    a('v_mul_lo_u32 v%d, s61, v%d' % (V_1, V_1))
    a('v_add_u32 v%d, 0x7f4a7c15, v%d' % (V_1, V_1))
    import k1
    b = Asm(); k1.ln_part(b, XR, WS, 4, 3)
    ln_lines = [l.strip() for l in b.lines]
    for l in ln_lines[:-20]: a(l)
    a('v_lshrrev_b32 v224, 3, v3')
    a('v_lshlrev_b32 v224, 9, v224')
    a('v_and_b32 v225, 3, v3')
    a('v_lshl_add_u32 v224, v225, 7, v224')
    a('v_and_b32 v225, 7, v4')
    a('v_lshl_add_u32 v224, v225, 4, v224')
    a('v_bfe_u32 v225, v3, 2, 1')
    a('v_lshl_add_u32 v224, v225, 3, v224')
    a('v_add_u32 v224, %d, v224' % (128 * 1024))
    for j in range(5): a('ds_write_b64 v224, %s offset:%d' % (vr(XR + 2 * j, 2), 2048 * j))
    a('s_lshl_b32 s61, s%d, 10' % sW)
    a('s_add_u32 s61, s61, %d' % (128 * 1024))
    a('v_add_u32 v225, s61, v%d' % V_LANE16)
    a('v_lshrrev_b32 v226, 3, v0')
    a('v_lshlrev_b32 v226, 8, v226')
    a('v_and_b32 v227, 7, v0')
    a('v_lshl_add_u32 v226, v227, 4, v226')
    a('s_lshr_b32 s61, s2, 1')
    a('s_mul_i32 s61, s61, 20480')
    a('s_and_b32 s62, s2, 1')
    a('s_lshl_b32 s62, s62, 7')
    a('s_add_u32 s61, s61, s62')
    a('s_lshl_b32 s62, s%d, 11' % sW)
    a('s_add_u32 s61, s61, s62')
    a('s_add_u32 s62, s61, 8192')
    a('s_add_u32 s63, s61, 16384')
    a('s_cmp_lt_u32 s%d, 2' % sW)
    a('s_cselect_b32 s63, s63, 0x20000000')
    lnq = []
    for l in a.lines[W1:]:
        t = l.strip()
        if t.startswith('s_cselect'): lnq[-1] += '\n' + t
        else: lnq.append(t)
    del a.lines[W1:]
    xn_reads = ['ds_read_b128 %s, v225 offset:%d' % (vr(XR + 4 * t, 4), 4096 * t) for t in range(3)]
    xn_stores = [('xn', 'buffer_store_dwordx4 %s, v226, %s, s%d offen %s' % (vr(XR + 4 * t, 4), sr(WS, 4), 61 + t, WT)) for t in range(3)]
    MX = os.environ.get('MX', '')
    if 'x' in MX: xn_stores = []
    if 'p' in MX: xn_stores = [(t, s.replace(WT, '')) for t, s in xn_stores]
    WQ, WG, WU = R1, R2, R3
    WSLOT = [128 * 1024, 64 * 1024, 96 * 1024]
    P_ACCV, P_ACCA, P_WF, P_ACT = 128, 0, 128, 192
    srdm = [WQ, WQ, WG, WU]; stride = [8192, 8192, 3456, 3456]
    def w_dma(st, nm):
        L = []
        for m in range(nm):
            L.append('s_add_u32 m0, s%d, %d' % (sLW2, WSLOT[st % 3] + m * 8192))
            L.append('s_nop 0')
            for j in range(2):
                L.append((('w', st), 'buffer_load_dwordx4 v%d, %s, s%d offen offset:%d lds' % (P_WOFF + 2 * (m // 2) + j, sr(srdm[m], 4), s_w[m], 1024 * j)))
            L.append('s_add_u32 s%d, s%d, %d' % (s_w[m], s_w[m], 64 * stride[m]))
        return L
    def a_load(k):
        base = P_ACT + 16 * (k % 4)
        L = [(('a', k), 'buffer_load_dwordx4 %s, v%d, %s, s%d offen offset:%d' % (ar(base + 4 * qi, 4), (P_X0, P_X1)[qi % 2], sr(WS, 4), s_q[qi // 2], 1024 * (k % 4))) for qi in range(4)]
        if k % 4 == 3: L += ['s_add_u32 s%d, s%d, 4096' % (s, s) for s in s_q]
        return L
    FR = 64
    def reads(slot, ks, fs):
        base = FR + 64 * fs
        def A(i): return ['ds_read_b128 %s, v%d offset:%d' % (vr(base + 4 * i, 4), RA + ks, slot * 32768 + i * 2048)]
        def W(mat, nb): return ['ds_read_b64_tr_b16 %s, v%d offset:%d' % (vr(base + 32 + 16 * mat + 4 * nb + 2 * r, 2), RW + nb,
                                slot * 32768 + mat * 16384 + (32 * ks + 4 * r) * 256) for r in range(2)]
        L = A(0)
        for nb in range(4): L += W(0, nb)
        for nb in range(4): L += W(1, nb)
        for i in range(1, 8): L += A(i)
        return L
    def mfmas(fs, first, rbs=range(8)):
        base = FR + 64 * fs; L = []
        for rb in rbs:
            act = vr(base + 4 * rb, 4)
            for mat in range(2):
                for nb in range(4):
                    w = vr(base + 32 + 16 * mat + 4 * nb, 4)
                    d = ar((rb * 8 + mat * 4 + nb) * 4, 4); c = '0' if first else d
                    L.append('%s %s, %s, %s, %s' % ((MF16, d, w, act, c) if mat == 0 else (MF16, d, act, w, c)))
        return L
    stamp(a, 2); stamp(a, 8, 'st')
    S1L = p1_dma(1); npre = int(os.environ.get('NPRE', 12))
    for it in S1L[:npre]: a(issue(it))
    a('s_waitcnt vmcnt(%d) lgkmcnt(0)' % vm.cnt(ids[('p1', 0)]))
    stamp(a, 9, 'st')
    a('s_barrier')
    stamp(a, 3); stamp(a, 10, 'st')
    for s in reads(0, 0, 0): a(s)
    ln_poll = 'buffer_load_dwordx4 v[244:247], v%d, %s, s79 offen %s' % (V_LANE16, sr(WS, 4), WT)
    NST = 8
    pend = S1L[npre:] + pf_chunk(0) + (xld if 'l' in MX0 else []) + [('pf', 'global_load_dword v249, v55, s[100:101]')]
    NPRE = int(os.environ.get('NPRE', 0))
    P1SP = int(os.environ.get('P1SP', 4))
    LNS = 2 if 'l' in MX0 else 1
    LN0 = 3 if 'l' in MX0 else 0
    for st in range(NST - 1):
        slot = st & 1
        for ks in range(2):
            rd = []
            if ks == 1:
                if st < NST - 1:
                    assert not any(x[0] == ('p1', st + 1) for x in pend if not isinstance(x, str))
                    a('s_waitcnt vmcnt(%d) lgkmcnt(0)' % vm.cnt(max(ids[('p1', st + 1)], ids['lnp'] if st == LNS + 4 else 0))); a('s_barrier')
                    rd = reads(1 - slot, 0, 0)
                    if st == LNS: rd += xn_reads; assert not lnq
                else: a('s_waitcnt lgkmcnt(0)')
                if st + 2 < NST: pend += p1_dma(st + 2)
                if st == LNS + 2: pend = [flag_store(26)] + pend
                if st in (0, 1): pend += pf_chunk(st + 1)
                if st == 2: pend += [('pf', 'global_load_dword v240, v%d, s[8:9]' % TQ)]
                if st == 3: pend += [('pf', 'global_load_dword v241, v%d, s[18:19]' % TG), ('pf', 'global_load_dword v242, v%d, s[20:21]' % TG)]
                if st == LNS + 3: pend += [('lnp', ln_poll)]
                if st == 4 and 'c' in MX: pend += [('pf', 'global_load_dword v249, v55, s[100:101]')]
                if st == 6: pend += w_dma(1, 4)
                if st == LNS + 4:
                    gate(ln_poll, 244, 4, 1, 61)
                    pend += [flag_store(27)]
                    pend += xn_touch(0) + xn_touch(1)
                if st == 6: pend += xn_touch(2) + xn_touch(3) + xn_touch(4)
            else:
                a('s_waitcnt lgkmcnt(0)')
                rd = reads(slot, 1, 1)
                if st == LNS + 1: pend += xn_stores
                if st == 6:
                    pend += srd('wq', WQ) + srd('wg', WG) + srd('wu', WU) + ['s_mov_b32 s%d, s74' % (WG + 2), 's_mov_b32 s%d, s74' % (WU + 2)] + w_dma(0, 4)
            lastv = -10
            for g, m in enumerate(mfmas(ks, st == 0 and ks == 0)):
                a(m)
                if g % 2 == 0 and rd: a(rd.pop(0))
                elif pend and g % 2 == 1:
                    while pend and pend[0] == 's_nop 0': pend.pop(0)
                    if pend and (isinstance(pend[0], str) or g - lastv >= (2 if st < 2 else P1SP)):
                        if not isinstance(pend[0], str): lastv = g
                        a(issue(pend.pop(0)))
                for _ in range(3 if 'l' in MX0 else 2):
                    if lnq and 2 * st + ks >= LN0: a(lnq.pop(0))
            stamp(a, 1 + 2 * st + ks, 'p1')
        if st == 3: stamp(a, 4); cstamp(a, 1)
    def w_read(k, n):
        st, ks = k // 2, k % 2
        off = WSLOT[st % 3] - 65536
        grp = off // 65536; off %= 65536
        m, c = n // 4, n % 4
        return ['ds_read_b64_tr_b16 %s, v%d offset:%d' % (wfr(k, n, r), P_WRD + 4 * grp + c, off + m * 8192 + (32 * ks + 16 * r) * 128) for r in range(2)]
    def wfr(k, n, r=None):
        f, b_ = (vr, 96 + 4 * (n - 8)) if (k >= 16 and n >= 8) else (ar, P_WF + 4 * n)
        return f(b_, 4) if r is None else f(b_ + 2 * r, 2)
    sBASE, sK0, sK1, sT, sC0, sC1, sS1 = 56, 57, 58, 59, 60, 61, 62
    sc = ['s_lshl_b32 s56, s%d, 20' % sH, 's_lshl_b32 s57, s%d, 17' % sI, 's_add_u32 s58, s56, s57', 's_lshr_b32 s57, s%d, 1' % sW, 's_lshl_b32 s57, s57, 16',
          's_add_u32 s58, s58, s57', 's_add_u32 s58, s58, 0x%x' % WS_KV, 's_and_b32 s57, s%d, 1' % sW, 's_lshl_b32 s16, s57, 11', 's_add_u32 s16, s16, s58',
          's_lshl_b32 s17, s57, 12', 's_add_u32 s17, s17, s58', 's_add_u32 s17, s17, 16384',
          's_lshl_b32 s57, s%d, 14' % sW, 'v_add_u32 v26, s57, v%d' % V_LANE16,
          's_lshl_b32 s59, s%d, 12' % sW, 's_add_u32 s56, s56, s59', 's_add_u32 s56, s56, 0x%x' % WS_KV, 's_lshl_b32 s60, s%d, 13' % sW,
          's_add_u32 s60, s60, %d' % (65536 + 32768), 's_add_u32 s61, s60, 16384', 's_add_u32 s62, s56, 32768', 's_add_u32 s57, s56, 65536', 's_add_u32 s58, s57, 32768',
          'v_add_u32 v%d, 16384, v%d' % (V_LANE16V, V_LANE16), 'v_and_b32 v%d, 7, v0' % V_PA, 'v_lshlrev_b32 v%d, 9, v%d' % (V_PA, V_PA),
          's_and_b32 s79, s2, 31', 's_lshl_b32 s79, s79, 4', 's_add_u32 s79, s79, 0x%x' % FK]
    def conv(b0, b1, T, dst):
        return ['v_accvgpr_read_b32 v%d, a%d' % (T + e, b0 * 4 + e) for e in range(4)] + ['v_accvgpr_read_b32 v%d, a%d' % (T + 4 + e, b1 * 4 + e) for e in range(4)] + \
               ['v_cvt_pk_bf16_f32 v%d, v%d, v%d' % (dst + e, T + 2 * e, T + 2 * e + 1) for e in range(4)]
    def store(T, sb, off):
        return ['s_add_u32 s63, s%d, %d' % (sb, off & ~4095),
                ('kv', 'buffer_store_dwordx4 %s, v%d, %s, s63 offen offset:%d %s' % (vr(T, 4), V_LANE16, sr(WS, 4), off & 4095, WT))]
    def jobs(rp):
        J = []
        for rb in (2 * rp, 2 * rp + 1):
            for s in range(2): J.append((rb * 8 + 2 * s, rb * 8 + 2 * s + 1, 16, (rb // 4) * 32768 + ((rb % 4) * 4 + s) * 1024))
        rb = 2 * rp
        for nb in range(4): J.append((rb * 8 + 4 + nb, (rb + 1) * 8 + 4 + nb, 17, (rb // 4) * 32768 + (((rb % 4) // 2) * 8 + nb) * 1024))
        return J
    J1 = jobs(3) + jobs(2); J2 = jobs(0) + jobs(1)
    a('s_waitcnt lgkmcnt(0)')
    rd = reads(1, 1, 1)
    pend += sc
    for g, m in enumerate(mfmas(0, False, (6, 7, 4, 5))):
        a(m)
        if rd: a(rd.pop(0))
        for _ in range(1 if rd else 2):
            while pend and pend[0] == 's_nop 0': pend.pop(0)
            if pend and not (_ == 1 and not isinstance(pend[0], str)): a(issue(pend.pop(0)))
    assert not any(x[0] == ('w', 0) for x in pend if not isinstance(x, str))
    a('s_waitcnt vmcnt(%d) lgkmcnt(0)' % vm.cnt(ids[('w', 0)]))
    a('s_barrier')
    pend += w_dma(2, 4)
    fq = []
    for n_, (b0, b1, sb, off) in enumerate(J1):
        T = 192 + 12 * (n_ % 4)
        fq += conv(b0, b1, T, T + 8) + ['ds_write_b128 v26, %s offset:%d' % (vr(T + 8, 4), 1024 * n_)]
        if n_ >= 8 and n_ < 12: fq += a_load(n_ - 8)
    for n in range(16): fq += w_read(0, n)
    tail = mfmas(1, False, (6, 7, 4, 5)) + mfmas(0, False, (0, 1, 2, 3)) + mfmas(1, False, (0, 1, 2, 3))
    per = -(-len(fq) // (len(tail) - 24))
    for g, m in enumerate(tail):
        a(m)
        if g < 22:
            for _ in range(2):
                while pend and pend[0] == 's_nop 0': pend.pop(0)
                if pend and not (_ == 1 and not isinstance(pend[0], str)): a(issue(pend.pop(0)))
        else:
            assert not pend
            for _ in range(per):
                if fq: a(issue(fq.pop(0)))
    assert not fq
    stamp(a, 5); cstamp(a, 2); stamp(a, 6); cstamp(a, 3)
    cq = []
    for n_, (b0, b1, sb, off) in enumerate(J2): cq += conv(b0, b1, 4 + 8 * (n_ % 2), 64 + 4 * n_)
    kv_sched = {}
    KVEND = int(os.environ.get('KVEND', 14))
    def kstep(n_): return 1 + (n_ * (KVEND - 1)) // 32
    for n_, (b0, b1, sb, off) in enumerate(J2):
        kv_sched.setdefault(kstep(n_), []).extend(store(64 + 4 * n_, sb, off))
        kv_sched.setdefault(kstep(n_) + 1, []).append('ds_read_b128 %s, v26 offset:%d' % (vr(64 + 4 * n_, 4), 1024 * n_))
    for n_, (b0, b1, sb, off) in enumerate(J1):
        kv_sched.setdefault(kstep(16 + n_), []).extend(store(64 + 4 * n_, sb, off))
    kv_poll0 = 'buffer_load_dwordx4 v[64:67], v52, %s, s79 offen %s' % (sr(WS, 4), WT)
    kv_poll = 'buffer_load_dwordx4 v[208:211], v%d, %s, s79 offen %s' % (V_PA, sr(WS, 4), WT)
    def kv_dma(m0expr, voff, ssrc, tag):
        return [m0expr, 's_nop 0'] + [(tag, 'buffer_load_dwordx4 v%d, %s, s%d offen offset:%d lds' % (voff, sr(WS, 4), ssrc, 1024 * j)) for j in range(4)]
    sTHR, sBIG, s2W, sM0, sM1, sDYN, sE0, sE1, sCNT = 64, 65, 66, 67, 68, 69, 70, 71, 63
    halves = []
    for k in range(16): halves += [(k, 0), (k, 1)]
    halves += [(k, 0) for k in range(16, 20)] + [(k, 1) for k in range(16, 20)]
    qe = ['s_mov_b32 s64, %s' % f2u(math.log2(math.e) / math.sqrt(128.0))]
    for qi in range(4):
        for s in range(4):
            r0, r1 = P_ACCV + ((2 * s) * 4 + qi) * 4, P_ACCV + ((2 * s + 1) * 4 + qi) * 4
            qe += ['v_mul_f32 v%d, s64, v%d' % (r + e, r + e) for r in (r0, r1) for e in range(4)]
            qe += ['v_cvt_pk_bf16_f32 v%d, v%d, v%d' % (r + e, r + 2 * e, r + 2 * e + 1) for r in (r0, r1) for e in range(2)]
            qe += ['v_accvgpr_write_b32 a%d, v%d' % (A_Q[qi // 2] + ((qi % 2) * 4 + s) * 4 + 2 * h + e, (r0, r1)[h] + e) for h in range(2) for e in range(2)]
    qe += ['v_and_b32 v5, 15, v0', 'v_lshrrev_b32 v6, 4, v0', 'v_lshlrev_b32 v6, 2, v6', 'v_sub_u32 v5, v5, v6']
    for r in range(4): qe += ['v_cmp_gt_i32 vcc, %d, v5\ns_nop 1\nv_cndmask_b32 v%d, 0, 1.0, vcc' % (r, TRI + r)]
    qe += ['v_mov_b32 v%d, 0x3f803f80' % (V_ONES + e) for e in range(4)] + ['v_mov_b32 v%d, 0' % (NEGM + j) for j in range(16)]
    qe += ['v_mov_b32 v%d, 0' % (V_L + j) for j in range(4)]
    qe += ['v_mov_b32 v%d, v%d' % (V_KRD, V_LANE16), 'v_add_u32 v%d, 65536, v%d' % (V_VRD, V_LANE16)]
    qe += ['s_lshl_b32 s8, s72, 10', 's_lshl_b32 s9, s73, 10', 's_lshl_b32 s10, s%d, 18' % sCT, 's_add_u32 s10, s10, 0x%x' % WS_H,
           's_cmp_eq_u32 s74, 0\ns_cselect_b32 s10, 0x20000000, s10', 's_add_u32 s8, s8, s10', 's_add_u32 s9, s9, s10',
           's_add_u32 s10, s8, %d' % (128 * 1024), 's_add_u32 s11, s9, %d' % (128 * 1024),
           's_sub_u32 s12, 7, s%d' % sW, 's_lshl_b32 s12, s12, 10', 'v_add_u32 v%d, s12, v%d' % (P_X0, V_LANE16),
           's_lshl_b32 s12, s%d, 10' % sW, 'v_add_u32 v%d, s12, v%d' % (P_X1, V_LANE16),
           's_mov_b32 s%d, %s' % (sTHR, f2u(THR)), 's_mov_b32 s%d, %s' % (sBIG, f2u(-BIG)), 's_sub_u32 s%d, 3, s%d' % (s2W, sW),
           's_cmp_eq_u32 s%d, 0\ns_cselect_b32 s%d, s%d, 0' % (sI, sDYN, sBIG)]
    pend = []; vq = cq; vper = 5; gcnt = 0; lastv = -10; P2SP = int(os.environ.get('P2SP', 4))
    for hi_, (k, part) in enumerate(halves):
        st, ks = k // 2, k % 2
        base = P_ACT + 16 * (k % 4)
        if part == 0:
            need = ids[('a', k)]
            if k == KVEND + 1:
                assert not any(x[0] == 'kv' for x in pend if not isinstance(x, str))
                need = max(need, ids['kv'])
            assert not any(x[0] == ('a', k) for x in pend if not isinstance(x, str))
            a('s_waitcnt vmcnt(%d) lgkmcnt(8)' % min(63, vm.cnt(need)))
            pend += kv_sched.get(k, [])
            if k == KVEND + 1: pend += [flag_store(75)]
            if k == 18: pend += [('kvp', kv_poll0)]
            if k == 12 and 'c' in MX: pend += [('pf', 'global_load_dword v27, v55, s[100:101]')]
            if k > 0 and k + 3 < 20: pend = a_load(k + 3) + pend
        elif k == 16:
            a('s_waitcnt vmcnt(%d) lgkmcnt(8)' % vm.cnt(ids['kvp']))
            gate(kv_poll0, 64, 4, 1, 63)
            pend += kv_dma('s_add_u32 m0, s59, 0', V_LANE16, sBASE, 'k0') + kv_dma('s_add_u32 m0, s59, 16384', V_LANE16, sS1, 'k1')
            pend += kv_dma('s_add_u32 m0, s59, 32768', V_LANE16, sK0, 'k2') + kv_dma('s_add_u32 m0, s59, 65536', V_LANE16V, sBASE, 'v0')
            pend += kv_dma('s_add_u32 m0, s59, 49152', V_LANE16, sK1, 'k3') + kv_dma('s_add_u32 m0, s59, %d' % (65536 + 16384), V_LANE16V, sS1, 'v1')
            vq = qe; vper = 3
        else: a('s_waitcnt lgkmcnt(8)')
        for n in range(8 * part, 8 * part + 8):
            if n % 8 == 4: a('s_waitcnt lgkmcnt(%d)' % (8 if k < 19 else 0))
            if k == 0 and n == 8: assert len(vq) <= 96
            if k == 0 and n == 12: assert not vq
            for qi in range(4):
                d = vr(P_ACCV + (n * 4 + qi) * 4, 4) if n < 8 else ar(P_ACCA + ((n - 8) * 4 + qi) * 4, 4)
                a('%s %s, %s, %s, %s' % (MF16, d, wfr(k, n), ar(base + 4 * qi, 4), '0' if k == 0 else d))
                if qi < 3:
                    while pend and pend[0] == 's_nop 0': pend.pop(0)
                    if pend and (qi != 1 or not vq) and (isinstance(pend[0], str) or gcnt - lastv >= P2SP):
                        if not isinstance(pend[0], str): lastv = gcnt
                        a(issue(pend.pop(0)))
                gcnt += 1
                for _ in range(vper if qi < 3 else vper - 2):
                    if vq: a(vq.pop(0))
            if k + 1 < 20:
                if n == 0 and ks == 1:
                    assert not any(x[0] == ('w', st + 1) for x in pend if not isinstance(x, str))
                    a('s_waitcnt vmcnt(%d) lgkmcnt(0)' % min(63, vm.cnt(ids[('w', st + 1)])))
                    a('s_barrier')
                    if st + 3 < 10: pend = pend + w_dma(st + 3, 4)
                for s in w_read(k + 1, n): a(s)
        if part == 1 and k < 16: stamp(a, 1 + k, 'p2a')
        if hi_ >= 24: stamp(a, hi_ - 23, 'p2b')
    assert not pend and not vq
    stamp(a, 7); cstamp(a, 4)
    a('s_waitcnt vmcnt(%d)' % vm.cnt(max(ids['k2'], ids['v0'])))
    stamp(a, 8)
    a('s_barrier')
    hx = []
    for j_ in range(8):
        s, qi = j_ // 4, j_ % 4
        T = 192 + 20 * (j_ % 3)
        for cc in range(2):
            g = P_ACCA + ((2 * s + cc) * 4 + qi) * 4
            hx += ['v_accvgpr_read_b32 v%d, a%d' % (T + 8 * cc + e, g + e) for e in range(4)] + ['v_accvgpr_read_b32 v%d, a%d' % (T + 8 * cc + 4 + e, g + 64 + e) for e in range(4)]
            hx += ['v_mul_f32 v%d, v%d, v%d' % (T + 8 * cc + e, T + 8 * cc + e, T + 8 * cc + 4 + e) for e in range(4)]
            hx += ['v_cvt_pk_bf16_f32 v%d, v%d, v%d' % (T + 16 + 2 * cc + e, T + 8 * cc + 2 * e, T + 8 * cc + 2 * e + 1) for e in range(2)]
        hx.append('buffer_store_dwordx4 %s, v%d, %s, s%d offen %s' % (vr(T + 16, 4), (P_X0, P_X1)[qi % 2], sr(WS, 4), 8 + qi // 2 + 2 * s, WT))
    hx += ['%s %s, %s, %s, 0' % (MFMA, ar(16 * j_, 16), vr(NEGM, 4), vr(NEGM, 4)) for j_ in range(8)]
    hx += [kv_poll]
    def kread(i, p): return 'ds_read_b128 %s, v%d offset:%d' % (ar(A_RING + 4 * (i % R), 4), V_KRD, p * 16384 + i * 1024)
    def vread(i, p): return 'ds_read_b128 %s, v%d offset:%d' % (ar(A_RING + 4 * (i % R), 4), V_VRD, p * 16384 + i * 1024)
    for i in range(D): a(kread(i, 0))
    for s_ in hx[:16]: a(s_)
    hx = hx[16:]
    stamp(a, 9); stamp(a, 1, 'p3')
    def prefill(st, p, tau, dyn=False):
        qb = 1 - tau
        sref = sW if tau == 0 else s2W
        big = sDYN if dyn else sBIG
        out = []
        for kb in range(4):
            S = SB[st][p] + (kb * 2 + qb) * 4
            L = ['s_cmp_eq_u32 s%d, %d' % (sref, kb), 's_cselect_b32 s%d, s%d, 0' % (sM0, big)]
            t = NEGM + (st * 2 + qb) * 4
            if kb > 0:
                L += ['s_cmp_lt_u32 s%d, %d' % (sref, kb), 's_cselect_b32 s%d, s%d, 0' % (sM1, big), 'v_add_f32 v%d, s%d, v%d' % (V_T1, sM1, t)]
                t = V_T1
            L += ['v_fma_f32 v%d, v%d, s%d, v%d' % (S + r, TRI + r, sM0, t) for r in range(4)]
            out.append('\n'.join(L))
        return out
    def qk_mf(sets, p):
        G = []
        for f in range(16):
            kb, ds = f // 4, f % 4; L = []
            for st, qbs, inq in sets:
                for qb in qbs:
                    d = vr(SB[st][p] + (kb * 2 + qb) * 4, 4)
                    c = vr(NEGM + (st * 2 + qb) * 4, 4) if (ds == 0 and inq != qb) else d
                    L.append('%s %s, %s, %s, %s' % (MF16, d, ar(A_RING + 4 * (f % R), 4), ar(A_Q[st] + (qb * 4 + ds) * 4, 4), c))
            G.append(L)
        return G
    def pv_mf(sets, p):
        G = []
        for f in range(16):
            ks, db = f // 8, f % 8; L = []
            for st, qbs in sets:
                for qb in qbs:
                    d = ar(A_O[st] + (db * 2 + qb) * 4, 4)
                    L.append('%s %s, %s, %s, %s' % (MF16, d, ar(A_RING + 4 * (f % R), 4), vr(PB[st][p] + (qb * 2 + ks) * 4, 4), d))
            G.append(L)
        return G
    def pre_items(pf):
        a(pf[0]); a('s_nop 1')
        return [dict(lo=max(0, 4 * kb - 5), hi=4 * kb - 3, ins=pf[kb]) for kb in range(1, 4)]
    LGS = int(os.environ.get('LGS', 4)); LGW = int(os.environ.get('LGW', 0))
    rare_sites = []
    pk = Packer(a)
    def lg_items(n, skip_last):
        return [dict(lo=i - LGW, hi=i, lg=i + LGS) for i in range(LGS - 1, n, LGS) if not (i == n - 1 and skip_last)]
    def ladds(ex):
        return ['v_add_f32 v%d, v%d, v%d' % (V_L + st * 2 + qb, V_L + st * 2 + qb, LT + (st * 2 + qb) * 4) for st, qbs in ex for qb in qbs]
    def iteration(p, qk, ex, pv, prev_ex, nxt='k', dk=True, dv=True, loop_ctr=None, post_bar=(), mid=(), anyw=(), wv=None, pf=None, anylo=2, vx=0, lt=False):
        groups = []; rs = []
        pfi = pre_items(pf) if pf else []
        if qk:
            groups += qk_mf(qk, p); rs += [kread(i, p) for i in range(16)]
        groups += pv_mf(pv, p); rs += [vread(i, p) for i in range(16)]
        n = len(groups)
        nx = {'k': [kread(i, 1 - p) for i in range(D)], 'v': [vread(i, 1 - p) for i in range(D)], None: [None] * D}[nxt]
        rds = rs[D:] + nx
        bg = n - D
        it = [dict(lo=0, hi=0, ins=s, v=True) for s in ladds(prev_ex)] + pfi
        nd = 0
        if wv is None: gv, gm, gk, sl = {'0': ((2, 4, 5, 6), 8, (10, 12, 14, 16), 1), '1': ((1, 3, 5, 7), 8, (10, 12, 14, 16), 0), '2': ((1, 4, 6, 8), 9, (11, 13, 16, 18), 0)}[os.environ.get('DPOS', '0')]
        else:
            pos = [2 + 4 * j + wv for j in range(8)]
            gv = [x // 2 for x in pos[:4]]; gk = [x // 2 + 1 for x in pos[4:]]; gm = gv[3] + 1; sl = 0
        late = wv is not None and wv % 2 == 1
        if dv:
            it.append(dict(lo=0, hi=0 if gv[0] == 1 else 1, ins='s_sub_u32 m0, s%d, s%d' % ((sC0, sC1)[p], sT)))
            for j, i in enumerate(gv):
                it.append(dict(lo=i + (1 if late else 0), hi=i + sl, ins='buffer_load_dwordx4 v%d, %s, s%d offen offset:%d lds' % (V_LANE16V, sr(WS, 4), (sK0, sK1)[p], 1024 * j)))
            nd += 4
        if dk:
            it.append(dict(lo=gm, hi=gm + 1, ins='s_add_u32 m0, s%d, %d' % (sT, p * 16384)))
            it.append(dict(lo=gm, hi=gm + 1, ins='s_add_u32 s%d, s%d, 32768' % ((sK0, sK1)[p], (sK0, sK1)[1 - p])))
            for j, i in enumerate(gk):
                it.append(dict(lo=i + (1 if late else 0), hi=i + sl, ins='buffer_load_dwordx4 v%d, %s, s%d offen offset:%d lds' % (V_LANE16, sr(WS, 4), (sK0, sK1)[p], 1024 * j)))
            nd += 4
        if lt:
            vreg, ptr, step, lim = ((63, 14, 7 * 1024 * 128, SIZE['wo'] - 128), (62, 22, 3 * 1024 * 128, SIZE['wd'] - 128))[p]
            it.append(dict(lo=bg, hi=bg + 2, ins='global_load_dword v7, v%d, s[%d:%d]' % (vreg, ptr, ptr + 1)))
            it.append(dict(lo=bg + 3, hi=n - 2, ins='v_add_u32 v%d, 0x%x, v%d' % (vreg, step, vreg), v=True))
            it.append(dict(lo=bg + 3, hi=n - 1, ins='v_min_u32 v%d, 0x%x, v%d' % (vreg, lim, vreg), v=True))
            vx += 1
        nd += sum(1 for s in mid if s.startswith('buffer_'))
        if p == 1:
            if qk: it.append(dict(lo=16 - D, hi=bg - 1, ins='v_xor_b32 v%d, 32768, v%d' % (V_KRD, V_KRD), v=True))
            it.append(dict(lo=bg - 1 if nxt == 'v' else bg, hi=bg - 1 if nxt == 'v' else n - 1, ins='v_xor_b32 v%d, 32768, v%d' % (V_VRD, V_VRD), v=True))
            it.append(dict(lo=13, hi=n - 1, ins='s_xor_b32 s%d, s%d, 32768' % (sT, sT)))
        if nxt is not None:
            it.append(dict(lo=bg - 3, hi=bg - 2, ins='s_waitcnt vmcnt(%d)' % (nd + vx)))
            it.append(dict(lo=bg - 1, hi=bg - 1, ins='s_barrier'))
        it += lg_items(n, nxt is None)
        it.sort(key=lambda x: (x['hi'], x['lo']))
        for j, s in enumerate(mid):
            g_ = 9 + (j * (bg - 4 - 9)) // len(mid)
            it.append(dict(lo=g_, hi=bg - 4, ins=s))
        for j, s in enumerate(anyw):
            it.append(dict(lo=anylo, hi=n - 1, ins=s))
        lo0 = bg if nxt is not None else 0
        for j, s in enumerate(post_bar):
            it.append(dict(lo=lo0 + (j * (n - lo0)) // len(post_bar), hi=n - 1, ins=s))
        fin = []
        if ex:
            lts = [LT + (st * 2 + qb) * 4 for st, qbs in ex for qb in qbs]
            cur = lts[0]
            if len(lts) == 2: fin.append('v_max_f32 v%d, v%d, v%d' % (V_T0, lts[0], lts[1])); cur = V_T0
            if len(lts) >= 3: fin.append('v_max3_f32 v%d, v%d, v%d, v%d' % (V_T0, lts[0], lts[1], lts[2])); cur = V_T0
            if len(lts) == 4: fin.append('v_max_f32 v%d, v%d, v%d' % (V_T0, V_T0, lts[3]))
            fin.append('v_cmp_lt_f32 vcc, s%d, v%d' % (sTHR, cur))
        pk.run(groups, rds, it, [(st, 1 - p, qbs) for st, qbs in ex], [], fin, (1, p) if qk else None, True)
        if loop_ctr: a('s_sub_u32 s%d, s%d, 1' % (loop_ctr[0], loop_ctr[0]))
        if ex:
            stub, back = a.newlabel(name + '_rs'), a.newlabel(name + '_rb')
            a('s_cbranch_vccnz %s' % stub)
            a.label(back)
            rare_sites.append((stub, back, 1 - p, ex))
        if loop_ctr: a('s_cbranch_scc0 %s' % loop_ctr[1])
    def epilogue(st):
        a('s_lshl_b32 s%d, s%d, 10' % (sE0, sQ[st]))
        a('s_lshl_b32 s%d, s%d, 19' % (sE1, sH))
        a('s_add_u32 s%d, s%d, s%d' % (sE0, sE0, sE1))
        a('s_add_u32 s%d, s%d, 0x%x' % (sE0, sE0, WS_CTX))
        a('s_lshl_b32 s%d, s%d, 10' % (sM1, sW))
        a('s_sub_u32 s%d, s%d, s%d' % (sM0, sE0, sM1)); a('s_add_u32 s%d, s%d, 7168' % (sM0, sM0))
        a('s_add_u32 s%d, s%d, s%d' % (sM1, sE0, sM1))
        a('v_rcp_f32 v%d, v%d' % (V_T0, V_L + st * 2))
        a('v_rcp_f32 v%d, v%d' % (V_T1, V_L + st * 2 + 1))
        a('s_nop 1')
        c3 = 0
        for s in range(4):
            for qb in range(2):
                T = SB[st][0] + 16 * (c3 % 4); c3 += 1
                for cc in range(2):
                    for e in range(4): a('v_accvgpr_read_b32 v%d, a%d' % (T + 4 * cc + e, A_O[st] + ((2 * s + cc) * 2 + qb) * 4 + e))
                for e in range(8): a('v_mul_f32 v%d, v%d, v%d' % (T + e, T + e, (V_T0, V_T1)[qb]))
                for e in range(4): a('v_cvt_pk_bf16_f32 v%d, v%d, v%d' % (T + 8 + e, T + 2 * e, T + 2 * e + 1))
                a('s_add_u32 s%d, s%d, %d' % (sE1, (sM0, sM1)[qb], s * 128 * 1024))
                a(issue(('ctx', 'buffer_store_dwordx4 %s, v%d, %s, s%d offen %s' % (vr(T + 8, 4), V_LANE16, sr(WS, 4), sE1, WT))))
    AH, AC, WD4, WO4, X4, OUT = R1, R2, R3, R4, R5, 4
    sRO, sRT, sCT4, sAC, sWW, sVAL, sXO, sSW, sLD, sW2, sAC0, sWW0 = 8, 9, 10, 11, 12, 74, 13, 18, 19, 20, 26, 27
    sS1, sS0, sR0, sR1 = 16, 17, 21, 62
    WS_EX = 0x8000000
    FX = WS_FLG + 65536
    a_real = a; a = Asm()
    a('s_lshr_b32 s67, s2, 3')
    a('s_cmp_lt_u32 s67, 30'); a('s_cselect_b32 s%d, 1, 0' % sVAL)
    a('s_min_u32 s67, s67, 29')
    a('s_mul_i32 s68, s67, 205'); a('s_lshr_b32 s68, s68, 10')
    a('s_mul_i32 s69, s68, 5'); a('s_sub_u32 s%d, s67, s69' % sCT4)
    a('s_and_b32 s69, s2, 7'); a('s_lshl_b32 s69, s69, 2'); a('s_lshr_b32 s69, %s, s69' % os.environ.get('GMAP', '0x07362514')); a('s_and_b32 s69, s69, 7')
    a('s_mul_i32 s69, s69, 6'); a('s_add_u32 s69, s69, s68')
    a('s_lshr_b32 s%d, s69, 4' % sRO); a('s_and_b32 s%d, s69, 15' % sRT)
    for s in srd('x', X4) + srd('out', OUT): a(s)
    a('s_add_u32 s70, s%d, 2' % sRO); a('s_cmp_eq_u32 s%d, 0' % sRO); a('s_cselect_b32 s71, 0, 3'); a('s_sub_u32 s70, s70, s71')
    a('s_cmp_eq_u32 s%d, 0' % sRO); a('s_cselect_b32 s71, 40, 44'); a('s_mul_i32 s71, s71, s%d' % sVAL)
    a('s_mul_i32 s67, s%d, %d' % (sRO, 18 * 131072)); a('s_add_u32 s67, s67, 0x%x' % WS_H)
    a('s_add_u32 s%d, s28, s67' % AH); a('s_addc_u32 s%d, s29, 0' % (AH + 1)); a('s_mul_i32 s%d, s%d, %d' % (AH + 2, sVAL, 18 * 131072))
    a('s_mul_i32 s67, s70, %d' % (44 * 131072)); a('s_add_u32 s67, s67, 0x%x' % WS_CTX)
    a('s_add_u32 s%d, s28, s67' % AC); a('s_addc_u32 s%d, s29, 0' % (AC + 1)); a('s_lshl_b32 s%d, s71, 17' % (AC + 2))
    a('s_mul_i32 s67, s%d, %d' % (sRO, 18 * 32 * 1280))
    a('s_add_u32 s%d, s22, s67' % WD4); a('s_addc_u32 s%d, s23, 0' % (WD4 + 1)); a('s_mul_i32 s%d, s%d, %d' % (WD4 + 2, sVAL, 18 * 32 * 1280))
    a('s_mul_i32 s67, s70, %d' % (44 * 32 * 1280))
    a('s_add_u32 s%d, s14, s67' % WO4); a('s_addc_u32 s%d, s15, 0' % (WO4 + 1)); a('s_mul_i32 s%d, s71, %d' % (WO4 + 2, 32 * 1280))
    for r_ in (AH, AC, WD4, WO4): a('s_mov_b32 s%d, 0x00020000' % (r_ + 3))
    a('s_cmp_eq_u32 s%d, 2' % sRO); a('s_cselect_b32 s%d, 1, 0' % sSW)
    VA0, VA1, VWO, VRD, VX, VPL = 16, 17, 18, 32, 20, 200
    a('s_lshl_b32 s%d, s%d, 2' % (sAC, sRT)); a('s_add_u32 s%d, s%d, s%d' % (sAC, sAC, sW))
    a('s_lshl_b32 s67, s%d, 1' % sAC); a('s_add_u32 s67, s67, s%d' % sSW)
    a('s_mul_i32 s%d, s67, %d' % (sXO, 16 * 1280)); a('s_lshl_b32 s68, s%d, 8' % sCT4); a('s_add_u32 s%d, s%d, s68' % (sXO, sXO))
    a('s_lshl_b32 s%d, s%d, 11' % (sAC, sAC)); a('s_mov_b32 s%d, s%d' % (sAC0, sAC))
    a('s_lshl_b32 s67, s%d, 10' % sSW)
    a('v_add_u32 v%d, s67, v%d' % (VA0, V_LANE16))
    a('v_xor_b32 v%d, 1024, v%d' % (VA1, VA0))
    a('s_mul_i32 s%d, s%d, %d' % (sWW, sW, 16 * 1280)); a('s_add_u32 s%d, s%d, s68' % (sWW, sWW)); a('s_mov_b32 s%d, s%d' % (sWW0, sWW))
    a('v_lshrrev_b32 v5, 3, v0'); a('v_mul_u32_u24 v5, 1280, v5')
    a('v_bfe_u32 v6, v0, 1, 2'); a('v_bfe_u32 v7, v0, 4, 2'); a('v_xor_b32 v6, v6, v7')
    a('v_lshl_add_u32 v5, v6, 5, v5'); a('v_and_b32 v6, 1, v0')
    a('v_lshl_add_u32 v%d, v6, 4, v5' % VWO)
    a('v_add_u32 v%d, %d, v%d' % (VWO + 1, 8 * 1280 - 1024, VWO))
    a('v_lshrrev_b32 v5, 2, v0'); a('v_lshlrev_b32 v5, 7, v5'); a('v_and_b32 v6, 3, v0'); a('v_lshl_add_u32 v5, v6, 3, v5')
    a('v_bfe_u32 v6, v0, 3, 2')
    for c in range(4):
        a('v_xor_b32 v7, %d, v6' % c)
        a('v_lshl_add_u32 v%d, v7, 5, v5' % (VRD + c))
        a('v_add_u32 v%d, 65536, v%d' % (VRD + 4 + c, VRD + c))
    a('v_lshrrev_b32 v5, 4, v0'); a('v_mul_u32_u24 v5, 5120, v5'); a('v_and_b32 v6, 15, v0')
    a('v_lshl_add_u32 v%d, v6, 4, v5' % VX)
    a('v_and_b32 v%d, 0x1f0, v%d' % (VPL, V_LANE16))
    a('s_mul_i32 s67, s%d, 4608' % sW)
    a('v_and_b32 v5, 15, v0'); a('v_mul_u32_u24 v5, 272, v5'); a('v_lshrrev_b32 v6, 4, v0'); a('v_lshl_add_u32 v5, v6, 3, v5')
    a('v_add_u32 v21, s67, v5')
    a('v_mul_u32_u24 v6, 1088, v6'); a('v_and_b32 v5, 15, v0'); a('v_lshl_add_u32 v5, v5, 4, v6')
    a('v_add_u32 v23, s67, v5')
    a('s_sub_u32 s67, 15, s%d' % sRT); a('s_min_u32 s67, s67, s%d' % sRT)
    a('s_lshl_b32 s79, s67, 9'); a('s_add_u32 s79, s79, 0x%x' % FH)
    a('s_lshl_b32 s76, s%d, 9' % sRT); a('s_add_u32 s76, s76, 0x%x' % FC)
    a('s_mul_i32 s67, s%d, 5' % sRT); a('s_add_u32 s67, s67, s%d' % sCT4)
    a('s_lshl_b32 s68, s67, 2'); a('s_add_u32 s68, s68, s%d' % sW)
    a('s_lshl_b32 s75, s68, 10'); a('s_add_u32 s75, s75, 0x%x' % FX)
    a('s_lshl_b32 s68, s68, 16'); a('s_add_u32 s68, s68, 0x%x' % WS_EX)
    a('s_add_u32 s67, s%d, 1' % sRO); a('s_lshl_b32 s67, s67, 13'); a('s_add_u32 s%d, s68, s67' % sS1)
    a('s_cmp_eq_u32 s%d, 0' % sRO); a('s_cselect_b32 s%d, s68, 0x20000000' % sS0)
    a('s_cmp_eq_u32 s%d, 0' % sVAL); a('s_cselect_b32 s%d, 0x20000000, s%d' % (sS0, sS0)); a('s_cselect_b32 s%d, 0x20000000, s%d' % (sS1, sS1))
    a('s_lshl_b32 s67, s%d, 13' % sSW); a('s_add_u32 s%d, s68, s67' % sR0)
    a('s_sub_u32 s67, 3, s%d' % sSW); a('s_lshl_b32 s67, s67, 13'); a('s_add_u32 s%d, s68, s67' % sR1)
    a('s_cmp_eq_u32 s%d, 0' % sRO); a('s_cselect_b32 s%d, 0x20000000, s%d' % (sR0, sR0)); a('s_cselect_b32 s%d, 0x20000000, s%d' % (sR1, sR1))
    a('s_lshl_b32 s56, s%d, 7' % sRO); a('s_add_u32 s56, s56, s75')
    a('s_sub_u32 s67, 3, s%d' % sRO); a('s_cmp_eq_u32 s%d, 0' % sRO); a('s_cselect_b32 s67, 0, s67'); a('s_lshl_b32 s67, s67, 7')
    a('v_and_b32 v22, 1, v0'); a('v_mul_u32_u24 v22, s67, v22')
    a('s_lshl_b32 s%d, s%d, 11' % (sLD, sW))
    for c in range(4): a('v_add_u32 v%d, 131072, v%d' % (196 + c, VRD + c))
    setup4 = [re.sub(r'\bv([567])\b', lambda m: 'v%d' % (64 + int(m.group(1))), l.strip()) for l in a.lines]
    a = a_real
    grp4 = []
    for l in setup4:
        if l.startswith('s_cselect') or l.startswith('s_addc'): grp4[-1] += '\n' + l
        else: grp4.append(l)
    h_poll = 'buffer_load_dwordx4 v[192:195], v%d, %s, s79 offen %s' % (VPL, sr(WS, 4), WT)
    c_poll = 'buffer_load_dwordx4 v[24:27], v%d, %s, s76 offen %s' % (VPL, sr(WS, 4), WT)
    b_poll = 'buffer_load_dword v24, v22, %s, s75 offen %s' % (sr(WS, 4), WT)
    s_poll = 'buffer_load_dword v24, v22, %s, s75 offen offset:512 %s' % (sr(WS, 4), WT)
    WF4 = 64; ND4 = 18; NK = 62; LA4 = 15
    def accB(n, q): return 128 + (q * 8 + n) * 4
    def accS(n, q): return 192 + (q * 8 + n) * 4
    def act4(k, q): r = k % 16; return (r * 8 + q * 4) if r < 8 else (128 + (r - 8) * 8 + q * 4)
    def wslot(st): return 131072 + st * 16384 if st < 2 else ((st - 2) % 8) * 16384
    def w4_dma(st):
        L = []
        if st == ND4 // 2: L.append('s_mov_b32 s%d, s%d' % (sWW, sWW0))
        r_ = WD4 if st < ND4 // 2 else WO4
        for m in range(2):
            L += ['s_add_u32 m0, s%d, %d' % (sLD, wslot(st) + m * 8192), 's_nop 0' if m == 0 else 's_add_u32 s%d, s%d, 128' % (sW2, sWW)]
            L += [(('w4', st), 'buffer_load_dwordx4 v%d, %s, s%d offen offset:%d lds' % (VWO + j, sr(r_, 4), sWW if m == 0 else sW2, 1024 * j)) for j in range(2)]
        L.append('s_add_u32 s%d, s%d, %d' % (sWW, sWW, 64 * 1280))
        return L
    def a4_load(k):
        L = ['s_mov_b32 s%d, s%d' % (sAC, sAC0)] if k == ND4 else []
        return L + [(('a4', k), 'buffer_load_dwordx4 %s, v%d, %s, s%d offen' % (ar(act4(k, q), 4), (VA0, VA1)[q], sr(AH if k < ND4 else AC, 4), sAC)) for q in range(2)] + \
               ['s_add_u32 s%d, s%d, %d' % (sAC, sAC, 128 * 1024)]
    def w4_read(k, n):
        ad, ks = wslot(k // 2), k % 2
        reg = (VRD, VRD + 4, 196)[ad // 65536]
        return ['ds_read_b64_tr_b16 %s, v%d offset:%d' % (vr(WF4 + 4 * n + 2 * r, 2), reg + n % 4, ad % 65536 + (n // 4) * 8192 + (32 * ks + 16 * r) * 128) for r in range(2)]
    PK = 112
    def packs(accf):
        L = []
        for q in (1, 0):
            for n in range(8):
                dst = (accf(0, 1) if q else PK) + 2 * n
                L += ['v_cvt_pk_bf16_f32 v%d, v%d, v%d' % (dst + h, accf(n, q) + 2 * h, accf(n, q) + 2 * h + 1) for h in range(2)]
        return L
    def sends(accf, tag):
        return [(tag, 'buffer_store_dwordx4 %s, v%d, %s, s%d offen offset:%d %s' % (vr((accf(0, 1) if q else PK) + 4 * j, 4), V_LANE16, sr(WS, 4), (sS0, sS1)[q], j * 1024, WT))
                for q in (1, 0) for j in range(4)]
    def recvs(dst, tag):
        return [(tag, 'buffer_load_dwordx4 %s, v%d, %s, s%d offen offset:%d' % (vr(dst + 16 * src_ + 4 * j, 4), V_LANE16, sr(WS, 4), (sR0, sR1)[src_], j * 1024))
                for j in range(4) for src_ in range(2)]
    def unp_add(B, dst, n, T):
        L = []
        for src_ in range(2):
            for h in range(2):
                r = dst + 16 * src_ + 2 * n + h
                L += ['v_lshlrev_b32 v%d, 16, v%d' % (T + 2 * h, r), 'v_and_b32 v%d, s65, v%d' % (T + 2 * h + 1, r)]
            L += ['v_add_f32 v%d, v%d, v%d' % (B + e, B + e, T + e) for e in range(4)]
        return L
    XR4 = 96
    xl = [('x4', 'buffer_load_dwordx4 %s, v%d, %s, s%d offen offset:%d' % (vr(XR4 + 4 * j, 4), VX, sr(X4, 4), sXO, 1280 * j)) for j in range(4)]
    F = (0, 1); H_ = (0,)
    pfi = pre_items(prefill(0, 0, 0, dyn=True))
    a('s_waitcnt lgkmcnt(%d)' % (D - LGS))
    rds = [kread(i, 0) for i in range(D, 16)] + [kread(i, 1) for i in range(D)]
    it = lg_items(16, False) + pfi; it.sort(key=lambda x: (x['hi'], x['lo']))
    pk.run(qk_mf([(1, F, None), (0, F, 1)], 0), rds, it, [], hx, [], None, False)
    a('s_nop 3'); stamp(a, 2, 'p3')
    for st in range(2):
        for qb in range(2):
            for s in max_ops(st, 0, qb, V_T0, V_T1): a(s)
            for e in range(4): a('v_sub_f32 v%d, 0, v%d' % (NEGM + (st * 2 + qb) * 4 + e, V_T0))
    pfi = pre_items(prefill(0, 1, 1, dyn=True))
    rds = [kread(i, 1) for i in range(D, 16)] + [kread(i, 0) for i in range(D)]
    it = lg_items(16, False) + pfi + [dict(lo=16 - D - 1, hi=16 - D - 1, ins='v_xor_b32 v%d, 32768, v%d' % (V_KRD, V_KRD), v=True)]
    it.sort(key=lambda x: (x['hi'], x['lo']))
    pk.run(qk_mf([(1, F, None), (0, F, 0)], 1), rds, it, [(1, 0, F), (0, 0, F)], [], [], (1, 1), False, sub=True)
    a('s_waitcnt vmcnt(0)')
    a(flag_store(76)[1])
    gate(kv_poll, 208, 4, 1, 63)
    LTO = 'w' in MX
    if LTO:
        a('s_lshl_b32 s67, s2, 2'); a('s_add_u32 s67, s67, s%d' % sW)
        a('s_mul_i32 s68, s67, 7'); a('v_min_u32 v63, 6, v0'); a('v_add_u32 v63, s68, v63'); a('v_lshlrev_b32 v63, 7, v63')
        a('s_mul_i32 s68, s67, 3'); a('v_min_u32 v62, 2, v0'); a('v_add_u32 v62, s68, v62'); a('v_lshlrev_b32 v62, 7, v62')
    stamp(a, 10); cstamp(a, 5); stamp(a, 3, 'p3')
    lA, lA_skip, lA_tail2 = name + '_loopA', name + '_skipA', name + '_tail2A'
    a('s_cmp_eq_u32 s%d, 0' % sI)
    a('s_cbranch_scc1 %s' % lA_tail2)
    a('s_sub_u32 s%d, s%d, 2' % (sCNT, sI))
    a('s_cbranch_scc1 %s' % lA_skip)
    cstamp(a, 3, 'cyb')
    a.raw('.p2align 6')
    a.label(lA)
    qB = (1, F, None); BA = [(1, F), (0, F)]; B_ = [(1, F)]; BAh = [(1, F), (0, H_)]; Bh = [(1, H_)]
    iteration(0, [qB, (0, F, None)], BA, BA, BA, lt=LTO)
    iteration(1, [qB, (0, F, None)], BA, BA, BA, loop_ctr=(sCNT, lA), lt=LTO)
    cstamp(a, 4, 'cyb')
    a.label(lA_skip)
    stamp(a, 4, 'p3')
    iteration(0, [qB, (0, F, 1)], BA, BA, BA, pf=prefill(0, 0, 0))
    stamp(a, 5, 'p3')
    iteration(1, [qB, (0, H_, 0)], BA, BA, BA, pf=prefill(0, 1, 1))
    a.label(lA_tail2)
    stamp(a, 6, 'p3')
    l7, lBtail2 = name + '_i7', name + '_tail2B'
    a('s_cmp_eq_u32 s%d, 7' % sI)
    a('s_cbranch_scc1 %s' % l7)
    def txt(L): return [x if isinstance(x, str) else x[1] for x in L]
    acts = [a4_load(k) for k in range(16)]
    E1 = txt(xl); E2 = txt(w4_dma(0) + acts[0] + acts[1] + acts[2]); E3 = txt(w4_dma(1) + acts[3] + acts[4] + acts[5])
    E4 = txt(acts[6] + acts[7] + acts[8] + acts[9] + acts[10] + acts[11])
    wt = ['s_lshl_b32 s67, s2, 2', 's_add_u32 s67, s67, s%d' % sW, 's_mul_i32 s68, s67, 46', 'v_min_u32 v72, 45, v0', 'v_add_u32 v72, s68, v72',
          'v_min_u32 v72, 40959, v72', 'v_lshlrev_b32 v72, 7, v72', 'global_load_dword v63, v72, s[14:15]',
          's_mul_i32 s68, s67, 20', 'v_min_u32 v73, 19, v0', 'v_add_u32 v73, s68, v73', 'v_min_u32 v73, 17279, v73', 'v_lshlrev_b32 v73, 7, v73',
          'global_load_dword v63, v73, s[22:23]']
    iteration(0, [qB], BAh, BA, BA, post_bar=(() if 'w' in MX else wt))
    stamp(a, 7, 'p3')
    iteration(1, [qB], B_, BAh, BAh, anyw=grp4 + [h_poll], vx=(0 if 'w' in MX else 2))
    stamp(a, 8, 'p3')
    epilogue(0)
    stamp(a, 9, 'p3')
    a('s_waitcnt vmcnt(8)')
    gate(h_poll, 192, 4, 1, 63)
    lB = name + '_loopB'
    a('s_lshl_b32 s%d, s%d, 1' % (sCNT, sI))
    a('s_sub_u32 s%d, 12, s%d' % (sCNT, sCNT))
    cstamp(a, 5, 'cyb'); stamp(a, 10, 'p3')
    a.raw('.p2align 6')
    a.label(lB)
    iteration(0, [qB], B_, B_, B_, lt=LTO)
    iteration(1, [qB], B_, B_, B_, loop_ctr=(sCNT, lB), lt=LTO)
    cstamp(a, 6, 'cyb'); stamp(a, 11, 'p3')
    if 'c' in MX:
        E1 = E1 + ['s_getpc_b64 s[70:71]\n%s_pc2:\ns_add_u32 s70, s70, %s_tail2B-%s_pc2\ns_addc_u32 s71, s71, 0' % (name, name, name),
                   's_lshr_b32 s67, s2, 3', 's_lshl_b32 s67, s67, 2', 's_add_u32 s67, s67, s%d' % sW, 's_lshl_b32 s67, s67, 9',
                   'v_and_b32 v63, 3, v0', 'v_lshlrev_b32 v63, 7, v63', 'v_add_u32 v63, s67, v63', 'v_min_u32 v63, %s_codeend-%s_tail2B-4, v63' % (name, name),
                   'global_load_dword v63, v63, s[70:71]']
        E1b = E1[:4]
    else: E1b = E1
    iteration(0, [(1, F, 1)], B_, B_, B_, dk=False, mid=E1, post_bar=E2, pf=prefill(1, 0, 0))
    stamp(a, 12, 'p3')
    iteration(1, [(1, H_, 0)], B_, B_, B_, dk=False, nxt='v', mid=E3, post_bar=E4, pf=prefill(1, 1, 1), vx=sum(1 for s_ in E2 if s_.startswith('buffer_')) + sum(1 for s_ in E1 if s_.startswith('buffer_')))
    a('s_branch %s' % lBtail2)
    a.label(l7)
    iteration(0, [(1, F, 1)], BAh, BA, BA, dk=False, pf=prefill(1, 0, 0))
    iteration(1, [(1, H_, 0)], B_, BAh, BAh, dk=False, nxt='v', anyw=grp4 + [h_poll], pf=prefill(1, 1, 1), anylo=10)
    epilogue(0)
    a('s_waitcnt vmcnt(8)')
    gate(h_poll, 192, 4, 1, 63)
    for s_ in E2 + E3 + E4 + E1b: a(s_)
    a.label(lBtail2)
    stamp(a, 11); cstamp(a, 6); stamp(a, 13, 'p3')
    vm.n = 0; ids = {}
    for k in range(12): ids[('a4', k)] = -100
    ids[('w4', 0)] = ids[('w4', 1)] = -100
    sent = ['v_mov_b32 v%d, -1' % (116 + e) for e in range(4)] + ['s_add_u32 s67, s%d, 32768' % sS0, 's_add_u32 s68, s%d, 32768' % sS1]
    sent += [('sn', 'buffer_store_dwordx4 v[116:119], v%d, %s, s%d offen offset:%d %s' % (V_LANE16, sr(WS, 4), 67 + q, j * 1024, WT)) for j in range(4) for q in range(2)]
    e1 = [flag_store(77)[1]] + [issue(it) for it in w4_dma(2) + w4_dma(3) + sent]
    iteration(0, None, Bh, B_, B_, dk=False, dv=False, nxt='v', post_bar=e1)
    stamp(a, 14, 'p3')
    e2 = w4_dma(4) + acts[12] + acts[13] + w4_dma(5) + acts[14]
    iteration(1, None, [], Bh, Bh, dk=False, dv=False, nxt=None, post_bar=[issue(it) for it in e2])
    stamp(a, 12); stamp(a, 15, 'p3')
    epilogue(1)
    stamp(a, 16, 'p3')
    notile = name + '_notile'
    a('s_cmp_eq_u32 s%d, 0' % sVAL)
    a('s_cbranch_scc1 %s' % notile)
    a('s_barrier')
    for n in range(8):
        for s_ in w4_read(0, n): a(s_)
    stamp(a, 13)
    def rnd_l(r0, r1, t):
        return ['v_cvt_pk_bf16_f32 v%d, v%d, v%d' % (t, r0, r1), 'v_lshlrev_b32 v%d, 16, v%d' % (r0, t), 'v_and_b32 v%d, s65, v%d' % (r1, t)]
    def rnd(r0, r1, t):
        for s_ in rnd_l(r0, r1, t): a(s_)
    RBv = accB(0, 1)
    def gate_calc(n):
        B = accB(n, 0); T = 40 + 4 * (n % 2); L = unp_add(B, RBv, n, T)
        for h in range(2): L += rnd_l(B + 2 * h, B + 2 * h + 1, T)
        L += ['v_mul_f32 v%d, s64, v%d' % (T + e, B + e) for e in range(4)]
        L += ['v_exp_f32 v%d, v%d' % (T + e, T + e) for e in range(4)]
        L += ['v_add_f32 v%d, 1.0, v%d' % (T + e, T + e) for e in range(4)]
        L += ['v_rcp_f32 v%d, v%d' % (T + e, T + e) for e in range(4)]
        L += ['v_mul_f32 v%d, v%d, v%d' % (B + e, B + e, T + e) for e in range(4)]
        for h in range(2): L += rnd_l(B + 2 * h, B + 2 * h + 1, T)
        return L
    def x_unpack():
        L = []
        for n in range(8):
            for h in range(2):
                x = XR4 + 2 * n + h; o = accB(n, 1) + 2 * h
                L += ['v_lshlrev_b32 v%d, 16, v%d' % (o, x), 'v_and_b32 v%d, s65, v%d' % (o + 1, x)]
        return L
    a('s_mov_b32 s64, %s' % f2u(-math.log2(math.e)))
    a('s_mov_b32 s65, 0xffff0000')
    pend = w4_dma(6) + w4_dma(7) + w4_dma(8) + w4_dma(9)
    slowq = []
    valq = []
    nxt_a = LA4
    KG = int(os.environ.get('KG', 15)); KCF = int(os.environ.get('KCF', 1)); PDL = 5; CUN = int(os.environ.get('CUN', 9))
    KS0, KFL, KBP, KRC = ND4 + 2, 30, 33, 48
    rbl = recvs(RBv, 'rb')
    for k in range(NK):
        assert not any(x[0] == ('a4', k) for x in pend if not isinstance(x, str))
        need = ids[('a4', k)]
        if k == KCF: need = max(need, ids['ctx'])
        if k == KG: need = max(need, ids['cp'])
        if k in (KFL, KRC): assert not slowq and not any(x[0] in ('sb', 'rb', 'x4') for x in pend if not isinstance(x, str))
        if k == KFL: need = max(need, ids['sb'])
        if k == KBP + PDL: need = max(need, ids['bp'])
        if k == KRC: need = max(need, ids['rb'])
        a('s_waitcnt vmcnt(%d) lgkmcnt(12)' % min(63, vm.cnt(need)))
        if k == KCF: pend = [flag_store(78)] + pend
        if k == KG - 3: pend = [('cp', c_poll)] + pend
        if k == KG: gate(c_poll, 24, 4, 1, 63)
        if k == KS0 - 1: valq += packs(accB)
        if k == KS0:
            assert not valq
            sl = sends(accB, 'sb'); slowq += [x for p_ in zip(sl[:4], sl[4:]) for x in p_]
        if k == KFL:
            pend = [flag_store(56), 's_add_u32 s56, s56, 512', 's_add_u32 s%d, s%d, 32768' % (sS0, sS0), 's_add_u32 s%d, s%d, 32768' % (sS1, sS1)] + pend
        if k == KBP: pend = [('bp', b_poll)] + pend
        if k == KBP + PDL:
            gate(b_poll, 24, 1, 1, 63)
            slowq += rbl
        if k == KRC:
            pend += ['s_add_u32 s%d, s%d, 32768' % (sR0, sR0), 's_add_u32 s%d, s%d, 32768' % (sR1, sR1)]
            for n in range(8): valq += gate_calc(n)
            valq += x_unpack()
        newa = []
        lim = min(NK, k + LA4 + 1) if k >= KG else ND4
        while nxt_a < min(lim, k + LA4 + 1) and len(newa) < CUN:
            newa += a4_load(nxt_a); nxt_a += 1
        pend = newa + slowq[:2] + pend; slowq = slowq[2:]
        accf = accB if k < ND4 else accS
        for n in range(8):
            if n % 2 == 0 and n > 0: a('s_waitcnt lgkmcnt(%d)' % (12 if k < NK - 1 else 2 * (6 - n)))
            for q in range(2):
                d = vr(accf(n, q), 4)
                a('%s %s, %s, %s, %s' % (MF16, d, vr(WF4 + 4 * n, 4), ar(act4(k, q), 4), '0' if k in (0, ND4) else d))
                if q == 0:
                    while pend and pend[0] == 's_nop 0': pend.pop(0)
                    if pend: a(issue(pend.pop(0)))
                    if pend and isinstance(pend[0], str) and pend[0] != 's_nop 0': a(pend.pop(0))
                    for _ in range(4):
                        if valq: a(valq.pop(0))
            if k + 1 < NK:
                if n == 0 and k % 4 == 3:
                    st = k // 2
                    key = ('w4', min(st + 2, NK // 2 - 1))
                    assert not any(x[0] == key for x in pend if not isinstance(x, str))
                    a('s_waitcnt vmcnt(%d) lgkmcnt(0)' % min(63, vm.cnt(ids[key])))
                    a('s_barrier')
                    for s2_ in (st + 7, st + 8):
                        if s2_ < NK // 2 and st >= 3: pend = pend + w4_dma(s2_)
                for s_ in w4_read(k + 1, n): a(s_)
        if k == ND4 - 1: stamp(a, 14); cstamp(a, 7)
        if k % 4 == 1: stamp(a, 1 + k // 4, 'p4')
        if k == ND4 + 39:
            assert not pend
            a('s_cmp_eq_u32 s%d, 0' % sRO)
            a('s_cbranch_scc1 %s_p4done' % name)
    assert not pend and not valq
    a.label(name + '_p4done')
    stamp(a, 15); cstamp(a, 8)
    a('s_nop 7')
    stamp(a, 1, 'fin')
    pl = packs(accS); sl = sends(accS, 'ss')
    def send_part(js):
        for j in js:
            for s_ in pl[4 * j:4 * j + 4]: a(s_)
            for s_ in pl[4 * j:4 * j + 4]:
                r_ = s_.split()[1].rstrip(',')
                a('v_min_u32 %s, -2, %s' % (r_, r_))
            a(sl[j][1])
    send_part(range(4))
    lfin = name + '_fin'
    a('s_cmp_lg_u32 s%d, 0' % sRO)
    a('s_cbranch_scc1 %s' % lfin)
    send_part(range(4, 8))
    stamp(a, 16)
    stamp_flush(a, 17)
    a('s_endpgm')
    a.label(lfin)
    stamp(a, 2, 'fin')
    RS = 64
    a('s_mov_b32 s63, 0x40000')
    a.label(name + '_rx')
    for it in recvs(RS, 'rs'): a(it[1] + ' ' + WT)
    a('s_waitcnt vmcnt(4)')
    for j in range(2):
        for src_ in range(2):
            r_ = RS + 16 * src_ + 4 * j
            if j == 0 and src_ == 0: a('v_max3_u32 v40, v%d, v%d, v%d' % (r_, r_ + 1, r_ + 2)); a('v_max_u32 v40, v40, v%d' % (r_ + 3))
            else: a('v_max3_u32 v40, v40, v%d, v%d' % (r_, r_ + 1)); a('v_max3_u32 v40, v40, v%d, v%d' % (r_ + 2, r_ + 3))
    a('s_waitcnt vmcnt(0)')
    for j in range(2, 4):
        for src_ in range(2):
            r_ = RS + 16 * src_ + 4 * j
            a('v_max3_u32 v40, v40, v%d, v%d' % (r_, r_ + 1)); a('v_max3_u32 v40, v40, v%d, v%d' % (r_ + 2, r_ + 3))
    a('v_cmp_eq_u32 vcc, -1, v40')
    a('s_sub_u32 s63, s63, 1')
    a('s_cbranch_scc1 %s_rxok' % name)
    a('s_cbranch_vccnz %s_rx' % name)
    a.label(name + '_rxok')
    stamp(a, 6, 'fin')
    for n in range(8):
        if n in (0, 7): stamp(a, 7 + n // 7, 'fin')
        S = accS(n, 0); T = 96 + 2 * n
        for s_ in unp_add(S, RS, n, 40): a(s_)
        for h in range(2): rnd(S + 2 * h, S + 2 * h + 1, 56)
        for e in range(4): a('v_mul_f32 v%d, v%d, v%d' % (S + e, S + e, accB(n, 0) + e))
        for h in range(2): a('v_cvt_pk_bf16_f32 v%d, v%d, v%d' % (T + h, S + 2 * h, S + 2 * h + 1))
        a('ds_write_b64 v21, %s offset:%d' % (vr(T, 2), 32768 + 32 * n))
    for j in range(4): a('ds_read_b128 %s, v23 offset:%d' % (vr(64 + 4 * j, 4), 32768 + 272 * j))
    for j in range(4):
        a('s_waitcnt lgkmcnt(%d)' % (3 - j))
        X_ = accB(0, 1) + 8 * j
        for e in range(4):
            a('v_lshlrev_b32 v40, 16, v%d' % (64 + 4 * j + e)); a('v_and_b32 v41, s65, v%d' % (64 + 4 * j + e))
            a('v_add_f32 v40, v40, v%d' % (X_ + 2 * e)); a('v_add_f32 v41, v41, v%d' % (X_ + 2 * e + 1))
            a('v_cvt_pk_bf16_f32 v%d, v40, v41' % (80 + 4 * j + e))
        a('buffer_store_dwordx4 %s, v%d, %s, s%d offen offset:%d %s' % (vr(80 + 4 * j, 4), VX, sr(OUT, 4), sXO, 1280 * j, OUTF))
    stamp(a, 16); stamp(a, 9, 'fin')
    stamp_flush(a, 17)
    a('s_endpgm')
    a.label(notile)
    a('s_waitcnt vmcnt(0)')
    a(flag_store(78)[1])
    a.label(end)
    a('s_endpgm')
    for slow, ok, load_ins, chk, ts in slow_paths:
        a.label(slow)
        a('s_mov_b32 s%d, 0x40000' % ts)
        lp = a.newlabel(name + '_sp')
        a.label(lp)
        a('s_sleep 1')
        a(load_ins)
        a('s_waitcnt vmcnt(0)')
        for s in chk: a(s)
        a('s_nop 1')
        a('s_cbranch_vccz %s' % ok)
        a('s_sub_u32 s%d, s%d, 1' % (ts, ts))
        a('s_cbranch_scc0 %s' % lp)
        a('s_branch %s' % ok)
    for stub, back, pc, ex in rare_sites:
        a.label(stub)
        for st, qbs in sorted(ex):
            a('s_mov_b32 s69, %s' % ('1.0' if 1 in qbs else '0'))
            a('s_call_b64 s[100:101], %s_rare%d%d' % (name, pc, st))
        a('s_branch %s' % back)
    for pc in range(2):
        for st in range(2):
            a.label('%s_rare%d%d' % (name, pc, st))
            a('s_nop 7')
            for qb in range(2):
                for s in max_ops(st, pc, qb, V_T0, V_T1): a(s)
                a('v_max_f32 v%d, 0, v%d' % (V_T0, V_T0))
                if qb == 1: a('v_mul_f32 v%d, s69, v%d' % (V_T0, V_T0))
                a('v_exp_f32 v%d, -v%d' % (V_T1, V_T0))
                for e in range(4): a('v_sub_f32 v%d, v%d, v%d' % (NEGM + (st * 2 + qb) * 4 + e, NEGM + (st * 2 + qb) * 4 + e, V_T0))
                for pp in range(2):
                    for kb in range(4):
                        for r in range(4):
                            x = SB[st][pp] + (kb * 2 + qb) * 4 + r
                            a('v_sub_f32 v%d, v%d, v%d' % (x, x, V_T0))
                a('v_mul_f32 v%d, v%d, v%d' % (V_L + st * 2 + qb, V_L + st * 2 + qb, V_T1))
                for db in range(0, 8, 2):
                    regs = [A_O[st] + ((db + h) * 2 + qb) * 4 + e for h in range(2) for e in range(4)]
                    for e in range(8): a('v_accvgpr_read_b32 v%d, a%d' % (TMP + e, regs[e]))
                    for e in range(8): a('v_mul_f32 v%d, v%d, v%d' % (TMP + e, TMP + e, V_T1))
                    for e in range(8): a('v_accvgpr_write_b32 a%d, v%d' % (regs[e], TMP + e))
            for s in exp_ops(st, pc): a(s)
            if st == 1:
                for k, (s, _, _) in enumerate(exp_seq(1, 1 - pc)[:EARLY]): a('v_exp_f32 v%d, v%d' % (TMP + k, s))
            a('s_nop 7')
            a('s_setpc_b64 s[100:101]')
    a.label(name + '_codeend')
    if os.environ.get('PADEND'): a.raw('.fill 8192, 4, 0xBF810000')
    kernel_desc(a, name, 512, 256)
    return a
```

```python
from common import *
import common
import math, copy, re
import k2 as K2
from k2 import VM, Packer, exp_seq, exp_ops, max_ops, EARLY
from k2 import V_LANE16, V_LANE16V, V_KRD, V_VRD, V_T0, V_T1, V_L, TRI, NEGM, LT, TMP, SB, PB, A_O, A_Q, A_RING, V_ONES, D, R, THR, BIG

OUTF = os.environ.get('OUTF', 'sc0 sc1')
WT = 'sc0 sc1'
WS_FLG = 0x7000000
FK, FH, FC, FL, FE = WS_FLG, WS_FLG + 4096, WS_FLG + 8192, WS_FLG + 16384, WS_FLG + 20480
PTR = dict(x=4, ckv=6, wq=8, wuk=10, wuv=12, wo=14, wg=18, wu=20, wd=22, out=24, dbg=26, ws=28)
WS, R1, R2, R3, R4, R5 = 32, 36, 40, 44, 48, 52
sW, sH, sI = 30, 31, 3
V_ONE, V_1 = 60, 61
V_PA, V_PD = 62, 24

SMODE = os.environ.get('SMODE', 'all')
def stamp(a, i, mode='all'):
    if not DIAG: return
    if mode != SMODE and i != 0: return
    a('s_memrealtime s[98:99]'); a('s_waitcnt lgkmcnt(0)'); a('s_mov_b32 s%d, s98' % (80 + i))
def cstamp(a, i, mode='cyc'):
    if not DIAG or mode != SMODE: return
    a('s_memrealtime s[98:99]'); a('s_waitcnt lgkmcnt(0)'); a('s_mov_b32 s%d, s98' % (80 + i + 8))
    a('s_memtime s[98:99]'); a('s_waitcnt lgkmcnt(0)'); a('s_mov_b32 s%d, s98' % (80 + i))
def stamp_flush(a, n):
    if not DIAG: return
    if os.environ.get('DBGOUT'):
        a('s_load_dwordx2 s[36:37], s[0:1], 88')
        a('s_mov_b32 s38, 256'); a('s_mov_b32 s39, 0x00020000')
        a('s_lshl_b32 s98, s2, 2'); a('s_add_u32 s98, s98, s%d' % sW)
        a('s_cmp_eq_u32 s98, %d' % (4 * int(os.environ['DBGOUT'])))
        a('s_cselect_b32 s98, 0, 0x1000')
        a('s_waitcnt lgkmcnt(0)')
        a('v_mov_b32 v0, 0')
        for i in range(1, n):
            a('s_sub_u32 s99, s%d, s80' % (80 + i))
            a('v_mov_b32 v1, s99')
            a('buffer_store_dword v1, v0, s[36:39], s98 offen offset:%d' % (4 * (i - 1)))
            a('s_nop 1')
        return
    a('s_lshl_b32 s98, s2, 2'); a('s_add_u32 s98, s98, s%d' % sW); a('s_lshl_b32 s98, s98, 7')
    a('s_add_u32 s98, s98, 0x%x' % WS_STAMP)
    a('v_mov_b32 v0, 0')
    for i in range(n):
        a('v_mov_b32 v1, s%d' % (80 + i))
        a('buffer_store_dword v1, v0, %s, s98 offen offset:%d' % (sr(WS, 4), 4 * i))
        a('s_nop 1')

def srd(name, r, off=0, size=None):
    p = PTR[name]
    L = []
    if off:
        L += ['s_add_u32 s%d, s%d, 0x%x' % (r, p, off), 's_addc_u32 s%d, s%d, 0' % (r + 1, p + 1)]
    else:
        L += ['s_mov_b32 s%d, s%d' % (r, p), 's_mov_b32 s%d, s%d' % (r + 1, p + 1)]
    L += ['s_mov_b32 s%d, 0x%x' % (r + 2, SIZE[name] if size is None else size), 's_mov_b32 s%d, 0x00020000' % (r + 3)]
    return L

def gen_mega(a, name):
    kernel_begin(a, name)
    end = name + '_end'
    slow_paths = []
    def gate(load_ins, dreg, n, want, tmp_s):
        def chk():
            L = ['v_xor_b32 v%d, v%d, v%d' % (dreg + e, dreg + e, V_1) for e in range(n)]
            if n >= 3: L += ['v_or3_b32 v%d, v%d, v%d, v%d' % (dreg, dreg, dreg + 1, dreg + 2)]
            if n == 4: L += ['v_or_b32 v%d, v%d, v%d' % (dreg, dreg, dreg + 3)]
            L += ['v_cmp_ne_u32 vcc, 0, v%d' % dreg]
            return L
        slow, ok = a.newlabel(name + '_sl'), a.newlabel(name + '_ok')
        for s in chk(): a(s)
        a('s_nop 1')
        a('s_cbranch_vccnz %s' % slow)
        a.label(ok)
        slow_paths.append((slow, ok, load_ins, chk(), tmp_s))

    a('s_cmp_ge_u32 s2, 256')
    a('s_cbranch_scc1 %s' % end)
    stamp(a, 0)
    a('s_load_dwordx16 s[4:19], s[0:1], 0')
    a('s_load_dwordx8 s[20:27], s[0:1], 64')
    a('s_load_dwordx2 s[28:29], s[0:1], 96')
    if 'e' in os.environ.get('MX', ''):
        a('s_getpc_b64 s[100:101]')
        a('v_lshlrev_b32 v2, 7, v0')
        a('global_load_dword v250, v2, s[100:101]')
    a('v_lshrrev_b32 v1, 6, v0')
    a('v_and_b32 v0, 63, v0')
    a('v_readfirstlane_b32 s%d, v1' % sW)
    a('s_and_b32 s31, s2, 7')
    a('s_lshl_b32 s31, s31, 2')
    a('s_lshr_b32 s61, s2, 3')
    a('s_and_b32 s61, s61, 3')
    a('s_add_u32 s31, s31, s61')
    a('s_lshr_b32 s3, s2, 5')
    CKV, WUK, WUV, X, DBG = R1, R2, R3, R4, R5
    VA, VW = 8, 12
    a('v_lshrrev_b32 v6, 3, v0')
    a('v_lshlrev_b32 v6, 10, v6')
    a('v_lshrrev_b32 v7, 4, v0')
    a('v_and_b32 v12, 7, v0')
    a('v_xor_b32 v12, v12, v7')
    a('v_xor_b32 v13, 4, v12')
    a('v_lshl_add_u32 v12, v12, 4, v6')
    a('v_lshl_add_u32 v13, v13, 4, v6')
    for j in range(4): a('v_add_u32 v%d, %d, v%d' % (VA + j, j * (8192 - 1024), 12 + (j & 1)))
    a('v_bfe_u32 v16, v0, 1, 3')
    a('v_xor_b32 v16, v16, v7')
    a('v_xor_b32 v17, 4, v16')
    a('v_and_b32 v18, 1, v0')
    a('v_lshlrev_b32 v18, 4, v18')
    a('v_lshl_add_u32 v18, v7, 13, v18')
    a('v_lshl_add_u32 v16, v16, 5, v18')
    a('v_lshl_add_u32 v17, v17, 5, v18')
    for j in range(4): a('v_add_u32 v%d, %d, v%d' % (VW + j, j * (32768 - 1024), 16 + (j >> 1)))
    sA, sWo, sLA, sLW, sA2 = 56, 57, 58, 59, 60
    a('s_lshl_b32 s56, s%d, 2' % sI)
    a('s_add_u32 s56, s56, s%d' % sW)
    a('s_lshl_b32 s56, s56, 16')
    a('s_lshl_b32 s57, s%d, 17' % sW)
    a('s_lshl_b32 s58, s%d, 8' % sH)
    a('s_add_u32 s57, s57, s58')
    a('s_lshl_b32 s58, s%d, 13' % sW)
    a('s_lshl_b32 s59, s%d, 12' % sW)
    a('s_add_u32 s59, s59, 65536')
    a('v_lshrrev_b32 v2, 5, v0')
    a('v_and_b32 v3, 31, v0')
    a('s_lshl_b32 s61, s2, 2')
    a('s_add_u32 s61, s61, s%d' % sW)
    a('s_lshl_b32 s61, s61, 1')
    a('v_add_u32 v4, s61, v2')
    a('v_mul_u32_u24 v5, 1280, v4')
    a('v_lshl_add_u32 v5, v3, 3, v5')
    a('v_lshlrev_b32 v%d, 4, v0' % V_LANE16)
    vm = VM(); ids = {}
    def issue(it):
        if isinstance(it, str): return it
        ids[it[0]] = vm.op()
        return it[1]
    def p1_dma(st):
        slot = st & 1; t = ('p1', st)
        L = ['s_add_u32 m0, s%d, %d' % (sLA, slot * 32768), 's_add_u32 s%d, s%d, 32768' % (sA2, sA)]
        L += [(t, 'buffer_load_dwordx4 v%d, %s, s%d offen offset:%d lds' % (VA + j, sr(CKV, 4), sA, 1024 * j)) for j in range(4)]
        L += ['s_add_u32 m0, s%d, %d' % (sLW, slot * 32768), 's_add_u32 s%d, s%d, 128' % (sA, sA)]
        L += [(t, 'buffer_load_dwordx4 v%d, %s, s%d offen offset:%d lds' % (VW + j, sr(WUK, 4), sWo, 1024 * j)) for j in range(4)]
        L += ['s_add_u32 m0, s%d, %d' % (sLA, slot * 32768 + 4096), 's_nop 0']
        L += [(t, 'buffer_load_dwordx4 v%d, %s, s%d offen offset:%d lds' % (VA + j, sr(CKV, 4), sA2, 1024 * j)) for j in range(4)]
        L += ['s_add_u32 m0, s%d, %d' % (sLW, slot * 32768 + 16384), 's_nop 0']
        L += [(t, 'buffer_load_dwordx4 v%d, %s, s%d offen offset:%d lds' % (VW + j, sr(WUV, 4), sWo, 1024 * j)) for j in range(4)]
        L += ['s_add_u32 s%d, s%d, %d' % (sWo, sWo, 64 * 8192)]
        return L
    stamp(a, 1, 'st')
    a('s_waitcnt lgkmcnt(0)')
    for n_, r_ in (('x', X), ('ckv', CKV), ('wuk', WUK), ('wuv', WUV), ('ws', WS)):
        for s in srd(n_, r_): a(s)
    XR = 192
    a('v_mov_b32 v52, 0')
    a('s_mov_b32 s79, 0x%x' % FE)
    a(issue(('ep', 'buffer_load_dword v%d, v52, %s, s79 offen %s' % (V_1, sr(WS, 4), WT))))
    xld = [('x', 'buffer_load_dwordx2 %s, v5, %s, 0 offen offset:%d' % (vr(XR + 2 * j, 2), sr(X, 4), 256 * j)) for j in range(5)]
    MX0 = os.environ.get('MX', '')
    if 'k' in MX0:
        a('v_and_b32 v20, 15, v0'); a('v_lshlrev_b32 v20, 7, v20'); a('s_lshl_b32 s62, s61, 10')
        a(issue(('pf', 'buffer_load_dword v240, v20, %s, s62 offen' % sr(CKV, 4))))
    if 'l' not in MX0:
        for it in xld: a(issue(it))
    PFB = False
    def weave(start, items):
        body = a.lines[start:]; del a.lines[start:]
        G = []
        for l in body:
            t = l.strip()
            if G and (t.startswith(('s_cselect', 's_addc', 's_subb')) or t.endswith(':') or G[-1][-1].strip().endswith(':')): G[-1].append(l)
            else: G.append([l])
        D_ = []; cur = []
        for s in items:
            cur.append(s)
            if s.startswith(('buffer_', 'global_')): D_.append(cur); cur = []
        if cur: D_[-1] += cur
        for j, d in enumerate(D_):
            for s in d: a(s)
            for g in G[(j * len(G)) // len(D_):((j + 1) * len(G)) // len(D_)]: a.lines.extend(g)
    s0_items = [issue(it) for it in p1_dma(0)]
    W0 = len(a.lines)
    a('s_lshr_b32 s61, s2, 3')
    a('s_lshl_b32 s61, s61, 2')
    a('s_add_u32 s61, s61, s%d' % sW)
    TC, TW, TX = 48, 49, 50
    a('v_bfe_u32 v20, v0, 1, 4')
    a('v_lshlrev_b32 v20, 10, v20')
    a('v_and_b32 v21, 1, v0')
    a('v_lshl_add_u32 v20, v21, 7, v20')
    a('s_lshl_b32 s62, s61, 14')
    a('v_add_u32 v%d, s62, v20' % TC)
    a('v_and_b32 v20, 7, v0')
    a('v_lshlrev_b32 v20, 7, v20')
    a('s_lshl_b32 s62, s61, 13')
    a('s_and_b32 s63, s2, 7')
    a('s_lshl_b32 s63, s63, 10')
    a('s_add_u32 s62, s62, s63')
    a('v_add_u32 v%d, s62, v20' % TW)
    def pf_chunk(c):
        if PFB: return []
        return ['s_mov_b32 s16, %d' % ((c + 1) * 128 * 8192),
                ('pf', 'buffer_load_dword v240, v%d, %s, 0 offen offset:%d' % (TC, sr(CKV, 4), 256 * (c + 1))),
                ('pf', 'buffer_load_dword v241, v%d, %s, s16 offen' % (TW, sr(WUK, 4))),
                ('pf', 'buffer_load_dword v242, v%d, %s, s16 offen' % (TW, sr(WUV, 4)))]
    a('s_getpc_b64 s[100:101]')
    a.label(name + '_pc')
    a('s_sub_u32 s100, s100, %s_pc-%s' % (name, name))
    a('s_subb_u32 s101, s101, 0')
    a('v_and_b32 v20, 7, v0')
    a('v_lshlrev_b32 v20, 7, v20')
    a('s_lshl_b32 s62, s61, 10')
    a('v_add_u32 v20, s62, v20')
    a('v_min_u32 v55, %s_codeend-%s-4, v20' % (name, name))
    a('s_min_u32 s62, s61, 79'); a('s_lshl_b32 s62, s62, 16'); a('v_mov_b32 v56, s62')
    a('s_min_u32 s62, s61, 33'); a('s_lshl_b32 s62, s62, 16'); a('v_mov_b32 v57, s62')
    TQ, TG = 53, 54
    a('v_min_u32 v20, 39, v0')
    a('v_lshrrev_b32 v21, 3, v20')
    a('s_mul_i32 s62, s61, 5')
    a('v_add_u32 v21, s62, v21')
    a('v_and_b32 v20, 7, v20')
    a('v_lshlrev_b32 v20, 7, v20')
    a('v_lshl_add_u32 v20, v21, 13, v20')
    a('v_add_u32 v%d, s63, v20' % TQ)
    a('v_min_u32 v20, 19, v0')
    a('v_lshrrev_b32 v21, 2, v20')
    a('v_add_u32 v21, s62, v21')
    a('v_mul_u32_u24 v21, 3456, v21')
    a('s_and_b32 s63, s2, 7')
    a('s_lshl_b32 s63, s63, 2')
    a('s_mul_i32 s64, s63, 37'); a('s_lshr_b32 s64, s64, 8')
    a('s_sub_u32 s63, s63, s64')
    a('v_and_b32 v20, 3, v20')
    a('v_add_u32 v20, s63, v20')
    a('v_min_u32 v20, 26, v20')
    a('v_lshl_add_u32 v%d, v20, 7, v21' % TG)
    a('s_mul_i32 s62, s61, 20480')
    a('v_and_b32 v20, 31, v0')
    a('v_lshlrev_b32 v20, 7, v20')
    a('v_add_u32 v%d, s62, v20' % TX)
    def xn_touch(j):
        return ['s_mov_b32 s16, %d' % (4096 * j), ('pf', 'buffer_load_dword v243, v%d, %s, s16 offen' % (TX, sr(WS, 4)))]
    RA, RW = 16, 18
    a('s_lshr_b32 s61, s%d, 1' % sW)
    a('s_lshl_b32 s61, s61, 14')
    a('v_bfe_u32 v20, v0, 1, 3')
    a('v_xor_b32 v20, v20, v7')
    a('v_and_b32 v21, 15, v0')
    a('v_lshlrev_b32 v21, 7, v21')
    a('v_add_u32 v21, s61, v21')
    a('v_lshl_add_u32 v%d, v20, 4, v21' % RA)
    a('v_xor_b32 v20, 4, v20')
    a('v_lshl_add_u32 v%d, v20, 4, v21' % (RA + 1))
    a('v_bfe_u32 v22, v0, 2, 2')
    a('v_lshl_add_u32 v23, v7, 3, v22')
    a('v_lshlrev_b32 v23, 8, v23')
    a('v_and_b32 v24, 3, v0')
    a('v_lshl_add_u32 v23, v24, 3, v23')
    a('v_add_u32 v23, 65536, v23')
    a('v_bfe_u32 v22, v0, 2, 3')
    a('s_and_b32 s62, s%d, 1' % sW)
    a('s_lshl_b32 s62, s62, 2')
    a('v_xor_b32 v22, s62, v22')
    for nb in range(4):
        a('v_xor_b32 v24, %d, v22' % nb)
        a('v_lshl_add_u32 v%d, v24, 5, v23' % (RW + nb))
    P_XOFF2, P_WOFF, P_WRD = 32, 33, 40
    P_X0, P_X1 = 32, 37
    a('s_sub_u32 s61, 7, s%d' % sW); a('s_mul_i32 s61, s61, 20480'); a('v_add_u32 v%d, s61, v%d' % (P_X0, V_LANE16))
    a('s_mul_i32 s61, s%d, 20480' % sW); a('v_add_u32 v%d, s61, v%d' % (P_X1, V_LANE16))
    a('v_lshrrev_b32 v25, 3, v0')
    a('v_bfe_u32 v26, v0, 1, 2')
    a('v_bfe_u32 v27, v0, 4, 2')
    a('v_xor_b32 v26, v26, v27')
    a('v_lshlrev_b32 v26, 5, v26')
    a('v_and_b32 v27, 1, v0')
    a('v_lshl_add_u32 v26, v27, 4, v26')
    a('v_lshl_add_u32 v%d, v25, 13, v26' % P_WOFF)
    a('v_add_u32 v%d, %d, v%d' % (P_WOFF + 1, 8 * 8192 - 1024, P_WOFF))
    a('v_mul_u32_u24 v25, 3456, v25')
    a('v_add_u32 v%d, v25, v26' % (P_WOFF + 2))
    a('v_add_u32 v%d, %d, v%d' % (P_WOFF + 3, 8 * 3456 - 1024, P_WOFF + 2))
    a('v_lshrrev_b32 v25, 2, v0')
    a('v_lshlrev_b32 v25, 7, v25')
    a('v_and_b32 v26, 3, v0')
    a('v_lshl_add_u32 v25, v26, 3, v25')
    a('v_add_u32 v25, 65536, v25')
    a('v_bfe_u32 v26, v0, 3, 2')
    for c in range(4):
        a('v_xor_b32 v27, %d, v26' % c)
        a('v_lshl_add_u32 v%d, v27, 5, v25' % (P_WRD + c))
        a('v_add_u32 v%d, 65536, v%d' % (P_WRD + 4 + c, P_WRD + c))
    s_w = [64, 65, 66, 67]; s_q = [68, 69]; sLW2, sCT = 70, 71; sQ = [72, 73]
    a('s_mul_i32 s17, s%d, 37' % sH)
    a('s_lshr_b32 s17, s17, 8')
    a('s_sub_u32 s71, s%d, s17' % sH)
    a('s_lshl_b32 s70, s%d, 11' % sW)
    a('s_lshl_b32 s72, s%d, 3' % sI)
    a('s_sub_u32 s73, 120, s72')
    a('s_mul_i32 s68, s72, 20480')
    a('s_mul_i32 s69, s73, 20480')
    assert WS_XN == 0
    a('s_lshl_b32 s64, s%d, 17' % sW)
    a('s_lshl_b32 s65, s%d, 8' % sH)
    a('s_add_u32 s64, s64, s65')
    a('s_add_u32 s65, s64, 128')
    a('s_mul_i32 s66, s%d, %d' % (sW, 16 * 3456))
    a('s_lshl_b32 s67, s%d, 7' % sCT)
    a('s_add_u32 s66, s66, s67')
    a('s_mov_b32 s67, s66')
    a('s_mul_i32 s61, s17, 7')
    a('s_sub_u32 s61, s%d, s61' % sH)
    a('s_cmp_eq_u32 s61, 6')
    a('s_cselect_b32 s74, 0, 0x%x' % SIZE['wg'])
    a('s_cmp_ge_u32 s%d, 27' % sCT)
    a('s_cselect_b32 s74, 0, s74')
    a('s_lshl_b32 s61, s%d, 2' % sW)
    a('s_lshl_b32 s76, s2, 4'); a('s_add_u32 s76, s76, s61')
    a('s_add_u32 s75, s76, 0x%x' % FK)
    a('s_add_u32 s77, s76, 0x%x' % FC)
    a('s_and_b32 s78, s76, 0x1ff')
    a('s_add_u32 s76, s76, 0x%x' % FH)
    a('s_sub_u32 s62, 15, s%d' % sI); a('s_lshl_b32 s62, s62, 9')
    a('s_add_u32 s78, s78, s62'); a('s_add_u32 s78, s78, 0x%x' % FC)
    a('v_cmp_eq_u32 vcc, 0, v0')
    a('v_mov_b32 v25, 0x20000000')
    a('s_lshl_b32 s26, s2, 2'); a('s_add_u32 s26, s26, 0x%x' % FL)
    a('v_cndmask_b32 v%d, v25, 0, vcc' % V_ONE)
    a('s_cmp_eq_u32 s%d, 0' % sW)
    a('s_cselect_b32 s26, s26, 0x20000000')
    a('s_lshl_b32 s27, s2, 2'); a('s_or_b32 s27, s27, s%d' % sW)
    a('s_cmp_eq_u32 s27, 0')
    a('s_cselect_b32 s27, s79, 0x20000000')
    a('s_mov_b32 s79, 0x%x' % FL)
    def flag_store(sreg, val=V_1):
        return ('fl', 'buffer_store_dword v%d, v%d, %s, s%d offen %s' % (val, V_ONE, sr(WS, 4), sreg, WT))
    weave(W0, s0_items)
    W1 = len(a.lines)
    a('s_mov_b32 s61, 0x9e3779b1')
    a('v_mul_lo_u32 v%d, s61, v%d' % (V_1, V_1))
    a('v_add_u32 v%d, 0x7f4a7c15, v%d' % (V_1, V_1))
    import k1
    b = Asm(); k1.ln_part(b, XR, WS, 4, 3)
    ln_lines = [l.strip() for l in b.lines]
    for l in ln_lines[:-20]: a(l)
    a('v_lshrrev_b32 v224, 3, v3')
    a('v_lshlrev_b32 v224, 9, v224')
    a('v_and_b32 v225, 3, v3')
    a('v_lshl_add_u32 v224, v225, 7, v224')
    a('v_and_b32 v225, 7, v4')
    a('v_lshl_add_u32 v224, v225, 4, v224')
    a('v_bfe_u32 v225, v3, 2, 1')
    a('v_lshl_add_u32 v224, v225, 3, v224')
    a('v_add_u32 v224, %d, v224' % (128 * 1024))
    for j in range(5): a('ds_write_b64 v224, %s offset:%d' % (vr(XR + 2 * j, 2), 2048 * j))
    a('s_lshl_b32 s61, s%d, 10' % sW)
    a('s_add_u32 s61, s61, %d' % (128 * 1024))
    a('v_add_u32 v225, s61, v%d' % V_LANE16)
    a('v_lshrrev_b32 v226, 3, v0')
    a('v_lshlrev_b32 v226, 8, v226')
    a('v_and_b32 v227, 7, v0')
    a('v_lshl_add_u32 v226, v227, 4, v226')
    a('s_lshr_b32 s61, s2, 1')
    a('s_mul_i32 s61, s61, 20480')
    a('s_and_b32 s62, s2, 1')
    a('s_lshl_b32 s62, s62, 7')
    a('s_add_u32 s61, s61, s62')
    a('s_lshl_b32 s62, s%d, 11' % sW)
    a('s_add_u32 s61, s61, s62')
    a('s_add_u32 s62, s61, 8192')
    a('s_add_u32 s63, s61, 16384')
    a('s_cmp_lt_u32 s%d, 2' % sW)
    a('s_cselect_b32 s63, s63, 0x20000000')
    lnq = []
    for l in a.lines[W1:]:
        t = l.strip()
        if t.startswith('s_cselect'): lnq[-1] += '\n' + t
        else: lnq.append(t)
    del a.lines[W1:]
    xn_reads = ['ds_read_b128 %s, v225 offset:%d' % (vr(XR + 4 * t, 4), 4096 * t) for t in range(3)]
    xn_stores = [('xn', 'buffer_store_dwordx4 %s, v226, %s, s%d offen %s' % (vr(XR + 4 * t, 4), sr(WS, 4), 61 + t, WT)) for t in range(3)]
    MX = os.environ.get('MX', '')
    if 'x' in MX: xn_stores = []
    if 'p' in MX: xn_stores = [(t, s.replace(WT, '')) for t, s in xn_stores]
    WQ, WG, WU = R1, R2, R3
    WSLOT = [128 * 1024, 64 * 1024, 96 * 1024]
    P_ACCV, P_ACCA, P_WF, P_ACT = 128, 0, 128, 192
    srdm = [WQ, WQ, WG, WU]; stride = [8192, 8192, 3456, 3456]
    def w_dma(st, nm):
        L = []
        for m in range(nm):
            L.append('s_add_u32 m0, s%d, %d' % (sLW2, WSLOT[st % 3] + m * 8192))
            L.append('s_nop 0')
            for j in range(2):
                L.append((('w', st), 'buffer_load_dwordx4 v%d, %s, s%d offen offset:%d lds' % (P_WOFF + 2 * (m // 2) + j, sr(srdm[m], 4), s_w[m], 1024 * j)))
            L.append('s_add_u32 s%d, s%d, %d' % (s_w[m], s_w[m], 64 * stride[m]))
        return L
    def a_load(k):
        base = P_ACT + 16 * (k % 4)
        L = [(('a', k), 'buffer_load_dwordx4 %s, v%d, %s, s%d offen offset:%d' % (ar(base + 4 * qi, 4), (P_X0, P_X1)[qi % 2], sr(WS, 4), s_q[qi // 2], 1024 * (k % 4))) for qi in range(4)]
        if k % 4 == 3: L += ['s_add_u32 s%d, s%d, 4096' % (s, s) for s in s_q]
        return L
    FR = 64
    def reads(slot, ks, fs):
        base = FR + 64 * fs
        def A(i): return ['ds_read_b128 %s, v%d offset:%d' % (vr(base + 4 * i, 4), RA + ks, slot * 32768 + i * 2048)]
        def W(mat, nb): return ['ds_read_b64_tr_b16 %s, v%d offset:%d' % (vr(base + 32 + 16 * mat + 4 * nb + 2 * r, 2), RW + nb,
                                slot * 32768 + mat * 16384 + (32 * ks + 4 * r) * 256) for r in range(2)]
        L = A(0)
        for nb in range(4): L += W(0, nb)
        for nb in range(4): L += W(1, nb)
        for i in range(1, 8): L += A(i)
        return L
    def mfmas(fs, first, rbs=range(8)):
        base = FR + 64 * fs; L = []
        for rb in rbs:
            act = vr(base + 4 * rb, 4)
            for mat in range(2):
                for nb in range(4):
                    w = vr(base + 32 + 16 * mat + 4 * nb, 4)
                    d = ar((rb * 8 + mat * 4 + nb) * 4, 4); c = '0' if first else d
                    L.append('%s %s, %s, %s, %s' % ((MF16, d, w, act, c) if mat == 0 else (MF16, d, act, w, c)))
        return L
    stamp(a, 2); stamp(a, 8, 'st')
    S1L = p1_dma(1); npre = int(os.environ.get('NPRE', 12))
    for it in S1L[:npre]: a(issue(it))
    a('s_waitcnt vmcnt(%d) lgkmcnt(0)' % vm.cnt(ids[('p1', 0)]))
    stamp(a, 9, 'st')
    a('s_barrier')
    stamp(a, 3); stamp(a, 10, 'st')
    for s in reads(0, 0, 0): a(s)
    ln_poll = 'buffer_load_dwordx4 v[244:247], v%d, %s, s79 offen %s' % (V_LANE16, sr(WS, 4), WT)
    NST = 8
    pend = S1L[npre:] + pf_chunk(0) + (xld if 'l' in MX0 else []) + [('pf', 'global_load_dword v249, v55, s[100:101]')]
    NPRE = int(os.environ.get('NPRE', 0))
    P1SP = int(os.environ.get('P1SP', 4))
    LNS = 2 if 'l' in MX0 else 1
    LN0 = 3 if 'l' in MX0 else 0
    for st in range(NST - 1):
        slot = st & 1
        for ks in range(2):
            rd = []
            if ks == 1:
                if st < NST - 1:
                    assert not any(x[0] == ('p1', st + 1) for x in pend if not isinstance(x, str))
                    a('s_waitcnt vmcnt(%d) lgkmcnt(0)' % vm.cnt(max(ids[('p1', st + 1)], ids['lnp'] if st == LNS + 4 else 0))); a('s_barrier')
                    rd = reads(1 - slot, 0, 0)
                    if st == LNS: rd += xn_reads; assert not lnq
                else: a('s_waitcnt lgkmcnt(0)')
                if st + 2 < NST: pend += p1_dma(st + 2)
                if st == LNS + 2: pend = [flag_store(26)] + pend
                if st in (0, 1): pend += pf_chunk(st + 1)
                if st == 2: pend += [('pf', 'global_load_dword v240, v%d, s[8:9]' % TQ)]
                if st == 3: pend += [('pf', 'global_load_dword v241, v%d, s[18:19]' % TG), ('pf', 'global_load_dword v242, v%d, s[20:21]' % TG)]
                if st == LNS + 3: pend += [('lnp', ln_poll)]
                if st == 4 and 'c' in MX: pend += [('pf', 'global_load_dword v249, v55, s[100:101]')]
                if st == 6: pend += w_dma(1, 4)
                if st == LNS + 4:
                    gate(ln_poll, 244, 4, 1, 61)
                    pend += [flag_store(27)]
                    pend += xn_touch(0) + xn_touch(1)
                if st == 6: pend += xn_touch(2) + xn_touch(3) + xn_touch(4)
            else:
                a('s_waitcnt lgkmcnt(0)')
                rd = reads(slot, 1, 1)
                if st == LNS + 1: pend += xn_stores
                if st == 6:
                    pend += srd('wq', WQ) + srd('wg', WG) + srd('wu', WU) + ['s_mov_b32 s%d, s74' % (WG + 2), 's_mov_b32 s%d, s74' % (WU + 2)] + w_dma(0, 4)
            lastv = -10
            for g, m in enumerate(mfmas(ks, st == 0 and ks == 0)):
                a(m)
                if g % 2 == 0 and rd: a(rd.pop(0))
                elif pend and g % 2 == 1:
                    while pend and pend[0] == 's_nop 0': pend.pop(0)
                    if pend and (isinstance(pend[0], str) or g - lastv >= (2 if st < 2 else P1SP)):
                        if not isinstance(pend[0], str): lastv = g
                        a(issue(pend.pop(0)))
                for _ in range(3 if 'l' in MX0 else 2):
                    if lnq and 2 * st + ks >= LN0: a(lnq.pop(0))
            stamp(a, 1 + 2 * st + ks, 'p1')
        if st == 3: stamp(a, 4); cstamp(a, 1)
    def w_read(k, n):
        st, ks = k // 2, k % 2
        off = WSLOT[st % 3] - 65536
        grp = off // 65536; off %= 65536
        m, c = n // 4, n % 4
        return ['ds_read_b64_tr_b16 %s, v%d offset:%d' % (wfr(k, n, r), P_WRD + 4 * grp + c, off + m * 8192 + (32 * ks + 16 * r) * 128) for r in range(2)]
    def wfr(k, n, r=None):
        f, b_ = (vr, 96 + 4 * (n - 8)) if (k >= 16 and n >= 8) else (ar, P_WF + 4 * n)
        return f(b_, 4) if r is None else f(b_ + 2 * r, 2)
    sBASE, sK0, sK1, sT, sC0, sC1, sS1 = 56, 57, 58, 59, 60, 61, 62
    sc = ['s_lshl_b32 s56, s%d, 20' % sH, 's_lshl_b32 s57, s%d, 17' % sI, 's_add_u32 s58, s56, s57', 's_lshr_b32 s57, s%d, 1' % sW, 's_lshl_b32 s57, s57, 16',
          's_add_u32 s58, s58, s57', 's_add_u32 s58, s58, 0x%x' % WS_KV, 's_and_b32 s57, s%d, 1' % sW, 's_lshl_b32 s16, s57, 11', 's_add_u32 s16, s16, s58',
          's_lshl_b32 s17, s57, 12', 's_add_u32 s17, s17, s58', 's_add_u32 s17, s17, 16384',
          's_lshl_b32 s57, s%d, 14' % sW, 'v_add_u32 v26, s57, v%d' % V_LANE16,
          's_lshl_b32 s59, s%d, 12' % sW, 's_add_u32 s56, s56, s59', 's_add_u32 s56, s56, 0x%x' % WS_KV, 's_lshl_b32 s60, s%d, 13' % sW,
          's_add_u32 s60, s60, %d' % (65536 + 32768), 's_add_u32 s61, s60, 16384', 's_add_u32 s62, s56, 32768', 's_add_u32 s57, s56, 65536', 's_add_u32 s58, s57, 32768',
          'v_add_u32 v%d, 16384, v%d' % (V_LANE16V, V_LANE16), 'v_and_b32 v%d, 7, v0' % V_PA, 'v_lshlrev_b32 v%d, 9, v%d' % (V_PA, V_PA),
          's_and_b32 s79, s2, 31', 's_lshl_b32 s79, s79, 4', 's_add_u32 s79, s79, 0x%x' % FK]
    def conv(b0, b1, T, dst):
        return ['v_accvgpr_read_b32 v%d, a%d' % (T + e, b0 * 4 + e) for e in range(4)] + ['v_accvgpr_read_b32 v%d, a%d' % (T + 4 + e, b1 * 4 + e) for e in range(4)] + \
               ['v_cvt_pk_bf16_f32 v%d, v%d, v%d' % (dst + e, T + 2 * e, T + 2 * e + 1) for e in range(4)]
    def store(T, sb, off):
        return ['s_add_u32 s63, s%d, %d' % (sb, off & ~4095),
                ('kv', 'buffer_store_dwordx4 %s, v%d, %s, s63 offen offset:%d %s' % (vr(T, 4), V_LANE16, sr(WS, 4), off & 4095, WT))]
    def jobs(rp):
        J = []
        for rb in (2 * rp, 2 * rp + 1):
            for s in range(2): J.append((rb * 8 + 2 * s, rb * 8 + 2 * s + 1, 16, (rb // 4) * 32768 + ((rb % 4) * 4 + s) * 1024))
        rb = 2 * rp
        for nb in range(4): J.append((rb * 8 + 4 + nb, (rb + 1) * 8 + 4 + nb, 17, (rb // 4) * 32768 + (((rb % 4) // 2) * 8 + nb) * 1024))
        return J
    J1 = jobs(3) + jobs(2); J2 = jobs(0) + jobs(1)
    a('s_waitcnt lgkmcnt(0)')
    rd = reads(1, 1, 1)
    pend += sc
    for g, m in enumerate(mfmas(0, False, (6, 7, 4, 5))):
        a(m)
        if rd: a(rd.pop(0))
        for _ in range(1 if rd else 2):
            while pend and pend[0] == 's_nop 0': pend.pop(0)
            if pend and not (_ == 1 and not isinstance(pend[0], str)): a(issue(pend.pop(0)))
    assert not any(x[0] == ('w', 0) for x in pend if not isinstance(x, str))
    a('s_waitcnt vmcnt(%d) lgkmcnt(0)' % vm.cnt(ids[('w', 0)]))
    a('s_barrier')
    pend += w_dma(2, 4)
    fq = []
    for n_, (b0, b1, sb, off) in enumerate(J1):
        T = 192 + 12 * (n_ % 4)
        fq += conv(b0, b1, T, T + 8) + ['ds_write_b128 v26, %s offset:%d' % (vr(T + 8, 4), 1024 * n_)]
        if n_ >= 8 and n_ < 12: fq += a_load(n_ - 8)
    for n in range(16): fq += w_read(0, n)
    tail = mfmas(1, False, (6, 7, 4, 5)) + mfmas(0, False, (0, 1, 2, 3)) + mfmas(1, False, (0, 1, 2, 3))
    per = -(-len(fq) // (len(tail) - 24))
    for g, m in enumerate(tail):
        a(m)
        if g < 22:
            for _ in range(2):
                while pend and pend[0] == 's_nop 0': pend.pop(0)
                if pend and not (_ == 1 and not isinstance(pend[0], str)): a(issue(pend.pop(0)))
        else:
            assert not pend
            for _ in range(per):
                if fq: a(issue(fq.pop(0)))
    assert not fq
    stamp(a, 5); cstamp(a, 2); stamp(a, 6); cstamp(a, 3)
    cq = []
    for n_, (b0, b1, sb, off) in enumerate(J2): cq += conv(b0, b1, 4 + 8 * (n_ % 2), 64 + 4 * n_)
    kv_sched = {}
    KVEND = int(os.environ.get('KVEND', 14))
    def kstep(n_): return 1 + (n_ * (KVEND - 1)) // 32
    for n_, (b0, b1, sb, off) in enumerate(J2):
        kv_sched.setdefault(kstep(n_), []).extend(store(64 + 4 * n_, sb, off))
        kv_sched.setdefault(kstep(n_) + 1, []).append('ds_read_b128 %s, v26 offset:%d' % (vr(64 + 4 * n_, 4), 1024 * n_))
    for n_, (b0, b1, sb, off) in enumerate(J1):
        kv_sched.setdefault(kstep(16 + n_), []).extend(store(64 + 4 * n_, sb, off))
    kv_poll0 = 'buffer_load_dwordx4 v[64:67], v52, %s, s79 offen %s' % (sr(WS, 4), WT)
    kv_poll = 'buffer_load_dwordx4 v[208:211], v%d, %s, s79 offen %s' % (V_PA, sr(WS, 4), WT)
    def kv_dma(m0expr, voff, ssrc, tag):
        return [m0expr, 's_nop 0'] + [(tag, 'buffer_load_dwordx4 v%d, %s, s%d offen offset:%d lds' % (voff, sr(WS, 4), ssrc, 1024 * j)) for j in range(4)]
    sTHR, sBIG, s2W, sM0, sM1, sDYN, sE0, sE1, sCNT = 64, 65, 66, 67, 68, 69, 70, 71, 63
    halves = []
    for k in range(16): halves += [(k, 0), (k, 1)]
    halves += [(k, 0) for k in range(16, 20)] + [(k, 1) for k in range(16, 20)]
    qe = ['s_mov_b32 s64, %s' % f2u(math.log2(math.e) / math.sqrt(128.0))]
    for qi in range(4):
        for s in range(4):
            r0, r1 = P_ACCV + ((2 * s) * 4 + qi) * 4, P_ACCV + ((2 * s + 1) * 4 + qi) * 4
            qe += ['v_mul_f32 v%d, s64, v%d' % (r + e, r + e) for r in (r0, r1) for e in range(4)]
            qe += ['v_cvt_pk_bf16_f32 v%d, v%d, v%d' % (r + e, r + 2 * e, r + 2 * e + 1) for r in (r0, r1) for e in range(2)]
            qe += ['v_accvgpr_write_b32 a%d, v%d' % (A_Q[qi // 2] + ((qi % 2) * 4 + s) * 4 + 2 * h + e, (r0, r1)[h] + e) for h in range(2) for e in range(2)]
    qe += ['v_and_b32 v5, 15, v0', 'v_lshrrev_b32 v6, 4, v0', 'v_lshlrev_b32 v6, 2, v6', 'v_sub_u32 v5, v5, v6']
    for r in range(4): qe += ['v_cmp_gt_i32 vcc, %d, v5\ns_nop 1\nv_cndmask_b32 v%d, 0, 1.0, vcc' % (r, TRI + r)]
    qe += ['v_mov_b32 v%d, 0x3f803f80' % (V_ONES + e) for e in range(4)] + ['v_mov_b32 v%d, 0' % (NEGM + j) for j in range(16)]
    qe += ['v_mov_b32 v%d, 0' % (V_L + j) for j in range(4)]
    qe += ['v_mov_b32 v%d, v%d' % (V_KRD, V_LANE16), 'v_add_u32 v%d, 65536, v%d' % (V_VRD, V_LANE16)]
    qe += ['s_lshl_b32 s8, s72, 10', 's_lshl_b32 s9, s73, 10', 's_lshl_b32 s10, s%d, 18' % sCT, 's_add_u32 s10, s10, 0x%x' % WS_H,
           's_cmp_eq_u32 s74, 0\ns_cselect_b32 s10, 0x20000000, s10', 's_add_u32 s8, s8, s10', 's_add_u32 s9, s9, s10',
           's_add_u32 s10, s8, %d' % (128 * 1024), 's_add_u32 s11, s9, %d' % (128 * 1024),
           's_sub_u32 s12, 7, s%d' % sW, 's_lshl_b32 s12, s12, 10', 'v_add_u32 v%d, s12, v%d' % (P_X0, V_LANE16),
           's_lshl_b32 s12, s%d, 10' % sW, 'v_add_u32 v%d, s12, v%d' % (P_X1, V_LANE16),
           's_mov_b32 s%d, %s' % (sTHR, f2u(THR)), 's_mov_b32 s%d, %s' % (sBIG, f2u(-BIG)), 's_sub_u32 s%d, 3, s%d' % (s2W, sW),
           's_cmp_eq_u32 s%d, 0\ns_cselect_b32 s%d, s%d, 0' % (sI, sDYN, sBIG)]
    pend = []; vq = cq; vper = 5; gcnt = 0; lastv = -10; P2SP = int(os.environ.get('P2SP', 4))
    for hi_, (k, part) in enumerate(halves):
        st, ks = k // 2, k % 2
        base = P_ACT + 16 * (k % 4)
        if part == 0:
            need = ids[('a', k)]
            if k == KVEND + 1:
                assert not any(x[0] == 'kv' for x in pend if not isinstance(x, str))
                need = max(need, ids['kv'])
            assert not any(x[0] == ('a', k) for x in pend if not isinstance(x, str))
            a('s_waitcnt vmcnt(%d) lgkmcnt(8)' % min(63, vm.cnt(need)))
            pend += kv_sched.get(k, [])
            if k == KVEND + 1: pend += [flag_store(75)]
            if k == 18: pend += [('kvp', kv_poll0)]
            if k == 12 and 'c' in MX: pend += [('pf', 'global_load_dword v27, v55, s[100:101]')]
            if k > 0 and k + 3 < 20: pend = a_load(k + 3) + pend
        elif k == 16:
            a('s_waitcnt vmcnt(%d) lgkmcnt(8)' % vm.cnt(ids['kvp']))
            gate(kv_poll0, 64, 4, 1, 63)
            pend += kv_dma('s_add_u32 m0, s59, 0', V_LANE16, sBASE, 'k0') + kv_dma('s_add_u32 m0, s59, 16384', V_LANE16, sS1, 'k1')
            pend += kv_dma('s_add_u32 m0, s59, 32768', V_LANE16, sK0, 'k2') + kv_dma('s_add_u32 m0, s59, 65536', V_LANE16V, sBASE, 'v0')
            pend += kv_dma('s_add_u32 m0, s59, 49152', V_LANE16, sK1, 'k3') + kv_dma('s_add_u32 m0, s59, %d' % (65536 + 16384), V_LANE16V, sS1, 'v1')
            vq = qe; vper = 3
        else: a('s_waitcnt lgkmcnt(8)')
        for n in range(8 * part, 8 * part + 8):
            if n % 8 == 4: a('s_waitcnt lgkmcnt(%d)' % (8 if k < 19 else 0))
            if k == 0 and n == 8: assert len(vq) <= 96
            if k == 0 and n == 12: assert not vq
            for qi in range(4):
                d = vr(P_ACCV + (n * 4 + qi) * 4, 4) if n < 8 else ar(P_ACCA + ((n - 8) * 4 + qi) * 4, 4)
                a('%s %s, %s, %s, %s' % (MF16, d, wfr(k, n), ar(base + 4 * qi, 4), '0' if k == 0 else d))
                if qi < 3:
                    while pend and pend[0] == 's_nop 0': pend.pop(0)
                    if pend and (qi != 1 or not vq) and (isinstance(pend[0], str) or gcnt - lastv >= P2SP):
                        if not isinstance(pend[0], str): lastv = gcnt
                        a(issue(pend.pop(0)))
                gcnt += 1
                for _ in range(vper if qi < 3 else vper - 2):
                    if vq: a(vq.pop(0))
            if k + 1 < 20:
                if n == 0 and ks == 1:
                    assert not any(x[0] == ('w', st + 1) for x in pend if not isinstance(x, str))
                    a('s_waitcnt vmcnt(%d) lgkmcnt(0)' % min(63, vm.cnt(ids[('w', st + 1)])))
                    a('s_barrier')
                    if st + 3 < 10: pend = pend + w_dma(st + 3, 4)
                for s in w_read(k + 1, n): a(s)
        if part == 1 and k < 16: stamp(a, 1 + k, 'p2a')
        if hi_ >= 24: stamp(a, hi_ - 23, 'p2b')
    assert not pend and not vq
    stamp(a, 7); cstamp(a, 4)
    a('s_waitcnt vmcnt(%d)' % vm.cnt(max(ids['k2'], ids['v0'])))
    stamp(a, 8)
    a('s_barrier')
    hx = []
    for j_ in range(8):
        s, qi = j_ // 4, j_ % 4
        T = 192 + 20 * (j_ % 3)
        for cc in range(2):
            g = P_ACCA + ((2 * s + cc) * 4 + qi) * 4
            hx += ['v_accvgpr_read_b32 v%d, a%d' % (T + 8 * cc + e, g + e) for e in range(4)] + ['v_accvgpr_read_b32 v%d, a%d' % (T + 8 * cc + 4 + e, g + 64 + e) for e in range(4)]
            hx += ['v_mul_f32 v%d, v%d, v%d' % (T + 8 * cc + e, T + 8 * cc + e, T + 8 * cc + 4 + e) for e in range(4)]
            hx += ['v_cvt_pk_bf16_f32 v%d, v%d, v%d' % (T + 16 + 2 * cc + e, T + 8 * cc + 2 * e, T + 8 * cc + 2 * e + 1) for e in range(2)]
        hx.append('buffer_store_dwordx4 %s, v%d, %s, s%d offen %s' % (vr(T + 16, 4), (P_X0, P_X1)[qi % 2], sr(WS, 4), 8 + qi // 2 + 2 * s, WT))
    hx += ['%s %s, %s, %s, 0' % (MFMA, ar(16 * j_, 16), vr(NEGM, 4), vr(NEGM, 4)) for j_ in range(8)]
    hx += [kv_poll]
    def kread(i, p): return 'ds_read_b128 %s, v%d offset:%d' % (ar(A_RING + 4 * (i % R), 4), V_KRD, p * 16384 + i * 1024)
    def vread(i, p): return 'ds_read_b128 %s, v%d offset:%d' % (ar(A_RING + 4 * (i % R), 4), V_VRD, p * 16384 + i * 1024)
    for i in range(D): a(kread(i, 0))
    for s_ in hx[:16]: a(s_)
    hx = hx[16:]
    stamp(a, 9); stamp(a, 1, 'p3')
    def prefill(st, p, tau, dyn=False):
        qb = 1 - tau
        sref = sW if tau == 0 else s2W
        big = sDYN if dyn else sBIG
        out = []
        for kb in range(4):
            S = SB[st][p] + (kb * 2 + qb) * 4
            L = ['s_cmp_eq_u32 s%d, %d' % (sref, kb), 's_cselect_b32 s%d, s%d, 0' % (sM0, big)]
            t = NEGM + (st * 2 + qb) * 4
            if kb > 0:
                L += ['s_cmp_lt_u32 s%d, %d' % (sref, kb), 's_cselect_b32 s%d, s%d, 0' % (sM1, big), 'v_add_f32 v%d, s%d, v%d' % (V_T1, sM1, t)]
                t = V_T1
            L += ['v_fma_f32 v%d, v%d, s%d, v%d' % (S + r, TRI + r, sM0, t) for r in range(4)]
            out.append('\n'.join(L))
        return out
    def qk_mf(sets, p):
        G = []
        for f in range(16):
            kb, ds = f // 4, f % 4; L = []
            for st, qbs, inq in sets:
                for qb in qbs:
                    d = vr(SB[st][p] + (kb * 2 + qb) * 4, 4)
                    c = vr(NEGM + (st * 2 + qb) * 4, 4) if (ds == 0 and inq != qb) else d
                    L.append('%s %s, %s, %s, %s' % (MF16, d, ar(A_RING + 4 * (f % R), 4), ar(A_Q[st] + (qb * 4 + ds) * 4, 4), c))
            G.append(L)
        return G
    def pv_mf(sets, p):
        G = []
        for f in range(16):
            ks, db = f // 8, f % 8; L = []
            for st, qbs in sets:
                for qb in qbs:
                    d = ar(A_O[st] + (db * 2 + qb) * 4, 4)
                    L.append('%s %s, %s, %s, %s' % (MF16, d, ar(A_RING + 4 * (f % R), 4), vr(PB[st][p] + (qb * 2 + ks) * 4, 4), d))
            G.append(L)
        return G
    def pre_items(pf):
        a(pf[0]); a('s_nop 1')
        return [dict(lo=max(0, 4 * kb - 5), hi=4 * kb - 3, ins=pf[kb]) for kb in range(1, 4)]
    LGS = int(os.environ.get('LGS', 4)); LGW = int(os.environ.get('LGW', 0))
    rare_sites = []
    pk = Packer(a)
    def lg_items(n, skip_last):
        return [dict(lo=i - LGW, hi=i, lg=i + LGS) for i in range(LGS - 1, n, LGS) if not (i == n - 1 and skip_last)]
    def ladds(ex):
        return ['v_add_f32 v%d, v%d, v%d' % (V_L + st * 2 + qb, V_L + st * 2 + qb, LT + (st * 2 + qb) * 4) for st, qbs in ex for qb in qbs]
    def iteration(p, qk, ex, pv, prev_ex, nxt='k', dk=True, dv=True, loop_ctr=None, post_bar=(), mid=(), anyw=(), wv=None, pf=None, anylo=2, vx=0, lt=False):
        groups = []; rs = []
        pfi = pre_items(pf) if pf else []
        if qk:
            groups += qk_mf(qk, p); rs += [kread(i, p) for i in range(16)]
        groups += pv_mf(pv, p); rs += [vread(i, p) for i in range(16)]
        n = len(groups)
        nx = {'k': [kread(i, 1 - p) for i in range(D)], 'v': [vread(i, 1 - p) for i in range(D)], None: [None] * D}[nxt]
        rds = rs[D:] + nx
        bg = n - D
        it = [dict(lo=0, hi=0, ins=s, v=True) for s in ladds(prev_ex)] + pfi
        nd = 0
        if wv is None: gv, gm, gk, sl = {'0': ((2, 4, 5, 6), 8, (10, 12, 14, 16), 1), '1': ((1, 3, 5, 7), 8, (10, 12, 14, 16), 0), '2': ((1, 4, 6, 8), 9, (11, 13, 16, 18), 0)}[os.environ.get('DPOS', '0')]
        else:
            pos = [2 + 4 * j + wv for j in range(8)]
            gv = [x // 2 for x in pos[:4]]; gk = [x // 2 + 1 for x in pos[4:]]; gm = gv[3] + 1; sl = 0
        late = wv is not None and wv % 2 == 1
        if dv:
            it.append(dict(lo=0, hi=0 if gv[0] == 1 else 1, ins='s_sub_u32 m0, s%d, s%d' % ((sC0, sC1)[p], sT)))
            for j, i in enumerate(gv):
                it.append(dict(lo=i + (1 if late else 0), hi=i + sl, ins='buffer_load_dwordx4 v%d, %s, s%d offen offset:%d lds' % (V_LANE16V, sr(WS, 4), (sK0, sK1)[p], 1024 * j)))
            nd += 4
        if dk:
            it.append(dict(lo=gm, hi=gm + 1, ins='s_add_u32 m0, s%d, %d' % (sT, p * 16384)))
            it.append(dict(lo=gm, hi=gm + 1, ins='s_add_u32 s%d, s%d, 32768' % ((sK0, sK1)[p], (sK0, sK1)[1 - p])))
            for j, i in enumerate(gk):
                it.append(dict(lo=i + (1 if late else 0), hi=i + sl, ins='buffer_load_dwordx4 v%d, %s, s%d offen offset:%d lds' % (V_LANE16, sr(WS, 4), (sK0, sK1)[p], 1024 * j)))
            nd += 4
        if lt:
            vreg, ptr, step, lim = ((63, 14, 7 * 1024 * 128, SIZE['wo'] - 128), (62, 22, 3 * 1024 * 128, SIZE['wd'] - 128))[p]
            it.append(dict(lo=bg, hi=bg + 2, ins='global_load_dword v7, v%d, s[%d:%d]' % (vreg, ptr, ptr + 1)))
            it.append(dict(lo=bg + 3, hi=n - 2, ins='v_add_u32 v%d, 0x%x, v%d' % (vreg, step, vreg), v=True))
            it.append(dict(lo=bg + 3, hi=n - 1, ins='v_min_u32 v%d, 0x%x, v%d' % (vreg, lim, vreg), v=True))
            vx += 1
        nd += sum(1 for s in mid if s.startswith('buffer_'))
        if p == 1:
            if qk: it.append(dict(lo=16 - D, hi=bg - 1, ins='v_xor_b32 v%d, 32768, v%d' % (V_KRD, V_KRD), v=True))
            it.append(dict(lo=bg - 1 if nxt == 'v' else bg, hi=bg - 1 if nxt == 'v' else n - 1, ins='v_xor_b32 v%d, 32768, v%d' % (V_VRD, V_VRD), v=True))
            it.append(dict(lo=13, hi=n - 1, ins='s_xor_b32 s%d, s%d, 32768' % (sT, sT)))
        if nxt is not None:
            it.append(dict(lo=bg - 3, hi=bg - 2, ins='s_waitcnt vmcnt(%d)' % (nd + vx)))
            it.append(dict(lo=bg - 1, hi=bg - 1, ins='s_barrier'))
        it += lg_items(n, nxt is None)
        it.sort(key=lambda x: (x['hi'], x['lo']))
        for j, s in enumerate(mid):
            g_ = 9 + (j * (bg - 4 - 9)) // len(mid)
            it.append(dict(lo=g_, hi=bg - 4, ins=s))
        for j, s in enumerate(anyw):
            it.append(dict(lo=anylo, hi=n - 1, ins=s))
        lo0 = bg if nxt is not None else 0
        for j, s in enumerate(post_bar):
            it.append(dict(lo=lo0 + (j * (n - lo0)) // len(post_bar), hi=n - 1, ins=s))
        fin = []
        if ex:
            lts = [LT + (st * 2 + qb) * 4 for st, qbs in ex for qb in qbs]
            cur = lts[0]
            if len(lts) == 2: fin.append('v_max_f32 v%d, v%d, v%d' % (V_T0, lts[0], lts[1])); cur = V_T0
            if len(lts) >= 3: fin.append('v_max3_f32 v%d, v%d, v%d, v%d' % (V_T0, lts[0], lts[1], lts[2])); cur = V_T0
            if len(lts) == 4: fin.append('v_max_f32 v%d, v%d, v%d' % (V_T0, V_T0, lts[3]))
            fin.append('v_cmp_lt_f32 vcc, s%d, v%d' % (sTHR, cur))
        pk.run(groups, rds, it, [(st, 1 - p, qbs) for st, qbs in ex], [], fin, (1, p) if qk else None, True)
        if loop_ctr: a('s_sub_u32 s%d, s%d, 1' % (loop_ctr[0], loop_ctr[0]))
        if ex:
            stub, back = a.newlabel(name + '_rs'), a.newlabel(name + '_rb')
            a('s_cbranch_vccnz %s' % stub)
            a.label(back)
            rare_sites.append((stub, back, 1 - p, ex))
        if loop_ctr: a('s_cbranch_scc0 %s' % loop_ctr[1])
    def epilogue(st):
        a('s_lshl_b32 s%d, s%d, 10' % (sE0, sQ[st]))
        a('s_lshl_b32 s%d, s%d, 19' % (sE1, sH))
        a('s_add_u32 s%d, s%d, s%d' % (sE0, sE0, sE1))
        a('s_add_u32 s%d, s%d, 0x%x' % (sE0, sE0, WS_CTX))
        a('s_lshl_b32 s%d, s%d, 10' % (sM1, sW))
        a('s_sub_u32 s%d, s%d, s%d' % (sM0, sE0, sM1)); a('s_add_u32 s%d, s%d, 7168' % (sM0, sM0))
        a('s_add_u32 s%d, s%d, s%d' % (sM1, sE0, sM1))
        a('v_rcp_f32 v%d, v%d' % (V_T0, V_L + st * 2))
        a('v_rcp_f32 v%d, v%d' % (V_T1, V_L + st * 2 + 1))
        a('s_nop 1')
        c3 = 0
        for s in range(4):
            for qb in range(2):
                T = SB[st][0] + 16 * (c3 % 4); c3 += 1
                for cc in range(2):
                    for e in range(4): a('v_accvgpr_read_b32 v%d, a%d' % (T + 4 * cc + e, A_O[st] + ((2 * s + cc) * 2 + qb) * 4 + e))
                for e in range(8): a('v_mul_f32 v%d, v%d, v%d' % (T + e, T + e, (V_T0, V_T1)[qb]))
                for e in range(4): a('v_cvt_pk_bf16_f32 v%d, v%d, v%d' % (T + 8 + e, T + 2 * e, T + 2 * e + 1))
                a('s_add_u32 s%d, s%d, %d' % (sE1, (sM0, sM1)[qb], s * 128 * 1024))
                a(issue(('ctx', 'buffer_store_dwordx4 %s, v%d, %s, s%d offen %s' % (vr(T + 8, 4), V_LANE16, sr(WS, 4), sE1, WT))))
    AH, AC, WD4, WO4, X4, OUT = R1, R2, R3, R4, R5, 4
    sRO, sRT, sCT4, sAC, sWW, sVAL, sXO, sSW, sLD, sW2, sAC0, sWW0 = 8, 9, 10, 11, 12, 74, 13, 18, 19, 20, 26, 27
    sS1, sS0, sR0, sR1 = 16, 17, 21, 62
    WS_EX = 0x8000000
    FX = WS_FLG + 65536
    a_real = a; a = Asm()
    a('s_lshr_b32 s67, s2, 3')
    a('s_cmp_lt_u32 s67, 30'); a('s_cselect_b32 s%d, 1, 0' % sVAL)
    a('s_min_u32 s67, s67, 29')
    a('s_mul_i32 s68, s67, 205'); a('s_lshr_b32 s68, s68, 10')
    a('s_mul_i32 s69, s68, 5'); a('s_sub_u32 s%d, s67, s69' % sCT4)
    a('s_and_b32 s69, s2, 7'); a('s_lshl_b32 s69, s69, 2'); a('s_lshr_b32 s69, %s, s69' % os.environ.get('GMAP', '0x07362514')); a('s_and_b32 s69, s69, 7')
    a('s_mul_i32 s69, s69, 6'); a('s_add_u32 s69, s69, s68')
    a('s_lshr_b32 s%d, s69, 4' % sRO); a('s_and_b32 s%d, s69, 15' % sRT)
    for s in srd('x', X4) + srd('out', OUT): a(s)
    a('s_add_u32 s70, s%d, 2' % sRO); a('s_cmp_eq_u32 s%d, 0' % sRO); a('s_cselect_b32 s71, 0, 3'); a('s_sub_u32 s70, s70, s71')
    a('s_cmp_eq_u32 s%d, 0' % sRO); a('s_cselect_b32 s71, 40, 44'); a('s_mul_i32 s71, s71, s%d' % sVAL)
    a('s_mul_i32 s67, s%d, %d' % (sRO, 18 * 131072)); a('s_add_u32 s67, s67, 0x%x' % WS_H)
    a('s_add_u32 s%d, s28, s67' % AH); a('s_addc_u32 s%d, s29, 0' % (AH + 1)); a('s_mul_i32 s%d, s%d, %d' % (AH + 2, sVAL, 18 * 131072))
    a('s_mul_i32 s67, s70, %d' % (44 * 131072)); a('s_add_u32 s67, s67, 0x%x' % WS_CTX)
    a('s_add_u32 s%d, s28, s67' % AC); a('s_addc_u32 s%d, s29, 0' % (AC + 1)); a('s_lshl_b32 s%d, s71, 17' % (AC + 2))
    a('s_mul_i32 s67, s%d, %d' % (sRO, 18 * 32 * 1280))
    a('s_add_u32 s%d, s22, s67' % WD4); a('s_addc_u32 s%d, s23, 0' % (WD4 + 1)); a('s_mul_i32 s%d, s%d, %d' % (WD4 + 2, sVAL, 18 * 32 * 1280))
    a('s_mul_i32 s67, s70, %d' % (44 * 32 * 1280))
    a('s_add_u32 s%d, s14, s67' % WO4); a('s_addc_u32 s%d, s15, 0' % (WO4 + 1)); a('s_mul_i32 s%d, s71, %d' % (WO4 + 2, 32 * 1280))
    for r_ in (AH, AC, WD4, WO4): a('s_mov_b32 s%d, 0x00020000' % (r_ + 3))
    a('s_cmp_eq_u32 s%d, 2' % sRO); a('s_cselect_b32 s%d, 1, 0' % sSW)
    VA0, VA1, VWO, VRD, VX, VPL = 16, 17, 18, 32, 20, 200
    a('s_lshl_b32 s%d, s%d, 2' % (sAC, sRT)); a('s_add_u32 s%d, s%d, s%d' % (sAC, sAC, sW))
    a('s_lshl_b32 s67, s%d, 1' % sAC); a('s_add_u32 s67, s67, s%d' % sSW)
    a('s_mul_i32 s%d, s67, %d' % (sXO, 16 * 1280)); a('s_lshl_b32 s68, s%d, 8' % sCT4); a('s_add_u32 s%d, s%d, s68' % (sXO, sXO))
    a('s_lshl_b32 s%d, s%d, 11' % (sAC, sAC)); a('s_mov_b32 s%d, s%d' % (sAC0, sAC))
    a('s_lshl_b32 s67, s%d, 10' % sSW)
    a('v_add_u32 v%d, s67, v%d' % (VA0, V_LANE16))
    a('v_xor_b32 v%d, 1024, v%d' % (VA1, VA0))
    a('s_mul_i32 s%d, s%d, %d' % (sWW, sW, 16 * 1280)); a('s_add_u32 s%d, s%d, s68' % (sWW, sWW)); a('s_mov_b32 s%d, s%d' % (sWW0, sWW))
    a('v_lshrrev_b32 v5, 3, v0'); a('v_mul_u32_u24 v5, 1280, v5')
    a('v_bfe_u32 v6, v0, 1, 2'); a('v_bfe_u32 v7, v0, 4, 2'); a('v_xor_b32 v6, v6, v7')
    a('v_lshl_add_u32 v5, v6, 5, v5'); a('v_and_b32 v6, 1, v0')
    a('v_lshl_add_u32 v%d, v6, 4, v5' % VWO)
    a('v_add_u32 v%d, %d, v%d' % (VWO + 1, 8 * 1280 - 1024, VWO))
    a('v_lshrrev_b32 v5, 2, v0'); a('v_lshlrev_b32 v5, 7, v5'); a('v_and_b32 v6, 3, v0'); a('v_lshl_add_u32 v5, v6, 3, v5')
    a('v_bfe_u32 v6, v0, 3, 2')
    for c in range(4):
        a('v_xor_b32 v7, %d, v6' % c)
        a('v_lshl_add_u32 v%d, v7, 5, v5' % (VRD + c))
        a('v_add_u32 v%d, 65536, v%d' % (VRD + 4 + c, VRD + c))
    a('v_lshrrev_b32 v5, 4, v0'); a('v_mul_u32_u24 v5, 5120, v5'); a('v_and_b32 v6, 15, v0')
    a('v_lshl_add_u32 v%d, v6, 4, v5' % VX)
    a('v_and_b32 v%d, 0x1f0, v%d' % (VPL, V_LANE16))
    a('s_mul_i32 s67, s%d, 4608' % sW)
    a('v_and_b32 v5, 15, v0'); a('v_mul_u32_u24 v5, 272, v5'); a('v_lshrrev_b32 v6, 4, v0'); a('v_lshl_add_u32 v5, v6, 3, v5')
    a('v_add_u32 v21, s67, v5')
    a('v_mul_u32_u24 v6, 1088, v6'); a('v_and_b32 v5, 15, v0'); a('v_lshl_add_u32 v5, v5, 4, v6')
    a('v_add_u32 v23, s67, v5')
    a('s_sub_u32 s67, 15, s%d' % sRT); a('s_min_u32 s67, s67, s%d' % sRT)
    a('s_lshl_b32 s79, s67, 9'); a('s_add_u32 s79, s79, 0x%x' % FH)
    a('s_lshl_b32 s76, s%d, 9' % sRT); a('s_add_u32 s76, s76, 0x%x' % FC)
    a('s_mul_i32 s67, s%d, 5' % sRT); a('s_add_u32 s67, s67, s%d' % sCT4)
    a('s_lshl_b32 s68, s67, 2'); a('s_add_u32 s68, s68, s%d' % sW)
    a('s_lshl_b32 s75, s68, 10'); a('s_add_u32 s75, s75, 0x%x' % FX)
    a('s_lshl_b32 s68, s68, 16'); a('s_add_u32 s68, s68, 0x%x' % WS_EX)
    a('s_add_u32 s67, s%d, 1' % sRO); a('s_lshl_b32 s67, s67, 13'); a('s_add_u32 s%d, s68, s67' % sS1)
    a('s_cmp_eq_u32 s%d, 0' % sRO); a('s_cselect_b32 s%d, s68, 0x20000000' % sS0)
    a('s_cmp_eq_u32 s%d, 0' % sVAL); a('s_cselect_b32 s%d, 0x20000000, s%d' % (sS0, sS0)); a('s_cselect_b32 s%d, 0x20000000, s%d' % (sS1, sS1))
    a('s_lshl_b32 s67, s%d, 13' % sSW); a('s_add_u32 s%d, s68, s67' % sR0)
    a('s_sub_u32 s67, 3, s%d' % sSW); a('s_lshl_b32 s67, s67, 13'); a('s_add_u32 s%d, s68, s67' % sR1)
    a('s_cmp_eq_u32 s%d, 0' % sRO); a('s_cselect_b32 s%d, 0x20000000, s%d' % (sR0, sR0)); a('s_cselect_b32 s%d, 0x20000000, s%d' % (sR1, sR1))
    a('s_lshl_b32 s56, s%d, 7' % sRO); a('s_add_u32 s56, s56, s75')
    a('s_sub_u32 s67, 3, s%d' % sRO); a('s_cmp_eq_u32 s%d, 0' % sRO); a('s_cselect_b32 s67, 0, s67'); a('s_lshl_b32 s67, s67, 7')
    a('v_and_b32 v22, 1, v0'); a('v_mul_u32_u24 v22, s67, v22')
    a('s_lshl_b32 s%d, s%d, 11' % (sLD, sW))
    for c in range(4): a('v_add_u32 v%d, 131072, v%d' % (196 + c, VRD + c))
    setup4 = [re.sub(r'\bv([567])\b', lambda m: 'v%d' % (64 + int(m.group(1))), l.strip()) for l in a.lines]
    a = a_real
    grp4 = []
    for l in setup4:
        if l.startswith('s_cselect') or l.startswith('s_addc'): grp4[-1] += '\n' + l
        else: grp4.append(l)
    h_poll = 'buffer_load_dwordx4 v[192:195], v%d, %s, s79 offen %s' % (VPL, sr(WS, 4), WT)
    c_poll = 'buffer_load_dwordx4 v[24:27], v%d, %s, s76 offen %s' % (VPL, sr(WS, 4), WT)
    b_poll = 'buffer_load_dword v24, v22, %s, s75 offen %s' % (sr(WS, 4), WT)
    s_poll = 'buffer_load_dword v24, v22, %s, s75 offen offset:512 %s' % (sr(WS, 4), WT)
    WF4 = 64; ND4 = 18; NK = 62; LA4 = 15
    def accB(n, q): return 128 + (q * 8 + n) * 4
    def accS(n, q): return 192 + (q * 8 + n) * 4
    def act4(k, q): r = k % 16; return (r * 8 + q * 4) if r < 8 else (128 + (r - 8) * 8 + q * 4)
    def wslot(st): return 131072 + st * 16384 if st < 2 else ((st - 2) % 8) * 16384
    def w4_dma(st):
        L = []
        if st == ND4 // 2: L.append('s_mov_b32 s%d, s%d' % (sWW, sWW0))
        r_ = WD4 if st < ND4 // 2 else WO4
        for m in range(2):
            L += ['s_add_u32 m0, s%d, %d' % (sLD, wslot(st) + m * 8192), 's_nop 0' if m == 0 else 's_add_u32 s%d, s%d, 128' % (sW2, sWW)]
            L += [(('w4', st), 'buffer_load_dwordx4 v%d, %s, s%d offen offset:%d lds' % (VWO + j, sr(r_, 4), sWW if m == 0 else sW2, 1024 * j)) for j in range(2)]
        L.append('s_add_u32 s%d, s%d, %d' % (sWW, sWW, 64 * 1280))
        return L
    def a4_load(k):
        L = ['s_mov_b32 s%d, s%d' % (sAC, sAC0)] if k == ND4 else []
        return L + [(('a4', k), 'buffer_load_dwordx4 %s, v%d, %s, s%d offen' % (ar(act4(k, q), 4), (VA0, VA1)[q], sr(AH if k < ND4 else AC, 4), sAC)) for q in range(2)] + \
               ['s_add_u32 s%d, s%d, %d' % (sAC, sAC, 128 * 1024)]
    def w4_read(k, n):
        ad, ks = wslot(k // 2), k % 2
        reg = (VRD, VRD + 4, 196)[ad // 65536]
        return ['ds_read_b64_tr_b16 %s, v%d offset:%d' % (vr(WF4 + 4 * n + 2 * r, 2), reg + n % 4, ad % 65536 + (n // 4) * 8192 + (32 * ks + 16 * r) * 128) for r in range(2)]
    PK = 112
    def packs(accf):
        L = []
        for q in (1, 0):
            for n in range(8):
                dst = (accf(0, 1) if q else PK) + 2 * n
                L += ['v_cvt_pk_bf16_f32 v%d, v%d, v%d' % (dst + h, accf(n, q) + 2 * h, accf(n, q) + 2 * h + 1) for h in range(2)]
        return L
    def sends(accf, tag):
        return [(tag, 'buffer_store_dwordx4 %s, v%d, %s, s%d offen offset:%d %s' % (vr((accf(0, 1) if q else PK) + 4 * j, 4), V_LANE16, sr(WS, 4), (sS0, sS1)[q], j * 1024, WT))
                for q in (1, 0) for j in range(4)]
    def recvs(dst, tag):
        return [(tag, 'buffer_load_dwordx4 %s, v%d, %s, s%d offen offset:%d' % (vr(dst + 16 * src_ + 4 * j, 4), V_LANE16, sr(WS, 4), (sR0, sR1)[src_], j * 1024))
                for j in range(4) for src_ in range(2)]
    def unp_add(B, dst, n, T):
        L = []
        for src_ in range(2):
            for h in range(2):
                r = dst + 16 * src_ + 2 * n + h
                L += ['v_lshlrev_b32 v%d, 16, v%d' % (T + 2 * h, r), 'v_and_b32 v%d, s65, v%d' % (T + 2 * h + 1, r)]
            L += ['v_add_f32 v%d, v%d, v%d' % (B + e, B + e, T + e) for e in range(4)]
        return L
    XR4 = 96
    xl = [('x4', 'buffer_load_dwordx4 %s, v%d, %s, s%d offen offset:%d' % (vr(XR4 + 4 * j, 4), VX, sr(X4, 4), sXO, 1280 * j)) for j in range(4)]
    F = (0, 1); H_ = (0,)
    pfi = pre_items(prefill(0, 0, 0, dyn=True))
    a('s_waitcnt lgkmcnt(%d)' % (D - LGS))
    rds = [kread(i, 0) for i in range(D, 16)] + [kread(i, 1) for i in range(D)]
    it = lg_items(16, False) + pfi; it.sort(key=lambda x: (x['hi'], x['lo']))
    pk.run(qk_mf([(1, F, None), (0, F, 1)], 0), rds, it, [], hx, [], None, False)
    a('s_nop 3'); stamp(a, 2, 'p3')
    for st in range(2):
        for qb in range(2):
            for s in max_ops(st, 0, qb, V_T0, V_T1): a(s)
            for e in range(4): a('v_sub_f32 v%d, 0, v%d' % (NEGM + (st * 2 + qb) * 4 + e, V_T0))
    pfi = pre_items(prefill(0, 1, 1, dyn=True))
    rds = [kread(i, 1) for i in range(D, 16)] + [kread(i, 0) for i in range(D)]
    it = lg_items(16, False) + pfi + [dict(lo=16 - D - 1, hi=16 - D - 1, ins='v_xor_b32 v%d, 32768, v%d' % (V_KRD, V_KRD), v=True)]
    it.sort(key=lambda x: (x['hi'], x['lo']))
    pk.run(qk_mf([(1, F, None), (0, F, 0)], 1), rds, it, [(1, 0, F), (0, 0, F)], [], [], (1, 1), False, sub=True)
    a('s_waitcnt vmcnt(0)')
    a(flag_store(76)[1])
    gate(kv_poll, 208, 4, 1, 63)
    LTO = 'w' in MX
    if LTO:
        a('s_lshl_b32 s67, s2, 2'); a('s_add_u32 s67, s67, s%d' % sW)
        a('s_mul_i32 s68, s67, 7'); a('v_min_u32 v63, 6, v0'); a('v_add_u32 v63, s68, v63'); a('v_lshlrev_b32 v63, 7, v63')
        a('s_mul_i32 s68, s67, 3'); a('v_min_u32 v62, 2, v0'); a('v_add_u32 v62, s68, v62'); a('v_lshlrev_b32 v62, 7, v62')
    stamp(a, 10); cstamp(a, 5); stamp(a, 3, 'p3')
    lA, lA_skip, lA_tail2 = name + '_loopA', name + '_skipA', name + '_tail2A'
    a('s_cmp_eq_u32 s%d, 0' % sI)
    a('s_cbranch_scc1 %s' % lA_tail2)
    a('s_sub_u32 s%d, s%d, 2' % (sCNT, sI))
    a('s_cbranch_scc1 %s' % lA_skip)
    cstamp(a, 3, 'cyb')
    a.raw('.p2align 6')
    a.label(lA)
    qB = (1, F, None); BA = [(1, F), (0, F)]; B_ = [(1, F)]; BAh = [(1, F), (0, H_)]; Bh = [(1, H_)]
    iteration(0, [qB, (0, F, None)], BA, BA, BA, lt=LTO)
    iteration(1, [qB, (0, F, None)], BA, BA, BA, loop_ctr=(sCNT, lA), lt=LTO)
    cstamp(a, 4, 'cyb')
    a.label(lA_skip)
    stamp(a, 4, 'p3')
    iteration(0, [qB, (0, F, 1)], BA, BA, BA, pf=prefill(0, 0, 0))
    stamp(a, 5, 'p3')
    iteration(1, [qB, (0, H_, 0)], BA, BA, BA, pf=prefill(0, 1, 1))
    a.label(lA_tail2)
    stamp(a, 6, 'p3')
    l7, lBtail2 = name + '_i7', name + '_tail2B'
    a('s_cmp_eq_u32 s%d, 7' % sI)
    a('s_cbranch_scc1 %s' % l7)
    def txt(L): return [x if isinstance(x, str) else x[1] for x in L]
    acts = [a4_load(k) for k in range(16)]
    E1 = txt(xl); E2 = txt(w4_dma(0) + acts[0] + acts[1] + acts[2]); E3 = txt(w4_dma(1) + acts[3] + acts[4] + acts[5])
    E4 = txt(acts[6] + acts[7] + acts[8] + acts[9] + acts[10] + acts[11])
    wt = ['s_lshl_b32 s67, s2, 2', 's_add_u32 s67, s67, s%d' % sW, 's_mul_i32 s68, s67, 46', 'v_min_u32 v72, 45, v0', 'v_add_u32 v72, s68, v72',
          'v_min_u32 v72, 40959, v72', 'v_lshlrev_b32 v72, 7, v72', 'global_load_dword v63, v72, s[14:15]',
          's_mul_i32 s68, s67, 20', 'v_min_u32 v73, 19, v0', 'v_add_u32 v73, s68, v73', 'v_min_u32 v73, 17279, v73', 'v_lshlrev_b32 v73, 7, v73',
          'global_load_dword v63, v73, s[22:23]']
    iteration(0, [qB], BAh, BA, BA, post_bar=(() if 'w' in MX else wt))
    stamp(a, 7, 'p3')
    iteration(1, [qB], B_, BAh, BAh, anyw=grp4 + [h_poll], vx=(0 if 'w' in MX else 2))
    stamp(a, 8, 'p3')
    epilogue(0)
    stamp(a, 9, 'p3')
    a('s_waitcnt vmcnt(8)')
    gate(h_poll, 192, 4, 1, 63)
    lB = name + '_loopB'
    a('s_lshl_b32 s%d, s%d, 1' % (sCNT, sI))
    a('s_sub_u32 s%d, 12, s%d' % (sCNT, sCNT))
    cstamp(a, 5, 'cyb'); stamp(a, 10, 'p3')
    a.raw('.p2align 6')
    a.label(lB)
    iteration(0, [qB], B_, B_, B_, lt=LTO)
    iteration(1, [qB], B_, B_, B_, loop_ctr=(sCNT, lB), lt=LTO)
    cstamp(a, 6, 'cyb'); stamp(a, 11, 'p3')
    if 'c' in MX:
        E1 = E1 + ['s_getpc_b64 s[70:71]\n%s_pc2:\ns_add_u32 s70, s70, %s_tail2B-%s_pc2\ns_addc_u32 s71, s71, 0' % (name, name, name),
                   's_lshr_b32 s67, s2, 3', 's_lshl_b32 s67, s67, 2', 's_add_u32 s67, s67, s%d' % sW, 's_lshl_b32 s67, s67, 9',
                   'v_and_b32 v63, 3, v0', 'v_lshlrev_b32 v63, 7, v63', 'v_add_u32 v63, s67, v63', 'v_min_u32 v63, %s_codeend-%s_tail2B-4, v63' % (name, name),
                   'global_load_dword v63, v63, s[70:71]']
        E1b = E1[:4]
    else: E1b = E1
    iteration(0, [(1, F, 1)], B_, B_, B_, dk=False, mid=E1, post_bar=E2, pf=prefill(1, 0, 0))
    stamp(a, 12, 'p3')
    iteration(1, [(1, H_, 0)], B_, B_, B_, dk=False, nxt='v', mid=E3, post_bar=E4, pf=prefill(1, 1, 1), vx=sum(1 for s_ in E2 if s_.startswith('buffer_')) + sum(1 for s_ in E1 if s_.startswith('buffer_')))
    a('s_branch %s' % lBtail2)
    a.label(l7)
    iteration(0, [(1, F, 1)], BAh, BA, BA, dk=False, pf=prefill(1, 0, 0))
    iteration(1, [(1, H_, 0)], B_, BAh, BAh, dk=False, nxt='v', anyw=grp4 + [h_poll], pf=prefill(1, 1, 1), anylo=10)
    epilogue(0)
    a('s_waitcnt vmcnt(8)')
    gate(h_poll, 192, 4, 1, 63)
    for s_ in E2 + E3 + E4 + E1b: a(s_)
    a.label(lBtail2)
    stamp(a, 11); cstamp(a, 6); stamp(a, 13, 'p3')
    vm.n = 0; ids = {}
    for k in range(12): ids[('a4', k)] = -100
    ids[('w4', 0)] = ids[('w4', 1)] = -100
    sent = ['v_mov_b32 v%d, -1' % (116 + e) for e in range(4)] + ['s_add_u32 s67, s%d, 32768' % sS0, 's_add_u32 s68, s%d, 32768' % sS1]
    sent += [('sn', 'buffer_store_dwordx4 v[116:119], v%d, %s, s%d offen offset:%d %s' % (V_LANE16, sr(WS, 4), 67 + q, j * 1024, WT)) for j in range(4) for q in range(2)]
    e1 = [flag_store(77)[1]] + [issue(it) for it in w4_dma(2) + w4_dma(3) + sent]
    iteration(0, None, Bh, B_, B_, dk=False, dv=False, nxt='v', post_bar=e1)
    stamp(a, 14, 'p3')
    e2 = w4_dma(4) + acts[12] + acts[13] + w4_dma(5) + acts[14]
    iteration(1, None, [], Bh, Bh, dk=False, dv=False, nxt=None, post_bar=[issue(it) for it in e2])
    stamp(a, 12); stamp(a, 15, 'p3')
    epilogue(1)
    stamp(a, 16, 'p3')
    notile = name + '_notile'
    a('s_cmp_eq_u32 s%d, 0' % sVAL)
    a('s_cbranch_scc1 %s' % notile)
    a('s_barrier')
    for n in range(8):
        for s_ in w4_read(0, n): a(s_)
    stamp(a, 13)
    def rnd_l(r0, r1, t):
        return ['v_cvt_pk_bf16_f32 v%d, v%d, v%d' % (t, r0, r1), 'v_lshlrev_b32 v%d, 16, v%d' % (r0, t), 'v_and_b32 v%d, s65, v%d' % (r1, t)]
    def rnd(r0, r1, t):
        for s_ in rnd_l(r0, r1, t): a(s_)
    RBv = accB(0, 1)
    def gate_calc(n):
        B = accB(n, 0); T = 40 + 4 * (n % 2); L = unp_add(B, RBv, n, T)
        for h in range(2): L += rnd_l(B + 2 * h, B + 2 * h + 1, T)
        L += ['v_mul_f32 v%d, s64, v%d' % (T + e, B + e) for e in range(4)]
        L += ['v_exp_f32 v%d, v%d' % (T + e, T + e) for e in range(4)]
        L += ['v_add_f32 v%d, 1.0, v%d' % (T + e, T + e) for e in range(4)]
        L += ['v_rcp_f32 v%d, v%d' % (T + e, T + e) for e in range(4)]
        L += ['v_mul_f32 v%d, v%d, v%d' % (B + e, B + e, T + e) for e in range(4)]
        for h in range(2): L += rnd_l(B + 2 * h, B + 2 * h + 1, T)
        return L
    def x_unpack():
        L = []
        for n in range(8):
            for h in range(2):
                x = XR4 + 2 * n + h; o = accB(n, 1) + 2 * h
                L += ['v_lshlrev_b32 v%d, 16, v%d' % (o, x), 'v_and_b32 v%d, s65, v%d' % (o + 1, x)]
        return L
    a('s_mov_b32 s64, %s' % f2u(-math.log2(math.e)))
    a('s_mov_b32 s65, 0xffff0000')
    pend = w4_dma(6) + w4_dma(7) + w4_dma(8) + w4_dma(9)
    slowq = []
    valq = []
    nxt_a = LA4
    KG = int(os.environ.get('KG', 15)); KCF = int(os.environ.get('KCF', 1)); PDL = 5; CUN = int(os.environ.get('CUN', 9))
    KS0, KFL, KBP, KRC = ND4 + 2, 30, 33, 48
    rbl = recvs(RBv, 'rb')
    for k in range(NK):
        assert not any(x[0] == ('a4', k) for x in pend if not isinstance(x, str))
        need = ids[('a4', k)]
        if k == KCF: need = max(need, ids['ctx'])
        if k == KG: need = max(need, ids['cp'])
        if k in (KFL, KRC): assert not slowq and not any(x[0] in ('sb', 'rb', 'x4') for x in pend if not isinstance(x, str))
        if k == KFL: need = max(need, ids['sb'])
        if k == KBP + PDL: need = max(need, ids['bp'])
        if k == KRC: need = max(need, ids['rb'])
        a('s_waitcnt vmcnt(%d) lgkmcnt(12)' % min(63, vm.cnt(need)))
        if k == KCF: pend = [flag_store(78)] + pend
        if k == KG - 3: pend = [('cp', c_poll)] + pend
        if k == KG: gate(c_poll, 24, 4, 1, 63)
        if k == KS0 - 1: valq += packs(accB)
        if k == KS0:
            assert not valq
            sl = sends(accB, 'sb'); slowq += [x for p_ in zip(sl[:4], sl[4:]) for x in p_]
        if k == KFL:
            pend = [flag_store(56), 's_add_u32 s56, s56, 512', 's_add_u32 s%d, s%d, 32768' % (sS0, sS0), 's_add_u32 s%d, s%d, 32768' % (sS1, sS1)] + pend
        if k == KBP: pend = [('bp', b_poll)] + pend
        if k == KBP + PDL:
            gate(b_poll, 24, 1, 1, 63)
            slowq += rbl
        if k == KRC:
            pend += ['s_add_u32 s%d, s%d, 32768' % (sR0, sR0), 's_add_u32 s%d, s%d, 32768' % (sR1, sR1)]
            for n in range(8): valq += gate_calc(n)
            valq += x_unpack()
        newa = []
        lim = min(NK, k + LA4 + 1) if k >= KG else ND4
        while nxt_a < min(lim, k + LA4 + 1) and len(newa) < CUN:
            newa += a4_load(nxt_a); nxt_a += 1
        pend = newa + slowq[:2] + pend; slowq = slowq[2:]
        accf = accB if k < ND4 else accS
        for n in range(8):
            if n % 2 == 0 and n > 0: a('s_waitcnt lgkmcnt(%d)' % (12 if k < NK - 1 else 2 * (6 - n)))
            for q in range(2):
                d = vr(accf(n, q), 4)
                a('%s %s, %s, %s, %s' % (MF16, d, vr(WF4 + 4 * n, 4), ar(act4(k, q), 4), '0' if k in (0, ND4) else d))
                if q == 0:
                    while pend and pend[0] == 's_nop 0': pend.pop(0)
                    if pend: a(issue(pend.pop(0)))
                    if pend and isinstance(pend[0], str) and pend[0] != 's_nop 0': a(pend.pop(0))
                    for _ in range(4):
                        if valq: a(valq.pop(0))
            if k + 1 < NK:
                if n == 0 and k % 4 == 3:
                    st = k // 2
                    key = ('w4', min(st + 2, NK // 2 - 1))
                    assert not any(x[0] == key for x in pend if not isinstance(x, str))
                    a('s_waitcnt vmcnt(%d) lgkmcnt(0)' % min(63, vm.cnt(ids[key])))
                    a('s_barrier')
                    for s2_ in (st + 7, st + 8):
                        if s2_ < NK // 2 and st >= 3: pend = pend + w4_dma(s2_)
                for s_ in w4_read(k + 1, n): a(s_)
        if k == ND4 - 1: stamp(a, 14); cstamp(a, 7)
        if k % 4 == 1: stamp(a, 1 + k // 4, 'p4')
        if k == ND4 + 39:
            assert not pend
            a('s_cmp_eq_u32 s%d, 0' % sRO)
            a('s_cbranch_scc1 %s_p4done' % name)
    assert not pend and not valq
    a.label(name + '_p4done')
    stamp(a, 15); cstamp(a, 8)
    a('s_nop 7')
    stamp(a, 1, 'fin')
    pl = packs(accS); sl = sends(accS, 'ss')
    def send_part(js):
        for j in js:
            for s_ in pl[4 * j:4 * j + 4]: a(s_)
            for s_ in pl[4 * j:4 * j + 4]:
                r_ = s_.split()[1].rstrip(',')
                a('v_min_u32 %s, -2, %s' % (r_, r_))
            a(sl[j][1])
    send_part(range(4))
    lfin = name + '_fin'
    a('s_cmp_lg_u32 s%d, 0' % sRO)
    a('s_cbranch_scc1 %s' % lfin)
    send_part(range(4, 8))
    stamp(a, 16)
    stamp_flush(a, 17)
    a('s_endpgm')
    a.label(lfin)
    stamp(a, 2, 'fin')
    RS = 64
    a('s_mov_b32 s63, 0x40000')
    a.label(name + '_rx')
    for it in recvs(RS, 'rs'): a(it[1] + ' ' + WT)
    a('s_waitcnt vmcnt(4)')
    for j in range(2):
        for src_ in range(2):
            r_ = RS + 16 * src_ + 4 * j
            if j == 0 and src_ == 0: a('v_max3_u32 v40, v%d, v%d, v%d' % (r_, r_ + 1, r_ + 2)); a('v_max_u32 v40, v40, v%d' % (r_ + 3))
            else: a('v_max3_u32 v40, v40, v%d, v%d' % (r_, r_ + 1)); a('v_max3_u32 v40, v40, v%d, v%d' % (r_ + 2, r_ + 3))
    a('s_waitcnt vmcnt(0)')
    for j in range(2, 4):
        for src_ in range(2):
            r_ = RS + 16 * src_ + 4 * j
            a('v_max3_u32 v40, v40, v%d, v%d' % (r_, r_ + 1)); a('v_max3_u32 v40, v40, v%d, v%d' % (r_ + 2, r_ + 3))
    a('v_cmp_eq_u32 vcc, -1, v40')
    a('s_sub_u32 s63, s63, 1')
    a('s_cbranch_scc1 %s_rxok' % name)
    a('s_cbranch_vccnz %s_rx' % name)
    a.label(name + '_rxok')
    stamp(a, 6, 'fin')
    for n in range(8):
        if n in (0, 7): stamp(a, 7 + n // 7, 'fin')
        S = accS(n, 0); T = 96 + 2 * n
        for s_ in unp_add(S, RS, n, 40): a(s_)
        for h in range(2): rnd(S + 2 * h, S + 2 * h + 1, 56)
        for e in range(4): a('v_mul_f32 v%d, v%d, v%d' % (S + e, S + e, accB(n, 0) + e))
        for h in range(2): a('v_cvt_pk_bf16_f32 v%d, v%d, v%d' % (T + h, S + 2 * h, S + 2 * h + 1))
        a('ds_write_b64 v21, %s offset:%d' % (vr(T, 2), 32768 + 32 * n))
    for j in range(4): a('ds_read_b128 %s, v23 offset:%d' % (vr(64 + 4 * j, 4), 32768 + 272 * j))
    for j in range(4):
        a('s_waitcnt lgkmcnt(%d)' % (3 - j))
        X_ = accB(0, 1) + 8 * j
        for e in range(4):
            a('v_lshlrev_b32 v40, 16, v%d' % (64 + 4 * j + e)); a('v_and_b32 v41, s65, v%d' % (64 + 4 * j + e))
            a('v_add_f32 v40, v40, v%d' % (X_ + 2 * e)); a('v_add_f32 v41, v41, v%d' % (X_ + 2 * e + 1))
            a('v_cvt_pk_bf16_f32 v%d, v40, v41' % (80 + 4 * j + e))
        a('buffer_store_dwordx4 %s, v%d, %s, s%d offen offset:%d %s' % (vr(80 + 4 * j, 4), VX, sr(OUT, 4), sXO, 1280 * j, OUTF))
    stamp(a, 16); stamp(a, 9, 'fin')
    stamp_flush(a, 17)
    a('s_endpgm')
    a.label(notile)
    a('s_waitcnt vmcnt(0)')
    a(flag_store(78)[1])
    a.label(end)
    a('s_endpgm')
    for slow, ok, load_ins, chk, ts in slow_paths:
        a.label(slow)
        a('s_mov_b32 s%d, 0x40000' % ts)
        lp = a.newlabel(name + '_sp')
        a.label(lp)
        a('s_sleep 1')
        a(load_ins)
        a('s_waitcnt vmcnt(0)')
        for s in chk: a(s)
        a('s_nop 1')
        a('s_cbranch_vccz %s' % ok)
        a('s_sub_u32 s%d, s%d, 1' % (ts, ts))
        a('s_cbranch_scc0 %s' % lp)
        a('s_branch %s' % ok)
    for stub, back, pc, ex in rare_sites:
        a.label(stub)
        for st, qbs in sorted(ex):
            a('s_mov_b32 s69, %s' % ('1.0' if 1 in qbs else '0'))
            a('s_call_b64 s[100:101], %s_rare%d%d' % (name, pc, st))
        a('s_branch %s' % back)
    for pc in range(2):
        for st in range(2):
            a.label('%s_rare%d%d' % (name, pc, st))
            a('s_nop 7')
            for qb in range(2):
                for s in max_ops(st, pc, qb, V_T0, V_T1): a(s)
                a('v_max_f32 v%d, 0, v%d' % (V_T0, V_T0))
                if qb == 1: a('v_mul_f32 v%d, s69, v%d' % (V_T0, V_T0))
                a('v_exp_f32 v%d, -v%d' % (V_T1, V_T0))
                for e in range(4): a('v_sub_f32 v%d, v%d, v%d' % (NEGM + (st * 2 + qb) * 4 + e, NEGM + (st * 2 + qb) * 4 + e, V_T0))
                for pp in range(2):
                    for kb in range(4):
                        for r in range(4):
                            x = SB[st][pp] + (kb * 2 + qb) * 4 + r
                            a('v_sub_f32 v%d, v%d, v%d' % (x, x, V_T0))
                a('v_mul_f32 v%d, v%d, v%d' % (V_L + st * 2 + qb, V_L + st * 2 + qb, V_T1))
                for db in range(0, 8, 2):
                    regs = [A_O[st] + ((db + h) * 2 + qb) * 4 + e for h in range(2) for e in range(4)]
                    for e in range(8): a('v_accvgpr_read_b32 v%d, a%d' % (TMP + e, regs[e]))
                    for e in range(8): a('v_mul_f32 v%d, v%d, v%d' % (TMP + e, TMP + e, V_T1))
                    for e in range(8): a('v_accvgpr_write_b32 a%d, v%d' % (regs[e], TMP + e))
            for s in exp_ops(st, pc): a(s)
            if st == 1:
                for k, (s, _, _) in enumerate(exp_seq(1, 1 - pc)[:EARLY]): a('v_exp_f32 v%d, v%d' % (TMP + k, s))
            a('s_nop 7')
            a('s_setpc_b64 s[100:101]')
    a.label(name + '_codeend')
    if os.environ.get('PADEND'): a.raw('.fill 8192, 4, 0xBF810000')
    kernel_desc(a, name, 512, 256)
    return a
```

```python
from common import *
import common
import math, copy, re
import k2 as K2
from k2 import VM, Packer, exp_seq, exp_ops, max_ops, EARLY
from k2 import V_LANE16, V_LANE16V, V_KRD, V_VRD, V_T0, V_T1, V_L, TRI, NEGM, LT, TMP, SB, PB, A_O, A_Q, A_RING, V_ONES, D, R, THR, BIG

OUTF = os.environ.get('OUTF', 'sc0 sc1')
WT = 'sc0 sc1'
WS_FLG = 0x7000000
FK, FH, FC, FL, FE = WS_FLG, WS_FLG + 4096, WS_FLG + 8192, WS_FLG + 16384, WS_FLG + 20480
PTR = dict(x=4, ckv=6, wq=8, wuk=10, wuv=12, wo=14, wg=18, wu=20, wd=22, out=24, dbg=26, ws=28)
WS, R1, R2, R3, R4, R5 = 32, 36, 40, 44, 48, 52
sW, sH, sI = 30, 31, 3
V_ONE, V_1 = 60, 61
V_PA, V_PD = 62, 24

SMODE = os.environ.get('SMODE', 'all')
def stamp(a, i, mode='all'):
    if not DIAG: return
    if mode != SMODE and i != 0: return
    a('s_memrealtime s[98:99]'); a('s_waitcnt lgkmcnt(0)'); a('s_mov_b32 s%d, s98' % (80 + i))
def cstamp(a, i, mode='cyc'):
    if not DIAG or mode != SMODE: return
    a('s_memrealtime s[98:99]'); a('s_waitcnt lgkmcnt(0)'); a('s_mov_b32 s%d, s98' % (80 + i + 8))
    a('s_memtime s[98:99]'); a('s_waitcnt lgkmcnt(0)'); a('s_mov_b32 s%d, s98' % (80 + i))
def stamp_flush(a, n):
    if not DIAG: return
    if os.environ.get('DBGOUT'):
        a('s_load_dwordx2 s[36:37], s[0:1], 88')
        a('s_mov_b32 s38, 256'); a('s_mov_b32 s39, 0x00020000')
        a('s_lshl_b32 s98, s2, 2'); a('s_add_u32 s98, s98, s%d' % sW)
        a('s_cmp_eq_u32 s98, %d' % (4 * int(os.environ['DBGOUT'])))
        a('s_cselect_b32 s98, 0, 0x1000')
        a('s_waitcnt lgkmcnt(0)')
        a('v_mov_b32 v0, 0')
        for i in range(1, n):
            a('s_sub_u32 s99, s%d, s80' % (80 + i))
            a('v_mov_b32 v1, s99')
            a('buffer_store_dword v1, v0, s[36:39], s98 offen offset:%d' % (4 * (i - 1)))
            a('s_nop 1')
        return
    a('s_lshl_b32 s98, s2, 2'); a('s_add_u32 s98, s98, s%d' % sW); a('s_lshl_b32 s98, s98, 7')
    a('s_add_u32 s98, s98, 0x%x' % WS_STAMP)
    a('v_mov_b32 v0, 0')
    for i in range(n):
        a('v_mov_b32 v1, s%d' % (80 + i))
        a('buffer_store_dword v1, v0, %s, s98 offen offset:%d' % (sr(WS, 4), 4 * i))
        a('s_nop 1')

def srd(name, r, off=0, size=None):
    p = PTR[name]
    L = []
    if off:
        L += ['s_add_u32 s%d, s%d, 0x%x' % (r, p, off), 's_addc_u32 s%d, s%d, 0' % (r + 1, p + 1)]
    else:
        L += ['s_mov_b32 s%d, s%d' % (r, p), 's_mov_b32 s%d, s%d' % (r + 1, p + 1)]
    L += ['s_mov_b32 s%d, 0x%x' % (r + 2, SIZE[name] if size is None else size), 's_mov_b32 s%d, 0x00020000' % (r + 3)]
    return L

def gen_mega(a, name):
    kernel_begin(a, name)
    end = name + '_end'
    slow_paths = []
    def gate(load_ins, dreg, n, want, tmp_s):
        def chk():
            L = ['v_xor_b32 v%d, v%d, v%d' % (dreg + e, dreg + e, V_1) for e in range(n)]
            if n >= 3: L += ['v_or3_b32 v%d, v%d, v%d, v%d' % (dreg, dreg, dreg + 1, dreg + 2)]
            if n == 4: L += ['v_or_b32 v%d, v%d, v%d' % (dreg, dreg, dreg + 3)]
            L += ['v_cmp_ne_u32 vcc, 0, v%d' % dreg]
            return L
        slow, ok = a.newlabel(name + '_sl'), a.newlabel(name + '_ok')
        for s in chk(): a(s)
        a('s_nop 1')
        a('s_cbranch_vccnz %s' % slow)
        a.label(ok)
        slow_paths.append((slow, ok, load_ins, chk(), tmp_s))

    a('s_cmp_ge_u32 s2, 256')
    a('s_cbranch_scc1 %s' % end)
    if os.environ.get('PADT'):
        a('s_memrealtime s[98:99]'); a('s_waitcnt lgkmcnt(0)'); a('s_mov_b32 s97, s98')
    stamp(a, 0)
    a('s_load_dwordx16 s[4:19], s[0:1], 0')
    a('s_load_dwordx8 s[20:27], s[0:1], 64')
    a('s_load_dwordx2 s[28:29], s[0:1], 96')
    if 'e' in os.environ.get('MX', ''):
        a('s_getpc_b64 s[100:101]')
        a('v_lshlrev_b32 v2, 7, v0')
        a('global_load_dword v250, v2, s[100:101]')
    a('v_lshrrev_b32 v1, 6, v0')
    a('v_and_b32 v0, 63, v0')
    a('v_readfirstlane_b32 s%d, v1' % sW)
    a('s_and_b32 s31, s2, 7')
    a('s_lshl_b32 s31, s31, 2')
    a('s_lshr_b32 s61, s2, 3')
    a('s_and_b32 s61, s61, 3')
    a('s_add_u32 s31, s31, s61')
    a('s_lshr_b32 s3, s2, 5')
    CKV, WUK, WUV, X, DBG = R1, R2, R3, R4, R5
    VA, VW = 8, 12
    a('v_lshrrev_b32 v6, 3, v0')
    a('v_lshlrev_b32 v6, 10, v6')
    a('v_lshrrev_b32 v7, 4, v0')
    a('v_and_b32 v12, 7, v0')
    a('v_xor_b32 v12, v12, v7')
    a('v_xor_b32 v13, 4, v12')
    a('v_lshl_add_u32 v12, v12, 4, v6')
    a('v_lshl_add_u32 v13, v13, 4, v6')
    for j in range(4): a('v_add_u32 v%d, %d, v%d' % (VA + j, j * (8192 - 1024), 12 + (j & 1)))
    a('v_bfe_u32 v16, v0, 1, 3')
    a('v_xor_b32 v16, v16, v7')
    a('v_xor_b32 v17, 4, v16')
    a('v_and_b32 v18, 1, v0')
    a('v_lshlrev_b32 v18, 4, v18')
    a('v_lshl_add_u32 v18, v7, 13, v18')
    a('v_lshl_add_u32 v16, v16, 5, v18')
    a('v_lshl_add_u32 v17, v17, 5, v18')
    for j in range(4): a('v_add_u32 v%d, %d, v%d' % (VW + j, j * (32768 - 1024), 16 + (j >> 1)))
    sA, sWo, sLA, sLW, sA2 = 56, 57, 58, 59, 60
    a('s_lshl_b32 s56, s%d, 2' % sI)
    a('s_add_u32 s56, s56, s%d' % sW)
    a('s_lshl_b32 s56, s56, 16')
    a('s_lshl_b32 s57, s%d, 17' % sW)
    a('s_lshl_b32 s58, s%d, 8' % sH)
    a('s_add_u32 s57, s57, s58')
    a('s_lshl_b32 s58, s%d, 13' % sW)
    a('s_lshl_b32 s59, s%d, 12' % sW)
    a('s_add_u32 s59, s59, 65536')
    a('v_lshrrev_b32 v2, 5, v0')
    a('v_and_b32 v3, 31, v0')
    a('s_lshl_b32 s61, s2, 2')
    a('s_add_u32 s61, s61, s%d' % sW)
    a('s_lshl_b32 s61, s61, 1')
    a('v_add_u32 v4, s61, v2')
    a('v_mul_u32_u24 v5, 1280, v4')
    a('v_lshl_add_u32 v5, v3, 3, v5')
    a('v_lshlrev_b32 v%d, 4, v0' % V_LANE16)
    vm = VM(); ids = {}
    def issue(it):
        if isinstance(it, str): return it
        ids[it[0]] = vm.op()
        return it[1]
    def p1_dma(st):
        slot = st & 1; t = ('p1', st)
        L = ['s_add_u32 m0, s%d, %d' % (sLA, slot * 32768), 's_add_u32 s%d, s%d, 32768' % (sA2, sA)]
        L += [(t, 'buffer_load_dwordx4 v%d, %s, s%d offen offset:%d lds' % (VA + j, sr(CKV, 4), sA, 1024 * j)) for j in range(4)]
        L += ['s_add_u32 m0, s%d, %d' % (sLW, slot * 32768), 's_add_u32 s%d, s%d, 128' % (sA, sA)]
        L += [(t, 'buffer_load_dwordx4 v%d, %s, s%d offen offset:%d lds' % (VW + j, sr(WUK, 4), sWo, 1024 * j)) for j in range(4)]
        L += ['s_add_u32 m0, s%d, %d' % (sLA, slot * 32768 + 4096), 's_nop 0']
        L += [(t, 'buffer_load_dwordx4 v%d, %s, s%d offen offset:%d lds' % (VA + j, sr(CKV, 4), sA2, 1024 * j)) for j in range(4)]
        L += ['s_add_u32 m0, s%d, %d' % (sLW, slot * 32768 + 16384), 's_nop 0']
        L += [(t, 'buffer_load_dwordx4 v%d, %s, s%d offen offset:%d lds' % (VW + j, sr(WUV, 4), sWo, 1024 * j)) for j in range(4)]
        L += ['s_add_u32 s%d, s%d, %d' % (sWo, sWo, 64 * 8192)]
        return L
    stamp(a, 1, 'st')
    a('s_waitcnt lgkmcnt(0)')
    for n_, r_ in (('x', X), ('ckv', CKV), ('wuk', WUK), ('wuv', WUV), ('ws', WS)):
        for s in srd(n_, r_): a(s)
    XR = 192
    a('v_mov_b32 v52, 0')
    a('s_mov_b32 s79, 0x%x' % FE)
    a(issue(('ep', 'buffer_load_dword v%d, v52, %s, s79 offen %s' % (V_1, sr(WS, 4), WT))))
    xld = [('x', 'buffer_load_dwordx2 %s, v5, %s, 0 offen offset:%d' % (vr(XR + 2 * j, 2), sr(X, 4), 256 * j)) for j in range(5)]
    MX0 = os.environ.get('MX', '')
    if 'k' in MX0:
        a('v_and_b32 v20, 15, v0'); a('v_lshlrev_b32 v20, 7, v20'); a('s_lshl_b32 s62, s61, 10')
        a(issue(('pf', 'buffer_load_dword v240, v20, %s, s62 offen' % sr(CKV, 4))))
    if 'l' not in MX0:
        for it in xld: a(issue(it))
    PFB = False
    def weave(start, items):
        body = a.lines[start:]; del a.lines[start:]
        G = []
        for l in body:
            t = l.strip()
            if G and (t.startswith(('s_cselect', 's_addc', 's_subb')) or t.endswith(':') or G[-1][-1].strip().endswith(':')): G[-1].append(l)
            else: G.append([l])
        D_ = []; cur = []
        for s in items:
            cur.append(s)
            if s.startswith(('buffer_', 'global_')): D_.append(cur); cur = []
        if cur: D_[-1] += cur
        for j, d in enumerate(D_):
            for s in d: a(s)
            for g in G[(j * len(G)) // len(D_):((j + 1) * len(G)) // len(D_)]: a.lines.extend(g)
    s0_items = [issue(it) for it in p1_dma(0)]
    W0 = len(a.lines)
    a('s_lshr_b32 s61, s2, 3')
    a('s_lshl_b32 s61, s61, 2')
    a('s_add_u32 s61, s61, s%d' % sW)
    TC, TW, TX = 48, 49, 50
    a('v_bfe_u32 v20, v0, 1, 4')
    a('v_lshlrev_b32 v20, 10, v20')
    a('v_and_b32 v21, 1, v0')
    a('v_lshl_add_u32 v20, v21, 7, v20')
    a('s_lshl_b32 s62, s61, 14')
    a('v_add_u32 v%d, s62, v20' % TC)
    a('v_and_b32 v20, 7, v0')
    a('v_lshlrev_b32 v20, 7, v20')
    a('s_lshl_b32 s62, s61, 13')
    a('s_and_b32 s63, s2, 7')
    a('s_lshl_b32 s63, s63, 10')
    a('s_add_u32 s62, s62, s63')
    a('v_add_u32 v%d, s62, v20' % TW)
    def pf_chunk(c):
        if PFB: return []
        return ['s_mov_b32 s16, %d' % ((c + 1) * 128 * 8192),
                ('pf', 'buffer_load_dword v240, v%d, %s, 0 offen offset:%d' % (TC, sr(CKV, 4), 256 * (c + 1))),
                ('pf', 'buffer_load_dword v241, v%d, %s, s16 offen' % (TW, sr(WUK, 4))),
                ('pf', 'buffer_load_dword v242, v%d, %s, s16 offen' % (TW, sr(WUV, 4)))]
    a('s_getpc_b64 s[100:101]')
    a.label(name + '_pc')
    a('s_sub_u32 s100, s100, %s_pc-%s' % (name, name))
    a('s_subb_u32 s101, s101, 0')
    a('v_and_b32 v20, 7, v0')
    a('v_lshlrev_b32 v20, 7, v20')
    a('s_lshl_b32 s62, s61, 10')
    a('v_add_u32 v20, s62, v20')
    a('v_min_u32 v55, %s_codeend-%s-4, v20' % (name, name))
    a('s_min_u32 s62, s61, 79'); a('s_lshl_b32 s62, s62, 16'); a('v_mov_b32 v56, s62')
    a('s_min_u32 s62, s61, 33'); a('s_lshl_b32 s62, s62, 16'); a('v_mov_b32 v57, s62')
    TQ, TG = 53, 54
    a('v_min_u32 v20, 39, v0')
    a('v_lshrrev_b32 v21, 3, v20')
    a('s_mul_i32 s62, s61, 5')
    a('v_add_u32 v21, s62, v21')
    a('v_and_b32 v20, 7, v20')
    a('v_lshlrev_b32 v20, 7, v20')
    a('v_lshl_add_u32 v20, v21, 13, v20')
    a('v_add_u32 v%d, s63, v20' % TQ)
    a('v_min_u32 v20, 19, v0')
    a('v_lshrrev_b32 v21, 2, v20')
    a('v_add_u32 v21, s62, v21')
    a('v_mul_u32_u24 v21, 3456, v21')
    a('s_and_b32 s63, s2, 7')
    a('s_lshl_b32 s63, s63, 2')
    a('s_mul_i32 s64, s63, 37'); a('s_lshr_b32 s64, s64, 8')
    a('s_sub_u32 s63, s63, s64')
    a('v_and_b32 v20, 3, v20')
    a('v_add_u32 v20, s63, v20')
    a('v_min_u32 v20, 26, v20')
    a('v_lshl_add_u32 v%d, v20, 7, v21' % TG)
    a('s_mul_i32 s62, s61, 20480')
    a('v_and_b32 v20, 31, v0')
    a('v_lshlrev_b32 v20, 7, v20')
    a('v_add_u32 v%d, s62, v20' % TX)
    def xn_touch(j):
        return ['s_mov_b32 s16, %d' % (4096 * j), ('pf', 'buffer_load_dword v243, v%d, %s, s16 offen' % (TX, sr(WS, 4)))]
    RA, RW = 16, 18
    a('s_lshr_b32 s61, s%d, 1' % sW)
    a('s_lshl_b32 s61, s61, 14')
    a('v_bfe_u32 v20, v0, 1, 3')
    a('v_xor_b32 v20, v20, v7')
    a('v_and_b32 v21, 15, v0')
    a('v_lshlrev_b32 v21, 7, v21')
    a('v_add_u32 v21, s61, v21')
    a('v_lshl_add_u32 v%d, v20, 4, v21' % RA)
    a('v_xor_b32 v20, 4, v20')
    a('v_lshl_add_u32 v%d, v20, 4, v21' % (RA + 1))
    a('v_bfe_u32 v22, v0, 2, 2')
    a('v_lshl_add_u32 v23, v7, 3, v22')
    a('v_lshlrev_b32 v23, 8, v23')
    a('v_and_b32 v24, 3, v0')
    a('v_lshl_add_u32 v23, v24, 3, v23')
    a('v_add_u32 v23, 65536, v23')
    a('v_bfe_u32 v22, v0, 2, 3')
    a('s_and_b32 s62, s%d, 1' % sW)
    a('s_lshl_b32 s62, s62, 2')
    a('v_xor_b32 v22, s62, v22')
    for nb in range(4):
        a('v_xor_b32 v24, %d, v22' % nb)
        a('v_lshl_add_u32 v%d, v24, 5, v23' % (RW + nb))
    P_XOFF2, P_WOFF, P_WRD = 32, 33, 40
    P_X0, P_X1 = 32, 37
    a('s_sub_u32 s61, 7, s%d' % sW); a('s_mul_i32 s61, s61, 20480'); a('v_add_u32 v%d, s61, v%d' % (P_X0, V_LANE16))
    a('s_mul_i32 s61, s%d, 20480' % sW); a('v_add_u32 v%d, s61, v%d' % (P_X1, V_LANE16))
    a('v_lshrrev_b32 v25, 3, v0')
    a('v_bfe_u32 v26, v0, 1, 2')
    a('v_bfe_u32 v27, v0, 4, 2')
    a('v_xor_b32 v26, v26, v27')
    a('v_lshlrev_b32 v26, 5, v26')
    a('v_and_b32 v27, 1, v0')
    a('v_lshl_add_u32 v26, v27, 4, v26')
    a('v_lshl_add_u32 v%d, v25, 13, v26' % P_WOFF)
    a('v_add_u32 v%d, %d, v%d' % (P_WOFF + 1, 8 * 8192 - 1024, P_WOFF))
    a('v_mul_u32_u24 v25, 3456, v25')
    a('v_add_u32 v%d, v25, v26' % (P_WOFF + 2))
    a('v_add_u32 v%d, %d, v%d' % (P_WOFF + 3, 8 * 3456 - 1024, P_WOFF + 2))
    a('v_lshrrev_b32 v25, 2, v0')
    a('v_lshlrev_b32 v25, 7, v25')
    a('v_and_b32 v26, 3, v0')
    a('v_lshl_add_u32 v25, v26, 3, v25')
    a('v_add_u32 v25, 65536, v25')
    a('v_bfe_u32 v26, v0, 3, 2')
    for c in range(4):
        a('v_xor_b32 v27, %d, v26' % c)
        a('v_lshl_add_u32 v%d, v27, 5, v25' % (P_WRD + c))
        a('v_add_u32 v%d, 65536, v%d' % (P_WRD + 4 + c, P_WRD + c))
    s_w = [64, 65, 66, 67]; s_q = [68, 69]; sLW2, sCT = 70, 71; sQ = [72, 73]
    a('s_mul_i32 s17, s%d, 37' % sH)
    a('s_lshr_b32 s17, s17, 8')
    a('s_sub_u32 s71, s%d, s17' % sH)
    a('s_lshl_b32 s70, s%d, 11' % sW)
    a('s_lshl_b32 s72, s%d, 3' % sI)
    a('s_sub_u32 s73, 120, s72')
    a('s_mul_i32 s68, s72, 20480')
    a('s_mul_i32 s69, s73, 20480')
    assert WS_XN == 0
    a('s_lshl_b32 s64, s%d, 17' % sW)
    a('s_lshl_b32 s65, s%d, 8' % sH)
    a('s_add_u32 s64, s64, s65')
    a('s_add_u32 s65, s64, 128')
    a('s_mul_i32 s66, s%d, %d' % (sW, 16 * 3456))
    a('s_lshl_b32 s67, s%d, 7' % sCT)
    a('s_add_u32 s66, s66, s67')
    a('s_mov_b32 s67, s66')
    a('s_mul_i32 s61, s17, 7')
    a('s_sub_u32 s61, s%d, s61' % sH)
    a('s_cmp_eq_u32 s61, 6')
    a('s_cselect_b32 s74, 0, 0x%x' % SIZE['wg'])
    a('s_cmp_ge_u32 s%d, 27' % sCT)
    a('s_cselect_b32 s74, 0, s74')
    a('s_lshl_b32 s61, s%d, 2' % sW)
    a('s_lshl_b32 s76, s2, 4'); a('s_add_u32 s76, s76, s61')
    a('s_add_u32 s75, s76, 0x%x' % FK)
    a('s_add_u32 s77, s76, 0x%x' % FC)
    a('s_and_b32 s78, s76, 0x1ff')
    a('s_add_u32 s76, s76, 0x%x' % FH)
    a('s_sub_u32 s62, 15, s%d' % sI); a('s_lshl_b32 s62, s62, 9')
    a('s_add_u32 s78, s78, s62'); a('s_add_u32 s78, s78, 0x%x' % FC)
    a('v_cmp_eq_u32 vcc, 0, v0')
    a('v_mov_b32 v25, 0x20000000')
    a('s_lshl_b32 s26, s2, 2'); a('s_add_u32 s26, s26, 0x%x' % FL)
    a('v_cndmask_b32 v%d, v25, 0, vcc' % V_ONE)
    a('s_cmp_eq_u32 s%d, 0' % sW)
    a('s_cselect_b32 s26, s26, 0x20000000')
    a('s_lshl_b32 s27, s2, 2'); a('s_or_b32 s27, s27, s%d' % sW)
    a('s_cmp_eq_u32 s27, 0')
    a('s_cselect_b32 s27, s79, 0x20000000')
    a('s_mov_b32 s79, 0x%x' % FL)
    def flag_store(sreg, val=V_1):
        return ('fl', 'buffer_store_dword v%d, v%d, %s, s%d offen %s' % (val, V_ONE, sr(WS, 4), sreg, WT))
    weave(W0, s0_items)
    W1 = len(a.lines)
    a('s_mov_b32 s61, 0x9e3779b1')
    a('v_mul_lo_u32 v%d, s61, v%d' % (V_1, V_1))
    a('v_add_u32 v%d, 0x7f4a7c15, v%d' % (V_1, V_1))
    import k1
    b = Asm(); k1.ln_part(b, XR, WS, 4, 3)
    ln_lines = [l.strip() for l in b.lines]
    for l in ln_lines[:-20]: a(l)
    a('v_lshrrev_b32 v224, 3, v3')
    a('v_lshlrev_b32 v224, 9, v224')
    a('v_and_b32 v225, 3, v3')
    a('v_lshl_add_u32 v224, v225, 7, v224')
    a('v_and_b32 v225, 7, v4')
    a('v_lshl_add_u32 v224, v225, 4, v224')
    a('v_bfe_u32 v225, v3, 2, 1')
    a('v_lshl_add_u32 v224, v225, 3, v224')
    a('v_add_u32 v224, %d, v224' % (128 * 1024))
    for j in range(5): a('ds_write_b64 v224, %s offset:%d' % (vr(XR + 2 * j, 2), 2048 * j))
    a('s_lshl_b32 s61, s%d, 10' % sW)
    a('s_add_u32 s61, s61, %d' % (128 * 1024))
    a('v_add_u32 v225, s61, v%d' % V_LANE16)
    a('v_lshrrev_b32 v226, 3, v0')
    a('v_lshlrev_b32 v226, 8, v226')
    a('v_and_b32 v227, 7, v0')
    a('v_lshl_add_u32 v226, v227, 4, v226')
    a('s_lshr_b32 s61, s2, 1')
    a('s_mul_i32 s61, s61, 20480')
    a('s_and_b32 s62, s2, 1')
    a('s_lshl_b32 s62, s62, 7')
    a('s_add_u32 s61, s61, s62')
    a('s_lshl_b32 s62, s%d, 11' % sW)
    a('s_add_u32 s61, s61, s62')
    a('s_add_u32 s62, s61, 8192')
    a('s_add_u32 s63, s61, 16384')
    a('s_cmp_lt_u32 s%d, 2' % sW)
    a('s_cselect_b32 s63, s63, 0x20000000')
    lnq = []
    for l in a.lines[W1:]:
        t = l.strip()
        if t.startswith('s_cselect'): lnq[-1] += '\n' + t
        else: lnq.append(t)
    del a.lines[W1:]
    xn_reads = ['ds_read_b128 %s, v225 offset:%d' % (vr(XR + 4 * t, 4), 4096 * t) for t in range(3)]
    xn_stores = [('xn', 'buffer_store_dwordx4 %s, v226, %s, s%d offen %s' % (vr(XR + 4 * t, 4), sr(WS, 4), 61 + t, WT)) for t in range(3)]
    MX = os.environ.get('MX', '')
    if 'x' in MX: xn_stores = []
    if 'p' in MX: xn_stores = [(t, s.replace(WT, '')) for t, s in xn_stores]
    WQ, WG, WU = R1, R2, R3
    WSLOT = [128 * 1024, 64 * 1024, 96 * 1024]
    P_ACCV, P_ACCA, P_WF, P_ACT = 128, 0, 128, 192
    srdm = [WQ, WQ, WG, WU]; stride = [8192, 8192, 3456, 3456]
    def w_dma(st, nm):
        L = []
        for m in range(nm):
            L.append('s_add_u32 m0, s%d, %d' % (sLW2, WSLOT[st % 3] + m * 8192))
            L.append('s_nop 0')
            for j in range(2):
                L.append((('w', st), 'buffer_load_dwordx4 v%d, %s, s%d offen offset:%d lds' % (P_WOFF + 2 * (m // 2) + j, sr(srdm[m], 4), s_w[m], 1024 * j)))
            L.append('s_add_u32 s%d, s%d, %d' % (s_w[m], s_w[m], 64 * stride[m]))
        return L
    def a_load(k):
        base = P_ACT + 16 * (k % 4)
        L = [(('a', k), 'buffer_load_dwordx4 %s, v%d, %s, s%d offen offset:%d' % (ar(base + 4 * qi, 4), (P_X0, P_X1)[qi % 2], sr(WS, 4), s_q[qi // 2], 1024 * (k % 4))) for qi in range(4)]
        if k % 4 == 3: L += ['s_add_u32 s%d, s%d, 4096' % (s, s) for s in s_q]
        return L
    FR = 64
    def reads(slot, ks, fs):
        base = FR + 64 * fs
        def A(i): return ['ds_read_b128 %s, v%d offset:%d' % (vr(base + 4 * i, 4), RA + ks, slot * 32768 + i * 2048)]
        def W(mat, nb): return ['ds_read_b64_tr_b16 %s, v%d offset:%d' % (vr(base + 32 + 16 * mat + 4 * nb + 2 * r, 2), RW + nb,
                                slot * 32768 + mat * 16384 + (32 * ks + 4 * r) * 256) for r in range(2)]
        L = A(0)
        for nb in range(4): L += W(0, nb)
        for nb in range(4): L += W(1, nb)
        for i in range(1, 8): L += A(i)
        return L
    def mfmas(fs, first, rbs=range(8)):
        base = FR + 64 * fs; L = []
        for rb in rbs:
            act = vr(base + 4 * rb, 4)
            for mat in range(2):
                for nb in range(4):
                    w = vr(base + 32 + 16 * mat + 4 * nb, 4)
                    d = ar((rb * 8 + mat * 4 + nb) * 4, 4); c = '0' if first else d
                    L.append('%s %s, %s, %s, %s' % ((MF16, d, w, act, c) if mat == 0 else (MF16, d, act, w, c)))
        return L
    stamp(a, 2); stamp(a, 8, 'st')
    S1L = p1_dma(1); npre = int(os.environ.get('NPRE', 12))
    for it in S1L[:npre]: a(issue(it))
    a('s_waitcnt vmcnt(%d) lgkmcnt(0)' % vm.cnt(ids[('p1', 0)]))
    stamp(a, 9, 'st')
    a('s_barrier')
    stamp(a, 3); stamp(a, 10, 'st')
    for s in reads(0, 0, 0): a(s)
    ln_poll = 'buffer_load_dwordx4 v[244:247], v%d, %s, s79 offen %s' % (V_LANE16, sr(WS, 4), WT)
    NST = 8
    pend = S1L[npre:] + pf_chunk(0) + (xld if 'l' in MX0 else []) + [('pf', 'global_load_dword v249, v55, s[100:101]')]
    NPRE = int(os.environ.get('NPRE', 0))
    P1SP = int(os.environ.get('P1SP', 4))
    LNS = 2 if 'l' in MX0 else 1
    LN0 = 3 if 'l' in MX0 else 0
    for st in range(NST - 1):
        slot = st & 1
        for ks in range(2):
            rd = []
            if ks == 1:
                if st < NST - 1:
                    assert not any(x[0] == ('p1', st + 1) for x in pend if not isinstance(x, str))
                    a('s_waitcnt vmcnt(%d) lgkmcnt(0)' % vm.cnt(max(ids[('p1', st + 1)], ids['lnp'] if st == LNS + 4 else 0))); a('s_barrier')
                    rd = reads(1 - slot, 0, 0)
                    if st == LNS: rd += xn_reads; assert not lnq
                else: a('s_waitcnt lgkmcnt(0)')
                if st + 2 < NST: pend += p1_dma(st + 2)
                if st == LNS + 2: pend = [flag_store(26)] + pend
                if st in (0, 1): pend += pf_chunk(st + 1)
                if st == 2: pend += [('pf', 'global_load_dword v240, v%d, s[8:9]' % TQ)]
                if st == 3: pend += [('pf', 'global_load_dword v241, v%d, s[18:19]' % TG), ('pf', 'global_load_dword v242, v%d, s[20:21]' % TG)]
                if st == LNS + 3: pend += [('lnp', ln_poll)]
                if st == 4 and 'C' not in MX: pend += [('pf', 'global_load_dword v249, v55, s[100:101]')]
                if st == 6: pend += w_dma(1, 4)
                if st == LNS + 4:
                    gate(ln_poll, 244, 4, 1, 61)
                    pend += [flag_store(27)]
                    pend += xn_touch(0) + xn_touch(1)
                if st == 6: pend += xn_touch(2) + xn_touch(3) + xn_touch(4)
            else:
                a('s_waitcnt lgkmcnt(0)')
                rd = reads(slot, 1, 1)
                if st == LNS + 1: pend += xn_stores
                if st == 6:
                    pend += srd('wq', WQ) + srd('wg', WG) + srd('wu', WU) + ['s_mov_b32 s%d, s74' % (WG + 2), 's_mov_b32 s%d, s74' % (WU + 2)] + w_dma(0, 4)
            lastv = -10
            for g, m in enumerate(mfmas(ks, st == 0 and ks == 0)):
                a(m)
                if g % 2 == 0 and rd: a(rd.pop(0))
                elif pend and g % 2 == 1:
                    while pend and pend[0] == 's_nop 0': pend.pop(0)
                    if pend and (isinstance(pend[0], str) or g - lastv >= (2 if st < 2 else P1SP)):
                        if not isinstance(pend[0], str): lastv = g
                        a(issue(pend.pop(0)))
                for _ in range(3 if 'l' in MX0 else 2):
                    if lnq and 2 * st + ks >= LN0: a(lnq.pop(0))
            stamp(a, 1 + 2 * st + ks, 'p1')
        if st == 3: stamp(a, 4); cstamp(a, 1)
    def w_read(k, n):
        st, ks = k // 2, k % 2
        off = WSLOT[st % 3] - 65536
        grp = off // 65536; off %= 65536
        m, c = n // 4, n % 4
        return ['ds_read_b64_tr_b16 %s, v%d offset:%d' % (wfr(k, n, r), P_WRD + 4 * grp + c, off + m * 8192 + (32 * ks + 16 * r) * 128) for r in range(2)]
    def wfr(k, n, r=None):
        f, b_ = (vr, 96 + 4 * (n - 8)) if (k >= 16 and n >= 8) else (ar, P_WF + 4 * n)
        return f(b_, 4) if r is None else f(b_ + 2 * r, 2)
    sBASE, sK0, sK1, sT, sC0, sC1, sS1 = 56, 57, 58, 59, 60, 61, 62
    sc = ['s_lshl_b32 s56, s%d, 20' % sH, 's_lshl_b32 s57, s%d, 17' % sI, 's_add_u32 s58, s56, s57', 's_lshr_b32 s57, s%d, 1' % sW, 's_lshl_b32 s57, s57, 16',
          's_add_u32 s58, s58, s57', 's_add_u32 s58, s58, 0x%x' % WS_KV, 's_and_b32 s57, s%d, 1' % sW, 's_lshl_b32 s16, s57, 11', 's_add_u32 s16, s16, s58',
          's_lshl_b32 s17, s57, 12', 's_add_u32 s17, s17, s58', 's_add_u32 s17, s17, 16384',
          's_lshl_b32 s57, s%d, 14' % sW, 'v_add_u32 v26, s57, v%d' % V_LANE16,
          's_lshl_b32 s59, s%d, 12' % sW, 's_add_u32 s56, s56, s59', 's_add_u32 s56, s56, 0x%x' % WS_KV, 's_lshl_b32 s60, s%d, 13' % sW,
          's_add_u32 s60, s60, %d' % (65536 + 32768), 's_add_u32 s61, s60, 16384', 's_add_u32 s62, s56, 32768', 's_add_u32 s57, s56, 65536', 's_add_u32 s58, s57, 32768',
          'v_add_u32 v%d, 16384, v%d' % (V_LANE16V, V_LANE16), 'v_and_b32 v%d, 7, v0' % V_PA, 'v_lshlrev_b32 v%d, 9, v%d' % (V_PA, V_PA),
          's_and_b32 s79, s2, 31', 's_lshl_b32 s79, s79, 4', 's_add_u32 s79, s79, 0x%x' % FK]
    def conv(b0, b1, T, dst):
        return ['v_accvgpr_read_b32 v%d, a%d' % (T + e, b0 * 4 + e) for e in range(4)] + ['v_accvgpr_read_b32 v%d, a%d' % (T + 4 + e, b1 * 4 + e) for e in range(4)] + \
               ['v_cvt_pk_bf16_f32 v%d, v%d, v%d' % (dst + e, T + 2 * e, T + 2 * e + 1) for e in range(4)]
    def store(T, sb, off):
        return ['s_add_u32 s63, s%d, %d' % (sb, off & ~4095),
                ('kv', 'buffer_store_dwordx4 %s, v%d, %s, s63 offen offset:%d %s' % (vr(T, 4), V_LANE16, sr(WS, 4), off & 4095, WT))]
    def jobs(rp):
        J = []
        for rb in (2 * rp, 2 * rp + 1):
            for s in range(2): J.append((rb * 8 + 2 * s, rb * 8 + 2 * s + 1, 16, (rb // 4) * 32768 + ((rb % 4) * 4 + s) * 1024))
        rb = 2 * rp
        for nb in range(4): J.append((rb * 8 + 4 + nb, (rb + 1) * 8 + 4 + nb, 17, (rb // 4) * 32768 + (((rb % 4) // 2) * 8 + nb) * 1024))
        return J
    J1 = jobs(3) + jobs(2); J2 = jobs(0) + jobs(1)
    a('s_waitcnt lgkmcnt(0)')
    rd = reads(1, 1, 1)
    pend += sc
    for g, m in enumerate(mfmas(0, False, (6, 7, 4, 5))):
        a(m)
        if rd: a(rd.pop(0))
        for _ in range(1 if rd else 2):
            while pend and pend[0] == 's_nop 0': pend.pop(0)
            if pend and not (_ == 1 and not isinstance(pend[0], str)): a(issue(pend.pop(0)))
    assert not any(x[0] == ('w', 0) for x in pend if not isinstance(x, str))
    a('s_waitcnt vmcnt(%d) lgkmcnt(0)' % vm.cnt(ids[('w', 0)]))
    a('s_barrier')
    pend += w_dma(2, 4)
    fq = []
    for n_, (b0, b1, sb, off) in enumerate(J1):
        T = 192 + 12 * (n_ % 4)
        fq += conv(b0, b1, T, T + 8) + ['ds_write_b128 v26, %s offset:%d' % (vr(T + 8, 4), 1024 * n_)]
        if n_ >= 8 and n_ < 12: fq += a_load(n_ - 8)
    for n in range(16): fq += w_read(0, n)
    tail = mfmas(1, False, (6, 7, 4, 5)) + mfmas(0, False, (0, 1, 2, 3)) + mfmas(1, False, (0, 1, 2, 3))
    per = -(-len(fq) // (len(tail) - 24))
    for g, m in enumerate(tail):
        a(m)
        if g < 22:
            for _ in range(2):
                while pend and pend[0] == 's_nop 0': pend.pop(0)
                if pend and not (_ == 1 and not isinstance(pend[0], str)): a(issue(pend.pop(0)))
        else:
            assert not pend
            for _ in range(per):
                if fq: a(issue(fq.pop(0)))
    assert not fq
    stamp(a, 5); cstamp(a, 2); stamp(a, 6); cstamp(a, 3)
    cq = []
    for n_, (b0, b1, sb, off) in enumerate(J2): cq += conv(b0, b1, 4 + 8 * (n_ % 2), 64 + 4 * n_)
    kv_sched = {}
    KVEND = int(os.environ.get('KVEND', 14))
    def kstep(n_): return 1 + (n_ * (KVEND - 1)) // 32
    for n_, (b0, b1, sb, off) in enumerate(J2):
        kv_sched.setdefault(kstep(n_), []).extend(store(64 + 4 * n_, sb, off))
        kv_sched.setdefault(kstep(n_) + 1, []).append('ds_read_b128 %s, v26 offset:%d' % (vr(64 + 4 * n_, 4), 1024 * n_))
    for n_, (b0, b1, sb, off) in enumerate(J1):
        kv_sched.setdefault(kstep(16 + n_), []).extend(store(64 + 4 * n_, sb, off))
    kv_poll0 = 'buffer_load_dwordx4 v[64:67], v52, %s, s79 offen %s' % (sr(WS, 4), WT)
    kv_poll = 'buffer_load_dwordx4 v[208:211], v%d, %s, s79 offen %s' % (V_PA, sr(WS, 4), WT)
    def kv_dma(m0expr, voff, ssrc, tag):
        return [m0expr, 's_nop 0'] + [(tag, 'buffer_load_dwordx4 v%d, %s, s%d offen offset:%d lds' % (voff, sr(WS, 4), ssrc, 1024 * j)) for j in range(4)]
    sTHR, sBIG, s2W, sM0, sM1, sDYN, sE0, sE1, sCNT = 64, 65, 66, 67, 68, 69, 70, 71, 63
    halves = []
    for k in range(16): halves += [(k, 0), (k, 1)]
    halves += [(k, 0) for k in range(16, 20)] + [(k, 1) for k in range(16, 20)]
    qe = ['s_mov_b32 s64, %s' % f2u(math.log2(math.e) / math.sqrt(128.0))]
    for qi in range(4):
        for s in range(4):
            r0, r1 = P_ACCV + ((2 * s) * 4 + qi) * 4, P_ACCV + ((2 * s + 1) * 4 + qi) * 4
            qe += ['v_mul_f32 v%d, s64, v%d' % (r + e, r + e) for r in (r0, r1) for e in range(4)]
            qe += ['v_cvt_pk_bf16_f32 v%d, v%d, v%d' % (r + e, r + 2 * e, r + 2 * e + 1) for r in (r0, r1) for e in range(2)]
            qe += ['v_accvgpr_write_b32 a%d, v%d' % (A_Q[qi // 2] + ((qi % 2) * 4 + s) * 4 + 2 * h + e, (r0, r1)[h] + e) for h in range(2) for e in range(2)]
    qe += ['v_and_b32 v5, 15, v0', 'v_lshrrev_b32 v6, 4, v0', 'v_lshlrev_b32 v6, 2, v6', 'v_sub_u32 v5, v5, v6']
    for r in range(4): qe += ['v_cmp_gt_i32 vcc, %d, v5\ns_nop 1\nv_cndmask_b32 v%d, 0, 1.0, vcc' % (r, TRI + r)]
    qe += ['v_mov_b32 v%d, 0x3f803f80' % (V_ONES + e) for e in range(4)] + ['v_mov_b32 v%d, 0' % (NEGM + j) for j in range(16)]
    qe += ['v_mov_b32 v%d, 0' % (V_L + j) for j in range(4)]
    qe += ['v_mov_b32 v%d, v%d' % (V_KRD, V_LANE16), 'v_add_u32 v%d, 65536, v%d' % (V_VRD, V_LANE16)]
    qe += ['s_lshl_b32 s8, s72, 10', 's_lshl_b32 s9, s73, 10', 's_lshl_b32 s10, s%d, 18' % sCT, 's_add_u32 s10, s10, 0x%x' % WS_H,
           's_cmp_eq_u32 s74, 0\ns_cselect_b32 s10, 0x20000000, s10', 's_add_u32 s8, s8, s10', 's_add_u32 s9, s9, s10',
           's_add_u32 s10, s8, %d' % (128 * 1024), 's_add_u32 s11, s9, %d' % (128 * 1024),
           's_sub_u32 s12, 7, s%d' % sW, 's_lshl_b32 s12, s12, 10', 'v_add_u32 v%d, s12, v%d' % (P_X0, V_LANE16),
           's_lshl_b32 s12, s%d, 10' % sW, 'v_add_u32 v%d, s12, v%d' % (P_X1, V_LANE16),
           's_mov_b32 s%d, %s' % (sTHR, f2u(THR)), 's_mov_b32 s%d, %s' % (sBIG, f2u(-BIG)), 's_sub_u32 s%d, 3, s%d' % (s2W, sW),
           's_cmp_eq_u32 s%d, 0\ns_cselect_b32 s%d, s%d, 0' % (sI, sDYN, sBIG)]
    pend = []; vq = cq; vper = 5; gcnt = 0; lastv = -10; P2SP = int(os.environ.get('P2SP', 4))
    for hi_, (k, part) in enumerate(halves):
        st, ks = k // 2, k % 2
        base = P_ACT + 16 * (k % 4)
        if part == 0:
            need = ids[('a', k)]
            if k == KVEND + 1:
                assert not any(x[0] == 'kv' for x in pend if not isinstance(x, str))
                need = max(need, ids['kv'])
            assert not any(x[0] == ('a', k) for x in pend if not isinstance(x, str))
            a('s_waitcnt vmcnt(%d) lgkmcnt(8)' % min(63, vm.cnt(need)))
            pend += kv_sched.get(k, [])
            if k == KVEND + 1: pend += [flag_store(75)]
            if k == 18: pend += [('kvp', kv_poll0)]
            if k == 12 and 'C' not in MX: pend += [('pf', 'global_load_dword v27, v55, s[100:101]')]
            if k > 0 and k + 3 < 20: pend = a_load(k + 3) + pend
        elif k == 16:
            a('s_waitcnt vmcnt(%d) lgkmcnt(8)' % vm.cnt(ids['kvp']))
            gate(kv_poll0, 64, 4, 1, 63)
            pend += kv_dma('s_add_u32 m0, s59, 0', V_LANE16, sBASE, 'k0') + kv_dma('s_add_u32 m0, s59, 16384', V_LANE16, sS1, 'k1')
            pend += kv_dma('s_add_u32 m0, s59, 32768', V_LANE16, sK0, 'k2') + kv_dma('s_add_u32 m0, s59, 65536', V_LANE16V, sBASE, 'v0')
            pend += kv_dma('s_add_u32 m0, s59, 49152', V_LANE16, sK1, 'k3') + kv_dma('s_add_u32 m0, s59, %d' % (65536 + 16384), V_LANE16V, sS1, 'v1')
            vq = qe; vper = 3
        else: a('s_waitcnt lgkmcnt(8)')
        for n in range(8 * part, 8 * part + 8):
            if n % 8 == 4: a('s_waitcnt lgkmcnt(%d)' % (8 if k < 19 else 0))
            if k == 0 and n == 8: assert len(vq) <= 96
            if k == 0 and n == 12: assert not vq
            for qi in range(4):
                d = vr(P_ACCV + (n * 4 + qi) * 4, 4) if n < 8 else ar(P_ACCA + ((n - 8) * 4 + qi) * 4, 4)
                a('%s %s, %s, %s, %s' % (MF16, d, wfr(k, n), ar(base + 4 * qi, 4), '0' if k == 0 else d))
                if qi < 3:
                    while pend and pend[0] == 's_nop 0': pend.pop(0)
                    if pend and (qi != 1 or not vq) and (isinstance(pend[0], str) or gcnt - lastv >= P2SP):
                        if not isinstance(pend[0], str): lastv = gcnt
                        a(issue(pend.pop(0)))
                gcnt += 1
                for _ in range(vper if qi < 3 else vper - 2):
                    if vq: a(vq.pop(0))
            if k + 1 < 20:
                if n == 0 and ks == 1:
                    assert not any(x[0] == ('w', st + 1) for x in pend if not isinstance(x, str))
                    a('s_waitcnt vmcnt(%d) lgkmcnt(0)' % min(63, vm.cnt(ids[('w', st + 1)])))
                    a('s_barrier')
                    if st + 3 < 10: pend = pend + w_dma(st + 3, 4)
                for s in w_read(k + 1, n): a(s)
        if part == 1 and k < 16: stamp(a, 1 + k, 'p2a')
        if hi_ >= 24: stamp(a, hi_ - 23, 'p2b')
    assert not pend and not vq
    stamp(a, 7); cstamp(a, 4)
    a('s_waitcnt vmcnt(%d)' % vm.cnt(max(ids['k2'], ids['v0'])))
    stamp(a, 8)
    a('s_barrier')
    hx = []
    for j_ in range(8):
        s, qi = j_ // 4, j_ % 4
        T = 192 + 20 * (j_ % 3)
        for cc in range(2):
            g = P_ACCA + ((2 * s + cc) * 4 + qi) * 4
            hx += ['v_accvgpr_read_b32 v%d, a%d' % (T + 8 * cc + e, g + e) for e in range(4)] + ['v_accvgpr_read_b32 v%d, a%d' % (T + 8 * cc + 4 + e, g + 64 + e) for e in range(4)]
            hx += ['v_mul_f32 v%d, v%d, v%d' % (T + 8 * cc + e, T + 8 * cc + e, T + 8 * cc + 4 + e) for e in range(4)]
            hx += ['v_cvt_pk_bf16_f32 v%d, v%d, v%d' % (T + 16 + 2 * cc + e, T + 8 * cc + 2 * e, T + 8 * cc + 2 * e + 1) for e in range(2)]
        hx.append('buffer_store_dwordx4 %s, v%d, %s, s%d offen %s' % (vr(T + 16, 4), (P_X0, P_X1)[qi % 2], sr(WS, 4), 8 + qi // 2 + 2 * s, WT))
    hx += ['%s %s, %s, %s, 0' % (MFMA, ar(16 * j_, 16), vr(NEGM, 4), vr(NEGM, 4)) for j_ in range(8)]
    hx += [kv_poll]
    def kread(i, p): return 'ds_read_b128 %s, v%d offset:%d' % (ar(A_RING + 4 * (i % R), 4), V_KRD, p * 16384 + i * 1024)
    def vread(i, p): return 'ds_read_b128 %s, v%d offset:%d' % (ar(A_RING + 4 * (i % R), 4), V_VRD, p * 16384 + i * 1024)
    for i in range(D): a(kread(i, 0))
    for s_ in hx[:16]: a(s_)
    hx = hx[16:]
    stamp(a, 9); stamp(a, 1, 'p3')
    def prefill(st, p, tau, dyn=False):
        qb = 1 - tau
        sref = sW if tau == 0 else s2W
        big = sDYN if dyn else sBIG
        out = []
        for kb in range(4):
            S = SB[st][p] + (kb * 2 + qb) * 4
            L = ['s_cmp_eq_u32 s%d, %d' % (sref, kb), 's_cselect_b32 s%d, s%d, 0' % (sM0, big)]
            t = NEGM + (st * 2 + qb) * 4
            if kb > 0:
                L += ['s_cmp_lt_u32 s%d, %d' % (sref, kb), 's_cselect_b32 s%d, s%d, 0' % (sM1, big), 'v_add_f32 v%d, s%d, v%d' % (V_T1, sM1, t)]
                t = V_T1
            L += ['v_fma_f32 v%d, v%d, s%d, v%d' % (S + r, TRI + r, sM0, t) for r in range(4)]
            out.append('\n'.join(L))
        return out
    def qk_mf(sets, p):
        G = []
        for f in range(16):
            kb, ds = f // 4, f % 4; L = []
            for st, qbs, inq in sets:
                for qb in qbs:
                    d = vr(SB[st][p] + (kb * 2 + qb) * 4, 4)
                    c = vr(NEGM + (st * 2 + qb) * 4, 4) if (ds == 0 and inq != qb) else d
                    L.append('%s %s, %s, %s, %s' % (MF16, d, ar(A_RING + 4 * (f % R), 4), ar(A_Q[st] + (qb * 4 + ds) * 4, 4), c))
            G.append(L)
        return G
    def pv_mf(sets, p):
        G = []
        for f in range(16):
            ks, db = f // 8, f % 8; L = []
            for st, qbs in sets:
                for qb in qbs:
                    d = ar(A_O[st] + (db * 2 + qb) * 4, 4)
                    L.append('%s %s, %s, %s, %s' % (MF16, d, ar(A_RING + 4 * (f % R), 4), vr(PB[st][p] + (qb * 2 + ks) * 4, 4), d))
            G.append(L)
        return G
    def pre_items(pf):
        a(pf[0]); a('s_nop 1')
        return [dict(lo=max(0, 4 * kb - 5), hi=4 * kb - 3, ins=pf[kb]) for kb in range(1, 4)]
    LGS = int(os.environ.get('LGS', 4)); LGW = int(os.environ.get('LGW', 0))
    rare_sites = []
    pk = Packer(a)
    def lg_items(n, skip_last):
        return [dict(lo=i - LGW, hi=i, lg=i + LGS) for i in range(LGS - 1, n, LGS) if not (i == n - 1 and skip_last)]
    def ladds(ex):
        return ['v_add_f32 v%d, v%d, v%d' % (V_L + st * 2 + qb, V_L + st * 2 + qb, LT + (st * 2 + qb) * 4) for st, qbs in ex for qb in qbs]
    def iteration(p, qk, ex, pv, prev_ex, nxt='k', dk=True, dv=True, loop_ctr=None, post_bar=(), mid=(), anyw=(), wv=None, pf=None, anylo=2, vx=0, lt=False):
        groups = []; rs = []
        pfi = pre_items(pf) if pf else []
        if qk:
            groups += qk_mf(qk, p); rs += [kread(i, p) for i in range(16)]
        groups += pv_mf(pv, p); rs += [vread(i, p) for i in range(16)]
        n = len(groups)
        nx = {'k': [kread(i, 1 - p) for i in range(D)], 'v': [vread(i, 1 - p) for i in range(D)], None: [None] * D}[nxt]
        rds = rs[D:] + nx
        bg = n - D
        it = [dict(lo=0, hi=0, ins=s, v=True) for s in ladds(prev_ex)] + pfi
        nd = 0
        if wv is None: gv, gm, gk, sl = {'0': ((2, 4, 5, 6), 8, (10, 12, 14, 16), 1), '1': ((1, 3, 5, 7), 8, (10, 12, 14, 16), 0), '2': ((1, 4, 6, 8), 9, (11, 13, 16, 18), 0)}[os.environ.get('DPOS', '0')]
        else:
            pos = [2 + 4 * j + wv for j in range(8)]
            gv = [x // 2 for x in pos[:4]]; gk = [x // 2 + 1 for x in pos[4:]]; gm = gv[3] + 1; sl = 0
        late = wv is not None and wv % 2 == 1
        if dv:
            it.append(dict(lo=0, hi=0 if gv[0] == 1 else 1, ins='s_sub_u32 m0, s%d, s%d' % ((sC0, sC1)[p], sT)))
            for j, i in enumerate(gv):
                it.append(dict(lo=i + (1 if late else 0), hi=i + sl, ins='buffer_load_dwordx4 v%d, %s, s%d offen offset:%d lds' % (V_LANE16V, sr(WS, 4), (sK0, sK1)[p], 1024 * j)))
            nd += 4
        if dk:
            it.append(dict(lo=gm, hi=gm + 1, ins='s_add_u32 m0, s%d, %d' % (sT, p * 16384)))
            it.append(dict(lo=gm, hi=gm + 1, ins='s_add_u32 s%d, s%d, 32768' % ((sK0, sK1)[p], (sK0, sK1)[1 - p])))
            for j, i in enumerate(gk):
                it.append(dict(lo=i + (1 if late else 0), hi=i + sl, ins='buffer_load_dwordx4 v%d, %s, s%d offen offset:%d lds' % (V_LANE16, sr(WS, 4), (sK0, sK1)[p], 1024 * j)))
            nd += 4
        if lt:
            vreg, ptr, step, lim = ((63, 14, 7 * 1024 * 128, SIZE['wo'] - 128), (62, 22, 3 * 1024 * 128, SIZE['wd'] - 128))[p]
            it.append(dict(lo=bg, hi=bg + 2, ins='global_load_dword v7, v%d, s[%d:%d]' % (vreg, ptr, ptr + 1)))
            it.append(dict(lo=bg + 3, hi=n - 2, ins='v_add_u32 v%d, 0x%x, v%d' % (vreg, step, vreg), v=True))
            it.append(dict(lo=bg + 3, hi=n - 1, ins='v_min_u32 v%d, 0x%x, v%d' % (vreg, lim, vreg), v=True))
            vx += 1
        nd += sum(1 for s in mid if s.startswith('buffer_'))
        if p == 1:
            if qk: it.append(dict(lo=16 - D, hi=bg - 1, ins='v_xor_b32 v%d, 32768, v%d' % (V_KRD, V_KRD), v=True))
            it.append(dict(lo=bg - 1 if nxt == 'v' else bg, hi=bg - 1 if nxt == 'v' else n - 1, ins='v_xor_b32 v%d, 32768, v%d' % (V_VRD, V_VRD), v=True))
            it.append(dict(lo=13, hi=n - 1, ins='s_xor_b32 s%d, s%d, 32768' % (sT, sT)))
        if nxt is not None:
            it.append(dict(lo=bg - 3, hi=bg - 2, ins='s_waitcnt vmcnt(%d)' % (nd + vx)))
            it.append(dict(lo=bg - 1, hi=bg - 1, ins='s_barrier'))
        it += lg_items(n, nxt is None)
        it.sort(key=lambda x: (x['hi'], x['lo']))
        for j, s in enumerate(mid):
            g_ = 9 + (j * (bg - 4 - 9)) // len(mid)
            it.append(dict(lo=g_, hi=bg - 4, ins=s))
        for j, s in enumerate(anyw):
            it.append(dict(lo=anylo, hi=n - 1, ins=s))
        lo0 = bg if nxt is not None else 0
        for j, s in enumerate(post_bar):
            it.append(dict(lo=lo0 + (j * (n - lo0)) // len(post_bar), hi=n - 1, ins=s))
        fin = []
        if ex:
            lts = [LT + (st * 2 + qb) * 4 for st, qbs in ex for qb in qbs]
            cur = lts[0]
            if len(lts) == 2: fin.append('v_max_f32 v%d, v%d, v%d' % (V_T0, lts[0], lts[1])); cur = V_T0
            if len(lts) >= 3: fin.append('v_max3_f32 v%d, v%d, v%d, v%d' % (V_T0, lts[0], lts[1], lts[2])); cur = V_T0
            if len(lts) == 4: fin.append('v_max_f32 v%d, v%d, v%d' % (V_T0, V_T0, lts[3]))
            fin.append('v_cmp_lt_f32 vcc, s%d, v%d' % (sTHR, cur))
        pk.run(groups, rds, it, [(st, 1 - p, qbs) for st, qbs in ex], [], fin, (1, p) if qk else None, True)
        if loop_ctr: a('s_sub_u32 s%d, s%d, 1' % (loop_ctr[0], loop_ctr[0]))
        if ex:
            stub, back = a.newlabel(name + '_rs'), a.newlabel(name + '_rb')
            a('s_cbranch_vccnz %s' % stub)
            a.label(back)
            rare_sites.append((stub, back, 1 - p, ex))
        if loop_ctr: a('s_cbranch_scc0 %s' % loop_ctr[1])
    def epilogue(st):
        a('s_lshl_b32 s%d, s%d, 10' % (sE0, sQ[st]))
        a('s_lshl_b32 s%d, s%d, 19' % (sE1, sH))
        a('s_add_u32 s%d, s%d, s%d' % (sE0, sE0, sE1))
        a('s_add_u32 s%d, s%d, 0x%x' % (sE0, sE0, WS_CTX))
        a('s_lshl_b32 s%d, s%d, 10' % (sM1, sW))
        a('s_sub_u32 s%d, s%d, s%d' % (sM0, sE0, sM1)); a('s_add_u32 s%d, s%d, 7168' % (sM0, sM0))
        a('s_add_u32 s%d, s%d, s%d' % (sM1, sE0, sM1))
        a('v_rcp_f32 v%d, v%d' % (V_T0, V_L + st * 2))
        a('v_rcp_f32 v%d, v%d' % (V_T1, V_L + st * 2 + 1))
        a('s_nop 1')
        c3 = 0
        for s in range(4):
            for qb in range(2):
                T = SB[st][0] + 16 * (c3 % 4); c3 += 1
                for cc in range(2):
                    for e in range(4): a('v_accvgpr_read_b32 v%d, a%d' % (T + 4 * cc + e, A_O[st] + ((2 * s + cc) * 2 + qb) * 4 + e))
                for e in range(8): a('v_mul_f32 v%d, v%d, v%d' % (T + e, T + e, (V_T0, V_T1)[qb]))
                for e in range(4): a('v_cvt_pk_bf16_f32 v%d, v%d, v%d' % (T + 8 + e, T + 2 * e, T + 2 * e + 1))
                a('s_add_u32 s%d, s%d, %d' % (sE1, (sM0, sM1)[qb], s * 128 * 1024))
                a(issue(('ctx', 'buffer_store_dwordx4 %s, v%d, %s, s%d offen %s' % (vr(T + 8, 4), V_LANE16, sr(WS, 4), sE1, WT))))
    AH, AC, WD4, WO4, X4, OUT = R1, R2, R3, R4, R5, 4
    sRO, sRT, sCT4, sAC, sWW, sVAL, sXO, sSW, sLD, sW2, sAC0, sWW0 = 8, 9, 10, 11, 12, 74, 13, 18, 19, 20, 26, 27
    sS1, sS0, sR0, sR1 = 16, 17, 21, 62
    WS_EX = 0x8000000
    FX = WS_FLG + 65536
    a_real = a; a = Asm()
    a('s_lshr_b32 s67, s2, 3')
    a('s_cmp_lt_u32 s67, 30'); a('s_cselect_b32 s%d, 1, 0' % sVAL)
    a('s_min_u32 s67, s67, 29')
    a('s_mul_i32 s68, s67, 205'); a('s_lshr_b32 s68, s68, 10')
    a('s_mul_i32 s69, s68, 5'); a('s_sub_u32 s%d, s67, s69' % sCT4)
    a('s_and_b32 s69, s2, 7'); a('s_lshl_b32 s69, s69, 2'); a('s_lshr_b32 s69, %s, s69' % os.environ.get('GMAP', '0x07362514')); a('s_and_b32 s69, s69, 7')
    a('s_mul_i32 s69, s69, 6'); a('s_add_u32 s69, s69, s68')
    a('s_lshr_b32 s%d, s69, 4' % sRO); a('s_and_b32 s%d, s69, 15' % sRT)
    for s in srd('x', X4) + srd('out', OUT): a(s)
    a('s_add_u32 s70, s%d, 2' % sRO); a('s_cmp_eq_u32 s%d, 0' % sRO); a('s_cselect_b32 s71, 0, 3'); a('s_sub_u32 s70, s70, s71')
    a('s_cmp_eq_u32 s%d, 0' % sRO); a('s_cselect_b32 s71, 40, 44'); a('s_mul_i32 s71, s71, s%d' % sVAL)
    a('s_mul_i32 s67, s%d, %d' % (sRO, 18 * 131072)); a('s_add_u32 s67, s67, 0x%x' % WS_H)
    a('s_add_u32 s%d, s28, s67' % AH); a('s_addc_u32 s%d, s29, 0' % (AH + 1)); a('s_mul_i32 s%d, s%d, %d' % (AH + 2, sVAL, 18 * 131072))
    a('s_mul_i32 s67, s70, %d' % (44 * 131072)); a('s_add_u32 s67, s67, 0x%x' % WS_CTX)
    a('s_add_u32 s%d, s28, s67' % AC); a('s_addc_u32 s%d, s29, 0' % (AC + 1)); a('s_lshl_b32 s%d, s71, 17' % (AC + 2))
    a('s_mul_i32 s67, s%d, %d' % (sRO, 18 * 32 * 1280))
    a('s_add_u32 s%d, s22, s67' % WD4); a('s_addc_u32 s%d, s23, 0' % (WD4 + 1)); a('s_mul_i32 s%d, s%d, %d' % (WD4 + 2, sVAL, 18 * 32 * 1280))
    a('s_mul_i32 s67, s70, %d' % (44 * 32 * 1280))
    a('s_add_u32 s%d, s14, s67' % WO4); a('s_addc_u32 s%d, s15, 0' % (WO4 + 1)); a('s_mul_i32 s%d, s71, %d' % (WO4 + 2, 32 * 1280))
    for r_ in (AH, AC, WD4, WO4): a('s_mov_b32 s%d, 0x00020000' % (r_ + 3))
    a('s_cmp_eq_u32 s%d, 2' % sRO); a('s_cselect_b32 s%d, 1, 0' % sSW)
    VA0, VA1, VWO, VRD, VX, VPL = 16, 17, 18, 32, 20, 200
    a('s_lshl_b32 s%d, s%d, 2' % (sAC, sRT)); a('s_add_u32 s%d, s%d, s%d' % (sAC, sAC, sW))
    a('s_lshl_b32 s67, s%d, 1' % sAC); a('s_add_u32 s67, s67, s%d' % sSW)
    a('s_mul_i32 s%d, s67, %d' % (sXO, 16 * 1280)); a('s_lshl_b32 s68, s%d, 8' % sCT4); a('s_add_u32 s%d, s%d, s68' % (sXO, sXO))
    a('s_lshl_b32 s%d, s%d, 11' % (sAC, sAC)); a('s_mov_b32 s%d, s%d' % (sAC0, sAC))
    a('s_lshl_b32 s67, s%d, 10' % sSW)
    a('v_add_u32 v%d, s67, v%d' % (VA0, V_LANE16))
    a('v_xor_b32 v%d, 1024, v%d' % (VA1, VA0))
    a('s_mul_i32 s%d, s%d, %d' % (sWW, sW, 16 * 1280)); a('s_add_u32 s%d, s%d, s68' % (sWW, sWW)); a('s_mov_b32 s%d, s%d' % (sWW0, sWW))
    a('v_lshrrev_b32 v5, 3, v0'); a('v_mul_u32_u24 v5, 1280, v5')
    a('v_bfe_u32 v6, v0, 1, 2'); a('v_bfe_u32 v7, v0, 4, 2'); a('v_xor_b32 v6, v6, v7')
    a('v_lshl_add_u32 v5, v6, 5, v5'); a('v_and_b32 v6, 1, v0')
    a('v_lshl_add_u32 v%d, v6, 4, v5' % VWO)
    a('v_add_u32 v%d, %d, v%d' % (VWO + 1, 8 * 1280 - 1024, VWO))
    a('v_lshrrev_b32 v5, 2, v0'); a('v_lshlrev_b32 v5, 7, v5'); a('v_and_b32 v6, 3, v0'); a('v_lshl_add_u32 v5, v6, 3, v5')
    a('v_bfe_u32 v6, v0, 3, 2')
    for c in range(4):
        a('v_xor_b32 v7, %d, v6' % c)
        a('v_lshl_add_u32 v%d, v7, 5, v5' % (VRD + c))
        a('v_add_u32 v%d, 65536, v%d' % (VRD + 4 + c, VRD + c))
    a('v_lshrrev_b32 v5, 4, v0'); a('v_mul_u32_u24 v5, 5120, v5'); a('v_and_b32 v6, 15, v0')
    a('v_lshl_add_u32 v%d, v6, 4, v5' % VX)
    a('v_and_b32 v%d, 0x1f0, v%d' % (VPL, V_LANE16))
    a('s_mul_i32 s67, s%d, 4608' % sW)
    a('v_and_b32 v5, 15, v0'); a('v_mul_u32_u24 v5, 272, v5'); a('v_lshrrev_b32 v6, 4, v0'); a('v_lshl_add_u32 v5, v6, 3, v5')
    a('v_add_u32 v21, s67, v5')
    a('v_mul_u32_u24 v6, 1088, v6'); a('v_and_b32 v5, 15, v0'); a('v_lshl_add_u32 v5, v5, 4, v6')
    a('v_add_u32 v23, s67, v5')
    a('s_sub_u32 s67, 15, s%d' % sRT); a('s_min_u32 s67, s67, s%d' % sRT)
    a('s_lshl_b32 s79, s67, 9'); a('s_add_u32 s79, s79, 0x%x' % FH)
    a('s_lshl_b32 s76, s%d, 9' % sRT); a('s_add_u32 s76, s76, 0x%x' % FC)
    a('s_mul_i32 s67, s%d, 5' % sRT); a('s_add_u32 s67, s67, s%d' % sCT4)
    a('s_lshl_b32 s68, s67, 2'); a('s_add_u32 s68, s68, s%d' % sW)
    a('s_lshl_b32 s75, s68, 10'); a('s_add_u32 s75, s75, 0x%x' % FX)
    a('s_lshl_b32 s68, s68, 16'); a('s_add_u32 s68, s68, 0x%x' % WS_EX)
    a('s_add_u32 s67, s%d, 1' % sRO); a('s_lshl_b32 s67, s67, 13'); a('s_add_u32 s%d, s68, s67' % sS1)
    a('s_cmp_eq_u32 s%d, 0' % sRO); a('s_cselect_b32 s%d, s68, 0x20000000' % sS0)
    a('s_cmp_eq_u32 s%d, 0' % sVAL); a('s_cselect_b32 s%d, 0x20000000, s%d' % (sS0, sS0)); a('s_cselect_b32 s%d, 0x20000000, s%d' % (sS1, sS1))
    a('s_lshl_b32 s67, s%d, 13' % sSW); a('s_add_u32 s%d, s68, s67' % sR0)
    a('s_sub_u32 s67, 3, s%d' % sSW); a('s_lshl_b32 s67, s67, 13'); a('s_add_u32 s%d, s68, s67' % sR1)
    a('s_cmp_eq_u32 s%d, 0' % sRO); a('s_cselect_b32 s%d, 0x20000000, s%d' % (sR0, sR0)); a('s_cselect_b32 s%d, 0x20000000, s%d' % (sR1, sR1))
    a('s_lshl_b32 s56, s%d, 7' % sRO); a('s_add_u32 s56, s56, s75')
    a('s_sub_u32 s67, 3, s%d' % sRO); a('s_cmp_eq_u32 s%d, 0' % sRO); a('s_cselect_b32 s67, 0, s67'); a('s_lshl_b32 s67, s67, 7')
    a('v_and_b32 v22, 1, v0'); a('v_mul_u32_u24 v22, s67, v22')
    a('s_lshl_b32 s%d, s%d, 11' % (sLD, sW))
    for c in range(4): a('v_add_u32 v%d, 131072, v%d' % (196 + c, VRD + c))
    setup4 = [re.sub(r'\bv([567])\b', lambda m: 'v%d' % (64 + int(m.group(1))), l.strip()) for l in a.lines]
    a = a_real
    grp4 = []
    for l in setup4:
        if l.startswith('s_cselect') or l.startswith('s_addc'): grp4[-1] += '\n' + l
        else: grp4.append(l)
    h_poll = 'buffer_load_dwordx4 v[192:195], v%d, %s, s79 offen %s' % (VPL, sr(WS, 4), WT)
    c_poll = 'buffer_load_dwordx4 v[24:27], v%d, %s, s76 offen %s' % (VPL, sr(WS, 4), WT)
    b_poll = 'buffer_load_dword v24, v22, %s, s75 offen %s' % (sr(WS, 4), WT)
    s_poll = 'buffer_load_dword v24, v22, %s, s75 offen offset:512 %s' % (sr(WS, 4), WT)
    WF4 = 64; ND4 = 18; NK = 62; LA4 = 15
    def accB(n, q): return 128 + (q * 8 + n) * 4
    def accS(n, q): return 192 + (q * 8 + n) * 4
    def act4(k, q): r = k % 16; return (r * 8 + q * 4) if r < 8 else (128 + (r - 8) * 8 + q * 4)
    def wslot(st): return 131072 + st * 16384 if st < 2 else ((st - 2) % 8) * 16384
    def w4_dma(st):
        L = []
        if st == ND4 // 2: L.append('s_mov_b32 s%d, s%d' % (sWW, sWW0))
        r_ = WD4 if st < ND4 // 2 else WO4
        for m in range(2):
            L += ['s_add_u32 m0, s%d, %d' % (sLD, wslot(st) + m * 8192), 's_nop 0' if m == 0 else 's_add_u32 s%d, s%d, 128' % (sW2, sWW)]
            L += [(('w4', st), 'buffer_load_dwordx4 v%d, %s, s%d offen offset:%d lds' % (VWO + j, sr(r_, 4), sWW if m == 0 else sW2, 1024 * j)) for j in range(2)]
        L.append('s_add_u32 s%d, s%d, %d' % (sWW, sWW, 64 * 1280))
        return L
    def a4_load(k):
        L = ['s_mov_b32 s%d, s%d' % (sAC, sAC0)] if k == ND4 else []
        return L + [(('a4', k), 'buffer_load_dwordx4 %s, v%d, %s, s%d offen' % (ar(act4(k, q), 4), (VA0, VA1)[q], sr(AH if k < ND4 else AC, 4), sAC)) for q in range(2)] + \
               ['s_add_u32 s%d, s%d, %d' % (sAC, sAC, 128 * 1024)]
    def w4_read(k, n):
        ad, ks = wslot(k // 2), k % 2
        reg = (VRD, VRD + 4, 196)[ad // 65536]
        return ['ds_read_b64_tr_b16 %s, v%d offset:%d' % (vr(WF4 + 4 * n + 2 * r, 2), reg + n % 4, ad % 65536 + (n // 4) * 8192 + (32 * ks + 16 * r) * 128) for r in range(2)]
    PK = 112
    def packs(accf):
        L = []
        for q in (1, 0):
            for n in range(8):
                dst = (accf(0, 1) if q else PK) + 2 * n
                L += ['v_cvt_pk_bf16_f32 v%d, v%d, v%d' % (dst + h, accf(n, q) + 2 * h, accf(n, q) + 2 * h + 1) for h in range(2)]
        return L
    def sends(accf, tag):
        return [(tag, 'buffer_store_dwordx4 %s, v%d, %s, s%d offen offset:%d %s' % (vr((accf(0, 1) if q else PK) + 4 * j, 4), V_LANE16, sr(WS, 4), (sS0, sS1)[q], j * 1024, WT))
                for q in (1, 0) for j in range(4)]
    def recvs(dst, tag):
        return [(tag, 'buffer_load_dwordx4 %s, v%d, %s, s%d offen offset:%d' % (vr(dst + 16 * src_ + 4 * j, 4), V_LANE16, sr(WS, 4), (sR0, sR1)[src_], j * 1024))
                for j in range(4) for src_ in range(2)]
    def unp_add(B, dst, n, T):
        L = []
        for src_ in range(2):
            for h in range(2):
                r = dst + 16 * src_ + 2 * n + h
                L += ['v_lshlrev_b32 v%d, 16, v%d' % (T + 2 * h, r), 'v_and_b32 v%d, s65, v%d' % (T + 2 * h + 1, r)]
            L += ['v_add_f32 v%d, v%d, v%d' % (B + e, B + e, T + e) for e in range(4)]
        return L
    XR4 = 96
    xl = [('x4', 'buffer_load_dwordx4 %s, v%d, %s, s%d offen offset:%d' % (vr(XR4 + 4 * j, 4), VX, sr(X4, 4), sXO, 1280 * j)) for j in range(4)]
    F = (0, 1); H_ = (0,)
    pfi = pre_items(prefill(0, 0, 0, dyn=True))
    a('s_waitcnt lgkmcnt(%d)' % (D - LGS))
    rds = [kread(i, 0) for i in range(D, 16)] + [kread(i, 1) for i in range(D)]
    it = lg_items(16, False) + pfi; it.sort(key=lambda x: (x['hi'], x['lo']))
    pk.run(qk_mf([(1, F, None), (0, F, 1)], 0), rds, it, [], hx, [], None, False)
    a('s_nop 3'); stamp(a, 2, 'p3')
    for st in range(2):
        for qb in range(2):
            for s in max_ops(st, 0, qb, V_T0, V_T1): a(s)
            for e in range(4): a('v_sub_f32 v%d, 0, v%d' % (NEGM + (st * 2 + qb) * 4 + e, V_T0))
    pfi = pre_items(prefill(0, 1, 1, dyn=True))
    rds = [kread(i, 1) for i in range(D, 16)] + [kread(i, 0) for i in range(D)]
    it = lg_items(16, False) + pfi + [dict(lo=16 - D - 1, hi=16 - D - 1, ins='v_xor_b32 v%d, 32768, v%d' % (V_KRD, V_KRD), v=True)]
    it.sort(key=lambda x: (x['hi'], x['lo']))
    pk.run(qk_mf([(1, F, None), (0, F, 0)], 1), rds, it, [(1, 0, F), (0, 0, F)], [], [], (1, 1), False, sub=True)
    a('s_waitcnt vmcnt(0)')
    a(flag_store(76)[1])
    gate(kv_poll, 208, 4, 1, 63)
    LTO = 'w' in MX
    if LTO:
        a('s_lshl_b32 s67, s2, 2'); a('s_add_u32 s67, s67, s%d' % sW)
        a('s_mul_i32 s68, s67, 7'); a('v_min_u32 v63, 6, v0'); a('v_add_u32 v63, s68, v63'); a('v_lshlrev_b32 v63, 7, v63')
        a('s_mul_i32 s68, s67, 3'); a('v_min_u32 v62, 2, v0'); a('v_add_u32 v62, s68, v62'); a('v_lshlrev_b32 v62, 7, v62')
    stamp(a, 10); cstamp(a, 5); stamp(a, 3, 'p3')
    lA, lA_skip, lA_tail2 = name + '_loopA', name + '_skipA', name + '_tail2A'
    a('s_cmp_eq_u32 s%d, 0' % sI)
    a('s_cbranch_scc1 %s' % lA_tail2)
    a('s_sub_u32 s%d, s%d, 2' % (sCNT, sI))
    a('s_cbranch_scc1 %s' % lA_skip)
    cstamp(a, 3, 'cyb')
    a.raw('.p2align 6')
    a.label(lA)
    qB = (1, F, None); BA = [(1, F), (0, F)]; B_ = [(1, F)]; BAh = [(1, F), (0, H_)]; Bh = [(1, H_)]
    iteration(0, [qB, (0, F, None)], BA, BA, BA, lt=LTO)
    iteration(1, [qB, (0, F, None)], BA, BA, BA, loop_ctr=(sCNT, lA), lt=LTO)
    cstamp(a, 4, 'cyb')
    a.label(lA_skip)
    stamp(a, 4, 'p3')
    iteration(0, [qB, (0, F, 1)], BA, BA, BA, pf=prefill(0, 0, 0))
    stamp(a, 5, 'p3')
    iteration(1, [qB, (0, H_, 0)], BA, BA, BA, pf=prefill(0, 1, 1))
    a.label(lA_tail2)
    stamp(a, 6, 'p3')
    l7, lBtail2 = name + '_i7', name + '_tail2B'
    a('s_cmp_eq_u32 s%d, 7' % sI)
    a('s_cbranch_scc1 %s' % l7)
    def txt(L): return [x if isinstance(x, str) else x[1] for x in L]
    acts = [a4_load(k) for k in range(16)]
    E1 = txt(xl); E2 = txt(w4_dma(0) + acts[0] + acts[1] + acts[2]); E3 = txt(w4_dma(1) + acts[3] + acts[4] + acts[5])
    E4 = txt(acts[6] + acts[7] + acts[8] + acts[9] + acts[10] + acts[11])
    wt = ['s_lshl_b32 s67, s2, 2', 's_add_u32 s67, s67, s%d' % sW, 's_mul_i32 s68, s67, 46', 'v_min_u32 v72, 45, v0', 'v_add_u32 v72, s68, v72',
          'v_min_u32 v72, 40959, v72', 'v_lshlrev_b32 v72, 7, v72', 'global_load_dword v63, v72, s[14:15]',
          's_mul_i32 s68, s67, 20', 'v_min_u32 v73, 19, v0', 'v_add_u32 v73, s68, v73', 'v_min_u32 v73, 17279, v73', 'v_lshlrev_b32 v73, 7, v73',
          'global_load_dword v63, v73, s[22:23]']
    iteration(0, [qB], BAh, BA, BA, post_bar=(() if 'w' in MX else wt))
    stamp(a, 7, 'p3')
    iteration(1, [qB], B_, BAh, BAh, anyw=grp4 + [h_poll], vx=(0 if 'w' in MX else 2))
    stamp(a, 8, 'p3')
    epilogue(0)
    stamp(a, 9, 'p3')
    a('s_waitcnt vmcnt(8)')
    gate(h_poll, 192, 4, 1, 63)
    lB = name + '_loopB'
    a('s_lshl_b32 s%d, s%d, 1' % (sCNT, sI))
    a('s_sub_u32 s%d, 12, s%d' % (sCNT, sCNT))
    cstamp(a, 5, 'cyb'); stamp(a, 10, 'p3')
    a.raw('.p2align 6')
    a.label(lB)
    iteration(0, [qB], B_, B_, B_, lt=LTO)
    iteration(1, [qB], B_, B_, B_, loop_ctr=(sCNT, lB), lt=LTO)
    cstamp(a, 6, 'cyb'); stamp(a, 11, 'p3')
    if 'C' not in MX:
        E1 = E1 + ['s_getpc_b64 s[70:71]\n%s_pc2:\ns_add_u32 s70, s70, %s_tail2B-%s_pc2\ns_addc_u32 s71, s71, 0' % (name, name, name),
                   's_lshr_b32 s67, s2, 3', 's_lshl_b32 s67, s67, 2', 's_add_u32 s67, s67, s%d' % sW, 's_lshl_b32 s67, s67, 9',
                   'v_and_b32 v63, 3, v0', 'v_lshlrev_b32 v63, 7, v63', 'v_add_u32 v63, s67, v63', 'v_min_u32 v63, %s_codeend-%s_tail2B-4, v63' % (name, name),
                   'global_load_dword v63, v63, s[70:71]']
        E1b = E1[:4]
    else: E1b = E1
    iteration(0, [(1, F, 1)], B_, B_, B_, dk=False, mid=E1, post_bar=E2, pf=prefill(1, 0, 0))
    stamp(a, 12, 'p3')
    iteration(1, [(1, H_, 0)], B_, B_, B_, dk=False, nxt='v', mid=E3, post_bar=E4, pf=prefill(1, 1, 1), vx=sum(1 for s_ in E2 if s_.startswith('buffer_')) + sum(1 for s_ in E1 if s_.startswith('buffer_')))
    a('s_branch %s' % lBtail2)
    a.label(l7)
    iteration(0, [(1, F, 1)], BAh, BA, BA, dk=False, pf=prefill(1, 0, 0))
    iteration(1, [(1, H_, 0)], B_, BAh, BAh, dk=False, nxt='v', anyw=grp4 + [h_poll], pf=prefill(1, 1, 1), anylo=10)
    epilogue(0)
    a('s_waitcnt vmcnt(8)')
    gate(h_poll, 192, 4, 1, 63)
    for s_ in E2 + E3 + E4 + E1b: a(s_)
    a.label(lBtail2)
    stamp(a, 11); cstamp(a, 6); stamp(a, 13, 'p3')
    vm.n = 0; ids = {}
    for k in range(12): ids[('a4', k)] = -100
    ids[('w4', 0)] = ids[('w4', 1)] = -100
    sent = ['v_mov_b32 v%d, -1' % (116 + e) for e in range(4)] + ['s_add_u32 s67, s%d, 32768' % sS0, 's_add_u32 s68, s%d, 32768' % sS1]
    sent += [('sn', 'buffer_store_dwordx4 v[116:119], v%d, %s, s%d offen offset:%d %s' % (V_LANE16, sr(WS, 4), 67 + q, j * 1024, WT)) for j in range(4) for q in range(2)]
    e1 = [flag_store(77)[1]] + [issue(it) for it in w4_dma(2) + w4_dma(3) + sent]
    iteration(0, None, Bh, B_, B_, dk=False, dv=False, nxt='v', post_bar=e1)
    stamp(a, 14, 'p3')
    e2 = w4_dma(4) + acts[12] + acts[13] + w4_dma(5) + acts[14]
    iteration(1, None, [], Bh, Bh, dk=False, dv=False, nxt=None, post_bar=[issue(it) for it in e2])
    stamp(a, 12); stamp(a, 15, 'p3')
    epilogue(1)
    stamp(a, 16, 'p3')
    notile = name + '_notile'
    a('s_cmp_eq_u32 s%d, 0' % sVAL)
    a('s_cbranch_scc1 %s' % notile)
    a('s_barrier')
    for n in range(8):
        for s_ in w4_read(0, n): a(s_)
    stamp(a, 13)
    def rnd_l(r0, r1, t):
        return ['v_cvt_pk_bf16_f32 v%d, v%d, v%d' % (t, r0, r1), 'v_lshlrev_b32 v%d, 16, v%d' % (r0, t), 'v_and_b32 v%d, s65, v%d' % (r1, t)]
    def rnd(r0, r1, t):
        for s_ in rnd_l(r0, r1, t): a(s_)
    RBv = accB(0, 1)
    def gate_calc(n):
        B = accB(n, 0); T = 40 + 4 * (n % 2); L = unp_add(B, RBv, n, T)
        for h in range(2): L += rnd_l(B + 2 * h, B + 2 * h + 1, T)
        L += ['v_mul_f32 v%d, s64, v%d' % (T + e, B + e) for e in range(4)]
        L += ['v_exp_f32 v%d, v%d' % (T + e, T + e) for e in range(4)]
        L += ['v_add_f32 v%d, 1.0, v%d' % (T + e, T + e) for e in range(4)]
        L += ['v_rcp_f32 v%d, v%d' % (T + e, T + e) for e in range(4)]
        L += ['v_mul_f32 v%d, v%d, v%d' % (B + e, B + e, T + e) for e in range(4)]
        for h in range(2): L += rnd_l(B + 2 * h, B + 2 * h + 1, T)
        return L
    def x_unpack():
        L = []
        for n in range(8):
            for h in range(2):
                x = XR4 + 2 * n + h; o = accB(n, 1) + 2 * h
                L += ['v_lshlrev_b32 v%d, 16, v%d' % (o, x), 'v_and_b32 v%d, s65, v%d' % (o + 1, x)]
        return L
    a('s_mov_b32 s64, %s' % f2u(-math.log2(math.e)))
    a('s_mov_b32 s65, 0xffff0000')
    pend = w4_dma(6) + w4_dma(7) + w4_dma(8) + w4_dma(9)
    slowq = []
    valq = []
    nxt_a = LA4
    KG = int(os.environ.get('KG', 15)); KCF = int(os.environ.get('KCF', 1)); PDL = 5; CUN = int(os.environ.get('CUN', 9))
    KS0, KFL, KBP, KRC = ND4 + 2, 30, 33, 48
    rbl = recvs(RBv, 'rb')
    for k in range(NK):
        assert not any(x[0] == ('a4', k) for x in pend if not isinstance(x, str))
        need = ids[('a4', k)]
        if k == KCF: need = max(need, ids['ctx'])
        if k == KG: need = max(need, ids['cp'])
        if k in (KFL, KRC): assert not slowq and not any(x[0] in ('sb', 'rb', 'x4') for x in pend if not isinstance(x, str))
        if k == KFL: need = max(need, ids['sb'])
        if k == KBP + PDL: need = max(need, ids['bp'])
        if k == KRC: need = max(need, ids['rb'])
        a('s_waitcnt vmcnt(%d) lgkmcnt(12)' % min(63, vm.cnt(need)))
        if k == KCF: pend = [flag_store(78)] + pend
        if k == KG - 3: pend = [('cp', c_poll)] + pend
        if k == KG: gate(c_poll, 24, 4, 1, 63)
        if k == KS0 - 1: valq += packs(accB)
        if k == KS0:
            assert not valq
            sl = sends(accB, 'sb'); slowq += [x for p_ in zip(sl[:4], sl[4:]) for x in p_]
        if k == KFL:
            pend = [flag_store(56), 's_add_u32 s56, s56, 512', 's_add_u32 s%d, s%d, 32768' % (sS0, sS0), 's_add_u32 s%d, s%d, 32768' % (sS1, sS1)] + pend
        if k == KBP: pend = [('bp', b_poll)] + pend
        if k == KBP + PDL:
            gate(b_poll, 24, 1, 1, 63)
            slowq += rbl
        if k == KRC:
            pend += ['s_add_u32 s%d, s%d, 32768' % (sR0, sR0), 's_add_u32 s%d, s%d, 32768' % (sR1, sR1)]
            for n in range(8): valq += gate_calc(n)
            valq += x_unpack()
        newa = []
        lim = min(NK, k + LA4 + 1) if k >= KG else ND4
        while nxt_a < min(lim, k + LA4 + 1) and len(newa) < CUN:
            newa += a4_load(nxt_a); nxt_a += 1
        pend = newa + slowq[:2] + pend; slowq = slowq[2:]
        accf = accB if k < ND4 else accS
        for n in range(8):
            if n % 2 == 0 and n > 0: a('s_waitcnt lgkmcnt(%d)' % (12 if k < NK - 1 else 2 * (6 - n)))
            for q in range(2):
                d = vr(accf(n, q), 4)
                a('%s %s, %s, %s, %s' % (MF16, d, vr(WF4 + 4 * n, 4), ar(act4(k, q), 4), '0' if k in (0, ND4) else d))
                if q == 0:
                    while pend and pend[0] == 's_nop 0': pend.pop(0)
                    if pend: a(issue(pend.pop(0)))
                    if pend and isinstance(pend[0], str) and pend[0] != 's_nop 0': a(pend.pop(0))
                    for _ in range(4):
                        if valq: a(valq.pop(0))
            if k + 1 < NK:
                if n == 0 and k % 4 == 3:
                    st = k // 2
                    key = ('w4', min(st + 2, NK // 2 - 1))
                    assert not any(x[0] == key for x in pend if not isinstance(x, str))
                    a('s_waitcnt vmcnt(%d) lgkmcnt(0)' % min(63, vm.cnt(ids[key])))
                    a('s_barrier')
                    for s2_ in (st + 7, st + 8):
                        if s2_ < NK // 2 and st >= 3: pend = pend + w4_dma(s2_)
                for s_ in w4_read(k + 1, n): a(s_)
        if k == ND4 - 1: stamp(a, 14); cstamp(a, 7)
        if k % 4 == 1: stamp(a, 1 + k // 4, 'p4')
        if k == ND4 + 39:
            assert not pend
            a('s_cmp_eq_u32 s%d, 0' % sRO)
            a('s_cbranch_scc1 %s_p4done' % name)
    assert not pend and not valq
    a.label(name + '_p4done')
    stamp(a, 15); cstamp(a, 8)
    a('s_nop 7')
    stamp(a, 1, 'fin')
    pl = packs(accS); sl = sends(accS, 'ss')
    def send_part(js):
        for j in js:
            for s_ in pl[4 * j:4 * j + 4]: a(s_)
            for s_ in pl[4 * j:4 * j + 4]:
                r_ = s_.split()[1].rstrip(',')
                a('v_min_u32 %s, -2, %s' % (r_, r_))
            a(sl[j][1])
    send_part(range(4))
    lfin = name + '_fin'
    a('s_cmp_lg_u32 s%d, 0' % sRO)
    a('s_cbranch_scc1 %s' % lfin)
    send_part(range(4, 8))
    stamp(a, 16)
    stamp_flush(a, 17)
    a('s_endpgm')
    a.label(lfin)
    stamp(a, 2, 'fin')
    RS = 64
    a('s_mov_b32 s63, 0x40000')
    a.label(name + '_rx')
    for it in recvs(RS, 'rs'): a(it[1] + ' ' + WT)
    a('s_waitcnt vmcnt(4)')
    for j in range(2):
        for src_ in range(2):
            r_ = RS + 16 * src_ + 4 * j
            if j == 0 and src_ == 0: a('v_max3_u32 v40, v%d, v%d, v%d' % (r_, r_ + 1, r_ + 2)); a('v_max_u32 v40, v40, v%d' % (r_ + 3))
            else: a('v_max3_u32 v40, v40, v%d, v%d' % (r_, r_ + 1)); a('v_max3_u32 v40, v40, v%d, v%d' % (r_ + 2, r_ + 3))
    a('s_waitcnt vmcnt(0)')
    for j in range(2, 4):
        for src_ in range(2):
            r_ = RS + 16 * src_ + 4 * j
            a('v_max3_u32 v40, v40, v%d, v%d' % (r_, r_ + 1)); a('v_max3_u32 v40, v40, v%d, v%d' % (r_ + 2, r_ + 3))
    a('v_cmp_eq_u32 vcc, -1, v40')
    a('s_sub_u32 s63, s63, 1')
    a('s_cbranch_scc1 %s_rxok' % name)
    a('s_cbranch_vccnz %s_rx' % name)
    a.label(name + '_rxok')
    stamp(a, 6, 'fin')
    for n in range(8):
        if n in (0, 7): stamp(a, 7 + n // 7, 'fin')
        S = accS(n, 0); T = 96 + 2 * n
        for s_ in unp_add(S, RS, n, 40): a(s_)
        for h in range(2): rnd(S + 2 * h, S + 2 * h + 1, 56)
        for e in range(4): a('v_mul_f32 v%d, v%d, v%d' % (S + e, S + e, accB(n, 0) + e))
        for h in range(2): a('v_cvt_pk_bf16_f32 v%d, v%d, v%d' % (T + h, S + 2 * h, S + 2 * h + 1))
        a('ds_write_b64 v21, %s offset:%d' % (vr(T, 2), 32768 + 32 * n))
    for j in range(4): a('ds_read_b128 %s, v23 offset:%d' % (vr(64 + 4 * j, 4), 32768 + 272 * j))
    for j in range(4):
        a('s_waitcnt lgkmcnt(%d)' % (3 - j))
        X_ = accB(0, 1) + 8 * j
        for e in range(4):
            a('v_lshlrev_b32 v40, 16, v%d' % (64 + 4 * j + e)); a('v_and_b32 v41, s65, v%d' % (64 + 4 * j + e))
            a('v_add_f32 v40, v40, v%d' % (X_ + 2 * e)); a('v_add_f32 v41, v41, v%d' % (X_ + 2 * e + 1))
            a('v_cvt_pk_bf16_f32 v%d, v40, v41' % (80 + 4 * j + e))
        a('buffer_store_dwordx4 %s, v%d, %s, s%d offen offset:%d %s' % (vr(80 + 4 * j, 4), VX, sr(OUT, 4), sXO, 1280 * j, OUTF))
    if os.environ.get('PADT'):
        a.label(name + '_padl')
        a('s_memrealtime s[98:99]'); a('s_waitcnt lgkmcnt(0)'); a('s_sub_u32 s98, s98, s97'); a('s_cmp_lt_u32 s98, %d' % int(os.environ['PADT']))
        a('s_cbranch_scc1 %s_padl' % name)
    stamp(a, 16); stamp(a, 9, 'fin')
    stamp_flush(a, 17)
    a('s_endpgm')
    a.label(notile)
    a('s_waitcnt vmcnt(0)')
    a(flag_store(78)[1])
    a.label(end)
    a('s_endpgm')
    for slow, ok, load_ins, chk, ts in slow_paths:
        a.label(slow)
        a('s_mov_b32 s%d, 0x40000' % ts)
        lp = a.newlabel(name + '_sp')
        a.label(lp)
        a('s_sleep 1')
        a(load_ins)
        a('s_waitcnt vmcnt(0)')
        for s in chk: a(s)
        a('s_nop 1')
        a('s_cbranch_vccz %s' % ok)
        a('s_sub_u32 s%d, s%d, 1' % (ts, ts))
        a('s_cbranch_scc0 %s' % lp)
        a('s_branch %s' % ok)
    for stub, back, pc, ex in rare_sites:
        a.label(stub)
        for st, qbs in sorted(ex):
            a('s_mov_b32 s69, %s' % ('1.0' if 1 in qbs else '0'))
            a('s_call_b64 s[100:101], %s_rare%d%d' % (name, pc, st))
        a('s_branch %s' % back)
    for pc in range(2):
        for st in range(2):
            a.label('%s_rare%d%d' % (name, pc, st))
            a('s_nop 7')
            for qb in range(2):
                for s in max_ops(st, pc, qb, V_T0, V_T1): a(s)
                a('v_max_f32 v%d, 0, v%d' % (V_T0, V_T0))
                if qb == 1: a('v_mul_f32 v%d, s69, v%d' % (V_T0, V_T0))
                a('v_exp_f32 v%d, -v%d' % (V_T1, V_T0))
                for e in range(4): a('v_sub_f32 v%d, v%d, v%d' % (NEGM + (st * 2 + qb) * 4 + e, NEGM + (st * 2 + qb) * 4 + e, V_T0))
                for pp in range(2):
                    for kb in range(4):
                        for r in range(4):
                            x = SB[st][pp] + (kb * 2 + qb) * 4 + r
                            a('v_sub_f32 v%d, v%d, v%d' % (x, x, V_T0))
                a('v_mul_f32 v%d, v%d, v%d' % (V_L + st * 2 + qb, V_L + st * 2 + qb, V_T1))
                for db in range(0, 8, 2):
                    regs = [A_O[st] + ((db + h) * 2 + qb) * 4 + e for h in range(2) for e in range(4)]
                    for e in range(8): a('v_accvgpr_read_b32 v%d, a%d' % (TMP + e, regs[e]))
                    for e in range(8): a('v_mul_f32 v%d, v%d, v%d' % (TMP + e, TMP + e, V_T1))
                    for e in range(8): a('v_accvgpr_write_b32 a%d, v%d' % (regs[e], TMP + e))
            for s in exp_ops(st, pc): a(s)
            if st == 1:
                for k, (s, _, _) in enumerate(exp_seq(1, 1 - pc)[:EARLY]): a('v_exp_f32 v%d, v%d' % (TMP + k, s))
            a('s_nop 7')
            a('s_setpc_b64 s[100:101]')
    a.label(name + '_codeend')
    if os.environ.get('PADEND'): a.raw('.fill 8192, 4, 0xBF810000')
    kernel_desc(a, name, 512, 256)
    return a
```

```python
from common import *
import common
import math, copy, re
import k2 as K2
from k2 import VM, Packer, exp_seq, exp_ops, max_ops, EARLY
from k2 import V_LANE16, V_LANE16V, V_KRD, V_VRD, V_T0, V_T1, V_L, TRI, NEGM, LT, TMP, SB, PB, A_O, A_Q, A_RING, V_ONES, D, R, THR, BIG

OUTF = os.environ.get('OUTF', 'sc0 sc1')
WT = 'sc0 sc1'
WS_FLG = 0x7000000
FK, FH, FC, FL, FE = WS_FLG, WS_FLG + 4096, WS_FLG + 8192, WS_FLG + 16384, WS_FLG + 20480
PTR = dict(x=4, ckv=6, wq=8, wuk=10, wuv=12, wo=14, wg=18, wu=20, wd=22, out=24, dbg=26, ws=28)
WS, R1, R2, R3, R4, R5 = 32, 36, 40, 44, 48, 52
sW, sH, sI = 30, 31, 3
V_ONE, V_1 = 60, 61
V_PA, V_PD = 62, 24

SMODE = os.environ.get('SMODE', 'all')
def stamp(a, i, mode='all'):
    if not DIAG: return
    if mode != SMODE and i != 0: return
    a('s_memrealtime s[98:99]'); a('s_waitcnt lgkmcnt(0)'); a('s_mov_b32 s%d, s98' % (80 + i))
def cstamp(a, i, mode='cyc'):
    if not DIAG or mode != SMODE: return
    a('s_memrealtime s[98:99]'); a('s_waitcnt lgkmcnt(0)'); a('s_mov_b32 s%d, s98' % (80 + i + 8))
    a('s_memtime s[98:99]'); a('s_waitcnt lgkmcnt(0)'); a('s_mov_b32 s%d, s98' % (80 + i))
def stamp_flush(a, n):
    if not DIAG: return
    if os.environ.get('DBGOUT'):
        a('s_load_dwordx2 s[36:37], s[0:1], 88')
        a('s_mov_b32 s38, 256'); a('s_mov_b32 s39, 0x00020000')
        a('s_lshl_b32 s98, s2, 2'); a('s_add_u32 s98, s98, s%d' % sW)
        a('s_cmp_eq_u32 s98, %d' % (4 * int(os.environ['DBGOUT'])))
        a('s_cselect_b32 s98, 0, 0x1000')
        a('s_waitcnt lgkmcnt(0)')
        a('v_mov_b32 v0, 0')
        for i in range(1, n):
            a('s_sub_u32 s99, s%d, s80' % (80 + i))
            a('v_mov_b32 v1, s99')
            a('buffer_store_dword v1, v0, s[36:39], s98 offen offset:%d' % (4 * (i - 1)))
            a('s_nop 1')
        return
    a('s_lshl_b32 s98, s2, 2'); a('s_add_u32 s98, s98, s%d' % sW); a('s_lshl_b32 s98, s98, 7')
    a('s_add_u32 s98, s98, 0x%x' % WS_STAMP)
    a('v_mov_b32 v0, 0')
    for i in range(n):
        a('v_mov_b32 v1, s%d' % (80 + i))
        a('buffer_store_dword v1, v0, %s, s98 offen offset:%d' % (sr(WS, 4), 4 * i))
        a('s_nop 1')

def srd(name, r, off=0, size=None):
    p = PTR[name]
    L = []
    if off:
        L += ['s_add_u32 s%d, s%d, 0x%x' % (r, p, off), 's_addc_u32 s%d, s%d, 0' % (r + 1, p + 1)]
    else:
        L += ['s_mov_b32 s%d, s%d' % (r, p), 's_mov_b32 s%d, s%d' % (r + 1, p + 1)]
    L += ['s_mov_b32 s%d, 0x%x' % (r + 2, SIZE[name] if size is None else size), 's_mov_b32 s%d, 0x00020000' % (r + 3)]
    return L

def gen_mega(a, name):
    kernel_begin(a, name)
    end = name + '_end'
    slow_paths = []
    def gate(load_ins, dreg, n, want, tmp_s):
        def chk():
            L = ['v_xor_b32 v%d, v%d, v%d' % (dreg + e, dreg + e, V_1) for e in range(n)]
            if n >= 3: L += ['v_or3_b32 v%d, v%d, v%d, v%d' % (dreg, dreg, dreg + 1, dreg + 2)]
            if n == 4: L += ['v_or_b32 v%d, v%d, v%d' % (dreg, dreg, dreg + 3)]
            L += ['v_cmp_ne_u32 vcc, 0, v%d' % dreg]
            return L
        slow, ok = a.newlabel(name + '_sl'), a.newlabel(name + '_ok')
        for s in chk(): a(s)
        a('s_nop 1')
        a('s_cbranch_vccnz %s' % slow)
        a.label(ok)
        slow_paths.append((slow, ok, load_ins, chk(), tmp_s))

    a('s_cmp_ge_u32 s2, 256')
    a('s_cbranch_scc1 %s' % end)
    if os.environ.get('PADT'):
        a('s_memrealtime s[98:99]'); a('s_waitcnt lgkmcnt(0)'); a('s_mov_b32 s97, s98')
    stamp(a, 0)
    a('s_load_dwordx16 s[4:19], s[0:1], 0')
    a('s_load_dwordx8 s[20:27], s[0:1], 64')
    a('s_load_dwordx2 s[28:29], s[0:1], 96')
    if 'e' in os.environ.get('MX', ''):
        a('s_getpc_b64 s[100:101]')
        a('v_lshlrev_b32 v2, 7, v0')
        a('global_load_dword v250, v2, s[100:101]')
    a('v_lshrrev_b32 v1, 6, v0')
    a('v_and_b32 v0, 63, v0')
    a('v_readfirstlane_b32 s%d, v1' % sW)
    a('s_and_b32 s31, s2, 7')
    a('s_lshl_b32 s31, s31, 2')
    a('s_lshr_b32 s61, s2, 3')
    a('s_and_b32 s61, s61, 3')
    a('s_add_u32 s31, s31, s61')
    a('s_lshr_b32 s3, s2, 5')
    CKV, WUK, WUV, X, DBG = R1, R2, R3, R4, R5
    VA, VW = 8, 12
    a('v_lshrrev_b32 v6, 3, v0')
    a('v_lshlrev_b32 v6, 10, v6')
    a('v_lshrrev_b32 v7, 4, v0')
    a('v_and_b32 v12, 7, v0')
    a('v_xor_b32 v12, v12, v7')
    a('v_xor_b32 v13, 4, v12')
    a('v_lshl_add_u32 v12, v12, 4, v6')
    a('v_lshl_add_u32 v13, v13, 4, v6')
    for j in range(4): a('v_add_u32 v%d, %d, v%d' % (VA + j, j * (8192 - 1024), 12 + (j & 1)))
    a('v_bfe_u32 v16, v0, 1, 3')
    a('v_xor_b32 v16, v16, v7')
    a('v_xor_b32 v17, 4, v16')
    a('v_and_b32 v18, 1, v0')
    a('v_lshlrev_b32 v18, 4, v18')
    a('v_lshl_add_u32 v18, v7, 13, v18')
    a('v_lshl_add_u32 v16, v16, 5, v18')
    a('v_lshl_add_u32 v17, v17, 5, v18')
    for j in range(4): a('v_add_u32 v%d, %d, v%d' % (VW + j, j * (32768 - 1024), 16 + (j >> 1)))
    sA, sWo, sLA, sLW, sA2 = 56, 57, 58, 59, 60
    a('s_lshl_b32 s56, s%d, 2' % sI)
    a('s_add_u32 s56, s56, s%d' % sW)
    a('s_lshl_b32 s56, s56, 16')
    a('s_lshl_b32 s57, s%d, 17' % sW)
    a('s_lshl_b32 s58, s%d, 8' % sH)
    a('s_add_u32 s57, s57, s58')
    a('s_lshl_b32 s58, s%d, 13' % sW)
    a('s_lshl_b32 s59, s%d, 12' % sW)
    a('s_add_u32 s59, s59, 65536')
    a('v_lshrrev_b32 v2, 5, v0')
    a('v_and_b32 v3, 31, v0')
    a('s_lshl_b32 s61, s2, 2')
    a('s_add_u32 s61, s61, s%d' % sW)
    a('s_lshl_b32 s61, s61, 1')
    a('v_add_u32 v4, s61, v2')
    a('v_mul_u32_u24 v5, 1280, v4')
    a('v_lshl_add_u32 v5, v3, 3, v5')
    a('v_lshlrev_b32 v%d, 4, v0' % V_LANE16)
    vm = VM(); ids = {}
    def issue(it):
        if isinstance(it, str): return it
        ids[it[0]] = vm.op()
        return it[1]
    def p1_dma(st):
        slot = st & 1; t = ('p1', st)
        L = ['s_add_u32 m0, s%d, %d' % (sLA, slot * 32768), 's_add_u32 s%d, s%d, 32768' % (sA2, sA)]
        L += [(t, 'buffer_load_dwordx4 v%d, %s, s%d offen offset:%d lds' % (VA + j, sr(CKV, 4), sA, 1024 * j)) for j in range(4)]
        L += ['s_add_u32 m0, s%d, %d' % (sLW, slot * 32768), 's_add_u32 s%d, s%d, 128' % (sA, sA)]
        L += [(t, 'buffer_load_dwordx4 v%d, %s, s%d offen offset:%d lds' % (VW + j, sr(WUK, 4), sWo, 1024 * j)) for j in range(4)]
        L += ['s_add_u32 m0, s%d, %d' % (sLA, slot * 32768 + 4096), 's_nop 0']
        L += [(t, 'buffer_load_dwordx4 v%d, %s, s%d offen offset:%d lds' % (VA + j, sr(CKV, 4), sA2, 1024 * j)) for j in range(4)]
        L += ['s_add_u32 m0, s%d, %d' % (sLW, slot * 32768 + 16384), 's_nop 0']
        L += [(t, 'buffer_load_dwordx4 v%d, %s, s%d offen offset:%d lds' % (VW + j, sr(WUV, 4), sWo, 1024 * j)) for j in range(4)]
        L += ['s_add_u32 s%d, s%d, %d' % (sWo, sWo, 64 * 8192)]
        return L
    stamp(a, 1, 'st')
    a('s_waitcnt lgkmcnt(0)')
    for n_, r_ in (('x', X), ('ckv', CKV), ('wuk', WUK), ('wuv', WUV), ('ws', WS)):
        for s in srd(n_, r_): a(s)
    XR = 192
    a('v_mov_b32 v52, 0')
    a('s_mov_b32 s79, 0x%x' % FE)
    a(issue(('ep', 'buffer_load_dword v%d, v52, %s, s79 offen %s' % (V_1, sr(WS, 4), WT))))
    xld = [('x', 'buffer_load_dwordx2 %s, v5, %s, 0 offen offset:%d' % (vr(XR + 2 * j, 2), sr(X, 4), 256 * j)) for j in range(5)]
    MX0 = os.environ.get('MX', '')
    if 'k' in MX0:
        a('v_and_b32 v20, 15, v0'); a('v_lshlrev_b32 v20, 7, v20'); a('s_lshl_b32 s62, s61, 10')
        a(issue(('pf', 'buffer_load_dword v240, v20, %s, s62 offen' % sr(CKV, 4))))
    if 'l' not in MX0:
        for it in xld: a(issue(it))
    PFB = False
    def weave(start, items):
        body = a.lines[start:]; del a.lines[start:]
        G = []
        for l in body:
            t = l.strip()
            if G and (t.startswith(('s_cselect', 's_addc', 's_subb')) or t.endswith(':') or G[-1][-1].strip().endswith(':')): G[-1].append(l)
            else: G.append([l])
        D_ = []; cur = []
        for s in items:
            cur.append(s)
            if s.startswith(('buffer_', 'global_')): D_.append(cur); cur = []
        if cur: D_[-1] += cur
        for j, d in enumerate(D_):
            for s in d: a(s)
            for g in G[(j * len(G)) // len(D_):((j + 1) * len(G)) // len(D_)]: a.lines.extend(g)
    s0_items = [issue(it) for it in p1_dma(0)]
    W0 = len(a.lines)
    a('s_lshr_b32 s61, s2, 3')
    a('s_lshl_b32 s61, s61, 2')
    a('s_add_u32 s61, s61, s%d' % sW)
    TC, TW, TX = 48, 49, 50
    a('v_bfe_u32 v20, v0, 1, 4')
    a('v_lshlrev_b32 v20, 10, v20')
    a('v_and_b32 v21, 1, v0')
    a('v_lshl_add_u32 v20, v21, 7, v20')
    a('s_lshl_b32 s62, s61, 14')
    a('v_add_u32 v%d, s62, v20' % TC)
    a('v_and_b32 v20, 7, v0')
    a('v_lshlrev_b32 v20, 7, v20')
    a('s_lshl_b32 s62, s61, 13')
    a('s_and_b32 s63, s2, 7')
    a('s_lshl_b32 s63, s63, 10')
    a('s_add_u32 s62, s62, s63')
    a('v_add_u32 v%d, s62, v20' % TW)
    def pf_chunk(c):
        if PFB: return []
        return ['s_mov_b32 s16, %d' % ((c + 1) * 128 * 8192),
                ('pf', 'buffer_load_dword v240, v%d, %s, 0 offen offset:%d' % (TC, sr(CKV, 4), 256 * (c + 1))),
                ('pf', 'buffer_load_dword v241, v%d, %s, s16 offen' % (TW, sr(WUK, 4))),
                ('pf', 'buffer_load_dword v242, v%d, %s, s16 offen' % (TW, sr(WUV, 4)))]
    a('s_getpc_b64 s[100:101]')
    a.label(name + '_pc')
    a('s_sub_u32 s100, s100, %s_pc-%s' % (name, name))
    a('s_subb_u32 s101, s101, 0')
    a('v_and_b32 v20, 7, v0')
    a('v_lshlrev_b32 v20, 7, v20')
    a('s_lshl_b32 s62, s61, 10')
    a('v_add_u32 v20, s62, v20')
    a('v_min_u32 v55, %s_codeend-%s-4, v20' % (name, name))
    a('s_min_u32 s62, s61, 79'); a('s_lshl_b32 s62, s62, 16'); a('v_mov_b32 v56, s62')
    a('s_min_u32 s62, s61, 33'); a('s_lshl_b32 s62, s62, 16'); a('v_mov_b32 v57, s62')
    TQ, TG = 53, 54
    a('v_min_u32 v20, 39, v0')
    a('v_lshrrev_b32 v21, 3, v20')
    a('s_mul_i32 s62, s61, 5')
    a('v_add_u32 v21, s62, v21')
    a('v_and_b32 v20, 7, v20')
    a('v_lshlrev_b32 v20, 7, v20')
    a('v_lshl_add_u32 v20, v21, 13, v20')
    a('v_add_u32 v%d, s63, v20' % TQ)
    a('v_min_u32 v20, 19, v0')
    a('v_lshrrev_b32 v21, 2, v20')
    a('v_add_u32 v21, s62, v21')
    a('v_mul_u32_u24 v21, 3456, v21')
    a('s_and_b32 s63, s2, 7')
    a('s_lshl_b32 s63, s63, 2')
    a('s_mul_i32 s64, s63, 37'); a('s_lshr_b32 s64, s64, 8')
    a('s_sub_u32 s63, s63, s64')
    a('v_and_b32 v20, 3, v20')
    a('v_add_u32 v20, s63, v20')
    a('v_min_u32 v20, 26, v20')
    a('v_lshl_add_u32 v%d, v20, 7, v21' % TG)
    a('s_mul_i32 s62, s61, 20480')
    a('v_and_b32 v20, 31, v0')
    a('v_lshlrev_b32 v20, 7, v20')
    a('v_add_u32 v%d, s62, v20' % TX)
    def xn_touch(j):
        return ['s_mov_b32 s16, %d' % (4096 * j), ('pf', 'buffer_load_dword v243, v%d, %s, s16 offen' % (TX, sr(WS, 4)))]
    RA, RW = 16, 18
    a('s_lshr_b32 s61, s%d, 1' % sW)
    a('s_lshl_b32 s61, s61, 14')
    a('v_bfe_u32 v20, v0, 1, 3')
    a('v_xor_b32 v20, v20, v7')
    a('v_and_b32 v21, 15, v0')
    a('v_lshlrev_b32 v21, 7, v21')
    a('v_add_u32 v21, s61, v21')
    a('v_lshl_add_u32 v%d, v20, 4, v21' % RA)
    a('v_xor_b32 v20, 4, v20')
    a('v_lshl_add_u32 v%d, v20, 4, v21' % (RA + 1))
    a('v_bfe_u32 v22, v0, 2, 2')
    a('v_lshl_add_u32 v23, v7, 3, v22')
    a('v_lshlrev_b32 v23, 8, v23')
    a('v_and_b32 v24, 3, v0')
    a('v_lshl_add_u32 v23, v24, 3, v23')
    a('v_add_u32 v23, 65536, v23')
    a('v_bfe_u32 v22, v0, 2, 3')
    a('s_and_b32 s62, s%d, 1' % sW)
    a('s_lshl_b32 s62, s62, 2')
    a('v_xor_b32 v22, s62, v22')
    for nb in range(4):
        a('v_xor_b32 v24, %d, v22' % nb)
        a('v_lshl_add_u32 v%d, v24, 5, v23' % (RW + nb))
    P_XOFF2, P_WOFF, P_WRD = 32, 33, 40
    P_X0, P_X1 = 32, 37
    a('s_sub_u32 s61, 7, s%d' % sW); a('s_mul_i32 s61, s61, 20480'); a('v_add_u32 v%d, s61, v%d' % (P_X0, V_LANE16))
    a('s_mul_i32 s61, s%d, 20480' % sW); a('v_add_u32 v%d, s61, v%d' % (P_X1, V_LANE16))
    a('v_lshrrev_b32 v25, 3, v0')
    a('v_bfe_u32 v26, v0, 1, 2')
    a('v_bfe_u32 v27, v0, 4, 2')
    a('v_xor_b32 v26, v26, v27')
    a('v_lshlrev_b32 v26, 5, v26')
    a('v_and_b32 v27, 1, v0')
    a('v_lshl_add_u32 v26, v27, 4, v26')
    a('v_lshl_add_u32 v%d, v25, 13, v26' % P_WOFF)
    a('v_add_u32 v%d, %d, v%d' % (P_WOFF + 1, 8 * 8192 - 1024, P_WOFF))
    a('v_mul_u32_u24 v25, 3456, v25')
    a('v_add_u32 v%d, v25, v26' % (P_WOFF + 2))
    a('v_add_u32 v%d, %d, v%d' % (P_WOFF + 3, 8 * 3456 - 1024, P_WOFF + 2))
    a('v_lshrrev_b32 v25, 2, v0')
    a('v_lshlrev_b32 v25, 7, v25')
    a('v_and_b32 v26, 3, v0')
    a('v_lshl_add_u32 v25, v26, 3, v25')
    a('v_add_u32 v25, 65536, v25')
    a('v_bfe_u32 v26, v0, 3, 2')
    for c in range(4):
        a('v_xor_b32 v27, %d, v26' % c)
        a('v_lshl_add_u32 v%d, v27, 5, v25' % (P_WRD + c))
        a('v_add_u32 v%d, 65536, v%d' % (P_WRD + 4 + c, P_WRD + c))
    s_w = [64, 65, 66, 67]; s_q = [68, 69]; sLW2, sCT = 70, 71; sQ = [72, 73]
    a('s_mul_i32 s17, s%d, 37' % sH)
    a('s_lshr_b32 s17, s17, 8')
    a('s_sub_u32 s71, s%d, s17' % sH)
    a('s_lshl_b32 s70, s%d, 11' % sW)
    a('s_lshl_b32 s72, s%d, 3' % sI)
    a('s_sub_u32 s73, 120, s72')
    a('s_mul_i32 s68, s72, 20480')
    a('s_mul_i32 s69, s73, 20480')
    assert WS_XN == 0
    a('s_lshl_b32 s64, s%d, 17' % sW)
    a('s_lshl_b32 s65, s%d, 8' % sH)
    a('s_add_u32 s64, s64, s65')
    a('s_add_u32 s65, s64, 128')
    a('s_mul_i32 s66, s%d, %d' % (sW, 16 * 3456))
    a('s_lshl_b32 s67, s%d, 7' % sCT)
    a('s_add_u32 s66, s66, s67')
    a('s_mov_b32 s67, s66')
    a('s_mul_i32 s61, s17, 7')
    a('s_sub_u32 s61, s%d, s61' % sH)
    a('s_cmp_eq_u32 s61, 6')
    a('s_cselect_b32 s74, 0, 0x%x' % SIZE['wg'])
    a('s_cmp_ge_u32 s%d, 27' % sCT)
    a('s_cselect_b32 s74, 0, s74')
    a('s_lshl_b32 s61, s%d, 2' % sW)
    a('s_lshl_b32 s76, s2, 4'); a('s_add_u32 s76, s76, s61')
    a('s_add_u32 s75, s76, 0x%x' % FK)
    a('s_add_u32 s77, s76, 0x%x' % FC)
    a('s_and_b32 s78, s76, 0x1ff')
    a('s_add_u32 s76, s76, 0x%x' % FH)
    a('s_sub_u32 s62, 15, s%d' % sI); a('s_lshl_b32 s62, s62, 9')
    a('s_add_u32 s78, s78, s62'); a('s_add_u32 s78, s78, 0x%x' % FC)
    a('v_cmp_eq_u32 vcc, 0, v0')
    a('v_mov_b32 v25, 0x20000000')
    a('s_lshl_b32 s26, s2, 2'); a('s_add_u32 s26, s26, 0x%x' % FL)
    a('v_cndmask_b32 v%d, v25, 0, vcc' % V_ONE)
    a('s_cmp_eq_u32 s%d, 0' % sW)
    a('s_cselect_b32 s26, s26, 0x20000000')
    a('s_lshl_b32 s27, s2, 2'); a('s_or_b32 s27, s27, s%d' % sW)
    a('s_cmp_eq_u32 s27, 0')
    a('s_cselect_b32 s27, s79, 0x20000000')
    a('s_mov_b32 s79, 0x%x' % FL)
    def flag_store(sreg, val=V_1):
        return ('fl', 'buffer_store_dword v%d, v%d, %s, s%d offen %s' % (val, V_ONE, sr(WS, 4), sreg, WT))
    weave(W0, s0_items)
    W1 = len(a.lines)
    a('s_mov_b32 s61, 0x9e3779b1')
    a('v_mul_lo_u32 v%d, s61, v%d' % (V_1, V_1))
    a('v_add_u32 v%d, 0x7f4a7c15, v%d' % (V_1, V_1))
    import k1
    b = Asm(); k1.ln_part(b, XR, WS, 4, 3)
    ln_lines = [l.strip() for l in b.lines]
    for l in ln_lines[:-20]: a(l)
    a('v_lshrrev_b32 v224, 3, v3')
    a('v_lshlrev_b32 v224, 9, v224')
    a('v_and_b32 v225, 3, v3')
    a('v_lshl_add_u32 v224, v225, 7, v224')
    a('v_and_b32 v225, 7, v4')
    a('v_lshl_add_u32 v224, v225, 4, v224')
    a('v_bfe_u32 v225, v3, 2, 1')
    a('v_lshl_add_u32 v224, v225, 3, v224')
    a('v_add_u32 v224, %d, v224' % (128 * 1024))
    for j in range(5): a('ds_write_b64 v224, %s offset:%d' % (vr(XR + 2 * j, 2), 2048 * j))
    a('s_lshl_b32 s61, s%d, 10' % sW)
    a('s_add_u32 s61, s61, %d' % (128 * 1024))
    a('v_add_u32 v225, s61, v%d' % V_LANE16)
    a('v_lshrrev_b32 v226, 3, v0')
    a('v_lshlrev_b32 v226, 8, v226')
    a('v_and_b32 v227, 7, v0')
    a('v_lshl_add_u32 v226, v227, 4, v226')
    a('s_lshr_b32 s61, s2, 1')
    a('s_mul_i32 s61, s61, 20480')
    a('s_and_b32 s62, s2, 1')
    a('s_lshl_b32 s62, s62, 7')
    a('s_add_u32 s61, s61, s62')
    a('s_lshl_b32 s62, s%d, 11' % sW)
    a('s_add_u32 s61, s61, s62')
    a('s_add_u32 s62, s61, 8192')
    a('s_add_u32 s63, s61, 16384')
    a('s_cmp_lt_u32 s%d, 2' % sW)
    a('s_cselect_b32 s63, s63, 0x20000000')
    lnq = []
    for l in a.lines[W1:]:
        t = l.strip()
        if t.startswith('s_cselect'): lnq[-1] += '\n' + t
        else: lnq.append(t)
    del a.lines[W1:]
    xn_reads = ['ds_read_b128 %s, v225 offset:%d' % (vr(XR + 4 * t, 4), 4096 * t) for t in range(3)]
    xn_stores = [('xn', 'buffer_store_dwordx4 %s, v226, %s, s%d offen %s' % (vr(XR + 4 * t, 4), sr(WS, 4), 61 + t, WT)) for t in range(3)]
    MX = os.environ.get('MX', '')
    if 'x' in MX: xn_stores = []
    if 'p' in MX: xn_stores = [(t, s.replace(WT, '')) for t, s in xn_stores]
    WQ, WG, WU = R1, R2, R3
    WSLOT = [128 * 1024, 64 * 1024, 96 * 1024]
    P_ACCV, P_ACCA, P_WF, P_ACT = 128, 0, 128, 192
    srdm = [WQ, WQ, WG, WU]; stride = [8192, 8192, 3456, 3456]
    def w_dma(st, nm):
        L = []
        for m in range(nm):
            L.append('s_add_u32 m0, s%d, %d' % (sLW2, WSLOT[st % 3] + m * 8192))
            L.append('s_nop 0')
            for j in range(2):
                L.append((('w', st), 'buffer_load_dwordx4 v%d, %s, s%d offen offset:%d lds' % (P_WOFF + 2 * (m // 2) + j, sr(srdm[m], 4), s_w[m], 1024 * j)))
            L.append('s_add_u32 s%d, s%d, %d' % (s_w[m], s_w[m], 64 * stride[m]))
        return L
    def a_load(k):
        base = P_ACT + 16 * (k % 4)
        L = [(('a', k), 'buffer_load_dwordx4 %s, v%d, %s, s%d offen offset:%d' % (ar(base + 4 * qi, 4), (P_X0, P_X1)[qi % 2], sr(WS, 4), s_q[qi // 2], 1024 * (k % 4))) for qi in range(4)]
        if k % 4 == 3: L += ['s_add_u32 s%d, s%d, 4096' % (s, s) for s in s_q]
        return L
    FR = 64
    def reads(slot, ks, fs):
        base = FR + 64 * fs
        def A(i): return ['ds_read_b128 %s, v%d offset:%d' % (vr(base + 4 * i, 4), RA + ks, slot * 32768 + i * 2048)]
        def W(mat, nb): return ['ds_read_b64_tr_b16 %s, v%d offset:%d' % (vr(base + 32 + 16 * mat + 4 * nb + 2 * r, 2), RW + nb,
                                slot * 32768 + mat * 16384 + (32 * ks + 4 * r) * 256) for r in range(2)]
        L = A(0)
        for nb in range(4): L += W(0, nb)
        for nb in range(4): L += W(1, nb)
        for i in range(1, 8): L += A(i)
        return L
    def mfmas(fs, first, rbs=range(8)):
        base = FR + 64 * fs; L = []
        for rb in rbs:
            act = vr(base + 4 * rb, 4)
            for mat in range(2):
                for nb in range(4):
                    w = vr(base + 32 + 16 * mat + 4 * nb, 4)
                    d = ar((rb * 8 + mat * 4 + nb) * 4, 4); c = '0' if first else d
                    L.append('%s %s, %s, %s, %s' % ((MF16, d, w, act, c) if mat == 0 else (MF16, d, act, w, c)))
        return L
    stamp(a, 2); stamp(a, 8, 'st')
    S1L = p1_dma(1); npre = int(os.environ.get('NPRE', 12))
    for it in S1L[:npre]: a(issue(it))
    a('s_waitcnt vmcnt(%d) lgkmcnt(0)' % vm.cnt(ids[('p1', 0)]))
    stamp(a, 9, 'st')
    a('s_barrier')
    stamp(a, 3); stamp(a, 10, 'st')
    for s in reads(0, 0, 0): a(s)
    ln_poll = 'buffer_load_dwordx4 v[244:247], v%d, %s, s79 offen %s' % (V_LANE16, sr(WS, 4), WT)
    NST = 8
    pend = S1L[npre:] + pf_chunk(0) + (xld if 'l' in MX0 else []) + [('pf', 'global_load_dword v249, v55, s[100:101]')]
    NPRE = int(os.environ.get('NPRE', 0))
    P1SP = int(os.environ.get('P1SP', 4))
    LNS = 2 if 'l' in MX0 else 1
    LN0 = 3 if 'l' in MX0 else 0
    for st in range(NST - 1):
        slot = st & 1
        for ks in range(2):
            rd = []
            if ks == 1:
                if st < NST - 1:
                    assert not any(x[0] == ('p1', st + 1) for x in pend if not isinstance(x, str))
                    a('s_waitcnt vmcnt(%d) lgkmcnt(0)' % vm.cnt(max(ids[('p1', st + 1)], ids['lnp'] if st == LNS + 4 else 0))); a('s_barrier')
                    rd = reads(1 - slot, 0, 0)
                    if st == LNS: rd += xn_reads; assert not lnq
                else: a('s_waitcnt lgkmcnt(0)')
                if st + 2 < NST: pend += p1_dma(st + 2)
                if st == LNS + 2: pend = [flag_store(26)] + pend
                if st in (0, 1): pend += pf_chunk(st + 1)
                if st == 2: pend += [('pf', 'global_load_dword v240, v%d, s[8:9]' % TQ)]
                if st == 3: pend += [('pf', 'global_load_dword v241, v%d, s[18:19]' % TG), ('pf', 'global_load_dword v242, v%d, s[20:21]' % TG)]
                if st == LNS + 3: pend += [('lnp', ln_poll)]
                if st == 4 and 'C' not in MX: pend += [('pf', 'global_load_dword v249, v55, s[100:101]')]
                if st == 6: pend += w_dma(1, 4)
                if st == LNS + 4:
                    gate(ln_poll, 244, 4, 1, 61)
                    pend += [flag_store(27)]
                    pend += xn_touch(0) + xn_touch(1)
                if st == 6: pend += xn_touch(2) + xn_touch(3) + xn_touch(4)
            else:
                a('s_waitcnt lgkmcnt(0)')
                rd = reads(slot, 1, 1)
                if st == LNS + 1: pend += xn_stores
                if st == LNS + 1 and os.environ.get('PADG'):
                    pend += ['v_mov_b32 v251, s97', ('t0', 'buffer_store_dword v251, v%d, %s, s26 offen offset:2048 %s' % (V_ONE, sr(WS, 4), WT))]
                if st == 6:
                    pend += srd('wq', WQ) + srd('wg', WG) + srd('wu', WU) + ['s_mov_b32 s%d, s74' % (WG + 2), 's_mov_b32 s%d, s74' % (WU + 2)] + w_dma(0, 4)
            lastv = -10
            for g, m in enumerate(mfmas(ks, st == 0 and ks == 0)):
                a(m)
                if g % 2 == 0 and rd: a(rd.pop(0))
                elif pend and g % 2 == 1:
                    while pend and pend[0] == 's_nop 0': pend.pop(0)
                    if pend and (isinstance(pend[0], str) or g - lastv >= (2 if st < 2 else P1SP)):
                        if not isinstance(pend[0], str): lastv = g
                        a(issue(pend.pop(0)))
                for _ in range(3 if 'l' in MX0 else 2):
                    if lnq and 2 * st + ks >= LN0: a(lnq.pop(0))
            stamp(a, 1 + 2 * st + ks, 'p1')
        if st == 3: stamp(a, 4); cstamp(a, 1)
    def w_read(k, n):
        st, ks = k // 2, k % 2
        off = WSLOT[st % 3] - 65536
        grp = off // 65536; off %= 65536
        m, c = n // 4, n % 4
        return ['ds_read_b64_tr_b16 %s, v%d offset:%d' % (wfr(k, n, r), P_WRD + 4 * grp + c, off + m * 8192 + (32 * ks + 16 * r) * 128) for r in range(2)]
    def wfr(k, n, r=None):
        f, b_ = (vr, 96 + 4 * (n - 8)) if (k >= 16 and n >= 8) else (ar, P_WF + 4 * n)
        return f(b_, 4) if r is None else f(b_ + 2 * r, 2)
    sBASE, sK0, sK1, sT, sC0, sC1, sS1 = 56, 57, 58, 59, 60, 61, 62
    sc = ['s_lshl_b32 s56, s%d, 20' % sH, 's_lshl_b32 s57, s%d, 17' % sI, 's_add_u32 s58, s56, s57', 's_lshr_b32 s57, s%d, 1' % sW, 's_lshl_b32 s57, s57, 16',
          's_add_u32 s58, s58, s57', 's_add_u32 s58, s58, 0x%x' % WS_KV, 's_and_b32 s57, s%d, 1' % sW, 's_lshl_b32 s16, s57, 11', 's_add_u32 s16, s16, s58',
          's_lshl_b32 s17, s57, 12', 's_add_u32 s17, s17, s58', 's_add_u32 s17, s17, 16384',
          's_lshl_b32 s57, s%d, 14' % sW, 'v_add_u32 v26, s57, v%d' % V_LANE16,
          's_lshl_b32 s59, s%d, 12' % sW, 's_add_u32 s56, s56, s59', 's_add_u32 s56, s56, 0x%x' % WS_KV, 's_lshl_b32 s60, s%d, 13' % sW,
          's_add_u32 s60, s60, %d' % (65536 + 32768), 's_add_u32 s61, s60, 16384', 's_add_u32 s62, s56, 32768', 's_add_u32 s57, s56, 65536', 's_add_u32 s58, s57, 32768',
          'v_add_u32 v%d, 16384, v%d' % (V_LANE16V, V_LANE16), 'v_and_b32 v%d, 7, v0' % V_PA, 'v_lshlrev_b32 v%d, 9, v%d' % (V_PA, V_PA),
          's_and_b32 s79, s2, 31', 's_lshl_b32 s79, s79, 4', 's_add_u32 s79, s79, 0x%x' % FK]
    def conv(b0, b1, T, dst):
        return ['v_accvgpr_read_b32 v%d, a%d' % (T + e, b0 * 4 + e) for e in range(4)] + ['v_accvgpr_read_b32 v%d, a%d' % (T + 4 + e, b1 * 4 + e) for e in range(4)] + \
               ['v_cvt_pk_bf16_f32 v%d, v%d, v%d' % (dst + e, T + 2 * e, T + 2 * e + 1) for e in range(4)]
    def store(T, sb, off):
        return ['s_add_u32 s63, s%d, %d' % (sb, off & ~4095),
                ('kv', 'buffer_store_dwordx4 %s, v%d, %s, s63 offen offset:%d %s' % (vr(T, 4), V_LANE16, sr(WS, 4), off & 4095, WT))]
    def jobs(rp):
        J = []
        for rb in (2 * rp, 2 * rp + 1):
            for s in range(2): J.append((rb * 8 + 2 * s, rb * 8 + 2 * s + 1, 16, (rb // 4) * 32768 + ((rb % 4) * 4 + s) * 1024))
        rb = 2 * rp
        for nb in range(4): J.append((rb * 8 + 4 + nb, (rb + 1) * 8 + 4 + nb, 17, (rb // 4) * 32768 + (((rb % 4) // 2) * 8 + nb) * 1024))
        return J
    J1 = jobs(3) + jobs(2); J2 = jobs(0) + jobs(1)
    a('s_waitcnt lgkmcnt(0)')
    rd = reads(1, 1, 1)
    pend += sc
    for g, m in enumerate(mfmas(0, False, (6, 7, 4, 5))):
        a(m)
        if rd: a(rd.pop(0))
        for _ in range(1 if rd else 2):
            while pend and pend[0] == 's_nop 0': pend.pop(0)
            if pend and not (_ == 1 and not isinstance(pend[0], str)): a(issue(pend.pop(0)))
    assert not any(x[0] == ('w', 0) for x in pend if not isinstance(x, str))
    a('s_waitcnt vmcnt(%d) lgkmcnt(0)' % vm.cnt(ids[('w', 0)]))
    a('s_barrier')
    pend += w_dma(2, 4)
    fq = []
    for n_, (b0, b1, sb, off) in enumerate(J1):
        T = 192 + 12 * (n_ % 4)
        fq += conv(b0, b1, T, T + 8) + ['ds_write_b128 v26, %s offset:%d' % (vr(T + 8, 4), 1024 * n_)]
        if n_ >= 8 and n_ < 12: fq += a_load(n_ - 8)
    for n in range(16): fq += w_read(0, n)
    tail = mfmas(1, False, (6, 7, 4, 5)) + mfmas(0, False, (0, 1, 2, 3)) + mfmas(1, False, (0, 1, 2, 3))
    per = -(-len(fq) // (len(tail) - 24))
    for g, m in enumerate(tail):
        a(m)
        if g < 22:
            for _ in range(2):
                while pend and pend[0] == 's_nop 0': pend.pop(0)
                if pend and not (_ == 1 and not isinstance(pend[0], str)): a(issue(pend.pop(0)))
        else:
            assert not pend
            for _ in range(per):
                if fq: a(issue(fq.pop(0)))
    assert not fq
    stamp(a, 5); cstamp(a, 2); stamp(a, 6); cstamp(a, 3)
    cq = []
    for n_, (b0, b1, sb, off) in enumerate(J2): cq += conv(b0, b1, 4 + 8 * (n_ % 2), 64 + 4 * n_)
    kv_sched = {}
    KVEND = int(os.environ.get('KVEND', 14))
    def kstep(n_): return 1 + (n_ * (KVEND - 1)) // 32
    for n_, (b0, b1, sb, off) in enumerate(J2):
        kv_sched.setdefault(kstep(n_), []).extend(store(64 + 4 * n_, sb, off))
        kv_sched.setdefault(kstep(n_) + 1, []).append('ds_read_b128 %s, v26 offset:%d' % (vr(64 + 4 * n_, 4), 1024 * n_))
    for n_, (b0, b1, sb, off) in enumerate(J1):
        kv_sched.setdefault(kstep(16 + n_), []).extend(store(64 + 4 * n_, sb, off))
    kv_poll0 = 'buffer_load_dwordx4 v[64:67], v52, %s, s79 offen %s' % (sr(WS, 4), WT)
    kv_poll = 'buffer_load_dwordx4 v[208:211], v%d, %s, s79 offen %s' % (V_PA, sr(WS, 4), WT)
    def kv_dma(m0expr, voff, ssrc, tag):
        return [m0expr, 's_nop 0'] + [(tag, 'buffer_load_dwordx4 v%d, %s, s%d offen offset:%d lds' % (voff, sr(WS, 4), ssrc, 1024 * j)) for j in range(4)]
    sTHR, sBIG, s2W, sM0, sM1, sDYN, sE0, sE1, sCNT = 64, 65, 66, 67, 68, 69, 70, 71, 63
    halves = []
    for k in range(16): halves += [(k, 0), (k, 1)]
    halves += [(k, 0) for k in range(16, 20)] + [(k, 1) for k in range(16, 20)]
    qe = ['s_mov_b32 s64, %s' % f2u(math.log2(math.e) / math.sqrt(128.0))]
    for qi in range(4):
        for s in range(4):
            r0, r1 = P_ACCV + ((2 * s) * 4 + qi) * 4, P_ACCV + ((2 * s + 1) * 4 + qi) * 4
            qe += ['v_mul_f32 v%d, s64, v%d' % (r + e, r + e) for r in (r0, r1) for e in range(4)]
            qe += ['v_cvt_pk_bf16_f32 v%d, v%d, v%d' % (r + e, r + 2 * e, r + 2 * e + 1) for r in (r0, r1) for e in range(2)]
            qe += ['v_accvgpr_write_b32 a%d, v%d' % (A_Q[qi // 2] + ((qi % 2) * 4 + s) * 4 + 2 * h + e, (r0, r1)[h] + e) for h in range(2) for e in range(2)]
    qe += ['v_and_b32 v5, 15, v0', 'v_lshrrev_b32 v6, 4, v0', 'v_lshlrev_b32 v6, 2, v6', 'v_sub_u32 v5, v5, v6']
    for r in range(4): qe += ['v_cmp_gt_i32 vcc, %d, v5\ns_nop 1\nv_cndmask_b32 v%d, 0, 1.0, vcc' % (r, TRI + r)]
    qe += ['v_mov_b32 v%d, 0x3f803f80' % (V_ONES + e) for e in range(4)] + ['v_mov_b32 v%d, 0' % (NEGM + j) for j in range(16)]
    qe += ['v_mov_b32 v%d, 0' % (V_L + j) for j in range(4)]
    qe += ['v_mov_b32 v%d, v%d' % (V_KRD, V_LANE16), 'v_add_u32 v%d, 65536, v%d' % (V_VRD, V_LANE16)]
    qe += ['s_lshl_b32 s8, s72, 10', 's_lshl_b32 s9, s73, 10', 's_lshl_b32 s10, s%d, 18' % sCT, 's_add_u32 s10, s10, 0x%x' % WS_H,
           's_cmp_eq_u32 s74, 0\ns_cselect_b32 s10, 0x20000000, s10', 's_add_u32 s8, s8, s10', 's_add_u32 s9, s9, s10',
           's_add_u32 s10, s8, %d' % (128 * 1024), 's_add_u32 s11, s9, %d' % (128 * 1024),
           's_sub_u32 s12, 7, s%d' % sW, 's_lshl_b32 s12, s12, 10', 'v_add_u32 v%d, s12, v%d' % (P_X0, V_LANE16),
           's_lshl_b32 s12, s%d, 10' % sW, 'v_add_u32 v%d, s12, v%d' % (P_X1, V_LANE16),
           's_mov_b32 s%d, %s' % (sTHR, f2u(THR)), 's_mov_b32 s%d, %s' % (sBIG, f2u(-BIG)), 's_sub_u32 s%d, 3, s%d' % (s2W, sW),
           's_cmp_eq_u32 s%d, 0\ns_cselect_b32 s%d, s%d, 0' % (sI, sDYN, sBIG)]
    pend = []; vq = cq; vper = 5; gcnt = 0; lastv = -10; P2SP = int(os.environ.get('P2SP', 4))
    for hi_, (k, part) in enumerate(halves):
        st, ks = k // 2, k % 2
        base = P_ACT + 16 * (k % 4)
        if part == 0:
            need = ids[('a', k)]
            if k == KVEND + 1:
                assert not any(x[0] == 'kv' for x in pend if not isinstance(x, str))
                need = max(need, ids['kv'])
            assert not any(x[0] == ('a', k) for x in pend if not isinstance(x, str))
            a('s_waitcnt vmcnt(%d) lgkmcnt(8)' % min(63, vm.cnt(need)))
            pend += kv_sched.get(k, [])
            if k == KVEND + 1: pend += [flag_store(75)]
            if k == 18: pend += [('kvp', kv_poll0)]
            if k == 12 and 'C' not in MX: pend += [('pf', 'global_load_dword v27, v55, s[100:101]')]
            if k > 0 and k + 3 < 20: pend = a_load(k + 3) + pend
        elif k == 16:
            a('s_waitcnt vmcnt(%d) lgkmcnt(8)' % vm.cnt(ids['kvp']))
            gate(kv_poll0, 64, 4, 1, 63)
            pend += kv_dma('s_add_u32 m0, s59, 0', V_LANE16, sBASE, 'k0') + kv_dma('s_add_u32 m0, s59, 16384', V_LANE16, sS1, 'k1')
            pend += kv_dma('s_add_u32 m0, s59, 32768', V_LANE16, sK0, 'k2') + kv_dma('s_add_u32 m0, s59, 65536', V_LANE16V, sBASE, 'v0')
            pend += kv_dma('s_add_u32 m0, s59, 49152', V_LANE16, sK1, 'k3') + kv_dma('s_add_u32 m0, s59, %d' % (65536 + 16384), V_LANE16V, sS1, 'v1')
            vq = qe; vper = 3
        else: a('s_waitcnt lgkmcnt(8)')
        for n in range(8 * part, 8 * part + 8):
            if n % 8 == 4: a('s_waitcnt lgkmcnt(%d)' % (8 if k < 19 else 0))
            if k == 0 and n == 8: assert len(vq) <= 96
            if k == 0 and n == 12: assert not vq
            for qi in range(4):
                d = vr(P_ACCV + (n * 4 + qi) * 4, 4) if n < 8 else ar(P_ACCA + ((n - 8) * 4 + qi) * 4, 4)
                a('%s %s, %s, %s, %s' % (MF16, d, wfr(k, n), ar(base + 4 * qi, 4), '0' if k == 0 else d))
                if qi < 3:
                    while pend and pend[0] == 's_nop 0': pend.pop(0)
                    if pend and (qi != 1 or not vq) and (isinstance(pend[0], str) or gcnt - lastv >= P2SP):
                        if not isinstance(pend[0], str): lastv = gcnt
                        a(issue(pend.pop(0)))
                gcnt += 1
                for _ in range(vper if qi < 3 else vper - 2):
                    if vq: a(vq.pop(0))
            if k + 1 < 20:
                if n == 0 and ks == 1:
                    assert not any(x[0] == ('w', st + 1) for x in pend if not isinstance(x, str))
                    a('s_waitcnt vmcnt(%d) lgkmcnt(0)' % min(63, vm.cnt(ids[('w', st + 1)])))
                    a('s_barrier')
                    if st + 3 < 10: pend = pend + w_dma(st + 3, 4)
                for s in w_read(k + 1, n): a(s)
        if part == 1 and k < 16: stamp(a, 1 + k, 'p2a')
        if hi_ >= 24: stamp(a, hi_ - 23, 'p2b')
    assert not pend and not vq
    stamp(a, 7); cstamp(a, 4)
    a('s_waitcnt vmcnt(%d)' % vm.cnt(max(ids['k2'], ids['v0'])))
    stamp(a, 8)
    a('s_barrier')
    hx = []
    for j_ in range(8):
        s, qi = j_ // 4, j_ % 4
        T = 192 + 20 * (j_ % 3)
        for cc in range(2):
            g = P_ACCA + ((2 * s + cc) * 4 + qi) * 4
            hx += ['v_accvgpr_read_b32 v%d, a%d' % (T + 8 * cc + e, g + e) for e in range(4)] + ['v_accvgpr_read_b32 v%d, a%d' % (T + 8 * cc + 4 + e, g + 64 + e) for e in range(4)]
            hx += ['v_mul_f32 v%d, v%d, v%d' % (T + 8 * cc + e, T + 8 * cc + e, T + 8 * cc + 4 + e) for e in range(4)]
            hx += ['v_cvt_pk_bf16_f32 v%d, v%d, v%d' % (T + 16 + 2 * cc + e, T + 8 * cc + 2 * e, T + 8 * cc + 2 * e + 1) for e in range(2)]
        hx.append('buffer_store_dwordx4 %s, v%d, %s, s%d offen %s' % (vr(T + 16, 4), (P_X0, P_X1)[qi % 2], sr(WS, 4), 8 + qi // 2 + 2 * s, WT))
    hx += ['%s %s, %s, %s, 0' % (MFMA, ar(16 * j_, 16), vr(NEGM, 4), vr(NEGM, 4)) for j_ in range(8)]
    hx += [kv_poll]
    def kread(i, p): return 'ds_read_b128 %s, v%d offset:%d' % (ar(A_RING + 4 * (i % R), 4), V_KRD, p * 16384 + i * 1024)
    def vread(i, p): return 'ds_read_b128 %s, v%d offset:%d' % (ar(A_RING + 4 * (i % R), 4), V_VRD, p * 16384 + i * 1024)
    for i in range(D): a(kread(i, 0))
    for s_ in hx[:16]: a(s_)
    hx = hx[16:]
    stamp(a, 9); stamp(a, 1, 'p3')
    def prefill(st, p, tau, dyn=False):
        qb = 1 - tau
        sref = sW if tau == 0 else s2W
        big = sDYN if dyn else sBIG
        out = []
        for kb in range(4):
            S = SB[st][p] + (kb * 2 + qb) * 4
            L = ['s_cmp_eq_u32 s%d, %d' % (sref, kb), 's_cselect_b32 s%d, s%d, 0' % (sM0, big)]
            t = NEGM + (st * 2 + qb) * 4
            if kb > 0:
                L += ['s_cmp_lt_u32 s%d, %d' % (sref, kb), 's_cselect_b32 s%d, s%d, 0' % (sM1, big), 'v_add_f32 v%d, s%d, v%d' % (V_T1, sM1, t)]
                t = V_T1
            L += ['v_fma_f32 v%d, v%d, s%d, v%d' % (S + r, TRI + r, sM0, t) for r in range(4)]
            out.append('\n'.join(L))
        return out
    def qk_mf(sets, p):
        G = []
        for f in range(16):
            kb, ds = f // 4, f % 4; L = []
            for st, qbs, inq in sets:
                for qb in qbs:
                    d = vr(SB[st][p] + (kb * 2 + qb) * 4, 4)
                    c = vr(NEGM + (st * 2 + qb) * 4, 4) if (ds == 0 and inq != qb) else d
                    L.append('%s %s, %s, %s, %s' % (MF16, d, ar(A_RING + 4 * (f % R), 4), ar(A_Q[st] + (qb * 4 + ds) * 4, 4), c))
            G.append(L)
        return G
    def pv_mf(sets, p):
        G = []
        for f in range(16):
            ks, db = f // 8, f % 8; L = []
            for st, qbs in sets:
                for qb in qbs:
                    d = ar(A_O[st] + (db * 2 + qb) * 4, 4)
                    L.append('%s %s, %s, %s, %s' % (MF16, d, ar(A_RING + 4 * (f % R), 4), vr(PB[st][p] + (qb * 2 + ks) * 4, 4), d))
            G.append(L)
        return G
    def pre_items(pf):
        a(pf[0]); a('s_nop 1')
        return [dict(lo=max(0, 4 * kb - 5), hi=4 * kb - 3, ins=pf[kb]) for kb in range(1, 4)]
    LGS = int(os.environ.get('LGS', 4)); LGW = int(os.environ.get('LGW', 0))
    rare_sites = []
    pk = Packer(a)
    def lg_items(n, skip_last):
        return [dict(lo=i - LGW, hi=i, lg=i + LGS) for i in range(LGS - 1, n, LGS) if not (i == n - 1 and skip_last)]
    def ladds(ex):
        return ['v_add_f32 v%d, v%d, v%d' % (V_L + st * 2 + qb, V_L + st * 2 + qb, LT + (st * 2 + qb) * 4) for st, qbs in ex for qb in qbs]
    def iteration(p, qk, ex, pv, prev_ex, nxt='k', dk=True, dv=True, loop_ctr=None, post_bar=(), mid=(), anyw=(), wv=None, pf=None, anylo=2, vx=0, lt=False):
        groups = []; rs = []
        pfi = pre_items(pf) if pf else []
        if qk:
            groups += qk_mf(qk, p); rs += [kread(i, p) for i in range(16)]
        groups += pv_mf(pv, p); rs += [vread(i, p) for i in range(16)]
        n = len(groups)
        nx = {'k': [kread(i, 1 - p) for i in range(D)], 'v': [vread(i, 1 - p) for i in range(D)], None: [None] * D}[nxt]
        rds = rs[D:] + nx
        bg = n - D
        it = [dict(lo=0, hi=0, ins=s, v=True) for s in ladds(prev_ex)] + pfi
        nd = 0
        if wv is None: gv, gm, gk, sl = {'0': ((2, 4, 5, 6), 8, (10, 12, 14, 16), 1), '1': ((1, 3, 5, 7), 8, (10, 12, 14, 16), 0), '2': ((1, 4, 6, 8), 9, (11, 13, 16, 18), 0)}[os.environ.get('DPOS', '0')]
        else:
            pos = [2 + 4 * j + wv for j in range(8)]
            gv = [x // 2 for x in pos[:4]]; gk = [x // 2 + 1 for x in pos[4:]]; gm = gv[3] + 1; sl = 0
        late = wv is not None and wv % 2 == 1
        if dv:
            it.append(dict(lo=0, hi=0 if gv[0] == 1 else 1, ins='s_sub_u32 m0, s%d, s%d' % ((sC0, sC1)[p], sT)))
            for j, i in enumerate(gv):
                it.append(dict(lo=i + (1 if late else 0), hi=i + sl, ins='buffer_load_dwordx4 v%d, %s, s%d offen offset:%d lds' % (V_LANE16V, sr(WS, 4), (sK0, sK1)[p], 1024 * j)))
            nd += 4
        if dk:
            it.append(dict(lo=gm, hi=gm + 1, ins='s_add_u32 m0, s%d, %d' % (sT, p * 16384)))
            it.append(dict(lo=gm, hi=gm + 1, ins='s_add_u32 s%d, s%d, 32768' % ((sK0, sK1)[p], (sK0, sK1)[1 - p])))
            for j, i in enumerate(gk):
                it.append(dict(lo=i + (1 if late else 0), hi=i + sl, ins='buffer_load_dwordx4 v%d, %s, s%d offen offset:%d lds' % (V_LANE16, sr(WS, 4), (sK0, sK1)[p], 1024 * j)))
            nd += 4
        if lt:
            vreg, ptr, step, lim = ((63, 14, 7 * 1024 * 128, SIZE['wo'] - 128), (62, 22, 3 * 1024 * 128, SIZE['wd'] - 128))[p]
            it.append(dict(lo=bg, hi=bg + 2, ins='global_load_dword v7, v%d, s[%d:%d]' % (vreg, ptr, ptr + 1)))
            it.append(dict(lo=bg + 3, hi=n - 2, ins='v_add_u32 v%d, 0x%x, v%d' % (vreg, step, vreg), v=True))
            it.append(dict(lo=bg + 3, hi=n - 1, ins='v_min_u32 v%d, 0x%x, v%d' % (vreg, lim, vreg), v=True))
            vx += 1
        nd += sum(1 for s in mid if s.startswith('buffer_'))
        if p == 1:
            if qk: it.append(dict(lo=16 - D, hi=bg - 1, ins='v_xor_b32 v%d, 32768, v%d' % (V_KRD, V_KRD), v=True))
            it.append(dict(lo=bg - 1 if nxt == 'v' else bg, hi=bg - 1 if nxt == 'v' else n - 1, ins='v_xor_b32 v%d, 32768, v%d' % (V_VRD, V_VRD), v=True))
            it.append(dict(lo=13, hi=n - 1, ins='s_xor_b32 s%d, s%d, 32768' % (sT, sT)))
        if nxt is not None:
            it.append(dict(lo=bg - 3, hi=bg - 2, ins='s_waitcnt vmcnt(%d)' % (nd + vx)))
            it.append(dict(lo=bg - 1, hi=bg - 1, ins='s_barrier'))
        it += lg_items(n, nxt is None)
        it.sort(key=lambda x: (x['hi'], x['lo']))
        for j, s in enumerate(mid):
            g_ = 9 + (j * (bg - 4 - 9)) // len(mid)
            it.append(dict(lo=g_, hi=bg - 4, ins=s))
        for j, s in enumerate(anyw):
            it.append(dict(lo=anylo, hi=n - 1, ins=s))
        lo0 = bg if nxt is not None else 0
        for j, s in enumerate(post_bar):
            it.append(dict(lo=lo0 + (j * (n - lo0)) // len(post_bar), hi=n - 1, ins=s))
        fin = []
        if ex:
            lts = [LT + (st * 2 + qb) * 4 for st, qbs in ex for qb in qbs]
            cur = lts[0]
            if len(lts) == 2: fin.append('v_max_f32 v%d, v%d, v%d' % (V_T0, lts[0], lts[1])); cur = V_T0
            if len(lts) >= 3: fin.append('v_max3_f32 v%d, v%d, v%d, v%d' % (V_T0, lts[0], lts[1], lts[2])); cur = V_T0
            if len(lts) == 4: fin.append('v_max_f32 v%d, v%d, v%d' % (V_T0, V_T0, lts[3]))
            fin.append('v_cmp_lt_f32 vcc, s%d, v%d' % (sTHR, cur))
        pk.run(groups, rds, it, [(st, 1 - p, qbs) for st, qbs in ex], [], fin, (1, p) if qk else None, True)
        if loop_ctr: a('s_sub_u32 s%d, s%d, 1' % (loop_ctr[0], loop_ctr[0]))
        if ex:
            stub, back = a.newlabel(name + '_rs'), a.newlabel(name + '_rb')
            a('s_cbranch_vccnz %s' % stub)
            a.label(back)
            rare_sites.append((stub, back, 1 - p, ex))
        if loop_ctr: a('s_cbranch_scc0 %s' % loop_ctr[1])
    def epilogue(st):
        a('s_lshl_b32 s%d, s%d, 10' % (sE0, sQ[st]))
        a('s_lshl_b32 s%d, s%d, 19' % (sE1, sH))
        a('s_add_u32 s%d, s%d, s%d' % (sE0, sE0, sE1))
        a('s_add_u32 s%d, s%d, 0x%x' % (sE0, sE0, WS_CTX))
        a('s_lshl_b32 s%d, s%d, 10' % (sM1, sW))
        a('s_sub_u32 s%d, s%d, s%d' % (sM0, sE0, sM1)); a('s_add_u32 s%d, s%d, 7168' % (sM0, sM0))
        a('s_add_u32 s%d, s%d, s%d' % (sM1, sE0, sM1))
        a('v_rcp_f32 v%d, v%d' % (V_T0, V_L + st * 2))
        a('v_rcp_f32 v%d, v%d' % (V_T1, V_L + st * 2 + 1))
        a('s_nop 1')
        c3 = 0
        for s in range(4):
            for qb in range(2):
                T = SB[st][0] + 16 * (c3 % 4); c3 += 1
                for cc in range(2):
                    for e in range(4): a('v_accvgpr_read_b32 v%d, a%d' % (T + 4 * cc + e, A_O[st] + ((2 * s + cc) * 2 + qb) * 4 + e))
                for e in range(8): a('v_mul_f32 v%d, v%d, v%d' % (T + e, T + e, (V_T0, V_T1)[qb]))
                for e in range(4): a('v_cvt_pk_bf16_f32 v%d, v%d, v%d' % (T + 8 + e, T + 2 * e, T + 2 * e + 1))
                a('s_add_u32 s%d, s%d, %d' % (sE1, (sM0, sM1)[qb], s * 128 * 1024))
                a(issue(('ctx', 'buffer_store_dwordx4 %s, v%d, %s, s%d offen %s' % (vr(T + 8, 4), V_LANE16, sr(WS, 4), sE1, WT))))
    AH, AC, WD4, WO4, X4, OUT = R1, R2, R3, R4, R5, 4
    sRO, sRT, sCT4, sAC, sWW, sVAL, sXO, sSW, sLD, sW2, sAC0, sWW0 = 8, 9, 10, 11, 12, 74, 13, 18, 19, 20, 26, 27
    sS1, sS0, sR0, sR1 = 16, 17, 21, 62
    WS_EX = 0x8000000
    FX = WS_FLG + 65536
    a_real = a; a = Asm()
    a('s_lshr_b32 s67, s2, 3')
    a('s_cmp_lt_u32 s67, 30'); a('s_cselect_b32 s%d, 1, 0' % sVAL)
    a('s_min_u32 s67, s67, 29')
    a('s_mul_i32 s68, s67, 205'); a('s_lshr_b32 s68, s68, 10')
    a('s_mul_i32 s69, s68, 5'); a('s_sub_u32 s%d, s67, s69' % sCT4)
    a('s_and_b32 s69, s2, 7'); a('s_lshl_b32 s69, s69, 2'); a('s_lshr_b32 s69, %s, s69' % os.environ.get('GMAP', '0x07362514')); a('s_and_b32 s69, s69, 7')
    a('s_mul_i32 s69, s69, 6'); a('s_add_u32 s69, s69, s68')
    a('s_lshr_b32 s%d, s69, 4' % sRO); a('s_and_b32 s%d, s69, 15' % sRT)
    for s in srd('x', X4) + srd('out', OUT): a(s)
    a('s_add_u32 s70, s%d, 2' % sRO); a('s_cmp_eq_u32 s%d, 0' % sRO); a('s_cselect_b32 s71, 0, 3'); a('s_sub_u32 s70, s70, s71')
    a('s_cmp_eq_u32 s%d, 0' % sRO); a('s_cselect_b32 s71, 40, 44'); a('s_mul_i32 s71, s71, s%d' % sVAL)
    a('s_mul_i32 s67, s%d, %d' % (sRO, 18 * 131072)); a('s_add_u32 s67, s67, 0x%x' % WS_H)
    a('s_add_u32 s%d, s28, s67' % AH); a('s_addc_u32 s%d, s29, 0' % (AH + 1)); a('s_mul_i32 s%d, s%d, %d' % (AH + 2, sVAL, 18 * 131072))
    a('s_mul_i32 s67, s70, %d' % (44 * 131072)); a('s_add_u32 s67, s67, 0x%x' % WS_CTX)
    a('s_add_u32 s%d, s28, s67' % AC); a('s_addc_u32 s%d, s29, 0' % (AC + 1)); a('s_lshl_b32 s%d, s71, 17' % (AC + 2))
    a('s_mul_i32 s67, s%d, %d' % (sRO, 18 * 32 * 1280))
    a('s_add_u32 s%d, s22, s67' % WD4); a('s_addc_u32 s%d, s23, 0' % (WD4 + 1)); a('s_mul_i32 s%d, s%d, %d' % (WD4 + 2, sVAL, 18 * 32 * 1280))
    a('s_mul_i32 s67, s70, %d' % (44 * 32 * 1280))
    a('s_add_u32 s%d, s14, s67' % WO4); a('s_addc_u32 s%d, s15, 0' % (WO4 + 1)); a('s_mul_i32 s%d, s71, %d' % (WO4 + 2, 32 * 1280))
    for r_ in (AH, AC, WD4, WO4): a('s_mov_b32 s%d, 0x00020000' % (r_ + 3))
    a('s_cmp_eq_u32 s%d, 2' % sRO); a('s_cselect_b32 s%d, 1, 0' % sSW)
    VA0, VA1, VWO, VRD, VX, VPL = 16, 17, 18, 32, 20, 200
    a('s_lshl_b32 s%d, s%d, 2' % (sAC, sRT)); a('s_add_u32 s%d, s%d, s%d' % (sAC, sAC, sW))
    a('s_lshl_b32 s67, s%d, 1' % sAC); a('s_add_u32 s67, s67, s%d' % sSW)
    a('s_mul_i32 s%d, s67, %d' % (sXO, 16 * 1280)); a('s_lshl_b32 s68, s%d, 8' % sCT4); a('s_add_u32 s%d, s%d, s68' % (sXO, sXO))
    a('s_lshl_b32 s%d, s%d, 11' % (sAC, sAC)); a('s_mov_b32 s%d, s%d' % (sAC0, sAC))
    a('s_lshl_b32 s67, s%d, 10' % sSW)
    a('v_add_u32 v%d, s67, v%d' % (VA0, V_LANE16))
    a('v_xor_b32 v%d, 1024, v%d' % (VA1, VA0))
    a('s_mul_i32 s%d, s%d, %d' % (sWW, sW, 16 * 1280)); a('s_add_u32 s%d, s%d, s68' % (sWW, sWW)); a('s_mov_b32 s%d, s%d' % (sWW0, sWW))
    a('v_lshrrev_b32 v5, 3, v0'); a('v_mul_u32_u24 v5, 1280, v5')
    a('v_bfe_u32 v6, v0, 1, 2'); a('v_bfe_u32 v7, v0, 4, 2'); a('v_xor_b32 v6, v6, v7')
    a('v_lshl_add_u32 v5, v6, 5, v5'); a('v_and_b32 v6, 1, v0')
    a('v_lshl_add_u32 v%d, v6, 4, v5' % VWO)
    a('v_add_u32 v%d, %d, v%d' % (VWO + 1, 8 * 1280 - 1024, VWO))
    a('v_lshrrev_b32 v5, 2, v0'); a('v_lshlrev_b32 v5, 7, v5'); a('v_and_b32 v6, 3, v0'); a('v_lshl_add_u32 v5, v6, 3, v5')
    a('v_bfe_u32 v6, v0, 3, 2')
    for c in range(4):
        a('v_xor_b32 v7, %d, v6' % c)
        a('v_lshl_add_u32 v%d, v7, 5, v5' % (VRD + c))
        a('v_add_u32 v%d, 65536, v%d' % (VRD + 4 + c, VRD + c))
    a('v_lshrrev_b32 v5, 4, v0'); a('v_mul_u32_u24 v5, 5120, v5'); a('v_and_b32 v6, 15, v0')
    a('v_lshl_add_u32 v%d, v6, 4, v5' % VX)
    a('v_and_b32 v%d, 0x1f0, v%d' % (VPL, V_LANE16))
    a('s_mul_i32 s67, s%d, 4608' % sW)
    a('v_and_b32 v5, 15, v0'); a('v_mul_u32_u24 v5, 272, v5'); a('v_lshrrev_b32 v6, 4, v0'); a('v_lshl_add_u32 v5, v6, 3, v5')
    a('v_add_u32 v21, s67, v5')
    a('v_mul_u32_u24 v6, 1088, v6'); a('v_and_b32 v5, 15, v0'); a('v_lshl_add_u32 v5, v5, 4, v6')
    a('v_add_u32 v23, s67, v5')
    a('s_sub_u32 s67, 15, s%d' % sRT); a('s_min_u32 s67, s67, s%d' % sRT)
    a('s_lshl_b32 s79, s67, 9'); a('s_add_u32 s79, s79, 0x%x' % FH)
    a('s_lshl_b32 s76, s%d, 9' % sRT); a('s_add_u32 s76, s76, 0x%x' % FC)
    a('s_mul_i32 s67, s%d, 5' % sRT); a('s_add_u32 s67, s67, s%d' % sCT4)
    a('s_lshl_b32 s68, s67, 2'); a('s_add_u32 s68, s68, s%d' % sW)
    a('s_lshl_b32 s75, s68, 10'); a('s_add_u32 s75, s75, 0x%x' % FX)
    a('s_lshl_b32 s68, s68, 16'); a('s_add_u32 s68, s68, 0x%x' % WS_EX)
    a('s_add_u32 s67, s%d, 1' % sRO); a('s_lshl_b32 s67, s67, 13'); a('s_add_u32 s%d, s68, s67' % sS1)
    a('s_cmp_eq_u32 s%d, 0' % sRO); a('s_cselect_b32 s%d, s68, 0x20000000' % sS0)
    a('s_cmp_eq_u32 s%d, 0' % sVAL); a('s_cselect_b32 s%d, 0x20000000, s%d' % (sS0, sS0)); a('s_cselect_b32 s%d, 0x20000000, s%d' % (sS1, sS1))
    a('s_lshl_b32 s67, s%d, 13' % sSW); a('s_add_u32 s%d, s68, s67' % sR0)
    a('s_sub_u32 s67, 3, s%d' % sSW); a('s_lshl_b32 s67, s67, 13'); a('s_add_u32 s%d, s68, s67' % sR1)
    a('s_cmp_eq_u32 s%d, 0' % sRO); a('s_cselect_b32 s%d, 0x20000000, s%d' % (sR0, sR0)); a('s_cselect_b32 s%d, 0x20000000, s%d' % (sR1, sR1))
    a('s_lshl_b32 s56, s%d, 7' % sRO); a('s_add_u32 s56, s56, s75')
    a('s_sub_u32 s67, 3, s%d' % sRO); a('s_cmp_eq_u32 s%d, 0' % sRO); a('s_cselect_b32 s67, 0, s67'); a('s_lshl_b32 s67, s67, 7')
    a('v_and_b32 v22, 1, v0'); a('v_mul_u32_u24 v22, s67, v22')
    a('s_lshl_b32 s%d, s%d, 11' % (sLD, sW))
    for c in range(4): a('v_add_u32 v%d, 131072, v%d' % (196 + c, VRD + c))
    setup4 = [re.sub(r'\bv([567])\b', lambda m: 'v%d' % (64 + int(m.group(1))), l.strip()) for l in a.lines]
    a = a_real
    grp4 = []
    for l in setup4:
        if l.startswith('s_cselect') or l.startswith('s_addc'): grp4[-1] += '\n' + l
        else: grp4.append(l)
    h_poll = 'buffer_load_dwordx4 v[192:195], v%d, %s, s79 offen %s' % (VPL, sr(WS, 4), WT)
    c_poll = 'buffer_load_dwordx4 v[24:27], v%d, %s, s76 offen %s' % (VPL, sr(WS, 4), WT)
    b_poll = 'buffer_load_dword v24, v22, %s, s75 offen %s' % (sr(WS, 4), WT)
    s_poll = 'buffer_load_dword v24, v22, %s, s75 offen offset:512 %s' % (sr(WS, 4), WT)
    WF4 = 64; ND4 = 18; NK = 62; LA4 = 15
    def accB(n, q): return 128 + (q * 8 + n) * 4
    def accS(n, q): return 192 + (q * 8 + n) * 4
    def act4(k, q): r = k % 16; return (r * 8 + q * 4) if r < 8 else (128 + (r - 8) * 8 + q * 4)
    def wslot(st): return 131072 + st * 16384 if st < 2 else ((st - 2) % 8) * 16384
    def w4_dma(st):
        L = []
        if st == ND4 // 2: L.append('s_mov_b32 s%d, s%d' % (sWW, sWW0))
        r_ = WD4 if st < ND4 // 2 else WO4
        for m in range(2):
            L += ['s_add_u32 m0, s%d, %d' % (sLD, wslot(st) + m * 8192), 's_nop 0' if m == 0 else 's_add_u32 s%d, s%d, 128' % (sW2, sWW)]
            L += [(('w4', st), 'buffer_load_dwordx4 v%d, %s, s%d offen offset:%d lds' % (VWO + j, sr(r_, 4), sWW if m == 0 else sW2, 1024 * j)) for j in range(2)]
        L.append('s_add_u32 s%d, s%d, %d' % (sWW, sWW, 64 * 1280))
        return L
    def a4_load(k):
        L = ['s_mov_b32 s%d, s%d' % (sAC, sAC0)] if k == ND4 else []
        return L + [(('a4', k), 'buffer_load_dwordx4 %s, v%d, %s, s%d offen' % (ar(act4(k, q), 4), (VA0, VA1)[q], sr(AH if k < ND4 else AC, 4), sAC)) for q in range(2)] + \
               ['s_add_u32 s%d, s%d, %d' % (sAC, sAC, 128 * 1024)]
    def w4_read(k, n):
        ad, ks = wslot(k // 2), k % 2
        reg = (VRD, VRD + 4, 196)[ad // 65536]
        return ['ds_read_b64_tr_b16 %s, v%d offset:%d' % (vr(WF4 + 4 * n + 2 * r, 2), reg + n % 4, ad % 65536 + (n // 4) * 8192 + (32 * ks + 16 * r) * 128) for r in range(2)]
    PK = 112
    def packs(accf):
        L = []
        for q in (1, 0):
            for n in range(8):
                dst = (accf(0, 1) if q else PK) + 2 * n
                L += ['v_cvt_pk_bf16_f32 v%d, v%d, v%d' % (dst + h, accf(n, q) + 2 * h, accf(n, q) + 2 * h + 1) for h in range(2)]
        return L
    def sends(accf, tag):
        return [(tag, 'buffer_store_dwordx4 %s, v%d, %s, s%d offen offset:%d %s' % (vr((accf(0, 1) if q else PK) + 4 * j, 4), V_LANE16, sr(WS, 4), (sS0, sS1)[q], j * 1024, WT))
                for q in (1, 0) for j in range(4)]
    def recvs(dst, tag):
        return [(tag, 'buffer_load_dwordx4 %s, v%d, %s, s%d offen offset:%d' % (vr(dst + 16 * src_ + 4 * j, 4), V_LANE16, sr(WS, 4), (sR0, sR1)[src_], j * 1024))
                for j in range(4) for src_ in range(2)]
    def unp_add(B, dst, n, T):
        L = []
        for src_ in range(2):
            for h in range(2):
                r = dst + 16 * src_ + 2 * n + h
                L += ['v_lshlrev_b32 v%d, 16, v%d' % (T + 2 * h, r), 'v_and_b32 v%d, s65, v%d' % (T + 2 * h + 1, r)]
            L += ['v_add_f32 v%d, v%d, v%d' % (B + e, B + e, T + e) for e in range(4)]
        return L
    XR4 = 96
    xl = [('x4', 'buffer_load_dwordx4 %s, v%d, %s, s%d offen offset:%d' % (vr(XR4 + 4 * j, 4), VX, sr(X4, 4), sXO, 1280 * j)) for j in range(4)]
    F = (0, 1); H_ = (0,)
    pfi = pre_items(prefill(0, 0, 0, dyn=True))
    a('s_waitcnt lgkmcnt(%d)' % (D - LGS))
    rds = [kread(i, 0) for i in range(D, 16)] + [kread(i, 1) for i in range(D)]
    it = lg_items(16, False) + pfi; it.sort(key=lambda x: (x['hi'], x['lo']))
    pk.run(qk_mf([(1, F, None), (0, F, 1)], 0), rds, it, [], hx, [], None, False)
    a('s_nop 3'); stamp(a, 2, 'p3')
    for st in range(2):
        for qb in range(2):
            for s in max_ops(st, 0, qb, V_T0, V_T1): a(s)
            for e in range(4): a('v_sub_f32 v%d, 0, v%d' % (NEGM + (st * 2 + qb) * 4 + e, V_T0))
    pfi = pre_items(prefill(0, 1, 1, dyn=True))
    rds = [kread(i, 1) for i in range(D, 16)] + [kread(i, 0) for i in range(D)]
    it = lg_items(16, False) + pfi + [dict(lo=16 - D - 1, hi=16 - D - 1, ins='v_xor_b32 v%d, 32768, v%d' % (V_KRD, V_KRD), v=True)]
    it.sort(key=lambda x: (x['hi'], x['lo']))
    pk.run(qk_mf([(1, F, None), (0, F, 0)], 1), rds, it, [(1, 0, F), (0, 0, F)], [], [], (1, 1), False, sub=True)
    a('s_waitcnt vmcnt(0)')
    a(flag_store(76)[1])
    gate(kv_poll, 208, 4, 1, 63)
    LTO = 'w' in MX
    if LTO:
        a('s_lshl_b32 s67, s2, 2'); a('s_add_u32 s67, s67, s%d' % sW)
        a('s_mul_i32 s68, s67, 7'); a('v_min_u32 v63, 6, v0'); a('v_add_u32 v63, s68, v63'); a('v_lshlrev_b32 v63, 7, v63')
        a('s_mul_i32 s68, s67, 3'); a('v_min_u32 v62, 2, v0'); a('v_add_u32 v62, s68, v62'); a('v_lshlrev_b32 v62, 7, v62')
    stamp(a, 10); cstamp(a, 5); stamp(a, 3, 'p3')
    lA, lA_skip, lA_tail2 = name + '_loopA', name + '_skipA', name + '_tail2A'
    a('s_cmp_eq_u32 s%d, 0' % sI)
    a('s_cbranch_scc1 %s' % lA_tail2)
    a('s_sub_u32 s%d, s%d, 2' % (sCNT, sI))
    a('s_cbranch_scc1 %s' % lA_skip)
    cstamp(a, 3, 'cyb')
    a.raw('.p2align 6')
    a.label(lA)
    qB = (1, F, None); BA = [(1, F), (0, F)]; B_ = [(1, F)]; BAh = [(1, F), (0, H_)]; Bh = [(1, H_)]
    iteration(0, [qB, (0, F, None)], BA, BA, BA, lt=LTO)
    iteration(1, [qB, (0, F, None)], BA, BA, BA, loop_ctr=(sCNT, lA), lt=LTO)
    cstamp(a, 4, 'cyb')
    a.label(lA_skip)
    stamp(a, 4, 'p3')
    iteration(0, [qB, (0, F, 1)], BA, BA, BA, pf=prefill(0, 0, 0))
    stamp(a, 5, 'p3')
    iteration(1, [qB, (0, H_, 0)], BA, BA, BA, pf=prefill(0, 1, 1))
    a.label(lA_tail2)
    stamp(a, 6, 'p3')
    l7, lBtail2 = name + '_i7', name + '_tail2B'
    a('s_cmp_eq_u32 s%d, 7' % sI)
    a('s_cbranch_scc1 %s' % l7)
    def txt(L): return [x if isinstance(x, str) else x[1] for x in L]
    acts = [a4_load(k) for k in range(16)]
    E1 = txt(xl); E2 = txt(w4_dma(0) + acts[0] + acts[1] + acts[2]); E3 = txt(w4_dma(1) + acts[3] + acts[4] + acts[5])
    E4 = txt(acts[6] + acts[7] + acts[8] + acts[9] + acts[10] + acts[11])
    wt = ['s_lshl_b32 s67, s2, 2', 's_add_u32 s67, s67, s%d' % sW, 's_mul_i32 s68, s67, 46', 'v_min_u32 v72, 45, v0', 'v_add_u32 v72, s68, v72',
          'v_min_u32 v72, 40959, v72', 'v_lshlrev_b32 v72, 7, v72', 'global_load_dword v63, v72, s[14:15]',
          's_mul_i32 s68, s67, 20', 'v_min_u32 v73, 19, v0', 'v_add_u32 v73, s68, v73', 'v_min_u32 v73, 17279, v73', 'v_lshlrev_b32 v73, 7, v73',
          'global_load_dword v63, v73, s[22:23]']
    iteration(0, [qB], BAh, BA, BA, post_bar=(() if 'w' in MX else wt))
    stamp(a, 7, 'p3')
    iteration(1, [qB], B_, BAh, BAh, anyw=grp4 + [h_poll], vx=(0 if 'w' in MX else 2))
    stamp(a, 8, 'p3')
    epilogue(0)
    stamp(a, 9, 'p3')
    a('s_waitcnt vmcnt(8)')
    gate(h_poll, 192, 4, 1, 63)
    lB = name + '_loopB'
    a('s_lshl_b32 s%d, s%d, 1' % (sCNT, sI))
    a('s_sub_u32 s%d, 12, s%d' % (sCNT, sCNT))
    cstamp(a, 5, 'cyb'); stamp(a, 10, 'p3')
    a.raw('.p2align 6')
    a.label(lB)
    iteration(0, [qB], B_, B_, B_, lt=LTO)
    iteration(1, [qB], B_, B_, B_, loop_ctr=(sCNT, lB), lt=LTO)
    cstamp(a, 6, 'cyb'); stamp(a, 11, 'p3')
    if 'C' not in MX:
        E1 = E1 + ['s_getpc_b64 s[70:71]\n%s_pc2:\ns_add_u32 s70, s70, %s_tail2B-%s_pc2\ns_addc_u32 s71, s71, 0' % (name, name, name),
                   's_lshr_b32 s67, s2, 3', 's_lshl_b32 s67, s67, 2', 's_add_u32 s67, s67, s%d' % sW, 's_lshl_b32 s67, s67, 9',
                   'v_and_b32 v63, 3, v0', 'v_lshlrev_b32 v63, 7, v63', 'v_add_u32 v63, s67, v63', 'v_min_u32 v63, %s_codeend-%s_tail2B-4, v63' % (name, name),
                   'global_load_dword v63, v63, s[70:71]']
        E1b = E1[:4]
    else: E1b = E1
    iteration(0, [(1, F, 1)], B_, B_, B_, dk=False, mid=E1, post_bar=E2, pf=prefill(1, 0, 0))
    stamp(a, 12, 'p3')
    iteration(1, [(1, H_, 0)], B_, B_, B_, dk=False, nxt='v', mid=E3, post_bar=E4, pf=prefill(1, 1, 1), vx=sum(1 for s_ in E2 if s_.startswith('buffer_')) + sum(1 for s_ in E1 if s_.startswith('buffer_')))
    a('s_branch %s' % lBtail2)
    a.label(l7)
    iteration(0, [(1, F, 1)], BAh, BA, BA, dk=False, pf=prefill(1, 0, 0))
    iteration(1, [(1, H_, 0)], B_, BAh, BAh, dk=False, nxt='v', anyw=grp4 + [h_poll], pf=prefill(1, 1, 1), anylo=10)
    epilogue(0)
    a('s_waitcnt vmcnt(8)')
    gate(h_poll, 192, 4, 1, 63)
    for s_ in E2 + E3 + E4 + E1b: a(s_)
    a.label(lBtail2)
    stamp(a, 11); cstamp(a, 6); stamp(a, 13, 'p3')
    vm.n = 0; ids = {}
    for k in range(12): ids[('a4', k)] = -100
    ids[('w4', 0)] = ids[('w4', 1)] = -100
    sent = ['v_mov_b32 v%d, -1' % (116 + e) for e in range(4)] + ['s_add_u32 s67, s%d, 32768' % sS0, 's_add_u32 s68, s%d, 32768' % sS1]
    sent += [('sn', 'buffer_store_dwordx4 v[116:119], v%d, %s, s%d offen offset:%d %s' % (V_LANE16, sr(WS, 4), 67 + q, j * 1024, WT)) for j in range(4) for q in range(2)]
    e1 = [flag_store(77)[1]] + [issue(it) for it in w4_dma(2) + w4_dma(3) + sent]
    iteration(0, None, Bh, B_, B_, dk=False, dv=False, nxt='v', post_bar=e1)
    stamp(a, 14, 'p3')
    e2 = w4_dma(4) + acts[12] + acts[13] + w4_dma(5) + acts[14]
    iteration(1, None, [], Bh, Bh, dk=False, dv=False, nxt=None, post_bar=[issue(it) for it in e2])
    stamp(a, 12); stamp(a, 15, 'p3')
    epilogue(1)
    stamp(a, 16, 'p3')
    notile = name + '_notile'
    a('s_cmp_eq_u32 s%d, 0' % sVAL)
    a('s_cbranch_scc1 %s' % notile)
    a('s_barrier')
    for n in range(8):
        for s_ in w4_read(0, n): a(s_)
    stamp(a, 13)
    def rnd_l(r0, r1, t):
        return ['v_cvt_pk_bf16_f32 v%d, v%d, v%d' % (t, r0, r1), 'v_lshlrev_b32 v%d, 16, v%d' % (r0, t), 'v_and_b32 v%d, s65, v%d' % (r1, t)]
    def rnd(r0, r1, t):
        for s_ in rnd_l(r0, r1, t): a(s_)
    RBv = accB(0, 1)
    def gate_calc(n):
        B = accB(n, 0); T = 40 + 4 * (n % 2); L = unp_add(B, RBv, n, T)
        for h in range(2): L += rnd_l(B + 2 * h, B + 2 * h + 1, T)
        L += ['v_mul_f32 v%d, s64, v%d' % (T + e, B + e) for e in range(4)]
        L += ['v_exp_f32 v%d, v%d' % (T + e, T + e) for e in range(4)]
        L += ['v_add_f32 v%d, 1.0, v%d' % (T + e, T + e) for e in range(4)]
        L += ['v_rcp_f32 v%d, v%d' % (T + e, T + e) for e in range(4)]
        L += ['v_mul_f32 v%d, v%d, v%d' % (B + e, B + e, T + e) for e in range(4)]
        for h in range(2): L += rnd_l(B + 2 * h, B + 2 * h + 1, T)
        return L
    def x_unpack():
        L = []
        for n in range(8):
            for h in range(2):
                x = XR4 + 2 * n + h; o = accB(n, 1) + 2 * h
                L += ['v_lshlrev_b32 v%d, 16, v%d' % (o, x), 'v_and_b32 v%d, s65, v%d' % (o + 1, x)]
        return L
    a('s_mov_b32 s64, %s' % f2u(-math.log2(math.e)))
    a('s_mov_b32 s65, 0xffff0000')
    pend = w4_dma(6) + w4_dma(7) + w4_dma(8) + w4_dma(9)
    slowq = []
    valq = []
    nxt_a = LA4
    KG = int(os.environ.get('KG', 15)); KCF = int(os.environ.get('KCF', 1)); PDL = 5; CUN = int(os.environ.get('CUN', 9))
    KS0, KFL, KBP, KRC = ND4 + 2, 30, 33, 48
    rbl = recvs(RBv, 'rb')
    for k in range(NK):
        assert not any(x[0] == ('a4', k) for x in pend if not isinstance(x, str))
        need = ids[('a4', k)]
        if k == KCF: need = max(need, ids['ctx'])
        if k == KG: need = max(need, ids['cp'])
        if k in (KFL, KRC): assert not slowq and not any(x[0] in ('sb', 'rb', 'x4') for x in pend if not isinstance(x, str))
        if k == KFL: need = max(need, ids['sb'])
        if k == KBP + PDL: need = max(need, ids['bp'])
        if k == KRC: need = max(need, ids['rb'])
        a('s_waitcnt vmcnt(%d) lgkmcnt(12)' % min(63, vm.cnt(need)))
        if k == KCF: pend = [flag_store(78)] + pend
        if k == KG - 3: pend = [('cp', c_poll)] + pend
        if k == KG: gate(c_poll, 24, 4, 1, 63)
        if k == KS0 - 1: valq += packs(accB)
        if k == KS0:
            assert not valq
            sl = sends(accB, 'sb'); slowq += [x for p_ in zip(sl[:4], sl[4:]) for x in p_]
        if k == KFL:
            pend = [flag_store(56), 's_add_u32 s56, s56, 512', 's_add_u32 s%d, s%d, 32768' % (sS0, sS0), 's_add_u32 s%d, s%d, 32768' % (sS1, sS1)] + pend
        if k == KBP: pend = [('bp', b_poll)] + pend
        if k == KBP + PDL:
            gate(b_poll, 24, 1, 1, 63)
            slowq += rbl
        if k == KRC:
            pend += ['s_add_u32 s%d, s%d, 32768' % (sR0, sR0), 's_add_u32 s%d, s%d, 32768' % (sR1, sR1)]
            for n in range(8): valq += gate_calc(n)
            valq += x_unpack()
        newa = []
        lim = min(NK, k + LA4 + 1) if k >= KG else ND4
        while nxt_a < min(lim, k + LA4 + 1) and len(newa) < CUN:
            newa += a4_load(nxt_a); nxt_a += 1
        pend = newa + slowq[:2] + pend; slowq = slowq[2:]
        accf = accB if k < ND4 else accS
        for n in range(8):
            if n % 2 == 0 and n > 0: a('s_waitcnt lgkmcnt(%d)' % (12 if k < NK - 1 else 2 * (6 - n)))
            for q in range(2):
                d = vr(accf(n, q), 4)
                a('%s %s, %s, %s, %s' % (MF16, d, vr(WF4 + 4 * n, 4), ar(act4(k, q), 4), '0' if k in (0, ND4) else d))
                if q == 0:
                    while pend and pend[0] == 's_nop 0': pend.pop(0)
                    if pend: a(issue(pend.pop(0)))
                    if pend and isinstance(pend[0], str) and pend[0] != 's_nop 0': a(pend.pop(0))
                    for _ in range(4):
                        if valq: a(valq.pop(0))
            if k + 1 < NK:
                if n == 0 and k % 4 == 3:
                    st = k // 2
                    key = ('w4', min(st + 2, NK // 2 - 1))
                    assert not any(x[0] == key for x in pend if not isinstance(x, str))
                    a('s_waitcnt vmcnt(%d) lgkmcnt(0)' % min(63, vm.cnt(ids[key])))
                    a('s_barrier')
                    for s2_ in (st + 7, st + 8):
                        if s2_ < NK // 2 and st >= 3: pend = pend + w4_dma(s2_)
                for s_ in w4_read(k + 1, n): a(s_)
        if k == ND4 - 1: stamp(a, 14); cstamp(a, 7)
        if k % 4 == 1: stamp(a, 1 + k // 4, 'p4')
        if k == ND4 + 39:
            assert not pend
            a('s_cmp_eq_u32 s%d, 0' % sRO)
            a('s_cbranch_scc1 %s_p4done' % name)
    assert not pend and not valq
    a.label(name + '_p4done')
    stamp(a, 15); cstamp(a, 8)
    a('s_nop 7')
    stamp(a, 1, 'fin')
    pl = packs(accS); sl = sends(accS, 'ss')
    def send_part(js):
        for j in js:
            for s_ in pl[4 * j:4 * j + 4]: a(s_)
            for s_ in pl[4 * j:4 * j + 4]:
                r_ = s_.split()[1].rstrip(',')
                a('v_min_u32 %s, -2, %s' % (r_, r_))
            a(sl[j][1])
    send_part(range(4))
    lfin = name + '_fin'
    a('s_cmp_lg_u32 s%d, 0' % sRO)
    a('s_cbranch_scc1 %s' % lfin)
    send_part(range(4, 8))
    stamp(a, 16)
    stamp_flush(a, 17)
    a('s_endpgm')
    a.label(lfin)
    stamp(a, 2, 'fin')
    RS = 64
    a('s_mov_b32 s63, 0x40000')
    a.label(name + '_rx')
    for it in recvs(RS, 'rs'): a(it[1] + ' ' + WT)
    a('s_waitcnt vmcnt(4)')
    for j in range(2):
        for src_ in range(2):
            r_ = RS + 16 * src_ + 4 * j
            if j == 0 and src_ == 0: a('v_max3_u32 v40, v%d, v%d, v%d' % (r_, r_ + 1, r_ + 2)); a('v_max_u32 v40, v40, v%d' % (r_ + 3))
            else: a('v_max3_u32 v40, v40, v%d, v%d' % (r_, r_ + 1)); a('v_max3_u32 v40, v40, v%d, v%d' % (r_ + 2, r_ + 3))
    a('s_waitcnt vmcnt(0)')
    for j in range(2, 4):
        for src_ in range(2):
            r_ = RS + 16 * src_ + 4 * j
            a('v_max3_u32 v40, v40, v%d, v%d' % (r_, r_ + 1)); a('v_max3_u32 v40, v40, v%d, v%d' % (r_ + 2, r_ + 3))
    a('v_cmp_eq_u32 vcc, -1, v40')
    a('s_sub_u32 s63, s63, 1')
    a('s_cbranch_scc1 %s_rxok' % name)
    a('s_cbranch_vccnz %s_rx' % name)
    a.label(name + '_rxok')
    stamp(a, 6, 'fin')
    for n in range(8):
        if n in (0, 7): stamp(a, 7 + n // 7, 'fin')
        S = accS(n, 0); T = 96 + 2 * n
        for s_ in unp_add(S, RS, n, 40): a(s_)
        for h in range(2): rnd(S + 2 * h, S + 2 * h + 1, 56)
        for e in range(4): a('v_mul_f32 v%d, v%d, v%d' % (S + e, S + e, accB(n, 0) + e))
        for h in range(2): a('v_cvt_pk_bf16_f32 v%d, v%d, v%d' % (T + h, S + 2 * h, S + 2 * h + 1))
        a('ds_write_b64 v21, %s offset:%d' % (vr(T, 2), 32768 + 32 * n))
    for j in range(4): a('ds_read_b128 %s, v23 offset:%d' % (vr(64 + 4 * j, 4), 32768 + 272 * j))
    for j in range(4):
        a('s_waitcnt lgkmcnt(%d)' % (3 - j))
        X_ = accB(0, 1) + 8 * j
        for e in range(4):
            a('v_lshlrev_b32 v40, 16, v%d' % (64 + 4 * j + e)); a('v_and_b32 v41, s65, v%d' % (64 + 4 * j + e))
            a('v_add_f32 v40, v40, v%d' % (X_ + 2 * e)); a('v_add_f32 v41, v41, v%d' % (X_ + 2 * e + 1))
            a('v_cvt_pk_bf16_f32 v%d, v40, v41' % (80 + 4 * j + e))
        a('buffer_store_dwordx4 %s, v%d, %s, s%d offen offset:%d %s' % (vr(80 + 4 * j, 4), VX, sr(OUT, 4), sXO, 1280 * j, OUTF))
    if os.environ.get('PADT'):
        if os.environ.get('PADG'):
            a('s_mov_b32 s96, 0x%x' % FL)
            a('buffer_load_dwordx4 v[4:7], v%d, %s, s96 offen offset:2048 %s' % (V_LANE16, sr(WS, 4), WT))
            a('s_waitcnt vmcnt(0)')
            for e in range(4): a('v_subrev_u32 v%d, s97, v%d' % (4 + e, 4 + e))
            a('v_min_i32 v4, v4, v5'); a('v_min_i32 v6, v6, v7'); a('v_min_i32 v4, v4, v6'); a('s_mov_b32 s96, 0'); a('s_nop 1')
            for l in range(64):
                a('v_readlane_b32 s95, v4, %d' % l); a('s_nop 3'); a('s_min_i32 s96, s96, s95')
            a('s_add_u32 s97, s97, s96')
        a.label(name + '_padl')
        a('s_memrealtime s[98:99]'); a('s_waitcnt lgkmcnt(0)'); a('s_sub_u32 s98, s98, s97'); a('s_cmp_lt_u32 s98, %d' % int(os.environ['PADT']))
        a('s_cbranch_scc1 %s_padl' % name)
    stamp(a, 16); stamp(a, 9, 'fin')
    stamp_flush(a, 17)
    a('s_endpgm')
    a.label(notile)
    a('s_waitcnt vmcnt(0)')
    a(flag_store(78)[1])
    a.label(end)
    a('s_endpgm')
    for slow, ok, load_ins, chk, ts in slow_paths:
        a.label(slow)
        a('s_mov_b32 s%d, 0x40000' % ts)
        lp = a.newlabel(name + '_sp')
        a.label(lp)
        a('s_sleep 1')
        a(load_ins)
        a('s_waitcnt vmcnt(0)')
        for s in chk: a(s)
        a('s_nop 1')
        a('s_cbranch_vccz %s' % ok)
        a('s_sub_u32 s%d, s%d, 1' % (ts, ts))
        a('s_cbranch_scc0 %s' % lp)
        a('s_branch %s' % ok)
    for stub, back, pc, ex in rare_sites:
        a.label(stub)
        for st, qbs in sorted(ex):
            a('s_mov_b32 s69, %s' % ('1.0' if 1 in qbs else '0'))
            a('s_call_b64 s[100:101], %s_rare%d%d' % (name, pc, st))
        a('s_branch %s' % back)
    for pc in range(2):
        for st in range(2):
            a.label('%s_rare%d%d' % (name, pc, st))
            a('s_nop 7')
            for qb in range(2):
                for s in max_ops(st, pc, qb, V_T0, V_T1): a(s)
                a('v_max_f32 v%d, 0, v%d' % (V_T0, V_T0))
                if qb == 1: a('v_mul_f32 v%d, s69, v%d' % (V_T0, V_T0))
                a('v_exp_f32 v%d, -v%d' % (V_T1, V_T0))
                for e in range(4): a('v_sub_f32 v%d, v%d, v%d' % (NEGM + (st * 2 + qb) * 4 + e, NEGM + (st * 2 + qb) * 4 + e, V_T0))
                for pp in range(2):
                    for kb in range(4):
                        for r in range(4):
                            x = SB[st][pp] + (kb * 2 + qb) * 4 + r
                            a('v_sub_f32 v%d, v%d, v%d' % (x, x, V_T0))
                a('v_mul_f32 v%d, v%d, v%d' % (V_L + st * 2 + qb, V_L + st * 2 + qb, V_T1))
                for db in range(0, 8, 2):
                    regs = [A_O[st] + ((db + h) * 2 + qb) * 4 + e for h in range(2) for e in range(4)]
                    for e in range(8): a('v_accvgpr_read_b32 v%d, a%d' % (TMP + e, regs[e]))
                    for e in range(8): a('v_mul_f32 v%d, v%d, v%d' % (TMP + e, TMP + e, V_T1))
                    for e in range(8): a('v_accvgpr_write_b32 a%d, v%d' % (regs[e], TMP + e))
            for s in exp_ops(st, pc): a(s)
            if st == 1:
                for k, (s, _, _) in enumerate(exp_seq(1, 1 - pc)[:EARLY]): a('v_exp_f32 v%d, v%d' % (TMP + k, s))
            a('s_nop 7')
            a('s_setpc_b64 s[100:101]')
    a.label(name + '_codeend')
    if os.environ.get('PADEND'): a.raw('.fill 8192, 4, 0xBF810000')
    kernel_desc(a, name, 512, 256)
    return a
```

```python
from common import *
import common
import math, copy, re
import k2 as K2
from k2 import VM, Packer, exp_seq, exp_ops, max_ops, EARLY
from k2 import V_LANE16, V_LANE16V, V_KRD, V_VRD, V_T0, V_T1, V_L, TRI, NEGM, LT, TMP, SB, PB, A_O, A_Q, A_RING, V_ONES, D, R, THR, BIG

OUTF = os.environ.get('OUTF', 'sc0 sc1')
WT = 'sc0 sc1'
WS_FLG = 0x7000000
FK, FH, FC, FL, FE = WS_FLG, WS_FLG + 4096, WS_FLG + 8192, WS_FLG + 16384, WS_FLG + 20480
PTR = dict(x=4, ckv=6, wq=8, wuk=10, wuv=12, wo=14, wg=18, wu=20, wd=22, out=24, dbg=26, ws=28)
WS, R1, R2, R3, R4, R5 = 32, 36, 40, 44, 48, 52
sW, sH, sI = 30, 31, 3
V_ONE, V_1 = 60, 61
V_PA, V_PD = 62, 24

SMODE = os.environ.get('SMODE', 'all')
def stamp(a, i, mode='all'):
    if not DIAG: return
    if mode != SMODE and i != 0: return
    a('s_memrealtime s[98:99]'); a('s_waitcnt lgkmcnt(0)'); a('s_mov_b32 s%d, s98' % (80 + i))
def cstamp(a, i, mode='cyc'):
    if not DIAG or mode != SMODE: return
    a('s_memrealtime s[98:99]'); a('s_waitcnt lgkmcnt(0)'); a('s_mov_b32 s%d, s98' % (80 + i + 8))
    a('s_memtime s[98:99]'); a('s_waitcnt lgkmcnt(0)'); a('s_mov_b32 s%d, s98' % (80 + i))
def stamp_flush(a, n):
    if not DIAG: return
    if os.environ.get('DBGOUT'):
        a('s_load_dwordx2 s[36:37], s[0:1], 88')
        a('s_mov_b32 s38, 256'); a('s_mov_b32 s39, 0x00020000')
        a('s_lshl_b32 s98, s2, 2'); a('s_add_u32 s98, s98, s%d' % sW)
        a('s_cmp_eq_u32 s98, %d' % (4 * int(os.environ['DBGOUT'])))
        a('s_cselect_b32 s98, 0, 0x1000')
        a('s_waitcnt lgkmcnt(0)')
        a('v_mov_b32 v0, 0')
        for i in range(1, n):
            a('s_sub_u32 s99, s%d, s80' % (80 + i))
            a('v_mov_b32 v1, s99')
            a('buffer_store_dword v1, v0, s[36:39], s98 offen offset:%d' % (4 * (i - 1)))
            a('s_nop 1')
        return
    a('s_lshl_b32 s98, s2, 2'); a('s_add_u32 s98, s98, s%d' % sW); a('s_lshl_b32 s98, s98, 7')
    a('s_add_u32 s98, s98, 0x%x' % WS_STAMP)
    a('v_mov_b32 v0, 0')
    for i in range(n):
        a('v_mov_b32 v1, s%d' % (80 + i))
        a('buffer_store_dword v1, v0, %s, s98 offen offset:%d' % (sr(WS, 4), 4 * i))
        a('s_nop 1')

def padp(a, tag):
    v = os.environ.get('PADP', '')
    if not v.startswith(tag + ':'): return
    l = a.newlabel('L_pp'); a.label(l)
    a('s_memrealtime s[98:99]'); a('s_waitcnt lgkmcnt(0)'); a('s_sub_u32 s98, s98, s97'); a('s_cmp_lt_u32 s98, %d' % int(v.split(':')[1])); a('s_cbranch_scc1 %s' % l)
def srd(name, r, off=0, size=None):
    p = PTR[name]
    L = []
    if off:
        L += ['s_add_u32 s%d, s%d, 0x%x' % (r, p, off), 's_addc_u32 s%d, s%d, 0' % (r + 1, p + 1)]
    else:
        L += ['s_mov_b32 s%d, s%d' % (r, p), 's_mov_b32 s%d, s%d' % (r + 1, p + 1)]
    L += ['s_mov_b32 s%d, 0x%x' % (r + 2, SIZE[name] if size is None else size), 's_mov_b32 s%d, 0x00020000' % (r + 3)]
    return L

def gen_mega(a, name):
    kernel_begin(a, name)
    end = name + '_end'
    slow_paths = []
    def gate(load_ins, dreg, n, want, tmp_s):
        def chk():
            L = ['v_xor_b32 v%d, v%d, v%d' % (dreg + e, dreg + e, V_1) for e in range(n)]
            if n >= 3: L += ['v_or3_b32 v%d, v%d, v%d, v%d' % (dreg, dreg, dreg + 1, dreg + 2)]
            if n == 4: L += ['v_or_b32 v%d, v%d, v%d' % (dreg, dreg, dreg + 3)]
            L += ['v_cmp_ne_u32 vcc, 0, v%d' % dreg]
            return L
        slow, ok = a.newlabel(name + '_sl'), a.newlabel(name + '_ok')
        for s in chk(): a(s)
        a('s_nop 1')
        a('s_cbranch_vccnz %s' % slow)
        a.label(ok)
        slow_paths.append((slow, ok, load_ins, chk(), tmp_s))

    a('s_cmp_ge_u32 s2, 256')
    a('s_cbranch_scc1 %s' % end)
    if os.environ.get('PADT') or os.environ.get('PADP'):
        a('s_memrealtime s[98:99]'); a('s_waitcnt lgkmcnt(0)'); a('s_mov_b32 s97, s98')
    stamp(a, 0)
    a('s_load_dwordx16 s[4:19], s[0:1], 0')
    a('s_load_dwordx8 s[20:27], s[0:1], 64')
    a('s_load_dwordx2 s[28:29], s[0:1], 96')
    if 'e' in os.environ.get('MX', ''):
        a('s_getpc_b64 s[100:101]')
        a('v_lshlrev_b32 v2, 7, v0')
        a('global_load_dword v250, v2, s[100:101]')
    a('v_lshrrev_b32 v1, 6, v0')
    a('v_and_b32 v0, 63, v0')
    a('v_readfirstlane_b32 s%d, v1' % sW)
    a('s_and_b32 s31, s2, 7')
    a('s_lshl_b32 s31, s31, 2')
    a('s_lshr_b32 s61, s2, 3')
    a('s_and_b32 s61, s61, 3')
    a('s_add_u32 s31, s31, s61')
    a('s_lshr_b32 s3, s2, 5')
    CKV, WUK, WUV, X, DBG = R1, R2, R3, R4, R5
    VA, VW = 8, 12
    a('v_lshrrev_b32 v6, 3, v0')
    a('v_lshlrev_b32 v6, 10, v6')
    a('v_lshrrev_b32 v7, 4, v0')
    a('v_and_b32 v12, 7, v0')
    a('v_xor_b32 v12, v12, v7')
    a('v_xor_b32 v13, 4, v12')
    a('v_lshl_add_u32 v12, v12, 4, v6')
    a('v_lshl_add_u32 v13, v13, 4, v6')
    for j in range(4): a('v_add_u32 v%d, %d, v%d' % (VA + j, j * (8192 - 1024), 12 + (j & 1)))
    a('v_bfe_u32 v16, v0, 1, 3')
    a('v_xor_b32 v16, v16, v7')
    a('v_xor_b32 v17, 4, v16')
    a('v_and_b32 v18, 1, v0')
    a('v_lshlrev_b32 v18, 4, v18')
    a('v_lshl_add_u32 v18, v7, 13, v18')
    a('v_lshl_add_u32 v16, v16, 5, v18')
    a('v_lshl_add_u32 v17, v17, 5, v18')
    for j in range(4): a('v_add_u32 v%d, %d, v%d' % (VW + j, j * (32768 - 1024), 16 + (j >> 1)))
    sA, sWo, sLA, sLW, sA2 = 56, 57, 58, 59, 60
    a('s_lshl_b32 s56, s%d, 2' % sI)
    a('s_add_u32 s56, s56, s%d' % sW)
    a('s_lshl_b32 s56, s56, 16')
    a('s_lshl_b32 s57, s%d, 17' % sW)
    a('s_lshl_b32 s58, s%d, 8' % sH)
    a('s_add_u32 s57, s57, s58')
    a('s_lshl_b32 s58, s%d, 13' % sW)
    a('s_lshl_b32 s59, s%d, 12' % sW)
    a('s_add_u32 s59, s59, 65536')
    a('v_lshrrev_b32 v2, 5, v0')
    a('v_and_b32 v3, 31, v0')
    a('s_lshl_b32 s61, s2, 2')
    a('s_add_u32 s61, s61, s%d' % sW)
    a('s_lshl_b32 s61, s61, 1')
    a('v_add_u32 v4, s61, v2')
    a('v_mul_u32_u24 v5, 1280, v4')
    a('v_lshl_add_u32 v5, v3, 3, v5')
    a('v_lshlrev_b32 v%d, 4, v0' % V_LANE16)
    vm = VM(); ids = {}
    def issue(it):
        if isinstance(it, str): return it
        ids[it[0]] = vm.op()
        return it[1]
    def p1_dma(st):
        slot = st & 1; t = ('p1', st)
        L = ['s_add_u32 m0, s%d, %d' % (sLA, slot * 32768), 's_add_u32 s%d, s%d, 32768' % (sA2, sA)]
        L += [(t, 'buffer_load_dwordx4 v%d, %s, s%d offen offset:%d lds' % (VA + j, sr(CKV, 4), sA, 1024 * j)) for j in range(4)]
        L += ['s_add_u32 m0, s%d, %d' % (sLW, slot * 32768), 's_add_u32 s%d, s%d, 128' % (sA, sA)]
        L += [(t, 'buffer_load_dwordx4 v%d, %s, s%d offen offset:%d lds' % (VW + j, sr(WUK, 4), sWo, 1024 * j)) for j in range(4)]
        L += ['s_add_u32 m0, s%d, %d' % (sLA, slot * 32768 + 4096), 's_nop 0']
        L += [(t, 'buffer_load_dwordx4 v%d, %s, s%d offen offset:%d lds' % (VA + j, sr(CKV, 4), sA2, 1024 * j)) for j in range(4)]
        L += ['s_add_u32 m0, s%d, %d' % (sLW, slot * 32768 + 16384), 's_nop 0']
        L += [(t, 'buffer_load_dwordx4 v%d, %s, s%d offen offset:%d lds' % (VW + j, sr(WUV, 4), sWo, 1024 * j)) for j in range(4)]
        L += ['s_add_u32 s%d, s%d, %d' % (sWo, sWo, 64 * 8192)]
        return L
    stamp(a, 1, 'st')
    a('s_waitcnt lgkmcnt(0)')
    for n_, r_ in (('x', X), ('ckv', CKV), ('wuk', WUK), ('wuv', WUV), ('ws', WS)):
        for s in srd(n_, r_): a(s)
    XR = 192
    a('v_mov_b32 v52, 0')
    a('s_mov_b32 s79, 0x%x' % FE)
    a(issue(('ep', 'buffer_load_dword v%d, v52, %s, s79 offen %s' % (V_1, sr(WS, 4), WT))))
    xld = [('x', 'buffer_load_dwordx2 %s, v5, %s, 0 offen offset:%d' % (vr(XR + 2 * j, 2), sr(X, 4), 256 * j)) for j in range(5)]
    MX0 = os.environ.get('MX', '')
    if 'k' in MX0:
        a('v_and_b32 v20, 15, v0'); a('v_lshlrev_b32 v20, 7, v20'); a('s_lshl_b32 s62, s61, 10')
        a(issue(('pf', 'buffer_load_dword v240, v20, %s, s62 offen' % sr(CKV, 4))))
    if 'l' not in MX0:
        for it in xld: a(issue(it))
    PFB = False
    def weave(start, items):
        body = a.lines[start:]; del a.lines[start:]
        G = []
        for l in body:
            t = l.strip()
            if G and (t.startswith(('s_cselect', 's_addc', 's_subb')) or t.endswith(':') or G[-1][-1].strip().endswith(':')): G[-1].append(l)
            else: G.append([l])
        D_ = []; cur = []
        for s in items:
            cur.append(s)
            if s.startswith(('buffer_', 'global_')): D_.append(cur); cur = []
        if cur: D_[-1] += cur
        for j, d in enumerate(D_):
            for s in d: a(s)
            for g in G[(j * len(G)) // len(D_):((j + 1) * len(G)) // len(D_)]: a.lines.extend(g)
    s0_items = [issue(it) for it in p1_dma(0)]
    W0 = len(a.lines)
    a('s_lshr_b32 s61, s2, 3')
    a('s_lshl_b32 s61, s61, 2')
    a('s_add_u32 s61, s61, s%d' % sW)
    TC, TW, TX = 48, 49, 50
    a('v_bfe_u32 v20, v0, 1, 4')
    a('v_lshlrev_b32 v20, 10, v20')
    a('v_and_b32 v21, 1, v0')
    a('v_lshl_add_u32 v20, v21, 7, v20')
    a('s_lshl_b32 s62, s61, 14')
    a('v_add_u32 v%d, s62, v20' % TC)
    a('v_and_b32 v20, 7, v0')
    a('v_lshlrev_b32 v20, 7, v20')
    a('s_lshl_b32 s62, s61, 13')
    a('s_and_b32 s63, s2, 7')
    a('s_lshl_b32 s63, s63, 10')
    a('s_add_u32 s62, s62, s63')
    a('v_add_u32 v%d, s62, v20' % TW)
    def pf_chunk(c):
        if PFB: return []
        return ['s_mov_b32 s16, %d' % ((c + 1) * 128 * 8192),
                ('pf', 'buffer_load_dword v240, v%d, %s, 0 offen offset:%d' % (TC, sr(CKV, 4), 256 * (c + 1))),
                ('pf', 'buffer_load_dword v241, v%d, %s, s16 offen' % (TW, sr(WUK, 4))),
                ('pf', 'buffer_load_dword v242, v%d, %s, s16 offen' % (TW, sr(WUV, 4)))]
    a('s_getpc_b64 s[100:101]')
    a.label(name + '_pc')
    a('s_sub_u32 s100, s100, %s_pc-%s' % (name, name))
    a('s_subb_u32 s101, s101, 0')
    a('v_and_b32 v20, 7, v0')
    a('v_lshlrev_b32 v20, 7, v20')
    a('s_lshl_b32 s62, s61, 10')
    a('v_add_u32 v20, s62, v20')
    a('v_min_u32 v55, %s_codeend-%s-4, v20' % (name, name))
    a('s_min_u32 s62, s61, 79'); a('s_lshl_b32 s62, s62, 16'); a('v_mov_b32 v56, s62')
    a('s_min_u32 s62, s61, 33'); a('s_lshl_b32 s62, s62, 16'); a('v_mov_b32 v57, s62')
    TQ, TG = 53, 54
    a('v_min_u32 v20, 39, v0')
    a('v_lshrrev_b32 v21, 3, v20')
    a('s_mul_i32 s62, s61, 5')
    a('v_add_u32 v21, s62, v21')
    a('v_and_b32 v20, 7, v20')
    a('v_lshlrev_b32 v20, 7, v20')
    a('v_lshl_add_u32 v20, v21, 13, v20')
    a('v_add_u32 v%d, s63, v20' % TQ)
    a('v_min_u32 v20, 19, v0')
    a('v_lshrrev_b32 v21, 2, v20')
    a('v_add_u32 v21, s62, v21')
    a('v_mul_u32_u24 v21, 3456, v21')
    a('s_and_b32 s63, s2, 7')
    a('s_lshl_b32 s63, s63, 2')
    a('s_mul_i32 s64, s63, 37'); a('s_lshr_b32 s64, s64, 8')
    a('s_sub_u32 s63, s63, s64')
    a('v_and_b32 v20, 3, v20')
    a('v_add_u32 v20, s63, v20')
    a('v_min_u32 v20, 26, v20')
    a('v_lshl_add_u32 v%d, v20, 7, v21' % TG)
    a('s_mul_i32 s62, s61, 20480')
    a('v_and_b32 v20, 31, v0')
    a('v_lshlrev_b32 v20, 7, v20')
    a('v_add_u32 v%d, s62, v20' % TX)
    def xn_touch(j):
        return ['s_mov_b32 s16, %d' % (4096 * j), ('pf', 'buffer_load_dword v243, v%d, %s, s16 offen' % (TX, sr(WS, 4)))]
    RA, RW = 16, 18
    a('s_lshr_b32 s61, s%d, 1' % sW)
    a('s_lshl_b32 s61, s61, 14')
    a('v_bfe_u32 v20, v0, 1, 3')
    a('v_xor_b32 v20, v20, v7')
    a('v_and_b32 v21, 15, v0')
    a('v_lshlrev_b32 v21, 7, v21')
    a('v_add_u32 v21, s61, v21')
    a('v_lshl_add_u32 v%d, v20, 4, v21' % RA)
    a('v_xor_b32 v20, 4, v20')
    a('v_lshl_add_u32 v%d, v20, 4, v21' % (RA + 1))
    a('v_bfe_u32 v22, v0, 2, 2')
    a('v_lshl_add_u32 v23, v7, 3, v22')
    a('v_lshlrev_b32 v23, 8, v23')
    a('v_and_b32 v24, 3, v0')
    a('v_lshl_add_u32 v23, v24, 3, v23')
    a('v_add_u32 v23, 65536, v23')
    a('v_bfe_u32 v22, v0, 2, 3')
    a('s_and_b32 s62, s%d, 1' % sW)
    a('s_lshl_b32 s62, s62, 2')
    a('v_xor_b32 v22, s62, v22')
    for nb in range(4):
        a('v_xor_b32 v24, %d, v22' % nb)
        a('v_lshl_add_u32 v%d, v24, 5, v23' % (RW + nb))
    P_XOFF2, P_WOFF, P_WRD = 32, 33, 40
    P_X0, P_X1 = 32, 37
    a('s_sub_u32 s61, 7, s%d' % sW); a('s_mul_i32 s61, s61, 20480'); a('v_add_u32 v%d, s61, v%d' % (P_X0, V_LANE16))
    a('s_mul_i32 s61, s%d, 20480' % sW); a('v_add_u32 v%d, s61, v%d' % (P_X1, V_LANE16))
    a('v_lshrrev_b32 v25, 3, v0')
    a('v_bfe_u32 v26, v0, 1, 2')
    a('v_bfe_u32 v27, v0, 4, 2')
    a('v_xor_b32 v26, v26, v27')
    a('v_lshlrev_b32 v26, 5, v26')
    a('v_and_b32 v27, 1, v0')
    a('v_lshl_add_u32 v26, v27, 4, v26')
    a('v_lshl_add_u32 v%d, v25, 13, v26' % P_WOFF)
    a('v_add_u32 v%d, %d, v%d' % (P_WOFF + 1, 8 * 8192 - 1024, P_WOFF))
    a('v_mul_u32_u24 v25, 3456, v25')
    a('v_add_u32 v%d, v25, v26' % (P_WOFF + 2))
    a('v_add_u32 v%d, %d, v%d' % (P_WOFF + 3, 8 * 3456 - 1024, P_WOFF + 2))
    a('v_lshrrev_b32 v25, 2, v0')
    a('v_lshlrev_b32 v25, 7, v25')
    a('v_and_b32 v26, 3, v0')
    a('v_lshl_add_u32 v25, v26, 3, v25')
    a('v_add_u32 v25, 65536, v25')
    a('v_bfe_u32 v26, v0, 3, 2')
    for c in range(4):
        a('v_xor_b32 v27, %d, v26' % c)
        a('v_lshl_add_u32 v%d, v27, 5, v25' % (P_WRD + c))
        a('v_add_u32 v%d, 65536, v%d' % (P_WRD + 4 + c, P_WRD + c))
    s_w = [64, 65, 66, 67]; s_q = [68, 69]; sLW2, sCT = 70, 71; sQ = [72, 73]
    a('s_mul_i32 s17, s%d, 37' % sH)
    a('s_lshr_b32 s17, s17, 8')
    a('s_sub_u32 s71, s%d, s17' % sH)
    a('s_lshl_b32 s70, s%d, 11' % sW)
    a('s_lshl_b32 s72, s%d, 3' % sI)
    a('s_sub_u32 s73, 120, s72')
    a('s_mul_i32 s68, s72, 20480')
    a('s_mul_i32 s69, s73, 20480')
    assert WS_XN == 0
    a('s_lshl_b32 s64, s%d, 17' % sW)
    a('s_lshl_b32 s65, s%d, 8' % sH)
    a('s_add_u32 s64, s64, s65')
    a('s_add_u32 s65, s64, 128')
    a('s_mul_i32 s66, s%d, %d' % (sW, 16 * 3456))
    a('s_lshl_b32 s67, s%d, 7' % sCT)
    a('s_add_u32 s66, s66, s67')
    a('s_mov_b32 s67, s66')
    a('s_mul_i32 s61, s17, 7')
    a('s_sub_u32 s61, s%d, s61' % sH)
    a('s_cmp_eq_u32 s61, 6')
    a('s_cselect_b32 s74, 0, 0x%x' % SIZE['wg'])
    a('s_cmp_ge_u32 s%d, 27' % sCT)
    a('s_cselect_b32 s74, 0, s74')
    a('s_lshl_b32 s61, s%d, 2' % sW)
    a('s_lshl_b32 s76, s2, 4'); a('s_add_u32 s76, s76, s61')
    a('s_add_u32 s75, s76, 0x%x' % FK)
    a('s_add_u32 s77, s76, 0x%x' % FC)
    a('s_and_b32 s78, s76, 0x1ff')
    a('s_add_u32 s76, s76, 0x%x' % FH)
    a('s_sub_u32 s62, 15, s%d' % sI); a('s_lshl_b32 s62, s62, 9')
    a('s_add_u32 s78, s78, s62'); a('s_add_u32 s78, s78, 0x%x' % FC)
    a('v_cmp_eq_u32 vcc, 0, v0')
    a('v_mov_b32 v25, 0x20000000')
    a('s_lshl_b32 s26, s2, 2'); a('s_add_u32 s26, s26, 0x%x' % FL)
    a('v_cndmask_b32 v%d, v25, 0, vcc' % V_ONE)
    a('s_cmp_eq_u32 s%d, 0' % sW)
    a('s_cselect_b32 s26, s26, 0x20000000')
    a('s_lshl_b32 s27, s2, 2'); a('s_or_b32 s27, s27, s%d' % sW)
    a('s_cmp_eq_u32 s27, 0')
    a('s_cselect_b32 s27, s79, 0x20000000')
    a('s_mov_b32 s79, 0x%x' % FL)
    def flag_store(sreg, val=V_1):
        return ('fl', 'buffer_store_dword v%d, v%d, %s, s%d offen %s' % (val, V_ONE, sr(WS, 4), sreg, WT))
    weave(W0, s0_items)
    W1 = len(a.lines)
    a('s_mov_b32 s61, 0x9e3779b1')
    a('v_mul_lo_u32 v%d, s61, v%d' % (V_1, V_1))
    a('v_add_u32 v%d, 0x7f4a7c15, v%d' % (V_1, V_1))
    import k1
    b = Asm(); k1.ln_part(b, XR, WS, 4, 3)
    ln_lines = [l.strip() for l in b.lines]
    for l in ln_lines[:-20]: a(l)
    a('v_lshrrev_b32 v224, 3, v3')
    a('v_lshlrev_b32 v224, 9, v224')
    a('v_and_b32 v225, 3, v3')
    a('v_lshl_add_u32 v224, v225, 7, v224')
    a('v_and_b32 v225, 7, v4')
    a('v_lshl_add_u32 v224, v225, 4, v224')
    a('v_bfe_u32 v225, v3, 2, 1')
    a('v_lshl_add_u32 v224, v225, 3, v224')
    a('v_add_u32 v224, %d, v224' % (128 * 1024))
    for j in range(5): a('ds_write_b64 v224, %s offset:%d' % (vr(XR + 2 * j, 2), 2048 * j))
    a('s_lshl_b32 s61, s%d, 10' % sW)
    a('s_add_u32 s61, s61, %d' % (128 * 1024))
    a('v_add_u32 v225, s61, v%d' % V_LANE16)
    a('v_lshrrev_b32 v226, 3, v0')
    a('v_lshlrev_b32 v226, 8, v226')
    a('v_and_b32 v227, 7, v0')
    a('v_lshl_add_u32 v226, v227, 4, v226')
    a('s_lshr_b32 s61, s2, 1')
    a('s_mul_i32 s61, s61, 20480')
    a('s_and_b32 s62, s2, 1')
    a('s_lshl_b32 s62, s62, 7')
    a('s_add_u32 s61, s61, s62')
    a('s_lshl_b32 s62, s%d, 11' % sW)
    a('s_add_u32 s61, s61, s62')
    a('s_add_u32 s62, s61, 8192')
    a('s_add_u32 s63, s61, 16384')
    a('s_cmp_lt_u32 s%d, 2' % sW)
    a('s_cselect_b32 s63, s63, 0x20000000')
    lnq = []
    for l in a.lines[W1:]:
        t = l.strip()
        if t.startswith('s_cselect'): lnq[-1] += '\n' + t
        else: lnq.append(t)
    del a.lines[W1:]
    xn_reads = ['ds_read_b128 %s, v225 offset:%d' % (vr(XR + 4 * t, 4), 4096 * t) for t in range(3)]
    xn_stores = [('xn', 'buffer_store_dwordx4 %s, v226, %s, s%d offen %s' % (vr(XR + 4 * t, 4), sr(WS, 4), 61 + t, WT)) for t in range(3)]
    MX = os.environ.get('MX', '')
    if 'x' in MX: xn_stores = []
    if 'p' in MX: xn_stores = [(t, s.replace(WT, '')) for t, s in xn_stores]
    WQ, WG, WU = R1, R2, R3
    WSLOT = [128 * 1024, 64 * 1024, 96 * 1024]
    P_ACCV, P_ACCA, P_WF, P_ACT = 128, 0, 128, 192
    srdm = [WQ, WQ, WG, WU]; stride = [8192, 8192, 3456, 3456]
    def w_dma(st, nm):
        L = []
        for m in range(nm):
            L.append('s_add_u32 m0, s%d, %d' % (sLW2, WSLOT[st % 3] + m * 8192))
            L.append('s_nop 0')
            for j in range(2):
                L.append((('w', st), 'buffer_load_dwordx4 v%d, %s, s%d offen offset:%d lds' % (P_WOFF + 2 * (m // 2) + j, sr(srdm[m], 4), s_w[m], 1024 * j)))
            L.append('s_add_u32 s%d, s%d, %d' % (s_w[m], s_w[m], 64 * stride[m]))
        return L
    def a_load(k):
        base = P_ACT + 16 * (k % 4)
        L = [(('a', k), 'buffer_load_dwordx4 %s, v%d, %s, s%d offen offset:%d' % (ar(base + 4 * qi, 4), (P_X0, P_X1)[qi % 2], sr(WS, 4), s_q[qi // 2], 1024 * (k % 4))) for qi in range(4)]
        if k % 4 == 3: L += ['s_add_u32 s%d, s%d, 4096' % (s, s) for s in s_q]
        return L
    FR = 64
    def reads(slot, ks, fs):
        base = FR + 64 * fs
        def A(i): return ['ds_read_b128 %s, v%d offset:%d' % (vr(base + 4 * i, 4), RA + ks, slot * 32768 + i * 2048)]
        def W(mat, nb): return ['ds_read_b64_tr_b16 %s, v%d offset:%d' % (vr(base + 32 + 16 * mat + 4 * nb + 2 * r, 2), RW + nb,
                                slot * 32768 + mat * 16384 + (32 * ks + 4 * r) * 256) for r in range(2)]
        L = A(0)
        for nb in range(4): L += W(0, nb)
        for nb in range(4): L += W(1, nb)
        for i in range(1, 8): L += A(i)
        return L
    def mfmas(fs, first, rbs=range(8)):
        base = FR + 64 * fs; L = []
        for rb in rbs:
            act = vr(base + 4 * rb, 4)
            for mat in range(2):
                for nb in range(4):
                    w = vr(base + 32 + 16 * mat + 4 * nb, 4)
                    d = ar((rb * 8 + mat * 4 + nb) * 4, 4); c = '0' if first else d
                    L.append('%s %s, %s, %s, %s' % ((MF16, d, w, act, c) if mat == 0 else (MF16, d, act, w, c)))
        return L
    stamp(a, 2); stamp(a, 8, 'st')
    S1L = p1_dma(1); npre = int(os.environ.get('NPRE', 12))
    for it in S1L[:npre]: a(issue(it))
    a('s_waitcnt vmcnt(%d) lgkmcnt(0)' % vm.cnt(ids[('p1', 0)]))
    stamp(a, 9, 'st')
    a('s_barrier')
    stamp(a, 3); stamp(a, 10, 'st'); padp(a, 'p0')
    for s in reads(0, 0, 0): a(s)
    ln_poll = 'buffer_load_dwordx4 v[244:247], v%d, %s, s79 offen %s' % (V_LANE16, sr(WS, 4), WT)
    NST = 8
    pend = S1L[npre:] + pf_chunk(0) + (xld if 'l' in MX0 else []) + [('pf', 'global_load_dword v249, v55, s[100:101]')]
    NPRE = int(os.environ.get('NPRE', 0))
    P1SP = int(os.environ.get('P1SP', 4))
    LNS = 2 if 'l' in MX0 else 1
    LN0 = 3 if 'l' in MX0 else 0
    for st in range(NST - 1):
        slot = st & 1
        for ks in range(2):
            rd = []
            if ks == 1:
                if st < NST - 1:
                    assert not any(x[0] == ('p1', st + 1) for x in pend if not isinstance(x, str))
                    a('s_waitcnt vmcnt(%d) lgkmcnt(0)' % vm.cnt(max(ids[('p1', st + 1)], ids['lnp'] if st == LNS + 4 else 0))); a('s_barrier')
                    rd = reads(1 - slot, 0, 0)
                    if st == LNS: rd += xn_reads; assert not lnq
                else: a('s_waitcnt lgkmcnt(0)')
                if st + 2 < NST: pend += p1_dma(st + 2)
                if st == LNS + 2: pend = [flag_store(26)] + pend
                if st in (0, 1): pend += pf_chunk(st + 1)
                if st == 2: pend += [('pf', 'global_load_dword v240, v%d, s[8:9]' % TQ)]
                if st == 3: pend += [('pf', 'global_load_dword v241, v%d, s[18:19]' % TG), ('pf', 'global_load_dword v242, v%d, s[20:21]' % TG)]
                if st == LNS + 3: pend += [('lnp', ln_poll)]
                if st == 4 and 'C' not in MX: pend += [('pf', 'global_load_dword v249, v55, s[100:101]')]
                if st == 6: pend += w_dma(1, 4)
                if st == LNS + 4:
                    gate(ln_poll, 244, 4, 1, 61)
                    pend += [flag_store(27)]
                    pend += xn_touch(0) + xn_touch(1)
                if st == 6: pend += xn_touch(2) + xn_touch(3) + xn_touch(4)
            else:
                a('s_waitcnt lgkmcnt(0)')
                rd = reads(slot, 1, 1)
                if st == LNS + 1: pend += xn_stores
                if st == LNS + 1 and os.environ.get('PADG'):
                    pend += ['v_mov_b32 v251, s97', ('t0', 'buffer_store_dword v251, v%d, %s, s26 offen offset:2048 %s' % (V_ONE, sr(WS, 4), WT))]
                if st == 6:
                    pend += srd('wq', WQ) + srd('wg', WG) + srd('wu', WU) + ['s_mov_b32 s%d, s74' % (WG + 2), 's_mov_b32 s%d, s74' % (WU + 2)] + w_dma(0, 4)
            lastv = -10
            for g, m in enumerate(mfmas(ks, st == 0 and ks == 0)):
                a(m)
                if g % 2 == 0 and rd: a(rd.pop(0))
                elif pend and g % 2 == 1:
                    while pend and pend[0] == 's_nop 0': pend.pop(0)
                    if pend and (isinstance(pend[0], str) or g - lastv >= (2 if st < 2 else P1SP)):
                        if not isinstance(pend[0], str): lastv = g
                        a(issue(pend.pop(0)))
                for _ in range(3 if 'l' in MX0 else 2):
                    if lnq and 2 * st + ks >= LN0: a(lnq.pop(0))
            stamp(a, 1 + 2 * st + ks, 'p1')
        if st == 3: stamp(a, 4); cstamp(a, 1)
    def w_read(k, n):
        st, ks = k // 2, k % 2
        off = WSLOT[st % 3] - 65536
        grp = off // 65536; off %= 65536
        m, c = n // 4, n % 4
        return ['ds_read_b64_tr_b16 %s, v%d offset:%d' % (wfr(k, n, r), P_WRD + 4 * grp + c, off + m * 8192 + (32 * ks + 16 * r) * 128) for r in range(2)]
    def wfr(k, n, r=None):
        f, b_ = (vr, 96 + 4 * (n - 8)) if (k >= 16 and n >= 8) else (ar, P_WF + 4 * n)
        return f(b_, 4) if r is None else f(b_ + 2 * r, 2)
    sBASE, sK0, sK1, sT, sC0, sC1, sS1 = 56, 57, 58, 59, 60, 61, 62
    sc = ['s_lshl_b32 s56, s%d, 20' % sH, 's_lshl_b32 s57, s%d, 17' % sI, 's_add_u32 s58, s56, s57', 's_lshr_b32 s57, s%d, 1' % sW, 's_lshl_b32 s57, s57, 16',
          's_add_u32 s58, s58, s57', 's_add_u32 s58, s58, 0x%x' % WS_KV, 's_and_b32 s57, s%d, 1' % sW, 's_lshl_b32 s16, s57, 11', 's_add_u32 s16, s16, s58',
          's_lshl_b32 s17, s57, 12', 's_add_u32 s17, s17, s58', 's_add_u32 s17, s17, 16384',
          's_lshl_b32 s57, s%d, 14' % sW, 'v_add_u32 v26, s57, v%d' % V_LANE16,
          's_lshl_b32 s59, s%d, 12' % sW, 's_add_u32 s56, s56, s59', 's_add_u32 s56, s56, 0x%x' % WS_KV, 's_lshl_b32 s60, s%d, 13' % sW,
          's_add_u32 s60, s60, %d' % (65536 + 32768), 's_add_u32 s61, s60, 16384', 's_add_u32 s62, s56, 32768', 's_add_u32 s57, s56, 65536', 's_add_u32 s58, s57, 32768',
          'v_add_u32 v%d, 16384, v%d' % (V_LANE16V, V_LANE16), 'v_and_b32 v%d, 7, v0' % V_PA, 'v_lshlrev_b32 v%d, 9, v%d' % (V_PA, V_PA),
          's_and_b32 s79, s2, 31', 's_lshl_b32 s79, s79, 4', 's_add_u32 s79, s79, 0x%x' % FK]
    def conv(b0, b1, T, dst):
        return ['v_accvgpr_read_b32 v%d, a%d' % (T + e, b0 * 4 + e) for e in range(4)] + ['v_accvgpr_read_b32 v%d, a%d' % (T + 4 + e, b1 * 4 + e) for e in range(4)] + \
               ['v_cvt_pk_bf16_f32 v%d, v%d, v%d' % (dst + e, T + 2 * e, T + 2 * e + 1) for e in range(4)]
    def store(T, sb, off):
        return ['s_add_u32 s63, s%d, %d' % (sb, off & ~4095),
                ('kv', 'buffer_store_dwordx4 %s, v%d, %s, s63 offen offset:%d %s' % (vr(T, 4), V_LANE16, sr(WS, 4), off & 4095, WT))]
    def jobs(rp):
        J = []
        for rb in (2 * rp, 2 * rp + 1):
            for s in range(2): J.append((rb * 8 + 2 * s, rb * 8 + 2 * s + 1, 16, (rb // 4) * 32768 + ((rb % 4) * 4 + s) * 1024))
        rb = 2 * rp
        for nb in range(4): J.append((rb * 8 + 4 + nb, (rb + 1) * 8 + 4 + nb, 17, (rb // 4) * 32768 + (((rb % 4) // 2) * 8 + nb) * 1024))
        return J
    J1 = jobs(3) + jobs(2); J2 = jobs(0) + jobs(1)
    a('s_waitcnt lgkmcnt(0)')
    rd = reads(1, 1, 1)
    pend += sc
    for g, m in enumerate(mfmas(0, False, (6, 7, 4, 5))):
        a(m)
        if rd: a(rd.pop(0))
        for _ in range(1 if rd else 2):
            while pend and pend[0] == 's_nop 0': pend.pop(0)
            if pend and not (_ == 1 and not isinstance(pend[0], str)): a(issue(pend.pop(0)))
    assert not any(x[0] == ('w', 0) for x in pend if not isinstance(x, str))
    a('s_waitcnt vmcnt(%d) lgkmcnt(0)' % vm.cnt(ids[('w', 0)]))
    a('s_barrier')
    pend += w_dma(2, 4)
    fq = []
    for n_, (b0, b1, sb, off) in enumerate(J1):
        T = 192 + 12 * (n_ % 4)
        fq += conv(b0, b1, T, T + 8) + ['ds_write_b128 v26, %s offset:%d' % (vr(T + 8, 4), 1024 * n_)]
        if n_ >= 8 and n_ < 12: fq += a_load(n_ - 8)
    for n in range(16): fq += w_read(0, n)
    tail = mfmas(1, False, (6, 7, 4, 5)) + mfmas(0, False, (0, 1, 2, 3)) + mfmas(1, False, (0, 1, 2, 3))
    per = -(-len(fq) // (len(tail) - 24))
    for g, m in enumerate(tail):
        a(m)
        if g < 22:
            for _ in range(2):
                while pend and pend[0] == 's_nop 0': pend.pop(0)
                if pend and not (_ == 1 and not isinstance(pend[0], str)): a(issue(pend.pop(0)))
        else:
            assert not pend
            for _ in range(per):
                if fq: a(issue(fq.pop(0)))
    assert not fq
    stamp(a, 5); cstamp(a, 2); stamp(a, 6); cstamp(a, 3); padp(a, 'p1')
    cq = []
    for n_, (b0, b1, sb, off) in enumerate(J2): cq += conv(b0, b1, 4 + 8 * (n_ % 2), 64 + 4 * n_)
    kv_sched = {}
    KVEND = int(os.environ.get('KVEND', 14))
    def kstep(n_): return 1 + (n_ * (KVEND - 1)) // 32
    for n_, (b0, b1, sb, off) in enumerate(J2):
        kv_sched.setdefault(kstep(n_), []).extend(store(64 + 4 * n_, sb, off))
        kv_sched.setdefault(kstep(n_) + 1, []).append('ds_read_b128 %s, v26 offset:%d' % (vr(64 + 4 * n_, 4), 1024 * n_))
    for n_, (b0, b1, sb, off) in enumerate(J1):
        kv_sched.setdefault(kstep(16 + n_), []).extend(store(64 + 4 * n_, sb, off))
    kv_poll0 = 'buffer_load_dwordx4 v[64:67], v52, %s, s79 offen %s' % (sr(WS, 4), WT)
    kv_poll = 'buffer_load_dwordx4 v[208:211], v%d, %s, s79 offen %s' % (V_PA, sr(WS, 4), WT)
    def kv_dma(m0expr, voff, ssrc, tag):
        return [m0expr, 's_nop 0'] + [(tag, 'buffer_load_dwordx4 v%d, %s, s%d offen offset:%d lds' % (voff, sr(WS, 4), ssrc, 1024 * j)) for j in range(4)]
    sTHR, sBIG, s2W, sM0, sM1, sDYN, sE0, sE1, sCNT = 64, 65, 66, 67, 68, 69, 70, 71, 63
    halves = []
    for k in range(16): halves += [(k, 0), (k, 1)]
    halves += [(k, 0) for k in range(16, 20)] + [(k, 1) for k in range(16, 20)]
    qe = ['s_mov_b32 s64, %s' % f2u(math.log2(math.e) / math.sqrt(128.0))]
    for qi in range(4):
        for s in range(4):
            r0, r1 = P_ACCV + ((2 * s) * 4 + qi) * 4, P_ACCV + ((2 * s + 1) * 4 + qi) * 4
            qe += ['v_mul_f32 v%d, s64, v%d' % (r + e, r + e) for r in (r0, r1) for e in range(4)]
            qe += ['v_cvt_pk_bf16_f32 v%d, v%d, v%d' % (r + e, r + 2 * e, r + 2 * e + 1) for r in (r0, r1) for e in range(2)]
            qe += ['v_accvgpr_write_b32 a%d, v%d' % (A_Q[qi // 2] + ((qi % 2) * 4 + s) * 4 + 2 * h + e, (r0, r1)[h] + e) for h in range(2) for e in range(2)]
    qe += ['v_and_b32 v5, 15, v0', 'v_lshrrev_b32 v6, 4, v0', 'v_lshlrev_b32 v6, 2, v6', 'v_sub_u32 v5, v5, v6']
    for r in range(4): qe += ['v_cmp_gt_i32 vcc, %d, v5\ns_nop 1\nv_cndmask_b32 v%d, 0, 1.0, vcc' % (r, TRI + r)]
    qe += ['v_mov_b32 v%d, 0x3f803f80' % (V_ONES + e) for e in range(4)] + ['v_mov_b32 v%d, 0' % (NEGM + j) for j in range(16)]
    qe += ['v_mov_b32 v%d, 0' % (V_L + j) for j in range(4)]
    qe += ['v_mov_b32 v%d, v%d' % (V_KRD, V_LANE16), 'v_add_u32 v%d, 65536, v%d' % (V_VRD, V_LANE16)]
    qe += ['s_lshl_b32 s8, s72, 10', 's_lshl_b32 s9, s73, 10', 's_lshl_b32 s10, s%d, 18' % sCT, 's_add_u32 s10, s10, 0x%x' % WS_H,
           's_cmp_eq_u32 s74, 0\ns_cselect_b32 s10, 0x20000000, s10', 's_add_u32 s8, s8, s10', 's_add_u32 s9, s9, s10',
           's_add_u32 s10, s8, %d' % (128 * 1024), 's_add_u32 s11, s9, %d' % (128 * 1024),
           's_sub_u32 s12, 7, s%d' % sW, 's_lshl_b32 s12, s12, 10', 'v_add_u32 v%d, s12, v%d' % (P_X0, V_LANE16),
           's_lshl_b32 s12, s%d, 10' % sW, 'v_add_u32 v%d, s12, v%d' % (P_X1, V_LANE16),
           's_mov_b32 s%d, %s' % (sTHR, f2u(THR)), 's_mov_b32 s%d, %s' % (sBIG, f2u(-BIG)), 's_sub_u32 s%d, 3, s%d' % (s2W, sW),
           's_cmp_eq_u32 s%d, 0\ns_cselect_b32 s%d, s%d, 0' % (sI, sDYN, sBIG)]
    pend = []; vq = cq; vper = 5; gcnt = 0; lastv = -10; P2SP = int(os.environ.get('P2SP', 4))
    for hi_, (k, part) in enumerate(halves):
        st, ks = k // 2, k % 2
        base = P_ACT + 16 * (k % 4)
        if part == 0:
            need = ids[('a', k)]
            if k == KVEND + 1:
                assert not any(x[0] == 'kv' for x in pend if not isinstance(x, str))
                need = max(need, ids['kv'])
            assert not any(x[0] == ('a', k) for x in pend if not isinstance(x, str))
            a('s_waitcnt vmcnt(%d) lgkmcnt(8)' % min(63, vm.cnt(need)))
            pend += kv_sched.get(k, [])
            if k == KVEND + 1: pend += [flag_store(75)]
            if k == 18: pend += [('kvp', kv_poll0)]
            if k == 12 and 'C' not in MX: pend += [('pf', 'global_load_dword v27, v55, s[100:101]')]
            if k > 0 and k + 3 < 20: pend = a_load(k + 3) + pend
        elif k == 16:
            a('s_waitcnt vmcnt(%d) lgkmcnt(8)' % vm.cnt(ids['kvp']))
            gate(kv_poll0, 64, 4, 1, 63)
            pend += kv_dma('s_add_u32 m0, s59, 0', V_LANE16, sBASE, 'k0') + kv_dma('s_add_u32 m0, s59, 16384', V_LANE16, sS1, 'k1')
            pend += kv_dma('s_add_u32 m0, s59, 32768', V_LANE16, sK0, 'k2') + kv_dma('s_add_u32 m0, s59, 65536', V_LANE16V, sBASE, 'v0')
            pend += kv_dma('s_add_u32 m0, s59, 49152', V_LANE16, sK1, 'k3') + kv_dma('s_add_u32 m0, s59, %d' % (65536 + 16384), V_LANE16V, sS1, 'v1')
            vq = qe; vper = 3
        else: a('s_waitcnt lgkmcnt(8)')
        for n in range(8 * part, 8 * part + 8):
            if n % 8 == 4: a('s_waitcnt lgkmcnt(%d)' % (8 if k < 19 else 0))
            if k == 0 and n == 8: assert len(vq) <= 96
            if k == 0 and n == 12: assert not vq
            for qi in range(4):
                d = vr(P_ACCV + (n * 4 + qi) * 4, 4) if n < 8 else ar(P_ACCA + ((n - 8) * 4 + qi) * 4, 4)
                a('%s %s, %s, %s, %s' % (MF16, d, wfr(k, n), ar(base + 4 * qi, 4), '0' if k == 0 else d))
                if qi < 3:
                    while pend and pend[0] == 's_nop 0': pend.pop(0)
                    if pend and (qi != 1 or not vq) and (isinstance(pend[0], str) or gcnt - lastv >= P2SP):
                        if not isinstance(pend[0], str): lastv = gcnt
                        a(issue(pend.pop(0)))
                gcnt += 1
                for _ in range(vper if qi < 3 else vper - 2):
                    if vq: a(vq.pop(0))
            if k + 1 < 20:
                if n == 0 and ks == 1:
                    assert not any(x[0] == ('w', st + 1) for x in pend if not isinstance(x, str))
                    a('s_waitcnt vmcnt(%d) lgkmcnt(0)' % min(63, vm.cnt(ids[('w', st + 1)])))
                    a('s_barrier')
                    if st + 3 < 10: pend = pend + w_dma(st + 3, 4)
                for s in w_read(k + 1, n): a(s)
        if part == 1 and k < 16: stamp(a, 1 + k, 'p2a')
        if hi_ >= 24: stamp(a, hi_ - 23, 'p2b')
    assert not pend and not vq
    stamp(a, 7); cstamp(a, 4); padp(a, 'p2')
    a('s_waitcnt vmcnt(%d)' % vm.cnt(max(ids['k2'], ids['v0'])))
    stamp(a, 8)
    a('s_barrier')
    hx = []
    for j_ in range(8):
        s, qi = j_ // 4, j_ % 4
        T = 192 + 20 * (j_ % 3)
        for cc in range(2):
            g = P_ACCA + ((2 * s + cc) * 4 + qi) * 4
            hx += ['v_accvgpr_read_b32 v%d, a%d' % (T + 8 * cc + e, g + e) for e in range(4)] + ['v_accvgpr_read_b32 v%d, a%d' % (T + 8 * cc + 4 + e, g + 64 + e) for e in range(4)]
            hx += ['v_mul_f32 v%d, v%d, v%d' % (T + 8 * cc + e, T + 8 * cc + e, T + 8 * cc + 4 + e) for e in range(4)]
            hx += ['v_cvt_pk_bf16_f32 v%d, v%d, v%d' % (T + 16 + 2 * cc + e, T + 8 * cc + 2 * e, T + 8 * cc + 2 * e + 1) for e in range(2)]
        hx.append('buffer_store_dwordx4 %s, v%d, %s, s%d offen %s' % (vr(T + 16, 4), (P_X0, P_X1)[qi % 2], sr(WS, 4), 8 + qi // 2 + 2 * s, WT))
    hx += ['%s %s, %s, %s, 0' % (MFMA, ar(16 * j_, 16), vr(NEGM, 4), vr(NEGM, 4)) for j_ in range(8)]
    hx += [kv_poll]
    def kread(i, p): return 'ds_read_b128 %s, v%d offset:%d' % (ar(A_RING + 4 * (i % R), 4), V_KRD, p * 16384 + i * 1024)
    def vread(i, p): return 'ds_read_b128 %s, v%d offset:%d' % (ar(A_RING + 4 * (i % R), 4), V_VRD, p * 16384 + i * 1024)
    for i in range(D): a(kread(i, 0))
    for s_ in hx[:16]: a(s_)
    hx = hx[16:]
    stamp(a, 9); stamp(a, 1, 'p3')
    def prefill(st, p, tau, dyn=False):
        qb = 1 - tau
        sref = sW if tau == 0 else s2W
        big = sDYN if dyn else sBIG
        out = []
        for kb in range(4):
            S = SB[st][p] + (kb * 2 + qb) * 4
            L = ['s_cmp_eq_u32 s%d, %d' % (sref, kb), 's_cselect_b32 s%d, s%d, 0' % (sM0, big)]
            t = NEGM + (st * 2 + qb) * 4
            if kb > 0:
                L += ['s_cmp_lt_u32 s%d, %d' % (sref, kb), 's_cselect_b32 s%d, s%d, 0' % (sM1, big), 'v_add_f32 v%d, s%d, v%d' % (V_T1, sM1, t)]
                t = V_T1
            L += ['v_fma_f32 v%d, v%d, s%d, v%d' % (S + r, TRI + r, sM0, t) for r in range(4)]
            out.append('\n'.join(L))
        return out
    def qk_mf(sets, p):
        G = []
        for f in range(16):
            kb, ds = f // 4, f % 4; L = []
            for st, qbs, inq in sets:
                for qb in qbs:
                    d = vr(SB[st][p] + (kb * 2 + qb) * 4, 4)
                    c = vr(NEGM + (st * 2 + qb) * 4, 4) if (ds == 0 and inq != qb) else d
                    L.append('%s %s, %s, %s, %s' % (MF16, d, ar(A_RING + 4 * (f % R), 4), ar(A_Q[st] + (qb * 4 + ds) * 4, 4), c))
            G.append(L)
        return G
    def pv_mf(sets, p):
        G = []
        for f in range(16):
            ks, db = f // 8, f % 8; L = []
            for st, qbs in sets:
                for qb in qbs:
                    d = ar(A_O[st] + (db * 2 + qb) * 4, 4)
                    L.append('%s %s, %s, %s, %s' % (MF16, d, ar(A_RING + 4 * (f % R), 4), vr(PB[st][p] + (qb * 2 + ks) * 4, 4), d))
            G.append(L)
        return G
    def pre_items(pf):
        a(pf[0]); a('s_nop 1')
        return [dict(lo=max(0, 4 * kb - 5), hi=4 * kb - 3, ins=pf[kb]) for kb in range(1, 4)]
    LGS = int(os.environ.get('LGS', 4)); LGW = int(os.environ.get('LGW', 0))
    rare_sites = []
    pk = Packer(a)
    def lg_items(n, skip_last):
        return [dict(lo=i - LGW, hi=i, lg=i + LGS) for i in range(LGS - 1, n, LGS) if not (i == n - 1 and skip_last)]
    def ladds(ex):
        return ['v_add_f32 v%d, v%d, v%d' % (V_L + st * 2 + qb, V_L + st * 2 + qb, LT + (st * 2 + qb) * 4) for st, qbs in ex for qb in qbs]
    def iteration(p, qk, ex, pv, prev_ex, nxt='k', dk=True, dv=True, loop_ctr=None, post_bar=(), mid=(), anyw=(), wv=None, pf=None, anylo=2, vx=0, lt=False):
        groups = []; rs = []
        pfi = pre_items(pf) if pf else []
        if qk:
            groups += qk_mf(qk, p); rs += [kread(i, p) for i in range(16)]
        groups += pv_mf(pv, p); rs += [vread(i, p) for i in range(16)]
        n = len(groups)
        nx = {'k': [kread(i, 1 - p) for i in range(D)], 'v': [vread(i, 1 - p) for i in range(D)], None: [None] * D}[nxt]
        rds = rs[D:] + nx
        bg = n - D
        it = [dict(lo=0, hi=0, ins=s, v=True) for s in ladds(prev_ex)] + pfi
        nd = 0
        if wv is None: gv, gm, gk, sl = {'0': ((2, 4, 5, 6), 8, (10, 12, 14, 16), 1), '1': ((1, 3, 5, 7), 8, (10, 12, 14, 16), 0), '2': ((1, 4, 6, 8), 9, (11, 13, 16, 18), 0)}[os.environ.get('DPOS', '0')]
        else:
            pos = [2 + 4 * j + wv for j in range(8)]
            gv = [x // 2 for x in pos[:4]]; gk = [x // 2 + 1 for x in pos[4:]]; gm = gv[3] + 1; sl = 0
        late = wv is not None and wv % 2 == 1
        if dv:
            it.append(dict(lo=0, hi=0 if gv[0] == 1 else 1, ins='s_sub_u32 m0, s%d, s%d' % ((sC0, sC1)[p], sT)))
            for j, i in enumerate(gv):
                it.append(dict(lo=i + (1 if late else 0), hi=i + sl, ins='buffer_load_dwordx4 v%d, %s, s%d offen offset:%d lds' % (V_LANE16V, sr(WS, 4), (sK0, sK1)[p], 1024 * j)))
            nd += 4
        if dk:
            it.append(dict(lo=gm, hi=gm + 1, ins='s_add_u32 m0, s%d, %d' % (sT, p * 16384)))
            it.append(dict(lo=gm, hi=gm + 1, ins='s_add_u32 s%d, s%d, 32768' % ((sK0, sK1)[p], (sK0, sK1)[1 - p])))
            for j, i in enumerate(gk):
                it.append(dict(lo=i + (1 if late else 0), hi=i + sl, ins='buffer_load_dwordx4 v%d, %s, s%d offen offset:%d lds' % (V_LANE16, sr(WS, 4), (sK0, sK1)[p], 1024 * j)))
            nd += 4
        if lt:
            vreg, ptr, step, lim = ((63, 14, 7 * 1024 * 128, SIZE['wo'] - 128), (62, 22, 3 * 1024 * 128, SIZE['wd'] - 128))[p]
            it.append(dict(lo=bg, hi=bg + 2, ins='global_load_dword v7, v%d, s[%d:%d]' % (vreg, ptr, ptr + 1)))
            it.append(dict(lo=bg + 3, hi=n - 2, ins='v_add_u32 v%d, 0x%x, v%d' % (vreg, step, vreg), v=True))
            it.append(dict(lo=bg + 3, hi=n - 1, ins='v_min_u32 v%d, 0x%x, v%d' % (vreg, lim, vreg), v=True))
            vx += 1
        nd += sum(1 for s in mid if s.startswith('buffer_'))
        if p == 1:
            if qk: it.append(dict(lo=16 - D, hi=bg - 1, ins='v_xor_b32 v%d, 32768, v%d' % (V_KRD, V_KRD), v=True))
            it.append(dict(lo=bg - 1 if nxt == 'v' else bg, hi=bg - 1 if nxt == 'v' else n - 1, ins='v_xor_b32 v%d, 32768, v%d' % (V_VRD, V_VRD), v=True))
            it.append(dict(lo=13, hi=n - 1, ins='s_xor_b32 s%d, s%d, 32768' % (sT, sT)))
        if nxt is not None:
            it.append(dict(lo=bg - 3, hi=bg - 2, ins='s_waitcnt vmcnt(%d)' % (nd + vx)))
            it.append(dict(lo=bg - 1, hi=bg - 1, ins='s_barrier'))
        it += lg_items(n, nxt is None)
        it.sort(key=lambda x: (x['hi'], x['lo']))
        for j, s in enumerate(mid):
            g_ = 9 + (j * (bg - 4 - 9)) // len(mid)
            it.append(dict(lo=g_, hi=bg - 4, ins=s))
        for j, s in enumerate(anyw):
            it.append(dict(lo=anylo, hi=n - 1, ins=s))
        lo0 = bg if nxt is not None else 0
        for j, s in enumerate(post_bar):
            it.append(dict(lo=lo0 + (j * (n - lo0)) // len(post_bar), hi=n - 1, ins=s))
        fin = []
        if ex:
            lts = [LT + (st * 2 + qb) * 4 for st, qbs in ex for qb in qbs]
            cur = lts[0]
            if len(lts) == 2: fin.append('v_max_f32 v%d, v%d, v%d' % (V_T0, lts[0], lts[1])); cur = V_T0
            if len(lts) >= 3: fin.append('v_max3_f32 v%d, v%d, v%d, v%d' % (V_T0, lts[0], lts[1], lts[2])); cur = V_T0
            if len(lts) == 4: fin.append('v_max_f32 v%d, v%d, v%d' % (V_T0, V_T0, lts[3]))
            fin.append('v_cmp_lt_f32 vcc, s%d, v%d' % (sTHR, cur))
        pk.run(groups, rds, it, [(st, 1 - p, qbs) for st, qbs in ex], [], fin, (1, p) if qk else None, True)
        if loop_ctr: a('s_sub_u32 s%d, s%d, 1' % (loop_ctr[0], loop_ctr[0]))
        if ex:
            stub, back = a.newlabel(name + '_rs'), a.newlabel(name + '_rb')
            a('s_cbranch_vccnz %s' % stub)
            a.label(back)
            rare_sites.append((stub, back, 1 - p, ex))
        if loop_ctr: a('s_cbranch_scc0 %s' % loop_ctr[1])
    def epilogue(st):
        a('s_lshl_b32 s%d, s%d, 10' % (sE0, sQ[st]))
        a('s_lshl_b32 s%d, s%d, 19' % (sE1, sH))
        a('s_add_u32 s%d, s%d, s%d' % (sE0, sE0, sE1))
        a('s_add_u32 s%d, s%d, 0x%x' % (sE0, sE0, WS_CTX))
        a('s_lshl_b32 s%d, s%d, 10' % (sM1, sW))
        a('s_sub_u32 s%d, s%d, s%d' % (sM0, sE0, sM1)); a('s_add_u32 s%d, s%d, 7168' % (sM0, sM0))
        a('s_add_u32 s%d, s%d, s%d' % (sM1, sE0, sM1))
        a('v_rcp_f32 v%d, v%d' % (V_T0, V_L + st * 2))
        a('v_rcp_f32 v%d, v%d' % (V_T1, V_L + st * 2 + 1))
        a('s_nop 1')
        c3 = 0
        for s in range(4):
            for qb in range(2):
                T = SB[st][0] + 16 * (c3 % 4); c3 += 1
                for cc in range(2):
                    for e in range(4): a('v_accvgpr_read_b32 v%d, a%d' % (T + 4 * cc + e, A_O[st] + ((2 * s + cc) * 2 + qb) * 4 + e))
                for e in range(8): a('v_mul_f32 v%d, v%d, v%d' % (T + e, T + e, (V_T0, V_T1)[qb]))
                for e in range(4): a('v_cvt_pk_bf16_f32 v%d, v%d, v%d' % (T + 8 + e, T + 2 * e, T + 2 * e + 1))
                a('s_add_u32 s%d, s%d, %d' % (sE1, (sM0, sM1)[qb], s * 128 * 1024))
                a(issue(('ctx', 'buffer_store_dwordx4 %s, v%d, %s, s%d offen %s' % (vr(T + 8, 4), V_LANE16, sr(WS, 4), sE1, WT))))
    AH, AC, WD4, WO4, X4, OUT = R1, R2, R3, R4, R5, 4
    sRO, sRT, sCT4, sAC, sWW, sVAL, sXO, sSW, sLD, sW2, sAC0, sWW0 = 8, 9, 10, 11, 12, 74, 13, 18, 19, 20, 26, 27
    sS1, sS0, sR0, sR1 = 16, 17, 21, 62
    WS_EX = 0x8000000
    FX = WS_FLG + 65536
    a_real = a; a = Asm()
    a('s_lshr_b32 s67, s2, 3')
    a('s_cmp_lt_u32 s67, 30'); a('s_cselect_b32 s%d, 1, 0' % sVAL)
    a('s_min_u32 s67, s67, 29')
    a('s_mul_i32 s68, s67, 205'); a('s_lshr_b32 s68, s68, 10')
    a('s_mul_i32 s69, s68, 5'); a('s_sub_u32 s%d, s67, s69' % sCT4)
    a('s_and_b32 s69, s2, 7'); a('s_lshl_b32 s69, s69, 2'); a('s_lshr_b32 s69, %s, s69' % os.environ.get('GMAP', '0x07362514')); a('s_and_b32 s69, s69, 7')
    a('s_mul_i32 s69, s69, 6'); a('s_add_u32 s69, s69, s68')
    a('s_lshr_b32 s%d, s69, 4' % sRO); a('s_and_b32 s%d, s69, 15' % sRT)
    for s in srd('x', X4) + srd('out', OUT): a(s)
    a('s_add_u32 s70, s%d, 2' % sRO); a('s_cmp_eq_u32 s%d, 0' % sRO); a('s_cselect_b32 s71, 0, 3'); a('s_sub_u32 s70, s70, s71')
    a('s_cmp_eq_u32 s%d, 0' % sRO); a('s_cselect_b32 s71, 40, 44'); a('s_mul_i32 s71, s71, s%d' % sVAL)
    a('s_mul_i32 s67, s%d, %d' % (sRO, 18 * 131072)); a('s_add_u32 s67, s67, 0x%x' % WS_H)
    a('s_add_u32 s%d, s28, s67' % AH); a('s_addc_u32 s%d, s29, 0' % (AH + 1)); a('s_mul_i32 s%d, s%d, %d' % (AH + 2, sVAL, 18 * 131072))
    a('s_mul_i32 s67, s70, %d' % (44 * 131072)); a('s_add_u32 s67, s67, 0x%x' % WS_CTX)
    a('s_add_u32 s%d, s28, s67' % AC); a('s_addc_u32 s%d, s29, 0' % (AC + 1)); a('s_lshl_b32 s%d, s71, 17' % (AC + 2))
    a('s_mul_i32 s67, s%d, %d' % (sRO, 18 * 32 * 1280))
    a('s_add_u32 s%d, s22, s67' % WD4); a('s_addc_u32 s%d, s23, 0' % (WD4 + 1)); a('s_mul_i32 s%d, s%d, %d' % (WD4 + 2, sVAL, 18 * 32 * 1280))
    a('s_mul_i32 s67, s70, %d' % (44 * 32 * 1280))
    a('s_add_u32 s%d, s14, s67' % WO4); a('s_addc_u32 s%d, s15, 0' % (WO4 + 1)); a('s_mul_i32 s%d, s71, %d' % (WO4 + 2, 32 * 1280))
    for r_ in (AH, AC, WD4, WO4): a('s_mov_b32 s%d, 0x00020000' % (r_ + 3))
    a('s_cmp_eq_u32 s%d, 2' % sRO); a('s_cselect_b32 s%d, 1, 0' % sSW)
    VA0, VA1, VWO, VRD, VX, VPL = 16, 17, 18, 32, 20, 200
    a('s_lshl_b32 s%d, s%d, 2' % (sAC, sRT)); a('s_add_u32 s%d, s%d, s%d' % (sAC, sAC, sW))
    a('s_lshl_b32 s67, s%d, 1' % sAC); a('s_add_u32 s67, s67, s%d' % sSW)
    a('s_mul_i32 s%d, s67, %d' % (sXO, 16 * 1280)); a('s_lshl_b32 s68, s%d, 8' % sCT4); a('s_add_u32 s%d, s%d, s68' % (sXO, sXO))
    a('s_lshl_b32 s%d, s%d, 11' % (sAC, sAC)); a('s_mov_b32 s%d, s%d' % (sAC0, sAC))
    a('s_lshl_b32 s67, s%d, 10' % sSW)
    a('v_add_u32 v%d, s67, v%d' % (VA0, V_LANE16))
    a('v_xor_b32 v%d, 1024, v%d' % (VA1, VA0))
    a('s_mul_i32 s%d, s%d, %d' % (sWW, sW, 16 * 1280)); a('s_add_u32 s%d, s%d, s68' % (sWW, sWW)); a('s_mov_b32 s%d, s%d' % (sWW0, sWW))
    a('v_lshrrev_b32 v5, 3, v0'); a('v_mul_u32_u24 v5, 1280, v5')
    a('v_bfe_u32 v6, v0, 1, 2'); a('v_bfe_u32 v7, v0, 4, 2'); a('v_xor_b32 v6, v6, v7')
    a('v_lshl_add_u32 v5, v6, 5, v5'); a('v_and_b32 v6, 1, v0')
    a('v_lshl_add_u32 v%d, v6, 4, v5' % VWO)
    a('v_add_u32 v%d, %d, v%d' % (VWO + 1, 8 * 1280 - 1024, VWO))
    a('v_lshrrev_b32 v5, 2, v0'); a('v_lshlrev_b32 v5, 7, v5'); a('v_and_b32 v6, 3, v0'); a('v_lshl_add_u32 v5, v6, 3, v5')
    a('v_bfe_u32 v6, v0, 3, 2')
    for c in range(4):
        a('v_xor_b32 v7, %d, v6' % c)
        a('v_lshl_add_u32 v%d, v7, 5, v5' % (VRD + c))
        a('v_add_u32 v%d, 65536, v%d' % (VRD + 4 + c, VRD + c))
    a('v_lshrrev_b32 v5, 4, v0'); a('v_mul_u32_u24 v5, 5120, v5'); a('v_and_b32 v6, 15, v0')
    a('v_lshl_add_u32 v%d, v6, 4, v5' % VX)
    a('v_and_b32 v%d, 0x1f0, v%d' % (VPL, V_LANE16))
    a('s_mul_i32 s67, s%d, 4608' % sW)
    a('v_and_b32 v5, 15, v0'); a('v_mul_u32_u24 v5, 272, v5'); a('v_lshrrev_b32 v6, 4, v0'); a('v_lshl_add_u32 v5, v6, 3, v5')
    a('v_add_u32 v21, s67, v5')
    a('v_mul_u32_u24 v6, 1088, v6'); a('v_and_b32 v5, 15, v0'); a('v_lshl_add_u32 v5, v5, 4, v6')
    a('v_add_u32 v23, s67, v5')
    a('s_sub_u32 s67, 15, s%d' % sRT); a('s_min_u32 s67, s67, s%d' % sRT)
    a('s_lshl_b32 s79, s67, 9'); a('s_add_u32 s79, s79, 0x%x' % FH)
    a('s_lshl_b32 s76, s%d, 9' % sRT); a('s_add_u32 s76, s76, 0x%x' % FC)
    a('s_mul_i32 s67, s%d, 5' % sRT); a('s_add_u32 s67, s67, s%d' % sCT4)
    a('s_lshl_b32 s68, s67, 2'); a('s_add_u32 s68, s68, s%d' % sW)
    a('s_lshl_b32 s75, s68, 10'); a('s_add_u32 s75, s75, 0x%x' % FX)
    a('s_lshl_b32 s68, s68, 16'); a('s_add_u32 s68, s68, 0x%x' % WS_EX)
    a('s_add_u32 s67, s%d, 1' % sRO); a('s_lshl_b32 s67, s67, 13'); a('s_add_u32 s%d, s68, s67' % sS1)
    a('s_cmp_eq_u32 s%d, 0' % sRO); a('s_cselect_b32 s%d, s68, 0x20000000' % sS0)
    a('s_cmp_eq_u32 s%d, 0' % sVAL); a('s_cselect_b32 s%d, 0x20000000, s%d' % (sS0, sS0)); a('s_cselect_b32 s%d, 0x20000000, s%d' % (sS1, sS1))
    a('s_lshl_b32 s67, s%d, 13' % sSW); a('s_add_u32 s%d, s68, s67' % sR0)
    a('s_sub_u32 s67, 3, s%d' % sSW); a('s_lshl_b32 s67, s67, 13'); a('s_add_u32 s%d, s68, s67' % sR1)
    a('s_cmp_eq_u32 s%d, 0' % sRO); a('s_cselect_b32 s%d, 0x20000000, s%d' % (sR0, sR0)); a('s_cselect_b32 s%d, 0x20000000, s%d' % (sR1, sR1))
    a('s_lshl_b32 s56, s%d, 7' % sRO); a('s_add_u32 s56, s56, s75')
    a('s_sub_u32 s67, 3, s%d' % sRO); a('s_cmp_eq_u32 s%d, 0' % sRO); a('s_cselect_b32 s67, 0, s67'); a('s_lshl_b32 s67, s67, 7')
    a('v_and_b32 v22, 1, v0'); a('v_mul_u32_u24 v22, s67, v22')
    a('s_lshl_b32 s%d, s%d, 11' % (sLD, sW))
    for c in range(4): a('v_add_u32 v%d, 131072, v%d' % (196 + c, VRD + c))
    setup4 = [re.sub(r'\bv([567])\b', lambda m: 'v%d' % (64 + int(m.group(1))), l.strip()) for l in a.lines]
    a = a_real
    grp4 = []
    for l in setup4:
        if l.startswith('s_cselect') or l.startswith('s_addc'): grp4[-1] += '\n' + l
        else: grp4.append(l)
    h_poll = 'buffer_load_dwordx4 v[192:195], v%d, %s, s79 offen %s' % (VPL, sr(WS, 4), WT)
    c_poll = 'buffer_load_dwordx4 v[24:27], v%d, %s, s76 offen %s' % (VPL, sr(WS, 4), WT)
    b_poll = 'buffer_load_dword v24, v22, %s, s75 offen %s' % (sr(WS, 4), WT)
    s_poll = 'buffer_load_dword v24, v22, %s, s75 offen offset:512 %s' % (sr(WS, 4), WT)
    WF4 = 64; ND4 = 18; NK = 62; LA4 = 15
    def accB(n, q): return 128 + (q * 8 + n) * 4
    def accS(n, q): return 192 + (q * 8 + n) * 4
    def act4(k, q): r = k % 16; return (r * 8 + q * 4) if r < 8 else (128 + (r - 8) * 8 + q * 4)
    def wslot(st): return 131072 + st * 16384 if st < 2 else ((st - 2) % 8) * 16384
    def w4_dma(st):
        L = []
        if st == ND4 // 2: L.append('s_mov_b32 s%d, s%d' % (sWW, sWW0))
        r_ = WD4 if st < ND4 // 2 else WO4
        for m in range(2):
            L += ['s_add_u32 m0, s%d, %d' % (sLD, wslot(st) + m * 8192), 's_nop 0' if m == 0 else 's_add_u32 s%d, s%d, 128' % (sW2, sWW)]
            L += [(('w4', st), 'buffer_load_dwordx4 v%d, %s, s%d offen offset:%d lds' % (VWO + j, sr(r_, 4), sWW if m == 0 else sW2, 1024 * j)) for j in range(2)]
        L.append('s_add_u32 s%d, s%d, %d' % (sWW, sWW, 64 * 1280))
        return L
    def a4_load(k):
        L = ['s_mov_b32 s%d, s%d' % (sAC, sAC0)] if k == ND4 else []
        return L + [(('a4', k), 'buffer_load_dwordx4 %s, v%d, %s, s%d offen' % (ar(act4(k, q), 4), (VA0, VA1)[q], sr(AH if k < ND4 else AC, 4), sAC)) for q in range(2)] + \
               ['s_add_u32 s%d, s%d, %d' % (sAC, sAC, 128 * 1024)]
    def w4_read(k, n):
        ad, ks = wslot(k // 2), k % 2
        reg = (VRD, VRD + 4, 196)[ad // 65536]
        return ['ds_read_b64_tr_b16 %s, v%d offset:%d' % (vr(WF4 + 4 * n + 2 * r, 2), reg + n % 4, ad % 65536 + (n // 4) * 8192 + (32 * ks + 16 * r) * 128) for r in range(2)]
    PK = 112
    def packs(accf):
        L = []
        for q in (1, 0):
            for n in range(8):
                dst = (accf(0, 1) if q else PK) + 2 * n
                L += ['v_cvt_pk_bf16_f32 v%d, v%d, v%d' % (dst + h, accf(n, q) + 2 * h, accf(n, q) + 2 * h + 1) for h in range(2)]
        return L
    def sends(accf, tag):
        return [(tag, 'buffer_store_dwordx4 %s, v%d, %s, s%d offen offset:%d %s' % (vr((accf(0, 1) if q else PK) + 4 * j, 4), V_LANE16, sr(WS, 4), (sS0, sS1)[q], j * 1024, WT))
                for q in (1, 0) for j in range(4)]
    def recvs(dst, tag):
        return [(tag, 'buffer_load_dwordx4 %s, v%d, %s, s%d offen offset:%d' % (vr(dst + 16 * src_ + 4 * j, 4), V_LANE16, sr(WS, 4), (sR0, sR1)[src_], j * 1024))
                for j in range(4) for src_ in range(2)]
    def unp_add(B, dst, n, T):
        L = []
        for src_ in range(2):
            for h in range(2):
                r = dst + 16 * src_ + 2 * n + h
                L += ['v_lshlrev_b32 v%d, 16, v%d' % (T + 2 * h, r), 'v_and_b32 v%d, s65, v%d' % (T + 2 * h + 1, r)]
            L += ['v_add_f32 v%d, v%d, v%d' % (B + e, B + e, T + e) for e in range(4)]
        return L
    XR4 = 96
    xl = [('x4', 'buffer_load_dwordx4 %s, v%d, %s, s%d offen offset:%d' % (vr(XR4 + 4 * j, 4), VX, sr(X4, 4), sXO, 1280 * j)) for j in range(4)]
    F = (0, 1); H_ = (0,)
    pfi = pre_items(prefill(0, 0, 0, dyn=True))
    a('s_waitcnt lgkmcnt(%d)' % (D - LGS))
    rds = [kread(i, 0) for i in range(D, 16)] + [kread(i, 1) for i in range(D)]
    it = lg_items(16, False) + pfi; it.sort(key=lambda x: (x['hi'], x['lo']))
    pk.run(qk_mf([(1, F, None), (0, F, 1)], 0), rds, it, [], hx, [], None, False)
    a('s_nop 3'); stamp(a, 2, 'p3')
    for st in range(2):
        for qb in range(2):
            for s in max_ops(st, 0, qb, V_T0, V_T1): a(s)
            for e in range(4): a('v_sub_f32 v%d, 0, v%d' % (NEGM + (st * 2 + qb) * 4 + e, V_T0))
    pfi = pre_items(prefill(0, 1, 1, dyn=True))
    rds = [kread(i, 1) for i in range(D, 16)] + [kread(i, 0) for i in range(D)]
    it = lg_items(16, False) + pfi + [dict(lo=16 - D - 1, hi=16 - D - 1, ins='v_xor_b32 v%d, 32768, v%d' % (V_KRD, V_KRD), v=True)]
    it.sort(key=lambda x: (x['hi'], x['lo']))
    pk.run(qk_mf([(1, F, None), (0, F, 0)], 1), rds, it, [(1, 0, F), (0, 0, F)], [], [], (1, 1), False, sub=True)
    a('s_waitcnt vmcnt(0)')
    a(flag_store(76)[1])
    gate(kv_poll, 208, 4, 1, 63)
    LTO = 'w' in MX
    if LTO:
        a('s_lshl_b32 s67, s2, 2'); a('s_add_u32 s67, s67, s%d' % sW)
        a('s_mul_i32 s68, s67, 7'); a('v_min_u32 v63, 6, v0'); a('v_add_u32 v63, s68, v63'); a('v_lshlrev_b32 v63, 7, v63')
        a('s_mul_i32 s68, s67, 3'); a('v_min_u32 v62, 2, v0'); a('v_add_u32 v62, s68, v62'); a('v_lshlrev_b32 v62, 7, v62')
    stamp(a, 10); cstamp(a, 5); stamp(a, 3, 'p3')
    lA, lA_skip, lA_tail2 = name + '_loopA', name + '_skipA', name + '_tail2A'
    a('s_cmp_eq_u32 s%d, 0' % sI)
    a('s_cbranch_scc1 %s' % lA_tail2)
    a('s_sub_u32 s%d, s%d, 2' % (sCNT, sI))
    a('s_cbranch_scc1 %s' % lA_skip)
    cstamp(a, 3, 'cyb')
    a.raw('.p2align 6')
    a.label(lA)
    qB = (1, F, None); BA = [(1, F), (0, F)]; B_ = [(1, F)]; BAh = [(1, F), (0, H_)]; Bh = [(1, H_)]
    iteration(0, [qB, (0, F, None)], BA, BA, BA, lt=LTO)
    iteration(1, [qB, (0, F, None)], BA, BA, BA, loop_ctr=(sCNT, lA), lt=LTO)
    cstamp(a, 4, 'cyb')
    a.label(lA_skip)
    stamp(a, 4, 'p3')
    iteration(0, [qB, (0, F, 1)], BA, BA, BA, pf=prefill(0, 0, 0))
    stamp(a, 5, 'p3')
    iteration(1, [qB, (0, H_, 0)], BA, BA, BA, pf=prefill(0, 1, 1))
    a.label(lA_tail2)
    stamp(a, 6, 'p3')
    l7, lBtail2 = name + '_i7', name + '_tail2B'
    a('s_cmp_eq_u32 s%d, 7' % sI)
    a('s_cbranch_scc1 %s' % l7)
    def txt(L): return [x if isinstance(x, str) else x[1] for x in L]
    acts = [a4_load(k) for k in range(16)]
    E1 = txt(xl); E2 = txt(w4_dma(0) + acts[0] + acts[1] + acts[2]); E3 = txt(w4_dma(1) + acts[3] + acts[4] + acts[5])
    E4 = txt(acts[6] + acts[7] + acts[8] + acts[9] + acts[10] + acts[11])
    wt = ['s_lshl_b32 s67, s2, 2', 's_add_u32 s67, s67, s%d' % sW, 's_mul_i32 s68, s67, 46', 'v_min_u32 v72, 45, v0', 'v_add_u32 v72, s68, v72',
          'v_min_u32 v72, 40959, v72', 'v_lshlrev_b32 v72, 7, v72', 'global_load_dword v63, v72, s[14:15]',
          's_mul_i32 s68, s67, 20', 'v_min_u32 v73, 19, v0', 'v_add_u32 v73, s68, v73', 'v_min_u32 v73, 17279, v73', 'v_lshlrev_b32 v73, 7, v73',
          'global_load_dword v63, v73, s[22:23]']
    iteration(0, [qB], BAh, BA, BA, post_bar=(() if 'w' in MX else wt))
    stamp(a, 7, 'p3')
    iteration(1, [qB], B_, BAh, BAh, anyw=grp4 + [h_poll], vx=(0 if 'w' in MX else 2))
    stamp(a, 8, 'p3')
    epilogue(0)
    stamp(a, 9, 'p3')
    a('s_waitcnt vmcnt(8)')
    gate(h_poll, 192, 4, 1, 63)
    lB = name + '_loopB'
    a('s_lshl_b32 s%d, s%d, 1' % (sCNT, sI))
    a('s_sub_u32 s%d, 12, s%d' % (sCNT, sCNT))
    cstamp(a, 5, 'cyb'); stamp(a, 10, 'p3')
    a.raw('.p2align 6')
    a.label(lB)
    iteration(0, [qB], B_, B_, B_, lt=LTO)
    iteration(1, [qB], B_, B_, B_, loop_ctr=(sCNT, lB), lt=LTO)
    cstamp(a, 6, 'cyb'); stamp(a, 11, 'p3')
    if 'C' not in MX:
        E1 = E1 + ['s_getpc_b64 s[70:71]\n%s_pc2:\ns_add_u32 s70, s70, %s_tail2B-%s_pc2\ns_addc_u32 s71, s71, 0' % (name, name, name),
                   's_lshr_b32 s67, s2, 3', 's_lshl_b32 s67, s67, 2', 's_add_u32 s67, s67, s%d' % sW, 's_lshl_b32 s67, s67, 9',
                   'v_and_b32 v63, 3, v0', 'v_lshlrev_b32 v63, 7, v63', 'v_add_u32 v63, s67, v63', 'v_min_u32 v63, %s_codeend-%s_tail2B-4, v63' % (name, name),
                   'global_load_dword v63, v63, s[70:71]']
        E1b = E1[:4]
    else: E1b = E1
    iteration(0, [(1, F, 1)], B_, B_, B_, dk=False, mid=E1, post_bar=E2, pf=prefill(1, 0, 0))
    stamp(a, 12, 'p3')
    iteration(1, [(1, H_, 0)], B_, B_, B_, dk=False, nxt='v', mid=E3, post_bar=E4, pf=prefill(1, 1, 1), vx=sum(1 for s_ in E2 if s_.startswith('buffer_')) + sum(1 for s_ in E1 if s_.startswith('buffer_')))
    a('s_branch %s' % lBtail2)
    a.label(l7)
    iteration(0, [(1, F, 1)], BAh, BA, BA, dk=False, pf=prefill(1, 0, 0))
    iteration(1, [(1, H_, 0)], B_, BAh, BAh, dk=False, nxt='v', anyw=grp4 + [h_poll], pf=prefill(1, 1, 1), anylo=10)
    epilogue(0)
    a('s_waitcnt vmcnt(8)')
    gate(h_poll, 192, 4, 1, 63)
    for s_ in E2 + E3 + E4 + E1b: a(s_)
    a.label(lBtail2)
    stamp(a, 11); cstamp(a, 6); stamp(a, 13, 'p3')
    vm.n = 0; ids = {}
    for k in range(12): ids[('a4', k)] = -100
    ids[('w4', 0)] = ids[('w4', 1)] = -100
    sent = ['v_mov_b32 v%d, -1' % (116 + e) for e in range(4)] + ['s_add_u32 s67, s%d, 32768' % sS0, 's_add_u32 s68, s%d, 32768' % sS1]
    sent += [('sn', 'buffer_store_dwordx4 v[116:119], v%d, %s, s%d offen offset:%d %s' % (V_LANE16, sr(WS, 4), 67 + q, j * 1024, WT)) for j in range(4) for q in range(2)]
    e1 = [flag_store(77)[1]] + [issue(it) for it in w4_dma(2) + w4_dma(3) + sent]
    iteration(0, None, Bh, B_, B_, dk=False, dv=False, nxt='v', post_bar=e1)
    stamp(a, 14, 'p3')
    e2 = w4_dma(4) + acts[12] + acts[13] + w4_dma(5) + acts[14]
    iteration(1, None, [], Bh, Bh, dk=False, dv=False, nxt=None, post_bar=[issue(it) for it in e2])
    stamp(a, 12); stamp(a, 15, 'p3'); padp(a, 'p3')
    epilogue(1)
    stamp(a, 16, 'p3')
    notile = name + '_notile'
    a('s_cmp_eq_u32 s%d, 0' % sVAL)
    a('s_cbranch_scc1 %s' % notile)
    a('s_barrier')
    for n in range(8):
        for s_ in w4_read(0, n): a(s_)
    stamp(a, 13)
    def rnd_l(r0, r1, t):
        return ['v_cvt_pk_bf16_f32 v%d, v%d, v%d' % (t, r0, r1), 'v_lshlrev_b32 v%d, 16, v%d' % (r0, t), 'v_and_b32 v%d, s65, v%d' % (r1, t)]
    def rnd(r0, r1, t):
        for s_ in rnd_l(r0, r1, t): a(s_)
    RBv = accB(0, 1)
    def gate_calc(n):
        B = accB(n, 0); T = 40 + 4 * (n % 2); L = unp_add(B, RBv, n, T)
        for h in range(2): L += rnd_l(B + 2 * h, B + 2 * h + 1, T)
        L += ['v_mul_f32 v%d, s64, v%d' % (T + e, B + e) for e in range(4)]
        L += ['v_exp_f32 v%d, v%d' % (T + e, T + e) for e in range(4)]
        L += ['v_add_f32 v%d, 1.0, v%d' % (T + e, T + e) for e in range(4)]
        L += ['v_rcp_f32 v%d, v%d' % (T + e, T + e) for e in range(4)]
        L += ['v_mul_f32 v%d, v%d, v%d' % (B + e, B + e, T + e) for e in range(4)]
        for h in range(2): L += rnd_l(B + 2 * h, B + 2 * h + 1, T)
        return L
    def x_unpack():
        L = []
        for n in range(8):
            for h in range(2):
                x = XR4 + 2 * n + h; o = accB(n, 1) + 2 * h
                L += ['v_lshlrev_b32 v%d, 16, v%d' % (o, x), 'v_and_b32 v%d, s65, v%d' % (o + 1, x)]
        return L
    a('s_mov_b32 s64, %s' % f2u(-math.log2(math.e)))
    a('s_mov_b32 s65, 0xffff0000')
    pend = w4_dma(6) + w4_dma(7) + w4_dma(8) + w4_dma(9)
    slowq = []
    valq = []
    nxt_a = LA4
    KG = int(os.environ.get('KG', 15)); KCF = int(os.environ.get('KCF', 1)); PDL = 5; CUN = int(os.environ.get('CUN', 9))
    KS0, KFL, KBP, KRC = ND4 + 2, 30, 33, 48
    rbl = recvs(RBv, 'rb')
    for k in range(NK):
        assert not any(x[0] == ('a4', k) for x in pend if not isinstance(x, str))
        need = ids[('a4', k)]
        if k == KCF: need = max(need, ids['ctx'])
        if k == KG: need = max(need, ids['cp'])
        if k in (KFL, KRC): assert not slowq and not any(x[0] in ('sb', 'rb', 'x4') for x in pend if not isinstance(x, str))
        if k == KFL: need = max(need, ids['sb'])
        if k == KBP + PDL: need = max(need, ids['bp'])
        if k == KRC: need = max(need, ids['rb'])
        a('s_waitcnt vmcnt(%d) lgkmcnt(12)' % min(63, vm.cnt(need)))
        if k == KCF: pend = [flag_store(78)] + pend
        if k == KG - 3: pend = [('cp', c_poll)] + pend
        if k == KG: gate(c_poll, 24, 4, 1, 63)
        if k == KS0 - 1: valq += packs(accB)
        if k == KS0:
            assert not valq
            sl = sends(accB, 'sb'); slowq += [x for p_ in zip(sl[:4], sl[4:]) for x in p_]
        if k == KFL:
            pend = [flag_store(56), 's_add_u32 s56, s56, 512', 's_add_u32 s%d, s%d, 32768' % (sS0, sS0), 's_add_u32 s%d, s%d, 32768' % (sS1, sS1)] + pend
        if k == KBP: pend = [('bp', b_poll)] + pend
        if k == KBP + PDL:
            gate(b_poll, 24, 1, 1, 63)
            slowq += rbl
        if k == KRC:
            pend += ['s_add_u32 s%d, s%d, 32768' % (sR0, sR0), 's_add_u32 s%d, s%d, 32768' % (sR1, sR1)]
            for n in range(8): valq += gate_calc(n)
            valq += x_unpack()
        newa = []
        lim = min(NK, k + LA4 + 1) if k >= KG else ND4
        while nxt_a < min(lim, k + LA4 + 1) and len(newa) < CUN:
            newa += a4_load(nxt_a); nxt_a += 1
        pend = newa + slowq[:2] + pend; slowq = slowq[2:]
        accf = accB if k < ND4 else accS
        for n in range(8):
            if n % 2 == 0 and n > 0: a('s_waitcnt lgkmcnt(%d)' % (12 if k < NK - 1 else 2 * (6 - n)))
            for q in range(2):
                d = vr(accf(n, q), 4)
                a('%s %s, %s, %s, %s' % (MF16, d, vr(WF4 + 4 * n, 4), ar(act4(k, q), 4), '0' if k in (0, ND4) else d))
                if q == 0:
                    while pend and pend[0] == 's_nop 0': pend.pop(0)
                    if pend: a(issue(pend.pop(0)))
                    if pend and isinstance(pend[0], str) and pend[0] != 's_nop 0': a(pend.pop(0))
                    for _ in range(4):
                        if valq: a(valq.pop(0))
            if k + 1 < NK:
                if n == 0 and k % 4 == 3:
                    st = k // 2
                    key = ('w4', min(st + 2, NK // 2 - 1))
                    assert not any(x[0] == key for x in pend if not isinstance(x, str))
                    a('s_waitcnt vmcnt(%d) lgkmcnt(0)' % min(63, vm.cnt(ids[key])))
                    a('s_barrier')
                    for s2_ in (st + 7, st + 8):
                        if s2_ < NK // 2 and st >= 3: pend = pend + w4_dma(s2_)
                for s_ in w4_read(k + 1, n): a(s_)
        if k == ND4 - 1: stamp(a, 14); cstamp(a, 7)
        if k % 4 == 1: stamp(a, 1 + k // 4, 'p4')
        if k == ND4 + 39:
            assert not pend
            a('s_cmp_eq_u32 s%d, 0' % sRO)
            a('s_cbranch_scc1 %s_p4done' % name)
    assert not pend and not valq
    a.label(name + '_p4done')
    stamp(a, 15); cstamp(a, 8)
    a('s_nop 7')
    stamp(a, 1, 'fin')
    pl = packs(accS); sl = sends(accS, 'ss')
    def send_part(js):
        for j in js:
            for s_ in pl[4 * j:4 * j + 4]: a(s_)
            for s_ in pl[4 * j:4 * j + 4]:
                r_ = s_.split()[1].rstrip(',')
                a('v_min_u32 %s, -2, %s' % (r_, r_))
            a(sl[j][1])
    send_part(range(4))
    lfin = name + '_fin'
    a('s_cmp_lg_u32 s%d, 0' % sRO)
    a('s_cbranch_scc1 %s' % lfin)
    send_part(range(4, 8))
    stamp(a, 16)
    stamp_flush(a, 17)
    a('s_endpgm')
    a.label(lfin)
    stamp(a, 2, 'fin')
    RS = 64
    a('s_mov_b32 s63, 0x40000')
    a.label(name + '_rx')
    for it in recvs(RS, 'rs'): a(it[1] + ' ' + WT)
    a('s_waitcnt vmcnt(4)')
    for j in range(2):
        for src_ in range(2):
            r_ = RS + 16 * src_ + 4 * j
            if j == 0 and src_ == 0: a('v_max3_u32 v40, v%d, v%d, v%d' % (r_, r_ + 1, r_ + 2)); a('v_max_u32 v40, v40, v%d' % (r_ + 3))
            else: a('v_max3_u32 v40, v40, v%d, v%d' % (r_, r_ + 1)); a('v_max3_u32 v40, v40, v%d, v%d' % (r_ + 2, r_ + 3))
    a('s_waitcnt vmcnt(0)')
    for j in range(2, 4):
        for src_ in range(2):
            r_ = RS + 16 * src_ + 4 * j
            a('v_max3_u32 v40, v40, v%d, v%d' % (r_, r_ + 1)); a('v_max3_u32 v40, v40, v%d, v%d' % (r_ + 2, r_ + 3))
    a('v_cmp_eq_u32 vcc, -1, v40')
    a('s_sub_u32 s63, s63, 1')
    a('s_cbranch_scc1 %s_rxok' % name)
    a('s_cbranch_vccnz %s_rx' % name)
    a.label(name + '_rxok')
    stamp(a, 6, 'fin')
    for n in range(8):
        if n in (0, 7): stamp(a, 7 + n // 7, 'fin')
        S = accS(n, 0); T = 96 + 2 * n
        for s_ in unp_add(S, RS, n, 40): a(s_)
        for h in range(2): rnd(S + 2 * h, S + 2 * h + 1, 56)
        for e in range(4): a('v_mul_f32 v%d, v%d, v%d' % (S + e, S + e, accB(n, 0) + e))
        for h in range(2): a('v_cvt_pk_bf16_f32 v%d, v%d, v%d' % (T + h, S + 2 * h, S + 2 * h + 1))
        a('ds_write_b64 v21, %s offset:%d' % (vr(T, 2), 32768 + 32 * n))
    for j in range(4): a('ds_read_b128 %s, v23 offset:%d' % (vr(64 + 4 * j, 4), 32768 + 272 * j))
    for j in range(4):
        a('s_waitcnt lgkmcnt(%d)' % (3 - j))
        X_ = accB(0, 1) + 8 * j
        for e in range(4):
            a('v_lshlrev_b32 v40, 16, v%d' % (64 + 4 * j + e)); a('v_and_b32 v41, s65, v%d' % (64 + 4 * j + e))
            a('v_add_f32 v40, v40, v%d' % (X_ + 2 * e)); a('v_add_f32 v41, v41, v%d' % (X_ + 2 * e + 1))
            a('v_cvt_pk_bf16_f32 v%d, v40, v41' % (80 + 4 * j + e))
        a('buffer_store_dwordx4 %s, v%d, %s, s%d offen offset:%d %s' % (vr(80 + 4 * j, 4), VX, sr(OUT, 4), sXO, 1280 * j, OUTF))
    if os.environ.get('PADT'):
        if os.environ.get('PADG'):
            a('s_mov_b32 s96, 0x%x' % FL)
            a('buffer_load_dwordx4 v[4:7], v%d, %s, s96 offen offset:2048 %s' % (V_LANE16, sr(WS, 4), WT))
            a('s_waitcnt vmcnt(0)')
            for e in range(4): a('v_subrev_u32 v%d, s97, v%d' % (4 + e, 4 + e))
            a('v_min_i32 v4, v4, v5'); a('v_min_i32 v6, v6, v7'); a('v_min_i32 v4, v4, v6'); a('s_mov_b32 s96, 0'); a('s_nop 1')
            for l in range(64):
                a('v_readlane_b32 s95, v4, %d' % l); a('s_nop 3'); a('s_min_i32 s96, s96, s95')
            a('s_add_u32 s97, s97, s96')
        a.label(name + '_padl')
        a('s_memrealtime s[98:99]'); a('s_waitcnt lgkmcnt(0)'); a('s_sub_u32 s98, s98, s97'); a('s_cmp_lt_u32 s98, %d' % int(os.environ['PADT']))
        a('s_cbranch_scc1 %s_padl' % name)
    stamp(a, 16); stamp(a, 9, 'fin')
    stamp_flush(a, 17)
    a('s_endpgm')
    a.label(notile)
    a('s_waitcnt vmcnt(0)')
    a(flag_store(78)[1])
    a.label(end)
    a('s_endpgm')
    for slow, ok, load_ins, chk, ts in slow_paths:
        a.label(slow)
        a('s_mov_b32 s%d, 0x40000' % ts)
        lp = a.newlabel(name + '_sp')
        a.label(lp)
        a('s_sleep 1')
        a(load_ins)
        a('s_waitcnt vmcnt(0)')
        for s in chk: a(s)
        a('s_nop 1')
        a('s_cbranch_vccz %s' % ok)
        a('s_sub_u32 s%d, s%d, 1' % (ts, ts))
        a('s_cbranch_scc0 %s' % lp)
        a('s_branch %s' % ok)
    for stub, back, pc, ex in rare_sites:
        a.label(stub)
        for st, qbs in sorted(ex):
            a('s_mov_b32 s69, %s' % ('1.0' if 1 in qbs else '0'))
            a('s_call_b64 s[100:101], %s_rare%d%d' % (name, pc, st))
        a('s_branch %s' % back)
    for pc in range(2):
        for st in range(2):
            a.label('%s_rare%d%d' % (name, pc, st))
            a('s_nop 7')
            for qb in range(2):
                for s in max_ops(st, pc, qb, V_T0, V_T1): a(s)
                a('v_max_f32 v%d, 0, v%d' % (V_T0, V_T0))
                if qb == 1: a('v_mul_f32 v%d, s69, v%d' % (V_T0, V_T0))
                a('v_exp_f32 v%d, -v%d' % (V_T1, V_T0))
                for e in range(4): a('v_sub_f32 v%d, v%d, v%d' % (NEGM + (st * 2 + qb) * 4 + e, NEGM + (st * 2 + qb) * 4 + e, V_T0))
                for pp in range(2):
                    for kb in range(4):
                        for r in range(4):
                            x = SB[st][pp] + (kb * 2 + qb) * 4 + r
                            a('v_sub_f32 v%d, v%d, v%d' % (x, x, V_T0))
                a('v_mul_f32 v%d, v%d, v%d' % (V_L + st * 2 + qb, V_L + st * 2 + qb, V_T1))
                for db in range(0, 8, 2):
                    regs = [A_O[st] + ((db + h) * 2 + qb) * 4 + e for h in range(2) for e in range(4)]
                    for e in range(8): a('v_accvgpr_read_b32 v%d, a%d' % (TMP + e, regs[e]))
                    for e in range(8): a('v_mul_f32 v%d, v%d, v%d' % (TMP + e, TMP + e, V_T1))
                    for e in range(8): a('v_accvgpr_write_b32 a%d, v%d' % (regs[e], TMP + e))
            for s in exp_ops(st, pc): a(s)
            if st == 1:
                for k, (s, _, _) in enumerate(exp_seq(1, 1 - pc)[:EARLY]): a('v_exp_f32 v%d, v%d' % (TMP + k, s))
            a('s_nop 7')
            a('s_setpc_b64 s[100:101]')
    a.label(name + '_codeend')
    if os.environ.get('PADEND'): a.raw('.fill 8192, 4, 0xBF810000')
    kernel_desc(a, name, 512, 256)
    return a
```

```python
from common import *
import common
import math, copy, re
import k2 as K2
from k2 import VM, Packer, exp_seq, exp_ops, max_ops, EARLY
from k2 import V_LANE16, V_LANE16V, V_KRD, V_VRD, V_T0, V_T1, V_L, TRI, NEGM, LT, TMP, SB, PB, A_O, A_Q, A_RING, V_ONES, D, R, THR, BIG

OUTF = os.environ.get('OUTF', 'sc0 sc1')
WT = 'sc0 sc1'
WS_FLG = 0x7000000
FK, FH, FC, FL, FE = WS_FLG, WS_FLG + 4096, WS_FLG + 8192, WS_FLG + 16384, WS_FLG + 20480
PTR = dict(x=4, ckv=6, wq=8, wuk=10, wuv=12, wo=14, wg=18, wu=20, wd=22, out=24, dbg=26, ws=28)
WS, R1, R2, R3, R4, R5 = 32, 36, 40, 44, 48, 52
sW, sH, sI = 30, 31, 3
V_ONE, V_1 = 60, 61
V_PA, V_PD = 62, 24

SMODE = os.environ.get('SMODE', 'all')
def stamp(a, i, mode='all'):
    if not DIAG: return
    if mode != SMODE and i != 0: return
    a('s_memrealtime s[98:99]'); a('s_waitcnt lgkmcnt(0)'); a('s_mov_b32 s%d, s98' % (80 + i))
def cstamp(a, i, mode='cyc'):
    if not DIAG or mode != SMODE: return
    a('s_memrealtime s[98:99]'); a('s_waitcnt lgkmcnt(0)'); a('s_mov_b32 s%d, s98' % (80 + i + 8))
    a('s_memtime s[98:99]'); a('s_waitcnt lgkmcnt(0)'); a('s_mov_b32 s%d, s98' % (80 + i))
def stamp_flush(a, n):
    if not DIAG: return
    if os.environ.get('DBGOUT'):
        a('s_load_dwordx2 s[36:37], s[0:1], 88')
        a('s_mov_b32 s38, 256'); a('s_mov_b32 s39, 0x00020000')
        a('s_lshl_b32 s98, s2, 2'); a('s_add_u32 s98, s98, s%d' % sW)
        a('s_cmp_eq_u32 s98, %d' % (4 * int(os.environ['DBGOUT'])))
        a('s_cselect_b32 s98, 0, 0x1000')
        a('s_waitcnt lgkmcnt(0)')
        a('v_mov_b32 v0, 0')
        for i in range(1, n):
            a('s_sub_u32 s99, s%d, s80' % (80 + i))
            a('v_mov_b32 v1, s99')
            a('buffer_store_dword v1, v0, s[36:39], s98 offen offset:%d' % (4 * (i - 1)))
            a('s_nop 1')
        return
    a('s_lshl_b32 s98, s2, 2'); a('s_add_u32 s98, s98, s%d' % sW); a('s_lshl_b32 s98, s98, 7')
    a('s_add_u32 s98, s98, 0x%x' % WS_STAMP)
    a('v_mov_b32 v0, 0')
    for i in range(n):
        a('v_mov_b32 v1, s%d' % (80 + i))
        a('buffer_store_dword v1, v0, %s, s98 offen offset:%d' % (sr(WS, 4), 4 * i))
        a('s_nop 1')

def padp(a, tag):
    v = os.environ.get('PADP', '')
    if not v.startswith(tag + ':'): return
    l = a.newlabel('L_pp'); a.label(l)
    a('s_memrealtime s[98:99]'); a('s_waitcnt lgkmcnt(0)'); a('s_sub_u32 s98, s98, s97'); a('s_cmp_lt_u32 s98, %d' % int(v.split(':')[1])); a('s_cbranch_scc1 %s' % l)
def srd(name, r, off=0, size=None):
    p = PTR[name]
    L = []
    if off:
        L += ['s_add_u32 s%d, s%d, 0x%x' % (r, p, off), 's_addc_u32 s%d, s%d, 0' % (r + 1, p + 1)]
    else:
        L += ['s_mov_b32 s%d, s%d' % (r, p), 's_mov_b32 s%d, s%d' % (r + 1, p + 1)]
    L += ['s_mov_b32 s%d, 0x%x' % (r + 2, SIZE[name] if size is None else size), 's_mov_b32 s%d, 0x00020000' % (r + 3)]
    return L

def gen_mega(a, name):
    kernel_begin(a, name)
    end = name + '_end'
    slow_paths = []
    def gate(load_ins, dreg, n, want, tmp_s):
        def chk():
            L = ['v_xor_b32 v%d, v%d, v%d' % (dreg + e, dreg + e, V_1) for e in range(n)]
            if n >= 3: L += ['v_or3_b32 v%d, v%d, v%d, v%d' % (dreg, dreg, dreg + 1, dreg + 2)]
            if n == 4: L += ['v_or_b32 v%d, v%d, v%d' % (dreg, dreg, dreg + 3)]
            L += ['v_cmp_ne_u32 vcc, 0, v%d' % dreg]
            return L
        slow, ok = a.newlabel(name + '_sl'), a.newlabel(name + '_ok')
        for s in chk(): a(s)
        a('s_nop 1')
        a('s_cbranch_vccnz %s' % slow)
        a.label(ok)
        slow_paths.append((slow, ok, load_ins, chk(), tmp_s))

    a('s_cmp_ge_u32 s2, 256')
    a('s_cbranch_scc1 %s' % end)
    if os.environ.get('PADT') or os.environ.get('PADP'):
        a('s_memrealtime s[98:99]'); a('s_waitcnt lgkmcnt(0)'); a('s_mov_b32 s97, s98')
    stamp(a, 0)
    a('s_load_dwordx16 s[4:19], s[0:1], 0')
    a('s_load_dwordx8 s[20:27], s[0:1], 64')
    a('s_load_dwordx2 s[28:29], s[0:1], 96')
    if 'e' in os.environ.get('MX', ''):
        a('s_getpc_b64 s[100:101]')
        a('v_lshlrev_b32 v2, 7, v0')
        a('global_load_dword v250, v2, s[100:101]')
    a('v_lshrrev_b32 v1, 6, v0')
    a('v_and_b32 v0, 63, v0')
    a('v_readfirstlane_b32 s%d, v1' % sW)
    a('s_and_b32 s31, s2, 7')
    a('s_lshl_b32 s31, s31, 2')
    a('s_lshr_b32 s61, s2, 3')
    a('s_and_b32 s61, s61, 3')
    a('s_add_u32 s31, s31, s61')
    a('s_lshr_b32 s3, s2, 5')
    CKV, WUK, WUV, X, DBG = R1, R2, R3, R4, R5
    VA, VW = 8, 12
    a('v_lshrrev_b32 v6, 3, v0')
    a('v_lshlrev_b32 v6, 10, v6')
    a('v_lshrrev_b32 v7, 4, v0')
    a('v_and_b32 v12, 7, v0')
    a('v_xor_b32 v12, v12, v7')
    a('v_xor_b32 v13, 4, v12')
    a('v_lshl_add_u32 v12, v12, 4, v6')
    a('v_lshl_add_u32 v13, v13, 4, v6')
    for j in range(4): a('v_add_u32 v%d, %d, v%d' % (VA + j, j * (8192 - 1024), 12 + (j & 1)))
    a('v_bfe_u32 v16, v0, 1, 3')
    a('v_xor_b32 v16, v16, v7')
    a('v_xor_b32 v17, 4, v16')
    a('v_and_b32 v18, 1, v0')
    a('v_lshlrev_b32 v18, 4, v18')
    a('v_lshl_add_u32 v18, v7, 13, v18')
    a('v_lshl_add_u32 v16, v16, 5, v18')
    a('v_lshl_add_u32 v17, v17, 5, v18')
    for j in range(4): a('v_add_u32 v%d, %d, v%d' % (VW + j, j * (32768 - 1024), 16 + (j >> 1)))
    sA, sWo, sLA, sLW, sA2 = 56, 57, 58, 59, 60
    a('s_lshl_b32 s56, s%d, 2' % sI)
    a('s_add_u32 s56, s56, s%d' % sW)
    a('s_lshl_b32 s56, s56, 16')
    a('s_lshl_b32 s57, s%d, 17' % sW)
    a('s_lshl_b32 s58, s%d, 8' % sH)
    a('s_add_u32 s57, s57, s58')
    a('s_lshl_b32 s58, s%d, 13' % sW)
    a('s_lshl_b32 s59, s%d, 12' % sW)
    a('s_add_u32 s59, s59, 65536')
    a('v_lshrrev_b32 v2, 5, v0')
    a('v_and_b32 v3, 31, v0')
    a('s_lshl_b32 s61, s2, 2')
    a('s_add_u32 s61, s61, s%d' % sW)
    a('s_lshl_b32 s61, s61, 1')
    a('v_add_u32 v4, s61, v2')
    a('v_mul_u32_u24 v5, 1280, v4')
    a('v_lshl_add_u32 v5, v3, 3, v5')
    a('v_lshlrev_b32 v%d, 4, v0' % V_LANE16)
    vm = VM(); ids = {}
    def issue(it):
        if isinstance(it, str): return it
        ids[it[0]] = vm.op()
        return it[1]
    def p1_dma(st):
        slot = st & 1; t = ('p1', st)
        L = ['s_add_u32 m0, s%d, %d' % (sLA, slot * 32768), 's_add_u32 s%d, s%d, 32768' % (sA2, sA)]
        L += [(t, 'buffer_load_dwordx4 v%d, %s, s%d offen offset:%d lds' % (VA + j, sr(CKV, 4), sA, 1024 * j)) for j in range(4)]
        L += ['s_add_u32 m0, s%d, %d' % (sLW, slot * 32768), 's_add_u32 s%d, s%d, 128' % (sA, sA)]
        L += [(t, 'buffer_load_dwordx4 v%d, %s, s%d offen offset:%d lds' % (VW + j, sr(WUK, 4), sWo, 1024 * j)) for j in range(4)]
        L += ['s_add_u32 m0, s%d, %d' % (sLA, slot * 32768 + 4096), 's_nop 0']
        L += [(t, 'buffer_load_dwordx4 v%d, %s, s%d offen offset:%d lds' % (VA + j, sr(CKV, 4), sA2, 1024 * j)) for j in range(4)]
        L += ['s_add_u32 m0, s%d, %d' % (sLW, slot * 32768 + 16384), 's_nop 0']
        L += [(t, 'buffer_load_dwordx4 v%d, %s, s%d offen offset:%d lds' % (VW + j, sr(WUV, 4), sWo, 1024 * j)) for j in range(4)]
        L += ['s_add_u32 s%d, s%d, %d' % (sWo, sWo, 64 * 8192)]
        return L
    stamp(a, 1, 'st')
    a('s_waitcnt lgkmcnt(0)')
    for n_, r_ in (('x', X), ('ckv', CKV), ('wuk', WUK), ('wuv', WUV), ('ws', WS)):
        for s in srd(n_, r_): a(s)
    XR = 192
    a('v_mov_b32 v52, 0')
    a('s_mov_b32 s79, 0x%x' % FE)
    a(issue(('ep', 'buffer_load_dword v%d, v52, %s, s79 offen %s' % (V_1, sr(WS, 4), WT))))
    xld = [('x', 'buffer_load_dwordx2 %s, v5, %s, 0 offen offset:%d' % (vr(XR + 2 * j, 2), sr(X, 4), 256 * j)) for j in range(5)]
    MX0 = os.environ.get('MX', '')
    if 'k' in MX0:
        a('v_and_b32 v20, 15, v0'); a('v_lshlrev_b32 v20, 7, v20'); a('s_lshl_b32 s62, s61, 10')
        a(issue(('pf', 'buffer_load_dword v240, v20, %s, s62 offen' % sr(CKV, 4))))
    if 'l' not in MX0:
        for it in xld: a(issue(it))
    PFB = False
    def weave(start, items):
        body = a.lines[start:]; del a.lines[start:]
        G = []
        for l in body:
            t = l.strip()
            if G and (t.startswith(('s_cselect', 's_addc', 's_subb')) or t.endswith(':') or G[-1][-1].strip().endswith(':')): G[-1].append(l)
            else: G.append([l])
        D_ = []; cur = []
        for s in items:
            cur.append(s)
            if s.startswith(('buffer_', 'global_')): D_.append(cur); cur = []
        if cur: D_[-1] += cur
        for j, d in enumerate(D_):
            for s in d: a(s)
            for g in G[(j * len(G)) // len(D_):((j + 1) * len(G)) // len(D_)]: a.lines.extend(g)
    s0_items = [issue(it) for it in p1_dma(0)]
    W0 = len(a.lines)
    a('s_lshr_b32 s61, s2, 3')
    a('s_lshl_b32 s61, s61, 2')
    a('s_add_u32 s61, s61, s%d' % sW)
    TC, TW, TX = 48, 49, 50
    a('v_bfe_u32 v20, v0, 1, 4')
    a('v_lshlrev_b32 v20, 10, v20')
    a('v_and_b32 v21, 1, v0')
    a('v_lshl_add_u32 v20, v21, 7, v20')
    a('s_lshl_b32 s62, s61, 14')
    a('v_add_u32 v%d, s62, v20' % TC)
    a('v_and_b32 v20, 7, v0')
    a('v_lshlrev_b32 v20, 7, v20')
    a('s_lshl_b32 s62, s61, 13')
    a('s_and_b32 s63, s2, 7')
    a('s_lshl_b32 s63, s63, 10')
    a('s_add_u32 s62, s62, s63')
    a('v_add_u32 v%d, s62, v20' % TW)
    def pf_chunk(c):
        if PFB: return []
        return ['s_mov_b32 s16, %d' % ((c + 1) * 128 * 8192),
                ('pf', 'buffer_load_dword v240, v%d, %s, 0 offen offset:%d' % (TC, sr(CKV, 4), 256 * (c + 1))),
                ('pf', 'buffer_load_dword v241, v%d, %s, s16 offen' % (TW, sr(WUK, 4))),
                ('pf', 'buffer_load_dword v242, v%d, %s, s16 offen' % (TW, sr(WUV, 4)))]
    a('s_getpc_b64 s[100:101]')
    a.label(name + '_pc')
    a('s_sub_u32 s100, s100, %s_pc-%s' % (name, name))
    a('s_subb_u32 s101, s101, 0')
    a('v_and_b32 v20, 7, v0')
    a('v_lshlrev_b32 v20, 7, v20')
    a('s_lshl_b32 s62, s61, 10')
    a('v_add_u32 v20, s62, v20')
    a('v_min_u32 v55, %s_codeend-%s-4, v20' % (name, name))
    a('s_min_u32 s62, s61, 79'); a('s_lshl_b32 s62, s62, 16'); a('v_mov_b32 v56, s62')
    a('s_min_u32 s62, s61, 33'); a('s_lshl_b32 s62, s62, 16'); a('v_mov_b32 v57, s62')
    TQ, TG = 53, 54
    a('v_min_u32 v20, 39, v0')
    a('v_lshrrev_b32 v21, 3, v20')
    a('s_mul_i32 s62, s61, 5')
    a('v_add_u32 v21, s62, v21')
    a('v_and_b32 v20, 7, v20')
    a('v_lshlrev_b32 v20, 7, v20')
    a('v_lshl_add_u32 v20, v21, 13, v20')
    a('v_add_u32 v%d, s63, v20' % TQ)
    a('v_min_u32 v20, 19, v0')
    a('v_lshrrev_b32 v21, 2, v20')
    a('v_add_u32 v21, s62, v21')
    a('v_mul_u32_u24 v21, 3456, v21')
    a('s_and_b32 s63, s2, 7')
    a('s_lshl_b32 s63, s63, 2')
    a('s_mul_i32 s64, s63, 37'); a('s_lshr_b32 s64, s64, 8')
    a('s_sub_u32 s63, s63, s64')
    a('v_and_b32 v20, 3, v20')
    a('v_add_u32 v20, s63, v20')
    a('v_min_u32 v20, 26, v20')
    a('v_lshl_add_u32 v%d, v20, 7, v21' % TG)
    a('s_mul_i32 s62, s61, 20480')
    a('v_and_b32 v20, 31, v0')
    a('v_lshlrev_b32 v20, 7, v20')
    a('v_add_u32 v%d, s62, v20' % TX)
    def xn_touch(j):
        return ['s_mov_b32 s16, %d' % (4096 * j), ('pf', 'buffer_load_dword v243, v%d, %s, s16 offen' % (TX, sr(WS, 4)))]
    RA, RW = 16, 18
    a('s_lshr_b32 s61, s%d, 1' % sW)
    a('s_lshl_b32 s61, s61, 14')
    a('v_bfe_u32 v20, v0, 1, 3')
    a('v_xor_b32 v20, v20, v7')
    a('v_and_b32 v21, 15, v0')
    a('v_lshlrev_b32 v21, 7, v21')
    a('v_add_u32 v21, s61, v21')
    a('v_lshl_add_u32 v%d, v20, 4, v21' % RA)
    a('v_xor_b32 v20, 4, v20')
    a('v_lshl_add_u32 v%d, v20, 4, v21' % (RA + 1))
    a('v_bfe_u32 v22, v0, 2, 2')
    a('v_lshl_add_u32 v23, v7, 3, v22')
    a('v_lshlrev_b32 v23, 8, v23')
    a('v_and_b32 v24, 3, v0')
    a('v_lshl_add_u32 v23, v24, 3, v23')
    a('v_add_u32 v23, 65536, v23')
    a('v_bfe_u32 v22, v0, 2, 3')
    a('s_and_b32 s62, s%d, 1' % sW)
    a('s_lshl_b32 s62, s62, 2')
    a('v_xor_b32 v22, s62, v22')
    for nb in range(4):
        a('v_xor_b32 v24, %d, v22' % nb)
        a('v_lshl_add_u32 v%d, v24, 5, v23' % (RW + nb))
    P_XOFF2, P_WOFF, P_WRD = 32, 33, 40
    P_X0, P_X1 = 32, 37
    a('s_sub_u32 s61, 7, s%d' % sW); a('s_mul_i32 s61, s61, 20480'); a('v_add_u32 v%d, s61, v%d' % (P_X0, V_LANE16))
    a('s_mul_i32 s61, s%d, 20480' % sW); a('v_add_u32 v%d, s61, v%d' % (P_X1, V_LANE16))
    a('v_lshrrev_b32 v25, 3, v0')
    a('v_bfe_u32 v26, v0, 1, 2')
    a('v_bfe_u32 v27, v0, 4, 2')
    a('v_xor_b32 v26, v26, v27')
    a('v_lshlrev_b32 v26, 5, v26')
    a('v_and_b32 v27, 1, v0')
    a('v_lshl_add_u32 v26, v27, 4, v26')
    a('v_lshl_add_u32 v%d, v25, 13, v26' % P_WOFF)
    a('v_add_u32 v%d, %d, v%d' % (P_WOFF + 1, 8 * 8192 - 1024, P_WOFF))
    a('v_mul_u32_u24 v25, 3456, v25')
    a('v_add_u32 v%d, v25, v26' % (P_WOFF + 2))
    a('v_add_u32 v%d, %d, v%d' % (P_WOFF + 3, 8 * 3456 - 1024, P_WOFF + 2))
    a('v_lshrrev_b32 v25, 2, v0')
    a('v_lshlrev_b32 v25, 7, v25')
    a('v_and_b32 v26, 3, v0')
    a('v_lshl_add_u32 v25, v26, 3, v25')
    a('v_add_u32 v25, 65536, v25')
    a('v_bfe_u32 v26, v0, 3, 2')
    for c in range(4):
        a('v_xor_b32 v27, %d, v26' % c)
        a('v_lshl_add_u32 v%d, v27, 5, v25' % (P_WRD + c))
        a('v_add_u32 v%d, 65536, v%d' % (P_WRD + 4 + c, P_WRD + c))
    s_w = [64, 65, 66, 67]; s_q = [68, 69]; sLW2, sCT = 70, 71; sQ = [72, 73]
    a('s_mul_i32 s17, s%d, 37' % sH)
    a('s_lshr_b32 s17, s17, 8')
    a('s_sub_u32 s71, s%d, s17' % sH)
    a('s_lshl_b32 s70, s%d, 11' % sW)
    a('s_lshl_b32 s72, s%d, 3' % sI)
    a('s_sub_u32 s73, 120, s72')
    a('s_mul_i32 s68, s72, 20480')
    a('s_mul_i32 s69, s73, 20480')
    assert WS_XN == 0
    a('s_lshl_b32 s64, s%d, 17' % sW)
    a('s_lshl_b32 s65, s%d, 8' % sH)
    a('s_add_u32 s64, s64, s65')
    a('s_add_u32 s65, s64, 128')
    a('s_mul_i32 s66, s%d, %d' % (sW, 16 * 3456))
    a('s_lshl_b32 s67, s%d, 7' % sCT)
    a('s_add_u32 s66, s66, s67')
    a('s_mov_b32 s67, s66')
    a('s_mul_i32 s61, s17, 7')
    a('s_sub_u32 s61, s%d, s61' % sH)
    a('s_cmp_eq_u32 s61, 6')
    a('s_cselect_b32 s74, 0, 0x%x' % SIZE['wg'])
    a('s_cmp_ge_u32 s%d, 27' % sCT)
    a('s_cselect_b32 s74, 0, s74')
    a('s_lshl_b32 s61, s%d, 2' % sW)
    a('s_lshl_b32 s76, s2, 4'); a('s_add_u32 s76, s76, s61')
    a('s_add_u32 s75, s76, 0x%x' % FK)
    a('s_add_u32 s77, s76, 0x%x' % FC)
    a('s_and_b32 s78, s76, 0x1ff')
    a('s_add_u32 s76, s76, 0x%x' % FH)
    a('s_sub_u32 s62, 15, s%d' % sI); a('s_lshl_b32 s62, s62, 9')
    a('s_add_u32 s78, s78, s62'); a('s_add_u32 s78, s78, 0x%x' % FC)
    a('v_cmp_eq_u32 vcc, 0, v0')
    a('v_mov_b32 v25, 0x20000000')
    a('s_lshl_b32 s26, s2, 2'); a('s_add_u32 s26, s26, 0x%x' % FL)
    a('v_cndmask_b32 v%d, v25, 0, vcc' % V_ONE)
    a('s_cmp_eq_u32 s%d, 0' % sW)
    a('s_cselect_b32 s26, s26, 0x20000000')
    a('s_lshl_b32 s27, s2, 2'); a('s_or_b32 s27, s27, s%d' % sW)
    a('s_cmp_eq_u32 s27, 0')
    a('s_cselect_b32 s27, s79, 0x20000000')
    a('s_mov_b32 s79, 0x%x' % FL)
    def flag_store(sreg, val=V_1):
        return ('fl', 'buffer_store_dword v%d, v%d, %s, s%d offen %s' % (val, V_ONE, sr(WS, 4), sreg, WT))
    weave(W0, s0_items)
    W1 = len(a.lines)
    a('s_mov_b32 s61, 0x9e3779b1')
    a('v_mul_lo_u32 v%d, s61, v%d' % (V_1, V_1))
    a('v_add_u32 v%d, 0x7f4a7c15, v%d' % (V_1, V_1))
    import k1
    b = Asm(); k1.ln_part(b, XR, WS, 4, 3)
    ln_lines = [l.strip() for l in b.lines]
    for l in ln_lines[:-20]: a(l)
    a('v_lshrrev_b32 v224, 3, v3')
    a('v_lshlrev_b32 v224, 9, v224')
    a('v_and_b32 v225, 3, v3')
    a('v_lshl_add_u32 v224, v225, 7, v224')
    a('v_and_b32 v225, 7, v4')
    a('v_lshl_add_u32 v224, v225, 4, v224')
    a('v_bfe_u32 v225, v3, 2, 1')
    a('v_lshl_add_u32 v224, v225, 3, v224')
    a('v_add_u32 v224, %d, v224' % (128 * 1024))
    for j in range(5): a('ds_write_b64 v224, %s offset:%d' % (vr(XR + 2 * j, 2), 2048 * j))
    a('s_lshl_b32 s61, s%d, 10' % sW)
    a('s_add_u32 s61, s61, %d' % (128 * 1024))
    a('v_add_u32 v225, s61, v%d' % V_LANE16)
    a('v_lshrrev_b32 v226, 3, v0')
    a('v_lshlrev_b32 v226, 8, v226')
    a('v_and_b32 v227, 7, v0')
    a('v_lshl_add_u32 v226, v227, 4, v226')
    a('s_lshr_b32 s61, s2, 1')
    a('s_mul_i32 s61, s61, 20480')
    a('s_and_b32 s62, s2, 1')
    a('s_lshl_b32 s62, s62, 7')
    a('s_add_u32 s61, s61, s62')
    a('s_lshl_b32 s62, s%d, 11' % sW)
    a('s_add_u32 s61, s61, s62')
    a('s_add_u32 s62, s61, 8192')
    a('s_add_u32 s63, s61, 16384')
    a('s_cmp_lt_u32 s%d, 2' % sW)
    a('s_cselect_b32 s63, s63, 0x20000000')
    lnq = []
    for l in a.lines[W1:]:
        t = l.strip()
        if t.startswith('s_cselect'): lnq[-1] += '\n' + t
        else: lnq.append(t)
    del a.lines[W1:]
    xn_reads = ['ds_read_b128 %s, v225 offset:%d' % (vr(XR + 4 * t, 4), 4096 * t) for t in range(3)]
    xn_stores = [('xn', 'buffer_store_dwordx4 %s, v226, %s, s%d offen %s' % (vr(XR + 4 * t, 4), sr(WS, 4), 61 + t, WT)) for t in range(3)]
    MX = os.environ.get('MX', '')
    if 'x' in MX: xn_stores = []
    if 'p' in MX: xn_stores = [(t, s.replace(WT, '')) for t, s in xn_stores]
    WQ, WG, WU = R1, R2, R3
    WSLOT = [128 * 1024, 64 * 1024, 96 * 1024]
    P_ACCV, P_ACCA, P_WF, P_ACT = 128, 0, 128, 192
    srdm = [WQ, WQ, WG, WU]; stride = [8192, 8192, 3456, 3456]
    def w_dma(st, nm):
        L = []
        for m in range(nm):
            L.append('s_add_u32 m0, s%d, %d' % (sLW2, WSLOT[st % 3] + m * 8192))
            L.append('s_nop 0')
            for j in range(2):
                L.append((('w', st), 'buffer_load_dwordx4 v%d, %s, s%d offen offset:%d lds' % (P_WOFF + 2 * (m // 2) + j, sr(srdm[m], 4), s_w[m], 1024 * j)))
            L.append('s_add_u32 s%d, s%d, %d' % (s_w[m], s_w[m], 64 * stride[m]))
        return L
    def a_load(k):
        base = P_ACT + 16 * (k % 4)
        L = [(('a', k), 'buffer_load_dwordx4 %s, v%d, %s, s%d offen offset:%d' % (ar(base + 4 * qi, 4), (P_X0, P_X1)[qi % 2], sr(WS, 4), s_q[qi // 2], 1024 * (k % 4))) for qi in range(4)]
        if k % 4 == 3: L += ['s_add_u32 s%d, s%d, 4096' % (s, s) for s in s_q]
        return L
    FR = 64
    def reads(slot, ks, fs):
        base = FR + 64 * fs
        def A(i): return ['ds_read_b128 %s, v%d offset:%d' % (vr(base + 4 * i, 4), RA + ks, slot * 32768 + i * 2048)]
        def W(mat, nb): return ['ds_read_b64_tr_b16 %s, v%d offset:%d' % (vr(base + 32 + 16 * mat + 4 * nb + 2 * r, 2), RW + nb,
                                slot * 32768 + mat * 16384 + (32 * ks + 4 * r) * 256) for r in range(2)]
        L = A(0)
        for nb in range(4): L += W(0, nb)
        for nb in range(4): L += W(1, nb)
        for i in range(1, 8): L += A(i)
        return L
    def mfmas(fs, first, rbs=range(8)):
        base = FR + 64 * fs; L = []
        for rb in rbs:
            act = vr(base + 4 * rb, 4)
            for mat in range(2):
                for nb in range(4):
                    w = vr(base + 32 + 16 * mat + 4 * nb, 4)
                    d = ar((rb * 8 + mat * 4 + nb) * 4, 4); c = '0' if first else d
                    L.append('%s %s, %s, %s, %s' % ((MF16, d, w, act, c) if mat == 0 else (MF16, d, act, w, c)))
        return L
    stamp(a, 2); stamp(a, 8, 'st')
    S1L = p1_dma(1); npre = int(os.environ.get('NPRE', 12))
    for it in S1L[:npre]: a(issue(it))
    a('s_waitcnt vmcnt(%d) lgkmcnt(0)' % vm.cnt(ids[('p1', 0)]))
    stamp(a, 9, 'st')
    a('s_barrier')
    stamp(a, 3); stamp(a, 10, 'st'); padp(a, 'p0')
    for s in reads(0, 0, 0): a(s)
    ln_poll = 'buffer_load_dwordx4 v[244:247], v%d, %s, s79 offen %s' % (V_LANE16, sr(WS, 4), WT)
    NST = 8
    pend = S1L[npre:] + pf_chunk(0) + (xld if 'l' in MX0 else []) + [('pf', 'global_load_dword v249, v55, s[100:101]')]
    NPRE = int(os.environ.get('NPRE', 0))
    P1SP = int(os.environ.get('P1SP', 4))
    LNS = 2 if 'l' in MX0 else 1
    LN0 = 3 if 'l' in MX0 else 0
    for st in range(NST - 1):
        slot = st & 1
        for ks in range(2):
            rd = []
            if ks == 1:
                if st < NST - 1:
                    assert not any(x[0] == ('p1', st + 1) for x in pend if not isinstance(x, str))
                    a('s_waitcnt vmcnt(%d) lgkmcnt(0)' % vm.cnt(max(ids[('p1', st + 1)], ids['lnp'] if st == LNS + 4 else 0))); a('s_barrier')
                    rd = reads(1 - slot, 0, 0)
                    if st == LNS: rd += xn_reads; assert not lnq
                else: a('s_waitcnt lgkmcnt(0)')
                if st + 2 < NST: pend += p1_dma(st + 2)
                if st == LNS + 2: pend = [flag_store(26)] + pend
                if st in (0, 1): pend += pf_chunk(st + 1)
                if st == 2: pend += [('pf', 'global_load_dword v240, v%d, s[8:9]' % TQ)]
                if st == 3: pend += [('pf', 'global_load_dword v241, v%d, s[18:19]' % TG), ('pf', 'global_load_dword v242, v%d, s[20:21]' % TG)]
                if st == LNS + 3: pend += [('lnp', ln_poll)]
                if st == 4 and 'C' not in MX: pend += [('pf', 'global_load_dword v249, v55, s[100:101]')]
                if st == 6: pend += w_dma(1, 4)
                if st == LNS + 4:
                    gate(ln_poll, 244, 4, 1, 61)
                    pend += [flag_store(27)]
                    pend += xn_touch(0) + xn_touch(1)
                if st == 6: pend += xn_touch(2) + xn_touch(3) + xn_touch(4)
            else:
                a('s_waitcnt lgkmcnt(0)')
                rd = reads(slot, 1, 1)
                if st == LNS + 1: pend += xn_stores
                if st == LNS + 1 and os.environ.get('PADG'):
                    pend += ['v_mov_b32 v251, s97', ('t0', 'buffer_store_dword v251, v%d, %s, s26 offen offset:2048 %s' % (V_ONE, sr(WS, 4), WT))]
                if st == 6:
                    pend += srd('wq', WQ) + srd('wg', WG) + srd('wu', WU) + ['s_mov_b32 s%d, s74' % (WG + 2), 's_mov_b32 s%d, s74' % (WU + 2)] + w_dma(0, 4)
            lastv = -10
            for g, m in enumerate(mfmas(ks, st == 0 and ks == 0)):
                a(m)
                if g % 2 == 0 and rd: a(rd.pop(0))
                elif pend and g % 2 == 1:
                    while pend and pend[0] == 's_nop 0': pend.pop(0)
                    if pend and (isinstance(pend[0], str) or g - lastv >= (2 if st < 2 else P1SP)):
                        if not isinstance(pend[0], str): lastv = g
                        a(issue(pend.pop(0)))
                for _ in range(3 if 'l' in MX0 else 2):
                    if lnq and 2 * st + ks >= LN0: a(lnq.pop(0))
            stamp(a, 1 + 2 * st + ks, 'p1')
        if st == 3: stamp(a, 4); cstamp(a, 1)
    def w_read(k, n):
        st, ks = k // 2, k % 2
        off = WSLOT[st % 3] - 65536
        grp = off // 65536; off %= 65536
        m, c = n // 4, n % 4
        return ['ds_read_b64_tr_b16 %s, v%d offset:%d' % (wfr(k, n, r), P_WRD + 4 * grp + c, off + m * 8192 + (32 * ks + 16 * r) * 128) for r in range(2)]
    def wfr(k, n, r=None):
        f, b_ = (vr, 96 + 4 * (n - 8)) if (k >= 16 and n >= 8) else (ar, P_WF + 4 * n)
        return f(b_, 4) if r is None else f(b_ + 2 * r, 2)
    sBASE, sK0, sK1, sT, sC0, sC1, sS1 = 56, 57, 58, 59, 60, 61, 62
    sc = ['s_lshl_b32 s56, s%d, 20' % sH, 's_lshl_b32 s57, s%d, 17' % sI, 's_add_u32 s58, s56, s57', 's_lshr_b32 s57, s%d, 1' % sW, 's_lshl_b32 s57, s57, 16',
          's_add_u32 s58, s58, s57', 's_add_u32 s58, s58, 0x%x' % WS_KV, 's_and_b32 s57, s%d, 1' % sW, 's_lshl_b32 s16, s57, 11', 's_add_u32 s16, s16, s58',
          's_lshl_b32 s17, s57, 12', 's_add_u32 s17, s17, s58', 's_add_u32 s17, s17, 16384',
          's_lshl_b32 s57, s%d, 14' % sW, 'v_add_u32 v26, s57, v%d' % V_LANE16,
          's_lshl_b32 s59, s%d, 12' % sW, 's_add_u32 s56, s56, s59', 's_add_u32 s56, s56, 0x%x' % WS_KV, 's_lshl_b32 s60, s%d, 13' % sW,
          's_add_u32 s60, s60, %d' % (65536 + 32768), 's_add_u32 s61, s60, 16384', 's_add_u32 s62, s56, 32768', 's_add_u32 s57, s56, 65536', 's_add_u32 s58, s57, 32768',
          'v_add_u32 v%d, 16384, v%d' % (V_LANE16V, V_LANE16), 'v_and_b32 v%d, 7, v0' % V_PA, 'v_lshlrev_b32 v%d, 9, v%d' % (V_PA, V_PA),
          's_and_b32 s79, s2, 31', 's_lshl_b32 s79, s79, 4', 's_add_u32 s79, s79, 0x%x' % FK]
    def conv(b0, b1, T, dst):
        return ['v_accvgpr_read_b32 v%d, a%d' % (T + e, b0 * 4 + e) for e in range(4)] + ['v_accvgpr_read_b32 v%d, a%d' % (T + 4 + e, b1 * 4 + e) for e in range(4)] + \
               ['v_cvt_pk_bf16_f32 v%d, v%d, v%d' % (dst + e, T + 2 * e, T + 2 * e + 1) for e in range(4)]
    def store(T, sb, off):
        return ['s_add_u32 s63, s%d, %d' % (sb, off & ~4095),
                ('kv', 'buffer_store_dwordx4 %s, v%d, %s, s63 offen offset:%d %s' % (vr(T, 4), V_LANE16, sr(WS, 4), off & 4095, WT))]
    def jobs(rp):
        J = []
        for rb in (2 * rp, 2 * rp + 1):
            for s in range(2): J.append((rb * 8 + 2 * s, rb * 8 + 2 * s + 1, 16, (rb // 4) * 32768 + ((rb % 4) * 4 + s) * 1024))
        rb = 2 * rp
        for nb in range(4): J.append((rb * 8 + 4 + nb, (rb + 1) * 8 + 4 + nb, 17, (rb // 4) * 32768 + (((rb % 4) // 2) * 8 + nb) * 1024))
        return J
    J1 = jobs(3) + jobs(2); J2 = jobs(0) + jobs(1)
    a('s_waitcnt lgkmcnt(0)')
    rd = reads(1, 1, 1)
    pend += sc
    for g, m in enumerate(mfmas(0, False, (6, 7, 4, 5))):
        a(m)
        if rd: a(rd.pop(0))
        for _ in range(1 if rd else 2):
            while pend and pend[0] == 's_nop 0': pend.pop(0)
            if pend and not (_ == 1 and not isinstance(pend[0], str)): a(issue(pend.pop(0)))
    assert not any(x[0] == ('w', 0) for x in pend if not isinstance(x, str))
    a('s_waitcnt vmcnt(%d) lgkmcnt(0)' % vm.cnt(ids[('w', 0)]))
    a('s_barrier')
    pend += w_dma(2, 4)
    fq = []
    for n_, (b0, b1, sb, off) in enumerate(J1):
        T = 192 + 12 * (n_ % 4)
        fq += conv(b0, b1, T, T + 8) + ['ds_write_b128 v26, %s offset:%d' % (vr(T + 8, 4), 1024 * n_)]
        if n_ >= 8 and n_ < 12: fq += a_load(n_ - 8)
    for n in range(16): fq += w_read(0, n)
    tail = mfmas(1, False, (6, 7, 4, 5)) + mfmas(0, False, (0, 1, 2, 3)) + mfmas(1, False, (0, 1, 2, 3))
    per = -(-len(fq) // (len(tail) - 24))
    for g, m in enumerate(tail):
        a(m)
        if g < 22:
            for _ in range(2):
                while pend and pend[0] == 's_nop 0': pend.pop(0)
                if pend and not (_ == 1 and not isinstance(pend[0], str)): a(issue(pend.pop(0)))
        else:
            assert not pend
            for _ in range(per):
                if fq: a(issue(fq.pop(0)))
    assert not fq
    stamp(a, 5); cstamp(a, 2); stamp(a, 6); cstamp(a, 3); padp(a, 'p1')
    cq = []
    for n_, (b0, b1, sb, off) in enumerate(J2): cq += conv(b0, b1, 4 + 8 * (n_ % 2), 64 + 4 * n_)
    kv_sched = {}
    KVEND = int(os.environ.get('KVEND', 14))
    def kstep(n_): return 1 + (n_ * (KVEND - 1)) // 32
    for n_, (b0, b1, sb, off) in enumerate(J2):
        kv_sched.setdefault(kstep(n_), []).extend(store(64 + 4 * n_, sb, off))
        kv_sched.setdefault(kstep(n_) + 1, []).append('ds_read_b128 %s, v26 offset:%d' % (vr(64 + 4 * n_, 4), 1024 * n_))
    for n_, (b0, b1, sb, off) in enumerate(J1):
        kv_sched.setdefault(kstep(16 + n_), []).extend(store(64 + 4 * n_, sb, off))
    kv_poll0 = 'buffer_load_dwordx4 v[64:67], v52, %s, s79 offen %s' % (sr(WS, 4), WT)
    kv_poll = 'buffer_load_dwordx4 v[208:211], v%d, %s, s79 offen %s' % (V_PA, sr(WS, 4), WT)
    def kv_dma(m0expr, voff, ssrc, tag):
        return [m0expr, 's_nop 0'] + [(tag, 'buffer_load_dwordx4 v%d, %s, s%d offen offset:%d lds' % (voff, sr(WS, 4), ssrc, 1024 * j)) for j in range(4)]
    sTHR, sBIG, s2W, sM0, sM1, sDYN, sE0, sE1, sCNT = 64, 65, 66, 67, 68, 69, 70, 71, 63
    halves = []
    for k in range(16): halves += [(k, 0), (k, 1)]
    halves += [(k, 0) for k in range(16, 20)] + [(k, 1) for k in range(16, 20)]
    qe = ['s_mov_b32 s64, %s' % f2u(math.log2(math.e) / math.sqrt(128.0))]
    for qi in range(4):
        for s in range(4):
            r0, r1 = P_ACCV + ((2 * s) * 4 + qi) * 4, P_ACCV + ((2 * s + 1) * 4 + qi) * 4
            qe += ['v_mul_f32 v%d, s64, v%d' % (r + e, r + e) for r in (r0, r1) for e in range(4)]
            qe += ['v_cvt_pk_bf16_f32 v%d, v%d, v%d' % (r + e, r + 2 * e, r + 2 * e + 1) for r in (r0, r1) for e in range(2)]
            qe += ['v_accvgpr_write_b32 a%d, v%d' % (A_Q[qi // 2] + ((qi % 2) * 4 + s) * 4 + 2 * h + e, (r0, r1)[h] + e) for h in range(2) for e in range(2)]
    qe += ['v_and_b32 v5, 15, v0', 'v_lshrrev_b32 v6, 4, v0', 'v_lshlrev_b32 v6, 2, v6', 'v_sub_u32 v5, v5, v6']
    for r in range(4): qe += ['v_cmp_gt_i32 vcc, %d, v5\ns_nop 1\nv_cndmask_b32 v%d, 0, 1.0, vcc' % (r, TRI + r)]
    qe += ['v_mov_b32 v%d, 0x3f803f80' % (V_ONES + e) for e in range(4)] + ['v_mov_b32 v%d, 0' % (NEGM + j) for j in range(16)]
    qe += ['v_mov_b32 v%d, 0' % (V_L + j) for j in range(4)]
    qe += ['v_mov_b32 v%d, v%d' % (V_KRD, V_LANE16), 'v_add_u32 v%d, 65536, v%d' % (V_VRD, V_LANE16)]
    qe += ['s_lshl_b32 s8, s72, 10', 's_lshl_b32 s9, s73, 10', 's_lshl_b32 s10, s%d, 18' % sCT, 's_add_u32 s10, s10, 0x%x' % WS_H,
           's_cmp_eq_u32 s74, 0\ns_cselect_b32 s10, 0x20000000, s10', 's_add_u32 s8, s8, s10', 's_add_u32 s9, s9, s10',
           's_add_u32 s10, s8, %d' % (128 * 1024), 's_add_u32 s11, s9, %d' % (128 * 1024),
           's_sub_u32 s12, 7, s%d' % sW, 's_lshl_b32 s12, s12, 10', 'v_add_u32 v%d, s12, v%d' % (P_X0, V_LANE16),
           's_lshl_b32 s12, s%d, 10' % sW, 'v_add_u32 v%d, s12, v%d' % (P_X1, V_LANE16),
           's_mov_b32 s%d, %s' % (sTHR, f2u(THR)), 's_mov_b32 s%d, %s' % (sBIG, f2u(-BIG)), 's_sub_u32 s%d, 3, s%d' % (s2W, sW),
           's_cmp_eq_u32 s%d, 0\ns_cselect_b32 s%d, s%d, 0' % (sI, sDYN, sBIG)]
    pend = []; vq = cq; vper = 5; gcnt = 0; lastv = -10; P2SP = int(os.environ.get('P2SP', 4))
    for hi_, (k, part) in enumerate(halves):
        st, ks = k // 2, k % 2
        base = P_ACT + 16 * (k % 4)
        if part == 0:
            need = ids[('a', k)]
            if k == KVEND + 1:
                assert not any(x[0] == 'kv' for x in pend if not isinstance(x, str))
                need = max(need, ids['kv'])
            assert not any(x[0] == ('a', k) for x in pend if not isinstance(x, str))
            a('s_waitcnt vmcnt(%d) lgkmcnt(8)' % min(63, vm.cnt(need)))
            pend += kv_sched.get(k, [])
            if k == KVEND + 1: pend += [flag_store(75)]
            if k == 18: pend += [('kvp', kv_poll0)]
            if k == 12 and 'C' not in MX: pend += [('pf', 'global_load_dword v27, v55, s[100:101]')]
            if k > 0 and k + 3 < 20: pend = a_load(k + 3) + pend
        elif k == 16:
            a('s_waitcnt vmcnt(%d) lgkmcnt(8)' % vm.cnt(ids['kvp']))
            gate(kv_poll0, 64, 4, 1, 63)
            pend += kv_dma('s_add_u32 m0, s59, 0', V_LANE16, sBASE, 'k0') + kv_dma('s_add_u32 m0, s59, 16384', V_LANE16, sS1, 'k1')
            pend += kv_dma('s_add_u32 m0, s59, 32768', V_LANE16, sK0, 'k2') + kv_dma('s_add_u32 m0, s59, 65536', V_LANE16V, sBASE, 'v0')
            pend += kv_dma('s_add_u32 m0, s59, 49152', V_LANE16, sK1, 'k3') + kv_dma('s_add_u32 m0, s59, %d' % (65536 + 16384), V_LANE16V, sS1, 'v1')
            vq = qe; vper = 3
        else: a('s_waitcnt lgkmcnt(8)')
        for n in range(8 * part, 8 * part + 8):
            if n % 8 == 4: a('s_waitcnt lgkmcnt(%d)' % (8 if k < 19 else 0))
            if k == 0 and n == 8: assert len(vq) <= 96
            if k == 0 and n == 12: assert not vq
            for qi in range(4):
                d = vr(P_ACCV + (n * 4 + qi) * 4, 4) if n < 8 else ar(P_ACCA + ((n - 8) * 4 + qi) * 4, 4)
                a('%s %s, %s, %s, %s' % (MF16, d, wfr(k, n), ar(base + 4 * qi, 4), '0' if k == 0 else d))
                if qi < 3:
                    while pend and pend[0] == 's_nop 0': pend.pop(0)
                    if pend and (qi != 1 or not vq) and (isinstance(pend[0], str) or gcnt - lastv >= P2SP):
                        if not isinstance(pend[0], str): lastv = gcnt
                        a(issue(pend.pop(0)))
                gcnt += 1
                for _ in range(vper if qi < 3 else vper - 2):
                    if vq: a(vq.pop(0))
            if k + 1 < 20:
                if n == 0 and ks == 1:
                    assert not any(x[0] == ('w', st + 1) for x in pend if not isinstance(x, str))
                    a('s_waitcnt vmcnt(%d) lgkmcnt(0)' % min(63, vm.cnt(ids[('w', st + 1)])))
                    a('s_barrier')
                    if st + 3 < 10: pend = pend + w_dma(st + 3, 4)
                for s in w_read(k + 1, n): a(s)
        if part == 1 and k < 16: stamp(a, 1 + k, 'p2a')
        if hi_ >= 24: stamp(a, hi_ - 23, 'p2b')
    assert not pend and not vq
    stamp(a, 7); cstamp(a, 4); padp(a, 'p2')
    a('s_waitcnt vmcnt(%d)' % vm.cnt(max(ids['k2'], ids['v0'])))
    stamp(a, 8)
    a('s_barrier')
    hx = []
    for j_ in range(8):
        s, qi = j_ // 4, j_ % 4
        T = 192 + 20 * (j_ % 3)
        for cc in range(2):
            g = P_ACCA + ((2 * s + cc) * 4 + qi) * 4
            hx += ['v_accvgpr_read_b32 v%d, a%d' % (T + 8 * cc + e, g + e) for e in range(4)] + ['v_accvgpr_read_b32 v%d, a%d' % (T + 8 * cc + 4 + e, g + 64 + e) for e in range(4)]
            hx += ['v_mul_f32 v%d, v%d, v%d' % (T + 8 * cc + e, T + 8 * cc + e, T + 8 * cc + 4 + e) for e in range(4)]
            hx += ['v_cvt_pk_bf16_f32 v%d, v%d, v%d' % (T + 16 + 2 * cc + e, T + 8 * cc + 2 * e, T + 8 * cc + 2 * e + 1) for e in range(2)]
        hx.append('buffer_store_dwordx4 %s, v%d, %s, s%d offen %s' % (vr(T + 16, 4), (P_X0, P_X1)[qi % 2], sr(WS, 4), 8 + qi // 2 + 2 * s, WT))
    hx += ['%s %s, %s, %s, 0' % (MFMA, ar(16 * j_, 16), vr(NEGM, 4), vr(NEGM, 4)) for j_ in range(8)]
    hx += [kv_poll]
    def kread(i, p): return 'ds_read_b128 %s, v%d offset:%d' % (ar(A_RING + 4 * (i % R), 4), V_KRD, p * 16384 + i * 1024)
    def vread(i, p): return 'ds_read_b128 %s, v%d offset:%d' % (ar(A_RING + 4 * (i % R), 4), V_VRD, p * 16384 + i * 1024)
    for i in range(D): a(kread(i, 0))
    for s_ in hx[:16]: a(s_)
    hx = hx[16:]
    stamp(a, 9); stamp(a, 1, 'p3')
    def prefill(st, p, tau, dyn=False):
        qb = 1 - tau
        sref = sW if tau == 0 else s2W
        big = sDYN if dyn else sBIG
        out = []
        for kb in range(4):
            S = SB[st][p] + (kb * 2 + qb) * 4
            L = ['s_cmp_eq_u32 s%d, %d' % (sref, kb), 's_cselect_b32 s%d, s%d, 0' % (sM0, big)]
            t = NEGM + (st * 2 + qb) * 4
            if kb > 0:
                L += ['s_cmp_lt_u32 s%d, %d' % (sref, kb), 's_cselect_b32 s%d, s%d, 0' % (sM1, big), 'v_add_f32 v%d, s%d, v%d' % (V_T1, sM1, t)]
                t = V_T1
            L += ['v_fma_f32 v%d, v%d, s%d, v%d' % (S + r, TRI + r, sM0, t) for r in range(4)]
            out.append('\n'.join(L))
        return out
    def qk_mf(sets, p):
        G = []
        for f in range(16):
            kb, ds = f // 4, f % 4; L = []
            for st, qbs, inq in sets:
                for qb in qbs:
                    d = vr(SB[st][p] + (kb * 2 + qb) * 4, 4)
                    c = vr(NEGM + (st * 2 + qb) * 4, 4) if (ds == 0 and inq != qb) else d
                    L.append('%s %s, %s, %s, %s' % (MF16, d, ar(A_RING + 4 * (f % R), 4), ar(A_Q[st] + (qb * 4 + ds) * 4, 4), c))
            G.append(L)
        return G
    def pv_mf(sets, p):
        G = []
        for f in range(16):
            ks, db = f // 8, f % 8; L = []
            for st, qbs in sets:
                for qb in qbs:
                    d = ar(A_O[st] + (db * 2 + qb) * 4, 4)
                    L.append('%s %s, %s, %s, %s' % (MF16, d, ar(A_RING + 4 * (f % R), 4), vr(PB[st][p] + (qb * 2 + ks) * 4, 4), d))
            G.append(L)
        return G
    def pre_items(pf):
        a(pf[0]); a('s_nop 1')
        return [dict(lo=max(0, 4 * kb - 5), hi=4 * kb - 3, ins=pf[kb]) for kb in range(1, 4)]
    LGS = int(os.environ.get('LGS', 4)); LGW = int(os.environ.get('LGW', 0))
    rare_sites = []
    pk = Packer(a)
    def lg_items(n, skip_last):
        return [dict(lo=i - LGW, hi=i, lg=i + LGS) for i in range(LGS - 1, n, LGS) if not (i == n - 1 and skip_last)]
    def ladds(ex):
        return ['v_add_f32 v%d, v%d, v%d' % (V_L + st * 2 + qb, V_L + st * 2 + qb, LT + (st * 2 + qb) * 4) for st, qbs in ex for qb in qbs]
    def iteration(p, qk, ex, pv, prev_ex, nxt='k', dk=True, dv=True, loop_ctr=None, post_bar=(), mid=(), anyw=(), wv=None, pf=None, anylo=2, vx=0, lt=False):
        groups = []; rs = []
        pfi = pre_items(pf) if pf else []
        if qk:
            groups += qk_mf(qk, p); rs += [kread(i, p) for i in range(16)]
        groups += pv_mf(pv, p); rs += [vread(i, p) for i in range(16)]
        n = len(groups)
        nx = {'k': [kread(i, 1 - p) for i in range(D)], 'v': [vread(i, 1 - p) for i in range(D)], None: [None] * D}[nxt]
        rds = rs[D:] + nx
        bg = n - D
        it = [dict(lo=0, hi=0, ins=s, v=True) for s in ladds(prev_ex)] + pfi
        nd = 0
        if wv is None: gv, gm, gk, sl = {'0': ((2, 4, 5, 6), 8, (10, 12, 14, 16), 1), '1': ((1, 3, 5, 7), 8, (10, 12, 14, 16), 0), '2': ((1, 4, 6, 8), 9, (11, 13, 16, 18), 0)}[os.environ.get('DPOS', '0')]
        else:
            pos = [2 + 4 * j + wv for j in range(8)]
            gv = [x // 2 for x in pos[:4]]; gk = [x // 2 + 1 for x in pos[4:]]; gm = gv[3] + 1; sl = 0
        late = wv is not None and wv % 2 == 1
        if dv:
            it.append(dict(lo=0, hi=0 if gv[0] == 1 else 1, ins='s_sub_u32 m0, s%d, s%d' % ((sC0, sC1)[p], sT)))
            for j, i in enumerate(gv):
                it.append(dict(lo=i + (1 if late else 0), hi=i + sl, ins='buffer_load_dwordx4 v%d, %s, s%d offen offset:%d lds' % (V_LANE16V, sr(WS, 4), (sK0, sK1)[p], 1024 * j)))
            nd += 4
        if dk:
            it.append(dict(lo=gm, hi=gm + 1, ins='s_add_u32 m0, s%d, %d' % (sT, p * 16384)))
            it.append(dict(lo=gm, hi=gm + 1, ins='s_add_u32 s%d, s%d, 32768' % ((sK0, sK1)[p], (sK0, sK1)[1 - p])))
            for j, i in enumerate(gk):
                it.append(dict(lo=i + (1 if late else 0), hi=i + sl, ins='buffer_load_dwordx4 v%d, %s, s%d offen offset:%d lds' % (V_LANE16, sr(WS, 4), (sK0, sK1)[p], 1024 * j)))
            nd += 4
        if lt:
            vreg, ptr, step, lim = ((63, 14, 7 * 1024 * 128, SIZE['wo'] - 128), (62, 22, 3 * 1024 * 128, SIZE['wd'] - 128))[p]
            it.append(dict(lo=bg, hi=bg + 2, ins='global_load_dword v7, v%d, s[%d:%d]' % (vreg, ptr, ptr + 1)))
            it.append(dict(lo=bg + 3, hi=n - 2, ins='v_add_u32 v%d, 0x%x, v%d' % (vreg, step, vreg), v=True))
            it.append(dict(lo=bg + 3, hi=n - 1, ins='v_min_u32 v%d, 0x%x, v%d' % (vreg, lim, vreg), v=True))
            vx += 1
        nd += sum(1 for s in mid if s.startswith('buffer_'))
        if p == 1:
            if qk: it.append(dict(lo=16 - D, hi=bg - 1, ins='v_xor_b32 v%d, 32768, v%d' % (V_KRD, V_KRD), v=True))
            it.append(dict(lo=bg - 1 if nxt == 'v' else bg, hi=bg - 1 if nxt == 'v' else n - 1, ins='v_xor_b32 v%d, 32768, v%d' % (V_VRD, V_VRD), v=True))
            it.append(dict(lo=13, hi=n - 1, ins='s_xor_b32 s%d, s%d, 32768' % (sT, sT)))
        if nxt is not None:
            it.append(dict(lo=bg - 3, hi=bg - 2, ins='s_waitcnt vmcnt(%d)' % (nd + vx)))
            it.append(dict(lo=bg - 1, hi=bg - 1, ins='s_barrier'))
        it += lg_items(n, nxt is None)
        it.sort(key=lambda x: (x['hi'], x['lo']))
        for j, s in enumerate(mid):
            g_ = 9 + (j * (bg - 4 - 9)) // len(mid)
            it.append(dict(lo=g_, hi=bg - 4, ins=s))
        for j, s in enumerate(anyw):
            it.append(dict(lo=anylo, hi=n - 1, ins=s))
        lo0 = bg if nxt is not None else 0
        for j, s in enumerate(post_bar):
            it.append(dict(lo=lo0 + (j * (n - lo0)) // len(post_bar), hi=n - 1, ins=s))
        fin = []
        if ex:
            lts = [LT + (st * 2 + qb) * 4 for st, qbs in ex for qb in qbs]
            cur = lts[0]
            if len(lts) == 2: fin.append('v_max_f32 v%d, v%d, v%d' % (V_T0, lts[0], lts[1])); cur = V_T0
            if len(lts) >= 3: fin.append('v_max3_f32 v%d, v%d, v%d, v%d' % (V_T0, lts[0], lts[1], lts[2])); cur = V_T0
            if len(lts) == 4: fin.append('v_max_f32 v%d, v%d, v%d' % (V_T0, V_T0, lts[3]))
            fin.append('v_cmp_lt_f32 vcc, s%d, v%d' % (sTHR, cur))
        pk.run(groups, rds, it, [(st, 1 - p, qbs) for st, qbs in ex], [], fin, (1, p) if qk else None, True)
        if loop_ctr: a('s_sub_u32 s%d, s%d, 1' % (loop_ctr[0], loop_ctr[0]))
        if ex:
            stub, back = a.newlabel(name + '_rs'), a.newlabel(name + '_rb')
            a('s_cbranch_vccnz %s' % stub)
            a.label(back)
            rare_sites.append((stub, back, 1 - p, ex))
        if loop_ctr: a('s_cbranch_scc0 %s' % loop_ctr[1])
    def epilogue(st):
        a('s_lshl_b32 s%d, s%d, 10' % (sE0, sQ[st]))
        a('s_lshl_b32 s%d, s%d, 19' % (sE1, sH))
        a('s_add_u32 s%d, s%d, s%d' % (sE0, sE0, sE1))
        a('s_add_u32 s%d, s%d, 0x%x' % (sE0, sE0, WS_CTX))
        a('s_lshl_b32 s%d, s%d, 10' % (sM1, sW))
        a('s_sub_u32 s%d, s%d, s%d' % (sM0, sE0, sM1)); a('s_add_u32 s%d, s%d, 7168' % (sM0, sM0))
        a('s_add_u32 s%d, s%d, s%d' % (sM1, sE0, sM1))
        a('v_rcp_f32 v%d, v%d' % (V_T0, V_L + st * 2))
        a('v_rcp_f32 v%d, v%d' % (V_T1, V_L + st * 2 + 1))
        a('s_nop 1')
        c3 = 0
        for s in range(4):
            for qb in range(2):
                T = SB[st][0] + 16 * (c3 % 4); c3 += 1
                for cc in range(2):
                    for e in range(4): a('v_accvgpr_read_b32 v%d, a%d' % (T + 4 * cc + e, A_O[st] + ((2 * s + cc) * 2 + qb) * 4 + e))
                for e in range(8): a('v_mul_f32 v%d, v%d, v%d' % (T + e, T + e, (V_T0, V_T1)[qb]))
                for e in range(4): a('v_cvt_pk_bf16_f32 v%d, v%d, v%d' % (T + 8 + e, T + 2 * e, T + 2 * e + 1))
                a('s_add_u32 s%d, s%d, %d' % (sE1, (sM0, sM1)[qb], s * 128 * 1024))
                a(issue(('ctx', 'buffer_store_dwordx4 %s, v%d, %s, s%d offen %s' % (vr(T + 8, 4), V_LANE16, sr(WS, 4), sE1, WT))))
    AH, AC, WD4, WO4, X4, OUT = R1, R2, R3, R4, R5, 4
    sRO, sRT, sCT4, sAC, sWW, sVAL, sXO, sSW, sLD, sW2, sAC0, sWW0 = 8, 9, 10, 11, 12, 74, 13, 18, 19, 20, 26, 27
    sS1, sS0, sR0, sR1 = 16, 17, 21, 62
    WS_EX = 0x8000000
    FX = WS_FLG + 65536
    a_real = a; a = Asm()
    a('s_lshr_b32 s67, s2, 3')
    a('s_cmp_lt_u32 s67, 30'); a('s_cselect_b32 s%d, 1, 0' % sVAL)
    a('s_min_u32 s67, s67, 29')
    a('s_mul_i32 s68, s67, 205'); a('s_lshr_b32 s68, s68, 10')
    a('s_mul_i32 s69, s68, 5'); a('s_sub_u32 s%d, s67, s69' % sCT4)
    a('s_and_b32 s69, s2, 7'); a('s_lshl_b32 s69, s69, 2'); a('s_lshr_b32 s69, %s, s69' % os.environ.get('GMAP', '0x07362514')); a('s_and_b32 s69, s69, 7')
    a('s_mul_i32 s69, s69, 6'); a('s_add_u32 s69, s69, s68')
    a('s_lshr_b32 s%d, s69, 4' % sRO); a('s_and_b32 s%d, s69, 15' % sRT)
    for s in srd('x', X4) + srd('out', OUT): a(s)
    a('s_add_u32 s70, s%d, 2' % sRO); a('s_cmp_eq_u32 s%d, 0' % sRO); a('s_cselect_b32 s71, 0, 3'); a('s_sub_u32 s70, s70, s71')
    a('s_cmp_eq_u32 s%d, 0' % sRO); a('s_cselect_b32 s71, 40, 44'); a('s_mul_i32 s71, s71, s%d' % sVAL)
    a('s_mul_i32 s67, s%d, %d' % (sRO, 18 * 131072)); a('s_add_u32 s67, s67, 0x%x' % WS_H)
    a('s_add_u32 s%d, s28, s67' % AH); a('s_addc_u32 s%d, s29, 0' % (AH + 1)); a('s_mul_i32 s%d, s%d, %d' % (AH + 2, sVAL, 18 * 131072))
    a('s_mul_i32 s67, s70, %d' % (44 * 131072)); a('s_add_u32 s67, s67, 0x%x' % WS_CTX)
    a('s_add_u32 s%d, s28, s67' % AC); a('s_addc_u32 s%d, s29, 0' % (AC + 1)); a('s_lshl_b32 s%d, s71, 17' % (AC + 2))
    a('s_mul_i32 s67, s%d, %d' % (sRO, 18 * 32 * 1280))
    a('s_add_u32 s%d, s22, s67' % WD4); a('s_addc_u32 s%d, s23, 0' % (WD4 + 1)); a('s_mul_i32 s%d, s%d, %d' % (WD4 + 2, sVAL, 18 * 32 * 1280))
    a('s_mul_i32 s67, s70, %d' % (44 * 32 * 1280))
    a('s_add_u32 s%d, s14, s67' % WO4); a('s_addc_u32 s%d, s15, 0' % (WO4 + 1)); a('s_mul_i32 s%d, s71, %d' % (WO4 + 2, 32 * 1280))
    for r_ in (AH, AC, WD4, WO4): a('s_mov_b32 s%d, 0x00020000' % (r_ + 3))
    a('s_cmp_eq_u32 s%d, 2' % sRO); a('s_cselect_b32 s%d, 1, 0' % sSW)
    VA0, VA1, VWO, VRD, VX, VPL = 16, 17, 18, 32, 20, 200
    a('s_lshl_b32 s%d, s%d, 2' % (sAC, sRT)); a('s_add_u32 s%d, s%d, s%d' % (sAC, sAC, sW))
    a('s_lshl_b32 s67, s%d, 1' % sAC); a('s_add_u32 s67, s67, s%d' % sSW)
    a('s_mul_i32 s%d, s67, %d' % (sXO, 16 * 1280)); a('s_lshl_b32 s68, s%d, 8' % sCT4); a('s_add_u32 s%d, s%d, s68' % (sXO, sXO))
    a('s_lshl_b32 s%d, s%d, 11' % (sAC, sAC)); a('s_mov_b32 s%d, s%d' % (sAC0, sAC))
    a('s_lshl_b32 s67, s%d, 10' % sSW)
    a('v_add_u32 v%d, s67, v%d' % (VA0, V_LANE16))
    a('v_xor_b32 v%d, 1024, v%d' % (VA1, VA0))
    a('s_mul_i32 s%d, s%d, %d' % (sWW, sW, 16 * 1280)); a('s_add_u32 s%d, s%d, s68' % (sWW, sWW)); a('s_mov_b32 s%d, s%d' % (sWW0, sWW))
    a('v_lshrrev_b32 v5, 3, v0'); a('v_mul_u32_u24 v5, 1280, v5')
    a('v_bfe_u32 v6, v0, 1, 2'); a('v_bfe_u32 v7, v0, 4, 2'); a('v_xor_b32 v6, v6, v7')
    a('v_lshl_add_u32 v5, v6, 5, v5'); a('v_and_b32 v6, 1, v0')
    a('v_lshl_add_u32 v%d, v6, 4, v5' % VWO)
    a('v_add_u32 v%d, %d, v%d' % (VWO + 1, 8 * 1280 - 1024, VWO))
    a('v_lshrrev_b32 v5, 2, v0'); a('v_lshlrev_b32 v5, 7, v5'); a('v_and_b32 v6, 3, v0'); a('v_lshl_add_u32 v5, v6, 3, v5')
    a('v_bfe_u32 v6, v0, 3, 2')
    for c in range(4):
        a('v_xor_b32 v7, %d, v6' % c)
        a('v_lshl_add_u32 v%d, v7, 5, v5' % (VRD + c))
        a('v_add_u32 v%d, 65536, v%d' % (VRD + 4 + c, VRD + c))
    a('v_lshrrev_b32 v5, 4, v0'); a('v_mul_u32_u24 v5, 5120, v5'); a('v_and_b32 v6, 15, v0')
    a('v_lshl_add_u32 v%d, v6, 4, v5' % VX)
    a('v_and_b32 v%d, 0x1f0, v%d' % (VPL, V_LANE16))
    a('s_mul_i32 s67, s%d, 4608' % sW)
    a('v_and_b32 v5, 15, v0'); a('v_mul_u32_u24 v5, 272, v5'); a('v_lshrrev_b32 v6, 4, v0'); a('v_lshl_add_u32 v5, v6, 3, v5')
    a('v_add_u32 v21, s67, v5')
    a('v_mul_u32_u24 v6, 1088, v6'); a('v_and_b32 v5, 15, v0'); a('v_lshl_add_u32 v5, v5, 4, v6')
    a('v_add_u32 v23, s67, v5')
    a('s_sub_u32 s67, 15, s%d' % sRT); a('s_min_u32 s67, s67, s%d' % sRT)
    a('s_lshl_b32 s79, s67, 9'); a('s_add_u32 s79, s79, 0x%x' % FH)
    a('s_lshl_b32 s76, s%d, 9' % sRT); a('s_add_u32 s76, s76, 0x%x' % FC)
    a('s_mul_i32 s67, s%d, 5' % sRT); a('s_add_u32 s67, s67, s%d' % sCT4)
    a('s_lshl_b32 s68, s67, 2'); a('s_add_u32 s68, s68, s%d' % sW)
    a('s_lshl_b32 s75, s68, 10'); a('s_add_u32 s75, s75, 0x%x' % FX)
    a('s_lshl_b32 s68, s68, 16'); a('s_add_u32 s68, s68, 0x%x' % WS_EX)
    a('s_add_u32 s67, s%d, 1' % sRO); a('s_lshl_b32 s67, s67, 13'); a('s_add_u32 s%d, s68, s67' % sS1)
    a('s_cmp_eq_u32 s%d, 0' % sRO); a('s_cselect_b32 s%d, s68, 0x20000000' % sS0)
    a('s_cmp_eq_u32 s%d, 0' % sVAL); a('s_cselect_b32 s%d, 0x20000000, s%d' % (sS0, sS0)); a('s_cselect_b32 s%d, 0x20000000, s%d' % (sS1, sS1))
    a('s_lshl_b32 s67, s%d, 13' % sSW); a('s_add_u32 s%d, s68, s67' % sR0)
    a('s_sub_u32 s67, 3, s%d' % sSW); a('s_lshl_b32 s67, s67, 13'); a('s_add_u32 s%d, s68, s67' % sR1)
    a('s_cmp_eq_u32 s%d, 0' % sRO); a('s_cselect_b32 s%d, 0x20000000, s%d' % (sR0, sR0)); a('s_cselect_b32 s%d, 0x20000000, s%d' % (sR1, sR1))
    a('s_lshl_b32 s56, s%d, 7' % sRO); a('s_add_u32 s56, s56, s75')
    a('s_sub_u32 s67, 3, s%d' % sRO); a('s_cmp_eq_u32 s%d, 0' % sRO); a('s_cselect_b32 s67, 0, s67'); a('s_lshl_b32 s67, s67, 7')
    a('v_and_b32 v22, 1, v0'); a('v_mul_u32_u24 v22, s67, v22')
    a('s_lshl_b32 s%d, s%d, 11' % (sLD, sW))
    for c in range(4): a('v_add_u32 v%d, 131072, v%d' % (196 + c, VRD + c))
    setup4 = [re.sub(r'\bv([567])\b', lambda m: 'v%d' % (64 + int(m.group(1))), l.strip()) for l in a.lines]
    a = a_real
    grp4 = []
    for l in setup4:
        if l.startswith('s_cselect') or l.startswith('s_addc'): grp4[-1] += '\n' + l
        else: grp4.append(l)
    h_poll = 'buffer_load_dwordx4 v[192:195], v%d, %s, s79 offen %s' % (VPL, sr(WS, 4), WT)
    c_poll = 'buffer_load_dwordx4 v[24:27], v%d, %s, s76 offen %s' % (VPL, sr(WS, 4), WT)
    b_poll = 'buffer_load_dword v24, v22, %s, s75 offen %s' % (sr(WS, 4), WT)
    s_poll = 'buffer_load_dword v24, v22, %s, s75 offen offset:512 %s' % (sr(WS, 4), WT)
    WF4 = 64; ND4 = 18; NK = 62; LA4 = 15
    def accB(n, q): return 128 + (q * 8 + n) * 4
    def accS(n, q): return 192 + (q * 8 + n) * 4
    def act4(k, q): r = k % 16; return (r * 8 + q * 4) if r < 8 else (128 + (r - 8) * 8 + q * 4)
    def wslot(st): return 131072 + st * 16384 if st < 2 else ((st - 2) % 8) * 16384
    def w4_dma(st):
        L = []
        if st == ND4 // 2: L.append('s_mov_b32 s%d, s%d' % (sWW, sWW0))
        r_ = WD4 if st < ND4 // 2 else WO4
        for m in range(2):
            L += ['s_add_u32 m0, s%d, %d' % (sLD, wslot(st) + m * 8192), 's_nop 0' if m == 0 else 's_add_u32 s%d, s%d, 128' % (sW2, sWW)]
            L += [(('w4', st), 'buffer_load_dwordx4 v%d, %s, s%d offen offset:%d lds' % (VWO + j, sr(r_, 4), sWW if m == 0 else sW2, 1024 * j)) for j in range(2)]
        L.append('s_add_u32 s%d, s%d, %d' % (sWW, sWW, 64 * 1280))
        return L
    def a4_load(k):
        L = ['s_mov_b32 s%d, s%d' % (sAC, sAC0)] if k == ND4 else []
        return L + [(('a4', k), 'buffer_load_dwordx4 %s, v%d, %s, s%d offen' % (ar(act4(k, q), 4), (VA0, VA1)[q], sr(AH if k < ND4 else AC, 4), sAC)) for q in range(2)] + \
               ['s_add_u32 s%d, s%d, %d' % (sAC, sAC, 128 * 1024)]
    def w4_read(k, n):
        ad, ks = wslot(k // 2), k % 2
        reg = (VRD, VRD + 4, 196)[ad // 65536]
        return ['ds_read_b64_tr_b16 %s, v%d offset:%d' % (vr(WF4 + 4 * n + 2 * r, 2), reg + n % 4, ad % 65536 + (n // 4) * 8192 + (32 * ks + 16 * r) * 128) for r in range(2)]
    PK = 112
    def packs(accf):
        L = []
        for q in (1, 0):
            for n in range(8):
                dst = (accf(0, 1) if q else PK) + 2 * n
                L += ['v_cvt_pk_bf16_f32 v%d, v%d, v%d' % (dst + h, accf(n, q) + 2 * h, accf(n, q) + 2 * h + 1) for h in range(2)]
        return L
    def sends(accf, tag):
        return [(tag, 'buffer_store_dwordx4 %s, v%d, %s, s%d offen offset:%d %s' % (vr((accf(0, 1) if q else PK) + 4 * j, 4), V_LANE16, sr(WS, 4), (sS0, sS1)[q], j * 1024, WT))
                for q in (1, 0) for j in range(4)]
    def recvs(dst, tag):
        return [(tag, 'buffer_load_dwordx4 %s, v%d, %s, s%d offen offset:%d' % (vr(dst + 16 * src_ + 4 * j, 4), V_LANE16, sr(WS, 4), (sR0, sR1)[src_], j * 1024))
                for j in range(4) for src_ in range(2)]
    def unp_add(B, dst, n, T):
        L = []
        for src_ in range(2):
            for h in range(2):
                r = dst + 16 * src_ + 2 * n + h
                L += ['v_lshlrev_b32 v%d, 16, v%d' % (T + 2 * h, r), 'v_and_b32 v%d, s65, v%d' % (T + 2 * h + 1, r)]
            L += ['v_add_f32 v%d, v%d, v%d' % (B + e, B + e, T + e) for e in range(4)]
        return L
    XR4 = 96
    xl = [('x4', 'buffer_load_dwordx4 %s, v%d, %s, s%d offen offset:%d' % (vr(XR4 + 4 * j, 4), VX, sr(X4, 4), sXO, 1280 * j)) for j in range(4)]
    F = (0, 1); H_ = (0,)
    pfi = pre_items(prefill(0, 0, 0, dyn=True))
    a('s_waitcnt lgkmcnt(%d)' % (D - LGS))
    rds = [kread(i, 0) for i in range(D, 16)] + [kread(i, 1) for i in range(D)]
    it = lg_items(16, False) + pfi; it.sort(key=lambda x: (x['hi'], x['lo']))
    pk.run(qk_mf([(1, F, None), (0, F, 1)], 0), rds, it, [], hx, [], None, False)
    a('s_nop 3'); stamp(a, 2, 'p3')
    for st in range(2):
        for qb in range(2):
            for s in max_ops(st, 0, qb, V_T0, V_T1): a(s)
            for e in range(4): a('v_sub_f32 v%d, 0, v%d' % (NEGM + (st * 2 + qb) * 4 + e, V_T0))
    pfi = pre_items(prefill(0, 1, 1, dyn=True))
    rds = [kread(i, 1) for i in range(D, 16)] + [kread(i, 0) for i in range(D)]
    it = lg_items(16, False) + pfi + [dict(lo=16 - D - 1, hi=16 - D - 1, ins='v_xor_b32 v%d, 32768, v%d' % (V_KRD, V_KRD), v=True)]
    it.sort(key=lambda x: (x['hi'], x['lo']))
    pk.run(qk_mf([(1, F, None), (0, F, 0)], 1), rds, it, [(1, 0, F), (0, 0, F)], [], [], (1, 1), False, sub=True)
    a('s_waitcnt vmcnt(0)')
    a(flag_store(76)[1])
    gate(kv_poll, 208, 4, 1, 63)
    LTO = 'w' in MX
    if LTO:
        a('s_lshl_b32 s67, s2, 2'); a('s_add_u32 s67, s67, s%d' % sW)
        a('s_mul_i32 s68, s67, 7'); a('v_min_u32 v63, 6, v0'); a('v_add_u32 v63, s68, v63'); a('v_lshlrev_b32 v63, 7, v63')
        a('s_mul_i32 s68, s67, 3'); a('v_min_u32 v62, 2, v0'); a('v_add_u32 v62, s68, v62'); a('v_lshlrev_b32 v62, 7, v62')
    stamp(a, 10); cstamp(a, 5); stamp(a, 3, 'p3')
    lA, lA_skip, lA_tail2 = name + '_loopA', name + '_skipA', name + '_tail2A'
    a('s_cmp_eq_u32 s%d, 0' % sI)
    a('s_cbranch_scc1 %s' % lA_tail2)
    a('s_sub_u32 s%d, s%d, 2' % (sCNT, sI))
    a('s_cbranch_scc1 %s' % lA_skip)
    cstamp(a, 3, 'cyb')
    a.raw('.p2align 6')
    a.label(lA)
    qB = (1, F, None); BA = [(1, F), (0, F)]; B_ = [(1, F)]; BAh = [(1, F), (0, H_)]; Bh = [(1, H_)]
    iteration(0, [qB, (0, F, None)], BA, BA, BA, lt=LTO)
    iteration(1, [qB, (0, F, None)], BA, BA, BA, loop_ctr=(sCNT, lA), lt=LTO)
    cstamp(a, 4, 'cyb')
    a.label(lA_skip)
    stamp(a, 4, 'p3')
    iteration(0, [qB, (0, F, 1)], BA, BA, BA, pf=prefill(0, 0, 0))
    stamp(a, 5, 'p3')
    iteration(1, [qB, (0, H_, 0)], BA, BA, BA, pf=prefill(0, 1, 1))
    a.label(lA_tail2)
    stamp(a, 6, 'p3')
    l7, lBtail2 = name + '_i7', name + '_tail2B'
    a('s_cmp_eq_u32 s%d, 7' % sI)
    a('s_cbranch_scc1 %s' % l7)
    def txt(L): return [x if isinstance(x, str) else x[1] for x in L]
    acts = [a4_load(k) for k in range(16)]
    E1 = txt(xl); E2 = txt(w4_dma(0) + acts[0] + acts[1] + acts[2]); E3 = txt(w4_dma(1) + acts[3] + acts[4] + acts[5])
    E4 = txt(acts[6] + acts[7] + acts[8] + acts[9] + acts[10] + acts[11])
    wt = ['s_lshl_b32 s67, s2, 2', 's_add_u32 s67, s67, s%d' % sW, 's_mul_i32 s68, s67, 46', 'v_min_u32 v72, 45, v0', 'v_add_u32 v72, s68, v72',
          'v_min_u32 v72, 40959, v72', 'v_lshlrev_b32 v72, 7, v72', 'global_load_dword v63, v72, s[14:15]',
          's_mul_i32 s68, s67, 20', 'v_min_u32 v73, 19, v0', 'v_add_u32 v73, s68, v73', 'v_min_u32 v73, 17279, v73', 'v_lshlrev_b32 v73, 7, v73',
          'global_load_dword v63, v73, s[22:23]']
    iteration(0, [qB], BAh, BA, BA, post_bar=(() if 'w' in MX else wt))
    stamp(a, 7, 'p3')
    ct2 = ['s_getpc_b64 s[70:71]\n%s_pc3:\ns_add_u32 s70, s70, %s_loopB-%s_pc3\ns_addc_u32 s71, s71, 0' % (name, name, name),
           's_bfe_u32 s67, s2, 0x20003', 's_lshl_b32 s67, s67, 2', 's_add_u32 s67, s67, s%d' % sW, 's_mul_i32 s67, s67, %d' % (8 * 128),
           'v_min_u32 v72, 7, v0', 'v_lshlrev_b32 v72, 7, v72', 'v_add_u32 v72, s67, v72', 'global_load_dword v7, v72, s[70:71]'] if 'D' not in MX else []
    iteration(1, [qB], B_, BAh, BAh, anyw=grp4 + ct2 + [h_poll], vx=(0 if 'w' in MX else 2))
    stamp(a, 8, 'p3')
    epilogue(0)
    stamp(a, 9, 'p3')
    a('s_waitcnt vmcnt(8)')
    gate(h_poll, 192, 4, 1, 63)
    lB = name + '_loopB'
    a('s_lshl_b32 s%d, s%d, 1' % (sCNT, sI))
    a('s_sub_u32 s%d, 12, s%d' % (sCNT, sCNT))
    cstamp(a, 5, 'cyb'); stamp(a, 10, 'p3')
    a.raw('.p2align 6')
    a.label(lB)
    iteration(0, [qB], B_, B_, B_, lt=LTO)
    iteration(1, [qB], B_, B_, B_, loop_ctr=(sCNT, lB), lt=LTO)
    cstamp(a, 6, 'cyb'); stamp(a, 11, 'p3')
    if 'C' not in MX:
        E1 = E1 + ['s_getpc_b64 s[70:71]\n%s_pc2:\ns_add_u32 s70, s70, %s_tail2B-%s_pc2\ns_addc_u32 s71, s71, 0' % (name, name, name),
                   's_lshr_b32 s67, s2, 3', 's_lshl_b32 s67, s67, 2', 's_add_u32 s67, s67, s%d' % sW, 's_lshl_b32 s67, s67, 9',
                   'v_and_b32 v63, 3, v0', 'v_lshlrev_b32 v63, 7, v63', 'v_add_u32 v63, s67, v63', 'v_min_u32 v63, %s_codeend-%s_tail2B-4, v63' % (name, name),
                   'global_load_dword v63, v63, s[70:71]']
        E1b = E1[:4]
    else: E1b = E1
    iteration(0, [(1, F, 1)], B_, B_, B_, dk=False, mid=E1, post_bar=E2, pf=prefill(1, 0, 0))
    stamp(a, 12, 'p3')
    iteration(1, [(1, H_, 0)], B_, B_, B_, dk=False, nxt='v', mid=E3, post_bar=E4, pf=prefill(1, 1, 1), vx=sum(1 for s_ in E2 if s_.startswith('buffer_')) + sum(1 for s_ in E1 if s_.startswith('buffer_')))
    a('s_branch %s' % lBtail2)
    a.label(l7)
    iteration(0, [(1, F, 1)], BAh, BA, BA, dk=False, pf=prefill(1, 0, 0))
    iteration(1, [(1, H_, 0)], B_, BAh, BAh, dk=False, nxt='v', anyw=grp4 + [h_poll], pf=prefill(1, 1, 1), anylo=10)
    epilogue(0)
    a('s_waitcnt vmcnt(8)')
    gate(h_poll, 192, 4, 1, 63)
    for s_ in E2 + E3 + E4 + E1b: a(s_)
    a.label(lBtail2)
    stamp(a, 11); cstamp(a, 6); stamp(a, 13, 'p3')
    vm.n = 0; ids = {}
    for k in range(12): ids[('a4', k)] = -100
    ids[('w4', 0)] = ids[('w4', 1)] = -100
    sent = ['v_mov_b32 v%d, -1' % (116 + e) for e in range(4)] + ['s_add_u32 s67, s%d, 32768' % sS0, 's_add_u32 s68, s%d, 32768' % sS1]
    sent += [('sn', 'buffer_store_dwordx4 v[116:119], v%d, %s, s%d offen offset:%d %s' % (V_LANE16, sr(WS, 4), 67 + q, j * 1024, WT)) for j in range(4) for q in range(2)]
    e1 = [flag_store(77)[1]] + [issue(it) for it in w4_dma(2) + w4_dma(3) + sent]
    iteration(0, None, Bh, B_, B_, dk=False, dv=False, nxt='v', post_bar=e1)
    stamp(a, 14, 'p3')
    e2 = w4_dma(4) + acts[12] + acts[13] + w4_dma(5) + acts[14]
    iteration(1, None, [], Bh, Bh, dk=False, dv=False, nxt=None, post_bar=[issue(it) for it in e2])
    stamp(a, 12); stamp(a, 15, 'p3'); padp(a, 'p3')
    epilogue(1)
    stamp(a, 16, 'p3')
    notile = name + '_notile'
    a('s_cmp_eq_u32 s%d, 0' % sVAL)
    a('s_cbranch_scc1 %s' % notile)
    a('s_barrier')
    for n in range(8):
        for s_ in w4_read(0, n): a(s_)
    stamp(a, 13)
    def rnd_l(r0, r1, t):
        return ['v_cvt_pk_bf16_f32 v%d, v%d, v%d' % (t, r0, r1), 'v_lshlrev_b32 v%d, 16, v%d' % (r0, t), 'v_and_b32 v%d, s65, v%d' % (r1, t)]
    def rnd(r0, r1, t):
        for s_ in rnd_l(r0, r1, t): a(s_)
    RBv = accB(0, 1)
    def gate_calc(n):
        B = accB(n, 0); T = 40 + 4 * (n % 2); L = unp_add(B, RBv, n, T)
        for h in range(2): L += rnd_l(B + 2 * h, B + 2 * h + 1, T)
        L += ['v_mul_f32 v%d, s64, v%d' % (T + e, B + e) for e in range(4)]
        L += ['v_exp_f32 v%d, v%d' % (T + e, T + e) for e in range(4)]
        L += ['v_add_f32 v%d, 1.0, v%d' % (T + e, T + e) for e in range(4)]
        L += ['v_rcp_f32 v%d, v%d' % (T + e, T + e) for e in range(4)]
        L += ['v_mul_f32 v%d, v%d, v%d' % (B + e, B + e, T + e) for e in range(4)]
        for h in range(2): L += rnd_l(B + 2 * h, B + 2 * h + 1, T)
        return L
    def x_unpack():
        L = []
        for n in range(8):
            for h in range(2):
                x = XR4 + 2 * n + h; o = accB(n, 1) + 2 * h
                L += ['v_lshlrev_b32 v%d, 16, v%d' % (o, x), 'v_and_b32 v%d, s65, v%d' % (o + 1, x)]
        return L
    a('s_mov_b32 s64, %s' % f2u(-math.log2(math.e)))
    a('s_mov_b32 s65, 0xffff0000')
    pend = w4_dma(6) + w4_dma(7) + w4_dma(8) + w4_dma(9)
    slowq = []
    valq = []
    nxt_a = LA4
    KG = int(os.environ.get('KG', 15)); KCF = int(os.environ.get('KCF', 1)); PDL = 5; CUN = int(os.environ.get('CUN', 9))
    KS0, KFL, KBP, KRC = ND4 + 2, 30, 33, 48
    rbl = recvs(RBv, 'rb')
    for k in range(NK):
        assert not any(x[0] == ('a4', k) for x in pend if not isinstance(x, str))
        need = ids[('a4', k)]
        if k == KCF: need = max(need, ids['ctx'])
        if k == KG: need = max(need, ids['cp'])
        if k in (KFL, KRC): assert not slowq and not any(x[0] in ('sb', 'rb', 'x4') for x in pend if not isinstance(x, str))
        if k == KFL: need = max(need, ids['sb'])
        if k == KBP + PDL: need = max(need, ids['bp'])
        if k == KRC: need = max(need, ids['rb'])
        a('s_waitcnt vmcnt(%d) lgkmcnt(12)' % min(63, vm.cnt(need)))
        if k == KCF: pend = [flag_store(78)] + pend
        if k == KG - 3: pend = [('cp', c_poll)] + pend
        if k == KG: gate(c_poll, 24, 4, 1, 63)
        if k == KS0 - 1: valq += packs(accB)
        if k == KS0:
            assert not valq
            sl = sends(accB, 'sb'); slowq += [x for p_ in zip(sl[:4], sl[4:]) for x in p_]
        if k == KFL:
            pend = [flag_store(56), 's_add_u32 s56, s56, 512', 's_add_u32 s%d, s%d, 32768' % (sS0, sS0), 's_add_u32 s%d, s%d, 32768' % (sS1, sS1)] + pend
        if k == KBP: pend = [('bp', b_poll)] + pend
        if k == KBP + PDL:
            gate(b_poll, 24, 1, 1, 63)
            slowq += rbl
        if k == KRC:
            pend += ['s_add_u32 s%d, s%d, 32768' % (sR0, sR0), 's_add_u32 s%d, s%d, 32768' % (sR1, sR1)]
            for n in range(8): valq += gate_calc(n)
            valq += x_unpack()
        newa = []
        lim = min(NK, k + LA4 + 1) if k >= KG else ND4
        while nxt_a < min(lim, k + LA4 + 1) and len(newa) < CUN:
            newa += a4_load(nxt_a); nxt_a += 1
        pend = newa + slowq[:2] + pend; slowq = slowq[2:]
        accf = accB if k < ND4 else accS
        for n in range(8):
            if n % 2 == 0 and n > 0: a('s_waitcnt lgkmcnt(%d)' % (12 if k < NK - 1 else 2 * (6 - n)))
            for q in range(2):
                d = vr(accf(n, q), 4)
                a('%s %s, %s, %s, %s' % (MF16, d, vr(WF4 + 4 * n, 4), ar(act4(k, q), 4), '0' if k in (0, ND4) else d))
                if q == 0:
                    while pend and pend[0] == 's_nop 0': pend.pop(0)
                    if pend: a(issue(pend.pop(0)))
                    if pend and isinstance(pend[0], str) and pend[0] != 's_nop 0': a(pend.pop(0))
                    for _ in range(4):
                        if valq: a(valq.pop(0))
            if k + 1 < NK:
                if n == 0 and k % 4 == 3:
                    st = k // 2
                    key = ('w4', min(st + 2, NK // 2 - 1))
                    assert not any(x[0] == key for x in pend if not isinstance(x, str))
                    a('s_waitcnt vmcnt(%d) lgkmcnt(0)' % min(63, vm.cnt(ids[key])))
                    a('s_barrier')
                    for s2_ in (st + 7, st + 8):
                        if s2_ < NK // 2 and st >= 3: pend = pend + w4_dma(s2_)
                for s_ in w4_read(k + 1, n): a(s_)
        if k == ND4 - 1: stamp(a, 14); cstamp(a, 7)
        if k % 4 == 1: stamp(a, 1 + k // 4, 'p4')
        if k == ND4 + 39:
            assert not pend
            a('s_cmp_eq_u32 s%d, 0' % sRO)
            a('s_cbranch_scc1 %s_p4done' % name)
    assert not pend and not valq
    a.label(name + '_p4done')
    stamp(a, 15); cstamp(a, 8)
    a('s_nop 7')
    stamp(a, 1, 'fin')
    pl = packs(accS); sl = sends(accS, 'ss')
    def send_part(js):
        for j in js:
            for s_ in pl[4 * j:4 * j + 4]: a(s_)
            for s_ in pl[4 * j:4 * j + 4]:
                r_ = s_.split()[1].rstrip(',')
                a('v_min_u32 %s, -2, %s' % (r_, r_))
            a(sl[j][1])
    send_part(range(4))
    lfin = name + '_fin'
    a('s_cmp_lg_u32 s%d, 0' % sRO)
    a('s_cbranch_scc1 %s' % lfin)
    send_part(range(4, 8))
    stamp(a, 16)
    stamp_flush(a, 17)
    a('s_endpgm')
    a.label(lfin)
    stamp(a, 2, 'fin')
    RS = 64
    a('s_mov_b32 s63, 0x40000')
    a.label(name + '_rx')
    for it in recvs(RS, 'rs'): a(it[1] + ' ' + WT)
    a('s_waitcnt vmcnt(4)')
    for j in range(2):
        for src_ in range(2):
            r_ = RS + 16 * src_ + 4 * j
            if j == 0 and src_ == 0: a('v_max3_u32 v40, v%d, v%d, v%d' % (r_, r_ + 1, r_ + 2)); a('v_max_u32 v40, v40, v%d' % (r_ + 3))
            else: a('v_max3_u32 v40, v40, v%d, v%d' % (r_, r_ + 1)); a('v_max3_u32 v40, v40, v%d, v%d' % (r_ + 2, r_ + 3))
    a('s_waitcnt vmcnt(0)')
    for j in range(2, 4):
        for src_ in range(2):
            r_ = RS + 16 * src_ + 4 * j
            a('v_max3_u32 v40, v40, v%d, v%d' % (r_, r_ + 1)); a('v_max3_u32 v40, v40, v%d, v%d' % (r_ + 2, r_ + 3))
    a('v_cmp_eq_u32 vcc, -1, v40')
    a('s_sub_u32 s63, s63, 1')
    a('s_cbranch_scc1 %s_rxok' % name)
    a('s_cbranch_vccnz %s_rx' % name)
    a.label(name + '_rxok')
    stamp(a, 6, 'fin')
    for n in range(8):
        if n in (0, 7): stamp(a, 7 + n // 7, 'fin')
        S = accS(n, 0); T = 96 + 2 * n
        for s_ in unp_add(S, RS, n, 40): a(s_)
        for h in range(2): rnd(S + 2 * h, S + 2 * h + 1, 56)
        for e in range(4): a('v_mul_f32 v%d, v%d, v%d' % (S + e, S + e, accB(n, 0) + e))
        for h in range(2): a('v_cvt_pk_bf16_f32 v%d, v%d, v%d' % (T + h, S + 2 * h, S + 2 * h + 1))
        a('ds_write_b64 v21, %s offset:%d' % (vr(T, 2), 32768 + 32 * n))
    for j in range(4): a('ds_read_b128 %s, v23 offset:%d' % (vr(64 + 4 * j, 4), 32768 + 272 * j))
    for j in range(4):
        a('s_waitcnt lgkmcnt(%d)' % (3 - j))
        X_ = accB(0, 1) + 8 * j
        for e in range(4):
            a('v_lshlrev_b32 v40, 16, v%d' % (64 + 4 * j + e)); a('v_and_b32 v41, s65, v%d' % (64 + 4 * j + e))
            a('v_add_f32 v40, v40, v%d' % (X_ + 2 * e)); a('v_add_f32 v41, v41, v%d' % (X_ + 2 * e + 1))
            a('v_cvt_pk_bf16_f32 v%d, v40, v41' % (80 + 4 * j + e))
        a('buffer_store_dwordx4 %s, v%d, %s, s%d offen offset:%d %s' % (vr(80 + 4 * j, 4), VX, sr(OUT, 4), sXO, 1280 * j, OUTF))
    if os.environ.get('PADT'):
        if os.environ.get('PADG'):
            a('s_mov_b32 s96, 0x%x' % FL)
            a('buffer_load_dwordx4 v[4:7], v%d, %s, s96 offen offset:2048 %s' % (V_LANE16, sr(WS, 4), WT))
            a('s_waitcnt vmcnt(0)')
            for e in range(4): a('v_subrev_u32 v%d, s97, v%d' % (4 + e, 4 + e))
            a('v_min_i32 v4, v4, v5'); a('v_min_i32 v6, v6, v7'); a('v_min_i32 v4, v4, v6'); a('s_mov_b32 s96, 0'); a('s_nop 1')
            for l in range(64):
                a('v_readlane_b32 s95, v4, %d' % l); a('s_nop 3'); a('s_min_i32 s96, s96, s95')
            a('s_add_u32 s97, s97, s96')
        a.label(name + '_padl')
        a('s_memrealtime s[98:99]'); a('s_waitcnt lgkmcnt(0)'); a('s_sub_u32 s98, s98, s97'); a('s_cmp_lt_u32 s98, %d' % int(os.environ['PADT']))
        a('s_cbranch_scc1 %s_padl' % name)
    stamp(a, 16); stamp(a, 9, 'fin')
    stamp_flush(a, 17)
    a('s_endpgm')
    a.label(notile)
    a('s_waitcnt vmcnt(0)')
    a(flag_store(78)[1])
    a.label(end)
    a('s_endpgm')
    for slow, ok, load_ins, chk, ts in slow_paths:
        a.label(slow)
        a('s_mov_b32 s%d, 0x40000' % ts)
        lp = a.newlabel(name + '_sp')
        a.label(lp)
        a('s_sleep 1')
        a(load_ins)
        a('s_waitcnt vmcnt(0)')
        for s in chk: a(s)
        a('s_nop 1')
        a('s_cbranch_vccz %s' % ok)
        a('s_sub_u32 s%d, s%d, 1' % (ts, ts))
        a('s_cbranch_scc0 %s' % lp)
        a('s_branch %s' % ok)
    for stub, back, pc, ex in rare_sites:
        a.label(stub)
        for st, qbs in sorted(ex):
            a('s_mov_b32 s69, %s' % ('1.0' if 1 in qbs else '0'))
            a('s_call_b64 s[100:101], %s_rare%d%d' % (name, pc, st))
        a('s_branch %s' % back)
    for pc in range(2):
        for st in range(2):
            a.label('%s_rare%d%d' % (name, pc, st))
            a('s_nop 7')
            for qb in range(2):
                for s in max_ops(st, pc, qb, V_T0, V_T1): a(s)
                a('v_max_f32 v%d, 0, v%d' % (V_T0, V_T0))
                if qb == 1: a('v_mul_f32 v%d, s69, v%d' % (V_T0, V_T0))
                a('v_exp_f32 v%d, -v%d' % (V_T1, V_T0))
                for e in range(4): a('v_sub_f32 v%d, v%d, v%d' % (NEGM + (st * 2 + qb) * 4 + e, NEGM + (st * 2 + qb) * 4 + e, V_T0))
                for pp in range(2):
                    for kb in range(4):
                        for r in range(4):
                            x = SB[st][pp] + (kb * 2 + qb) * 4 + r
                            a('v_sub_f32 v%d, v%d, v%d' % (x, x, V_T0))
                a('v_mul_f32 v%d, v%d, v%d' % (V_L + st * 2 + qb, V_L + st * 2 + qb, V_T1))
                for db in range(0, 8, 2):
                    regs = [A_O[st] + ((db + h) * 2 + qb) * 4 + e for h in range(2) for e in range(4)]
                    for e in range(8): a('v_accvgpr_read_b32 v%d, a%d' % (TMP + e, regs[e]))
                    for e in range(8): a('v_mul_f32 v%d, v%d, v%d' % (TMP + e, TMP + e, V_T1))
                    for e in range(8): a('v_accvgpr_write_b32 a%d, v%d' % (regs[e], TMP + e))
            for s in exp_ops(st, pc): a(s)
            if st == 1:
                for k, (s, _, _) in enumerate(exp_seq(1, 1 - pc)[:EARLY]): a('v_exp_f32 v%d, v%d' % (TMP + k, s))
            a('s_nop 7')
            a('s_setpc_b64 s[100:101]')
    a.label(name + '_codeend')
    if os.environ.get('PADEND'): a.raw('.fill 8192, 4, 0xBF810000')
    kernel_desc(a, name, 512, 256)
    return a
```

```python
from common import *
import common
import math, copy, re
import k2 as K2
from k2 import VM, Packer, exp_seq, exp_ops, max_ops, EARLY
from k2 import V_LANE16, V_LANE16V, V_KRD, V_VRD, V_T0, V_T1, V_L, TRI, NEGM, LT, TMP, SB, PB, A_O, A_Q, A_RING, V_ONES, D, R, THR, BIG

OUTF = os.environ.get('OUTF', 'sc0 sc1')
WT = 'sc0 sc1'
WS_FLG = 0x7000000
FK, FH, FC, FL, FE = WS_FLG, WS_FLG + 4096, WS_FLG + 8192, WS_FLG + 16384, WS_FLG + 20480
PTR = dict(x=4, ckv=6, wq=8, wuk=10, wuv=12, wo=14, wg=18, wu=20, wd=22, out=24, dbg=26, ws=28)
WS, R1, R2, R3, R4, R5 = 32, 36, 40, 44, 48, 52
sW, sH, sI = 30, 31, 3
V_ONE, V_1 = 60, 61
V_PA, V_PD = 62, 24

SMODE = os.environ.get('SMODE', 'all')
def stamp(a, i, mode='all'):
    if not DIAG: return
    if mode != SMODE and i != 0: return
    a('s_memrealtime s[98:99]'); a('s_waitcnt lgkmcnt(0)'); a('s_mov_b32 s%d, s98' % (80 + i))
def cstamp(a, i, mode='cyc'):
    if not DIAG or mode != SMODE: return
    a('s_memrealtime s[98:99]'); a('s_waitcnt lgkmcnt(0)'); a('s_mov_b32 s%d, s98' % (80 + i + 8))
    a('s_memtime s[98:99]'); a('s_waitcnt lgkmcnt(0)'); a('s_mov_b32 s%d, s98' % (80 + i))
def stamp_flush(a, n):
    if not DIAG: return
    if os.environ.get('DBGOUT'):
        a('s_load_dwordx2 s[36:37], s[0:1], 88')
        a('s_mov_b32 s38, 256'); a('s_mov_b32 s39, 0x00020000')
        a('s_lshl_b32 s98, s2, 2'); a('s_add_u32 s98, s98, s%d' % sW)
        a('s_cmp_eq_u32 s98, %d' % (4 * int(os.environ['DBGOUT'])))
        a('s_cselect_b32 s98, 0, 0x1000')
        a('s_waitcnt lgkmcnt(0)')
        a('v_mov_b32 v0, 0')
        for i in range(1, n):
            a('s_sub_u32 s99, s%d, s80' % (80 + i))
            a('v_mov_b32 v1, s99')
            a('buffer_store_dword v1, v0, s[36:39], s98 offen offset:%d' % (4 * (i - 1)))
            a('s_nop 1')
        return
    a('s_lshl_b32 s98, s2, 2'); a('s_add_u32 s98, s98, s%d' % sW); a('s_lshl_b32 s98, s98, 7')
    a('s_add_u32 s98, s98, 0x%x' % WS_STAMP)
    a('v_mov_b32 v0, 0')
    for i in range(n):
        a('v_mov_b32 v1, s%d' % (80 + i))
        a('buffer_store_dword v1, v0, %s, s98 offen offset:%d' % (sr(WS, 4), 4 * i))
        a('s_nop 1')

def padp(a, tag):
    v = os.environ.get('PADP', '')
    if not v.startswith(tag + ':'): return
    l = a.newlabel('L_pp'); a.label(l)
    a('s_memrealtime s[98:99]'); a('s_waitcnt lgkmcnt(0)'); a('s_sub_u32 s98, s98, s97'); a('s_cmp_lt_u32 s98, %d' % int(v.split(':')[1])); a('s_cbranch_scc1 %s' % l)
def srd(name, r, off=0, size=None):
    p = PTR[name]
    L = []
    if off:
        L += ['s_add_u32 s%d, s%d, 0x%x' % (r, p, off), 's_addc_u32 s%d, s%d, 0' % (r + 1, p + 1)]
    else:
        L += ['s_mov_b32 s%d, s%d' % (r, p), 's_mov_b32 s%d, s%d' % (r + 1, p + 1)]
    L += ['s_mov_b32 s%d, 0x%x' % (r + 2, SIZE[name] if size is None else size), 's_mov_b32 s%d, 0x00020000' % (r + 3)]
    return L

def gen_mega(a, name):
    kernel_begin(a, name)
    end = name + '_end'
    slow_paths = []
    def gate(load_ins, dreg, n, want, tmp_s):
        def chk():
            L = ['v_xor_b32 v%d, v%d, v%d' % (dreg + e, dreg + e, V_1) for e in range(n)]
            if n >= 3: L += ['v_or3_b32 v%d, v%d, v%d, v%d' % (dreg, dreg, dreg + 1, dreg + 2)]
            if n == 4: L += ['v_or_b32 v%d, v%d, v%d' % (dreg, dreg, dreg + 3)]
            L += ['v_cmp_ne_u32 vcc, 0, v%d' % dreg]
            return L
        slow, ok = a.newlabel(name + '_sl'), a.newlabel(name + '_ok')
        for s in chk(): a(s)
        a('s_nop 1')
        a('s_cbranch_vccnz %s' % slow)
        a.label(ok)
        slow_paths.append((slow, ok, load_ins, chk(), tmp_s))

    a('s_cmp_ge_u32 s2, 256')
    a('s_cbranch_scc1 %s' % end)
    if os.environ.get('PADT') or os.environ.get('PADP'):
        a('s_memrealtime s[98:99]'); a('s_waitcnt lgkmcnt(0)'); a('s_mov_b32 s97, s98')
    stamp(a, 0)
    a('s_load_dwordx16 s[4:19], s[0:1], 0')
    a('s_load_dwordx8 s[20:27], s[0:1], 64')
    a('s_load_dwordx2 s[28:29], s[0:1], 96')
    if 'e' in os.environ.get('MX', ''):
        a('s_getpc_b64 s[100:101]')
        a('v_lshlrev_b32 v2, 7, v0')
        a('global_load_dword v250, v2, s[100:101]')
    a('v_lshrrev_b32 v1, 6, v0')
    a('v_and_b32 v0, 63, v0')
    a('v_readfirstlane_b32 s%d, v1' % sW)
    a('s_and_b32 s31, s2, 7')
    a('s_lshl_b32 s31, s31, 2')
    a('s_lshr_b32 s61, s2, 3')
    a('s_and_b32 s61, s61, 3')
    a('s_add_u32 s31, s31, s61')
    a('s_lshr_b32 s3, s2, 5')
    CKV, WUK, WUV, X, DBG = R1, R2, R3, R4, R5
    VA, VW = 8, 12
    a('v_lshrrev_b32 v6, 3, v0')
    a('v_lshlrev_b32 v6, 10, v6')
    a('v_lshrrev_b32 v7, 4, v0')
    a('v_and_b32 v12, 7, v0')
    a('v_xor_b32 v12, v12, v7')
    a('v_xor_b32 v13, 4, v12')
    a('v_lshl_add_u32 v12, v12, 4, v6')
    a('v_lshl_add_u32 v13, v13, 4, v6')
    for j in range(4): a('v_add_u32 v%d, %d, v%d' % (VA + j, j * (8192 - 1024), 12 + (j & 1)))
    a('v_bfe_u32 v16, v0, 1, 3')
    a('v_xor_b32 v16, v16, v7')
    a('v_xor_b32 v17, 4, v16')
    a('v_and_b32 v18, 1, v0')
    a('v_lshlrev_b32 v18, 4, v18')
    a('v_lshl_add_u32 v18, v7, 13, v18')
    a('v_lshl_add_u32 v16, v16, 5, v18')
    a('v_lshl_add_u32 v17, v17, 5, v18')
    for j in range(4): a('v_add_u32 v%d, %d, v%d' % (VW + j, j * (32768 - 1024), 16 + (j >> 1)))
    sA, sWo, sLA, sLW, sA2 = 56, 57, 58, 59, 60
    a('s_lshl_b32 s56, s%d, 2' % sI)
    a('s_add_u32 s56, s56, s%d' % sW)
    a('s_lshl_b32 s56, s56, 16')
    a('s_lshl_b32 s57, s%d, 17' % sW)
    a('s_lshl_b32 s58, s%d, 8' % sH)
    a('s_add_u32 s57, s57, s58')
    a('s_lshl_b32 s58, s%d, 13' % sW)
    a('s_lshl_b32 s59, s%d, 12' % sW)
    a('s_add_u32 s59, s59, 65536')
    a('v_lshrrev_b32 v2, 5, v0')
    a('v_and_b32 v3, 31, v0')
    a('s_lshl_b32 s61, s2, 2')
    a('s_add_u32 s61, s61, s%d' % sW)
    a('s_lshl_b32 s61, s61, 1')
    a('v_add_u32 v4, s61, v2')
    a('v_mul_u32_u24 v5, 1280, v4')
    a('v_lshl_add_u32 v5, v3, 3, v5')
    a('v_lshlrev_b32 v%d, 4, v0' % V_LANE16)
    vm = VM(); ids = {}
    def issue(it):
        if isinstance(it, str): return it
        ids[it[0]] = vm.op()
        return it[1]
    def p1_dma(st):
        slot = st & 1; t = ('p1', st)
        L = ['s_add_u32 m0, s%d, %d' % (sLA, slot * 32768), 's_add_u32 s%d, s%d, 32768' % (sA2, sA)]
        L += [(t, 'buffer_load_dwordx4 v%d, %s, s%d offen offset:%d lds' % (VA + j, sr(CKV, 4), sA, 1024 * j)) for j in range(4)]
        L += ['s_add_u32 m0, s%d, %d' % (sLW, slot * 32768), 's_add_u32 s%d, s%d, 128' % (sA, sA)]
        L += [(t, 'buffer_load_dwordx4 v%d, %s, s%d offen offset:%d lds' % (VW + j, sr(WUK, 4), sWo, 1024 * j)) for j in range(4)]
        L += ['s_add_u32 m0, s%d, %d' % (sLA, slot * 32768 + 4096), 's_nop 0']
        L += [(t, 'buffer_load_dwordx4 v%d, %s, s%d offen offset:%d lds' % (VA + j, sr(CKV, 4), sA2, 1024 * j)) for j in range(4)]
        L += ['s_add_u32 m0, s%d, %d' % (sLW, slot * 32768 + 16384), 's_nop 0']
        L += [(t, 'buffer_load_dwordx4 v%d, %s, s%d offen offset:%d lds' % (VW + j, sr(WUV, 4), sWo, 1024 * j)) for j in range(4)]
        L += ['s_add_u32 s%d, s%d, %d' % (sWo, sWo, 64 * 8192)]
        return L
    stamp(a, 1, 'st')
    a('s_waitcnt lgkmcnt(0)')
    for n_, r_ in (('x', X), ('ckv', CKV), ('wuk', WUK), ('wuv', WUV), ('ws', WS)):
        for s in srd(n_, r_): a(s)
    XR = 192
    a('v_mov_b32 v52, 0')
    a('s_mov_b32 s79, 0x%x' % FE)
    a(issue(('ep', 'buffer_load_dword v%d, v52, %s, s79 offen %s' % (V_1, sr(WS, 4), WT))))
    xld = [('x', 'buffer_load_dwordx2 %s, v5, %s, 0 offen offset:%d' % (vr(XR + 2 * j, 2), sr(X, 4), 256 * j)) for j in range(5)]
    MX0 = os.environ.get('MX', '')
    if 'k' in MX0:
        a('v_and_b32 v20, 15, v0'); a('v_lshlrev_b32 v20, 7, v20'); a('s_lshl_b32 s62, s61, 10')
        a(issue(('pf', 'buffer_load_dword v240, v20, %s, s62 offen' % sr(CKV, 4))))
    if 'l' not in MX0:
        for it in xld: a(issue(it))
    PFB = 'P' in os.environ.get('MX', '')
    def weave(start, items):
        body = a.lines[start:]; del a.lines[start:]
        G = []
        for l in body:
            t = l.strip()
            if G and (t.startswith(('s_cselect', 's_addc', 's_subb')) or t.endswith(':') or G[-1][-1].strip().endswith(':')): G[-1].append(l)
            else: G.append([l])
        D_ = []; cur = []
        for s in items:
            cur.append(s)
            if s.startswith(('buffer_', 'global_')): D_.append(cur); cur = []
        if cur: D_[-1] += cur
        for j, d in enumerate(D_):
            for s in d: a(s)
            for g in G[(j * len(G)) // len(D_):((j + 1) * len(G)) // len(D_)]: a.lines.extend(g)
    s0_items = [issue(it) for it in p1_dma(0)]
    W0 = len(a.lines)
    a('s_lshr_b32 s61, s2, 3')
    a('s_lshl_b32 s61, s61, 2')
    a('s_add_u32 s61, s61, s%d' % sW)
    TC, TW, TX = 48, 49, 50
    a('v_bfe_u32 v20, v0, 1, 4')
    a('v_lshlrev_b32 v20, 10, v20')
    a('v_and_b32 v21, 1, v0')
    a('v_lshl_add_u32 v20, v21, 7, v20')
    a('s_lshl_b32 s62, s61, 14')
    a('v_add_u32 v%d, s62, v20' % TC)
    a('v_and_b32 v20, 7, v0')
    a('v_lshlrev_b32 v20, 7, v20')
    a('s_lshl_b32 s62, s61, 13')
    a('s_and_b32 s63, s2, 7')
    a('s_lshl_b32 s63, s63, 10')
    a('s_add_u32 s62, s62, s63')
    a('v_add_u32 v%d, s62, v20' % TW)
    def pf_chunk(c):
        if PFB: return []
        return ['s_mov_b32 s16, %d' % ((c + 1) * 128 * 8192),
                ('pf', 'buffer_load_dword v240, v%d, %s, 0 offen offset:%d' % (TC, sr(CKV, 4), 256 * (c + 1))),
                ('pf', 'buffer_load_dword v241, v%d, %s, s16 offen' % (TW, sr(WUK, 4))),
                ('pf', 'buffer_load_dword v242, v%d, %s, s16 offen' % (TW, sr(WUV, 4)))]
    a('s_getpc_b64 s[100:101]')
    a.label(name + '_pc')
    a('s_sub_u32 s100, s100, %s_pc-%s' % (name, name))
    a('s_subb_u32 s101, s101, 0')
    a('v_and_b32 v20, 7, v0')
    a('v_lshlrev_b32 v20, 7, v20')
    a('s_lshl_b32 s62, s61, 10')
    a('v_add_u32 v20, s62, v20')
    a('v_min_u32 v55, %s_codeend-%s-4, v20' % (name, name))
    a('s_min_u32 s62, s61, 79'); a('s_lshl_b32 s62, s62, 16'); a('v_mov_b32 v56, s62')
    a('s_min_u32 s62, s61, 33'); a('s_lshl_b32 s62, s62, 16'); a('v_mov_b32 v57, s62')
    TQ, TG = 53, 54
    a('v_min_u32 v20, 39, v0')
    a('v_lshrrev_b32 v21, 3, v20')
    a('s_mul_i32 s62, s61, 5')
    a('v_add_u32 v21, s62, v21')
    a('v_and_b32 v20, 7, v20')
    a('v_lshlrev_b32 v20, 7, v20')
    a('v_lshl_add_u32 v20, v21, 13, v20')
    a('v_add_u32 v%d, s63, v20' % TQ)
    a('v_min_u32 v20, 19, v0')
    a('v_lshrrev_b32 v21, 2, v20')
    a('v_add_u32 v21, s62, v21')
    a('v_mul_u32_u24 v21, 3456, v21')
    a('s_and_b32 s63, s2, 7')
    a('s_lshl_b32 s63, s63, 2')
    a('s_mul_i32 s64, s63, 37'); a('s_lshr_b32 s64, s64, 8')
    a('s_sub_u32 s63, s63, s64')
    a('v_and_b32 v20, 3, v20')
    a('v_add_u32 v20, s63, v20')
    a('v_min_u32 v20, 26, v20')
    a('v_lshl_add_u32 v%d, v20, 7, v21' % TG)
    a('s_mul_i32 s62, s61, 20480')
    a('v_and_b32 v20, 31, v0')
    a('v_lshlrev_b32 v20, 7, v20')
    a('v_add_u32 v%d, s62, v20' % TX)
    def xn_touch(j):
        return ['s_mov_b32 s16, %d' % (4096 * j), ('pf', 'buffer_load_dword v243, v%d, %s, s16 offen' % (TX, sr(WS, 4)))]
    RA, RW = 16, 18
    a('s_lshr_b32 s61, s%d, 1' % sW)
    a('s_lshl_b32 s61, s61, 14')
    a('v_bfe_u32 v20, v0, 1, 3')
    a('v_xor_b32 v20, v20, v7')
    a('v_and_b32 v21, 15, v0')
    a('v_lshlrev_b32 v21, 7, v21')
    a('v_add_u32 v21, s61, v21')
    a('v_lshl_add_u32 v%d, v20, 4, v21' % RA)
    a('v_xor_b32 v20, 4, v20')
    a('v_lshl_add_u32 v%d, v20, 4, v21' % (RA + 1))
    a('v_bfe_u32 v22, v0, 2, 2')
    a('v_lshl_add_u32 v23, v7, 3, v22')
    a('v_lshlrev_b32 v23, 8, v23')
    a('v_and_b32 v24, 3, v0')
    a('v_lshl_add_u32 v23, v24, 3, v23')
    a('v_add_u32 v23, 65536, v23')
    a('v_bfe_u32 v22, v0, 2, 3')
    a('s_and_b32 s62, s%d, 1' % sW)
    a('s_lshl_b32 s62, s62, 2')
    a('v_xor_b32 v22, s62, v22')
    for nb in range(4):
        a('v_xor_b32 v24, %d, v22' % nb)
        a('v_lshl_add_u32 v%d, v24, 5, v23' % (RW + nb))
    P_XOFF2, P_WOFF, P_WRD = 32, 33, 40
    P_X0, P_X1 = 32, 37
    a('s_sub_u32 s61, 7, s%d' % sW); a('s_mul_i32 s61, s61, 20480'); a('v_add_u32 v%d, s61, v%d' % (P_X0, V_LANE16))
    a('s_mul_i32 s61, s%d, 20480' % sW); a('v_add_u32 v%d, s61, v%d' % (P_X1, V_LANE16))
    a('v_lshrrev_b32 v25, 3, v0')
    a('v_bfe_u32 v26, v0, 1, 2')
    a('v_bfe_u32 v27, v0, 4, 2')
    a('v_xor_b32 v26, v26, v27')
    a('v_lshlrev_b32 v26, 5, v26')
    a('v_and_b32 v27, 1, v0')
    a('v_lshl_add_u32 v26, v27, 4, v26')
    a('v_lshl_add_u32 v%d, v25, 13, v26' % P_WOFF)
    a('v_add_u32 v%d, %d, v%d' % (P_WOFF + 1, 8 * 8192 - 1024, P_WOFF))
    a('v_mul_u32_u24 v25, 3456, v25')
    a('v_add_u32 v%d, v25, v26' % (P_WOFF + 2))
    a('v_add_u32 v%d, %d, v%d' % (P_WOFF + 3, 8 * 3456 - 1024, P_WOFF + 2))
    a('v_lshrrev_b32 v25, 2, v0')
    a('v_lshlrev_b32 v25, 7, v25')
    a('v_and_b32 v26, 3, v0')
    a('v_lshl_add_u32 v25, v26, 3, v25')
    a('v_add_u32 v25, 65536, v25')
    a('v_bfe_u32 v26, v0, 3, 2')
    for c in range(4):
        a('v_xor_b32 v27, %d, v26' % c)
        a('v_lshl_add_u32 v%d, v27, 5, v25' % (P_WRD + c))
        a('v_add_u32 v%d, 65536, v%d' % (P_WRD + 4 + c, P_WRD + c))
    s_w = [64, 65, 66, 67]; s_q = [68, 69]; sLW2, sCT = 70, 71; sQ = [72, 73]
    a('s_mul_i32 s17, s%d, 37' % sH)
    a('s_lshr_b32 s17, s17, 8')
    a('s_sub_u32 s71, s%d, s17' % sH)
    a('s_lshl_b32 s70, s%d, 11' % sW)
    a('s_lshl_b32 s72, s%d, 3' % sI)
    a('s_sub_u32 s73, 120, s72')
    a('s_mul_i32 s68, s72, 20480')
    a('s_mul_i32 s69, s73, 20480')
    assert WS_XN == 0
    a('s_lshl_b32 s64, s%d, 17' % sW)
    a('s_lshl_b32 s65, s%d, 8' % sH)
    a('s_add_u32 s64, s64, s65')
    a('s_add_u32 s65, s64, 128')
    a('s_mul_i32 s66, s%d, %d' % (sW, 16 * 3456))
    a('s_lshl_b32 s67, s%d, 7' % sCT)
    a('s_add_u32 s66, s66, s67')
    a('s_mov_b32 s67, s66')
    a('s_mul_i32 s61, s17, 7')
    a('s_sub_u32 s61, s%d, s61' % sH)
    a('s_cmp_eq_u32 s61, 6')
    a('s_cselect_b32 s74, 0, 0x%x' % SIZE['wg'])
    a('s_cmp_ge_u32 s%d, 27' % sCT)
    a('s_cselect_b32 s74, 0, s74')
    a('s_lshl_b32 s61, s%d, 2' % sW)
    a('s_lshl_b32 s76, s2, 4'); a('s_add_u32 s76, s76, s61')
    a('s_add_u32 s75, s76, 0x%x' % FK)
    a('s_add_u32 s77, s76, 0x%x' % FC)
    a('s_and_b32 s78, s76, 0x1ff')
    a('s_add_u32 s76, s76, 0x%x' % FH)
    a('s_sub_u32 s62, 15, s%d' % sI); a('s_lshl_b32 s62, s62, 9')
    a('s_add_u32 s78, s78, s62'); a('s_add_u32 s78, s78, 0x%x' % FC)
    a('v_cmp_eq_u32 vcc, 0, v0')
    a('v_mov_b32 v25, 0x20000000')
    a('s_lshl_b32 s26, s2, 2'); a('s_add_u32 s26, s26, 0x%x' % FL)
    a('v_cndmask_b32 v%d, v25, 0, vcc' % V_ONE)
    a('s_cmp_eq_u32 s%d, 0' % sW)
    a('s_cselect_b32 s26, s26, 0x20000000')
    a('s_lshl_b32 s27, s2, 2'); a('s_or_b32 s27, s27, s%d' % sW)
    a('s_cmp_eq_u32 s27, 0')
    a('s_cselect_b32 s27, s79, 0x20000000')
    a('s_mov_b32 s79, 0x%x' % FL)
    def flag_store(sreg, val=V_1):
        return ('fl', 'buffer_store_dword v%d, v%d, %s, s%d offen %s' % (val, V_ONE, sr(WS, 4), sreg, WT))
    weave(W0, s0_items)
    W1 = len(a.lines)
    a('s_mov_b32 s61, 0x9e3779b1')
    a('v_mul_lo_u32 v%d, s61, v%d' % (V_1, V_1))
    a('v_add_u32 v%d, 0x7f4a7c15, v%d' % (V_1, V_1))
    import k1
    b = Asm(); k1.ln_part(b, XR, WS, 4, 3)
    ln_lines = [l.strip() for l in b.lines]
    for l in ln_lines[:-20]: a(l)
    a('v_lshrrev_b32 v224, 3, v3')
    a('v_lshlrev_b32 v224, 9, v224')
    a('v_and_b32 v225, 3, v3')
    a('v_lshl_add_u32 v224, v225, 7, v224')
    a('v_and_b32 v225, 7, v4')
    a('v_lshl_add_u32 v224, v225, 4, v224')
    a('v_bfe_u32 v225, v3, 2, 1')
    a('v_lshl_add_u32 v224, v225, 3, v224')
    a('v_add_u32 v224, %d, v224' % (128 * 1024))
    for j in range(5): a('ds_write_b64 v224, %s offset:%d' % (vr(XR + 2 * j, 2), 2048 * j))
    a('s_lshl_b32 s61, s%d, 10' % sW)
    a('s_add_u32 s61, s61, %d' % (128 * 1024))
    a('v_add_u32 v225, s61, v%d' % V_LANE16)
    a('v_lshrrev_b32 v226, 3, v0')
    a('v_lshlrev_b32 v226, 8, v226')
    a('v_and_b32 v227, 7, v0')
    a('v_lshl_add_u32 v226, v227, 4, v226')
    a('s_lshr_b32 s61, s2, 1')
    a('s_mul_i32 s61, s61, 20480')
    a('s_and_b32 s62, s2, 1')
    a('s_lshl_b32 s62, s62, 7')
    a('s_add_u32 s61, s61, s62')
    a('s_lshl_b32 s62, s%d, 11' % sW)
    a('s_add_u32 s61, s61, s62')
    a('s_add_u32 s62, s61, 8192')
    a('s_add_u32 s63, s61, 16384')
    a('s_cmp_lt_u32 s%d, 2' % sW)
    a('s_cselect_b32 s63, s63, 0x20000000')
    lnq = []
    for l in a.lines[W1:]:
        t = l.strip()
        if t.startswith('s_cselect'): lnq[-1] += '\n' + t
        else: lnq.append(t)
    del a.lines[W1:]
    xn_reads = ['ds_read_b128 %s, v225 offset:%d' % (vr(XR + 4 * t, 4), 4096 * t) for t in range(3)]
    xn_stores = [('xn', 'buffer_store_dwordx4 %s, v226, %s, s%d offen %s' % (vr(XR + 4 * t, 4), sr(WS, 4), 61 + t, WT)) for t in range(3)]
    MX = os.environ.get('MX', '')
    if 'x' in MX: xn_stores = []
    if 'p' in MX: xn_stores = [(t, s.replace(WT, '')) for t, s in xn_stores]
    WQ, WG, WU = R1, R2, R3
    WSLOT = [128 * 1024, 64 * 1024, 96 * 1024]
    P_ACCV, P_ACCA, P_WF, P_ACT = 128, 0, 128, 192
    srdm = [WQ, WQ, WG, WU]; stride = [8192, 8192, 3456, 3456]
    def w_dma(st, nm):
        L = []
        for m in range(nm):
            L.append('s_add_u32 m0, s%d, %d' % (sLW2, WSLOT[st % 3] + m * 8192))
            L.append('s_nop 0')
            for j in range(2):
                L.append((('w', st), 'buffer_load_dwordx4 v%d, %s, s%d offen offset:%d lds' % (P_WOFF + 2 * (m // 2) + j, sr(srdm[m], 4), s_w[m], 1024 * j)))
            L.append('s_add_u32 s%d, s%d, %d' % (s_w[m], s_w[m], 64 * stride[m]))
        return L
    def a_load(k):
        base = P_ACT + 16 * (k % 4)
        L = [(('a', k), 'buffer_load_dwordx4 %s, v%d, %s, s%d offen offset:%d' % (ar(base + 4 * qi, 4), (P_X0, P_X1)[qi % 2], sr(WS, 4), s_q[qi // 2], 1024 * (k % 4))) for qi in range(4)]
        if k % 4 == 3: L += ['s_add_u32 s%d, s%d, 4096' % (s, s) for s in s_q]
        return L
    FR = 64
    def reads(slot, ks, fs):
        base = FR + 64 * fs
        def A(i): return ['ds_read_b128 %s, v%d offset:%d' % (vr(base + 4 * i, 4), RA + ks, slot * 32768 + i * 2048)]
        def W(mat, nb): return ['ds_read_b64_tr_b16 %s, v%d offset:%d' % (vr(base + 32 + 16 * mat + 4 * nb + 2 * r, 2), RW + nb,
                                slot * 32768 + mat * 16384 + (32 * ks + 4 * r) * 256) for r in range(2)]
        L = A(0)
        for nb in range(4): L += W(0, nb)
        for nb in range(4): L += W(1, nb)
        for i in range(1, 8): L += A(i)
        return L
    def mfmas(fs, first, rbs=range(8)):
        base = FR + 64 * fs; L = []
        for rb in rbs:
            act = vr(base + 4 * rb, 4)
            for mat in range(2):
                for nb in range(4):
                    w = vr(base + 32 + 16 * mat + 4 * nb, 4)
                    d = ar((rb * 8 + mat * 4 + nb) * 4, 4); c = '0' if first else d
                    L.append('%s %s, %s, %s, %s' % ((MF16, d, w, act, c) if mat == 0 else (MF16, d, act, w, c)))
        return L
    stamp(a, 2); stamp(a, 8, 'st')
    S1L = p1_dma(1); npre = int(os.environ.get('NPRE', 12))
    for it in S1L[:npre]: a(issue(it))
    a('s_waitcnt vmcnt(%d) lgkmcnt(0)' % vm.cnt(ids[('p1', 0)]))
    stamp(a, 9, 'st')
    a('s_barrier')
    stamp(a, 3); stamp(a, 10, 'st'); padp(a, 'p0')
    for s in reads(0, 0, 0): a(s)
    ln_poll = 'buffer_load_dwordx4 v[244:247], v%d, %s, s79 offen %s' % (V_LANE16, sr(WS, 4), WT)
    NST = 8
    pend = S1L[npre:] + pf_chunk(0) + (xld if 'l' in MX0 else []) + [('pf', 'global_load_dword v249, v55, s[100:101]')]
    NPRE = int(os.environ.get('NPRE', 0))
    P1SP = int(os.environ.get('P1SP', 4))
    LNS = 2 if 'l' in MX0 else 1
    LN0 = 3 if 'l' in MX0 else 0
    for st in range(NST - 1):
        slot = st & 1
        for ks in range(2):
            rd = []
            if ks == 1:
                if st < NST - 1:
                    assert not any(x[0] == ('p1', st + 1) for x in pend if not isinstance(x, str))
                    a('s_waitcnt vmcnt(%d) lgkmcnt(0)' % vm.cnt(max(ids[('p1', st + 1)], ids['lnp'] if st == LNS + 4 else 0))); a('s_barrier')
                    rd = reads(1 - slot, 0, 0)
                    if st == LNS: rd += xn_reads; assert not lnq
                else: a('s_waitcnt lgkmcnt(0)')
                if st + 2 < NST: pend += p1_dma(st + 2)
                if st == LNS + 2: pend = [flag_store(26)] + pend
                if st in (0, 1): pend += pf_chunk(st + 1)
                if st == 2 and 'Q' not in MX: pend += [('pf', 'global_load_dword v240, v%d, s[8:9]' % TQ)]
                if st == 3 and 'Q' not in MX: pend += [('pf', 'global_load_dword v241, v%d, s[18:19]' % TG), ('pf', 'global_load_dword v242, v%d, s[20:21]' % TG)]
                if st == LNS + 3: pend += [('lnp', ln_poll)]
                if st == 4 and 'C' not in MX: pend += [('pf', 'global_load_dword v249, v55, s[100:101]')]
                if st == 6: pend += w_dma(1, 4)
                if st == LNS + 4:
                    gate(ln_poll, 244, 4, 1, 61)
                    pend += [flag_store(27)]
                    pend += xn_touch(0) + xn_touch(1)
                if st == 6: pend += xn_touch(2) + xn_touch(3) + xn_touch(4)
            else:
                a('s_waitcnt lgkmcnt(0)')
                rd = reads(slot, 1, 1)
                if st == LNS + 1: pend += xn_stores
                if st == LNS + 1 and os.environ.get('PADG'):
                    pend += ['v_mov_b32 v251, s97', ('t0', 'buffer_store_dword v251, v%d, %s, s26 offen offset:2048 %s' % (V_ONE, sr(WS, 4), WT))]
                if st == 6:
                    pend += srd('wq', WQ) + srd('wg', WG) + srd('wu', WU) + ['s_mov_b32 s%d, s74' % (WG + 2), 's_mov_b32 s%d, s74' % (WU + 2)] + w_dma(0, 4)
            lastv = -10
            for g, m in enumerate(mfmas(ks, st == 0 and ks == 0)):
                a(m)
                if g % 2 == 0 and rd: a(rd.pop(0))
                elif pend and g % 2 == 1:
                    while pend and pend[0] == 's_nop 0': pend.pop(0)
                    if pend and (isinstance(pend[0], str) or g - lastv >= (2 if st < 2 else P1SP)):
                        if not isinstance(pend[0], str): lastv = g
                        a(issue(pend.pop(0)))
                for _ in range(3 if 'l' in MX0 else 2):
                    if lnq and 2 * st + ks >= LN0: a(lnq.pop(0))
            stamp(a, 1 + 2 * st + ks, 'p1')
        if st == 3: stamp(a, 4); cstamp(a, 1)
    def w_read(k, n):
        st, ks = k // 2, k % 2
        off = WSLOT[st % 3] - 65536
        grp = off // 65536; off %= 65536
        m, c = n // 4, n % 4
        return ['ds_read_b64_tr_b16 %s, v%d offset:%d' % (wfr(k, n, r), P_WRD + 4 * grp + c, off + m * 8192 + (32 * ks + 16 * r) * 128) for r in range(2)]
    def wfr(k, n, r=None):
        f, b_ = (vr, 96 + 4 * (n - 8)) if (k >= 16 and n >= 8) else (ar, P_WF + 4 * n)
        return f(b_, 4) if r is None else f(b_ + 2 * r, 2)
    sBASE, sK0, sK1, sT, sC0, sC1, sS1 = 56, 57, 58, 59, 60, 61, 62
    sc = ['s_lshl_b32 s56, s%d, 20' % sH, 's_lshl_b32 s57, s%d, 17' % sI, 's_add_u32 s58, s56, s57', 's_lshr_b32 s57, s%d, 1' % sW, 's_lshl_b32 s57, s57, 16',
          's_add_u32 s58, s58, s57', 's_add_u32 s58, s58, 0x%x' % WS_KV, 's_and_b32 s57, s%d, 1' % sW, 's_lshl_b32 s16, s57, 11', 's_add_u32 s16, s16, s58',
          's_lshl_b32 s17, s57, 12', 's_add_u32 s17, s17, s58', 's_add_u32 s17, s17, 16384',
          's_lshl_b32 s57, s%d, 14' % sW, 'v_add_u32 v26, s57, v%d' % V_LANE16,
          's_lshl_b32 s59, s%d, 12' % sW, 's_add_u32 s56, s56, s59', 's_add_u32 s56, s56, 0x%x' % WS_KV, 's_lshl_b32 s60, s%d, 13' % sW,
          's_add_u32 s60, s60, %d' % (65536 + 32768), 's_add_u32 s61, s60, 16384', 's_add_u32 s62, s56, 32768', 's_add_u32 s57, s56, 65536', 's_add_u32 s58, s57, 32768',
          'v_add_u32 v%d, 16384, v%d' % (V_LANE16V, V_LANE16), 'v_and_b32 v%d, 7, v0' % V_PA, 'v_lshlrev_b32 v%d, 9, v%d' % (V_PA, V_PA),
          's_and_b32 s79, s2, 31', 's_lshl_b32 s79, s79, 4', 's_add_u32 s79, s79, 0x%x' % FK]
    def conv(b0, b1, T, dst):
        return ['v_accvgpr_read_b32 v%d, a%d' % (T + e, b0 * 4 + e) for e in range(4)] + ['v_accvgpr_read_b32 v%d, a%d' % (T + 4 + e, b1 * 4 + e) for e in range(4)] + \
               ['v_cvt_pk_bf16_f32 v%d, v%d, v%d' % (dst + e, T + 2 * e, T + 2 * e + 1) for e in range(4)]
    def store(T, sb, off):
        return ['s_add_u32 s63, s%d, %d' % (sb, off & ~4095),
                ('kv', 'buffer_store_dwordx4 %s, v%d, %s, s63 offen offset:%d %s' % (vr(T, 4), V_LANE16, sr(WS, 4), off & 4095, WT))]
    def jobs(rp):
        J = []
        for rb in (2 * rp, 2 * rp + 1):
            for s in range(2): J.append((rb * 8 + 2 * s, rb * 8 + 2 * s + 1, 16, (rb // 4) * 32768 + ((rb % 4) * 4 + s) * 1024))
        rb = 2 * rp
        for nb in range(4): J.append((rb * 8 + 4 + nb, (rb + 1) * 8 + 4 + nb, 17, (rb // 4) * 32768 + (((rb % 4) // 2) * 8 + nb) * 1024))
        return J
    J1 = jobs(3) + jobs(2); J2 = jobs(0) + jobs(1)
    a('s_waitcnt lgkmcnt(0)')
    rd = reads(1, 1, 1)
    pend += sc
    for g, m in enumerate(mfmas(0, False, (6, 7, 4, 5))):
        a(m)
        if rd: a(rd.pop(0))
        for _ in range(1 if rd else 2):
            while pend and pend[0] == 's_nop 0': pend.pop(0)
            if pend and not (_ == 1 and not isinstance(pend[0], str)): a(issue(pend.pop(0)))
    assert not any(x[0] == ('w', 0) for x in pend if not isinstance(x, str))
    a('s_waitcnt vmcnt(%d) lgkmcnt(0)' % vm.cnt(ids[('w', 0)]))
    a('s_barrier')
    pend += w_dma(2, 4)
    fq = []
    for n_, (b0, b1, sb, off) in enumerate(J1):
        T = 192 + 12 * (n_ % 4)
        fq += conv(b0, b1, T, T + 8) + ['ds_write_b128 v26, %s offset:%d' % (vr(T + 8, 4), 1024 * n_)]
        if n_ >= 8 and n_ < 12: fq += a_load(n_ - 8)
    for n in range(16): fq += w_read(0, n)
    tail = mfmas(1, False, (6, 7, 4, 5)) + mfmas(0, False, (0, 1, 2, 3)) + mfmas(1, False, (0, 1, 2, 3))
    per = -(-len(fq) // (len(tail) - 24))
    for g, m in enumerate(tail):
        a(m)
        if g < 22:
            for _ in range(2):
                while pend and pend[0] == 's_nop 0': pend.pop(0)
                if pend and not (_ == 1 and not isinstance(pend[0], str)): a(issue(pend.pop(0)))
        else:
            assert not pend
            for _ in range(per):
                if fq: a(issue(fq.pop(0)))
    assert not fq
    stamp(a, 5); cstamp(a, 2); stamp(a, 6); cstamp(a, 3); padp(a, 'p1')
    cq = []
    for n_, (b0, b1, sb, off) in enumerate(J2): cq += conv(b0, b1, 4 + 8 * (n_ % 2), 64 + 4 * n_)
    kv_sched = {}
    KVEND = int(os.environ.get('KVEND', 14))
    def kstep(n_): return 1 + (n_ * (KVEND - 1)) // 32
    for n_, (b0, b1, sb, off) in enumerate(J2):
        kv_sched.setdefault(kstep(n_), []).extend(store(64 + 4 * n_, sb, off))
        kv_sched.setdefault(kstep(n_) + 1, []).append('ds_read_b128 %s, v26 offset:%d' % (vr(64 + 4 * n_, 4), 1024 * n_))
    for n_, (b0, b1, sb, off) in enumerate(J1):
        kv_sched.setdefault(kstep(16 + n_), []).extend(store(64 + 4 * n_, sb, off))
    kv_poll0 = 'buffer_load_dwordx4 v[64:67], v52, %s, s79 offen %s' % (sr(WS, 4), WT)
    kv_poll = 'buffer_load_dwordx4 v[208:211], v%d, %s, s79 offen %s' % (V_PA, sr(WS, 4), WT)
    def kv_dma(m0expr, voff, ssrc, tag):
        return [m0expr, 's_nop 0'] + [(tag, 'buffer_load_dwordx4 v%d, %s, s%d offen offset:%d lds' % (voff, sr(WS, 4), ssrc, 1024 * j)) for j in range(4)]
    sTHR, sBIG, s2W, sM0, sM1, sDYN, sE0, sE1, sCNT = 64, 65, 66, 67, 68, 69, 70, 71, 63
    halves = []
    for k in range(16): halves += [(k, 0), (k, 1)]
    halves += [(k, 0) for k in range(16, 20)] + [(k, 1) for k in range(16, 20)]
    qe = ['s_mov_b32 s64, %s' % f2u(math.log2(math.e) / math.sqrt(128.0))]
    for qi in range(4):
        for s in range(4):
            r0, r1 = P_ACCV + ((2 * s) * 4 + qi) * 4, P_ACCV + ((2 * s + 1) * 4 + qi) * 4
            qe += ['v_mul_f32 v%d, s64, v%d' % (r + e, r + e) for r in (r0, r1) for e in range(4)]
            qe += ['v_cvt_pk_bf16_f32 v%d, v%d, v%d' % (r + e, r + 2 * e, r + 2 * e + 1) for r in (r0, r1) for e in range(2)]
            qe += ['v_accvgpr_write_b32 a%d, v%d' % (A_Q[qi // 2] + ((qi % 2) * 4 + s) * 4 + 2 * h + e, (r0, r1)[h] + e) for h in range(2) for e in range(2)]
    qe += ['v_and_b32 v5, 15, v0', 'v_lshrrev_b32 v6, 4, v0', 'v_lshlrev_b32 v6, 2, v6', 'v_sub_u32 v5, v5, v6']
    for r in range(4): qe += ['v_cmp_gt_i32 vcc, %d, v5\ns_nop 1\nv_cndmask_b32 v%d, 0, 1.0, vcc' % (r, TRI + r)]
    qe += ['v_mov_b32 v%d, 0x3f803f80' % (V_ONES + e) for e in range(4)] + ['v_mov_b32 v%d, 0' % (NEGM + j) for j in range(16)]
    qe += ['v_mov_b32 v%d, 0' % (V_L + j) for j in range(4)]
    qe += ['v_mov_b32 v%d, v%d' % (V_KRD, V_LANE16), 'v_add_u32 v%d, 65536, v%d' % (V_VRD, V_LANE16)]
    qe += ['s_lshl_b32 s8, s72, 10', 's_lshl_b32 s9, s73, 10', 's_lshl_b32 s10, s%d, 18' % sCT, 's_add_u32 s10, s10, 0x%x' % WS_H,
           's_cmp_eq_u32 s74, 0\ns_cselect_b32 s10, 0x20000000, s10', 's_add_u32 s8, s8, s10', 's_add_u32 s9, s9, s10',
           's_add_u32 s10, s8, %d' % (128 * 1024), 's_add_u32 s11, s9, %d' % (128 * 1024),
           's_sub_u32 s12, 7, s%d' % sW, 's_lshl_b32 s12, s12, 10', 'v_add_u32 v%d, s12, v%d' % (P_X0, V_LANE16),
           's_lshl_b32 s12, s%d, 10' % sW, 'v_add_u32 v%d, s12, v%d' % (P_X1, V_LANE16),
           's_mov_b32 s%d, %s' % (sTHR, f2u(THR)), 's_mov_b32 s%d, %s' % (sBIG, f2u(-BIG)), 's_sub_u32 s%d, 3, s%d' % (s2W, sW),
           's_cmp_eq_u32 s%d, 0\ns_cselect_b32 s%d, s%d, 0' % (sI, sDYN, sBIG)]
    pend = []; vq = cq; vper = 5; gcnt = 0; lastv = -10; P2SP = int(os.environ.get('P2SP', 4))
    for hi_, (k, part) in enumerate(halves):
        st, ks = k // 2, k % 2
        base = P_ACT + 16 * (k % 4)
        if part == 0:
            need = ids[('a', k)]
            if k == KVEND + 1:
                assert not any(x[0] == 'kv' for x in pend if not isinstance(x, str))
                need = max(need, ids['kv'])
            assert not any(x[0] == ('a', k) for x in pend if not isinstance(x, str))
            a('s_waitcnt vmcnt(%d) lgkmcnt(8)' % min(63, vm.cnt(need)))
            pend += kv_sched.get(k, [])
            if k == KVEND + 1: pend += [flag_store(75)]
            if k == 18: pend += [('kvp', kv_poll0)]
            if k == 12 and 'C' not in MX: pend += [('pf', 'global_load_dword v27, v55, s[100:101]')]
            if k > 0 and k + 3 < 20: pend = a_load(k + 3) + pend
        elif k == 16:
            a('s_waitcnt vmcnt(%d) lgkmcnt(8)' % vm.cnt(ids['kvp']))
            gate(kv_poll0, 64, 4, 1, 63)
            pend += kv_dma('s_add_u32 m0, s59, 0', V_LANE16, sBASE, 'k0') + kv_dma('s_add_u32 m0, s59, 16384', V_LANE16, sS1, 'k1')
            pend += kv_dma('s_add_u32 m0, s59, 32768', V_LANE16, sK0, 'k2') + kv_dma('s_add_u32 m0, s59, 65536', V_LANE16V, sBASE, 'v0')
            pend += kv_dma('s_add_u32 m0, s59, 49152', V_LANE16, sK1, 'k3') + kv_dma('s_add_u32 m0, s59, %d' % (65536 + 16384), V_LANE16V, sS1, 'v1')
            vq = qe; vper = 3
        else: a('s_waitcnt lgkmcnt(8)')
        for n in range(8 * part, 8 * part + 8):
            if n % 8 == 4: a('s_waitcnt lgkmcnt(%d)' % (8 if k < 19 else 0))
            if k == 0 and n == 8: assert len(vq) <= 96
            if k == 0 and n == 12: assert not vq
            for qi in range(4):
                d = vr(P_ACCV + (n * 4 + qi) * 4, 4) if n < 8 else ar(P_ACCA + ((n - 8) * 4 + qi) * 4, 4)
                a('%s %s, %s, %s, %s' % (MF16, d, wfr(k, n), ar(base + 4 * qi, 4), '0' if k == 0 else d))
                if qi < 3:
                    while pend and pend[0] == 's_nop 0': pend.pop(0)
                    if pend and (qi != 1 or not vq) and (isinstance(pend[0], str) or gcnt - lastv >= P2SP):
                        if not isinstance(pend[0], str): lastv = gcnt
                        a(issue(pend.pop(0)))
                gcnt += 1
                for _ in range(vper if qi < 3 else vper - 2):
                    if vq: a(vq.pop(0))
            if k + 1 < 20:
                if n == 0 and ks == 1:
                    assert not any(x[0] == ('w', st + 1) for x in pend if not isinstance(x, str))
                    a('s_waitcnt vmcnt(%d) lgkmcnt(0)' % min(63, vm.cnt(ids[('w', st + 1)])))
                    a('s_barrier')
                    if st + 3 < 10: pend = pend + w_dma(st + 3, 4)
                for s in w_read(k + 1, n): a(s)
        if part == 1 and k < 16: stamp(a, 1 + k, 'p2a')
        if hi_ >= 24: stamp(a, hi_ - 23, 'p2b')
    assert not pend and not vq
    stamp(a, 7); cstamp(a, 4); padp(a, 'p2')
    a('s_waitcnt vmcnt(%d)' % vm.cnt(max(ids['k2'], ids['v0'])))
    stamp(a, 8)
    a('s_barrier')
    hx = []
    for j_ in range(8):
        s, qi = j_ // 4, j_ % 4
        T = 192 + 20 * (j_ % 3)
        for cc in range(2):
            g = P_ACCA + ((2 * s + cc) * 4 + qi) * 4
            hx += ['v_accvgpr_read_b32 v%d, a%d' % (T + 8 * cc + e, g + e) for e in range(4)] + ['v_accvgpr_read_b32 v%d, a%d' % (T + 8 * cc + 4 + e, g + 64 + e) for e in range(4)]
            hx += ['v_mul_f32 v%d, v%d, v%d' % (T + 8 * cc + e, T + 8 * cc + e, T + 8 * cc + 4 + e) for e in range(4)]
            hx += ['v_cvt_pk_bf16_f32 v%d, v%d, v%d' % (T + 16 + 2 * cc + e, T + 8 * cc + 2 * e, T + 8 * cc + 2 * e + 1) for e in range(2)]
        hx.append('buffer_store_dwordx4 %s, v%d, %s, s%d offen %s' % (vr(T + 16, 4), (P_X0, P_X1)[qi % 2], sr(WS, 4), 8 + qi // 2 + 2 * s, WT))
    hx += ['%s %s, %s, %s, 0' % (MFMA, ar(16 * j_, 16), vr(NEGM, 4), vr(NEGM, 4)) for j_ in range(8)]
    hx += [kv_poll]
    def kread(i, p): return 'ds_read_b128 %s, v%d offset:%d' % (ar(A_RING + 4 * (i % R), 4), V_KRD, p * 16384 + i * 1024)
    def vread(i, p): return 'ds_read_b128 %s, v%d offset:%d' % (ar(A_RING + 4 * (i % R), 4), V_VRD, p * 16384 + i * 1024)
    for i in range(D): a(kread(i, 0))
    for s_ in hx[:16]: a(s_)
    hx = hx[16:]
    stamp(a, 9); stamp(a, 1, 'p3')
    def prefill(st, p, tau, dyn=False):
        qb = 1 - tau
        sref = sW if tau == 0 else s2W
        big = sDYN if dyn else sBIG
        out = []
        for kb in range(4):
            S = SB[st][p] + (kb * 2 + qb) * 4
            L = ['s_cmp_eq_u32 s%d, %d' % (sref, kb), 's_cselect_b32 s%d, s%d, 0' % (sM0, big)]
            t = NEGM + (st * 2 + qb) * 4
            if kb > 0:
                L += ['s_cmp_lt_u32 s%d, %d' % (sref, kb), 's_cselect_b32 s%d, s%d, 0' % (sM1, big), 'v_add_f32 v%d, s%d, v%d' % (V_T1, sM1, t)]
                t = V_T1
            L += ['v_fma_f32 v%d, v%d, s%d, v%d' % (S + r, TRI + r, sM0, t) for r in range(4)]
            out.append('\n'.join(L))
        return out
    def qk_mf(sets, p):
        G = []
        for f in range(16):
            kb, ds = f // 4, f % 4; L = []
            for st, qbs, inq in sets:
                for qb in qbs:
                    d = vr(SB[st][p] + (kb * 2 + qb) * 4, 4)
                    c = vr(NEGM + (st * 2 + qb) * 4, 4) if (ds == 0 and inq != qb) else d
                    L.append('%s %s, %s, %s, %s' % (MF16, d, ar(A_RING + 4 * (f % R), 4), ar(A_Q[st] + (qb * 4 + ds) * 4, 4), c))
            G.append(L)
        return G
    def pv_mf(sets, p):
        G = []
        for f in range(16):
            ks, db = f // 8, f % 8; L = []
            for st, qbs in sets:
                for qb in qbs:
                    d = ar(A_O[st] + (db * 2 + qb) * 4, 4)
                    L.append('%s %s, %s, %s, %s' % (MF16, d, ar(A_RING + 4 * (f % R), 4), vr(PB[st][p] + (qb * 2 + ks) * 4, 4), d))
            G.append(L)
        return G
    def pre_items(pf):
        a(pf[0]); a('s_nop 1')
        return [dict(lo=max(0, 4 * kb - 5), hi=4 * kb - 3, ins=pf[kb]) for kb in range(1, 4)]
    LGS = int(os.environ.get('LGS', 4)); LGW = int(os.environ.get('LGW', 0))
    rare_sites = []
    pk = Packer(a)
    def lg_items(n, skip_last):
        return [dict(lo=i - LGW, hi=i, lg=i + LGS) for i in range(LGS - 1, n, LGS) if not (i == n - 1 and skip_last)]
    def ladds(ex):
        return ['v_add_f32 v%d, v%d, v%d' % (V_L + st * 2 + qb, V_L + st * 2 + qb, LT + (st * 2 + qb) * 4) for st, qbs in ex for qb in qbs]
    def iteration(p, qk, ex, pv, prev_ex, nxt='k', dk=True, dv=True, loop_ctr=None, post_bar=(), mid=(), anyw=(), wv=None, pf=None, anylo=2, vx=0, lt=False):
        groups = []; rs = []
        pfi = pre_items(pf) if pf else []
        if qk:
            groups += qk_mf(qk, p); rs += [kread(i, p) for i in range(16)]
        groups += pv_mf(pv, p); rs += [vread(i, p) for i in range(16)]
        n = len(groups)
        nx = {'k': [kread(i, 1 - p) for i in range(D)], 'v': [vread(i, 1 - p) for i in range(D)], None: [None] * D}[nxt]
        rds = rs[D:] + nx
        bg = n - D
        it = [dict(lo=0, hi=0, ins=s, v=True) for s in ladds(prev_ex)] + pfi
        nd = 0
        if wv is None: gv, gm, gk, sl = {'0': ((2, 4, 5, 6), 8, (10, 12, 14, 16), 1), '1': ((1, 3, 5, 7), 8, (10, 12, 14, 16), 0), '2': ((1, 4, 6, 8), 9, (11, 13, 16, 18), 0)}[os.environ.get('DPOS', '0')]
        else:
            pos = [2 + 4 * j + wv for j in range(8)]
            gv = [x // 2 for x in pos[:4]]; gk = [x // 2 + 1 for x in pos[4:]]; gm = gv[3] + 1; sl = 0
        late = wv is not None and wv % 2 == 1
        if dv:
            it.append(dict(lo=0, hi=0 if gv[0] == 1 else 1, ins='s_sub_u32 m0, s%d, s%d' % ((sC0, sC1)[p], sT)))
            for j, i in enumerate(gv):
                it.append(dict(lo=i + (1 if late else 0), hi=i + sl, ins='buffer_load_dwordx4 v%d, %s, s%d offen offset:%d lds' % (V_LANE16V, sr(WS, 4), (sK0, sK1)[p], 1024 * j)))
            nd += 4
        if dk:
            it.append(dict(lo=gm, hi=gm + 1, ins='s_add_u32 m0, s%d, %d' % (sT, p * 16384)))
            it.append(dict(lo=gm, hi=gm + 1, ins='s_add_u32 s%d, s%d, 32768' % ((sK0, sK1)[p], (sK0, sK1)[1 - p])))
            for j, i in enumerate(gk):
                it.append(dict(lo=i + (1 if late else 0), hi=i + sl, ins='buffer_load_dwordx4 v%d, %s, s%d offen offset:%d lds' % (V_LANE16, sr(WS, 4), (sK0, sK1)[p], 1024 * j)))
            nd += 4
        if lt:
            vreg, ptr, step, lim = ((63, 14, 7 * 1024 * 128, SIZE['wo'] - 128), (62, 22, 3 * 1024 * 128, SIZE['wd'] - 128))[p]
            it.append(dict(lo=bg, hi=bg + 2, ins='global_load_dword v7, v%d, s[%d:%d]' % (vreg, ptr, ptr + 1)))
            it.append(dict(lo=bg + 3, hi=n - 2, ins='v_add_u32 v%d, 0x%x, v%d' % (vreg, step, vreg), v=True))
            it.append(dict(lo=bg + 3, hi=n - 1, ins='v_min_u32 v%d, 0x%x, v%d' % (vreg, lim, vreg), v=True))
            vx += 1
        nd += sum(1 for s in mid if s.startswith('buffer_'))
        if p == 1:
            if qk: it.append(dict(lo=16 - D, hi=bg - 1, ins='v_xor_b32 v%d, 32768, v%d' % (V_KRD, V_KRD), v=True))
            it.append(dict(lo=bg - 1 if nxt == 'v' else bg, hi=bg - 1 if nxt == 'v' else n - 1, ins='v_xor_b32 v%d, 32768, v%d' % (V_VRD, V_VRD), v=True))
            it.append(dict(lo=13, hi=n - 1, ins='s_xor_b32 s%d, s%d, 32768' % (sT, sT)))
        if nxt is not None:
            it.append(dict(lo=bg - 3, hi=bg - 2, ins='s_waitcnt vmcnt(%d)' % (nd + vx)))
            it.append(dict(lo=bg - 1, hi=bg - 1, ins='s_barrier'))
        it += lg_items(n, nxt is None)
        it.sort(key=lambda x: (x['hi'], x['lo']))
        for j, s in enumerate(mid):
            g_ = 9 + (j * (bg - 4 - 9)) // len(mid)
            it.append(dict(lo=g_, hi=bg - 4, ins=s))
        for j, s in enumerate(anyw):
            it.append(dict(lo=anylo, hi=n - 1, ins=s))
        lo0 = bg if nxt is not None else 0
        for j, s in enumerate(post_bar):
            it.append(dict(lo=lo0 + (j * (n - lo0)) // len(post_bar), hi=n - 1, ins=s))
        fin = []
        if ex:
            lts = [LT + (st * 2 + qb) * 4 for st, qbs in ex for qb in qbs]
            cur = lts[0]
            if len(lts) == 2: fin.append('v_max_f32 v%d, v%d, v%d' % (V_T0, lts[0], lts[1])); cur = V_T0
            if len(lts) >= 3: fin.append('v_max3_f32 v%d, v%d, v%d, v%d' % (V_T0, lts[0], lts[1], lts[2])); cur = V_T0
            if len(lts) == 4: fin.append('v_max_f32 v%d, v%d, v%d' % (V_T0, V_T0, lts[3]))
            fin.append('v_cmp_lt_f32 vcc, s%d, v%d' % (sTHR, cur))
        pk.run(groups, rds, it, [(st, 1 - p, qbs) for st, qbs in ex], [], fin, (1, p) if qk else None, True)
        if loop_ctr: a('s_sub_u32 s%d, s%d, 1' % (loop_ctr[0], loop_ctr[0]))
        if ex:
            stub, back = a.newlabel(name + '_rs'), a.newlabel(name + '_rb')
            a('s_cbranch_vccnz %s' % stub)
            a.label(back)
            rare_sites.append((stub, back, 1 - p, ex))
        if loop_ctr: a('s_cbranch_scc0 %s' % loop_ctr[1])
    def epilogue(st):
        a('s_lshl_b32 s%d, s%d, 10' % (sE0, sQ[st]))
        a('s_lshl_b32 s%d, s%d, 19' % (sE1, sH))
        a('s_add_u32 s%d, s%d, s%d' % (sE0, sE0, sE1))
        a('s_add_u32 s%d, s%d, 0x%x' % (sE0, sE0, WS_CTX))
        a('s_lshl_b32 s%d, s%d, 10' % (sM1, sW))
        a('s_sub_u32 s%d, s%d, s%d' % (sM0, sE0, sM1)); a('s_add_u32 s%d, s%d, 7168' % (sM0, sM0))
        a('s_add_u32 s%d, s%d, s%d' % (sM1, sE0, sM1))
        a('v_rcp_f32 v%d, v%d' % (V_T0, V_L + st * 2))
        a('v_rcp_f32 v%d, v%d' % (V_T1, V_L + st * 2 + 1))
        a('s_nop 1')
        c3 = 0
        for s in range(4):
            for qb in range(2):
                T = SB[st][0] + 16 * (c3 % 4); c3 += 1
                for cc in range(2):
                    for e in range(4): a('v_accvgpr_read_b32 v%d, a%d' % (T + 4 * cc + e, A_O[st] + ((2 * s + cc) * 2 + qb) * 4 + e))
                for e in range(8): a('v_mul_f32 v%d, v%d, v%d' % (T + e, T + e, (V_T0, V_T1)[qb]))
                for e in range(4): a('v_cvt_pk_bf16_f32 v%d, v%d, v%d' % (T + 8 + e, T + 2 * e, T + 2 * e + 1))
                a('s_add_u32 s%d, s%d, %d' % (sE1, (sM0, sM1)[qb], s * 128 * 1024))
                a(issue(('ctx', 'buffer_store_dwordx4 %s, v%d, %s, s%d offen %s' % (vr(T + 8, 4), V_LANE16, sr(WS, 4), sE1, WT))))
    AH, AC, WD4, WO4, X4, OUT = R1, R2, R3, R4, R5, 4
    sRO, sRT, sCT4, sAC, sWW, sVAL, sXO, sSW, sLD, sW2, sAC0, sWW0 = 8, 9, 10, 11, 12, 74, 13, 18, 19, 20, 26, 27
    sS1, sS0, sR0, sR1 = 16, 17, 21, 62
    WS_EX = 0x8000000
    FX = WS_FLG + 65536
    a_real = a; a = Asm()
    a('s_lshr_b32 s67, s2, 3')
    a('s_cmp_lt_u32 s67, 30'); a('s_cselect_b32 s%d, 1, 0' % sVAL)
    a('s_min_u32 s67, s67, 29')
    a('s_mul_i32 s68, s67, 205'); a('s_lshr_b32 s68, s68, 10')
    a('s_mul_i32 s69, s68, 5'); a('s_sub_u32 s%d, s67, s69' % sCT4)
    a('s_and_b32 s69, s2, 7'); a('s_lshl_b32 s69, s69, 2'); a('s_lshr_b32 s69, %s, s69' % os.environ.get('GMAP', '0x07362514')); a('s_and_b32 s69, s69, 7')
    a('s_mul_i32 s69, s69, 6'); a('s_add_u32 s69, s69, s68')
    a('s_lshr_b32 s%d, s69, 4' % sRO); a('s_and_b32 s%d, s69, 15' % sRT)
    for s in srd('x', X4) + srd('out', OUT): a(s)
    a('s_add_u32 s70, s%d, 2' % sRO); a('s_cmp_eq_u32 s%d, 0' % sRO); a('s_cselect_b32 s71, 0, 3'); a('s_sub_u32 s70, s70, s71')
    a('s_cmp_eq_u32 s%d, 0' % sRO); a('s_cselect_b32 s71, 40, 44'); a('s_mul_i32 s71, s71, s%d' % sVAL)
    a('s_mul_i32 s67, s%d, %d' % (sRO, 18 * 131072)); a('s_add_u32 s67, s67, 0x%x' % WS_H)
    a('s_add_u32 s%d, s28, s67' % AH); a('s_addc_u32 s%d, s29, 0' % (AH + 1)); a('s_mul_i32 s%d, s%d, %d' % (AH + 2, sVAL, 18 * 131072))
    a('s_mul_i32 s67, s70, %d' % (44 * 131072)); a('s_add_u32 s67, s67, 0x%x' % WS_CTX)
    a('s_add_u32 s%d, s28, s67' % AC); a('s_addc_u32 s%d, s29, 0' % (AC + 1)); a('s_lshl_b32 s%d, s71, 17' % (AC + 2))
    a('s_mul_i32 s67, s%d, %d' % (sRO, 18 * 32 * 1280))
    a('s_add_u32 s%d, s22, s67' % WD4); a('s_addc_u32 s%d, s23, 0' % (WD4 + 1)); a('s_mul_i32 s%d, s%d, %d' % (WD4 + 2, sVAL, 18 * 32 * 1280))
    a('s_mul_i32 s67, s70, %d' % (44 * 32 * 1280))
    a('s_add_u32 s%d, s14, s67' % WO4); a('s_addc_u32 s%d, s15, 0' % (WO4 + 1)); a('s_mul_i32 s%d, s71, %d' % (WO4 + 2, 32 * 1280))
    for r_ in (AH, AC, WD4, WO4): a('s_mov_b32 s%d, 0x00020000' % (r_ + 3))
    a('s_cmp_eq_u32 s%d, 2' % sRO); a('s_cselect_b32 s%d, 1, 0' % sSW)
    VA0, VA1, VWO, VRD, VX, VPL = 16, 17, 18, 32, 20, 200
    a('s_lshl_b32 s%d, s%d, 2' % (sAC, sRT)); a('s_add_u32 s%d, s%d, s%d' % (sAC, sAC, sW))
    a('s_lshl_b32 s67, s%d, 1' % sAC); a('s_add_u32 s67, s67, s%d' % sSW)
    a('s_mul_i32 s%d, s67, %d' % (sXO, 16 * 1280)); a('s_lshl_b32 s68, s%d, 8' % sCT4); a('s_add_u32 s%d, s%d, s68' % (sXO, sXO))
    a('s_lshl_b32 s%d, s%d, 11' % (sAC, sAC)); a('s_mov_b32 s%d, s%d' % (sAC0, sAC))
    a('s_lshl_b32 s67, s%d, 10' % sSW)
    a('v_add_u32 v%d, s67, v%d' % (VA0, V_LANE16))
    a('v_xor_b32 v%d, 1024, v%d' % (VA1, VA0))
    a('s_mul_i32 s%d, s%d, %d' % (sWW, sW, 16 * 1280)); a('s_add_u32 s%d, s%d, s68' % (sWW, sWW)); a('s_mov_b32 s%d, s%d' % (sWW0, sWW))
    a('v_lshrrev_b32 v5, 3, v0'); a('v_mul_u32_u24 v5, 1280, v5')
    a('v_bfe_u32 v6, v0, 1, 2'); a('v_bfe_u32 v7, v0, 4, 2'); a('v_xor_b32 v6, v6, v7')
    a('v_lshl_add_u32 v5, v6, 5, v5'); a('v_and_b32 v6, 1, v0')
    a('v_lshl_add_u32 v%d, v6, 4, v5' % VWO)
    a('v_add_u32 v%d, %d, v%d' % (VWO + 1, 8 * 1280 - 1024, VWO))
    a('v_lshrrev_b32 v5, 2, v0'); a('v_lshlrev_b32 v5, 7, v5'); a('v_and_b32 v6, 3, v0'); a('v_lshl_add_u32 v5, v6, 3, v5')
    a('v_bfe_u32 v6, v0, 3, 2')
    for c in range(4):
        a('v_xor_b32 v7, %d, v6' % c)
        a('v_lshl_add_u32 v%d, v7, 5, v5' % (VRD + c))
        a('v_add_u32 v%d, 65536, v%d' % (VRD + 4 + c, VRD + c))
    a('v_lshrrev_b32 v5, 4, v0'); a('v_mul_u32_u24 v5, 5120, v5'); a('v_and_b32 v6, 15, v0')
    a('v_lshl_add_u32 v%d, v6, 4, v5' % VX)
    a('v_and_b32 v%d, 0x1f0, v%d' % (VPL, V_LANE16))
    a('s_mul_i32 s67, s%d, 4608' % sW)
    a('v_and_b32 v5, 15, v0'); a('v_mul_u32_u24 v5, 272, v5'); a('v_lshrrev_b32 v6, 4, v0'); a('v_lshl_add_u32 v5, v6, 3, v5')
    a('v_add_u32 v21, s67, v5')
    a('v_mul_u32_u24 v6, 1088, v6'); a('v_and_b32 v5, 15, v0'); a('v_lshl_add_u32 v5, v5, 4, v6')
    a('v_add_u32 v23, s67, v5')
    a('s_sub_u32 s67, 15, s%d' % sRT); a('s_min_u32 s67, s67, s%d' % sRT)
    a('s_lshl_b32 s79, s67, 9'); a('s_add_u32 s79, s79, 0x%x' % FH)
    a('s_lshl_b32 s76, s%d, 9' % sRT); a('s_add_u32 s76, s76, 0x%x' % FC)
    a('s_mul_i32 s67, s%d, 5' % sRT); a('s_add_u32 s67, s67, s%d' % sCT4)
    a('s_lshl_b32 s68, s67, 2'); a('s_add_u32 s68, s68, s%d' % sW)
    a('s_lshl_b32 s75, s68, 10'); a('s_add_u32 s75, s75, 0x%x' % FX)
    a('s_lshl_b32 s68, s68, 16'); a('s_add_u32 s68, s68, 0x%x' % WS_EX)
    a('s_add_u32 s67, s%d, 1' % sRO); a('s_lshl_b32 s67, s67, 13'); a('s_add_u32 s%d, s68, s67' % sS1)
    a('s_cmp_eq_u32 s%d, 0' % sRO); a('s_cselect_b32 s%d, s68, 0x20000000' % sS0)
    a('s_cmp_eq_u32 s%d, 0' % sVAL); a('s_cselect_b32 s%d, 0x20000000, s%d' % (sS0, sS0)); a('s_cselect_b32 s%d, 0x20000000, s%d' % (sS1, sS1))
    a('s_lshl_b32 s67, s%d, 13' % sSW); a('s_add_u32 s%d, s68, s67' % sR0)
    a('s_sub_u32 s67, 3, s%d' % sSW); a('s_lshl_b32 s67, s67, 13'); a('s_add_u32 s%d, s68, s67' % sR1)
    a('s_cmp_eq_u32 s%d, 0' % sRO); a('s_cselect_b32 s%d, 0x20000000, s%d' % (sR0, sR0)); a('s_cselect_b32 s%d, 0x20000000, s%d' % (sR1, sR1))
    a('s_lshl_b32 s56, s%d, 7' % sRO); a('s_add_u32 s56, s56, s75')
    a('s_sub_u32 s67, 3, s%d' % sRO); a('s_cmp_eq_u32 s%d, 0' % sRO); a('s_cselect_b32 s67, 0, s67'); a('s_lshl_b32 s67, s67, 7')
    a('v_and_b32 v22, 1, v0'); a('v_mul_u32_u24 v22, s67, v22')
    a('s_lshl_b32 s%d, s%d, 11' % (sLD, sW))
    for c in range(4): a('v_add_u32 v%d, 131072, v%d' % (196 + c, VRD + c))
    setup4 = [re.sub(r'\bv([567])\b', lambda m: 'v%d' % (64 + int(m.group(1))), l.strip()) for l in a.lines]
    a = a_real
    grp4 = []
    for l in setup4:
        if l.startswith('s_cselect') or l.startswith('s_addc'): grp4[-1] += '\n' + l
        else: grp4.append(l)
    h_poll = 'buffer_load_dwordx4 v[192:195], v%d, %s, s79 offen %s' % (VPL, sr(WS, 4), WT)
    c_poll = 'buffer_load_dwordx4 v[24:27], v%d, %s, s76 offen %s' % (VPL, sr(WS, 4), WT)
    b_poll = 'buffer_load_dword v24, v22, %s, s75 offen %s' % (sr(WS, 4), WT)
    s_poll = 'buffer_load_dword v24, v22, %s, s75 offen offset:512 %s' % (sr(WS, 4), WT)
    WF4 = 64; ND4 = 18; NK = 62; LA4 = 15
    def accB(n, q): return 128 + (q * 8 + n) * 4
    def accS(n, q): return 192 + (q * 8 + n) * 4
    def act4(k, q): r = k % 16; return (r * 8 + q * 4) if r < 8 else (128 + (r - 8) * 8 + q * 4)
    def wslot(st): return 131072 + st * 16384 if st < 2 else ((st - 2) % 8) * 16384
    def w4_dma(st):
        L = []
        if st == ND4 // 2: L.append('s_mov_b32 s%d, s%d' % (sWW, sWW0))
        r_ = WD4 if st < ND4 // 2 else WO4
        for m in range(2):
            L += ['s_add_u32 m0, s%d, %d' % (sLD, wslot(st) + m * 8192), 's_nop 0' if m == 0 else 's_add_u32 s%d, s%d, 128' % (sW2, sWW)]
            L += [(('w4', st), 'buffer_load_dwordx4 v%d, %s, s%d offen offset:%d lds' % (VWO + j, sr(r_, 4), sWW if m == 0 else sW2, 1024 * j)) for j in range(2)]
        L.append('s_add_u32 s%d, s%d, %d' % (sWW, sWW, 64 * 1280))
        return L
    def a4_load(k):
        L = ['s_mov_b32 s%d, s%d' % (sAC, sAC0)] if k == ND4 else []
        return L + [(('a4', k), 'buffer_load_dwordx4 %s, v%d, %s, s%d offen' % (ar(act4(k, q), 4), (VA0, VA1)[q], sr(AH if k < ND4 else AC, 4), sAC)) for q in range(2)] + \
               ['s_add_u32 s%d, s%d, %d' % (sAC, sAC, 128 * 1024)]
    def w4_read(k, n):
        ad, ks = wslot(k // 2), k % 2
        reg = (VRD, VRD + 4, 196)[ad // 65536]
        return ['ds_read_b64_tr_b16 %s, v%d offset:%d' % (vr(WF4 + 4 * n + 2 * r, 2), reg + n % 4, ad % 65536 + (n // 4) * 8192 + (32 * ks + 16 * r) * 128) for r in range(2)]
    PK = 112
    def packs(accf):
        L = []
        for q in (1, 0):
            for n in range(8):
                dst = (accf(0, 1) if q else PK) + 2 * n
                L += ['v_cvt_pk_bf16_f32 v%d, v%d, v%d' % (dst + h, accf(n, q) + 2 * h, accf(n, q) + 2 * h + 1) for h in range(2)]
        return L
    def sends(accf, tag):
        return [(tag, 'buffer_store_dwordx4 %s, v%d, %s, s%d offen offset:%d %s' % (vr((accf(0, 1) if q else PK) + 4 * j, 4), V_LANE16, sr(WS, 4), (sS0, sS1)[q], j * 1024, WT))
                for q in (1, 0) for j in range(4)]
    def recvs(dst, tag):
        return [(tag, 'buffer_load_dwordx4 %s, v%d, %s, s%d offen offset:%d' % (vr(dst + 16 * src_ + 4 * j, 4), V_LANE16, sr(WS, 4), (sR0, sR1)[src_], j * 1024))
                for j in range(4) for src_ in range(2)]
    def unp_add(B, dst, n, T):
        L = []
        for src_ in range(2):
            for h in range(2):
                r = dst + 16 * src_ + 2 * n + h
                L += ['v_lshlrev_b32 v%d, 16, v%d' % (T + 2 * h, r), 'v_and_b32 v%d, s65, v%d' % (T + 2 * h + 1, r)]
            L += ['v_add_f32 v%d, v%d, v%d' % (B + e, B + e, T + e) for e in range(4)]
        return L
    XR4 = 96
    xl = [('x4', 'buffer_load_dwordx4 %s, v%d, %s, s%d offen offset:%d' % (vr(XR4 + 4 * j, 4), VX, sr(X4, 4), sXO, 1280 * j)) for j in range(4)]
    F = (0, 1); H_ = (0,)
    pfi = pre_items(prefill(0, 0, 0, dyn=True))
    a('s_waitcnt lgkmcnt(%d)' % (D - LGS))
    rds = [kread(i, 0) for i in range(D, 16)] + [kread(i, 1) for i in range(D)]
    it = lg_items(16, False) + pfi; it.sort(key=lambda x: (x['hi'], x['lo']))
    pk.run(qk_mf([(1, F, None), (0, F, 1)], 0), rds, it, [], hx, [], None, False)
    a('s_nop 3'); stamp(a, 2, 'p3')
    for st in range(2):
        for qb in range(2):
            for s in max_ops(st, 0, qb, V_T0, V_T1): a(s)
            for e in range(4): a('v_sub_f32 v%d, 0, v%d' % (NEGM + (st * 2 + qb) * 4 + e, V_T0))
    pfi = pre_items(prefill(0, 1, 1, dyn=True))
    rds = [kread(i, 1) for i in range(D, 16)] + [kread(i, 0) for i in range(D)]
    it = lg_items(16, False) + pfi + [dict(lo=16 - D - 1, hi=16 - D - 1, ins='v_xor_b32 v%d, 32768, v%d' % (V_KRD, V_KRD), v=True)]
    it.sort(key=lambda x: (x['hi'], x['lo']))
    pk.run(qk_mf([(1, F, None), (0, F, 0)], 1), rds, it, [(1, 0, F), (0, 0, F)], [], [], (1, 1), False, sub=True)
    a('s_waitcnt vmcnt(0)')
    a(flag_store(76)[1])
    gate(kv_poll, 208, 4, 1, 63)
    LTO = 'w' in MX
    if LTO:
        a('s_lshl_b32 s67, s2, 2'); a('s_add_u32 s67, s67, s%d' % sW)
        a('s_mul_i32 s68, s67, 7'); a('v_min_u32 v63, 6, v0'); a('v_add_u32 v63, s68, v63'); a('v_lshlrev_b32 v63, 7, v63')
        a('s_mul_i32 s68, s67, 3'); a('v_min_u32 v62, 2, v0'); a('v_add_u32 v62, s68, v62'); a('v_lshlrev_b32 v62, 7, v62')
    stamp(a, 10); cstamp(a, 5); stamp(a, 3, 'p3')
    lA, lA_skip, lA_tail2 = name + '_loopA', name + '_skipA', name + '_tail2A'
    a('s_cmp_eq_u32 s%d, 0' % sI)
    a('s_cbranch_scc1 %s' % lA_tail2)
    a('s_sub_u32 s%d, s%d, 2' % (sCNT, sI))
    a('s_cbranch_scc1 %s' % lA_skip)
    cstamp(a, 3, 'cyb')
    a.raw('.p2align 6')
    a.label(lA)
    qB = (1, F, None); BA = [(1, F), (0, F)]; B_ = [(1, F)]; BAh = [(1, F), (0, H_)]; Bh = [(1, H_)]
    iteration(0, [qB, (0, F, None)], BA, BA, BA, lt=LTO)
    iteration(1, [qB, (0, F, None)], BA, BA, BA, loop_ctr=(sCNT, lA), lt=LTO)
    cstamp(a, 4, 'cyb')
    a.label(lA_skip)
    stamp(a, 4, 'p3')
    iteration(0, [qB, (0, F, 1)], BA, BA, BA, pf=prefill(0, 0, 0))
    stamp(a, 5, 'p3')
    iteration(1, [qB, (0, H_, 0)], BA, BA, BA, pf=prefill(0, 1, 1))
    a.label(lA_tail2)
    stamp(a, 6, 'p3')
    l7, lBtail2 = name + '_i7', name + '_tail2B'
    a('s_cmp_eq_u32 s%d, 7' % sI)
    a('s_cbranch_scc1 %s' % l7)
    def txt(L): return [x if isinstance(x, str) else x[1] for x in L]
    acts = [a4_load(k) for k in range(16)]
    E1 = txt(xl); E2 = txt(w4_dma(0) + acts[0] + acts[1] + acts[2]); E3 = txt(w4_dma(1) + acts[3] + acts[4] + acts[5])
    E4 = txt(acts[6] + acts[7] + acts[8] + acts[9] + acts[10] + acts[11])
    wt = ['s_lshl_b32 s67, s2, 2', 's_add_u32 s67, s67, s%d' % sW, 's_mul_i32 s68, s67, 46', 'v_min_u32 v72, 45, v0', 'v_add_u32 v72, s68, v72',
          'v_min_u32 v72, 40959, v72', 'v_lshlrev_b32 v72, 7, v72', 'global_load_dword v63, v72, s[14:15]',
          's_mul_i32 s68, s67, 20', 'v_min_u32 v73, 19, v0', 'v_add_u32 v73, s68, v73', 'v_min_u32 v73, 17279, v73', 'v_lshlrev_b32 v73, 7, v73',
          'global_load_dword v63, v73, s[22:23]']
    iteration(0, [qB], BAh, BA, BA, post_bar=(() if ('w' in MX or 'W' in MX) else wt))
    stamp(a, 7, 'p3')
    ct2 = ['s_getpc_b64 s[70:71]\n%s_pc3:\ns_add_u32 s70, s70, %s_loopB-%s_pc3\ns_addc_u32 s71, s71, 0' % (name, name, name),
           's_bfe_u32 s67, s2, 0x20003', 's_lshl_b32 s67, s67, 2', 's_add_u32 s67, s67, s%d' % sW, 's_mul_i32 s67, s67, %d' % (8 * 128),
           'v_min_u32 v72, 7, v0', 'v_lshlrev_b32 v72, 7, v72', 'v_add_u32 v72, s67, v72', 'global_load_dword v7, v72, s[70:71]'] if 'D' in MX else []
    iteration(1, [qB], B_, BAh, BAh, anyw=grp4 + ct2 + [h_poll], vx=(0 if ('w' in MX or 'W' in MX) else 2))
    stamp(a, 8, 'p3')
    epilogue(0)
    stamp(a, 9, 'p3')
    a('s_waitcnt vmcnt(8)')
    gate(h_poll, 192, 4, 1, 63)
    lB = name + '_loopB'
    a('s_lshl_b32 s%d, s%d, 1' % (sCNT, sI))
    a('s_sub_u32 s%d, 12, s%d' % (sCNT, sCNT))
    cstamp(a, 5, 'cyb'); stamp(a, 10, 'p3')
    a.raw('.p2align 6')
    a.label(lB)
    iteration(0, [qB], B_, B_, B_, lt=LTO)
    iteration(1, [qB], B_, B_, B_, loop_ctr=(sCNT, lB), lt=LTO)
    cstamp(a, 6, 'cyb'); stamp(a, 11, 'p3')
    if 'C' not in MX:
        E1 = E1 + ['s_getpc_b64 s[70:71]\n%s_pc2:\ns_add_u32 s70, s70, %s_tail2B-%s_pc2\ns_addc_u32 s71, s71, 0' % (name, name, name),
                   's_lshr_b32 s67, s2, 3', 's_lshl_b32 s67, s67, 2', 's_add_u32 s67, s67, s%d' % sW, 's_lshl_b32 s67, s67, 9',
                   'v_and_b32 v63, 3, v0', 'v_lshlrev_b32 v63, 7, v63', 'v_add_u32 v63, s67, v63', 'v_min_u32 v63, %s_codeend-%s_tail2B-4, v63' % (name, name),
                   'global_load_dword v63, v63, s[70:71]']
        E1b = E1[:4]
    else: E1b = E1
    iteration(0, [(1, F, 1)], B_, B_, B_, dk=False, mid=E1, post_bar=E2, pf=prefill(1, 0, 0))
    stamp(a, 12, 'p3')
    iteration(1, [(1, H_, 0)], B_, B_, B_, dk=False, nxt='v', mid=E3, post_bar=E4, pf=prefill(1, 1, 1), vx=sum(1 for s_ in E2 if s_.startswith('buffer_')) + sum(1 for s_ in E1 if s_.startswith('buffer_')))
    a('s_branch %s' % lBtail2)
    a.label(l7)
    iteration(0, [(1, F, 1)], BAh, BA, BA, dk=False, pf=prefill(1, 0, 0))
    iteration(1, [(1, H_, 0)], B_, BAh, BAh, dk=False, nxt='v', anyw=grp4 + [h_poll], pf=prefill(1, 1, 1), anylo=10)
    epilogue(0)
    a('s_waitcnt vmcnt(8)')
    gate(h_poll, 192, 4, 1, 63)
    for s_ in E2 + E3 + E4 + E1b: a(s_)
    a.label(lBtail2)
    stamp(a, 11); cstamp(a, 6); stamp(a, 13, 'p3')
    vm.n = 0; ids = {}
    for k in range(12): ids[('a4', k)] = -100
    ids[('w4', 0)] = ids[('w4', 1)] = -100
    sent = ['v_mov_b32 v%d, -1' % (116 + e) for e in range(4)] + ['s_add_u32 s67, s%d, 32768' % sS0, 's_add_u32 s68, s%d, 32768' % sS1]
    sent += [('sn', 'buffer_store_dwordx4 v[116:119], v%d, %s, s%d offen offset:%d %s' % (V_LANE16, sr(WS, 4), 67 + q, j * 1024, WT)) for j in range(4) for q in range(2)]
    e1 = [flag_store(77)[1]] + [issue(it) for it in w4_dma(2) + w4_dma(3) + sent]
    iteration(0, None, Bh, B_, B_, dk=False, dv=False, nxt='v', post_bar=e1)
    stamp(a, 14, 'p3')
    e2 = w4_dma(4) + acts[12] + acts[13] + w4_dma(5) + acts[14]
    iteration(1, None, [], Bh, Bh, dk=False, dv=False, nxt=None, post_bar=[issue(it) for it in e2])
    stamp(a, 12); stamp(a, 15, 'p3'); padp(a, 'p3')
    epilogue(1)
    stamp(a, 16, 'p3')
    notile = name + '_notile'
    a('s_cmp_eq_u32 s%d, 0' % sVAL)
    a('s_cbranch_scc1 %s' % notile)
    a('s_barrier')
    for n in range(8):
        for s_ in w4_read(0, n): a(s_)
    stamp(a, 13)
    def rnd_l(r0, r1, t):
        return ['v_cvt_pk_bf16_f32 v%d, v%d, v%d' % (t, r0, r1), 'v_lshlrev_b32 v%d, 16, v%d' % (r0, t), 'v_and_b32 v%d, s65, v%d' % (r1, t)]
    def rnd(r0, r1, t):
        for s_ in rnd_l(r0, r1, t): a(s_)
    RBv = accB(0, 1)
    def gate_calc(n):
        B = accB(n, 0); T = 40 + 4 * (n % 2); L = unp_add(B, RBv, n, T)
        for h in range(2): L += rnd_l(B + 2 * h, B + 2 * h + 1, T)
        L += ['v_mul_f32 v%d, s64, v%d' % (T + e, B + e) for e in range(4)]
        L += ['v_exp_f32 v%d, v%d' % (T + e, T + e) for e in range(4)]
        L += ['v_add_f32 v%d, 1.0, v%d' % (T + e, T + e) for e in range(4)]
        L += ['v_rcp_f32 v%d, v%d' % (T + e, T + e) for e in range(4)]
        L += ['v_mul_f32 v%d, v%d, v%d' % (B + e, B + e, T + e) for e in range(4)]
        for h in range(2): L += rnd_l(B + 2 * h, B + 2 * h + 1, T)
        return L
    def x_unpack():
        L = []
        for n in range(8):
            for h in range(2):
                x = XR4 + 2 * n + h; o = accB(n, 1) + 2 * h
                L += ['v_lshlrev_b32 v%d, 16, v%d' % (o, x), 'v_and_b32 v%d, s65, v%d' % (o + 1, x)]
        return L
    a('s_mov_b32 s64, %s' % f2u(-math.log2(math.e)))
    a('s_mov_b32 s65, 0xffff0000')
    pend = w4_dma(6) + w4_dma(7) + w4_dma(8) + w4_dma(9)
    slowq = []
    valq = []
    nxt_a = LA4
    KG = int(os.environ.get('KG', 15)); KCF = int(os.environ.get('KCF', 1)); PDL = 5; CUN = int(os.environ.get('CUN', 9))
    KS0, KFL, KBP, KRC = ND4 + 2, 30, 33, 48
    rbl = recvs(RBv, 'rb')
    for k in range(NK):
        assert not any(x[0] == ('a4', k) for x in pend if not isinstance(x, str))
        need = ids[('a4', k)]
        if k == KCF: need = max(need, ids['ctx'])
        if k == KG: need = max(need, ids['cp'])
        if k in (KFL, KRC): assert not slowq and not any(x[0] in ('sb', 'rb', 'x4') for x in pend if not isinstance(x, str))
        if k == KFL: need = max(need, ids['sb'])
        if k == KBP + PDL: need = max(need, ids['bp'])
        if k == KRC: need = max(need, ids['rb'])
        a('s_waitcnt vmcnt(%d) lgkmcnt(12)' % min(63, vm.cnt(need)))
        if k == KCF: pend = [flag_store(78)] + pend
        if k == KG - 3: pend = [('cp', c_poll)] + pend
        if k == KG: gate(c_poll, 24, 4, 1, 63)
        if k == KS0 - 1: valq += packs(accB)
        if k == KS0:
            assert not valq
            sl = sends(accB, 'sb'); slowq += [x for p_ in zip(sl[:4], sl[4:]) for x in p_]
        if k == KFL:
            pend = [flag_store(56), 's_add_u32 s56, s56, 512', 's_add_u32 s%d, s%d, 32768' % (sS0, sS0), 's_add_u32 s%d, s%d, 32768' % (sS1, sS1)] + pend
        if k == KBP: pend = [('bp', b_poll)] + pend
        if k == KBP + PDL:
            gate(b_poll, 24, 1, 1, 63)
            slowq += rbl
        if k == KRC:
            pend += ['s_add_u32 s%d, s%d, 32768' % (sR0, sR0), 's_add_u32 s%d, s%d, 32768' % (sR1, sR1)]
            for n in range(8): valq += gate_calc(n)
            valq += x_unpack()
        newa = []
        lim = min(NK, k + LA4 + 1) if k >= KG else ND4
        while nxt_a < min(lim, k + LA4 + 1) and len(newa) < CUN:
            newa += a4_load(nxt_a); nxt_a += 1
        pend = newa + slowq[:2] + pend; slowq = slowq[2:]
        accf = accB if k < ND4 else accS
        for n in range(8):
            if n % 2 == 0 and n > 0: a('s_waitcnt lgkmcnt(%d)' % (12 if k < NK - 1 else 2 * (6 - n)))
            for q in range(2):
                d = vr(accf(n, q), 4)
                a('%s %s, %s, %s, %s' % (MF16, d, vr(WF4 + 4 * n, 4), ar(act4(k, q), 4), '0' if k in (0, ND4) else d))
                if q == 0:
                    while pend and pend[0] == 's_nop 0': pend.pop(0)
                    if pend: a(issue(pend.pop(0)))
                    if pend and isinstance(pend[0], str) and pend[0] != 's_nop 0': a(pend.pop(0))
                    for _ in range(4):
                        if valq: a(valq.pop(0))
            if k + 1 < NK:
                if n == 0 and k % 4 == 3:
                    st = k // 2
                    key = ('w4', min(st + 2, NK // 2 - 1))
                    assert not any(x[0] == key for x in pend if not isinstance(x, str))
                    a('s_waitcnt vmcnt(%d) lgkmcnt(0)' % min(63, vm.cnt(ids[key])))
                    a('s_barrier')
                    for s2_ in (st + 7, st + 8):
                        if s2_ < NK // 2 and st >= 3: pend = pend + w4_dma(s2_)
                for s_ in w4_read(k + 1, n): a(s_)
        if k == ND4 - 1: stamp(a, 14); cstamp(a, 7)
        if k % 4 == 1: stamp(a, 1 + k // 4, 'p4')
        if k == ND4 + 39:
            assert not pend
            a('s_cmp_eq_u32 s%d, 0' % sRO)
            a('s_cbranch_scc1 %s_p4done' % name)
    assert not pend and not valq
    a.label(name + '_p4done')
    stamp(a, 15); cstamp(a, 8)
    a('s_nop 7')
    stamp(a, 1, 'fin')
    pl = packs(accS); sl = sends(accS, 'ss')
    def send_part(js):
        for j in js:
            for s_ in pl[4 * j:4 * j + 4]: a(s_)
            for s_ in pl[4 * j:4 * j + 4]:
                r_ = s_.split()[1].rstrip(',')
                a('v_min_u32 %s, -2, %s' % (r_, r_))
            a(sl[j][1])
    send_part(range(4))
    lfin = name + '_fin'
    a('s_cmp_lg_u32 s%d, 0' % sRO)
    a('s_cbranch_scc1 %s' % lfin)
    send_part(range(4, 8))
    stamp(a, 16)
    stamp_flush(a, 17)
    a('s_endpgm')
    a.label(lfin)
    stamp(a, 2, 'fin')
    RS = 64
    a('s_mov_b32 s63, 0x40000')
    a.label(name + '_rx')
    for it in recvs(RS, 'rs'): a(it[1] + ' ' + WT)
    a('s_waitcnt vmcnt(4)')
    for j in range(2):
        for src_ in range(2):
            r_ = RS + 16 * src_ + 4 * j
            if j == 0 and src_ == 0: a('v_max3_u32 v40, v%d, v%d, v%d' % (r_, r_ + 1, r_ + 2)); a('v_max_u32 v40, v40, v%d' % (r_ + 3))
            else: a('v_max3_u32 v40, v40, v%d, v%d' % (r_, r_ + 1)); a('v_max3_u32 v40, v40, v%d, v%d' % (r_ + 2, r_ + 3))
    a('s_waitcnt vmcnt(0)')
    for j in range(2, 4):
        for src_ in range(2):
            r_ = RS + 16 * src_ + 4 * j
            a('v_max3_u32 v40, v40, v%d, v%d' % (r_, r_ + 1)); a('v_max3_u32 v40, v40, v%d, v%d' % (r_ + 2, r_ + 3))
    a('v_cmp_eq_u32 vcc, -1, v40')
    a('s_sub_u32 s63, s63, 1')
    a('s_cbranch_scc1 %s_rxok' % name)
    a('s_cbranch_vccnz %s_rx' % name)
    a.label(name + '_rxok')
    stamp(a, 6, 'fin')
    for n in range(8):
        if n in (0, 7): stamp(a, 7 + n // 7, 'fin')
        S = accS(n, 0); T = 96 + 2 * n
        for s_ in unp_add(S, RS, n, 40): a(s_)
        for h in range(2): rnd(S + 2 * h, S + 2 * h + 1, 56)
        for e in range(4): a('v_mul_f32 v%d, v%d, v%d' % (S + e, S + e, accB(n, 0) + e))
        for h in range(2): a('v_cvt_pk_bf16_f32 v%d, v%d, v%d' % (T + h, S + 2 * h, S + 2 * h + 1))
        a('ds_write_b64 v21, %s offset:%d' % (vr(T, 2), 32768 + 32 * n))
    for j in range(4): a('ds_read_b128 %s, v23 offset:%d' % (vr(64 + 4 * j, 4), 32768 + 272 * j))
    for j in range(4):
        a('s_waitcnt lgkmcnt(%d)' % (3 - j))
        X_ = accB(0, 1) + 8 * j
        for e in range(4):
            a('v_lshlrev_b32 v40, 16, v%d' % (64 + 4 * j + e)); a('v_and_b32 v41, s65, v%d' % (64 + 4 * j + e))
            a('v_add_f32 v40, v40, v%d' % (X_ + 2 * e)); a('v_add_f32 v41, v41, v%d' % (X_ + 2 * e + 1))
            a('v_cvt_pk_bf16_f32 v%d, v40, v41' % (80 + 4 * j + e))
        a('buffer_store_dwordx4 %s, v%d, %s, s%d offen offset:%d %s' % (vr(80 + 4 * j, 4), VX, sr(OUT, 4), sXO, 1280 * j, OUTF))
    if os.environ.get('PADT'):
        if os.environ.get('PADG'):
            a('s_mov_b32 s96, 0x%x' % FL)
            a('buffer_load_dwordx4 v[4:7], v%d, %s, s96 offen offset:2048 %s' % (V_LANE16, sr(WS, 4), WT))
            a('s_waitcnt vmcnt(0)')
            for e in range(4): a('v_subrev_u32 v%d, s97, v%d' % (4 + e, 4 + e))
            a('v_min_i32 v4, v4, v5'); a('v_min_i32 v6, v6, v7'); a('v_min_i32 v4, v4, v6'); a('s_mov_b32 s96, 0'); a('s_nop 1')
            for l in range(64):
                a('v_readlane_b32 s95, v4, %d' % l); a('s_nop 3'); a('s_min_i32 s96, s96, s95')
            a('s_add_u32 s97, s97, s96')
        a.label(name + '_padl')
        a('s_memrealtime s[98:99]'); a('s_waitcnt lgkmcnt(0)'); a('s_sub_u32 s98, s98, s97'); a('s_cmp_lt_u32 s98, %d' % int(os.environ['PADT']))
        a('s_cbranch_scc1 %s_padl' % name)
    stamp(a, 16); stamp(a, 9, 'fin')
    stamp_flush(a, 17)
    a('s_endpgm')
    a.label(notile)
    a('s_waitcnt vmcnt(0)')
    a(flag_store(78)[1])
    a.label(end)
    a('s_endpgm')
    for slow, ok, load_ins, chk, ts in slow_paths:
        a.label(slow)
        a('s_mov_b32 s%d, 0x40000' % ts)
        lp = a.newlabel(name + '_sp')
        a.label(lp)
        a('s_sleep 1')
        a(load_ins)
        a('s_waitcnt vmcnt(0)')
        for s in chk: a(s)
        a('s_nop 1')
        a('s_cbranch_vccz %s' % ok)
        a('s_sub_u32 s%d, s%d, 1' % (ts, ts))
        a('s_cbranch_scc0 %s' % lp)
        a('s_branch %s' % ok)
    for stub, back, pc, ex in rare_sites:
        a.label(stub)
        for st, qbs in sorted(ex):
            a('s_mov_b32 s69, %s' % ('1.0' if 1 in qbs else '0'))
            a('s_call_b64 s[100:101], %s_rare%d%d' % (name, pc, st))
        a('s_branch %s' % back)
    for pc in range(2):
        for st in range(2):
            a.label('%s_rare%d%d' % (name, pc, st))
            a('s_nop 7')
            for qb in range(2):
                for s in max_ops(st, pc, qb, V_T0, V_T1): a(s)
                a('v_max_f32 v%d, 0, v%d' % (V_T0, V_T0))
                if qb == 1: a('v_mul_f32 v%d, s69, v%d' % (V_T0, V_T0))
                a('v_exp_f32 v%d, -v%d' % (V_T1, V_T0))
                for e in range(4): a('v_sub_f32 v%d, v%d, v%d' % (NEGM + (st * 2 + qb) * 4 + e, NEGM + (st * 2 + qb) * 4 + e, V_T0))
                for pp in range(2):
                    for kb in range(4):
                        for r in range(4):
                            x = SB[st][pp] + (kb * 2 + qb) * 4 + r
                            a('v_sub_f32 v%d, v%d, v%d' % (x, x, V_T0))
                a('v_mul_f32 v%d, v%d, v%d' % (V_L + st * 2 + qb, V_L + st * 2 + qb, V_T1))
                for db in range(0, 8, 2):
                    regs = [A_O[st] + ((db + h) * 2 + qb) * 4 + e for h in range(2) for e in range(4)]
                    for e in range(8): a('v_accvgpr_read_b32 v%d, a%d' % (TMP + e, regs[e]))
                    for e in range(8): a('v_mul_f32 v%d, v%d, v%d' % (TMP + e, TMP + e, V_T1))
                    for e in range(8): a('v_accvgpr_write_b32 a%d, v%d' % (regs[e], TMP + e))
            for s in exp_ops(st, pc): a(s)
            if st == 1:
                for k, (s, _, _) in enumerate(exp_seq(1, 1 - pc)[:EARLY]): a('v_exp_f32 v%d, v%d' % (TMP + k, s))
            a('s_nop 7')
            a('s_setpc_b64 s[100:101]')
    a.label(name + '_codeend')
    if os.environ.get('PADEND'): a.raw('.fill 8192, 4, 0xBF810000')
    kernel_desc(a, name, 512, 256)
    return a
```

```python
from common import *
import common
import math, copy, re
import k2 as K2
from k2 import VM, Packer, exp_seq, exp_ops, max_ops, EARLY
from k2 import V_LANE16, V_LANE16V, V_KRD, V_VRD, V_T0, V_T1, V_L, TRI, NEGM, LT, TMP, SB, PB, A_O, A_Q, A_RING, V_ONES, D, R, THR, BIG

OUTF = os.environ.get('OUTF', 'sc0 sc1')
WT = 'sc0 sc1'
WS_FLG = 0x7000000
FK, FH, FC, FL, FE = WS_FLG, WS_FLG + 4096, WS_FLG + 8192, WS_FLG + 16384, WS_FLG + 20480
PTR = dict(x=4, ckv=6, wq=8, wuk=10, wuv=12, wo=14, wg=18, wu=20, wd=22, out=24, dbg=26, ws=28)
WS, R1, R2, R3, R4, R5 = 32, 36, 40, 44, 48, 52
sW, sH, sI = 30, 31, 3
V_ONE, V_1 = 60, 61
V_PA, V_PD = 62, 24

SMODE = os.environ.get('SMODE', 'all')
def stamp(a, i, mode='all'):
    if not DIAG: return
    if mode != SMODE and i != 0: return
    a('s_memrealtime s[98:99]'); a('s_waitcnt lgkmcnt(0)'); a('s_mov_b32 s%d, s98' % (80 + i))
def cstamp(a, i, mode='cyc'):
    if not DIAG or mode != SMODE: return
    a('s_memrealtime s[98:99]'); a('s_waitcnt lgkmcnt(0)'); a('s_mov_b32 s%d, s98' % (80 + i + 8))
    a('s_memtime s[98:99]'); a('s_waitcnt lgkmcnt(0)'); a('s_mov_b32 s%d, s98' % (80 + i))
def stamp_flush(a, n):
    if not DIAG: return
    if os.environ.get('DBGOUT'):
        a('s_load_dwordx2 s[36:37], s[0:1], 88')
        a('s_mov_b32 s38, 256'); a('s_mov_b32 s39, 0x00020000')
        a('s_lshl_b32 s98, s2, 2'); a('s_add_u32 s98, s98, s%d' % sW)
        a('s_cmp_eq_u32 s98, %d' % (4 * int(os.environ['DBGOUT'])))
        a('s_cselect_b32 s98, 0, 0x1000')
        a('s_waitcnt lgkmcnt(0)')
        a('v_mov_b32 v0, 0')
        for i in range(1, n):
            a('s_sub_u32 s99, s%d, s80' % (80 + i))
            a('v_mov_b32 v1, s99')
            a('buffer_store_dword v1, v0, s[36:39], s98 offen offset:%d' % (4 * (i - 1)))
            a('s_nop 1')
        return
    a('s_lshl_b32 s98, s2, 2'); a('s_add_u32 s98, s98, s%d' % sW); a('s_lshl_b32 s98, s98, 7')
    a('s_add_u32 s98, s98, 0x%x' % WS_STAMP)
    a('v_mov_b32 v0, 0')
    for i in range(n):
        a('v_mov_b32 v1, s%d' % (80 + i))
        a('buffer_store_dword v1, v0, %s, s98 offen offset:%d' % (sr(WS, 4), 4 * i))
        a('s_nop 1')

def padp(a, tag):
    v = os.environ.get('PADP', '')
    if not v.startswith(tag + ':'): return
    l = a.newlabel('L_pp'); a.label(l)
    a('s_memrealtime s[98:99]'); a('s_waitcnt lgkmcnt(0)'); a('s_sub_u32 s98, s98, s97'); a('s_cmp_lt_u32 s98, %d' % int(v.split(':')[1])); a('s_cbranch_scc1 %s' % l)
def srd(name, r, off=0, size=None):
    p = PTR[name]
    L = []
    if off:
        L += ['s_add_u32 s%d, s%d, 0x%x' % (r, p, off), 's_addc_u32 s%d, s%d, 0' % (r + 1, p + 1)]
    else:
        L += ['s_mov_b32 s%d, s%d' % (r, p), 's_mov_b32 s%d, s%d' % (r + 1, p + 1)]
    L += ['s_mov_b32 s%d, 0x%x' % (r + 2, SIZE[name] if size is None else size), 's_mov_b32 s%d, 0x00020000' % (r + 3)]
    return L

def gen_mega(a, name):
    kernel_begin(a, name)
    end = name + '_end'
    slow_paths = []
    def gate(load_ins, dreg, n, want, tmp_s):
        def chk():
            L = ['v_xor_b32 v%d, v%d, v%d' % (dreg + e, dreg + e, V_1) for e in range(n)]
            if n >= 3: L += ['v_or3_b32 v%d, v%d, v%d, v%d' % (dreg, dreg, dreg + 1, dreg + 2)]
            if n == 4: L += ['v_or_b32 v%d, v%d, v%d' % (dreg, dreg, dreg + 3)]
            L += ['v_cmp_ne_u32 vcc, 0, v%d' % dreg]
            return L
        slow, ok = a.newlabel(name + '_sl'), a.newlabel(name + '_ok')
        for s in chk(): a(s)
        a('s_nop 1')
        a('s_cbranch_vccnz %s' % slow)
        a.label(ok)
        slow_paths.append((slow, ok, load_ins, chk(), tmp_s))

    a('s_cmp_ge_u32 s2, 256')
    a('s_cbranch_scc1 %s' % end)
    if os.environ.get('PADT') or os.environ.get('PADP'):
        a('s_memrealtime s[98:99]'); a('s_waitcnt lgkmcnt(0)'); a('s_mov_b32 s97, s98')
    stamp(a, 0)
    a('s_load_dwordx16 s[4:19], s[0:1], 0')
    a('s_load_dwordx8 s[20:27], s[0:1], 64')
    a('s_load_dwordx2 s[28:29], s[0:1], 96')
    if 'e' in os.environ.get('MX', ''):
        a('s_getpc_b64 s[100:101]')
        a('v_lshlrev_b32 v2, 7, v0')
        a('global_load_dword v250, v2, s[100:101]')
    a('v_lshrrev_b32 v1, 6, v0')
    a('v_and_b32 v0, 63, v0')
    a('v_readfirstlane_b32 s%d, v1' % sW)
    a('s_and_b32 s31, s2, 7')
    a('s_lshl_b32 s31, s31, 2')
    a('s_lshr_b32 s61, s2, 3')
    a('s_and_b32 s61, s61, 3')
    a('s_add_u32 s31, s31, s61')
    a('s_lshr_b32 s3, s2, 5')
    CKV, WUK, WUV, X, DBG = R1, R2, R3, R4, R5
    VA, VW = 8, 12
    a('v_lshrrev_b32 v6, 3, v0')
    a('v_lshlrev_b32 v6, 10, v6')
    a('v_lshrrev_b32 v7, 4, v0')
    a('v_and_b32 v12, 7, v0')
    a('v_xor_b32 v12, v12, v7')
    a('v_xor_b32 v13, 4, v12')
    a('v_lshl_add_u32 v12, v12, 4, v6')
    a('v_lshl_add_u32 v13, v13, 4, v6')
    for j in range(4): a('v_add_u32 v%d, %d, v%d' % (VA + j, j * (8192 - 1024), 12 + (j & 1)))
    a('v_bfe_u32 v16, v0, 1, 3')
    a('v_xor_b32 v16, v16, v7')
    a('v_xor_b32 v17, 4, v16')
    a('v_and_b32 v18, 1, v0')
    a('v_lshlrev_b32 v18, 4, v18')
    a('v_lshl_add_u32 v18, v7, 13, v18')
    a('v_lshl_add_u32 v16, v16, 5, v18')
    a('v_lshl_add_u32 v17, v17, 5, v18')
    for j in range(4): a('v_add_u32 v%d, %d, v%d' % (VW + j, j * (32768 - 1024), 16 + (j >> 1)))
    sA, sWo, sLA, sLW, sA2 = 56, 57, 58, 59, 60
    a('s_lshl_b32 s56, s%d, 2' % sI)
    a('s_add_u32 s56, s56, s%d' % sW)
    a('s_lshl_b32 s56, s56, 16')
    a('s_lshl_b32 s57, s%d, 17' % sW)
    a('s_lshl_b32 s58, s%d, 8' % sH)
    a('s_add_u32 s57, s57, s58')
    a('s_lshl_b32 s58, s%d, 13' % sW)
    a('s_lshl_b32 s59, s%d, 12' % sW)
    a('s_add_u32 s59, s59, 65536')
    a('v_lshrrev_b32 v2, 5, v0')
    a('v_and_b32 v3, 31, v0')
    a('s_lshl_b32 s61, s2, 2')
    a('s_add_u32 s61, s61, s%d' % sW)
    a('s_lshl_b32 s61, s61, 1')
    a('v_add_u32 v4, s61, v2')
    a('v_mul_u32_u24 v5, 1280, v4')
    a('v_lshl_add_u32 v5, v3, 3, v5')
    a('v_lshlrev_b32 v%d, 4, v0' % V_LANE16)
    vm = VM(); ids = {}
    def issue(it):
        if isinstance(it, str): return it
        ids[it[0]] = vm.op()
        return it[1]
    def p1_dma(st):
        slot = st & 1; t = ('p1', st)
        L = ['s_add_u32 m0, s%d, %d' % (sLA, slot * 32768), 's_add_u32 s%d, s%d, 32768' % (sA2, sA)]
        L += [(t, 'buffer_load_dwordx4 v%d, %s, s%d offen offset:%d lds' % (VA + j, sr(CKV, 4), sA, 1024 * j)) for j in range(4)]
        L += ['s_add_u32 m0, s%d, %d' % (sLW, slot * 32768), 's_add_u32 s%d, s%d, 128' % (sA, sA)]
        L += [(t, 'buffer_load_dwordx4 v%d, %s, s%d offen offset:%d lds' % (VW + j, sr(WUK, 4), sWo, 1024 * j)) for j in range(4)]
        L += ['s_add_u32 m0, s%d, %d' % (sLA, slot * 32768 + 4096), 's_nop 0']
        L += [(t, 'buffer_load_dwordx4 v%d, %s, s%d offen offset:%d lds' % (VA + j, sr(CKV, 4), sA2, 1024 * j)) for j in range(4)]
        L += ['s_add_u32 m0, s%d, %d' % (sLW, slot * 32768 + 16384), 's_nop 0']
        L += [(t, 'buffer_load_dwordx4 v%d, %s, s%d offen offset:%d lds' % (VW + j, sr(WUV, 4), sWo, 1024 * j)) for j in range(4)]
        L += ['s_add_u32 s%d, s%d, %d' % (sWo, sWo, 64 * 8192)]
        return L
    stamp(a, 1, 'st')
    a('s_waitcnt lgkmcnt(0)')
    for n_, r_ in (('x', X), ('ckv', CKV), ('wuk', WUK), ('wuv', WUV), ('ws', WS)):
        for s in srd(n_, r_): a(s)
    XR = 192
    a('v_mov_b32 v52, 0')
    a('s_mov_b32 s79, 0x%x' % FE)
    a(issue(('ep', 'buffer_load_dword v%d, v52, %s, s79 offen %s' % (V_1, sr(WS, 4), WT))))
    xld = [('x', 'buffer_load_dwordx2 %s, v5, %s, 0 offen offset:%d' % (vr(XR + 2 * j, 2), sr(X, 4), 256 * j)) for j in range(5)]
    MX0 = os.environ.get('MX', '')
    if 'k' in MX0:
        a('v_and_b32 v20, 15, v0'); a('v_lshlrev_b32 v20, 7, v20'); a('s_lshl_b32 s62, s61, 10')
        a(issue(('pf', 'buffer_load_dword v240, v20, %s, s62 offen' % sr(CKV, 4))))
    if 'l' not in MX0:
        for it in xld: a(issue(it))
    PFB = 'P' in os.environ.get('MX', '')
    def weave(start, items):
        body = a.lines[start:]; del a.lines[start:]
        G = []
        for l in body:
            t = l.strip()
            if G and (t.startswith(('s_cselect', 's_addc', 's_subb')) or t.endswith(':') or G[-1][-1].strip().endswith(':')): G[-1].append(l)
            else: G.append([l])
        D_ = []; cur = []
        for s in items:
            cur.append(s)
            if s.startswith(('buffer_', 'global_')): D_.append(cur); cur = []
        if cur: D_[-1] += cur
        for j, d in enumerate(D_):
            for s in d: a(s)
            for g in G[(j * len(G)) // len(D_):((j + 1) * len(G)) // len(D_)]: a.lines.extend(g)
    s0_items = [issue(it) for it in p1_dma(0)]
    W0 = len(a.lines)
    a('s_lshr_b32 s61, s2, 3')
    a('s_lshl_b32 s61, s61, 2')
    a('s_add_u32 s61, s61, s%d' % sW)
    TC, TW, TX = 48, 49, 50
    a('v_bfe_u32 v20, v0, 1, 4')
    a('v_lshlrev_b32 v20, 10, v20')
    a('v_and_b32 v21, 1, v0')
    a('v_lshl_add_u32 v20, v21, 7, v20')
    a('s_lshl_b32 s62, s61, 14')
    a('v_add_u32 v%d, s62, v20' % TC)
    a('v_and_b32 v20, 7, v0')
    a('v_lshlrev_b32 v20, 7, v20')
    a('s_lshl_b32 s62, s61, 13')
    a('s_and_b32 s63, s2, 7')
    a('s_lshl_b32 s63, s63, 10')
    a('s_add_u32 s62, s62, s63')
    a('v_add_u32 v%d, s62, v20' % TW)
    def pf_chunk(c):
        if PFB: return []
        return ['s_mov_b32 s16, %d' % ((c + 1) * 128 * 8192),
                ('pf', 'buffer_load_dword v240, v%d, %s, 0 offen offset:%d' % (TC, sr(CKV, 4), 256 * (c + 1))),
                ('pf', 'buffer_load_dword v241, v%d, %s, s16 offen' % (TW, sr(WUK, 4))),
                ('pf', 'buffer_load_dword v242, v%d, %s, s16 offen' % (TW, sr(WUV, 4)))]
    a('s_getpc_b64 s[100:101]')
    a.label(name + '_pc')
    a('s_sub_u32 s100, s100, %s_pc-%s' % (name, name))
    a('s_subb_u32 s101, s101, 0')
    a('v_and_b32 v20, 7, v0')
    a('v_lshlrev_b32 v20, 7, v20')
    a('s_lshl_b32 s62, s61, 10')
    a('v_add_u32 v20, s62, v20')
    a('v_min_u32 v55, %s_codeend-%s-4, v20' % (name, name))
    a('s_min_u32 s62, s61, 79'); a('s_lshl_b32 s62, s62, 16'); a('v_mov_b32 v56, s62')
    a('s_min_u32 s62, s61, 33'); a('s_lshl_b32 s62, s62, 16'); a('v_mov_b32 v57, s62')
    TQ, TG = 53, 54
    a('v_min_u32 v20, 39, v0')
    a('v_lshrrev_b32 v21, 3, v20')
    a('s_mul_i32 s62, s61, 5')
    a('v_add_u32 v21, s62, v21')
    a('v_and_b32 v20, 7, v20')
    a('v_lshlrev_b32 v20, 7, v20')
    a('v_lshl_add_u32 v20, v21, 13, v20')
    a('v_add_u32 v%d, s63, v20' % TQ)
    a('v_min_u32 v20, 19, v0')
    a('v_lshrrev_b32 v21, 2, v20')
    a('v_add_u32 v21, s62, v21')
    a('v_mul_u32_u24 v21, 3456, v21')
    a('s_and_b32 s63, s2, 7')
    a('s_lshl_b32 s63, s63, 2')
    a('s_mul_i32 s64, s63, 37'); a('s_lshr_b32 s64, s64, 8')
    a('s_sub_u32 s63, s63, s64')
    a('v_and_b32 v20, 3, v20')
    a('v_add_u32 v20, s63, v20')
    a('v_min_u32 v20, 26, v20')
    a('v_lshl_add_u32 v%d, v20, 7, v21' % TG)
    a('s_mul_i32 s62, s61, 20480')
    a('v_and_b32 v20, 31, v0')
    a('v_lshlrev_b32 v20, 7, v20')
    a('v_add_u32 v%d, s62, v20' % TX)
    def xn_touch(j):
        return ['s_mov_b32 s63, %d' % (4096 * j), ('pf', 'buffer_load_dword v243, v%d, %s, s63 offen' % (TX, sr(WS, 4)))]
    RA, RW = 16, 18
    a('s_lshr_b32 s61, s%d, 1' % sW)
    a('s_lshl_b32 s61, s61, 14')
    a('v_bfe_u32 v20, v0, 1, 3')
    a('v_xor_b32 v20, v20, v7')
    a('v_and_b32 v21, 15, v0')
    a('v_lshlrev_b32 v21, 7, v21')
    a('v_add_u32 v21, s61, v21')
    a('v_lshl_add_u32 v%d, v20, 4, v21' % RA)
    a('v_xor_b32 v20, 4, v20')
    a('v_lshl_add_u32 v%d, v20, 4, v21' % (RA + 1))
    a('v_bfe_u32 v22, v0, 2, 2')
    a('v_lshl_add_u32 v23, v7, 3, v22')
    a('v_lshlrev_b32 v23, 8, v23')
    a('v_and_b32 v24, 3, v0')
    a('v_lshl_add_u32 v23, v24, 3, v23')
    a('v_add_u32 v23, 65536, v23')
    a('v_bfe_u32 v22, v0, 2, 3')
    a('s_and_b32 s62, s%d, 1' % sW)
    a('s_lshl_b32 s62, s62, 2')
    a('v_xor_b32 v22, s62, v22')
    for nb in range(4):
        a('v_xor_b32 v24, %d, v22' % nb)
        a('v_lshl_add_u32 v%d, v24, 5, v23' % (RW + nb))
    P_XOFF2, P_WOFF, P_WRD = 32, 33, 40
    P_X0, P_X1 = 32, 37
    a('s_sub_u32 s61, 7, s%d' % sW); a('s_mul_i32 s61, s61, 20480'); a('v_add_u32 v%d, s61, v%d' % (P_X0, V_LANE16))
    a('s_mul_i32 s61, s%d, 20480' % sW); a('v_add_u32 v%d, s61, v%d' % (P_X1, V_LANE16))
    a('v_lshrrev_b32 v25, 3, v0')
    a('v_bfe_u32 v26, v0, 1, 2')
    a('v_bfe_u32 v27, v0, 4, 2')
    a('v_xor_b32 v26, v26, v27')
    a('v_lshlrev_b32 v26, 5, v26')
    a('v_and_b32 v27, 1, v0')
    a('v_lshl_add_u32 v26, v27, 4, v26')
    a('v_lshl_add_u32 v%d, v25, 13, v26' % P_WOFF)
    a('v_add_u32 v%d, %d, v%d' % (P_WOFF + 1, 8 * 8192 - 1024, P_WOFF))
    a('v_mul_u32_u24 v25, 3456, v25')
    a('v_add_u32 v%d, v25, v26' % (P_WOFF + 2))
    a('v_add_u32 v%d, %d, v%d' % (P_WOFF + 3, 8 * 3456 - 1024, P_WOFF + 2))
    a('v_lshrrev_b32 v25, 2, v0')
    a('v_lshlrev_b32 v25, 7, v25')
    a('v_and_b32 v26, 3, v0')
    a('v_lshl_add_u32 v25, v26, 3, v25')
    a('v_add_u32 v25, 65536, v25')
    a('v_bfe_u32 v26, v0, 3, 2')
    for c in range(4):
        a('v_xor_b32 v27, %d, v26' % c)
        a('v_lshl_add_u32 v%d, v27, 5, v25' % (P_WRD + c))
        a('v_add_u32 v%d, 65536, v%d' % (P_WRD + 4 + c, P_WRD + c))
    s_w = [64, 65, 66, 67]; s_q = [68, 69]; sLW2, sCT = 70, 71; sQ = [72, 73]
    a('s_mul_i32 s17, s%d, 37' % sH)
    a('s_lshr_b32 s17, s17, 8')
    a('s_sub_u32 s71, s%d, s17' % sH)
    a('s_lshl_b32 s70, s%d, 11' % sW)
    a('s_lshl_b32 s72, s%d, 3' % sI)
    a('s_sub_u32 s73, 120, s72')
    a('s_mul_i32 s68, s72, 20480')
    a('s_mul_i32 s69, s73, 20480')
    assert WS_XN == 0
    a('s_lshl_b32 s64, s%d, 17' % sW)
    a('s_lshl_b32 s65, s%d, 8' % sH)
    a('s_add_u32 s64, s64, s65')
    a('s_add_u32 s65, s64, 128')
    a('s_mul_i32 s66, s%d, %d' % (sW, 16 * 3456))
    a('s_lshl_b32 s67, s%d, 7' % sCT)
    a('s_add_u32 s66, s66, s67')
    a('s_mov_b32 s67, s66')
    a('s_mul_i32 s61, s17, 7')
    a('s_sub_u32 s61, s%d, s61' % sH)
    a('s_cmp_eq_u32 s61, 6')
    a('s_cselect_b32 s74, 0, 0x%x' % SIZE['wg'])
    a('s_cmp_ge_u32 s%d, 27' % sCT)
    a('s_cselect_b32 s74, 0, s74')
    a('s_lshl_b32 s61, s%d, 2' % sW)
    a('s_lshl_b32 s76, s2, 4'); a('s_add_u32 s76, s76, s61')
    a('s_add_u32 s75, s76, 0x%x' % FK)
    a('s_add_u32 s77, s76, 0x%x' % FC)
    a('s_and_b32 s78, s76, 0x1ff')
    a('s_add_u32 s76, s76, 0x%x' % FH)
    a('s_sub_u32 s62, 15, s%d' % sI); a('s_lshl_b32 s62, s62, 9')
    a('s_add_u32 s78, s78, s62'); a('s_add_u32 s78, s78, 0x%x' % FC)
    a('v_cmp_eq_u32 vcc, 0, v0')
    a('v_mov_b32 v25, 0x20000000')
    a('s_lshl_b32 s26, s2, 2'); a('s_add_u32 s26, s26, 0x%x' % FL)
    a('v_cndmask_b32 v%d, v25, 0, vcc' % V_ONE)
    a('s_cmp_eq_u32 s%d, 0' % sW)
    a('s_cselect_b32 s26, s26, 0x20000000')
    a('s_lshl_b32 s27, s2, 2'); a('s_or_b32 s27, s27, s%d' % sW)
    a('s_cmp_eq_u32 s27, 0')
    a('s_cselect_b32 s27, s79, 0x20000000')
    a('s_mov_b32 s79, 0x%x' % FL)
    def flag_store(sreg, val=V_1):
        return ('fl', 'buffer_store_dword v%d, v%d, %s, s%d offen %s' % (val, V_ONE, sr(WS, 4), sreg, WT))
    weave(W0, s0_items)
    W1 = len(a.lines)
    a('s_mov_b32 s61, 0x9e3779b1')
    a('v_mul_lo_u32 v%d, s61, v%d' % (V_1, V_1))
    a('v_add_u32 v%d, 0x7f4a7c15, v%d' % (V_1, V_1))
    import k1
    b = Asm(); k1.ln_part(b, XR, WS, 4, 3)
    ln_lines = [l.strip() for l in b.lines]
    for l in ln_lines[:-20]: a(l)
    a('v_lshrrev_b32 v224, 3, v3')
    a('v_lshlrev_b32 v224, 9, v224')
    a('v_and_b32 v225, 3, v3')
    a('v_lshl_add_u32 v224, v225, 7, v224')
    a('v_and_b32 v225, 7, v4')
    a('v_lshl_add_u32 v224, v225, 4, v224')
    a('v_bfe_u32 v225, v3, 2, 1')
    a('v_lshl_add_u32 v224, v225, 3, v224')
    a('v_add_u32 v224, %d, v224' % (128 * 1024))
    for j in range(5): a('ds_write_b64 v224, %s offset:%d' % (vr(XR + 2 * j, 2), 2048 * j))
    a('s_lshl_b32 s61, s%d, 10' % sW)
    a('s_add_u32 s61, s61, %d' % (128 * 1024))
    a('v_add_u32 v225, s61, v%d' % V_LANE16)
    a('v_lshrrev_b32 v226, 3, v0')
    a('v_lshlrev_b32 v226, 8, v226')
    a('v_and_b32 v227, 7, v0')
    a('v_lshl_add_u32 v226, v227, 4, v226')
    a('s_lshr_b32 s61, s2, 1')
    a('s_mul_i32 s61, s61, 20480')
    a('s_and_b32 s62, s2, 1')
    a('s_lshl_b32 s62, s62, 7')
    a('s_add_u32 s61, s61, s62')
    a('s_lshl_b32 s62, s%d, 11' % sW)
    a('s_add_u32 s61, s61, s62')
    a('s_add_u32 s62, s61, 8192')
    a('s_add_u32 s63, s61, 16384')
    a('s_cmp_lt_u32 s%d, 2' % sW)
    a('s_cselect_b32 s63, s63, 0x20000000')
    lnq = []
    for l in a.lines[W1:]:
        t = l.strip()
        if t.startswith('s_cselect'): lnq[-1] += '\n' + t
        else: lnq.append(t)
    del a.lines[W1:]
    xn_reads = ['ds_read_b128 %s, v225 offset:%d' % (vr(XR + 4 * t, 4), 4096 * t) for t in range(3)]
    xn_stores = [('xn', 'buffer_store_dwordx4 %s, v226, %s, s%d offen %s' % (vr(XR + 4 * t, 4), sr(WS, 4), 61 + t, WT)) for t in range(3)]
    MX = os.environ.get('MX', '')
    if 'x' in MX: xn_stores = []
    if 'p' in MX: xn_stores = [(t, s.replace(WT, '')) for t, s in xn_stores]
    WQ, WG, WU = R1, R2, R3
    WSLOT = [128 * 1024, 64 * 1024, 96 * 1024]
    P_ACCV, P_ACCA, P_WF, P_ACT = 128, 0, 128, 192
    srdm = [WQ, WQ, WG, WU]; stride = [8192, 8192, 3456, 3456]
    def w_dma(st, nm):
        L = []
        for m in range(nm):
            L.append('s_add_u32 m0, s%d, %d' % (sLW2, WSLOT[st % 3] + m * 8192))
            L.append('s_nop 0')
            for j in range(2):
                L.append((('w', st), 'buffer_load_dwordx4 v%d, %s, s%d offen offset:%d lds' % (P_WOFF + 2 * (m // 2) + j, sr(srdm[m], 4), s_w[m], 1024 * j)))
            L.append('s_add_u32 s%d, s%d, %d' % (s_w[m], s_w[m], 64 * stride[m]))
        return L
    def a_load(k):
        base = P_ACT + 16 * (k % 4)
        L = [(('a', k), 'buffer_load_dwordx4 %s, v%d, %s, s%d offen offset:%d' % (ar(base + 4 * qi, 4), (P_X0, P_X1)[qi % 2], sr(WS, 4), s_q[qi // 2], 1024 * (k % 4))) for qi in range(4)]
        if k % 4 == 3: L += ['s_add_u32 s%d, s%d, 4096' % (s, s) for s in s_q]
        return L
    WFB, AFB = 64, 128
    dsn = [0]; dsid = {}
    def em(s, tag=None):
        a(s)
        if s.startswith('ds_'):
            dsn[0] += 1
            if tag is not None: dsid[tag] = dsn[0]
    def lgw(tags):
        return min(15, dsn[0] - max(dsid[t] for t in tags))
    def rdA(st, rb): return [(('A', st, rb), 'ds_read_b128 %s, v%d offset:%d' % (vr(AFB + 8 * rb + 4 * ks, 4), RA + ks, (st & 1) * 32768 + rb * 2048)) for ks in range(2)]
    def rdW(st, j): return [(('W', st, j), 'ds_read_b64_tr_b16 %s, v%d offset:%d' % (vr(WFB + 8 * j + 4 * ks + 2 * r, 2), RW + j % 4,
                            (st & 1) * 32768 + (j // 4) * 16384 + (32 * ks + 4 * r) * 256)) for ks in range(2) for r in range(2)]
    SN = 'N' not in os.environ.get('MX', '')
    def mf1(st, rb, j, pos):
        ks = pos ^ (j & 1) if SN else pos
        act = vr(AFB + 8 * rb + 4 * ks, 4); w = vr(WFB + 8 * j + 4 * ks, 4)
        d = ar((rb * 8 + j) * 4, 4); c = '0' if (st == 0 and pos == 0) else d
        return '%s %s, %s, %s, %s' % ((MF16, d, w, act, c) if j < 4 else (MF16, d, act, w, c))
    stamp(a, 2); stamp(a, 8, 'st')
    S1L = p1_dma(1); npre = int(os.environ.get('NPRE', 12))
    for it in S1L[:npre]: a(issue(it))
    a('s_waitcnt vmcnt(%d) lgkmcnt(0)' % vm.cnt(ids[('p1', 0)]))
    stamp(a, 9, 'st')
    a('s_barrier')
    stamp(a, 3); stamp(a, 10, 'st'); padp(a, 'p0')
    for t_, s_ in rdA(0, 0) + sum([rdW(0, j) for j in range(8)], []) + rdA(0, 1): em(s_, t_)
    ln_poll = 'buffer_load_dwordx4 v[244:247], v%d, %s, s79 offen %s' % (V_LANE16, sr(WS, 4), WT)
    NST = 8
    pend = S1L[npre:] + pf_chunk(0) + (xld if 'l' in MX0 else []) + [('pf', 'global_load_dword v249, v55, s[100:101]')]
    NPRE = int(os.environ.get('NPRE', 0))
    P1SP = int(os.environ.get('P1SP', 4))
    LNS = 2 if 'l' in MX0 else 1
    LN0 = 3 if 'l' in MX0 else 0
    sBASE, sK0, sK1, sT, sC0, sC1, sS1 = 56, 57, 58, 59, 60, 61, 62
    sc = ['s_lshl_b32 s56, s%d, 20' % sH, 's_lshl_b32 s57, s%d, 17' % sI, 's_add_u32 s58, s56, s57', 's_lshr_b32 s57, s%d, 1' % sW, 's_lshl_b32 s57, s57, 16',
          's_add_u32 s58, s58, s57', 's_add_u32 s58, s58, 0x%x' % WS_KV, 's_and_b32 s57, s%d, 1' % sW, 's_lshl_b32 s16, s57, 11', 's_add_u32 s16, s16, s58',
          's_lshl_b32 s17, s57, 12', 's_add_u32 s17, s17, s58', 's_add_u32 s17, s17, 16384',
          's_lshl_b32 s57, s%d, 14' % sW, 'v_add_u32 v26, s57, v%d' % V_LANE16,
          's_lshl_b32 s59, s%d, 12' % sW, 's_add_u32 s56, s56, s59', 's_add_u32 s56, s56, 0x%x' % WS_KV, 's_lshl_b32 s60, s%d, 13' % sW,
          's_add_u32 s60, s60, %d' % (65536 + 32768), 's_add_u32 s61, s60, 16384', 's_add_u32 s62, s56, 32768', 's_add_u32 s57, s56, 65536', 's_add_u32 s58, s57, 32768',
          'v_add_u32 v%d, 16384, v%d' % (V_LANE16V, V_LANE16), 'v_and_b32 v%d, 7, v0' % V_PA, 'v_lshlrev_b32 v%d, 9, v%d' % (V_PA, V_PA),
          's_and_b32 s79, s2, 31', 's_lshl_b32 s79, s79, 4', 's_add_u32 s79, s79, 0x%x' % FK]
    LAST = (6, 7, 4, 5, 0, 1, 2, 3)
    gc = 0; lastv = -10
    for st in range(NST - 1):
        nord = LAST if st == NST - 2 else range(8)
        for rb in range(8):
            if rb == 2:
                if st == LNS + 1: pend += xn_stores
                if st == 6:
                    pend += srd('wq', WQ) + srd('wg', WG) + srd('wu', WU) + ['s_mov_b32 s%d, s74' % (WG + 2), 's_mov_b32 s%d, s74' % (WU + 2)] + w_dma(0, 4) + sc
            rd = []
            if rb == 6:
                assert not any(x[0] == ('p1', st + 1) for x in pend if not isinstance(x, str))
                a('s_waitcnt vmcnt(%d) lgkmcnt(0)' % vm.cnt(max(ids[('p1', st + 1)], ids['lnp'] if st == LNS + 4 else 0))); a('s_barrier')
                if st == LNS: rd += [(None, s_) for s_ in xn_reads]; assert not lnq
                if st + 2 < NST: pend += p1_dma(st + 2)
                if st == LNS + 2: pend = [flag_store(26)] + pend
                if st in (0, 1): pend += pf_chunk(st + 1)
                if st == 2: pend += [('pf', 'global_load_dword v240, v%d, s[8:9]' % TQ)]
                if st == 3: pend += [('pf', 'global_load_dword v241, v%d, s[18:19]' % TG), ('pf', 'global_load_dword v242, v%d, s[20:21]' % TG)]
                if st == LNS + 3: pend += [('lnp', ln_poll)]
                if st == 4: pend += [('pf', 'global_load_dword v249, v55, s[100:101]')]
                if st == 6: pend += w_dma(1, 4)
                if st == LNS + 4:
                    gate(ln_poll, 244, 4, 1, 61)
                    pend += [flag_store(27)]
                    pend += xn_touch(0) + xn_touch(1) + xn_touch(2)
                if st == 6: pend += xn_touch(3) + xn_touch(4)
            elif rb > 0: a('s_waitcnt lgkmcnt(%d)' % lgw([('A', st, rb)]))
            if rb < 6: rd += rdA(st, rb + 2)
            elif st < NST - 2: rd += rdA(st + 1, rb - 6)
            elif rb == 6: rd += rdA(st + 1, 4) + rdA(st + 1, 5) + rdA(st + 1, 0)
            else: rd += rdA(st + 1, 6)
            for j in range(8):
                if rb == 0 and j % 2 == 0: a('s_waitcnt lgkmcnt(%d)' % lgw([('W', st, j + 1), ('A', st, 0)]))
                for ks in range(2):
                    a(mf1(st, rb, j, ks))
                    if rb == 7:
                        if j > 0:
                            for t_, s_ in rdW(st + 1, j - 1)[2 * ks:2 * ks + 2]: em(s_, t_)
                        elif rd: em(rd[0][1], rd[0][0]); rd.pop(0)
                    elif ks == 0 and rd: em(rd[0][1], rd[0][0]); rd.pop(0)
                    elif pend:
                        while pend and pend[0] == 's_nop 0': pend.pop(0)
                        if pend and (isinstance(pend[0], str) or gc - lastv >= (2 if st < 2 else P1SP)):
                            if not isinstance(pend[0], str): lastv = gc
                            a(issue(pend.pop(0)))
                            if pend and isinstance(pend[0], str) and pend[0] != 's_nop 0' and not lnq: a(pend.pop(0))
                    if rb != 7:
                        for _ in range(2):
                            if lnq: em(lnq.pop(0))
                    gc += 1
            if rb == 7:
                for t_, s_ in rdW(st + 1, 7): em(s_, t_)
            assert not rd
            if rb % 4 == 3: stamp(a, 1 + 2 * st + rb // 4, 'p1')
        if st == 3: stamp(a, 4); cstamp(a, 1)
    U2 = []
    for st in range(8): U2 += [(st, n) for n in range(0, 16, 2)]
    U2 += [(8, n) for n in range(0, 8, 2)] + [(9, n) for n in range(0, 8, 2)] + [(8, n) for n in range(8, 16, 2)] + [(9, n) for n in range(8, 16, 2)]
    def ufr(u, j, r=None):
        f, b_ = (vr, 64) if u >= 72 else (ar, P_WF)
        b_ += ((u % 4) * 4 + j) * 4
        return f(b_, 4) if r is None else f(b_ + 2 * r, 2)
    def u_reads(u):
        if u >= len(U2): return []
        st, n0 = U2[u]
        off = WSLOT[st % 3] - 65536
        grp = off // 65536; off %= 65536
        return ['ds_read_b64_tr_b16 %s, v%d offset:%d' % (ufr(u, 2 * h + ks, r), P_WRD + 4 * grp + (n0 + h) % 4, off + ((n0 + h) // 4) * 8192 + (32 * ks + 16 * r) * 128)
                for h in range(2) for ks in range(2) for r in range(2)]
    def conv(b0, b1, T, dst):
        return ['v_accvgpr_read_b32 v%d, a%d' % (T + e, b0 * 4 + e) for e in range(4)] + ['v_accvgpr_read_b32 v%d, a%d' % (T + 4 + e, b1 * 4 + e) for e in range(4)] + \
               ['v_cvt_pk_bf16_f32 v%d, v%d, v%d' % (dst + e, T + 2 * e, T + 2 * e + 1) for e in range(4)]
    def store(T, sb, off):
        return ['s_add_u32 s63, s%d, %d' % (sb, off & ~4095),
                ('kv', 'buffer_store_dwordx4 %s, v%d, %s, s63 offen offset:%d %s' % (vr(T, 4), V_LANE16, sr(WS, 4), off & 4095, WT))]
    def jobs(rp):
        J = []
        for rb in (2 * rp, 2 * rp + 1):
            for s in range(2): J.append((rb * 8 + 2 * s, rb * 8 + 2 * s + 1, 16, (rb // 4) * 32768 + ((rb % 4) * 4 + s) * 1024))
        rb = 2 * rp
        for nb in range(4): J.append((rb * 8 + 4 + nb, (rb + 1) * 8 + 4 + nb, 17, (rb // 4) * 32768 + (((rb % 4) // 2) * 8 + nb) * 1024))
        return J
    J1 = jobs(3) + jobs(2); J2 = jobs(0) + jobs(1)
    rd = rdA(7, 7) + rdA(7, 1) + rdA(7, 2) + rdA(7, 3)
    fq = []
    for n_, (b0, b1, sb, off) in enumerate(J1):
        T = 192 + 12 * (n_ % 4)
        fq += conv(b0, b1, T, T + 8) + ['ds_write_b128 v26, %s offset:%d' % (vr(T + 8, 4), 1024 * n_)]
        if n_ == 7: n8 = len(fq)
        if n_ >= 8 and n_ < 12: fq += a_load(n_ - 8)
    fq += u_reads(0) + u_reads(1)
    nf = len(fq); per = -(-nf // (128 - 38))
    g = 0
    for bi, rb in enumerate(LAST):
        if bi == 1:
            assert not rd and not any(x[0] == ('w', 0) for x in pend if not isinstance(x, str))
            a('s_waitcnt vmcnt(%d) lgkmcnt(0)' % vm.cnt(ids[('w', 0)]))
            a('s_barrier')
            pend += w_dma(2, 4)
        for j in range(8):
            if bi == 0 and j % 2 == 0: a('s_waitcnt lgkmcnt(%d)' % lgw([('W', 7, j + 1), ('A', 7, 6)]))
            for ks in range(2):
                a(mf1(7, rb, j, ks))
                if rd: em(rd[0][1], rd[0][0]); rd.pop(0)
                for _ in range(2 if g < 38 else 1):
                    while pend and pend[0] == 's_nop 0': pend.pop(0)
                    if pend and not (_ == 1 and not isinstance(pend[0], str)): a(issue(pend.pop(0)))
                if g >= 38:
                    assert not any(x in sc for x in pend)
                    if g >= 70: assert not pend
                    for _ in range(per):
                        if fq and not (nf - len(fq) >= n8 and g < 70): a(issue(fq.pop(0)))
                g += 1
    for it in fq: a(issue(it))
    stamp(a, 5); cstamp(a, 2); stamp(a, 6); cstamp(a, 3); padp(a, 'p1')
    cq = []
    for n_, (b0, b1, sb, off) in enumerate(J2): cq += conv(b0, b1, 4 + 8 * (n_ % 2), 64 + 4 * n_)
    kv_sched = {}
    KVEND = int(os.environ.get('KVEND', 14))
    def kstep(n_): return 1 + (n_ * (KVEND - 1)) // 32
    for n_, (b0, b1, sb, off) in enumerate(J2):
        kv_sched.setdefault(kstep(n_), []).extend(store(64 + 4 * n_, sb, off))
        kv_sched.setdefault(kstep(n_) + 1, []).append('ds_read_b128 %s, v26 offset:%d' % (vr(64 + 4 * n_, 4), 1024 * n_))
    for n_, (b0, b1, sb, off) in enumerate(J1):
        kv_sched.setdefault(kstep(16 + n_), []).extend(store(64 + 4 * n_, sb, off))
    kv_poll0 = 'buffer_load_dwordx4 v[20:23], v52, %s, s79 offen %s' % (sr(WS, 4), WT)
    kv_poll = 'buffer_load_dwordx4 v[208:211], v%d, %s, s79 offen %s' % (V_PA, sr(WS, 4), WT)
    def kv_dma(m0expr, voff, ssrc, tag):
        return [m0expr, 's_nop 0'] + [(tag, 'buffer_load_dwordx4 v%d, %s, s%d offen offset:%d lds' % (voff, sr(WS, 4), ssrc, 1024 * j)) for j in range(4)]
    sTHR, sBIG, s2W, sM0, sM1, sDYN, sE0, sE1, sCNT = 64, 65, 66, 67, 68, 69, 70, 71, 63
    halves = []
    for k in range(16): halves += [(k, 0), (k, 1)]
    halves += [(k, 0) for k in range(16, 20)] + [(k, 1) for k in range(16, 20)]
    qe = ['s_mov_b32 s64, %s' % f2u(math.log2(math.e) / math.sqrt(128.0))]
    for qi in range(4):
        for s in range(4):
            r0, r1 = P_ACCV + ((2 * s) * 4 + qi) * 4, P_ACCV + ((2 * s + 1) * 4 + qi) * 4
            qe += ['v_mul_f32 v%d, s64, v%d' % (r + e, r + e) for r in (r0, r1) for e in range(4)]
            qe += ['v_cvt_pk_bf16_f32 v%d, v%d, v%d' % (r + e, r + 2 * e, r + 2 * e + 1) for r in (r0, r1) for e in range(2)]
            qe += ['v_accvgpr_write_b32 a%d, v%d' % (A_Q[qi // 2] + ((qi % 2) * 4 + s) * 4 + 2 * h + e, (r0, r1)[h] + e) for h in range(2) for e in range(2)]
    qe += ['v_and_b32 v5, 15, v0', 'v_lshrrev_b32 v6, 4, v0', 'v_lshlrev_b32 v6, 2, v6', 'v_sub_u32 v5, v5, v6']
    for r in range(4): qe += ['v_cmp_gt_i32 vcc, %d, v5\ns_nop 1\nv_cndmask_b32 v%d, 0, 1.0, vcc' % (r, TRI + r)]
    qe += ['v_mov_b32 v%d, 0x3f803f80' % (V_ONES + e) for e in range(4)] + ['v_mov_b32 v%d, 0' % (NEGM + j) for j in range(16)]
    qe += ['v_mov_b32 v%d, 0' % (V_L + j) for j in range(4)]
    qe += ['v_mov_b32 v%d, v%d' % (V_KRD, V_LANE16), 'v_add_u32 v%d, 65536, v%d' % (V_VRD, V_LANE16)]
    qe += ['s_lshl_b32 s8, s72, 10', 's_lshl_b32 s9, s73, 10', 's_lshl_b32 s10, s%d, 18' % sCT, 's_add_u32 s10, s10, 0x%x' % WS_H,
           's_cmp_eq_u32 s74, 0\ns_cselect_b32 s10, 0x20000000, s10', 's_add_u32 s8, s8, s10', 's_add_u32 s9, s9, s10',
           's_add_u32 s10, s8, %d' % (128 * 1024), 's_add_u32 s11, s9, %d' % (128 * 1024),
           's_sub_u32 s12, 7, s%d' % sW, 's_lshl_b32 s12, s12, 10', 'v_add_u32 v%d, s12, v%d' % (P_X0, V_LANE16),
           's_lshl_b32 s12, s%d, 10' % sW, 'v_add_u32 v%d, s12, v%d' % (P_X1, V_LANE16),
           's_mov_b32 s%d, %s' % (sTHR, f2u(THR)), 's_mov_b32 s%d, %s' % (sBIG, f2u(-BIG)), 's_sub_u32 s%d, 3, s%d' % (s2W, sW),
           's_cmp_eq_u32 s%d, 0\ns_cselect_b32 s%d, s%d, 0' % (sI, sDYN, sBIG)]
    pend = []; vq = cq; vper = 2; gcnt = 0; lastv = -10; P2SP = int(os.environ.get('P2SP', 4))
    for u, (st, n0) in enumerate(U2):
        k = u // 4
        if u % 4 == 0:
            need = -100
            if n0 == 0:
                assert not any(x[0] == ('a', 2 * st + 1) for x in pend if not isinstance(x, str))
                need = ids[('a', 2 * st + 1)]
            if k == KVEND + 1:
                assert not any(x[0] == 'kv' for x in pend if not isinstance(x, str))
                need = max(need, ids['kv'])
            if k == 18: need = max(need, ids['kvp'])
            a('s_waitcnt vmcnt(%d) lgkmcnt(8)' % min(63, vm.cnt(need)))
            pend += kv_sched.get(k, [])
            if k == KVEND + 1: pend += [flag_store(75)]
            if k == 17: pend += [('kvp', kv_poll0)]
            if k == 12: pend += [('pf', 'global_load_dword v27, v55, s[100:101]')]
            if n0 == 0 and 0 < st < 9: pend = a_load(2 * st + 2) + a_load(2 * st + 3) + pend
            if k == 18:
                gate(kv_poll0, 20, 4, 1, 63)
                pend += kv_dma('s_add_u32 m0, s59, 0', V_LANE16, sBASE, 'k0') + kv_dma('s_add_u32 m0, s59, 16384', V_LANE16, sS1, 'k1')
                pend += kv_dma('s_add_u32 m0, s59, 32768', V_LANE16, sK0, 'k2') + kv_dma('s_add_u32 m0, s59, 65536', V_LANE16V, sBASE, 'v0')
                pend += kv_dma('s_add_u32 m0, s59, 49152', V_LANE16, sK1, 'k3') + kv_dma('s_add_u32 m0, s59, %d' % (65536 + 16384), V_LANE16V, sS1, 'v1')
                vq = qe; vper = 3
        else: a('s_waitcnt lgkmcnt(%d)' % (8 if u + 1 < len(U2) else 0))
        if u == 4: assert len(vq) <= 96
        if u == 6: assert not vq
        rd = u_reads(u + 2)
        bar = u + 2 < len(U2) and U2[u + 2][1] == 0
        g = 0
        for h in range(2):
            n = n0 + h
            for qi in range(4):
                for pos in range(2):
                    ks = pos ^ (qi & 1) if SN else pos
                    kk = 2 * st + ks
                    d = vr(P_ACCV + (n * 4 + qi) * 4, 4) if n < 8 else ar(P_ACCA + ((n - 8) * 4 + qi) * 4, 4)
                    a('%s %s, %s, %s, %s' % (MF16, d, ufr(u, 2 * h + ks), ar(P_ACT + 16 * (kk % 4) + 4 * qi, 4), '0' if (st == 0 and pos == 0) else d))
                    if bar and g == 0:
                        nst = U2[u + 2][0]
                        assert not any(x[0] == ('w', nst) for x in pend if not isinstance(x, str))
                        a('s_waitcnt vmcnt(%d) lgkmcnt(0)' % min(63, vm.cnt(ids[('w', nst)])))
                        a('s_barrier')
                        if nst + 2 < 10: pend = pend + w_dma(nst + 2, 4)
                    took = False
                    if rd and g % 3 != 2: a(rd.pop(0)); took = True
                    else:
                        while pend and pend[0] == 's_nop 0': pend.pop(0)
                        if pend and (isinstance(pend[0], str) or gcnt - lastv >= (P2SP if k != 16 else 2)):
                            if not isinstance(pend[0], str): lastv = gcnt
                            a(issue(pend.pop(0)))
                            if pend and isinstance(pend[0], str) and pend[0] != 's_nop 0' and not vq: a(pend.pop(0))
                    for _ in range(vper):
                        if vq: a(vq.pop(0))
                    g += 1; gcnt += 1
        assert not rd
        if u % 4 == 3 and k < 16: stamp(a, 1 + k, 'p2a')
        if u % 4 == 3 and k >= 4: stamp(a, k - 3, 'p2b')
    assert not pend and not vq
    stamp(a, 7); cstamp(a, 4); padp(a, 'p2')
    a('s_waitcnt vmcnt(%d)' % vm.cnt(max(ids['k2'], ids['v0'])))
    stamp(a, 8)
    a('s_barrier')
    hx = []
    for j_ in range(8):
        s, qi = j_ // 4, j_ % 4
        T = 192 + 20 * (j_ % 3)
        for cc in range(2):
            g = P_ACCA + ((2 * s + cc) * 4 + qi) * 4
            hx += ['v_accvgpr_read_b32 v%d, a%d' % (T + 8 * cc + e, g + e) for e in range(4)] + ['v_accvgpr_read_b32 v%d, a%d' % (T + 8 * cc + 4 + e, g + 64 + e) for e in range(4)]
            hx += ['v_mul_f32 v%d, v%d, v%d' % (T + 8 * cc + e, T + 8 * cc + e, T + 8 * cc + 4 + e) for e in range(4)]
            hx += ['v_cvt_pk_bf16_f32 v%d, v%d, v%d' % (T + 16 + 2 * cc + e, T + 8 * cc + 2 * e, T + 8 * cc + 2 * e + 1) for e in range(2)]
        hx.append('buffer_store_dwordx4 %s, v%d, %s, s%d offen %s' % (vr(T + 16, 4), (P_X0, P_X1)[qi % 2], sr(WS, 4), 8 + qi // 2 + 2 * s, WT))
    hx += ['%s %s, %s, %s, 0' % (MFMA, ar(16 * j_, 16), vr(NEGM, 4), vr(NEGM, 4)) for j_ in range(8)]
    hx += [kv_poll]
    def kread(i, p): return 'ds_read_b128 %s, v%d offset:%d' % (ar(A_RING + 4 * (i % R), 4), V_KRD, p * 16384 + i * 1024)
    def vmap(f): return (f % 2, f // 2) if 'H' not in MX else (f // 8, f % 8)
    def vread(i, p): return 'ds_read_b128 %s, v%d offset:%d' % (ar(A_RING + 4 * (i % R), 4), V_VRD, p * 16384 + (vmap(i)[0] * 8 + vmap(i)[1]) * 1024)
    for i in range(D): a(kread(i, 0))
    for s_ in hx[:16]: a(s_)
    hx = hx[16:]
    stamp(a, 9); stamp(a, 1, 'p3')
    def prefill(st, p, tau, dyn=False):
        qb = 1 - tau
        sref = sW if tau == 0 else s2W
        big = sDYN if dyn else sBIG
        out = []
        for kb in range(4):
            S = SB[st][p] + (kb * 2 + qb) * 4
            L = ['s_cmp_eq_u32 s%d, %d' % (sref, kb), 's_cselect_b32 s%d, s%d, 0' % (sM0, big)]
            t = NEGM + (st * 2 + qb) * 4
            if kb > 0:
                L += ['s_cmp_lt_u32 s%d, %d' % (sref, kb), 's_cselect_b32 s%d, s%d, 0' % (sM1, big), 'v_add_f32 v%d, s%d, v%d' % (V_T1, sM1, t)]
                t = V_T1
            L += ['v_fma_f32 v%d, v%d, s%d, v%d' % (S + r, TRI + r, sM0, t) for r in range(4)]
            out.append('\n'.join(L))
        return out
    CH = 'H' not in MX
    def regroup(G, w):
        if not CH: return G
        out = []
        for b_ in range(0, len(G), w):
            n_ = len(G[b_])
            L = [G[b_ + (w - 1 - f if (SN and j & 1) else f)][j] for j in range(n_) for f in range(w)]
            out += [L[f * n_:(f + 1) * n_] for f in range(w)]
        return out
    def qk_mf(sets, p):
        G = []
        for f in range(16):
            kb, ds = f // 4, f % 4; L = []
            for st, qbs, inq in sets:
                for qb in qbs:
                    d = vr(SB[st][p] + (kb * 2 + qb) * 4, 4)
                    c = vr(NEGM + (st * 2 + qb) * 4, 4) if (ds == (3 if (SN and CH and len(L) & 1) else 0) and inq != qb) else d
                    L.append('%s %s, %s, %s, %s' % (MF16, d, ar(A_RING + 4 * (f % R), 4), ar(A_Q[st] + (qb * 4 + ds) * 4, 4), c))
            G.append(L)
        return regroup(G, 4)
    def pv_mf(sets, p):
        G = []
        for f in range(16):
            ks, db = vmap(f); L = []
            for st, qbs in sets:
                for qb in qbs:
                    d = ar(A_O[st] + (db * 2 + qb) * 4, 4)
                    L.append('%s %s, %s, %s, %s' % (MF16, d, ar(A_RING + 4 * (f % R), 4), vr(PB[st][p] + (qb * 2 + ks) * 4, 4), d))
            G.append(L)
        return regroup(G, 2)
    def pre_items(pf):
        a(pf[0]); a('s_nop 1')
        return [dict(lo=max(0, 4 * kb - 5), hi=4 * kb - 3, ins=pf[kb]) for kb in range(1, 4)]
    LGS = int(os.environ.get('LGS', 4)); LGW = int(os.environ.get('LGW', 0))
    rare_sites = []
    pk = Packer(a)
    def lg_items(n, skip_last):
        return [dict(lo=i - LGW, hi=i, lg=i + LGS) for i in range(LGS - 1, n, LGS) if not (i == n - 1 and skip_last)]
    def ladds(ex):
        return ['v_add_f32 v%d, v%d, v%d' % (V_L + st * 2 + qb, V_L + st * 2 + qb, LT + (st * 2 + qb) * 4) for st, qbs in ex for qb in qbs]
    def iteration(p, qk, ex, pv, prev_ex, nxt='k', dk=True, dv=True, loop_ctr=None, post_bar=(), mid=(), anyw=(), wv=None, pf=None, anylo=2, vx=0, lt=False):
        groups = []; rs = []
        pfi = pre_items(pf) if pf else []
        if qk:
            groups += qk_mf(qk, p); rs += [kread(i, p) for i in range(16)]
        groups += pv_mf(pv, p); rs += [vread(i, p) for i in range(16)]
        n = len(groups)
        nx = {'k': [kread(i, 1 - p) for i in range(D)], 'v': [vread(i, 1 - p) for i in range(D)], None: [None] * D}[nxt]
        rds = rs[D:] + nx
        bg = n - D
        it = [dict(lo=0, hi=0, ins=s, v=True) for s in ladds(prev_ex)] + pfi
        nd = 0
        if wv is None: gv, gm, gk, sl = {'0': ((2, 4, 5, 6), 8, (10, 12, 14, 16), 1), '1': ((1, 3, 5, 7), 8, (10, 12, 14, 16), 0), '2': ((1, 4, 6, 8), 9, (11, 13, 16, 18), 0)}[os.environ.get('DPOS', '0')]
        else:
            pos = [2 + 4 * j + wv for j in range(8)]
            gv = [x // 2 for x in pos[:4]]; gk = [x // 2 + 1 for x in pos[4:]]; gm = gv[3] + 1; sl = 0
        late = wv is not None and wv % 2 == 1
        if dv:
            it.append(dict(lo=0, hi=0 if gv[0] == 1 else 1, ins='s_sub_u32 m0, s%d, s%d' % ((sC0, sC1)[p], sT)))
            for j, i in enumerate(gv):
                it.append(dict(lo=i + (1 if late else 0), hi=i + sl, ins='buffer_load_dwordx4 v%d, %s, s%d offen offset:%d lds' % (V_LANE16V, sr(WS, 4), (sK0, sK1)[p], 1024 * j)))
            nd += 4
        if dk:
            it.append(dict(lo=gm, hi=gm + 1, ins='s_add_u32 m0, s%d, %d' % (sT, p * 16384)))
            it.append(dict(lo=gm, hi=gm + 1, ins='s_add_u32 s%d, s%d, 32768' % ((sK0, sK1)[p], (sK0, sK1)[1 - p])))
            for j, i in enumerate(gk):
                it.append(dict(lo=i + (1 if late else 0), hi=i + sl, ins='buffer_load_dwordx4 v%d, %s, s%d offen offset:%d lds' % (V_LANE16, sr(WS, 4), (sK0, sK1)[p], 1024 * j)))
            nd += 4
        if lt:
            vreg, ptr, step, lim = ((63, 14, 7 * 1024 * 128, SIZE['wo'] - 128), (62, 22, 3 * 1024 * 128, SIZE['wd'] - 128))[p]
            it.append(dict(lo=bg, hi=bg + 2, ins='global_load_dword v7, v%d, s[%d:%d]' % (vreg, ptr, ptr + 1)))
            it.append(dict(lo=bg + 3, hi=n - 2, ins='v_add_u32 v%d, 0x%x, v%d' % (vreg, step, vreg), v=True))
            it.append(dict(lo=bg + 3, hi=n - 1, ins='v_min_u32 v%d, 0x%x, v%d' % (vreg, lim, vreg), v=True))
            vx += 1
        nd += sum(1 for s in mid if s.startswith('buffer_'))
        if p == 1:
            if qk: it.append(dict(lo=16 - D, hi=bg - 1, ins='v_xor_b32 v%d, 32768, v%d' % (V_KRD, V_KRD), v=True))
            it.append(dict(lo=bg - 1 if nxt == 'v' else bg, hi=bg - 1 if nxt == 'v' else n - 1, ins='v_xor_b32 v%d, 32768, v%d' % (V_VRD, V_VRD), v=True))
            it.append(dict(lo=13, hi=n - 1, ins='s_xor_b32 s%d, s%d, 32768' % (sT, sT)))
        if nxt is not None:
            it.append(dict(lo=bg - 3, hi=bg - 2, ins='s_waitcnt vmcnt(%d)' % (nd + vx)))
            it.append(dict(lo=bg - 1, hi=bg - 1, ins='s_barrier'))
        it += lg_items(n, nxt is None)
        it.sort(key=lambda x: (x['hi'], x['lo']))
        for j, s in enumerate(mid):
            g_ = 9 + (j * (bg - 4 - 9)) // len(mid)
            it.append(dict(lo=g_, hi=bg - 4, ins=s))
        for j, s in enumerate(anyw):
            it.append(dict(lo=anylo, hi=n - 1, ins=s))
        lo0 = bg if nxt is not None else 0
        for j, s in enumerate(post_bar):
            it.append(dict(lo=lo0 + (j * (n - lo0)) // len(post_bar), hi=n - 1, ins=s))
        fin = []
        if ex:
            lts = [LT + (st * 2 + qb) * 4 for st, qbs in ex for qb in qbs]
            cur = lts[0]
            if len(lts) == 2: fin.append('v_max_f32 v%d, v%d, v%d' % (V_T0, lts[0], lts[1])); cur = V_T0
            if len(lts) >= 3: fin.append('v_max3_f32 v%d, v%d, v%d, v%d' % (V_T0, lts[0], lts[1], lts[2])); cur = V_T0
            if len(lts) == 4: fin.append('v_max_f32 v%d, v%d, v%d' % (V_T0, V_T0, lts[3]))
            fin.append('v_cmp_lt_f32 vcc, s%d, v%d' % (sTHR, cur))
        pk.run(groups, rds, it, [(st, 1 - p, qbs) for st, qbs in ex], [], fin, (1, p) if qk else None, True)
        if loop_ctr: a('s_sub_u32 s%d, s%d, 1' % (loop_ctr[0], loop_ctr[0]))
        if ex:
            stub, back = a.newlabel(name + '_rs'), a.newlabel(name + '_rb')
            a('s_cbranch_vccnz %s' % stub)
            a.label(back)
            rare_sites.append((stub, back, 1 - p, ex))
        if loop_ctr: a('s_cbranch_scc0 %s' % loop_ctr[1])
    def epilogue(st):
        a('s_lshl_b32 s%d, s%d, 10' % (sE0, sQ[st]))
        a('s_lshl_b32 s%d, s%d, 19' % (sE1, sH))
        a('s_add_u32 s%d, s%d, s%d' % (sE0, sE0, sE1))
        a('s_add_u32 s%d, s%d, 0x%x' % (sE0, sE0, WS_CTX))
        a('s_lshl_b32 s%d, s%d, 10' % (sM1, sW))
        a('s_sub_u32 s%d, s%d, s%d' % (sM0, sE0, sM1)); a('s_add_u32 s%d, s%d, 7168' % (sM0, sM0))
        a('s_add_u32 s%d, s%d, s%d' % (sM1, sE0, sM1))
        a('v_rcp_f32 v%d, v%d' % (V_T0, V_L + st * 2))
        a('v_rcp_f32 v%d, v%d' % (V_T1, V_L + st * 2 + 1))
        a('s_nop 1')
        c3 = 0
        for s in range(4):
            for qb in range(2):
                T = SB[st][0] + 16 * (c3 % 4); c3 += 1
                for cc in range(2):
                    for e in range(4): a('v_accvgpr_read_b32 v%d, a%d' % (T + 4 * cc + e, A_O[st] + ((2 * s + cc) * 2 + qb) * 4 + e))
                for e in range(8): a('v_mul_f32 v%d, v%d, v%d' % (T + e, T + e, (V_T0, V_T1)[qb]))
                for e in range(4): a('v_cvt_pk_bf16_f32 v%d, v%d, v%d' % (T + 8 + e, T + 2 * e, T + 2 * e + 1))
                a('s_add_u32 s%d, s%d, %d' % (sE1, (sM0, sM1)[qb], s * 128 * 1024))
                a(issue(('ctx', 'buffer_store_dwordx4 %s, v%d, %s, s%d offen %s' % (vr(T + 8, 4), V_LANE16, sr(WS, 4), sE1, WT))))
    AH, AC, WD4, WO4, X4, OUT = R1, R2, R3, R4, R5, 4
    sRO, sRT, sCT4, sAC, sWW, sVAL, sXO, sSW, sLD, sW2, sAC0, sWW0 = 8, 9, 10, 11, 12, 74, 13, 18, 19, 20, 26, 27
    sS1, sS0, sR0, sR1 = 16, 17, 21, 62
    WS_EX = 0x8000000
    FX = WS_FLG + 65536
    a_real = a; a = Asm()
    a('s_lshr_b32 s67, s2, 3')
    a('s_cmp_lt_u32 s67, 30'); a('s_cselect_b32 s%d, 1, 0' % sVAL)
    a('s_min_u32 s67, s67, 29')
    a('s_mul_i32 s68, s67, 205'); a('s_lshr_b32 s68, s68, 10')
    a('s_mul_i32 s69, s68, 5'); a('s_sub_u32 s%d, s67, s69' % sCT4)
    a('s_and_b32 s69, s2, 7'); a('s_lshl_b32 s69, s69, 2'); a('s_lshr_b32 s69, %s, s69' % os.environ.get('GMAP', '0x07362514')); a('s_and_b32 s69, s69, 7')
    a('s_mul_i32 s69, s69, 6'); a('s_add_u32 s69, s69, s68')
    a('s_lshr_b32 s%d, s69, 4' % sRO); a('s_and_b32 s%d, s69, 15' % sRT)
    for s in srd('x', X4) + srd('out', OUT): a(s)
    a('s_add_u32 s70, s%d, 2' % sRO); a('s_cmp_eq_u32 s%d, 0' % sRO); a('s_cselect_b32 s71, 0, 3'); a('s_sub_u32 s70, s70, s71')
    a('s_cmp_eq_u32 s%d, 0' % sRO); a('s_cselect_b32 s71, 40, 44'); a('s_mul_i32 s71, s71, s%d' % sVAL)
    a('s_mul_i32 s67, s%d, %d' % (sRO, 18 * 131072)); a('s_add_u32 s67, s67, 0x%x' % WS_H)
    a('s_add_u32 s%d, s28, s67' % AH); a('s_addc_u32 s%d, s29, 0' % (AH + 1)); a('s_mul_i32 s%d, s%d, %d' % (AH + 2, sVAL, 18 * 131072))
    a('s_mul_i32 s67, s70, %d' % (44 * 131072)); a('s_add_u32 s67, s67, 0x%x' % WS_CTX)
    a('s_add_u32 s%d, s28, s67' % AC); a('s_addc_u32 s%d, s29, 0' % (AC + 1)); a('s_lshl_b32 s%d, s71, 17' % (AC + 2))
    a('s_mul_i32 s67, s%d, %d' % (sRO, 18 * 32 * 1280))
    a('s_add_u32 s%d, s22, s67' % WD4); a('s_addc_u32 s%d, s23, 0' % (WD4 + 1)); a('s_mul_i32 s%d, s%d, %d' % (WD4 + 2, sVAL, 18 * 32 * 1280))
    a('s_mul_i32 s67, s70, %d' % (44 * 32 * 1280))
    a('s_add_u32 s%d, s14, s67' % WO4); a('s_addc_u32 s%d, s15, 0' % (WO4 + 1)); a('s_mul_i32 s%d, s71, %d' % (WO4 + 2, 32 * 1280))
    for r_ in (AH, AC, WD4, WO4): a('s_mov_b32 s%d, 0x00020000' % (r_ + 3))
    a('s_cmp_eq_u32 s%d, 2' % sRO); a('s_cselect_b32 s%d, 1, 0' % sSW)
    VA0, VA1, VWO, VRD, VX, VPL = 16, 17, 18, 32, 20, 200
    a('s_lshl_b32 s%d, s%d, 2' % (sAC, sRT)); a('s_add_u32 s%d, s%d, s%d' % (sAC, sAC, sW))
    a('s_lshl_b32 s67, s%d, 1' % sAC); a('s_add_u32 s67, s67, s%d' % sSW)
    a('s_mul_i32 s%d, s67, %d' % (sXO, 16 * 1280)); a('s_lshl_b32 s68, s%d, 8' % sCT4); a('s_add_u32 s%d, s%d, s68' % (sXO, sXO))
    a('s_lshl_b32 s%d, s%d, 11' % (sAC, sAC)); a('s_mov_b32 s%d, s%d' % (sAC0, sAC))
    a('s_lshl_b32 s67, s%d, 10' % sSW)
    a('v_add_u32 v%d, s67, v%d' % (VA0, V_LANE16))
    a('v_xor_b32 v%d, 1024, v%d' % (VA1, VA0))
    a('s_mul_i32 s%d, s%d, %d' % (sWW, sW, 16 * 1280)); a('s_add_u32 s%d, s%d, s68' % (sWW, sWW)); a('s_mov_b32 s%d, s%d' % (sWW0, sWW))
    a('v_lshrrev_b32 v5, 3, v0'); a('v_mul_u32_u24 v5, 1280, v5')
    a('v_bfe_u32 v6, v0, 1, 2'); a('v_bfe_u32 v7, v0, 4, 2'); a('v_xor_b32 v6, v6, v7')
    a('v_lshl_add_u32 v5, v6, 5, v5'); a('v_and_b32 v6, 1, v0')
    a('v_lshl_add_u32 v%d, v6, 4, v5' % VWO)
    a('v_add_u32 v%d, %d, v%d' % (VWO + 1, 8 * 1280 - 1024, VWO))
    a('v_lshrrev_b32 v5, 2, v0'); a('v_lshlrev_b32 v5, 7, v5'); a('v_and_b32 v6, 3, v0'); a('v_lshl_add_u32 v5, v6, 3, v5')
    a('v_bfe_u32 v6, v0, 3, 2')
    for c in range(4):
        a('v_xor_b32 v7, %d, v6' % c)
        a('v_lshl_add_u32 v%d, v7, 5, v5' % (VRD + c))
        a('v_add_u32 v%d, 65536, v%d' % (VRD + 4 + c, VRD + c))
    a('v_lshrrev_b32 v5, 4, v0'); a('v_mul_u32_u24 v5, 5120, v5'); a('v_and_b32 v6, 15, v0')
    a('v_lshl_add_u32 v%d, v6, 4, v5' % VX)
    a('v_and_b32 v%d, 0x1f0, v%d' % (VPL, V_LANE16))
    a('s_mul_i32 s67, s%d, 4608' % sW)
    a('v_and_b32 v5, 15, v0'); a('v_mul_u32_u24 v5, 272, v5'); a('v_lshrrev_b32 v6, 4, v0'); a('v_lshl_add_u32 v5, v6, 3, v5')
    a('v_add_u32 v21, s67, v5')
    a('v_mul_u32_u24 v6, 1088, v6'); a('v_and_b32 v5, 15, v0'); a('v_lshl_add_u32 v5, v5, 4, v6')
    a('v_add_u32 v23, s67, v5')
    a('s_sub_u32 s67, 15, s%d' % sRT); a('s_min_u32 s67, s67, s%d' % sRT)
    a('s_lshl_b32 s79, s67, 9'); a('s_add_u32 s79, s79, 0x%x' % FH)
    a('s_lshl_b32 s76, s%d, 9' % sRT); a('s_add_u32 s76, s76, 0x%x' % FC)
    a('s_mul_i32 s67, s%d, 5' % sRT); a('s_add_u32 s67, s67, s%d' % sCT4)
    a('s_lshl_b32 s68, s67, 2'); a('s_add_u32 s68, s68, s%d' % sW)
    a('s_lshl_b32 s75, s68, 10'); a('s_add_u32 s75, s75, 0x%x' % FX)
    a('s_lshl_b32 s68, s68, 16'); a('s_add_u32 s68, s68, 0x%x' % WS_EX)
    a('s_add_u32 s67, s%d, 1' % sRO); a('s_lshl_b32 s67, s67, 13'); a('s_add_u32 s%d, s68, s67' % sS1)
    a('s_cmp_eq_u32 s%d, 0' % sRO); a('s_cselect_b32 s%d, s68, 0x20000000' % sS0)
    a('s_cmp_eq_u32 s%d, 0' % sVAL); a('s_cselect_b32 s%d, 0x20000000, s%d' % (sS0, sS0)); a('s_cselect_b32 s%d, 0x20000000, s%d' % (sS1, sS1))
    a('s_lshl_b32 s67, s%d, 13' % sSW); a('s_add_u32 s%d, s68, s67' % sR0)
    a('s_sub_u32 s67, 3, s%d' % sSW); a('s_lshl_b32 s67, s67, 13'); a('s_add_u32 s%d, s68, s67' % sR1)
    a('s_cmp_eq_u32 s%d, 0' % sRO); a('s_cselect_b32 s%d, 0x20000000, s%d' % (sR0, sR0)); a('s_cselect_b32 s%d, 0x20000000, s%d' % (sR1, sR1))
    a('s_lshl_b32 s56, s%d, 7' % sRO); a('s_add_u32 s56, s56, s75')
    a('s_sub_u32 s67, 3, s%d' % sRO); a('s_cmp_eq_u32 s%d, 0' % sRO); a('s_cselect_b32 s67, 0, s67'); a('s_lshl_b32 s67, s67, 7')
    a('v_and_b32 v22, 1, v0'); a('v_mul_u32_u24 v22, s67, v22')
    a('s_lshl_b32 s%d, s%d, 11' % (sLD, sW))
    for c in range(4): a('v_add_u32 v%d, 131072, v%d' % (196 + c, VRD + c))
    setup4 = [re.sub(r'\bv([567])\b', lambda m: 'v%d' % (64 + int(m.group(1))), l.strip()) for l in a.lines]
    a = a_real
    grp4 = []
    for l in setup4:
        if l.startswith('s_cselect') or l.startswith('s_addc'): grp4[-1] += '\n' + l
        else: grp4.append(l)
    h_poll = 'buffer_load_dwordx4 v[192:195], v%d, %s, s79 offen %s' % (VPL, sr(WS, 4), WT)
    c_poll = 'buffer_load_dwordx4 v[24:27], v%d, %s, s76 offen %s' % (VPL, sr(WS, 4), WT)
    b_poll = 'buffer_load_dword v24, v22, %s, s75 offen %s' % (sr(WS, 4), WT)
    s_poll = 'buffer_load_dword v24, v22, %s, s75 offen offset:512 %s' % (sr(WS, 4), WT)
    WF4 = 64; ND4 = 18; NK = 62; LA4 = 15
    def accB(n, q): return 128 + (q * 8 + n) * 4
    def accS(n, q): return 192 + (q * 8 + n) * 4
    def act4(k, q): r = k % 16; return (r * 8 + q * 4) if r < 8 else (128 + (r - 8) * 8 + q * 4)
    def wslot(st): return 131072 + st * 16384 if st < 2 else ((st - 2) % 8) * 16384
    def w4_dma(st):
        L = []
        if st == ND4 // 2: L.append('s_mov_b32 s%d, s%d' % (sWW, sWW0))
        r_ = WD4 if st < ND4 // 2 else WO4
        for m in range(2):
            L += ['s_add_u32 m0, s%d, %d' % (sLD, wslot(st) + m * 8192), 's_nop 0' if m == 0 else 's_add_u32 s%d, s%d, 128' % (sW2, sWW)]
            L += [(('w4', st), 'buffer_load_dwordx4 v%d, %s, s%d offen offset:%d lds' % (VWO + j, sr(r_, 4), sWW if m == 0 else sW2, 1024 * j)) for j in range(2)]
        L.append('s_add_u32 s%d, s%d, %d' % (sWW, sWW, 64 * 1280))
        return L
    def a4_load(k):
        L = ['s_mov_b32 s%d, s%d' % (sAC, sAC0)] if k == ND4 else []
        return L + [(('a4', k), 'buffer_load_dwordx4 %s, v%d, %s, s%d offen' % (ar(act4(k, q), 4), (VA0, VA1)[q], sr(AH if k < ND4 else AC, 4), sAC)) for q in range(2)] + \
               ['s_add_u32 s%d, s%d, %d' % (sAC, sAC, 128 * 1024)]
    def w4_read(k, n, dst):
        ad, ks = wslot(k // 2), k % 2
        reg = (VRD, VRD + 4, 196)[ad // 65536]
        return ['ds_read_b64_tr_b16 %s, v%d offset:%d' % (ar(dst + 2 * r, 2), reg + n % 4, ad % 65536 + (n // 4) * 8192 + (32 * ks + 16 * r) * 128) for r in range(2)]
    PK = 112
    def packs(accf):
        L = []
        for q in (1, 0):
            for n in range(8):
                dst = (accf(0, 1) if q else PK) + 2 * n
                L += ['v_cvt_pk_bf16_f32 v%d, v%d, v%d' % (dst + h, accf(n, q) + 2 * h, accf(n, q) + 2 * h + 1) for h in range(2)]
        return L
    def sends(accf, tag):
        return [(tag, 'buffer_store_dwordx4 %s, v%d, %s, s%d offen offset:%d %s' % (vr((accf(0, 1) if q else PK) + 4 * j, 4), V_LANE16, sr(WS, 4), (sS0, sS1)[q], j * 1024, WT))
                for q in (1, 0) for j in range(4)]
    def recvs(dst, tag):
        return [(tag, 'buffer_load_dwordx4 %s, v%d, %s, s%d offen offset:%d' % (vr(dst + 16 * src_ + 4 * j, 4), V_LANE16, sr(WS, 4), (sR0, sR1)[src_], j * 1024))
                for j in range(4) for src_ in range(2)]
    def unp_add(B, dst, n, T):
        L = []
        for src_ in range(2):
            for h in range(2):
                r = dst + 16 * src_ + 2 * n + h
                L += ['v_lshlrev_b32 v%d, 16, v%d' % (T + 2 * h, r), 'v_and_b32 v%d, s65, v%d' % (T + 2 * h + 1, r)]
            L += ['v_add_f32 v%d, v%d, v%d' % (B + e, B + e, T + e) for e in range(4)]
        return L
    XR4 = 96
    xl = [('x4', 'buffer_load_dwordx4 %s, v%d, %s, s%d offen offset:%d' % (vr(XR4 + 4 * j, 4), VX, sr(X4, 4), sXO, 1280 * j)) for j in range(4)]
    F = (0, 1); H_ = (0,)
    pfi = pre_items(prefill(0, 0, 0, dyn=True))
    a('s_waitcnt lgkmcnt(%d)' % (D - LGS))
    rds = [kread(i, 0) for i in range(D, 16)] + [kread(i, 1) for i in range(D)]
    it = lg_items(16, False) + pfi; it.sort(key=lambda x: (x['hi'], x['lo']))
    pk.run(qk_mf([(1, F, None), (0, F, 1)], 0), rds, it, [], hx, [], None, False)
    a('s_nop 3'); stamp(a, 2, 'p3')
    for st in range(2):
        for qb in range(2):
            for s in max_ops(st, 0, qb, V_T0, V_T1): a(s)
            for e in range(4): a('v_sub_f32 v%d, 0, v%d' % (NEGM + (st * 2 + qb) * 4 + e, V_T0))
    pfi = pre_items(prefill(0, 1, 1, dyn=True))
    rds = [kread(i, 1) for i in range(D, 16)] + [kread(i, 0) for i in range(D)]
    it = lg_items(16, False) + pfi + [dict(lo=16 - D - 1, hi=16 - D - 1, ins='v_xor_b32 v%d, 32768, v%d' % (V_KRD, V_KRD), v=True)]
    it.sort(key=lambda x: (x['hi'], x['lo']))
    pk.run(qk_mf([(1, F, None), (0, F, 0)], 1), rds, it, [(1, 0, F), (0, 0, F)], [], [], (1, 1), False, sub=True)
    a('s_waitcnt vmcnt(0)')
    a(flag_store(76)[1])
    gate(kv_poll, 208, 4, 1, 63)
    LTO = 'w' in MX
    if LTO:
        a('s_lshl_b32 s67, s2, 2'); a('s_add_u32 s67, s67, s%d' % sW)
        a('s_mul_i32 s68, s67, 7'); a('v_min_u32 v63, 6, v0'); a('v_add_u32 v63, s68, v63'); a('v_lshlrev_b32 v63, 7, v63')
        a('s_mul_i32 s68, s67, 3'); a('v_min_u32 v62, 2, v0'); a('v_add_u32 v62, s68, v62'); a('v_lshlrev_b32 v62, 7, v62')
    stamp(a, 10); cstamp(a, 5); stamp(a, 3, 'p3')
    lA, lA_skip, lA_tail2 = name + '_loopA', name + '_skipA', name + '_tail2A'
    a('s_cmp_eq_u32 s%d, 0' % sI)
    a('s_cbranch_scc1 %s' % lA_tail2)
    a('s_sub_u32 s%d, s%d, 2' % (sCNT, sI))
    a('s_cbranch_scc1 %s' % lA_skip)
    cstamp(a, 3, 'cyb')
    a.raw('.p2align 6')
    a.label(lA)
    qB = (1, F, None); BA = [(1, F), (0, F)]; B_ = [(1, F)]; BAh = [(1, F), (0, H_)]; Bh = [(1, H_)]
    iteration(0, [qB, (0, F, None)], BA, BA, BA, lt=LTO)
    iteration(1, [qB, (0, F, None)], BA, BA, BA, loop_ctr=(sCNT, lA), lt=LTO)
    cstamp(a, 4, 'cyb')
    a.label(lA_skip)
    stamp(a, 4, 'p3')
    iteration(0, [qB, (0, F, 1)], BA, BA, BA, pf=prefill(0, 0, 0))
    stamp(a, 5, 'p3')
    iteration(1, [qB, (0, H_, 0)], BA, BA, BA, pf=prefill(0, 1, 1))
    a.label(lA_tail2)
    stamp(a, 6, 'p3')
    l7, lBtail2 = name + '_i7', name + '_tail2B'
    a('s_cmp_eq_u32 s%d, 7' % sI)
    a('s_cbranch_scc1 %s' % l7)
    def txt(L): return [x if isinstance(x, str) else x[1] for x in L]
    acts = [a4_load(k) for k in range(16)]
    E1 = txt(xl); E2 = txt(w4_dma(0) + acts[0] + acts[1] + acts[2]); E3 = txt(w4_dma(1) + acts[3] + acts[4] + acts[5])
    E4 = txt(acts[6] + acts[7] + acts[8] + acts[9] + acts[10] + acts[11])
    wt = ['s_lshl_b32 s67, s2, 2', 's_add_u32 s67, s67, s%d' % sW, 's_mul_i32 s68, s67, 46', 'v_min_u32 v72, 45, v0', 'v_add_u32 v72, s68, v72',
          'v_min_u32 v72, 40959, v72', 'v_lshlrev_b32 v72, 7, v72', 'global_load_dword v63, v72, s[14:15]',
          's_mul_i32 s68, s67, 20', 'v_min_u32 v73, 19, v0', 'v_add_u32 v73, s68, v73', 'v_min_u32 v73, 17279, v73', 'v_lshlrev_b32 v73, 7, v73',
          'global_load_dword v63, v73, s[22:23]']
    iteration(0, [qB], BAh, BA, BA, post_bar=(() if ('w' in MX or 'W' in MX) else wt))
    stamp(a, 7, 'p3')
    ct2 = ['s_getpc_b64 s[70:71]\n%s_pc3:\ns_add_u32 s70, s70, %s_loopB-%s_pc3\ns_addc_u32 s71, s71, 0' % (name, name, name),
           's_bfe_u32 s67, s2, 0x20003', 's_lshl_b32 s67, s67, 2', 's_add_u32 s67, s67, s%d' % sW, 's_mul_i32 s67, s67, %d' % (8 * 128),
           'v_min_u32 v72, 7, v0', 'v_lshlrev_b32 v72, 7, v72', 'v_add_u32 v72, s67, v72', 'global_load_dword v7, v72, s[70:71]'] if 'D' in MX else []
    iteration(1, [qB], B_, BAh, BAh, anyw=grp4 + ct2 + [h_poll], vx=(0 if ('w' in MX or 'W' in MX) else 2))
    stamp(a, 8, 'p3')
    epilogue(0)
    stamp(a, 9, 'p3')
    a('s_waitcnt vmcnt(8)')
    gate(h_poll, 192, 4, 1, 63)
    lB = name + '_loopB'
    a('s_lshl_b32 s%d, s%d, 1' % (sCNT, sI))
    a('s_sub_u32 s%d, 12, s%d' % (sCNT, sCNT))
    cstamp(a, 5, 'cyb'); stamp(a, 10, 'p3')
    a.raw('.p2align 6')
    a.label(lB)
    iteration(0, [qB], B_, B_, B_, lt=LTO)
    iteration(1, [qB], B_, B_, B_, loop_ctr=(sCNT, lB), lt=LTO)
    cstamp(a, 6, 'cyb'); stamp(a, 11, 'p3')
    if 'C' not in MX:
        E1 = E1 + ['s_getpc_b64 s[70:71]\n%s_pc2:\ns_add_u32 s70, s70, %s_tail2B-%s_pc2\ns_addc_u32 s71, s71, 0' % (name, name, name),
                   's_lshr_b32 s67, s2, 3', 's_lshl_b32 s67, s67, 2', 's_add_u32 s67, s67, s%d' % sW, 's_lshl_b32 s67, s67, 9',
                   'v_and_b32 v63, 3, v0', 'v_lshlrev_b32 v63, 7, v63', 'v_add_u32 v63, s67, v63', 'v_min_u32 v63, %s_codeend-%s_tail2B-4, v63' % (name, name),
                   'global_load_dword v63, v63, s[70:71]']
        E1b = E1[:4]
    else: E1b = E1
    iteration(0, [(1, F, 1)], B_, B_, B_, dk=False, mid=E1, post_bar=E2, pf=prefill(1, 0, 0))
    stamp(a, 12, 'p3')
    iteration(1, [(1, H_, 0)], B_, B_, B_, dk=False, nxt='v', mid=E3, post_bar=E4, pf=prefill(1, 1, 1), vx=sum(1 for s_ in E2 if s_.startswith('buffer_')) + sum(1 for s_ in E1 if s_.startswith('buffer_')))
    a('s_branch %s' % lBtail2)
    a.label(l7)
    iteration(0, [(1, F, 1)], BAh, BA, BA, dk=False, pf=prefill(1, 0, 0))
    iteration(1, [(1, H_, 0)], B_, BAh, BAh, dk=False, nxt='v', anyw=grp4 + [h_poll], pf=prefill(1, 1, 1), anylo=10)
    epilogue(0)
    a('s_waitcnt vmcnt(8)')
    gate(h_poll, 192, 4, 1, 63)
    for s_ in E2 + E3 + E4 + E1b: a(s_)
    a.label(lBtail2)
    stamp(a, 11); cstamp(a, 6); stamp(a, 13, 'p3')
    vm.n = 0; ids = {}
    for k in range(12): ids[('a4', k)] = -100
    ids[('w4', 0)] = ids[('w4', 1)] = -100
    sent = ['v_mov_b32 v%d, -1' % (116 + e) for e in range(4)] + ['s_add_u32 s67, s%d, 32768' % sS0, 's_add_u32 s68, s%d, 32768' % sS1]
    sent += [('sn', 'buffer_store_dwordx4 v[116:119], v%d, %s, s%d offen offset:%d %s' % (V_LANE16, sr(WS, 4), 67 + q, j * 1024, WT)) for j in range(4) for q in range(2)]
    e1 = [flag_store(77)[1]] + [issue(it) for it in w4_dma(2) + w4_dma(3) + sent]
    iteration(0, None, Bh, B_, B_, dk=False, dv=False, nxt='v', post_bar=e1)
    stamp(a, 14, 'p3')
    e2 = w4_dma(4) + acts[12] + acts[13] + w4_dma(5) + acts[14]
    iteration(1, None, [], Bh, Bh, dk=False, dv=False, nxt=None, post_bar=[issue(it) for it in e2])
    stamp(a, 12); stamp(a, 15, 'p3'); padp(a, 'p3')
    epilogue(1)
    stamp(a, 16, 'p3')
    notile = name + '_notile'
    a('s_cmp_eq_u32 s%d, 0' % sVAL)
    a('s_cbranch_scc1 %s' % notile)
    a('s_barrier')
    wins = []
    k_ = 0
    while k_ < NK:
        w_ = 4 if (k_ % 4 == 0 and k_ + 4 <= NK and not any(k_ < b_ < k_ + 4 for b_ in (ND4, ND4 + 40))) else 2
        wins.append(list(range(k_, k_ + w_))); k_ += w_
    units = []; wstart = {}
    for W_ in wins:
        for k_ in W_: wstart[k_] = W_
        if len(W_) == 4:
            for n in range(8): units.append(([(k_, n) for k_ in W_], [((3 - j) if (q and SN) else j, q) for q in range(2) for j in range(4)]))
        else:
            for np_ in range(4): units.append(([(k_, n) for n in (2 * np_, 2 * np_ + 1) for k_ in W_], [(2 * h + (j ^ q if SN else j), q) for h in range(2) for q in range(2) for j in range(2)]))
    def ureg(u, j): return 192 + ((u % 4) * 4 + j) * 4
    def ureads(u):
        L = []
        if u < len(units):
            for j, (k_, n) in enumerate(units[u][0]): L += w4_read(k_, n, ureg(u, j))
        return L
    for s_ in ureads(0) + ureads(1): a(s_)
    stamp(a, 13)
    def rnd_l(r0, r1, t):
        return ['v_cvt_pk_bf16_f32 v%d, v%d, v%d' % (t, r0, r1), 'v_lshlrev_b32 v%d, 16, v%d' % (r0, t), 'v_and_b32 v%d, s65, v%d' % (r1, t)]
    def rnd(r0, r1, t):
        for s_ in rnd_l(r0, r1, t): a(s_)
    RBv = accB(0, 1)
    def gate_calc(n):
        B = accB(n, 0); T = 40 + 4 * (n % 2); L = unp_add(B, RBv, n, T)
        for h in range(2): L += rnd_l(B + 2 * h, B + 2 * h + 1, T)
        L += ['v_mul_f32 v%d, s64, v%d' % (T + e, B + e) for e in range(4)]
        L += ['v_exp_f32 v%d, v%d' % (T + e, T + e) for e in range(4)]
        L += ['v_add_f32 v%d, 1.0, v%d' % (T + e, T + e) for e in range(4)]
        L += ['v_rcp_f32 v%d, v%d' % (T + e, T + e) for e in range(4)]
        L += ['v_mul_f32 v%d, v%d, v%d' % (B + e, B + e, T + e) for e in range(4)]
        for h in range(2): L += rnd_l(B + 2 * h, B + 2 * h + 1, T)
        return L
    def x_unpack():
        L = []
        for n in range(8):
            for h in range(2):
                x = XR4 + 2 * n + h; o = accB(n, 1) + 2 * h
                L += ['v_lshlrev_b32 v%d, 16, v%d' % (o, x), 'v_and_b32 v%d, s65, v%d' % (o + 1, x)]
        return L
    a('s_mov_b32 s64, %s' % f2u(-math.log2(math.e)))
    a('s_mov_b32 s65, 0xffff0000')
    pend = w4_dma(6) + w4_dma(7) + w4_dma(8) + w4_dma(9)
    slowq = []
    valq = []
    nxt_a = LA4
    KG = int(os.environ.get('KG', 15)); KCF = int(os.environ.get('KCF', 1)); PDL = 5; CUN = int(os.environ.get('CUN', 9))
    KS0, KFL, KBP, KRC = [int(x) for x in os.environ.get('KX', '20,30,33,48').split(',')]
    rbl = recvs(RBv, 'rb')
    for k in range(NK):
        kl = wstart[k][-1]
        assert not any(x[0] == ('a4', kl) for x in pend if not isinstance(x, str))
        need = ids[('a4', kl)]
        if k == KCF: need = max(need, ids['ctx'])
        if k == KG: need = max(need, ids['cp'])
        if k in (KFL, KRC): assert not slowq and not any(x[0] in ('sb', 'rb', 'x4') for x in pend if not isinstance(x, str))
        if k == KFL: need = max(need, ids['sb'])
        if k == KBP + PDL: need = max(need, ids['bp'])
        if k == KRC: need = max(need, ids['rb'])
        a('s_waitcnt vmcnt(%d) lgkmcnt(8)' % min(63, vm.cnt(need)))
        if k == KCF: pend = [flag_store(78)] + pend
        if k == KG - 3: pend = [('cp', c_poll)] + pend
        if k == KG: gate(c_poll, 24, 4, 1, 63)
        if k == KS0 - 1: valq += packs(accB)
        if k == KS0:
            assert not valq
            sl = sends(accB, 'sb'); slowq += [x for p_ in zip(sl[:4], sl[4:]) for x in p_]
        if k == KFL:
            pend = [flag_store(56), 's_add_u32 s56, s56, 512', 's_add_u32 s%d, s%d, 32768' % (sS0, sS0), 's_add_u32 s%d, s%d, 32768' % (sS1, sS1)] + pend
        if k == KBP: pend = [('bp', b_poll)] + pend
        if k == KBP + PDL:
            gate(b_poll, 24, 1, 1, 63)
            slowq += rbl
        if k == KRC:
            pend += ['s_add_u32 s%d, s%d, 32768' % (sR0, sR0), 's_add_u32 s%d, s%d, 32768' % (sR1, sR1)]
            NG = int(os.environ.get('NG', 0))
            for n in range(NG): valq += gate_calc(n)
        newa = []
        lim = min(NK, k + LA4 + 1) if k >= KG else ND4
        while nxt_a < min(lim, wstart[k][0] + 16) and len(newa) < (CUN if nxt_a < k + 11 else 3):
            newa += a4_load(nxt_a); nxt_a += 1
        pend = newa + slowq[:2] + pend; slowq = slowq[2:]
        for u in (2 * k, 2 * k + 1):
            if u % 2: a('s_waitcnt lgkmcnt(%d)' % (8 if u + 1 < len(units) else 0))
            rd = ureads(u + 2)
            bar = (u % 8 == 6 and u + 2 < len(units))
            for g, (j, q) in enumerate(units[u][1]):
                kk, n = units[u][0][j]
                d = vr((accB if kk < ND4 else accS)(n, q), 4)
                a('%s %s, %s, %s, %s' % (MF16, d, ar(ureg(u, j), 4), ar(act4(kk, q), 4), '0' if (wstart[kk][0] in (0, ND4) and g % len(wstart[kk]) == 0) else d))
                if bar and g == 2:
                    st = k // 2
                    key = ('w4', min(st + 2, NK // 2 - 1))
                    assert not any(x[0] == key for x in pend if not isinstance(x, str))
                    a('s_waitcnt vmcnt(%d) lgkmcnt(0)' % min(63, vm.cnt(ids[key])))
                    a('s_barrier')
                    for s2_ in (st + 7, st + 8):
                        if s2_ < NK // 2 and st >= 3: pend = pend + w4_dma(s2_)
                nr = 0 if (bar and g < 2) else (2 if (bar and g < 4) else 1)
                for _ in range(nr):
                    if rd: a(rd.pop(0))
                if nr < 2:
                    while pend and pend[0] == 's_nop 0': pend.pop(0)
                    if pend and (isinstance(pend[0], str) or g % 2 == 0): a(issue(pend.pop(0)))
                for _ in range(2):
                    if valq: a(valq.pop(0))
            assert not rd
        if k == ND4 - 1: stamp(a, 14); cstamp(a, 7)
        if k % 4 == 1: stamp(a, 1 + k // 4, 'p4')
        if k == ND4 + 39:
            assert not pend
            a('s_cmp_eq_u32 s%d, 0' % sRO)
            a('s_cbranch_scc1 %s_p4done' % name)
    assert not pend and not valq
    a.label(name + '_p4done')
    stamp(a, 15); cstamp(a, 8)
    a('s_nop 7')
    stamp(a, 1, 'fin')
    pl = packs(accS); sl = sends(accS, 'ss')
    def send_part(js):
        for j in js:
            for s_ in pl[4 * j:4 * j + 4]: a(s_)
            for s_ in pl[4 * j:4 * j + 4]:
                r_ = s_.split()[1].rstrip(',')
                a('v_min_u32 %s, -2, %s' % (r_, r_))
            a(sl[j][1])
    send_part(range(4))
    lfin = name + '_fin'
    a('s_cmp_lg_u32 s%d, 0' % sRO)
    a('s_cbranch_scc1 %s' % lfin)
    send_part(range(4, 8))
    stamp(a, 16)
    stamp_flush(a, 17)
    a('s_endpgm')
    a.label(lfin)
    stamp(a, 2, 'fin')
    RS = 64
    a('s_mov_b32 s63, 0x40000')
    late = []
    for n in range(NG, 8): late += gate_calc(n)
    late += x_unpack()
    cut = int(len(late) * float(os.environ.get('RXAT', 0.5)))
    for s_ in late[:cut]: a(s_)
    for it in recvs(RS, 'rs'): a(it[1] + ' ' + WT)
    for s_ in late[cut:]: a(s_)
    a('s_branch %s_rx2' % name)
    a.label(name + '_rx')
    for it in recvs(RS, 'rs'): a(it[1] + ' ' + WT)
    a.label(name + '_rx2')
    a('s_waitcnt vmcnt(4)')
    for j in range(2):
        for src_ in range(2):
            r_ = RS + 16 * src_ + 4 * j
            if j == 0 and src_ == 0: a('v_max3_u32 v40, v%d, v%d, v%d' % (r_, r_ + 1, r_ + 2)); a('v_max_u32 v40, v40, v%d' % (r_ + 3))
            else: a('v_max3_u32 v40, v40, v%d, v%d' % (r_, r_ + 1)); a('v_max3_u32 v40, v40, v%d, v%d' % (r_ + 2, r_ + 3))
    a('s_waitcnt vmcnt(0)')
    for j in range(2, 4):
        for src_ in range(2):
            r_ = RS + 16 * src_ + 4 * j
            a('v_max3_u32 v40, v40, v%d, v%d' % (r_, r_ + 1)); a('v_max3_u32 v40, v40, v%d, v%d' % (r_ + 2, r_ + 3))
    a('v_cmp_eq_u32 vcc, -1, v40')
    a('s_sub_u32 s63, s63, 1')
    a('s_cbranch_scc1 %s_rxok' % name)
    a('s_cbranch_vccnz %s_rx' % name)
    a.label(name + '_rxok')
    stamp(a, 6, 'fin')
    for n in range(8):
        if n in (0, 7): stamp(a, 7 + n // 7, 'fin')
        S = accS(n, 0); T = 96 + 2 * n
        for s_ in unp_add(S, RS, n, 40): a(s_)
        for h in range(2): rnd(S + 2 * h, S + 2 * h + 1, 56)
        for e in range(4): a('v_mul_f32 v%d, v%d, v%d' % (S + e, S + e, accB(n, 0) + e))
        for h in range(2): a('v_cvt_pk_bf16_f32 v%d, v%d, v%d' % (T + h, S + 2 * h, S + 2 * h + 1))
        a('ds_write_b64 v21, %s offset:%d' % (vr(T, 2), 32768 + 32 * n))
    for j in range(4): a('ds_read_b128 %s, v23 offset:%d' % (vr(64 + 4 * j, 4), 32768 + 272 * j))
    for j in range(4):
        a('s_waitcnt lgkmcnt(%d)' % (3 - j))
        X_ = accB(0, 1) + 8 * j
        for e in range(4):
            a('v_lshlrev_b32 v40, 16, v%d' % (64 + 4 * j + e)); a('v_and_b32 v41, s65, v%d' % (64 + 4 * j + e))
            a('v_add_f32 v40, v40, v%d' % (X_ + 2 * e)); a('v_add_f32 v41, v41, v%d' % (X_ + 2 * e + 1))
            a('v_cvt_pk_bf16_f32 v%d, v40, v41' % (80 + 4 * j + e))
        a('buffer_store_dwordx4 %s, v%d, %s, s%d offen offset:%d %s' % (vr(80 + 4 * j, 4), VX, sr(OUT, 4), sXO, 1280 * j, OUTF))
    if os.environ.get('PADT'):
        if os.environ.get('PADG'):
            a('s_mov_b32 s96, 0x%x' % FL)
            a('buffer_load_dwordx4 v[4:7], v%d, %s, s96 offen offset:2048 %s' % (V_LANE16, sr(WS, 4), WT))
            a('s_waitcnt vmcnt(0)')
            for e in range(4): a('v_subrev_u32 v%d, s97, v%d' % (4 + e, 4 + e))
            a('v_min_i32 v4, v4, v5'); a('v_min_i32 v6, v6, v7'); a('v_min_i32 v4, v4, v6'); a('s_mov_b32 s96, 0'); a('s_nop 1')
            for l in range(64):
                a('v_readlane_b32 s95, v4, %d' % l); a('s_nop 3'); a('s_min_i32 s96, s96, s95')
            a('s_add_u32 s97, s97, s96')
        a.label(name + '_padl')
        a('s_memrealtime s[98:99]'); a('s_waitcnt lgkmcnt(0)'); a('s_sub_u32 s98, s98, s97'); a('s_cmp_lt_u32 s98, %d' % int(os.environ['PADT']))
        a('s_cbranch_scc1 %s_padl' % name)
    stamp(a, 16); stamp(a, 9, 'fin')
    stamp_flush(a, 17)
    a('s_endpgm')
    a.label(notile)
    a('s_waitcnt vmcnt(0)')
    a(flag_store(78)[1])
    a.label(end)
    a('s_endpgm')
    for slow, ok, load_ins, chk, ts in slow_paths:
        a.label(slow)
        a('s_mov_b32 s%d, 0x40000' % ts)
        lp = a.newlabel(name + '_sp')
        a.label(lp)
        a('s_sleep 1')
        a(load_ins)
        a('s_waitcnt vmcnt(0)')
        for s in chk: a(s)
        a('s_nop 1')
        a('s_cbranch_vccz %s' % ok)
        a('s_sub_u32 s%d, s%d, 1' % (ts, ts))
        a('s_cbranch_scc0 %s' % lp)
        a('s_branch %s' % ok)
    for stub, back, pc, ex in rare_sites:
        a.label(stub)
        for st, qbs in sorted(ex):
            a('s_mov_b32 s69, %s' % ('1.0' if 1 in qbs else '0'))
            a('s_call_b64 s[100:101], %s_rare%d%d' % (name, pc, st))
        a('s_branch %s' % back)
    for pc in range(2):
        for st in range(2):
            a.label('%s_rare%d%d' % (name, pc, st))
            a('s_nop 7')
            for qb in range(2):
                for s in max_ops(st, pc, qb, V_T0, V_T1): a(s)
                a('v_max_f32 v%d, 0, v%d' % (V_T0, V_T0))
                if qb == 1: a('v_mul_f32 v%d, s69, v%d' % (V_T0, V_T0))
                a('v_exp_f32 v%d, -v%d' % (V_T1, V_T0))
                for e in range(4): a('v_sub_f32 v%d, v%d, v%d' % (NEGM + (st * 2 + qb) * 4 + e, NEGM + (st * 2 + qb) * 4 + e, V_T0))
                for pp in range(2):
                    for kb in range(4):
                        for r in range(4):
                            x = SB[st][pp] + (kb * 2 + qb) * 4 + r
                            a('v_sub_f32 v%d, v%d, v%d' % (x, x, V_T0))
                a('v_mul_f32 v%d, v%d, v%d' % (V_L + st * 2 + qb, V_L + st * 2 + qb, V_T1))
                for db in range(0, 8, 2):
                    regs = [A_O[st] + ((db + h) * 2 + qb) * 4 + e for h in range(2) for e in range(4)]
                    for e in range(8): a('v_accvgpr_read_b32 v%d, a%d' % (TMP + e, regs[e]))
                    for e in range(8): a('v_mul_f32 v%d, v%d, v%d' % (TMP + e, TMP + e, V_T1))
                    for e in range(8): a('v_accvgpr_write_b32 a%d, v%d' % (regs[e], TMP + e))
            for s in exp_ops(st, pc): a(s)
            if st == 1:
                for k, (s, _, _) in enumerate(exp_seq(1, 1 - pc)[:EARLY]): a('v_exp_f32 v%d, v%d' % (TMP + k, s))
            a('s_nop 7')
            a('s_setpc_b64 s[100:101]')
    a.label(name + '_codeend')
    if os.environ.get('PADEND'): a.raw('.fill 8192, 4, 0xBF810000')
    kernel_desc(a, name, 512, 256)
    return a
```

```python
from common import *
import common
import math, copy, re
import k2 as K2
from k2 import VM, Packer, exp_seq, exp_ops, max_ops, EARLY
from k2 import V_LANE16, V_LANE16V, V_KRD, V_VRD, V_T0, V_T1, V_L, TRI, NEGM, LT, TMP, SB, PB, A_O, A_Q, A_RING, V_ONES, D, R, THR, BIG

OUTF = os.environ.get('OUTF', 'sc0 sc1')
WT = 'sc0 sc1'
WS_FLG = 0x7000000
FK, FH, FC, FL, FE = WS_FLG, WS_FLG + 4096, WS_FLG + 8192, WS_FLG + 16384, WS_FLG + 20480
PTR = dict(x=4, ckv=6, wq=8, wuk=10, wuv=12, wo=14, wg=18, wu=20, wd=22, out=24, dbg=26, ws=28)
WS, R1, R2, R3, R4, R5 = 32, 36, 40, 44, 48, 52
sW, sH, sI = 30, 31, 3
V_ONE, V_1 = 60, 61
V_PA, V_PD = 62, 24

SMODE = os.environ.get('SMODE', 'all')
def stamp(a, i, mode='all'):
    if not DIAG: return
    if mode != SMODE and i != 0: return
    a('s_memrealtime s[98:99]'); a('s_waitcnt lgkmcnt(0)'); a('s_mov_b32 s%d, s98' % (80 + i))
def cstamp(a, i, mode='cyc'):
    if not DIAG or mode != SMODE: return
    a('s_memrealtime s[98:99]'); a('s_waitcnt lgkmcnt(0)'); a('s_mov_b32 s%d, s98' % (80 + i + 8))
    a('s_memtime s[98:99]'); a('s_waitcnt lgkmcnt(0)'); a('s_mov_b32 s%d, s98' % (80 + i))
def stamp_flush(a, n):
    if not DIAG: return
    if os.environ.get('DBGOUT'):
        a('s_load_dwordx2 s[36:37], s[0:1], 88')
        a('s_mov_b32 s38, 256'); a('s_mov_b32 s39, 0x00020000')
        a('s_lshl_b32 s98, s2, 2'); a('s_add_u32 s98, s98, s%d' % sW)
        a('s_cmp_eq_u32 s98, %d' % (4 * int(os.environ['DBGOUT'])))
        a('s_cselect_b32 s98, 0, 0x1000')
        a('s_waitcnt lgkmcnt(0)')
        a('v_mov_b32 v0, 0')
        for i in range(1, n):
            a('s_sub_u32 s99, s%d, s80' % (80 + i))
            a('v_mov_b32 v1, s99')
            a('buffer_store_dword v1, v0, s[36:39], s98 offen offset:%d' % (4 * (i - 1)))
            a('s_nop 1')
        return
    a('s_lshl_b32 s98, s2, 2'); a('s_add_u32 s98, s98, s%d' % sW); a('s_lshl_b32 s98, s98, 7')
    a('s_add_u32 s98, s98, 0x%x' % WS_STAMP)
    a('v_mov_b32 v0, 0')
    for i in range(n):
        a('v_mov_b32 v1, s%d' % (80 + i))
        a('buffer_store_dword v1, v0, %s, s98 offen offset:%d' % (sr(WS, 4), 4 * i))
        a('s_nop 1')

def padp(a, tag):
    v = os.environ.get('PADP', '')
    if not v.startswith(tag + ':'): return
    l = a.newlabel('L_pp'); a.label(l)
    a('s_memrealtime s[98:99]'); a('s_waitcnt lgkmcnt(0)'); a('s_sub_u32 s98, s98, s97'); a('s_cmp_lt_u32 s98, %d' % int(v.split(':')[1])); a('s_cbranch_scc1 %s' % l)
def srd(name, r, off=0, size=None):
    p = PTR[name]
    L = []
    if off:
        L += ['s_add_u32 s%d, s%d, 0x%x' % (r, p, off), 's_addc_u32 s%d, s%d, 0' % (r + 1, p + 1)]
    else:
        L += ['s_mov_b32 s%d, s%d' % (r, p), 's_mov_b32 s%d, s%d' % (r + 1, p + 1)]
    L += ['s_mov_b32 s%d, 0x%x' % (r + 2, SIZE[name] if size is None else size), 's_mov_b32 s%d, 0x00020000' % (r + 3)]
    return L

def gen_mega(a, name):
    kernel_begin(a, name)
    end = name + '_end'
    slow_paths = []
    def gate(load_ins, dreg, n, want, tmp_s):
        def chk():
            L = ['v_xor_b32 v%d, v%d, v%d' % (dreg + e, dreg + e, V_1) for e in range(n)]
            if n >= 3: L += ['v_or3_b32 v%d, v%d, v%d, v%d' % (dreg, dreg, dreg + 1, dreg + 2)]
            if n == 4: L += ['v_or_b32 v%d, v%d, v%d' % (dreg, dreg, dreg + 3)]
            L += ['v_cmp_ne_u32 vcc, 0, v%d' % dreg]
            return L
        slow, ok = a.newlabel(name + '_sl'), a.newlabel(name + '_ok')
        for s in chk(): a(s)
        a('s_nop 1')
        a('s_cbranch_vccnz %s' % slow)
        a.label(ok)
        slow_paths.append((slow, ok, load_ins, chk(), tmp_s))

    a('s_cmp_ge_u32 s2, 256')
    a('s_cbranch_scc1 %s' % end)
    if os.environ.get('PADT') or os.environ.get('PADP'):
        a('s_memrealtime s[98:99]'); a('s_waitcnt lgkmcnt(0)'); a('s_mov_b32 s97, s98')
    stamp(a, 0)
    a('s_load_dwordx16 s[4:19], s[0:1], 0')
    a('s_load_dwordx8 s[20:27], s[0:1], 64')
    a('s_load_dwordx2 s[28:29], s[0:1], 96')
    if 'e' in os.environ.get('MX', ''):
        a('s_getpc_b64 s[100:101]')
        a('v_lshlrev_b32 v2, 7, v0')
        a('global_load_dword v250, v2, s[100:101]')
    a('v_lshrrev_b32 v1, 6, v0')
    a('v_and_b32 v0, 63, v0')
    a('v_readfirstlane_b32 s%d, v1' % sW)
    a('s_and_b32 s31, s2, 7')
    a('s_lshl_b32 s31, s31, 2')
    a('s_lshr_b32 s61, s2, 3')
    a('s_and_b32 s61, s61, 3')
    a('s_add_u32 s31, s31, s61')
    a('s_lshr_b32 s3, s2, 5')
    CKV, WUK, WUV, X, DBG = R1, R2, R3, R4, R5
    VA, VW = 8, 12
    a('v_lshrrev_b32 v6, 3, v0')
    a('v_lshlrev_b32 v6, 10, v6')
    a('v_lshrrev_b32 v7, 4, v0')
    a('v_and_b32 v12, 7, v0')
    a('v_xor_b32 v12, v12, v7')
    a('v_xor_b32 v13, 4, v12')
    a('v_lshl_add_u32 v12, v12, 4, v6')
    a('v_lshl_add_u32 v13, v13, 4, v6')
    for j in range(4): a('v_add_u32 v%d, %d, v%d' % (VA + j, j * (8192 - 1024), 12 + (j & 1)))
    a('v_bfe_u32 v16, v0, 1, 3')
    a('v_xor_b32 v16, v16, v7')
    a('v_xor_b32 v17, 4, v16')
    a('v_and_b32 v18, 1, v0')
    a('v_lshlrev_b32 v18, 4, v18')
    a('v_lshl_add_u32 v18, v7, 13, v18')
    a('v_lshl_add_u32 v16, v16, 5, v18')
    a('v_lshl_add_u32 v17, v17, 5, v18')
    for j in range(4): a('v_add_u32 v%d, %d, v%d' % (VW + j, j * (32768 - 1024), 16 + (j >> 1)))
    sA, sWo, sLA, sLW, sA2 = 56, 57, 58, 59, 60
    a('s_lshl_b32 s56, s%d, 2' % sI)
    a('s_add_u32 s56, s56, s%d' % sW)
    a('s_lshl_b32 s56, s56, 16')
    a('s_lshl_b32 s57, s%d, 17' % sW)
    a('s_lshl_b32 s58, s%d, 8' % sH)
    a('s_add_u32 s57, s57, s58')
    a('s_lshl_b32 s58, s%d, 13' % sW)
    a('s_lshl_b32 s59, s%d, 12' % sW)
    a('s_add_u32 s59, s59, 65536')
    a('v_lshrrev_b32 v2, 5, v0')
    a('v_and_b32 v3, 31, v0')
    a('s_lshl_b32 s61, s2, 2')
    a('s_add_u32 s61, s61, s%d' % sW)
    a('s_lshl_b32 s61, s61, 1')
    a('v_add_u32 v4, s61, v2')
    a('v_mul_u32_u24 v5, 1280, v4')
    a('v_lshl_add_u32 v5, v3, 3, v5')
    a('v_lshlrev_b32 v%d, 4, v0' % V_LANE16)
    vm = VM(); ids = {}
    def issue(it):
        if isinstance(it, str): return it
        ids[it[0]] = vm.op()
        return it[1]
    def p1_dma(st):
        slot = st & 1; t = ('p1', st)
        L = ['s_add_u32 m0, s%d, %d' % (sLA, slot * 32768), 's_add_u32 s%d, s%d, 32768' % (sA2, sA)]
        L += [(t, 'buffer_load_dwordx4 v%d, %s, s%d offen offset:%d lds' % (VA + j, sr(CKV, 4), sA, 1024 * j)) for j in range(4)]
        L += ['s_add_u32 m0, s%d, %d' % (sLW, slot * 32768), 's_add_u32 s%d, s%d, 128' % (sA, sA)]
        L += [(t, 'buffer_load_dwordx4 v%d, %s, s%d offen offset:%d lds' % (VW + j, sr(WUK, 4), sWo, 1024 * j)) for j in range(4)]
        L += ['s_add_u32 m0, s%d, %d' % (sLA, slot * 32768 + 4096), 's_nop 0']
        L += [(t, 'buffer_load_dwordx4 v%d, %s, s%d offen offset:%d lds' % (VA + j, sr(CKV, 4), sA2, 1024 * j)) for j in range(4)]
        L += ['s_add_u32 m0, s%d, %d' % (sLW, slot * 32768 + 16384), 's_nop 0']
        L += [(t, 'buffer_load_dwordx4 v%d, %s, s%d offen offset:%d lds' % (VW + j, sr(WUV, 4), sWo, 1024 * j)) for j in range(4)]
        L += ['s_add_u32 s%d, s%d, %d' % (sWo, sWo, 64 * 8192)]
        return L
    stamp(a, 1, 'st')
    a('s_waitcnt lgkmcnt(0)')
    for n_, r_ in (('x', X), ('ckv', CKV), ('wuk', WUK), ('wuv', WUV), ('ws', WS)):
        for s in srd(n_, r_): a(s)
    XR = 192
    a('v_mov_b32 v52, 0')
    a('s_mov_b32 s79, 0x%x' % FE)
    a(issue(('ep', 'buffer_load_dword v%d, v52, %s, s79 offen %s' % (V_1, sr(WS, 4), WT))))
    xld = [('x', 'buffer_load_dwordx2 %s, v5, %s, 0 offen offset:%d' % (vr(XR + 2 * j, 2), sr(X, 4), 256 * j)) for j in range(5)]
    MX0 = os.environ.get('MX', '')
    if 'k' in MX0:
        a('v_and_b32 v20, 15, v0'); a('v_lshlrev_b32 v20, 7, v20'); a('s_lshl_b32 s62, s61, 10')
        a(issue(('pf', 'buffer_load_dword v240, v20, %s, s62 offen' % sr(CKV, 4))))
    if 'l' not in MX0:
        for it in xld: a(issue(it))
    PFB = 'P' in os.environ.get('MX', '')
    def weave(start, items):
        body = a.lines[start:]; del a.lines[start:]
        G = []
        for l in body:
            t = l.strip()
            if G and (t.startswith(('s_cselect', 's_addc', 's_subb')) or t.endswith(':') or G[-1][-1].strip().endswith(':')): G[-1].append(l)
            else: G.append([l])
        D_ = []; cur = []
        for s in items:
            cur.append(s)
            if s.startswith(('buffer_', 'global_')): D_.append(cur); cur = []
        if cur: D_[-1] += cur
        for j, d in enumerate(D_):
            for s in d: a(s)
            for g in G[(j * len(G)) // len(D_):((j + 1) * len(G)) // len(D_)]: a.lines.extend(g)
    s0_items = [issue(it) for it in p1_dma(0)]
    W0 = len(a.lines)
    a('s_lshr_b32 s61, s2, 3')
    a('s_lshl_b32 s61, s61, 2')
    a('s_add_u32 s61, s61, s%d' % sW)
    TC, TW, TX = 48, 49, 50
    a('v_bfe_u32 v20, v0, 1, 4')
    a('v_lshlrev_b32 v20, 10, v20')
    a('v_and_b32 v21, 1, v0')
    a('v_lshl_add_u32 v20, v21, 7, v20')
    a('s_lshl_b32 s62, s61, 14')
    a('v_add_u32 v%d, s62, v20' % TC)
    a('v_and_b32 v20, 7, v0')
    a('v_lshlrev_b32 v20, 7, v20')
    a('s_lshl_b32 s62, s61, 13')
    a('s_and_b32 s63, s2, 7')
    a('s_lshl_b32 s63, s63, 10')
    a('s_add_u32 s62, s62, s63')
    a('v_add_u32 v%d, s62, v20' % TW)
    def pf_chunk(c):
        if PFB: return []
        return ['s_mov_b32 s16, %d' % ((c + 1) * 128 * 8192),
                ('pf', 'buffer_load_dword v240, v%d, %s, 0 offen offset:%d' % (TC, sr(CKV, 4), 256 * (c + 1))),
                ('pf', 'buffer_load_dword v241, v%d, %s, s16 offen' % (TW, sr(WUK, 4))),
                ('pf', 'buffer_load_dword v242, v%d, %s, s16 offen' % (TW, sr(WUV, 4)))]
    a('s_getpc_b64 s[100:101]')
    a.label(name + '_pc')
    a('s_sub_u32 s100, s100, %s_pc-%s' % (name, name))
    a('s_subb_u32 s101, s101, 0')
    a('v_and_b32 v20, 7, v0')
    a('v_lshlrev_b32 v20, 7, v20')
    a('s_lshl_b32 s62, s61, 10')
    a('v_add_u32 v20, s62, v20')
    a('v_min_u32 v55, %s_codeend-%s-4, v20' % (name, name))
    a('s_min_u32 s62, s61, 79'); a('s_lshl_b32 s62, s62, 16'); a('v_mov_b32 v56, s62')
    a('s_min_u32 s62, s61, 33'); a('s_lshl_b32 s62, s62, 16'); a('v_mov_b32 v57, s62')
    TQ, TG = 53, 54
    a('v_min_u32 v20, 39, v0')
    a('v_lshrrev_b32 v21, 3, v20')
    a('s_mul_i32 s62, s61, 5')
    a('v_add_u32 v21, s62, v21')
    a('v_and_b32 v20, 7, v20')
    a('v_lshlrev_b32 v20, 7, v20')
    a('v_lshl_add_u32 v20, v21, 13, v20')
    a('v_add_u32 v%d, s63, v20' % TQ)
    a('v_min_u32 v20, 19, v0')
    a('v_lshrrev_b32 v21, 2, v20')
    a('v_add_u32 v21, s62, v21')
    a('v_mul_u32_u24 v21, 3456, v21')
    a('s_and_b32 s63, s2, 7')
    a('s_lshl_b32 s63, s63, 2')
    a('s_mul_i32 s64, s63, 37'); a('s_lshr_b32 s64, s64, 8')
    a('s_sub_u32 s63, s63, s64')
    a('v_and_b32 v20, 3, v20')
    a('v_add_u32 v20, s63, v20')
    a('v_min_u32 v20, 26, v20')
    a('v_lshl_add_u32 v%d, v20, 7, v21' % TG)
    a('s_mul_i32 s62, s61, 20480')
    a('v_and_b32 v20, 31, v0')
    a('v_lshlrev_b32 v20, 7, v20')
    a('v_add_u32 v%d, s62, v20' % TX)
    def xn_touch(j):
        return ['s_mov_b32 s63, %d' % (4096 * j), ('pf', 'buffer_load_dword v243, v%d, %s, s63 offen' % (TX, sr(WS, 4)))]
    RA, RW = 16, 18
    a('s_lshr_b32 s61, s%d, 1' % sW)
    a('s_lshl_b32 s61, s61, 14')
    a('v_bfe_u32 v20, v0, 1, 3')
    a('v_xor_b32 v20, v20, v7')
    a('v_and_b32 v21, 15, v0')
    a('v_lshlrev_b32 v21, 7, v21')
    a('v_add_u32 v21, s61, v21')
    a('v_lshl_add_u32 v%d, v20, 4, v21' % RA)
    a('v_xor_b32 v20, 4, v20')
    a('v_lshl_add_u32 v%d, v20, 4, v21' % (RA + 1))
    a('v_bfe_u32 v22, v0, 2, 2')
    a('v_lshl_add_u32 v23, v7, 3, v22')
    a('v_lshlrev_b32 v23, 8, v23')
    a('v_and_b32 v24, 3, v0')
    a('v_lshl_add_u32 v23, v24, 3, v23')
    a('v_add_u32 v23, 65536, v23')
    a('v_bfe_u32 v22, v0, 2, 3')
    a('s_and_b32 s62, s%d, 1' % sW)
    a('s_lshl_b32 s62, s62, 2')
    a('v_xor_b32 v22, s62, v22')
    for nb in range(4):
        a('v_xor_b32 v24, %d, v22' % nb)
        a('v_lshl_add_u32 v%d, v24, 5, v23' % (RW + nb))
    P_XOFF2, P_WOFF, P_WRD = 32, 33, 40
    P_X0, P_X1 = 32, 37
    a('s_sub_u32 s61, 7, s%d' % sW); a('s_mul_i32 s61, s61, 20480'); a('v_add_u32 v%d, s61, v%d' % (P_X0, V_LANE16))
    a('s_mul_i32 s61, s%d, 20480' % sW); a('v_add_u32 v%d, s61, v%d' % (P_X1, V_LANE16))
    a('v_lshrrev_b32 v25, 3, v0')
    a('v_bfe_u32 v26, v0, 1, 2')
    a('v_bfe_u32 v27, v0, 4, 2')
    a('v_xor_b32 v26, v26, v27')
    a('v_lshlrev_b32 v26, 5, v26')
    a('v_and_b32 v27, 1, v0')
    a('v_lshl_add_u32 v26, v27, 4, v26')
    a('v_lshl_add_u32 v%d, v25, 13, v26' % P_WOFF)
    a('v_add_u32 v%d, %d, v%d' % (P_WOFF + 1, 8 * 8192 - 1024, P_WOFF))
    a('v_mul_u32_u24 v25, 3456, v25')
    a('v_add_u32 v%d, v25, v26' % (P_WOFF + 2))
    a('v_add_u32 v%d, %d, v%d' % (P_WOFF + 3, 8 * 3456 - 1024, P_WOFF + 2))
    a('v_lshrrev_b32 v25, 2, v0')
    a('v_lshlrev_b32 v25, 7, v25')
    a('v_and_b32 v26, 3, v0')
    a('v_lshl_add_u32 v25, v26, 3, v25')
    a('v_add_u32 v25, 65536, v25')
    a('v_bfe_u32 v26, v0, 3, 2')
    for c in range(4):
        a('v_xor_b32 v27, %d, v26' % c)
        a('v_lshl_add_u32 v%d, v27, 5, v25' % (P_WRD + c))
        a('v_add_u32 v%d, 65536, v%d' % (P_WRD + 4 + c, P_WRD + c))
    s_w = [64, 65, 66, 67]; s_q = [68, 69]; sLW2, sCT = 70, 71; sQ = [72, 73]
    a('s_mul_i32 s17, s%d, 37' % sH)
    a('s_lshr_b32 s17, s17, 8')
    a('s_sub_u32 s71, s%d, s17' % sH)
    a('s_lshl_b32 s70, s%d, 11' % sW)
    a('s_lshl_b32 s72, s%d, 3' % sI)
    a('s_sub_u32 s73, 120, s72')
    a('s_mul_i32 s68, s72, 20480')
    a('s_mul_i32 s69, s73, 20480')
    assert WS_XN == 0
    a('s_lshl_b32 s64, s%d, 17' % sW)
    a('s_lshl_b32 s65, s%d, 8' % sH)
    a('s_add_u32 s64, s64, s65')
    a('s_add_u32 s65, s64, 128')
    a('s_mul_i32 s66, s%d, %d' % (sW, 16 * 3456))
    a('s_lshl_b32 s67, s%d, 7' % sCT)
    a('s_add_u32 s66, s66, s67')
    a('s_mov_b32 s67, s66')
    a('s_mul_i32 s61, s17, 7')
    a('s_sub_u32 s61, s%d, s61' % sH)
    a('s_cmp_eq_u32 s61, 6')
    a('s_cselect_b32 s74, 0, 0x%x' % SIZE['wg'])
    a('s_cmp_ge_u32 s%d, 27' % sCT)
    a('s_cselect_b32 s74, 0, s74')
    a('s_lshl_b32 s61, s%d, 2' % sW)
    a('s_lshl_b32 s76, s2, 4'); a('s_add_u32 s76, s76, s61')
    a('s_add_u32 s75, s76, 0x%x' % FK)
    a('s_add_u32 s77, s76, 0x%x' % FC)
    a('s_and_b32 s78, s76, 0x1ff')
    a('s_add_u32 s76, s76, 0x%x' % FH)
    a('s_sub_u32 s62, 15, s%d' % sI); a('s_lshl_b32 s62, s62, 9')
    a('s_add_u32 s78, s78, s62'); a('s_add_u32 s78, s78, 0x%x' % FC)
    a('v_cmp_eq_u32 vcc, 0, v0')
    a('v_mov_b32 v25, 0x20000000')
    a('s_lshl_b32 s26, s2, 2'); a('s_add_u32 s26, s26, 0x%x' % FL)
    a('v_cndmask_b32 v%d, v25, 0, vcc' % V_ONE)
    a('s_cmp_eq_u32 s%d, 0' % sW)
    a('s_cselect_b32 s26, s26, 0x20000000')
    a('s_lshl_b32 s27, s2, 2'); a('s_or_b32 s27, s27, s%d' % sW)
    a('s_cmp_eq_u32 s27, 0')
    a('s_cselect_b32 s27, s79, 0x20000000')
    a('s_mov_b32 s79, 0x%x' % FL)
    def flag_store(sreg, val=V_1):
        return ('fl', 'buffer_store_dword v%d, v%d, %s, s%d offen %s' % (val, V_ONE, sr(WS, 4), sreg, WT))
    weave(W0, s0_items)
    W1 = len(a.lines)
    a('s_mov_b32 s61, 0x9e3779b1')
    a('v_mul_lo_u32 v%d, s61, v%d' % (V_1, V_1))
    a('v_add_u32 v%d, 0x7f4a7c15, v%d' % (V_1, V_1))
    import k1
    b = Asm(); k1.ln_part(b, XR, WS, 4, 3)
    ln_lines = [l.strip() for l in b.lines]
    for l in ln_lines[:-20]: a(l)
    a('v_lshrrev_b32 v224, 3, v3')
    a('v_lshlrev_b32 v224, 9, v224')
    a('v_and_b32 v225, 3, v3')
    a('v_lshl_add_u32 v224, v225, 7, v224')
    a('v_and_b32 v225, 7, v4')
    a('v_lshl_add_u32 v224, v225, 4, v224')
    a('v_bfe_u32 v225, v3, 2, 1')
    a('v_lshl_add_u32 v224, v225, 3, v224')
    a('v_add_u32 v224, %d, v224' % (128 * 1024))
    for j in range(5): a('ds_write_b64 v224, %s offset:%d' % (vr(XR + 2 * j, 2), 2048 * j))
    a('s_lshl_b32 s61, s%d, 10' % sW)
    a('s_add_u32 s61, s61, %d' % (128 * 1024))
    a('v_add_u32 v225, s61, v%d' % V_LANE16)
    a('v_lshrrev_b32 v226, 3, v0')
    a('v_lshlrev_b32 v226, 8, v226')
    a('v_and_b32 v227, 7, v0')
    a('v_lshl_add_u32 v226, v227, 4, v226')
    a('s_lshr_b32 s61, s2, 1')
    a('s_mul_i32 s61, s61, 20480')
    a('s_and_b32 s62, s2, 1')
    a('s_lshl_b32 s62, s62, 7')
    a('s_add_u32 s61, s61, s62')
    a('s_lshl_b32 s62, s%d, 11' % sW)
    a('s_add_u32 s61, s61, s62')
    a('s_add_u32 s62, s61, 8192')
    a('s_add_u32 s63, s61, 16384')
    a('s_cmp_lt_u32 s%d, 2' % sW)
    a('s_cselect_b32 s63, s63, 0x20000000')
    lnq = []
    for l in a.lines[W1:]:
        t = l.strip()
        if t.startswith('s_cselect'): lnq[-1] += '\n' + t
        else: lnq.append(t)
    del a.lines[W1:]
    xn_reads = ['ds_read_b128 %s, v225 offset:%d' % (vr(XR + 4 * t, 4), 4096 * t) for t in range(3)]
    xn_stores = [('xn', 'buffer_store_dwordx4 %s, v226, %s, s%d offen %s' % (vr(XR + 4 * t, 4), sr(WS, 4), 61 + t, WT)) for t in range(3)]
    MX = os.environ.get('MX', '')
    if 'x' in MX: xn_stores = []
    if 'p' in MX: xn_stores = [(t, s.replace(WT, '')) for t, s in xn_stores]
    WQ, WG, WU = R1, R2, R3
    WSLOT = [128 * 1024, 64 * 1024, 96 * 1024]
    P_ACCV, P_ACCA, P_WF, P_ACT = 128, 0, 128, 192
    srdm = [WQ, WQ, WG, WU]; stride = [8192, 8192, 3456, 3456]
    def w_dma(st, nm):
        L = []
        for m in range(nm):
            L.append('s_add_u32 m0, s%d, %d' % (sLW2, WSLOT[st % 3] + m * 8192))
            L.append('s_nop 0')
            for j in range(2):
                L.append((('w', st), 'buffer_load_dwordx4 v%d, %s, s%d offen offset:%d lds' % (P_WOFF + 2 * (m // 2) + j, sr(srdm[m], 4), s_w[m], 1024 * j)))
            L.append('s_add_u32 s%d, s%d, %d' % (s_w[m], s_w[m], 64 * stride[m]))
        return L
    def a_load(k):
        base = P_ACT + 16 * (k % 4)
        L = [(('a', k), 'buffer_load_dwordx4 %s, v%d, %s, s%d offen offset:%d' % (ar(base + 4 * qi, 4), (P_X0, P_X1)[qi % 2], sr(WS, 4), s_q[qi // 2], 1024 * (k % 4))) for qi in range(4)]
        if k % 4 == 3: L += ['s_add_u32 s%d, s%d, 4096' % (s, s) for s in s_q]
        return L
    WFB, AFB = 64, 128
    dsn = [0]; dsid = {}
    def em(s, tag=None):
        a(s)
        if s.startswith('ds_'):
            dsn[0] += 1
            if tag is not None: dsid[tag] = dsn[0]
    def lgw(tags):
        return min(15, dsn[0] - max(dsid[t] for t in tags))
    def rdA(st, rb): return [(('A', st, rb), 'ds_read_b128 %s, v%d offset:%d' % (vr(AFB + 8 * rb + 4 * ks, 4), RA + ks, (st & 1) * 32768 + rb * 2048)) for ks in range(2)]
    def rdW(st, j): return [(('W', st, j), 'ds_read_b64_tr_b16 %s, v%d offset:%d' % (vr(WFB + 8 * j + 4 * ks + 2 * r, 2), RW + j % 4,
                            (st & 1) * 32768 + (j // 4) * 16384 + (32 * ks + 4 * r) * 256)) for ks in range(2) for r in range(2)]
    SN = 'N' not in os.environ.get('MX', '')
    def mf1(st, rb, j, pos):
        ks = pos ^ (j & 1) if SN else pos
        act = vr(AFB + 8 * rb + 4 * ks, 4); w = vr(WFB + 8 * j + 4 * ks, 4)
        d = ar((rb * 8 + j) * 4, 4); c = '0' if (st == 0 and pos == 0) else d
        return '%s %s, %s, %s, %s' % ((MF16, d, w, act, c) if j < 4 else (MF16, d, act, w, c))
    stamp(a, 2); stamp(a, 8, 'st')
    S1L = p1_dma(1); npre = int(os.environ.get('NPRE', 12))
    for it in S1L[:npre]: a(issue(it))
    a('s_waitcnt vmcnt(%d) lgkmcnt(0)' % vm.cnt(ids[('p1', 0)]))
    stamp(a, 9, 'st')
    a('s_barrier')
    stamp(a, 3); stamp(a, 10, 'st'); padp(a, 'p0')
    for t_, s_ in rdA(0, 0) + sum([rdW(0, j) for j in range(8)], []) + rdA(0, 1): em(s_, t_)
    ln_poll = 'buffer_load_dwordx4 v[244:247], v%d, %s, s79 offen %s' % (V_LANE16, sr(WS, 4), WT)
    NST = 8
    pend = S1L[npre:] + pf_chunk(0) + (xld if 'l' in MX0 else []) + [('pf', 'global_load_dword v249, v55, s[100:101]')]
    NPRE = int(os.environ.get('NPRE', 0))
    P1SP = int(os.environ.get('P1SP', 4))
    LNS = int(os.environ.get('LNS', 1))
    LN0 = 3 if 'l' in MX0 else 0
    sBASE, sK0, sK1, sT, sC0, sC1, sS1 = 56, 57, 58, 59, 60, 61, 62
    sc = ['s_lshl_b32 s56, s%d, 20' % sH, 's_lshl_b32 s57, s%d, 17' % sI, 's_add_u32 s58, s56, s57', 's_lshr_b32 s57, s%d, 1' % sW, 's_lshl_b32 s57, s57, 16',
          's_add_u32 s58, s58, s57', 's_add_u32 s58, s58, 0x%x' % WS_KV, 's_and_b32 s57, s%d, 1' % sW, 's_lshl_b32 s16, s57, 11', 's_add_u32 s16, s16, s58',
          's_lshl_b32 s17, s57, 12', 's_add_u32 s17, s17, s58', 's_add_u32 s17, s17, 16384',
          's_lshl_b32 s57, s%d, 14' % sW, 'v_add_u32 v26, s57, v%d' % V_LANE16,
          's_lshl_b32 s59, s%d, 12' % sW, 's_add_u32 s56, s56, s59', 's_add_u32 s56, s56, 0x%x' % WS_KV, 's_lshl_b32 s60, s%d, 13' % sW,
          's_add_u32 s60, s60, %d' % (65536 + 32768), 's_add_u32 s61, s60, 16384', 's_add_u32 s62, s56, 32768', 's_add_u32 s57, s56, 65536', 's_add_u32 s58, s57, 32768',
          'v_add_u32 v%d, 16384, v%d' % (V_LANE16V, V_LANE16), 'v_and_b32 v%d, 7, v0' % V_PA, 'v_lshlrev_b32 v%d, 9, v%d' % (V_PA, V_PA),
          's_and_b32 s79, s2, 31', 's_lshl_b32 s79, s79, 4', 's_add_u32 s79, s79, 0x%x' % FK]
    LAST = (6, 7, 4, 5, 0, 1, 2, 3)
    gc = 0; lastv = -10
    XT = [int(c) for c in os.environ.get('XT', '99999')]
    for st in range(NST - 1):
        nord = LAST if st == NST - 2 else range(8)
        for rb in range(8):
            if rb == 2:
                if st == LNS + 1: pend += xn_stores
                if st == 6:
                    pend += srd('wq', WQ) + srd('wg', WG) + srd('wu', WU) + ['s_mov_b32 s%d, s74' % (WG + 2), 's_mov_b32 s%d, s74' % (WU + 2)] + w_dma(0, 4) + sc
            rd = []
            if rb == 6:
                assert not any(x[0] == ('p1', st + 1) for x in pend if not isinstance(x, str))
                a('s_waitcnt vmcnt(%d) lgkmcnt(0)' % vm.cnt(max(ids[('p1', st + 1)], ids['lnp'] if st == LNS + 4 else 0))); a('s_barrier')
                if st == LNS: rd += [(None, s_) for s_ in xn_reads]; assert not lnq
                if st + 2 < NST: pend += p1_dma(st + 2)
                if st == LNS + 2: pend = [flag_store(26)] + pend
                if st in (0, 1): pend += pf_chunk(st + 1)
                if st == 2: pend += [('pf', 'global_load_dword v240, v%d, s[8:9]' % TQ)]
                if st == 3: pend += [('pf', 'global_load_dword v241, v%d, s[18:19]' % TG), ('pf', 'global_load_dword v242, v%d, s[20:21]' % TG)]
                if st == LNS + 3: pend += [('lnp', ln_poll)]
                if st == 4: pend += [('pf', 'global_load_dword v249, v55, s[100:101]')]
                if st == 6: pend += w_dma(1, 4)
                if st == LNS + 4:
                    gate(ln_poll, 244, 4, 1, 61)
                    pend += [flag_store(27)]
                for j_, s_ in enumerate(XT):
                    if st == max(s_, LNS + 4): pend += xn_touch(j_)
            elif rb > 0: a('s_waitcnt lgkmcnt(%d)' % lgw([('A', st, rb)]))
            if rb < 6: rd += rdA(st, rb + 2)
            elif st < NST - 2: rd += rdA(st + 1, rb - 6)
            elif rb == 6: rd += rdA(st + 1, 4) + rdA(st + 1, 5) + rdA(st + 1, 0)
            else: rd += rdA(st + 1, 6)
            for j in range(8):
                if rb == 0 and j % 2 == 0: a('s_waitcnt lgkmcnt(%d)' % lgw([('W', st, j + 1), ('A', st, 0)]))
                for ks in range(2):
                    a(mf1(st, rb, j, ks))
                    if rb == 7:
                        if j > 0:
                            for t_, s_ in rdW(st + 1, j - 1)[2 * ks:2 * ks + 2]: em(s_, t_)
                        elif rd: em(rd[0][1], rd[0][0]); rd.pop(0)
                    elif ks == 0 and rd: em(rd[0][1], rd[0][0]); rd.pop(0)
                    elif pend:
                        while pend and pend[0] == 's_nop 0': pend.pop(0)
                        if pend and (isinstance(pend[0], str) or gc - lastv >= (2 if st < 2 else P1SP)):
                            if not isinstance(pend[0], str): lastv = gc
                            a(issue(pend.pop(0)))
                            if pend and isinstance(pend[0], str) and pend[0] != 's_nop 0' and not lnq: a(pend.pop(0))
                    if rb != 7:
                        for _ in range(2 if LNS else 3):
                            if lnq: em(lnq.pop(0))
                    gc += 1
            if rb == 7:
                for t_, s_ in rdW(st + 1, 7): em(s_, t_)
            assert not rd
            if rb % 4 == 3: stamp(a, 1 + 2 * st + rb // 4, 'p1')
        if st == 3: stamp(a, 4); cstamp(a, 1)
    U2 = []
    for st in range(8): U2 += [(st, n) for n in range(0, 16, 2)]
    U2 += [(8, n) for n in range(0, 8, 2)] + [(9, n) for n in range(0, 8, 2)] + [(8, n) for n in range(8, 16, 2)] + [(9, n) for n in range(8, 16, 2)]
    def ufr(u, j, r=None):
        f, b_ = (vr, 64) if u >= 72 else (ar, P_WF)
        b_ += ((u % 4) * 4 + j) * 4
        return f(b_, 4) if r is None else f(b_ + 2 * r, 2)
    def u_reads(u):
        if u >= len(U2): return []
        st, n0 = U2[u]
        off = WSLOT[st % 3] - 65536
        grp = off // 65536; off %= 65536
        return ['ds_read_b64_tr_b16 %s, v%d offset:%d' % (ufr(u, 2 * h + ks, r), P_WRD + 4 * grp + (n0 + h) % 4, off + ((n0 + h) // 4) * 8192 + (32 * ks + 16 * r) * 128)
                for h in range(2) for ks in range(2) for r in range(2)]
    def conv(b0, b1, T, dst):
        return ['v_accvgpr_read_b32 v%d, a%d' % (T + e, b0 * 4 + e) for e in range(4)] + ['v_accvgpr_read_b32 v%d, a%d' % (T + 4 + e, b1 * 4 + e) for e in range(4)] + \
               ['v_cvt_pk_bf16_f32 v%d, v%d, v%d' % (dst + e, T + 2 * e, T + 2 * e + 1) for e in range(4)]
    def store(T, sb, off):
        return ['s_add_u32 s63, s%d, %d' % (sb, off & ~4095),
                ('kv', 'buffer_store_dwordx4 %s, v%d, %s, s63 offen offset:%d %s' % (vr(T, 4), V_LANE16, sr(WS, 4), off & 4095, WT))]
    def jobs(rp):
        J = []
        for rb in (2 * rp, 2 * rp + 1):
            for s in range(2): J.append((rb * 8 + 2 * s, rb * 8 + 2 * s + 1, 16, (rb // 4) * 32768 + ((rb % 4) * 4 + s) * 1024))
        rb = 2 * rp
        for nb in range(4): J.append((rb * 8 + 4 + nb, (rb + 1) * 8 + 4 + nb, 17, (rb // 4) * 32768 + (((rb % 4) // 2) * 8 + nb) * 1024))
        return J
    J1 = jobs(3) + jobs(2); J2 = jobs(0) + jobs(1)
    rd = rdA(7, 7) + rdA(7, 1) + rdA(7, 2) + rdA(7, 3)
    fq = []
    for n_, (b0, b1, sb, off) in enumerate(J1):
        T = 192 + 12 * (n_ % 4)
        fq += conv(b0, b1, T, T + 8) + ['ds_write_b128 v26, %s offset:%d' % (vr(T + 8, 4), 1024 * n_)]
        if n_ == 7: n8 = len(fq)
        if n_ >= 8 and n_ < (10 if '2' in MX else 12): fq += a_load(n_ - 8)
    fq += u_reads(0) + u_reads(1)
    nf = len(fq); per = -(-nf // (128 - 38))
    g = 0
    for bi, rb in enumerate(LAST):
        if bi == 1:
            assert not rd and not any(x[0] == ('w', 0) for x in pend if not isinstance(x, str))
            a('s_waitcnt vmcnt(%d) lgkmcnt(0)' % vm.cnt(ids[('w', 0)]))
            a('s_barrier')
            if '2' not in MX: pend += w_dma(2, 4)
        for j in range(8):
            if bi == 0 and j % 2 == 0: a('s_waitcnt lgkmcnt(%d)' % lgw([('W', 7, j + 1), ('A', 7, 6)]))
            for ks in range(2):
                a(mf1(7, rb, j, ks))
                if rd: em(rd[0][1], rd[0][0]); rd.pop(0)
                for _ in range(2 if g < 38 else 1):
                    while pend and pend[0] == 's_nop 0': pend.pop(0)
                    if pend and not (_ == 1 and not isinstance(pend[0], str)): a(issue(pend.pop(0)))
                if g >= 38:
                    assert not any(x in sc for x in pend)
                    if g >= 70: assert not pend
                    for _ in range(per):
                        if fq and not (nf - len(fq) >= n8 and g < 70): a(issue(fq.pop(0)))
                g += 1
    for it in fq: a(issue(it))
    stamp(a, 5); cstamp(a, 2); stamp(a, 6); cstamp(a, 3); padp(a, 'p1')
    cq = []
    for n_, (b0, b1, sb, off) in enumerate(J2): cq += conv(b0, b1, 4 + 8 * (n_ % 2), 64 + 4 * n_)
    kv_sched = {}
    KVEND = int(os.environ.get('KVEND', 14))
    def kstep(n_): return 1 + (n_ * (KVEND - 1)) // 32
    for n_, (b0, b1, sb, off) in enumerate(J2):
        kv_sched.setdefault(kstep(n_), []).extend(store(64 + 4 * n_, sb, off))
        kv_sched.setdefault(kstep(n_) + 1, []).append('ds_read_b128 %s, v26 offset:%d' % (vr(64 + 4 * n_, 4), 1024 * n_))
    for n_, (b0, b1, sb, off) in enumerate(J1):
        kv_sched.setdefault(kstep(16 + n_), []).extend(store(64 + 4 * n_, sb, off))
    kv_poll0 = 'buffer_load_dwordx4 v[20:23], v52, %s, s79 offen %s' % (sr(WS, 4), WT)
    kv_poll = 'buffer_load_dwordx4 v[208:211], v%d, %s, s79 offen %s' % (V_PA, sr(WS, 4), WT)
    def kv_dma(m0expr, voff, ssrc, tag):
        return [m0expr, 's_nop 0'] + [(tag, 'buffer_load_dwordx4 v%d, %s, s%d offen offset:%d lds' % (voff, sr(WS, 4), ssrc, 1024 * j)) for j in range(4)]
    sTHR, sBIG, s2W, sM0, sM1, sDYN, sE0, sE1, sCNT = 64, 65, 66, 67, 68, 69, 70, 71, 63
    halves = []
    for k in range(16): halves += [(k, 0), (k, 1)]
    halves += [(k, 0) for k in range(16, 20)] + [(k, 1) for k in range(16, 20)]
    qe = ['s_mov_b32 s64, %s' % f2u(math.log2(math.e) / math.sqrt(128.0))]
    for qi in range(4):
        for s in range(4):
            r0, r1 = P_ACCV + ((2 * s) * 4 + qi) * 4, P_ACCV + ((2 * s + 1) * 4 + qi) * 4
            qe += ['v_mul_f32 v%d, s64, v%d' % (r + e, r + e) for r in (r0, r1) for e in range(4)]
            qe += ['v_cvt_pk_bf16_f32 v%d, v%d, v%d' % (r + e, r + 2 * e, r + 2 * e + 1) for r in (r0, r1) for e in range(2)]
            qe += ['v_accvgpr_write_b32 a%d, v%d' % (A_Q[qi // 2] + ((qi % 2) * 4 + s) * 4 + 2 * h + e, (r0, r1)[h] + e) for h in range(2) for e in range(2)]
    qe += ['v_and_b32 v5, 15, v0', 'v_lshrrev_b32 v6, 4, v0', 'v_lshlrev_b32 v6, 2, v6', 'v_sub_u32 v5, v5, v6']
    for r in range(4): qe += ['v_cmp_gt_i32 vcc, %d, v5\ns_nop 1\nv_cndmask_b32 v%d, 0, 1.0, vcc' % (r, TRI + r)]
    qe += ['v_mov_b32 v%d, 0x3f803f80' % (V_ONES + e) for e in range(4)] + ['v_mov_b32 v%d, 0' % (NEGM + j) for j in range(16)]
    qe += ['v_mov_b32 v%d, 0' % (V_L + j) for j in range(4)]
    qe += ['v_mov_b32 v%d, v%d' % (V_KRD, V_LANE16), 'v_add_u32 v%d, 65536, v%d' % (V_VRD, V_LANE16)]
    qe += ['s_lshl_b32 s8, s72, 10', 's_lshl_b32 s9, s73, 10', 's_lshl_b32 s10, s%d, 18' % sCT, 's_add_u32 s10, s10, 0x%x' % WS_H,
           's_cmp_eq_u32 s74, 0\ns_cselect_b32 s10, 0x20000000, s10', 's_add_u32 s8, s8, s10', 's_add_u32 s9, s9, s10',
           's_add_u32 s10, s8, %d' % (128 * 1024), 's_add_u32 s11, s9, %d' % (128 * 1024),
           's_sub_u32 s12, 7, s%d' % sW, 's_lshl_b32 s12, s12, 10', 'v_add_u32 v%d, s12, v%d' % (P_X0, V_LANE16),
           's_lshl_b32 s12, s%d, 10' % sW, 'v_add_u32 v%d, s12, v%d' % (P_X1, V_LANE16),
           's_mov_b32 s%d, %s' % (sTHR, f2u(THR)), 's_mov_b32 s%d, %s' % (sBIG, f2u(-BIG)), 's_sub_u32 s%d, 3, s%d' % (s2W, sW),
           's_cmp_eq_u32 s%d, 0\ns_cselect_b32 s%d, s%d, 0' % (sI, sDYN, sBIG)]
    pend = (a_load(2) + a_load(3) + w_dma(2, 4)) if '2' in MX else []; vq = cq; vper = 2; gcnt = 0; lastv = -10; P2SP = int(os.environ.get('P2SP', 4))
    for u, (st, n0) in enumerate(U2):
        k = u // 4
        if u % 4 == 0:
            need = -100
            if n0 == 0:
                assert not any(x[0] == ('a', 2 * st + 1) for x in pend if not isinstance(x, str))
                need = ids[('a', 2 * st + 1)]
            if k == KVEND + 1:
                assert not any(x[0] == 'kv' for x in pend if not isinstance(x, str))
                need = max(need, ids['kv'])
            if k == 18: need = max(need, ids['kvp'])
            a('s_waitcnt vmcnt(%d) lgkmcnt(8)' % min(63, vm.cnt(need)))
            pend += kv_sched.get(k, [])
            if k == KVEND + 1: pend += [flag_store(75)]
            if k == 17: pend += [('kvp', kv_poll0)]
            if k == 12: pend += [('pf', 'global_load_dword v27, v55, s[100:101]')]
            if n0 == 0 and 0 < st < 9: pend = a_load(2 * st + 2) + a_load(2 * st + 3) + pend
            if k == 18:
                gate(kv_poll0, 20, 4, 1, 63)
                pend += kv_dma('s_add_u32 m0, s59, 0', V_LANE16, sBASE, 'k0') + kv_dma('s_add_u32 m0, s59, 16384', V_LANE16, sS1, 'k1')
                pend += kv_dma('s_add_u32 m0, s59, 32768', V_LANE16, sK0, 'k2') + kv_dma('s_add_u32 m0, s59, 65536', V_LANE16V, sBASE, 'v0')
                pend += kv_dma('s_add_u32 m0, s59, 49152', V_LANE16, sK1, 'k3') + kv_dma('s_add_u32 m0, s59, %d' % (65536 + 16384), V_LANE16V, sS1, 'v1')
                vq = qe; vper = 3
        else: a('s_waitcnt lgkmcnt(%d)' % (8 if u + 1 < len(U2) else 0))
        if u == 4: assert len(vq) <= 96
        if u == 6: assert not vq
        rd = u_reads(u + 2)
        bar = u + 2 < len(U2) and U2[u + 2][1] == 0
        g = 0
        for h in range(2):
            n = n0 + h
            for qi in range(4):
                for pos in range(2):
                    ks = pos ^ (qi & 1) if SN else pos
                    kk = 2 * st + ks
                    d = vr(P_ACCV + (n * 4 + qi) * 4, 4) if n < 8 else ar(P_ACCA + ((n - 8) * 4 + qi) * 4, 4)
                    a('%s %s, %s, %s, %s' % (MF16, d, ufr(u, 2 * h + ks), ar(P_ACT + 16 * (kk % 4) + 4 * qi, 4), '0' if (st == 0 and pos == 0) else d))
                    if bar and g == 0:
                        nst = U2[u + 2][0]
                        assert not any(x[0] == ('w', nst) for x in pend if not isinstance(x, str))
                        a('s_waitcnt vmcnt(%d) lgkmcnt(0)' % min(63, vm.cnt(ids[('w', nst)])))
                        a('s_barrier')
                        if nst + 2 < 10: pend = pend + w_dma(nst + 2, 4)
                    took = False
                    if rd and g % 3 != 2: a(rd.pop(0)); took = True
                    else:
                        while pend and pend[0] == 's_nop 0': pend.pop(0)
                        if pend and (isinstance(pend[0], str) or gcnt - lastv >= (P2SP if k != 16 else 2)):
                            if not isinstance(pend[0], str): lastv = gcnt
                            a(issue(pend.pop(0)))
                            if pend and isinstance(pend[0], str) and pend[0] != 's_nop 0' and not vq: a(pend.pop(0))
                    for _ in range(vper):
                        if vq: a(vq.pop(0))
                    g += 1; gcnt += 1
        assert not rd
        if u % 4 == 3 and k < 16: stamp(a, 1 + k, 'p2a')
        if u % 4 == 3 and k >= 4: stamp(a, k - 3, 'p2b')
    assert not pend and not vq
    stamp(a, 7); cstamp(a, 4); padp(a, 'p2')
    a('s_waitcnt vmcnt(%d)' % vm.cnt(max(ids['k2'], ids['v0'])))
    stamp(a, 8)
    a('s_barrier')
    hx = []
    for j_ in range(8):
        s, qi = j_ // 4, j_ % 4
        T = 192 + 20 * (j_ % 3)
        for cc in range(2):
            g = P_ACCA + ((2 * s + cc) * 4 + qi) * 4
            hx += ['v_accvgpr_read_b32 v%d, a%d' % (T + 8 * cc + e, g + e) for e in range(4)] + ['v_accvgpr_read_b32 v%d, a%d' % (T + 8 * cc + 4 + e, g + 64 + e) for e in range(4)]
            hx += ['v_mul_f32 v%d, v%d, v%d' % (T + 8 * cc + e, T + 8 * cc + e, T + 8 * cc + 4 + e) for e in range(4)]
            hx += ['v_cvt_pk_bf16_f32 v%d, v%d, v%d' % (T + 16 + 2 * cc + e, T + 8 * cc + 2 * e, T + 8 * cc + 2 * e + 1) for e in range(2)]
        hx.append('buffer_store_dwordx4 %s, v%d, %s, s%d offen %s' % (vr(T + 16, 4), (P_X0, P_X1)[qi % 2], sr(WS, 4), 8 + qi // 2 + 2 * s, WT))
    hx += ['%s %s, %s, %s, 0' % (MFMA, ar(16 * j_, 16), vr(NEGM, 4), vr(NEGM, 4)) for j_ in range(8)]
    hx += [kv_poll]
    def kread(i, p): return 'ds_read_b128 %s, v%d offset:%d' % (ar(A_RING + 4 * (i % R), 4), V_KRD, p * 16384 + i * 1024)
    def vmap(f): return (f % 2, f // 2) if 'H' not in MX else (f // 8, f % 8)
    def vread(i, p): return 'ds_read_b128 %s, v%d offset:%d' % (ar(A_RING + 4 * (i % R), 4), V_VRD, p * 16384 + (vmap(i)[0] * 8 + vmap(i)[1]) * 1024)
    for i in range(D): a(kread(i, 0))
    for s_ in hx[:16]: a(s_)
    hx = hx[16:]
    stamp(a, 9); stamp(a, 1, 'p3')
    def prefill(st, p, tau, dyn=False):
        qb = 1 - tau
        sref = sW if tau == 0 else s2W
        big = sDYN if dyn else sBIG
        out = []
        for kb in range(4):
            S = SB[st][p] + (kb * 2 + qb) * 4
            L = ['s_cmp_eq_u32 s%d, %d' % (sref, kb), 's_cselect_b32 s%d, s%d, 0' % (sM0, big)]
            t = NEGM + (st * 2 + qb) * 4
            if kb > 0:
                L += ['s_cmp_lt_u32 s%d, %d' % (sref, kb), 's_cselect_b32 s%d, s%d, 0' % (sM1, big), 'v_add_f32 v%d, s%d, v%d' % (V_T1, sM1, t)]
                t = V_T1
            L += ['v_fma_f32 v%d, v%d, s%d, v%d' % (S + r, TRI + r, sM0, t) for r in range(4)]
            out.append('\n'.join(L))
        return out
    CH = 'H' not in MX
    def regroup(G, w):
        if not CH: return G
        out = []
        for b_ in range(0, len(G), w):
            n_ = len(G[b_])
            L = [G[b_ + (w - 1 - f if (SN and j & 1) else f)][j] for j in range(n_) for f in range(w)]
            out += [L[f * n_:(f + 1) * n_] for f in range(w)]
        return out
    def qk_mf(sets, p):
        G = []
        for f in range(16):
            kb, ds = f // 4, f % 4; L = []
            for st, qbs, inq in sets:
                for qb in qbs:
                    d = vr(SB[st][p] + (kb * 2 + qb) * 4, 4)
                    c = vr(NEGM + (st * 2 + qb) * 4, 4) if (ds == (3 if (SN and CH and len(L) & 1) else 0) and inq != qb) else d
                    L.append('%s %s, %s, %s, %s' % (MF16, d, ar(A_RING + 4 * (f % R), 4), ar(A_Q[st] + (qb * 4 + ds) * 4, 4), c))
            G.append(L)
        return regroup(G, 4)
    def pv_mf(sets, p):
        G = []
        for f in range(16):
            ks, db = vmap(f); L = []
            for st, qbs in sets:
                for qb in qbs:
                    d = ar(A_O[st] + (db * 2 + qb) * 4, 4)
                    L.append('%s %s, %s, %s, %s' % (MF16, d, ar(A_RING + 4 * (f % R), 4), vr(PB[st][p] + (qb * 2 + ks) * 4, 4), d))
            G.append(L)
        return regroup(G, 2)
    def pre_items(pf):
        a(pf[0]); a('s_nop 1')
        return [dict(lo=max(0, 4 * kb - 5), hi=4 * kb - 3, ins=pf[kb]) for kb in range(1, 4)]
    LGS = int(os.environ.get('LGS', 4)); LGW = int(os.environ.get('LGW', 0))
    rare_sites = []
    pk = Packer(a)
    def lg_items(n, skip_last):
        return [dict(lo=i - LGW, hi=i, lg=i + LGS) for i in range(LGS - 1, n, LGS) if not (i == n - 1 and skip_last)]
    def ladds(ex):
        return ['v_add_f32 v%d, v%d, v%d' % (V_L + st * 2 + qb, V_L + st * 2 + qb, LT + (st * 2 + qb) * 4) for st, qbs in ex for qb in qbs]
    def iteration(p, qk, ex, pv, prev_ex, nxt='k', dk=True, dv=True, loop_ctr=None, post_bar=(), mid=(), anyw=(), wv=None, pf=None, anylo=2, vx=0, lt=False):
        groups = []; rs = []
        pfi = pre_items(pf) if pf else []
        if qk:
            groups += qk_mf(qk, p); rs += [kread(i, p) for i in range(16)]
        groups += pv_mf(pv, p); rs += [vread(i, p) for i in range(16)]
        n = len(groups)
        nx = {'k': [kread(i, 1 - p) for i in range(D)], 'v': [vread(i, 1 - p) for i in range(D)], None: [None] * D}[nxt]
        rds = rs[D:] + nx
        bg = n - D
        it = [dict(lo=0, hi=0, ins=s, v=True) for s in ladds(prev_ex)] + pfi
        nd = 0
        if wv is None: gv, gm, gk, sl = {'0': ((2, 4, 5, 6), 8, (10, 12, 14, 16), 1), '1': ((1, 3, 5, 7), 8, (10, 12, 14, 16), 0), '2': ((1, 4, 6, 8), 9, (11, 13, 16, 18), 0)}[os.environ.get('DPOS', '0')]
        else:
            pos = [2 + 4 * j + wv for j in range(8)]
            gv = [x // 2 for x in pos[:4]]; gk = [x // 2 + 1 for x in pos[4:]]; gm = gv[3] + 1; sl = 0
        late = wv is not None and wv % 2 == 1
        if dv:
            it.append(dict(lo=0, hi=0 if gv[0] == 1 else 1, ins='s_sub_u32 m0, s%d, s%d' % ((sC0, sC1)[p], sT)))
            for j, i in enumerate(gv):
                it.append(dict(lo=i + (1 if late else 0), hi=i + sl, ins='buffer_load_dwordx4 v%d, %s, s%d offen offset:%d lds' % (V_LANE16V, sr(WS, 4), (sK0, sK1)[p], 1024 * j)))
            nd += 4
        if dk:
            it.append(dict(lo=gm, hi=gm + 1, ins='s_add_u32 m0, s%d, %d' % (sT, p * 16384)))
            it.append(dict(lo=gm, hi=gm + 1, ins='s_add_u32 s%d, s%d, 32768' % ((sK0, sK1)[p], (sK0, sK1)[1 - p])))
            for j, i in enumerate(gk):
                it.append(dict(lo=i + (1 if late else 0), hi=i + sl, ins='buffer_load_dwordx4 v%d, %s, s%d offen offset:%d lds' % (V_LANE16, sr(WS, 4), (sK0, sK1)[p], 1024 * j)))
            nd += 4
        if lt:
            vreg, ptr, step, lim = ((63, 14, 7 * 1024 * 128, SIZE['wo'] - 128), (62, 22, 3 * 1024 * 128, SIZE['wd'] - 128))[p]
            it.append(dict(lo=bg, hi=bg + 2, ins='global_load_dword v7, v%d, s[%d:%d]' % (vreg, ptr, ptr + 1)))
            it.append(dict(lo=bg + 3, hi=n - 2, ins='v_add_u32 v%d, 0x%x, v%d' % (vreg, step, vreg), v=True))
            it.append(dict(lo=bg + 3, hi=n - 1, ins='v_min_u32 v%d, 0x%x, v%d' % (vreg, lim, vreg), v=True))
            vx += 1
        nd += sum(1 for s in mid if s.startswith('buffer_'))
        if p == 1:
            if qk: it.append(dict(lo=16 - D, hi=bg - 1, ins='v_xor_b32 v%d, 32768, v%d' % (V_KRD, V_KRD), v=True))
            it.append(dict(lo=bg - 1 if nxt == 'v' else bg, hi=bg - 1 if nxt == 'v' else n - 1, ins='v_xor_b32 v%d, 32768, v%d' % (V_VRD, V_VRD), v=True))
            it.append(dict(lo=13, hi=n - 1, ins='s_xor_b32 s%d, s%d, 32768' % (sT, sT)))
        if nxt is not None:
            it.append(dict(lo=bg - 3, hi=bg - 2, ins='s_waitcnt vmcnt(%d)' % (nd + vx)))
            it.append(dict(lo=bg - 1, hi=bg - 1, ins='s_barrier'))
        it += lg_items(n, nxt is None)
        it.sort(key=lambda x: (x['hi'], x['lo']))
        for j, s in enumerate(mid):
            g_ = 9 + (j * (bg - 4 - 9)) // len(mid)
            it.append(dict(lo=g_, hi=bg - 4, ins=s))
        for j, s in enumerate(anyw):
            it.append(dict(lo=anylo, hi=n - 1, ins=s))
        lo0 = bg if nxt is not None else 0
        for j, s in enumerate(post_bar):
            it.append(dict(lo=lo0 + (j * (n - lo0)) // len(post_bar), hi=n - 1, ins=s))
        fin = []
        if ex:
            lts = [LT + (st * 2 + qb) * 4 for st, qbs in ex for qb in qbs]
            cur = lts[0]
            if len(lts) == 2: fin.append('v_max_f32 v%d, v%d, v%d' % (V_T0, lts[0], lts[1])); cur = V_T0
            if len(lts) >= 3: fin.append('v_max3_f32 v%d, v%d, v%d, v%d' % (V_T0, lts[0], lts[1], lts[2])); cur = V_T0
            if len(lts) == 4: fin.append('v_max_f32 v%d, v%d, v%d' % (V_T0, V_T0, lts[3]))
            fin.append('v_cmp_lt_f32 vcc, s%d, v%d' % (sTHR, cur))
        pk.run(groups, rds, it, [(st, 1 - p, qbs) for st, qbs in ex], [], fin, (1, p) if qk else None, True)
        if loop_ctr: a('s_sub_u32 s%d, s%d, 1' % (loop_ctr[0], loop_ctr[0]))
        if ex:
            stub, back = a.newlabel(name + '_rs'), a.newlabel(name + '_rb')
            a('s_cbranch_vccnz %s' % stub)
            a.label(back)
            rare_sites.append((stub, back, 1 - p, ex))
        if loop_ctr: a('s_cbranch_scc0 %s' % loop_ctr[1])
    def epi_list(st, qbs):
        L = ['s_lshl_b32 s%d, s%d, 10' % (sE0, sQ[st]), 's_lshl_b32 s%d, s%d, 19' % (sE1, sH), 's_add_u32 s%d, s%d, s%d' % (sE0, sE0, sE1),
             's_add_u32 s%d, s%d, 0x%x' % (sE0, sE0, WS_CTX), 's_lshl_b32 s%d, s%d, 10' % (sM1, sW),
             's_sub_u32 s%d, s%d, s%d' % (sM0, sE0, sM1), 's_add_u32 s%d, s%d, 7168' % (sM0, sM0), 's_add_u32 s%d, s%d, s%d' % (sM1, sE0, sM1)]
        L += ['v_rcp_f32 v%d, v%d' % ((V_T0, V_T1)[qb], V_L + st * 2 + qb) for qb in qbs]
        c3 = 0
        for s in range(4):
            for qb in qbs:
                T = SB[st][0] + 16 * ((c3 % 4) if len(qbs) == 2 else (c3 % 2 + 2 * qb)); c3 += 1
                for cc in range(2):
                    L += ['v_accvgpr_read_b32 v%d, a%d' % (T + 4 * cc + e, A_O[st] + ((2 * s + cc) * 2 + qb) * 4 + e) for e in range(4)]
                L += ['v_mul_f32 v%d, v%d, v%d' % (T + e, T + e, (V_T0, V_T1)[qb]) for e in range(8)]
                L += ['v_cvt_pk_bf16_f32 v%d, v%d, v%d' % (T + 8 + e, T + 2 * e, T + 2 * e + 1) for e in range(4)]
                L.append('s_add_u32 s%d, s%d, %d' % (sE1, (sM0, sM1)[qb], s * 128 * 1024))
                L.append(('ctx', 'buffer_store_dwordx4 %s, v%d, %s, s%d offen %s' % (vr(T + 8, 4), V_LANE16, sr(WS, 4), sE1, WT)))
        return L
    def epilogue(st, qbs=(0, 1)):
        for it in epi_list(st, qbs): a(issue(it))
    AH, AC, WD4, WO4, X4, OUT = R1, R2, R3, R4, R5, 4
    sRO, sRT, sCT4, sAC, sWW, sVAL, sXO, sSW, sLD, sW2, sAC0, sWW0 = 8, 9, 10, 11, 12, 74, 13, 18, 19, 20, 26, 27
    sS1, sS0, sR0, sR1 = 16, 17, 21, 62
    WS_EX = 0x8000000
    FX = WS_FLG + 65536
    a_real = a; a = Asm()
    a('s_lshr_b32 s67, s2, 3')
    a('s_cmp_lt_u32 s67, 30'); a('s_cselect_b32 s%d, 1, 0' % sVAL)
    a('s_min_u32 s67, s67, 29')
    a('s_mul_i32 s68, s67, 205'); a('s_lshr_b32 s68, s68, 10')
    a('s_mul_i32 s69, s68, 5'); a('s_sub_u32 s%d, s67, s69' % sCT4)
    a('s_and_b32 s69, s2, 7'); a('s_lshl_b32 s69, s69, 2'); a('s_lshr_b32 s69, %s, s69' % os.environ.get('GMAP', '0x07362514')); a('s_and_b32 s69, s69, 7')
    a('s_mul_i32 s69, s69, 6'); a('s_add_u32 s69, s69, s68')
    a('s_lshr_b32 s%d, s69, 4' % sRO); a('s_and_b32 s%d, s69, 15' % sRT)
    for s in srd('x', X4) + srd('out', OUT): a(s)
    a('s_add_u32 s70, s%d, 2' % sRO); a('s_cmp_eq_u32 s%d, 0' % sRO); a('s_cselect_b32 s71, 0, 3'); a('s_sub_u32 s70, s70, s71')
    a('s_cmp_eq_u32 s%d, 0' % sRO); a('s_cselect_b32 s71, 40, 44'); a('s_mul_i32 s71, s71, s%d' % sVAL)
    a('s_mul_i32 s67, s%d, %d' % (sRO, 18 * 131072)); a('s_add_u32 s67, s67, 0x%x' % WS_H)
    a('s_add_u32 s%d, s28, s67' % AH); a('s_addc_u32 s%d, s29, 0' % (AH + 1)); a('s_mul_i32 s%d, s%d, %d' % (AH + 2, sVAL, 18 * 131072))
    a('s_mul_i32 s67, s70, %d' % (44 * 131072)); a('s_add_u32 s67, s67, 0x%x' % WS_CTX)
    a('s_add_u32 s%d, s28, s67' % AC); a('s_addc_u32 s%d, s29, 0' % (AC + 1)); a('s_lshl_b32 s%d, s71, 17' % (AC + 2))
    a('s_mul_i32 s67, s%d, %d' % (sRO, 18 * 32 * 1280))
    a('s_add_u32 s%d, s22, s67' % WD4); a('s_addc_u32 s%d, s23, 0' % (WD4 + 1)); a('s_mul_i32 s%d, s%d, %d' % (WD4 + 2, sVAL, 18 * 32 * 1280))
    a('s_mul_i32 s67, s70, %d' % (44 * 32 * 1280))
    a('s_add_u32 s%d, s14, s67' % WO4); a('s_addc_u32 s%d, s15, 0' % (WO4 + 1)); a('s_mul_i32 s%d, s71, %d' % (WO4 + 2, 32 * 1280))
    for r_ in (AH, AC, WD4, WO4): a('s_mov_b32 s%d, 0x00020000' % (r_ + 3))
    a('s_cmp_eq_u32 s%d, 2' % sRO); a('s_cselect_b32 s%d, 1, 0' % sSW)
    VA0, VA1, VWO, VRD, VX, VPL = 16, 17, 18, 32, 20, 200
    a('s_lshl_b32 s%d, s%d, 2' % (sAC, sRT)); a('s_add_u32 s%d, s%d, s%d' % (sAC, sAC, sW))
    a('s_lshl_b32 s67, s%d, 1' % sAC); a('s_add_u32 s67, s67, s%d' % sSW)
    a('s_mul_i32 s%d, s67, %d' % (sXO, 16 * 1280)); a('s_lshl_b32 s68, s%d, 8' % sCT4); a('s_add_u32 s%d, s%d, s68' % (sXO, sXO))
    a('s_lshl_b32 s%d, s%d, 11' % (sAC, sAC)); a('s_mov_b32 s%d, s%d' % (sAC0, sAC))
    a('s_lshl_b32 s67, s%d, 10' % sSW)
    a('v_add_u32 v%d, s67, v%d' % (VA0, V_LANE16))
    a('v_xor_b32 v%d, 1024, v%d' % (VA1, VA0))
    a('s_mul_i32 s%d, s%d, %d' % (sWW, sW, 16 * 1280)); a('s_add_u32 s%d, s%d, s68' % (sWW, sWW)); a('s_mov_b32 s%d, s%d' % (sWW0, sWW))
    a('v_lshrrev_b32 v5, 3, v0'); a('v_mul_u32_u24 v5, 1280, v5')
    a('v_bfe_u32 v6, v0, 1, 2'); a('v_bfe_u32 v7, v0, 4, 2'); a('v_xor_b32 v6, v6, v7')
    a('v_lshl_add_u32 v5, v6, 5, v5'); a('v_and_b32 v6, 1, v0')
    a('v_lshl_add_u32 v%d, v6, 4, v5' % VWO)
    a('v_add_u32 v%d, %d, v%d' % (VWO + 1, 8 * 1280 - 1024, VWO))
    a('v_lshrrev_b32 v5, 2, v0'); a('v_lshlrev_b32 v5, 7, v5'); a('v_and_b32 v6, 3, v0'); a('v_lshl_add_u32 v5, v6, 3, v5')
    a('v_bfe_u32 v6, v0, 3, 2')
    for c in range(4):
        a('v_xor_b32 v7, %d, v6' % c)
        a('v_lshl_add_u32 v%d, v7, 5, v5' % (VRD + c))
        a('v_add_u32 v%d, 65536, v%d' % (VRD + 4 + c, VRD + c))
    a('v_lshrrev_b32 v5, 4, v0'); a('v_mul_u32_u24 v5, 5120, v5'); a('v_and_b32 v6, 15, v0')
    a('v_lshl_add_u32 v%d, v6, 4, v5' % VX)
    a('v_and_b32 v%d, 0x1f0, v%d' % (VPL, V_LANE16))
    a('s_mul_i32 s67, s%d, 4608' % sW)
    a('v_and_b32 v5, 15, v0'); a('v_mul_u32_u24 v5, 272, v5'); a('v_lshrrev_b32 v6, 4, v0'); a('v_lshl_add_u32 v5, v6, 3, v5')
    a('v_add_u32 v21, s67, v5')
    a('v_mul_u32_u24 v6, 1088, v6'); a('v_and_b32 v5, 15, v0'); a('v_lshl_add_u32 v5, v5, 4, v6')
    a('v_add_u32 v23, s67, v5')
    a('s_sub_u32 s67, 15, s%d' % sRT); a('s_min_u32 s67, s67, s%d' % sRT)
    a('s_lshl_b32 s79, s67, 9'); a('s_add_u32 s79, s79, 0x%x' % FH)
    a('s_lshl_b32 s76, s%d, 9' % sRT); a('s_add_u32 s76, s76, 0x%x' % FC)
    a('s_mul_i32 s67, s%d, 5' % sRT); a('s_add_u32 s67, s67, s%d' % sCT4)
    a('s_lshl_b32 s68, s67, 2'); a('s_add_u32 s68, s68, s%d' % sW)
    a('s_lshl_b32 s75, s68, 10'); a('s_add_u32 s75, s75, 0x%x' % FX)
    a('s_lshl_b32 s68, s68, 16'); a('s_add_u32 s68, s68, 0x%x' % WS_EX)
    a('s_add_u32 s67, s%d, 1' % sRO); a('s_lshl_b32 s67, s67, 13'); a('s_add_u32 s%d, s68, s67' % sS1)
    a('s_cmp_eq_u32 s%d, 0' % sRO); a('s_cselect_b32 s%d, s68, 0x20000000' % sS0)
    a('s_cmp_eq_u32 s%d, 0' % sVAL); a('s_cselect_b32 s%d, 0x20000000, s%d' % (sS0, sS0)); a('s_cselect_b32 s%d, 0x20000000, s%d' % (sS1, sS1))
    a('s_lshl_b32 s67, s%d, 13' % sSW); a('s_add_u32 s%d, s68, s67' % sR0)
    a('s_sub_u32 s67, 3, s%d' % sSW); a('s_lshl_b32 s67, s67, 13'); a('s_add_u32 s%d, s68, s67' % sR1)
    a('s_cmp_eq_u32 s%d, 0' % sRO); a('s_cselect_b32 s%d, 0x20000000, s%d' % (sR0, sR0)); a('s_cselect_b32 s%d, 0x20000000, s%d' % (sR1, sR1))
    a('s_lshl_b32 s56, s%d, 7' % sRO); a('s_add_u32 s56, s56, s75')
    a('s_sub_u32 s67, 3, s%d' % sRO); a('s_cmp_eq_u32 s%d, 0' % sRO); a('s_cselect_b32 s67, 0, s67'); a('s_lshl_b32 s67, s67, 7')
    a('v_and_b32 v22, 1, v0'); a('v_mul_u32_u24 v22, s67, v22')
    a('s_lshl_b32 s%d, s%d, 11' % (sLD, sW))
    for c in range(4): a('v_add_u32 v%d, 131072, v%d' % (196 + c, VRD + c))
    setup4 = [re.sub(r'\bv([567])\b', lambda m: 'v%d' % (64 + int(m.group(1))), l.strip()) for l in a.lines]
    a = a_real
    grp4 = []
    for l in setup4:
        if l.startswith('s_cselect') or l.startswith('s_addc'): grp4[-1] += '\n' + l
        else: grp4.append(l)
    h_poll = 'buffer_load_dwordx4 v[192:195], v%d, %s, s79 offen %s' % (VPL, sr(WS, 4), WT)
    c_poll = 'buffer_load_dwordx4 v[24:27], v%d, %s, s76 offen %s' % (VPL, sr(WS, 4), WT)
    b_poll = 'buffer_load_dword v24, v22, %s, s75 offen %s' % (sr(WS, 4), WT)
    s_poll = 'buffer_load_dword v24, v22, %s, s75 offen offset:512 %s' % (sr(WS, 4), WT)
    WF4 = 64; ND4 = 18; NK = 62; LA4 = 15
    def accB(n, q): return 128 + (q * 8 + n) * 4
    def accS(n, q): return 192 + (q * 8 + n) * 4
    def act4(k, q): r = k % 16; return (r * 8 + q * 4) if r < 8 else (128 + (r - 8) * 8 + q * 4)
    def wslot(st): return 131072 + st * 16384 if st < 2 else ((st - 2) % 8) * 16384
    def w4_dma(st):
        L = []
        if st == ND4 // 2: L.append('s_mov_b32 s%d, s%d' % (sWW, sWW0))
        r_ = WD4 if st < ND4 // 2 else WO4
        for m in range(2):
            L += ['s_add_u32 m0, s%d, %d' % (sLD, wslot(st) + m * 8192), 's_nop 0' if m == 0 else 's_add_u32 s%d, s%d, 128' % (sW2, sWW)]
            L += [(('w4', st), 'buffer_load_dwordx4 v%d, %s, s%d offen offset:%d lds' % (VWO + j, sr(r_, 4), sWW if m == 0 else sW2, 1024 * j)) for j in range(2)]
        L.append('s_add_u32 s%d, s%d, %d' % (sWW, sWW, 64 * 1280))
        return L
    def a4_load(k):
        L = ['s_mov_b32 s%d, s%d' % (sAC, sAC0)] if k == ND4 else []
        return L + [(('a4', k), 'buffer_load_dwordx4 %s, v%d, %s, s%d offen' % (ar(act4(k, q), 4), (VA0, VA1)[q], sr(AH if k < ND4 else AC, 4), sAC)) for q in range(2)] + \
               ['s_add_u32 s%d, s%d, %d' % (sAC, sAC, 128 * 1024)]
    def w4_read(k, n, dst):
        ad, ks = wslot(k // 2), k % 2
        reg = (VRD, VRD + 4, 196)[ad // 65536]
        return ['ds_read_b64_tr_b16 %s, v%d offset:%d' % (ar(dst + 2 * r, 2), reg + n % 4, ad % 65536 + (n // 4) * 8192 + (32 * ks + 16 * r) * 128) for r in range(2)]
    PK = 112
    def packs(accf):
        L = []
        for q in (1, 0):
            for n in range(8):
                dst = (accf(0, 1) if q else PK) + 2 * n
                L += ['v_cvt_pk_bf16_f32 v%d, v%d, v%d' % (dst + h, accf(n, q) + 2 * h, accf(n, q) + 2 * h + 1) for h in range(2)]
        return L
    def sends(accf, tag):
        return [(tag, 'buffer_store_dwordx4 %s, v%d, %s, s%d offen offset:%d %s' % (vr((accf(0, 1) if q else PK) + 4 * j, 4), V_LANE16, sr(WS, 4), (sS0, sS1)[q], j * 1024, WT))
                for q in (1, 0) for j in range(4)]
    def recvs(dst, tag):
        return [(tag, 'buffer_load_dwordx4 %s, v%d, %s, s%d offen offset:%d' % (vr(dst + 16 * src_ + 4 * j, 4), V_LANE16, sr(WS, 4), (sR0, sR1)[src_], j * 1024))
                for j in range(4) for src_ in range(2)]
    def unp_add(B, dst, n, T):
        L = []
        for src_ in range(2):
            for h in range(2):
                r = dst + 16 * src_ + 2 * n + h
                L += ['v_lshlrev_b32 v%d, 16, v%d' % (T + 2 * h, r), 'v_and_b32 v%d, s65, v%d' % (T + 2 * h + 1, r)]
            L += ['v_add_f32 v%d, v%d, v%d' % (B + e, B + e, T + e) for e in range(4)]
        return L
    XR4 = 96
    xl = [('x4', 'buffer_load_dwordx4 %s, v%d, %s, s%d offen offset:%d' % (vr(XR4 + 4 * j, 4), VX, sr(X4, 4), sXO, 1280 * j)) for j in range(4)]
    F = (0, 1); H_ = (0,)
    pfi = pre_items(prefill(0, 0, 0, dyn=True))
    a('s_waitcnt lgkmcnt(%d)' % (D - LGS))
    rds = [kread(i, 0) for i in range(D, 16)] + [kread(i, 1) for i in range(D)]
    it = lg_items(16, False) + pfi; it.sort(key=lambda x: (x['hi'], x['lo']))
    pk.run(qk_mf([(1, F, None), (0, F, 1)], 0), rds, it, [], hx, [], None, False)
    a('s_nop 3'); stamp(a, 2, 'p3')
    for st in range(2):
        for qb in range(2):
            for s in max_ops(st, 0, qb, V_T0, V_T1): a(s)
            for e in range(4): a('v_sub_f32 v%d, 0, v%d' % (NEGM + (st * 2 + qb) * 4 + e, V_T0))
    pfi = pre_items(prefill(0, 1, 1, dyn=True))
    rds = [kread(i, 1) for i in range(D, 16)] + [kread(i, 0) for i in range(D)]
    it = lg_items(16, False) + pfi + [dict(lo=16 - D - 1, hi=16 - D - 1, ins='v_xor_b32 v%d, 32768, v%d' % (V_KRD, V_KRD), v=True)]
    it.sort(key=lambda x: (x['hi'], x['lo']))
    pk.run(qk_mf([(1, F, None), (0, F, 0)], 1), rds, it, [(1, 0, F), (0, 0, F)], [], [], (1, 1), False, sub=True)
    a('s_waitcnt vmcnt(0)')
    a(flag_store(76)[1])
    gate(kv_poll, 208, 4, 1, 63)
    LTO = 'w' in MX
    if LTO:
        a('s_lshl_b32 s67, s2, 2'); a('s_add_u32 s67, s67, s%d' % sW)
        a('s_mul_i32 s68, s67, 7'); a('v_min_u32 v63, 6, v0'); a('v_add_u32 v63, s68, v63'); a('v_lshlrev_b32 v63, 7, v63')
        a('s_mul_i32 s68, s67, 3'); a('v_min_u32 v62, 2, v0'); a('v_add_u32 v62, s68, v62'); a('v_lshlrev_b32 v62, 7, v62')
    stamp(a, 10); cstamp(a, 5); stamp(a, 3, 'p3')
    lA, lA_skip, lA_tail2 = name + '_loopA', name + '_skipA', name + '_tail2A'
    a('s_cmp_eq_u32 s%d, 0' % sI)
    a('s_cbranch_scc1 %s' % lA_tail2)
    a('s_sub_u32 s%d, s%d, 2' % (sCNT, sI))
    a('s_cbranch_scc1 %s' % lA_skip)
    cstamp(a, 3, 'cyb')
    a.raw('.p2align 6')
    a.label(lA)
    qB = (1, F, None); BA = [(1, F), (0, F)]; B_ = [(1, F)]; BAh = [(1, F), (0, H_)]; Bh = [(1, H_)]
    iteration(0, [qB, (0, F, None)], BA, BA, BA, lt=LTO)
    iteration(1, [qB, (0, F, None)], BA, BA, BA, loop_ctr=(sCNT, lA), lt=LTO)
    cstamp(a, 4, 'cyb')
    a.label(lA_skip)
    stamp(a, 4, 'p3')
    iteration(0, [qB, (0, F, 1)], BA, BA, BA, pf=prefill(0, 0, 0))
    stamp(a, 5, 'p3')
    iteration(1, [qB, (0, H_, 0)], BA, BA, BA, pf=prefill(0, 1, 1))
    a.label(lA_tail2)
    stamp(a, 6, 'p3')
    l7, lBtail2 = name + '_i7', name + '_tail2B'
    a('s_cmp_eq_u32 s%d, 7' % sI)
    a('s_cbranch_scc1 %s' % l7)
    def txt(L): return [x if isinstance(x, str) else x[1] for x in L]
    acts = [a4_load(k) for k in range(16)]
    LEAN = int(os.environ.get('LEAN', 2))
    if LEAN == 0:
        E1 = txt(xl); E2 = txt(w4_dma(0) + acts[0] + acts[1] + acts[2]); E3 = txt(w4_dma(1) + acts[3] + acts[4] + acts[5])
        E4 = txt(acts[6] + acts[7] + acts[8] + acts[9] + acts[10] + acts[11]); NE = 12
    elif LEAN == 1:
        E1 = txt(w4_dma(0)); E2 = txt(acts[0] + acts[1]); E3 = txt(w4_dma(1)); E4 = txt(acts[2] + acts[3]); NE = 4
    else:
        E1 = txt(w4_dma(0)); E2 = txt(acts[0] + acts[1] + acts[2]); E3 = txt(w4_dma(1) + acts[3]); E4 = txt(acts[4] + acts[5] + acts[6] + acts[7]); NE = 8
    E1n = len(E1)
    wt = ['s_lshl_b32 s67, s2, 2', 's_add_u32 s67, s67, s%d' % sW, 's_mul_i32 s68, s67, 46', 'v_min_u32 v72, 45, v0', 'v_add_u32 v72, s68, v72',
          'v_min_u32 v72, 40959, v72', 'v_lshlrev_b32 v72, 7, v72', 'global_load_dword v63, v72, s[14:15]',
          's_mul_i32 s68, s67, 20', 'v_min_u32 v73, 19, v0', 'v_add_u32 v73, s68, v73', 'v_min_u32 v73, 17279, v73', 'v_lshlrev_b32 v73, 7, v73',
          'global_load_dword v63, v73, s[22:23]']
    iteration(0, [qB], BAh, BA, BA, post_bar=(() if ('w' in MX or 'W' in MX) else wt))
    stamp(a, 7, 'p3')
    ct2 = ['s_getpc_b64 s[70:71]\n%s_pc3:\ns_add_u32 s70, s70, %s_loopB-%s_pc3\ns_addc_u32 s71, s71, 0' % (name, name, name),
           's_bfe_u32 s67, s2, 0x20003', 's_lshl_b32 s67, s67, 2', 's_add_u32 s67, s67, s%d' % sW, 's_mul_i32 s67, s67, %d' % (8 * 128),
           'v_min_u32 v72, 7, v0', 'v_lshlrev_b32 v72, 7, v72', 'v_add_u32 v72, s67, v72', 'global_load_dword v7, v72, s[70:71]'] if 'D' in MX else []
    iteration(1, [qB], B_, BAh, BAh, anyw=grp4 + ct2 + [h_poll], vx=(0 if ('w' in MX or 'W' in MX) else 2))
    stamp(a, 8, 'p3')
    epilogue(0)
    stamp(a, 9, 'p3')
    a('s_waitcnt vmcnt(8)')
    gate(h_poll, 192, 4, 1, 63)
    lB = name + '_loopB'
    a('s_lshl_b32 s%d, s%d, 1' % (sCNT, sI))
    a('s_sub_u32 s%d, 12, s%d' % (sCNT, sCNT))
    cstamp(a, 5, 'cyb'); stamp(a, 10, 'p3')
    a.raw('.p2align 6')
    a.label(lB)
    iteration(0, [qB], B_, B_, B_, lt=LTO)
    iteration(1, [qB], B_, B_, B_, loop_ctr=(sCNT, lB), lt=LTO)
    cstamp(a, 6, 'cyb'); stamp(a, 11, 'p3')
    if 'C' not in MX:
        E1 = E1 + ['s_getpc_b64 s[70:71]\n%s_pc2:\ns_add_u32 s70, s70, %s_tail2B-%s_pc2\ns_addc_u32 s71, s71, 0' % (name, name, name),
                   's_lshr_b32 s67, s2, 3', 's_lshl_b32 s67, s67, 2', 's_add_u32 s67, s67, s%d' % sW, 's_lshl_b32 s67, s67, 9',
                   'v_and_b32 v63, 3, v0', 'v_lshlrev_b32 v63, 7, v63', 'v_add_u32 v63, s67, v63', 'v_min_u32 v63, %s_codeend-%s_tail2B-4, v63' % (name, name),
                   'global_load_dword v63, v63, s[70:71]']
        E1b = E1[:E1n]
    else: E1b = E1
    iteration(0, [(1, F, 1)], B_, B_, B_, dk=False, mid=E1, post_bar=E2, pf=prefill(1, 0, 0))
    stamp(a, 12, 'p3')
    iteration(1, [(1, H_, 0)], B_, B_, B_, dk=False, nxt='v', mid=E3, post_bar=E4, pf=prefill(1, 1, 1), vx=sum(1 for s_ in E2 if s_.startswith('buffer_')) + sum(1 for s_ in E1 if s_.startswith('buffer_')))
    a('s_branch %s' % lBtail2)
    a.label(l7)
    iteration(0, [(1, F, 1)], BAh, BA, BA, dk=False, pf=prefill(1, 0, 0))
    iteration(1, [(1, H_, 0)], B_, BAh, BAh, dk=False, nxt='v', anyw=grp4 + [h_poll], pf=prefill(1, 1, 1), anylo=10)
    epilogue(0)
    a('s_waitcnt vmcnt(8)')
    gate(h_poll, 192, 4, 1, 63)
    for s_ in E1b + E2 + E3 + E4: a(s_)
    a.label(lBtail2)
    stamp(a, 11); cstamp(a, 6); stamp(a, 13, 'p3')
    vm.n = 0; ids = {}
    for k in range(NE): ids[('a4', k)] = -100
    ids[('w4', 0)] = ids[('w4', 1)] = -100
    sent = ['v_mov_b32 v%d, -1' % (116 + e) for e in range(4)] + ['s_add_u32 s67, s%d, 32768' % sS0, 's_add_u32 s68, s%d, 32768' % sS1]
    sent += [('sn', 'buffer_store_dwordx4 v[116:119], v%d, %s, s%d offen offset:%d %s' % (V_LANE16, sr(WS, 4), 67 + q, j * 1024, WT)) for j in range(4) for q in range(2)]
    e1 = [flag_store(77)[1]] + [issue(it) for it in (w4_dma(2) + w4_dma(3) + sent if LEAN == 0 else w4_dma(2) + acts[NE] + acts[NE + 1])]
    iteration(0, None, Bh, B_, B_, dk=False, dv=False, nxt='v', post_bar=e1)
    stamp(a, 14, 'p3')
    e2 = w4_dma(4) + acts[12] + acts[13] + w4_dma(5) + acts[14] if LEAN == 0 else w4_dma(3) + acts[NE + 2] + acts[NE + 3]
    EL = 'L' in MX
    iteration(1, None, [], Bh, Bh, dk=False, dv=False, nxt=None, post_bar=[issue(it) for it in ((epi_list(1, (1,)) if EL else []) + e2)])
    stamp(a, 12); stamp(a, 15, 'p3'); padp(a, 'p3')
    epilogue(1, (0,) if EL else (0, 1))
    stamp(a, 16, 'p3')
    notile = name + '_notile'
    a('s_cmp_eq_u32 s%d, 0' % sVAL)
    a('s_cbranch_scc1 %s' % notile)
    a('s_barrier')
    wins = []
    k_ = 0
    while k_ < NK:
        w_ = 4 if (k_ % 4 == 0 and k_ + 4 <= NK and not any(k_ < b_ < k_ + 4 for b_ in (ND4, ND4 + 40))) else 2
        wins.append(list(range(k_, k_ + w_))); k_ += w_
    units = []; wstart = {}
    for W_ in wins:
        for k_ in W_: wstart[k_] = W_
        if len(W_) == 4:
            for n in range(8): units.append(([(k_, n) for k_ in W_], [((3 - j) if (q and SN) else j, q) for q in range(2) for j in range(4)]))
        else:
            for np_ in range(4): units.append(([(k_, n) for n in (2 * np_, 2 * np_ + 1) for k_ in W_], [(2 * h + (j ^ q if SN else j), q) for h in range(2) for q in range(2) for j in range(2)]))
    def ureg(u, j): return 192 + ((u % 4) * 4 + j) * 4
    def ureads(u):
        L = []
        if u < len(units):
            for j, (k_, n) in enumerate(units[u][0]): L += w4_read(k_, n, ureg(u, j))
        return L
    for s_ in ureads(0) + ureads(1): a(s_)
    stamp(a, 13)
    def rnd_l(r0, r1, t):
        return ['v_cvt_pk_bf16_f32 v%d, v%d, v%d' % (t, r0, r1), 'v_lshlrev_b32 v%d, 16, v%d' % (r0, t), 'v_and_b32 v%d, s65, v%d' % (r1, t)]
    def rnd(r0, r1, t):
        for s_ in rnd_l(r0, r1, t): a(s_)
    RBv = accB(0, 1)
    def gate_calc(n):
        B = accB(n, 0); T = 40 + 4 * (n % 2); L = unp_add(B, RBv, n, T)
        for h in range(2): L += rnd_l(B + 2 * h, B + 2 * h + 1, T)
        L += ['v_mul_f32 v%d, s64, v%d' % (T + e, B + e) for e in range(4)]
        L += ['v_exp_f32 v%d, v%d' % (T + e, T + e) for e in range(4)]
        L += ['v_add_f32 v%d, 1.0, v%d' % (T + e, T + e) for e in range(4)]
        L += ['v_rcp_f32 v%d, v%d' % (T + e, T + e) for e in range(4)]
        L += ['v_mul_f32 v%d, v%d, v%d' % (B + e, B + e, T + e) for e in range(4)]
        for h in range(2): L += rnd_l(B + 2 * h, B + 2 * h + 1, T)
        return L
    def x_unpack():
        L = []
        for n in range(8):
            for h in range(2):
                x = XR4 + 2 * n + h; o = accB(n, 1) + 2 * h
                L += ['v_lshlrev_b32 v%d, 16, v%d' % (o, x), 'v_and_b32 v%d, s65, v%d' % (o + 1, x)]
        return L
    a('s_mov_b32 s64, %s' % f2u(-math.log2(math.e)))
    a('s_mov_b32 s65, 0xffff0000')
    pend = ([] if LEAN == 0 else w4_dma(4) + w4_dma(5)) + w4_dma(6) + w4_dma(7) + w4_dma(8) + w4_dma(9)
    slowq = []
    valq = []
    nxt_a = LA4 if LEAN == 0 else NE + 4
    KG = int(os.environ.get('KG', 15)); KCF = int(os.environ.get('KCF', 1)); PDL = 5; CUN = int(os.environ.get('CUN', 9))
    KS0, KFL, KBP, KRC = [int(x) for x in os.environ.get('KX', '20,30,33,48').split(',')]
    rbl = recvs(RBv, 'rb')
    for k in range(NK):
        kl = wstart[k][-1]
        assert not any(x[0] == ('a4', kl) for x in pend if not isinstance(x, str))
        need = ids[('a4', kl)]
        if k == KCF: need = max(need, ids['ctx'])
        if k == KG: need = max(need, ids['cp'])
        if k in (KFL, KRC): assert not slowq and not any(x[0] in ('sb', 'rb', 'x4') for x in pend if not isinstance(x, str))
        if k == KFL: need = max(need, ids['sb'])
        if k == KBP + PDL: need = max(need, ids['bp'])
        if k == KRC: need = max(need, ids['rb'])
        a('s_waitcnt vmcnt(%d) lgkmcnt(8)' % min(63, vm.cnt(need)))
        if k == KCF: pend = [flag_store(78)] + pend
        if k == KG - 3: pend = [('cp', c_poll)] + pend
        if k == KG: gate(c_poll, 24, 4, 1, 63)
        if k == 7 and LEAN: pend += sent[:6];
        if k == 8 and LEAN: slowq += sent[6:] + xl
        if k == KS0 - 1: valq += packs(accB)
        if k == KS0:
            assert not valq
            sl = sends(accB, 'sb'); slowq += [x for p_ in zip(sl[:4], sl[4:]) for x in p_]
        if k == KFL:
            pend = [flag_store(56), 's_add_u32 s56, s56, 512', 's_add_u32 s%d, s%d, 32768' % (sS0, sS0), 's_add_u32 s%d, s%d, 32768' % (sS1, sS1)] + pend
        if k == KBP: pend = [('bp', b_poll)] + pend
        if k == KBP + PDL:
            gate(b_poll, 24, 1, 1, 63)
            slowq += rbl
        if k == KRC:
            pend += ['s_add_u32 s%d, s%d, 32768' % (sR0, sR0), 's_add_u32 s%d, s%d, 32768' % (sR1, sR1)]
            NG = int(os.environ.get('NG', 0))
            for n in range(NG): valq += gate_calc(n)
        newa = []
        lim = min(NK, k + LA4 + 1) if k >= KG else ND4
        while nxt_a < min(lim, wstart[k][0] + 16) and len(newa) < (CUN if nxt_a < k + 11 else 3):
            newa += a4_load(nxt_a); nxt_a += 1
        pend = newa + slowq[:2] + pend; slowq = slowq[2:]
        for u in (2 * k, 2 * k + 1):
            if u % 2: a('s_waitcnt lgkmcnt(%d)' % (8 if u + 1 < len(units) else 0))
            rd = ureads(u + 2)
            bar = (u % 8 == 6 and u + 2 < len(units))
            for g, (j, q) in enumerate(units[u][1]):
                kk, n = units[u][0][j]
                d = vr((accB if kk < ND4 else accS)(n, q), 4)
                a('%s %s, %s, %s, %s' % (MF16, d, ar(ureg(u, j), 4), ar(act4(kk, q), 4), '0' if (wstart[kk][0] in (0, ND4) and g % len(wstart[kk]) == 0) else d))
                if bar and g == 2:
                    st = k // 2
                    key = ('w4', min(st + 2, NK // 2 - 1))
                    assert not any(x[0] == key for x in pend if not isinstance(x, str))
                    a('s_waitcnt vmcnt(%d) lgkmcnt(0)' % min(63, vm.cnt(ids[key])))
                    a('s_barrier')
                    for s2_ in (st + 7, st + 8):
                        if s2_ < NK // 2 and st >= 3: pend = pend + w4_dma(s2_)
                nr = 0 if (bar and g < 2) else (2 if (bar and g < 4) else 1)
                for _ in range(nr):
                    if rd: a(rd.pop(0))
                if nr < 2:
                    while pend and pend[0] == 's_nop 0': pend.pop(0)
                    if pend and (isinstance(pend[0], str) or g % 2 == 0): a(issue(pend.pop(0)))
                for _ in range(2):
                    if valq: a(valq.pop(0))
            assert not rd
        if k == ND4 - 1: stamp(a, 14); cstamp(a, 7)
        if k % 4 == 1: stamp(a, 1 + k // 4, 'p4')
        if k == ND4 + 39:
            assert not pend
            a('s_cmp_eq_u32 s%d, 0' % sRO)
            a('s_cbranch_scc1 %s_p4done' % name)
    assert not pend and not valq
    a.label(name + '_p4done')
    stamp(a, 15); cstamp(a, 8)
    a('s_nop 7')
    stamp(a, 1, 'fin')
    pl = packs(accS); sl = sends(accS, 'ss')
    def send_part(js):
        for j in js:
            for s_ in pl[4 * j:4 * j + 4]: a(s_)
            for s_ in pl[4 * j:4 * j + 4]:
                r_ = s_.split()[1].rstrip(',')
                a('v_min_u32 %s, -2, %s' % (r_, r_))
            a(sl[j][1])
    send_part(range(4))
    lfin = name + '_fin'
    a('s_cmp_lg_u32 s%d, 0' % sRO)
    a('s_cbranch_scc1 %s' % lfin)
    send_part(range(4, 8))
    stamp(a, 16)
    stamp_flush(a, 17)
    a('s_endpgm')
    a.label(lfin)
    stamp(a, 2, 'fin')
    RS = 64
    a('s_mov_b32 s63, 0x40000')
    late = []
    for n in range(NG, 8): late += gate_calc(n)
    late += x_unpack()
    cut = int(len(late) * float(os.environ.get('RXAT', 0.5)))
    for s_ in late[:cut]: a(s_)
    for it in recvs(RS, 'rs'): a(it[1] + ' ' + WT)
    for s_ in late[cut:]: a(s_)
    a('s_branch %s_rx2' % name)
    a.label(name + '_rx')
    for it in recvs(RS, 'rs'): a(it[1] + ' ' + WT)
    a.label(name + '_rx2')
    a('s_waitcnt vmcnt(4)')
    for j in range(2):
        for src_ in range(2):
            r_ = RS + 16 * src_ + 4 * j
            if j == 0 and src_ == 0: a('v_max3_u32 v40, v%d, v%d, v%d' % (r_, r_ + 1, r_ + 2)); a('v_max_u32 v40, v40, v%d' % (r_ + 3))
            else: a('v_max3_u32 v40, v40, v%d, v%d' % (r_, r_ + 1)); a('v_max3_u32 v40, v40, v%d, v%d' % (r_ + 2, r_ + 3))
    a('s_waitcnt vmcnt(0)')
    for j in range(2, 4):
        for src_ in range(2):
            r_ = RS + 16 * src_ + 4 * j
            a('v_max3_u32 v40, v40, v%d, v%d' % (r_, r_ + 1)); a('v_max3_u32 v40, v40, v%d, v%d' % (r_ + 2, r_ + 3))
    a('v_cmp_eq_u32 vcc, -1, v40')
    a('s_sub_u32 s63, s63, 1')
    a('s_cbranch_scc1 %s_rxok' % name)
    a('s_cbranch_vccnz %s_rx' % name)
    a.label(name + '_rxok')
    stamp(a, 6, 'fin')
    for n in range(8):
        if n in (0, 7): stamp(a, 7 + n // 7, 'fin')
        S = accS(n, 0); T = 96 + 2 * n
        for s_ in unp_add(S, RS, n, 40): a(s_)
        for h in range(2): rnd(S + 2 * h, S + 2 * h + 1, 56)
        for e in range(4): a('v_mul_f32 v%d, v%d, v%d' % (S + e, S + e, accB(n, 0) + e))
        for h in range(2): a('v_cvt_pk_bf16_f32 v%d, v%d, v%d' % (T + h, S + 2 * h, S + 2 * h + 1))
        a('ds_write_b64 v21, %s offset:%d' % (vr(T, 2), 32768 + 32 * n))
    for j in range(4): a('ds_read_b128 %s, v23 offset:%d' % (vr(64 + 4 * j, 4), 32768 + 272 * j))
    for j in range(4):
        a('s_waitcnt lgkmcnt(%d)' % (3 - j))
        X_ = accB(0, 1) + 8 * j
        for e in range(4):
            a('v_lshlrev_b32 v40, 16, v%d' % (64 + 4 * j + e)); a('v_and_b32 v41, s65, v%d' % (64 + 4 * j + e))
            a('v_add_f32 v40, v40, v%d' % (X_ + 2 * e)); a('v_add_f32 v41, v41, v%d' % (X_ + 2 * e + 1))
            a('v_cvt_pk_bf16_f32 v%d, v40, v41' % (80 + 4 * j + e))
        a('buffer_store_dwordx4 %s, v%d, %s, s%d offen offset:%d %s' % (vr(80 + 4 * j, 4), VX, sr(OUT, 4), sXO, 1280 * j, OUTF))
    if os.environ.get('PADT'):
        if os.environ.get('PADG'):
            a('s_mov_b32 s96, 0x%x' % FL)
            a('buffer_load_dwordx4 v[4:7], v%d, %s, s96 offen offset:2048 %s' % (V_LANE16, sr(WS, 4), WT))
            a('s_waitcnt vmcnt(0)')
            for e in range(4): a('v_subrev_u32 v%d, s97, v%d' % (4 + e, 4 + e))
            a('v_min_i32 v4, v4, v5'); a('v_min_i32 v6, v6, v7'); a('v_min_i32 v4, v4, v6'); a('s_mov_b32 s96, 0'); a('s_nop 1')
            for l in range(64):
                a('v_readlane_b32 s95, v4, %d' % l); a('s_nop 3'); a('s_min_i32 s96, s96, s95')
            a('s_add_u32 s97, s97, s96')
        a.label(name + '_padl')
        a('s_memrealtime s[98:99]'); a('s_waitcnt lgkmcnt(0)'); a('s_sub_u32 s98, s98, s97'); a('s_cmp_lt_u32 s98, %d' % int(os.environ['PADT']))
        a('s_cbranch_scc1 %s_padl' % name)
    stamp(a, 16); stamp(a, 9, 'fin')
    stamp_flush(a, 17)
    a('s_endpgm')
    a.label(notile)
    a('s_waitcnt vmcnt(0)')
    a(flag_store(78)[1])
    a.label(end)
    a('s_endpgm')
    for slow, ok, load_ins, chk, ts in slow_paths:
        a.label(slow)
        a('s_mov_b32 s%d, 0x40000' % ts)
        lp = a.newlabel(name + '_sp')
        a.label(lp)
        a('s_sleep 1')
        a(load_ins)
        a('s_waitcnt vmcnt(0)')
        for s in chk: a(s)
        a('s_nop 1')
        a('s_cbranch_vccz %s' % ok)
        a('s_sub_u32 s%d, s%d, 1' % (ts, ts))
        a('s_cbranch_scc0 %s' % lp)
        a('s_branch %s' % ok)
    for stub, back, pc, ex in rare_sites:
        a.label(stub)
        for st, qbs in sorted(ex):
            a('s_mov_b32 s69, %s' % ('1.0' if 1 in qbs else '0'))
            a('s_call_b64 s[100:101], %s_rare%d%d' % (name, pc, st))
        a('s_branch %s' % back)
    for pc in range(2):
        for st in range(2):
            a.label('%s_rare%d%d' % (name, pc, st))
            a('s_nop 7')
            for qb in range(2):
                for s in max_ops(st, pc, qb, V_T0, V_T1): a(s)
                a('v_max_f32 v%d, 0, v%d' % (V_T0, V_T0))
                if qb == 1: a('v_mul_f32 v%d, s69, v%d' % (V_T0, V_T0))
                a('v_exp_f32 v%d, -v%d' % (V_T1, V_T0))
                for e in range(4): a('v_sub_f32 v%d, v%d, v%d' % (NEGM + (st * 2 + qb) * 4 + e, NEGM + (st * 2 + qb) * 4 + e, V_T0))
                for pp in range(2):
                    for kb in range(4):
                        for r in range(4):
                            x = SB[st][pp] + (kb * 2 + qb) * 4 + r
                            a('v_sub_f32 v%d, v%d, v%d' % (x, x, V_T0))
                a('v_mul_f32 v%d, v%d, v%d' % (V_L + st * 2 + qb, V_L + st * 2 + qb, V_T1))
                for db in range(0, 8, 2):
                    regs = [A_O[st] + ((db + h) * 2 + qb) * 4 + e for h in range(2) for e in range(4)]
                    for e in range(8): a('v_accvgpr_read_b32 v%d, a%d' % (TMP + e, regs[e]))
                    for e in range(8): a('v_mul_f32 v%d, v%d, v%d' % (TMP + e, TMP + e, V_T1))
                    for e in range(8): a('v_accvgpr_write_b32 a%d, v%d' % (regs[e], TMP + e))
            for s in exp_ops(st, pc): a(s)
            if st == 1:
                for k, (s, _, _) in enumerate(exp_seq(1, 1 - pc)[:EARLY]): a('v_exp_f32 v%d, v%d' % (TMP + k, s))
            a('s_nop 7')
            a('s_setpc_b64 s[100:101]')
    a.label(name + '_codeend')
    if os.environ.get('PADEND'): a.raw('.fill 8192, 4, 0xBF810000')
    kernel_desc(a, name, 512, 256)
    return a
```

```python
import sys
from asmlib import *

def pro(a, name):
    kernel_begin(a, name)
    a('s_cmp_ge_u32 s2, 256')
    a('s_cbranch_scc1 %s_end' % name)
    a('s_load_dwordx2 s[4:5], s[0:1], 80')
    a('s_load_dwordx2 s[6:7], s[0:1], 96')
    a('v_lshrrev_b32 v2, 6, v0')
    a('s_nop 0')
    a('v_readfirstlane_b32 s20, v2')
    a('v_and_b32 v1, 63, v0')
    a('v_lshlrev_b32 v1, 4, v1')
    a('s_waitcnt lgkmcnt(0)')
    a('s_mov_b32 s8, s6'); a('s_mov_b32 s9, s7'); a('s_mov_b32 s10, 0x10000000'); a('s_mov_b32 s11, 0x00020000')
    a('s_mov_b32 s12, s4'); a('s_mov_b32 s13, s5'); a('s_mov_b32 s14, 2621440'); a('s_mov_b32 s15, 0x00020000')

def epi(a, name):
    a('s_memtime s[34:35]')
    a('s_memrealtime s[38:39]')
    a('s_waitcnt lgkmcnt(0) vmcnt(0)')
    a('s_sub_u32 s34, s34, s32')
    a('v_mov_b32 v4, s34')
    a('v_mov_b32 v5, s36')
    a('v_mov_b32 v6, s38')
    a('s_getreg_b32 s40, hwreg(HW_REG_XCC_ID)')
    a('v_mov_b32 v7, s40')
    a('s_lshl_b32 s41, s2, 2')
    a('s_add_u32 s41, s41, s20')
    a('s_lshl_b32 s41, s41, 4')
    a('v_mov_b32 v8, s41')
    a('buffer_store_dwordx4 v[4:7], v8, s[12:15], 0 offen')
    a('s_waitcnt vmcnt(0)')
    a.label(name + '_end')
    a('s_endpgm')

def gen_rd(name, xcd_stride, wg_stride, wrap, niter, inflight=24, base=0):
    a = Asm(); pro(a, name)
    a('s_and_b32 s21, s2, 7')
    a('s_mul_i32 s21, s21, %d' % xcd_stride)
    a('s_add_u32 s21, s21, %d' % base)
    a('s_lshr_b32 s22, s2, 3')
    a('s_mul_i32 s24, s22, %d' % wg_stride)
    a('s_lshl_b32 s23, s20, 12')
    a('s_add_u32 s21, s21, s23')
    a('s_mov_b32 s30, %d' % niter)
    a('s_lshl_b32 s25, s20, 15')
    a('s_mov_b32 s27, 0')
    a('s_barrier')
    a('s_memtime s[32:33]')
    a('s_memrealtime s[36:37]')
    a('s_waitcnt lgkmcnt(0)')
    a.label(name + '_loop')
    a('s_and_b32 s24, s24, %d' % (wrap - 1))
    a('s_add_u32 s26, s21, s24')
    a('s_add_u32 m0, s25, s27')
    a('s_add_u32 s27, s27, 4096')
    a('s_and_b32 s27, s27, 0x7fff')
    for i in range(4):
        a('buffer_load_dwordx4 v1, s[8:11], s26 offen offset:%d lds' % (1024 * i))
    a('s_add_u32 s24, s24, 16384')
    a('s_waitcnt vmcnt(%d)' % inflight)
    a('s_sub_u32 s30, s30, 1')
    a('s_cmp_lg_u32 s30, 0')
    a('s_cbranch_scc1 %s_loop' % name)
    a('s_waitcnt vmcnt(0)')
    epi(a, name)
    return a

def gen_wr(name, nbytes_per_wg, flags='', base=0):
    a = Asm(); pro(a, name)
    a('s_mul_i32 s21, s2, %d' % nbytes_per_wg)
    a('s_add_u32 s21, s21, %d' % base)
    a('s_lshl_b32 s23, s20, 12')
    a('s_add_u32 s21, s21, s23')
    a('s_mov_b32 s30, %d' % (nbytes_per_wg // 16384))
    a('v_mov_b32 v8, 0x3f803f80'); a('v_mov_b32 v9, v0'); a('v_mov_b32 v10, v1'); a('v_mov_b32 v11, 0x12345678')
    a('s_barrier')
    a('s_memtime s[32:33]')
    a('s_memrealtime s[36:37]')
    a('s_waitcnt lgkmcnt(0)')
    a.label(name + '_loop')
    for i in range(4):
        a('buffer_store_dwordx4 v[8:11], v1, s[8:11], s21 offen offset:%d %s' % (1024 * i, flags))
    a('s_add_u32 s21, s21, 16384')
    a('s_sub_u32 s30, s30, 1')
    a('s_cmp_lg_u32 s30, 0')
    a('s_cbranch_scc1 %s_loop' % name)
    a('s_waitcnt vmcnt(0)')
    epi(a, name)
    return a

def gen_icache(name, n, loop):
    a = Asm(); pro(a, name)
    for i in range(8, 40): a('v_mov_b32 v%d, 0' % i)
    a('s_mov_b32 s30, %d' % loop)
    a('s_barrier')
    a('s_memtime s[32:33]')
    a('s_memrealtime s[36:37]')
    a('s_waitcnt lgkmcnt(0)')
    a.label(name + '_loop')
    for i in range(n):
        a('v_mfma_f32_32x32x16_bf16 v[16:31], v[8:11], v[12:15], v[16:31]')
        a('v_fma_f32 v32, v33, v34, v35')
        a('v_fma_f32 v36, v33, v34, v35')
        a('v_fma_f32 v37, v33, v34, v35')
    a('s_sub_u32 s30, s30, 1')
    a('s_cmp_lg_u32 s30, 0')
    a('s_cbranch_scc1 %s_loop' % name)
    epi(a, name)
    return a

MB = 1 << 20
K = {}
K['l2a_kernel'] = gen_rd('l2a_kernel', 2 * MB, 65536, 2 * MB, 128)
K['l2b_kernel'] = gen_rd('l2b_kernel', 2 * MB, 65536, 2 * MB, 128, inflight=12)
K['l2c_kernel'] = gen_rd('l2c_kernel', 2 * MB, 0, 2 * MB, 128)
K['wr1_kernel'] = gen_wr('wr1_kernel', 131072, '')
K['m1_kernel'] = gen_rd('m1_kernel', 16 * MB, 512 * 1024, 16 * MB, 32)
K['m2_kernel'] = gen_rd('m2_kernel', 0, 256 * 1024, 8 * MB, 16)
K['wr2_kernel'] = gen_wr('wr2_kernel', 131072, 'sc1')
K['m3_kernel'] = gen_rd('m3_kernel', 0, 256 * 1024, 8 * MB, 16)
K['wr3_kernel'] = gen_wr('wr3_kernel', 131072, 'nt')
K['wr4_kernel'] = gen_wr('wr4_kernel', 131072, 'sc0 sc1')
K['ic1_kernel'] = gen_icache('ic1_kernel', 1024, 1)
K['ic2_kernel'] = gen_icache('ic2_kernel', 64, 16)
out = []
for n in K:
    out.append('; @launch kernel=%s grid=(256,1,1) block=(256,1,1) lds=%d' % (n, 140 * 1024))
out.append('.amdgcn_target "amdgcn-amd-amdhsa--gfx950"')
body = ''
for n, a in K.items():
    kernel_desc(a, n, 384, 128, 102)
    body += a.text()
open('bench4.s', 'w').write('\n'.join(out) + '\n' + body)
```

```python
from asmlib import *
from bench4 import pro
def gen(name, offs, st=None):
    a = Asm(); pro(a, name)
    a('s_xor_b32 s21, s2, %d' % (0 if st is not None else 3)); a('s_lshl_b32 s21, s21, 12')
    a('s_lshl_b32 s22, s20, 10'); a('s_add_u32 s21, s21, s22')
    a('s_memrealtime s[40:41]'); a('s_waitcnt lgkmcnt(0)')
    for i, o in enumerate(offs):
        a('s_add_u32 s23, s21, %d' % o)
        if st is not None: a('buffer_store_dwordx4 v[4:7], v1, s[8:11], s23 offen ' + st)
        else: a('buffer_load_dwordx4 v[4:7], v1, s[8:11], s23 offen')
        a('s_waitcnt vmcnt(0)')
        a('s_memrealtime s[%d:%d]' % (42 + 2 * i, 43 + 2 * i)); a('s_waitcnt lgkmcnt(0)')
    a('s_lshl_b32 s30, s2, 2'); a('s_add_u32 s30, s30, s20'); a('s_lshl_b32 s30, s30, 5')
    a('v_mov_b32 v8, 0')
    for i in range(len(offs) + 1):
        a('v_mov_b32 v9, s%d' % (40 + 2 * i)); a('buffer_store_dword v9, v8, s[12:15], s30 offen offset:%d' % (4 * i)); a('s_nop 1')
    a.label(name + '_end'); a('s_endpgm')
    return a
MB = 1 << 20
offs = [0, 1 * MB, 4 * MB, 5 * MB, 64 * MB, 65 * MB, 0]
K = {'ld_kernel': gen('ld_kernel', offs), 'sa_kernel': gen('sa_kernel', offs, ''), 'sb_kernel': gen('sb_kernel', offs, 'sc1'), 'sc_kernel': gen('sc_kernel', offs, 'sc0 sc1'), 'sd_kernel': gen('sd_kernel', offs, 'nt'), 'se_kernel': gen('se_kernel', offs, 'sc0 sc1 nt')}
out = ['; @launch kernel=%s grid=(256,1,1) block=(256,1,1) lds=%d' % (n, 140 * 1024) for n in K]
out.append('.amdgcn_target "amdgcn-amd-amdhsa--gfx950"')
body = ''
for n, a in K.items():
    kernel_desc(a, n, 384, 128, 102); body += a.text()
open('bench10.s', 'w').write('\n'.join(out) + '\n' + body)
```
